```python
import torch

def _softmax(x, axis=-1):
    return torch.softmax(x, dim=axis)
def _gelu(x):
    return torch.nn.functional.gelu(x, approximate="tanh")
def _silu(x):
    return torch.nn.functional.silu(x)
def _sigmoid(x):
    return torch.sigmoid(x)
def _layernorm(x, axis=-1, eps=1e-5):
    m = x.mean(dim=axis, keepdim=True)
    v = x.var(dim=axis, keepdim=True, unbiased=False)
    return (x - m) / torch.sqrt(v + eps)
def _scatter_add(tgt, idx, src, axis=0):
    return tgt.clone().index_add_(axis, idx, src)
def _segment_sum(src, seg, n):
    out = torch.zeros((n,) + src.shape[1:], dtype=src.dtype)
    return out.index_add_(0, seg, src)
def _pad(x, pw):
    flat = tuple(v for pair in reversed(pw) for v in pair)
    return torch.nn.functional.pad(x, flat)

kernel_name = 'concat_heads__mha_block_cached__sliding_block_cached__decode'

def setup_inputs():

    _w = (lambda a: (lambda t: t.to(torch.bfloat16) if t.is_floating_point() else t)(torch.as_tensor(a)))
    def _A_setup():
        B, Sq, D = 4, 1, 448
        H, Sk, Dh = 16, 4096, 256
        return {
            "x": _w((lambda *s: torch.randn(*s, dtype=torch.bfloat16) * 0.8)(B, Sq, D)),
            "k_cache": _w((lambda *s: torch.randn(*s, dtype=torch.bfloat16) * 1.6)(B, H, Sk, Dh)),
            "v_cache": _w((lambda *s: torch.randn(*s, dtype=torch.bfloat16) * 0.2)(B, H, Sk, Dh)),
            "wq": _w((lambda *s: torch.randn(*s, dtype=torch.bfloat16) * 1.6)(D, H * Dh) * (D ** -0.5)),
            "wo": _w((lambda *s: torch.randn(*s, dtype=torch.bfloat16) * 0.2)(H * Dh, D) * ((H * Dh) ** -0.5)),
        }
    _A_in = _A_setup()

    def _B_setup():
        B, Sq, D = 4, 1, 448
        Hq, Hkv, Sk, Dh = 16, 8, 4096, 256
        assert Hq % Hkv == 0, (Hq, Hkv)
        return {
            "x": _w((lambda *s: torch.randn(*s, dtype=torch.bfloat16) * 0.8)(B, Sq, D)),
            "k_cache": _w((lambda *s: torch.randn(*s, dtype=torch.bfloat16) * 1.6)(B, Hkv, Sk, Dh)),
            "v_cache": _w((lambda *s: torch.randn(*s, dtype=torch.bfloat16) * 0.2)(B, Hkv, Sk, Dh)),
            "wq": _w((lambda *s: torch.randn(*s, dtype=torch.bfloat16) * 1.6)(D, Hq * Dh) * (D ** -0.5)),
            "wo": _w((lambda *s: torch.randn(*s, dtype=torch.bfloat16) * 0.2)(Hq * Dh, D) * ((Hq * Dh) ** -0.5)),
        }
    _B_in = _B_setup()

    return {
        "A_x": _A_in["x"],
        "A_k_cache": _A_in["k_cache"],
        "A_v_cache": _A_in["v_cache"],
        "A_wq": _A_in["wq"],
        "A_wo": _A_in["wo"],
        "B_x": _B_in["x"],
        "B_k_cache": _B_in["k_cache"],
        "B_v_cache": _B_in["v_cache"],
        "B_wq": _B_in["wq"],
        "B_wo": _B_in["wo"],
    }

def reference(A_x, A_k_cache, A_v_cache, A_wq, A_wo, B_x, B_k_cache, B_v_cache, B_wq, B_wo):
    def _A_ref(x, k_cache, v_cache, wq, wo):
        B, Sq, D = x.shape
        H, Dh = 16, 256
        q = (lambda x, *d: x.permute(*d))((x @ wq).reshape(B, Sq, H, Dh), 0, 2, 1, 3)
        scores = torch.einsum("bhqd,bhkd->bhqk", q, k_cache) * (Dh ** -0.5)
        p = _softmax(scores, axis=-1)
        o = torch.einsum("bhqk,bhkd->bhqd", p, v_cache)
        return (lambda x, *d: x.permute(*d))(o, 0, 2, 1, 3).reshape(B, Sq, H * Dh) @ wo

    def _B_ref(x, k_cache, v_cache, wq, wo):
        B, Sq, D = x.shape
        Hq, Dh = 16, 256
        Hkv, Sk = k_cache.shape[1], k_cache.shape[2]
        W = min(4096, max(256, Sk // 4))
        rep = Hq // Hkv
        q = (lambda x, *d: x.permute(*d))((x @ wq).reshape(B, Sq, Hq, Dh), 0, 2, 1, 3)
        k = (lambda x, n, axis: torch.repeat_interleave(x, n, dim=axis))(k_cache[:, :, Sk - W:, :], rep, axis=1)
        v = (lambda x, n, axis: torch.repeat_interleave(x, n, dim=axis))(v_cache[:, :, Sk - W:, :], rep, axis=1)
        scores = torch.einsum("bhqd,bhkd->bhqk", q, k) * (Dh ** -0.5)
        p = _softmax(scores, axis=-1)
        o = torch.einsum("bhqk,bhkd->bhqd", p, v)
        return (lambda x, *d: x.permute(*d))(o, 0, 2, 1, 3).reshape(B, Sq, Hq * Dh) @ wo

    a = _A_ref(A_x, A_k_cache, A_v_cache, A_wq, A_wo)
    b = _B_ref(B_x, B_k_cache, B_v_cache, B_wq, B_wo)
    return torch.concatenate([a, b], axis=-1)
```

```python
import re
REG = re.compile(r'\b([vas])(\d+)\b|\b([vas])\[(\d+):(\d+)\]|\b(vcc|exec)\b')
TRANS = ('v_exp_f32','v_log_f32','v_rcp_f32','v_rsq_f32','v_sqrt_f32')

def regs_of(txt):
    out = []
    for m in REG.finditer(txt):
        if m.group(1): out.append((m.group(1), int(m.group(2))))
        elif m.group(3): out += [(m.group(3), i) for i in range(int(m.group(4)), int(m.group(5))+1)]
        else: out.append((m.group(6), 0))
    return out

def split_ops(rest):
    ops, depth, cur = [], 0, ''
    for ch in rest:
        if ch == '[': depth += 1
        if ch == ']': depth -= 1
        if ch == ',' and depth == 0:
            ops.append(cur.strip()); cur = ''
        else: cur += ch
    if cur.strip(): ops.append(cur.strip())
    return ops

class Ins:
    def __init__(self, txt):
        self.txt = txt
        t = txt.split(';')[0].strip()
        sp = t.split(None, 1)
        self.op = op = sp[0]
        ops = split_ops(sp[1]) if len(sp) > 1 else []
        self.w, self.r = set(), set()
        self.mfma = op.startswith('v_mfma')
        self.valu = op.startswith('v_') and not self.mfma
        self.trans = op in TRANS
        self.dpp = '_dpp' in op
        self.perml = op.startswith('v_permlane')
        self.rdl = op.startswith('v_readlane') or op.startswith('v_readfirstlane')
        self.vmem = op.startswith('buffer_') or op.startswith('global_')
        self.ds = op.startswith('ds_')
        self.store = self.vmem and ('store' in op or 'atomic' in op)
        self.wide_store = self.store and ('x4' in op or 'x3' in op)
        self.states = 1
        if op == 's_nop': self.states = int(ops[0], 0) + 1
        self.cs = set(); self.ab = set(); self.sdata = set(); self.dppsrc = set(); self.lanesel = set()
        if self.mfma:
            self.w = set(regs_of(ops[0])); self.ab = set(regs_of(ops[1]) + regs_of(ops[2])); self.cs = set(regs_of(ops[3]))
            self.r = self.ab | self.cs
        elif self.valu:
            self.w = set(regs_of(ops[0]))
            rest = ops[1:]
            if op.startswith(('v_add_co', 'v_sub_co', 'v_addc_co')):
                self.w |= set(regs_of(ops[1])); rest = ops[2:]
            for o in rest: self.r |= set(regs_of(o))
            if self.perml: self.w |= set(regs_of(ops[1])); self.r |= set(regs_of(ops[0]))
            if op.startswith(('v_fmac', 'v_writelane')) or self.dpp: self.r |= set(regs_of(ops[0]))
            if self.dpp: self.dppsrc = set(regs_of(ops[1].split()[0]))
            if op.startswith('v_readlane'): self.lanesel = set(regs_of(ops[2]))
        elif self.vmem:
            if self.store:
                for o in ops: self.r |= set(regs_of(o))
                self.sdata = set(regs_of(ops[0] if op.startswith('buffer_') else ops[1]))
            else:
                self.w = set(regs_of(ops[0]))
                for o in ops[1:]: self.r |= set(regs_of(o))
        elif self.ds:
            if 'write' in op or 'add' in op:
                for o in ops: self.r |= set(regs_of(o))
            else:
                self.w = set(regs_of(ops[0]))
                for o in ops[1:]: self.r |= set(regs_of(o))
        else:
            if ops and not op.startswith(('s_cmp', 's_cbranch', 's_branch', 's_waitcnt', 's_nop', 's_barrier', 's_sleep', 's_endpgm', 's_setprio')):
                self.w = set(regs_of(ops[0]))
                for o in ops[1:]: self.r |= set(regs_of(o))
            else:
                for o in ops: self.r |= set(regs_of(o))

def isS(r): return r[0] in ('s', 'vcc')

def need(p, c):
    n = 0
    if p.valu:
        wv = {r for r in p.w if r[0] in 'va' and r[0] != 'vcc'}
        ws = {r for r in p.w if isS(r)}
        if c.mfma and wv & c.r: n = max(n, 2)
        if c.dpp and wv & c.dppsrc: n = max(n, 2)
        if c.perml and wv & c.r: n = max(n, 2)
        if c.rdl and wv & c.r: n = max(n, 1)
        if p.trans and c.valu and wv & c.r: n = max(n, 1)
        if c.valu and ws & c.r: n = max(n, 2)
        if c.valu and ws & c.lanesel: n = max(n, 4)
        if c.vmem and ws & c.r: n = max(n, 5)
    if p.mfma:
        if c.mfma:
            if p.w & c.ab: n = max(n, 8)
            if p.w & c.cs and p.w != c.cs: n = max(n, 6)
            if p.w & c.w and p.w != c.cs: n = max(n, 8)
        elif c.valu or c.vmem or c.ds:
            if p.w & (c.r | c.w): n = max(n, 8)
        if c.valu and p.cs & c.w: n = max(n, 3)
    if p.wide_store and p.sdata & c.w: n = max(n, 2)
    return n

class Prog:
    def __init__(self):
        self.ir = []
        self.nid = 0
    def __call__(self, txt):
        for line in txt.strip().split('\n'):
            line = line.strip()
            if line: self.ir.append(('i', line))
    def vm(self, txt):
        self.nid += 1
        self.ir.append(('vm', txt, self.nid)); return self.nid
    def wait(self, *ids):
        self.ir.append(('w', [i for i in ids if i is not None]))
    def waitall(self):
        self.ir.append(('wall',))
    def label(self, name):
        self.ir.append(('l', name))
    def raw(self, txt):
        self.ir.append(('raw', txt))
    def fence(self):
        self.ir.append(('f',))
    def render(self):
        out = []; hist = []; order = []; done = -1
        stats = dict(nops=0, waits=0)
        def emit(txt):
            c = Ins(txt)
            dist = 0; pad = 0
            for p in reversed(hist):
                if dist >= 12: break
                pad = max(pad, need(p, c) - dist)
                dist += p.states
            if pad > 0:
                np_ = Ins(f's_nop {pad-1}'); hist.append(np_); out.append('    ' + np_.txt); stats['nops'] += 1
            hist.append(c); out.append('    ' + txt)
            del hist[:-16]
        for it in self.ir:
            if it[0] == 'i':
                if it[1].startswith(';'): out.append('    ' + it[1])
                else: emit(it[1])
            elif it[0] == 'vm':
                emit(it[1]); order.append(it[2])
            elif it[0] == 'w':
                if not it[1]: continue
                pos = max(order.index(i) for i in it[1])
                if pos > done:
                    n = len(order) - 1 - pos
                    assert n <= 63, n
                    emit(f's_waitcnt vmcnt({n})'); done = pos; stats['waits'] += 1
            elif it[0] == 'wall':
                emit('s_waitcnt vmcnt(0)'); done = len(order) - 1
            elif it[0] == 'l':
                out.append(it[1] + ':')
            elif it[0] == 'raw':
                out.append(it[1])
            elif it[0] == 'f':
                emit('s_nop 7'); emit('s_nop 3')
        return '\n'.join(out) + '\n', stats

class Alloc:
    def __init__(self, kind, lo, hi):
        self.kind, self.free = kind, set(range(lo, hi)); self.hw = lo
    def get(self, n=1, align=None):
        align = align or (1 if n == 1 else (2 if self.kind != 's' or n == 2 else 4))
        for b in sorted(self.free):
            if b % align == 0 and all(b+i in self.free for i in range(n)):
                for i in range(n): self.free.remove(b+i)
                self.hw = max(self.hw, b+n)
                return b
        raise RuntimeError(f'out of {self.kind} regs ({n})')
    def put(self, b, n=1):
        for i in range(n):
            assert b+i not in self.free
            self.free.add(b+i)
```

```python
import sys, math, struct
from asmlib import Prog, Alloc
KNAME = "concat_heads__mha_block_cached__sliding_block_cached__decode_kernel"

WS_Q, WS_SC, WS_OB, WS_Y, WS_DIAG = 0x10000, 0x40000, 0x200000, 0x400000, 0x800000
OB_STRIDE, Y_STRIDE = 4352, 3584
L_QRED, L_BRED, L_BST, L_AST, L_ARED, L_TOTAL = 0, 8192, 16384, 16448, 16512, 18560
CS = struct.unpack('<I', struct.pack('<f', math.log2(math.e) / 16.0))[0]
BIG = 0x7ff00000
FULL = "row_mask:0xf bank_mask:0xf"

def gen(W=5, qg=22, sg=28, wflag="nt", diag=False, kcatch=3, vcatch=3, wob=56, woa=100, obg=76, Wtail=None):
    P = Prog()
    V = Alloc('v', 1, 256); S = Alloc('s', 3, 100)
    slots = list(range(64))
    def a4(s): return f"a[{4*s}:{4*s+3}]"
    def v4(r): return f"v[{r}:{r+3}]"
    def v2(r): return f"v[{r}:{r+1}]"
    def srd(r): return f"s[{r}:{r+3}]"
    def sp(r): return f"s[{r}:{r+1}]"
    slow = []
    stamps = []
    def stamp(name):
        if diag:
            r = S.get(2); stamps.append((name, r)); P(f"s_memrealtime {sp(r)}")

    rX, rWQ, rBK, rBV, rAK, rAV, rWOA, rWOB, rWS, rOUT = [S.get(4) for _ in range(10)]
    sT0, sT1, sWv, sTag, sOff, sAux, sSel0, sSel1, sC, sSpin = [S.get() for _ in range(10)]
    P("s_cmp_ge_u32 s2, 256")
    P("s_cbranch_scc1 L_end")
    stamp("start")
    P(f"""
    s_lshr_b32 s{sT0}, s2, 7
    s_mul_i32 s{sT0}, s{sT0}, 40
    s_add_u32 s{sT1}, s{sT0}, 24
    s_load_dwordx2 {sp(rX)}, s[0:1], s{sT0}
    s_load_dwordx2 {sp(rWQ)}, s[0:1], s{sT1}
    s_load_dwordx2 {sp(rBK)}, s[0:1], 48
    s_load_dwordx2 {sp(rWS)}, s[0:1], 96
    s_load_dwordx2 {sp(rBV)}, s[0:1], 56
    s_load_dwordx2 {sp(rAK)}, s[0:1], 8
    s_load_dwordx2 {sp(rAV)}, s[0:1], 16
    s_load_dwordx2 {sp(rWOA)}, s[0:1], 32
    s_load_dwordx2 {sp(rWOB)}, s[0:1], 72
    s_load_dwordx2 {sp(rOUT)}, s[0:1], 80
    """)
    for r, sz in [(rX, 3584), (rWQ, 3670016), (rBK, 1 << 26), (rBV, 1 << 26), (rAK, 1 << 27), (rAV, 1 << 27),
                  (rWOA, 3670016), (rWOB, 3670016), (rWS, 1 << 24), (rOUT, 7168)]:
        P(f"s_mov_b32 s{r+2}, {sz}")
        P(f"s_mov_b32 s{r+3}, 0x20000")
    vLane, vT0, vT1, vT2, vBig = [V.get() for _ in range(5)]
    vXo, vWQo, vKo, vVBo, vVAo = [V.get() for _ in range(5)]
    sCB = S.get()
    P(f"""
    v_lshrrev_b32 v{vT0}, 6, v0
    v_and_b32 v{vLane}, 63, v0
    v_readfirstlane_b32 s{sWv}, v{vT0}
    v_mov_b32 v{vBig}, {BIG}
    v_lshrrev_b32 v{vT0}, 2, v0
    v_and_b32 v{vT1}, 3, v0
    v_lshlrev_b32 v{vWQo}, 16, v{vT0}
    v_lshl_add_u32 v{vWQo}, v{vT1}, 4, v{vWQo}
    v_mul_u32_u24 v{vXo}, 896, v{vT1}
    v_lshl_add_u32 v{vXo}, v{vT0}, 4, v{vXo}
    v_cmp_gt_u32 vcc, 56, v{vT0}
    v_cndmask_b32 v{vXo}, v{vBig}, v{vXo}, vcc
    s_and_b32 s{sCB}, s2, 0x70
    s_and_b32 s{sT0}, s2, 7
    s_lshl_b32 s{sT0}, s{sT0}, 1
    s_or_b32 s{sCB}, s{sCB}, s{sT0}
    s_bfe_u32 s{sT0}, s2, 0x10003
    s_or_b32 s{sCB}, s{sCB}, s{sT0}
    s_lshl_b32 s{sAux}, s{sCB}, 6
    v_bfe_u32 v{vT0}, v{vLane}, 2, 2
    v_lshlrev_b32 v{vKo}, 10, v{vT0}
    v_lshl_add_u32 v{vKo}, v{vT1}, 4, v{vKo}
    v_lshrrev_b32 v{vT0}, 4, v{vLane}
    v_lshl_add_u32 v{vKo}, v{vT0}, 6, v{vKo}
    s_lshr_b32 s{sOff}, s2, 3
    s_lshl_b32 s{sOff}, s{sOff}, 21
    s_and_b32 s{sT0}, s2, 7
    s_lshl_b32 s{sT0}, s{sT0}, 16
    s_add_u32 s{sOff}, s{sOff}, s{sT0}
    s_lshl_b32 s{sT0}, s{sWv}, 12
    s_add_u32 s{sOff}, s{sOff}, s{sT0}
    s_add_u32 s{sOff}, s{sOff}, {3072*512}
    s_waitcnt lgkmcnt(0)
    s_load_dword s{sTag}, {sp(rWS)}, 0
    """)
    stamp("karg")
    vX = V.get(4); vWQ = V.get(32, 4)
    idx = P.vm(f"buffer_load_dwordx4 {v4(vX)}, v{vXo}, {srd(rX)}, 0 offen")
    idwq = []
    for j in range(8):
        idwq.append(P.vm(f"buffer_load_dwordx4 {v4(vWQ+4*j)}, v{vWQo}, {srd(rWQ)}, s{sAux} offen {wflag}"))
        if j < 7: P(f"s_addk_i32 s{sAux}, 0x2000")

    stream = []
    for k in range(16): stream.append(("BK", k))
    for k in range(16): stream.append(("BV", k))
    for k in range(128): stream.append(("AK", k))
    for k in range(128): stream.append(("AV", k))
    sid = {}; sslot = {}
    def issue(i):
        kind, k = stream[i]
        if k == 0 and kind == "BV":
            P(f"s_sub_u32 s{sOff}, s{sOff}, {3*16384}")
        elif k == 0 and kind == "AK":
            P(f"""
            s_lshl_b32 s{sOff}, s2, 19
            s_lshl_b32 s{sT0}, s{sWv}, 12
            s_add_u32 s{sOff}, s{sOff}, s{sT0}
            """)
        elif k == 0 and kind == "AV":
            P(f"""
            s_lshr_b32 s{sOff}, s2, 2
            s_lshl_b32 s{sOff}, s{sOff}, 21
            s_and_b32 s{sT0}, s2, 3
            s_lshl_b32 s{sT0}, s{sT0}, 7
            s_add_u32 s{sOff}, s{sOff}, s{sT0}
            s_lshl_b32 s{sT0}, s{sWv}, 12
            s_add_u32 s{sOff}, s{sOff}, s{sT0}
            """)
        elif k and (kind == "AV" or k % 4 == 0):
            P(f"s_addk_i32 s{sOff}, 0x4000")
        w = W if (Wtail is None or i < len(stream) - Wtail[0]) else Wtail[1]
        if i >= w: P.wait(sid[i-w])
        s = slots.pop(0); sslot[i] = s
        r, vo = {"BK": (rBK, vKo), "BV": (rBV, vVBo), "AK": (rAK, vKo), "AV": (rAV, vVAo)}[kind]
        imm = 0 if kind == "AV" else (k & 3) * 256
        o = f" offset:{imm}" if imm else ""
        sid[i] = P.vm(f"buffer_load_dwordx4 {a4(s)}, v{vo}, {srd(r)}, s{sOff} offen{o} nt")
        return i - w
    def release(i): slots.append(sslot[i])

    def xlane(op, x, t, steps):
        for st in steps:
            if st in ("x1", "x2", "r4", "r8"):
                d = {"x1": "quad_perm:[1,0,3,2]", "x2": "quad_perm:[2,3,0,1]", "r4": "row_ror:4", "r8": "row_ror:8"}[st]
                P(f"{op}_dpp v{x}, v{x}, v{x} {d} {FULL}")
            else:
                P(f"v_mov_b32 v{t}, v{x}")
                P(f"v_permlane{st[1:]}_swap_b32 v{x}, v{t}")
                P(f"{op} v{x}, v{x}, v{t}")
    def tagcheck(Q, tags, t0, t1):
        tags = list(tags)
        if len(tags) % 2: tags.append(tags[-1])
        first = True
        for a, b in zip(tags[0::2], tags[1::2]):
            d = t0 if first else t1
            Q(f"v_bitop3_b32 v{d}, v{a}, v{b}, s{sTag} bitop3:0x7e")
            if not first: Q(f"v_or_b32 v{t0}, v{t0}, v{t1}")
            first = False
        Q(f"v_cmp_ne_u32 vcc, 0, v{t0}")
    def gather(name, loads, tags):
        ids = []
        def iss():
            for t in loads: ids.append(P.vm(t))
        def chk():
            P.wait(*ids)
            tagcheck(P, tags, vT0, vT1)
            P(f"s_cbranch_vccnz L_slow_{name}")
            P.label(f"L_back_{name}")
            Q = Prog()
            Q.label(f"L_slow_{name}")
            Q(f"s_add_u32 s{sSpin}, s{sSpin}, 1")
            Q(f"s_cmp_gt_u32 s{sSpin}, 0x40000")
            Q(f"s_cbranch_scc1 L_back_{name}")
            for t in loads: Q.vm(t)
            Q.waitall()
            tagcheck(Q, tags, vT0, vT1)
            Q(f"s_cbranch_vccnz L_slow_{name}")
            Q(f"s_branch L_back_{name}")
            slow.append(Q)
        return iss, chk
    def extract(D, dst, tau, t):
        rs = [r for r in range(4) if r != tau]
        src = D + tau
        for n, r in enumerate(rs):
            last = n == 2
            m = f"row_mask:0xf bank_mask:{1 << tau:#x}" if last else FULL
            P(f"v_add_f32_dpp v{dst if last else t}, v{D+r}, v{src} row_ror:{(4*(tau-r)) % 16} {m}")
            src = t

    bg = []
    def B(at, fn, after=1): bg.append((at, fn, after))

    vSel = V.get(4); vWOo = V.get(); vL16 = V.get()
    def c_setup():
        P(f"""
        v_lshrrev_b32 v{vT0}, 4, v{vLane}
        v_and_b32 v{vT1}, 15, v{vLane}
        v_lshlrev_b32 v{vVBo}, 10, v{vT0}
        v_lshl_add_u32 v{vVBo}, v{vT1}, 4, v{vVBo}
        v_lshlrev_b32 v{vL16}, 4, v{vLane}
        v_lshrrev_b32 v{vWOo}, 1, v{vT0}
        v_mul_u32_u24 v{vWOo}, {32*896}, v{vWOo}
        v_and_b32 v{vT0}, 1, v{vT0}
        v_mul_u32_u24 v{vT0}, {4*896}, v{vT0}
        v_lshl_add_u32 v{vT0}, v{vT1}, 4, v{vT0}
        v_add_u32 v{vWOo}, v{vWOo}, v{vT0}
        v_cmp_gt_u32 vcc, 14, v{vT1}
        v_cndmask_b32 v{vWOo}, v{vBig}, v{vWOo}, vcc
        v_lshrrev_b32 v{vT0}, 3, v{vLane}
        v_and_b32 v{vT1}, 7, v{vLane}
        v_lshlrev_b32 v{vVAo}, 9, v{vT0}
        v_lshl_add_u32 v{vVAo}, v{vT1}, 4, v{vVAo}
        v_and_b32 v{vT0}, 1, v{vT0}
        v_mul_u32_u24 v{vT0}, 0x0202, v{vT0}
        v_add_u32 v{vT0}, 0x0100, v{vT0}
        v_or_b32 v{vT2}, 0x0c0c0000, v{vT0}
        v_lshlrev_b32 v{vT0}, 16, v{vT0}
        v_or_b32 v{vT0}, 0x0c0c, v{vT0}
        s_mov_b32 vcc_lo, 0xaaaaaaaa
        s_mov_b32 vcc_hi, 0xaaaaaaaa
        v_cndmask_b32 v{vT0}, v{vT2}, v{vT0}, vcc
        v_mov_b32 v{vT2}, 0x0c0c0c0c
        """)
        for r in range(4):
            P(f"s_mov_b32 vcc_lo, {0x03030303 << (2*r):#x}")
            P(f"s_mov_b32 vcc_hi, {0x03030303 << (2*r):#x}")
            P(f"v_cndmask_b32 v{vSel+r}, v{vT2}, v{vT0}, vcc")
        P(f"""
        s_mov_b32 s{sSel0}, 0x05040100
        s_mov_b32 s{sSel1}, 0x07060302
        s_mov_b32 s{sC}, {CS:#x}
        s_mov_b32 s{sSpin}, 0
        """)
    def transp(dst, src, e):
        for q in range(4):
            P(f"v_perm_b32 v{dst+q}, v{src+4*(2*q+1)+(e>>1)}, v{src+4*(2*q)+(e>>1)}, s{sSel1 if e & 1 else sSel0}")

    vQD = V.get(32, 4); vTB = [V.get(4, 4), V.get(4, 4)]
    def c_q(e0):
        def f():
            P.wait(idx, *idwq)
            if e0 == 0: stamp("wq")
            for e in range(e0, e0+4):
                transp(vTB[e & 1], vWQ, e)
                P(f"v_mfma_f32_16x16x32_bf16 {v4(vQD+4*e)}, {v4(vX)}, {v4(vTB[e & 1])}, 0")
        return f
    def c_q3():
        a = vTB[0]; r = vWQ
        P(f"""
        v_lshrrev_b32 v{a}, 4, v0
        v_lshlrev_b32 v{a}, 9, v{a}
        v_and_b32 v{a+1}, 3, v0
        v_lshl_add_u32 v{a}, v{a+1}, 7, v{a}
        s_mov_b32 exec_lo, 0x00f0000f
        s_mov_b32 exec_hi, 0xf0000f00
        """)
        for e in range(8): P(f"ds_write_b128 v{a}, {v4(vQD+4*e)} offset:{L_QRED+16*e}")
        P(f"""
        s_mov_b64 exec, -1
        v_and_b32 v{a}, 31, v{vLane}
        v_lshlrev_b32 v{a}, 4, v{a}
        v_lshrrev_b32 v{a+1}, 5, v{vLane}
        v_lshl_add_u32 v{a}, v{a+1}, 12, v{a}
        s_lshl_b32 s{sT0}, s{sWv}, 2
        v_add_u32 v{a}, s{sT0}, v{a}
        s_waitcnt lgkmcnt(0)
        s_barrier
        """)
        for k in range(4): P(f"ds_read2st64_b32 {v2(r+2*k)}, v{a} offset0:{L_QRED//256+4*k} offset1:{L_QRED//256+4*k+2}")
        P(f"""
        s_add_u32 s{sTag}, s{sTag}, 0x9e3779b9
        s_lshr_b32 s{sT0}, s2, 7
        s_lshl_b32 s{sT0}, s{sT0}, 2
        s_add_u32 s{sT0}, s{sT0}, s{sWv}
        s_lshl_b32 s{sT0}, s{sT0}, 14
        s_lshl_b32 s{sT1}, s{sCB}, 7
        s_add_u32 s{sT0}, s{sT0}, s{sT1}
        s_add_u32 s{sT0}, s{sT0}, {WS_Q}
        v_lshlrev_b32 v{a+2}, 2, v{vLane}
        s_waitcnt lgkmcnt(0)
        v_add_f32 v{r}, v{r}, v{r+1}
        v_add_f32 v{r+2}, v{r+2}, v{r+3}
        v_add_f32 v{r+4}, v{r+4}, v{r+5}
        v_add_f32 v{r+6}, v{r+6}, v{r+7}
        v_add_f32 v{r}, v{r}, v{r+2}
        v_add_f32 v{r+4}, v{r+4}, v{r+6}
        v_add_f32 v{r}, v{r}, v{r+4}
        """)
        xlane("v_add_f32", r, r+1, ["p32"])
        P(f"""
        v_mov_b32_dpp v{r+1}, v{r} quad_perm:[1,0,3,2] {FULL}
        v_cvt_pk_bf16_f32 v{r+2}, v{r}, v{r+1}
        v_mov_b32 v{r+3}, s{sTag}
        s_mov_b32 exec_lo, 0x55555555
        s_mov_b32 exec_hi, 0
        """)
        P.vm(f"buffer_store_dwordx2 {v2(r+2)}, v{a+2}, {srd(rWS)}, s{sT0} offen sc1")
        P("s_mov_b64 exec, -1")
        stamp("qpub")
    B(W-1, c_setup, 0); B(0, c_q(0), 0); B(0, c_q(4), 0); B(0, c_q3)

    vQA = V.get(32, 4); vQB = V.get(16, 4)
    vG = vQD
    vGo = V.get(2); sQA, sQB = S.get(), S.get()
    ql = [f"buffer_load_dwordx4 {v4(vG+8*u+4*hf)}, v{vGo}, {srd(rWS)}, s{sQA} offen offset:{512*u+16*hf} sc1" for u in range(2) for hf in range(2)]
    ql += [f"buffer_load_dwordx4 {v4(vG+16+8*u+4*hf)}, v{vGo+1}, {srd(rWS)}, s{sQB} offen offset:{512*u+16*hf} sc1" for u in range(2) for hf in range(2)]
    q_iss, q_chk = gather("q", ql, range(vG+1, vG+32, 2))
    def c_qg():
        P(f"""
        v_lshrrev_b32 v{vGo}, 2, v{vLane}
        v_lshlrev_b32 v{vGo}, 5, v{vGo}
        v_and_b32 v{vT0}, 1, v{vLane}
        v_lshl_add_u32 v{vGo+1}, v{vT0}, 10, v{vGo}
        s_lshr_b32 s{sQA}, s2, 2
        s_lshl_b32 s{sQA}, s{sQA}, 10
        s_add_u32 s{sQA}, s{sQA}, {WS_Q}
        s_lshr_b32 s{sQB}, s2, 3
        s_lshl_b32 s{sQB}, s{sQB}, 11
        s_add_u32 s{sQB}, s{sQB}, {WS_Q + 4*16384}
        """)
        q_iss()
    st = dict(kok=False, vok=False)
    def c_qb1():
        q_chk(); stamp("qgot")
        for t in range(2):
            P(f"s_mov_b32 vcc_lo, {0x33333333 << (2*t):#x}"); P(f"s_mov_b32 vcc_hi, {0x33333333 << (2*t):#x}")
            for u in range(2):
                for q in range(4): P(f"v_cndmask_b32 v{vQB+8*u+4*t+q}, 0, v{vG+16+8*u+2*q}, vcc")
    def c_qb2():
        for t in range(4):
            P(f"s_mov_b32 vcc_lo, {0x11111111 << t:#x}"); P(f"s_mov_b32 vcc_hi, {0x11111111 << t:#x}")
            for u in range(2):
                for q in range(4): P(f"v_cndmask_b32 v{vQA+16*u+4*t+q}, 0, v{vG+8*u+2*q}, vcc")
        st['kok'] = True
    B(qg, c_qg); B(0, c_qb1, W); B(0, c_qb2)

    vD = [V.get(4, 4) for _ in range(4)]
    vSB, vMB, vLB, vPB = vWQ, vWQ+1, vWQ+2, vWQ+3
    vDB = vWQ + 8
    vBD = vWQ + 16
    def c_bqk():
        P.wait(sid[15])
        for tau in range(4):
            for n in range(4):
                t, u = n >> 1, n & 1
                P(f"v_mfma_f32_16x16x32_bf16 {v4(vBD+4*tau)}, {a4(sslot[4*tau+n])}, {v4(vQB+8*u+4*t)}, {v4(vBD+4*tau) if n else 0}")
                release(4*tau+n)
        for tau in range(4): extract(vBD+4*tau, vSB, tau, vT0)
    def c_bsm():
        P(f"""
        v_cvt_pk_bf16_f32 v{vSB}, v{vSB}, v{vSB}
        v_and_b32 v{vSB}, 0xffff0000, v{vSB}
        v_mul_f32 v{vSB}, s{sC}, v{vSB}
        v_mov_b32 v{vMB}, v{vSB}
        """)
        xlane("v_max_f32", vMB, vT0, ["x2", "r4", "r8", "p16", "p32"])
        P(f"""
        v_sub_f32 v{vSB}, v{vSB}, v{vMB}
        v_exp_f32 v{vSB}, v{vSB}
        v_mov_b32 v{vLB}, v{vSB}
        v_mov_b32_dpp v{vT1}, v{vSB} quad_perm:[1,0,3,2] {FULL}
        v_cvt_pk_bf16_f32 v{vPB}, v{vSB}, v{vT1}
        """)
        xlane("v_add_f32", vLB, vT0, ["x2", "r4", "r8", "p16", "p32"])
    vBc = [V.get(), V.get()]
    def pvop(k, src, lane):
        P(f"v_mov_b32_dpp v{vBc[k]}, v{src} row_newbcast:{lane} {FULL}")
        for q in range(4): P(f"v_perm_b32 v{vTB[k]+q}, v{vBc[k]}, v{vBc[k]}, v{vSel+q}")
    def c_bpv(m0):
        def f():
            P.wait(sid[31])
            for m in range(m0, m0+4):
                pvop(m & 1, vPB, 2*m)
                for u in range(2):
                    i = 16 + 2*m + u
                    P(f"v_mfma_f32_16x16x32_bf16 {v4(vDB+4*u)}, {a4(sslot[i])}, {v4(vTB[m & 1])}, {v4(vDB+4*u) if m else 0}")
                    release(i)
        return f
    def c_bw():
        a = vBD
        P(f"""
        v_lshrrev_b32 v{a}, 4, v{vLane}
        v_lshlrev_b32 v{a}, 7, v{a}
        v_and_b32 v{a+1}, 7, v{vLane}
        v_lshl_add_u32 v{a}, v{a+1}, 4, v{a}
        v_bfe_u32 v{a+1}, v{vLane}, 3, 1
        v_lshl_add_u32 v{a}, v{a+1}, 10, v{a}
        s_lshl_b32 s{sT0}, s{sWv}, 11
        v_add_u32 v{a}, s{sT0}, v{a}
        s_lshl_b32 s{sT0}, s{sWv}, 4
        v_and_b32 v{a+1}, 1, v{vLane}
        v_lshlrev_b32 v{a+1}, 3, v{a+1}
        v_add_u32 v{a+1}, s{sT0}, v{a+1}
        v_mov_b32 v{a+2}, v{vMB}
        v_mov_b32 v{a+3}, v{vLB}
        ds_write_b128 v{a}, {v4(vDB)} offset:{L_BRED}
        ds_write_b128 v{a}, {v4(vDB+4)} offset:{L_BRED+512}
        ds_write_b64 v{a+1}, {v2(a+2)} offset:{L_BST}
        s_waitcnt lgkmcnt(0)
        """)
    def c_bc():
        a = vWQ; p = vWQ + 4; s_ = vWQ + 12; o = vWQ + 20
        P(f"""
        v_lshlrev_b32 v{a}, 3, v0
        s_lshr_b32 s{sT0}, s{sWv}, 1
        s_lshl_b32 s{sT1}, s{sT0}, 3
        v_mov_b32 v{a+1}, s{sT1}
        s_barrier
        """)
        for k in range(4): P(f"ds_read_b64 {v2(s_+2*k)}, v{a+1} offset:{L_BST+16*k}")
        for k in range(4): P(f"ds_read_b64 {v2(p+2*k)}, v{a} offset:{L_BRED+2048*k}")
        P(f"""
        s_mul_i32 s{sT1}, s2, {OB_STRIDE}
        s_add_u32 s{sT1}, s{sT1}, {WS_OB}
        s_lshl_b32 s{sT0}, s{sT0}, 7
        s_add_u32 s{sT0}, s{sT0}, s{sT1}
        s_add_u32 s{sT0}, s{sT0}, 4096
        v_lshlrev_b32 v{a}, 4, v0
        v_mov_b32 v{o+1}, s{sTag}
        v_mov_b32 v{o+3}, s{sTag}
        v_mov_b32 v{o+5}, s{sTag}
        s_waitcnt lgkmcnt(0)
        v_max3_f32 v{a+2}, v{s_}, v{s_+2}, v{s_+4}
        v_max_f32 v{a+2}, v{a+2}, v{s_+6}
        """)
        for k in range(4):
            P(f"v_sub_f32 v{s_+2*k}, v{s_+2*k}, v{a+2}")
            P(f"v_exp_f32 v{s_+2*k}, v{s_+2*k}")
        P(f"""
        v_mul_f32 v{a+3}, v{s_}, v{s_+1}
        v_mul_f32 v{o}, v{s_}, v{p}
        v_mul_f32 v{o+2}, v{s_}, v{p+1}
        """)
        for k in range(1, 4):
            P(f"v_fmac_f32 v{a+3}, v{s_+2*k}, v{s_+2*k+1}")
            P(f"v_fmac_f32 v{o}, v{s_+2*k}, v{p+2*k}")
            P(f"v_fmac_f32 v{o+2}, v{s_+2*k}, v{p+2*k+1}")
        P(f"""
        v_rcp_f32 v{p}, v{a+3}
        v_log_f32 v{p+1}, v{a+3}
        v_mul_f32 v{o}, v{o}, v{p}
        v_mul_f32 v{o+2}, v{o+2}, v{p}
        v_add_f32 v{o+4}, v{a+2}, v{p+1}
        v_and_b32 v{a+1}, 127, v0
        v_cmp_eq_u32 vcc, 0, v{a+1}
        v_cndmask_b32 v{a+1}, v{vBig}, v{a+1}, vcc
        """)
        P.vm(f"buffer_store_dwordx4 {v4(o)}, v{a}, {srd(rWS)}, s{sT1} offen sc1")
        P.vm(f"buffer_store_dwordx2 {v2(o+4)}, v{a+1}, {srd(rWS)}, s{sT0} offen sc1")
        stamp("obpub")
    B(15+W, c_bqk); B(0, c_bsm); B(31+W, c_bpv(0)); B(0, c_bpv(4)); B(0, c_bw); B(0, c_bc, 3)

    vWO = V.get(64, 4)
    vRaw = vQD
    woids = []
    def c_wol(r, ks, j):
        def f():
            if ks == 0 and j == 0:
                P(f"""
                s_and_b32 s{sCB}, s2, 63
                s_mul_i32 s{sCB}, s{sCB}, {64*896}
                s_mul_i32 s{sT0}, s{sWv}, 224
                s_add_u32 s{sCB}, s{sCB}, s{sT0}
                """)
            row = 8*(j & 3) + 2*ks + (j >> 2)
            P(f"s_add_u32 s{sAux}, s{sCB}, {row*896}")
            woids.append(P.vm(f"buffer_load_dwordx4 {v4(vRaw+4*j)}, v{vWOo}, {srd(r)}, s{sAux} offen {wflag}"))
        return f
    def c_wot(ks):
        def f():
            P.wait(woids[-1])
            for e in range(8): transp(vWO+32*ks+4*e, vRaw, e)
        return f
    def wo_sched(r, at):
        for ks in range(2):
            for j in range(8): B(at, c_wol(r, ks, j))
            B(0, c_wot(ks), W)
    vOA = V.get(8, 4); vY = V.get(4, 4); vYo = V.get(); sY = S.get()
    def outproj(o, acc, br):
        P(f"""
        v_mov_b32_dpp v{vT0}, v{o} quad_perm:[1,0,3,2] {FULL}
        v_cvt_pk_bf16_f32 v{vT0}, v{o}, v{vT0}
        """)
        for k in range(8): P(f"v_mov_b32_dpp v{vOA+k}, v{vT0} row_newbcast:{2*k} {FULL}")
        for ks in range(2):
            for e in range(8):
                P(f"v_mfma_f32_16x16x32_bf16 {v4(acc+4*e)}, {v4(vOA+4*ks)}, {v4(vWO+32*ks+4*e)}, {v4(acc+4*e) if ks else 0}")
        for g in range(4):
            for h in range(2):
                P(f"v_mov_b32_dpp v{vY+2*h}, v{acc+4*(2*g+h)} quad_perm:[0,1,2,3] row_mask:{1 << g:#x} bank_mask:0xf")
        return P.vm(f"buffer_store_dwordx4 {v4(vY)}, v{vYo}, {srd(rWS)}, s{sY} offen sc1")
    def yprep(br):
        P(f"""
        s_add_u32 s{sY}, s2, {256*br}
        s_mul_i32 s{sY}, s{sY}, {Y_STRIDE}
        s_mul_i32 s{sT0}, s{sWv}, 896
        s_add_u32 s{sY}, s{sY}, s{sT0}
        s_add_u32 s{sY}, s{sY}, {WS_Y}
        """)
    vOG = vWQ
    vOo = V.get(2); sOG = [S.get() for _ in range(9)]
    ol = [f"buffer_load_dwordx2 {v2(vOG+2*k)}, v{vOo}, {srd(rWS)}, s{sOG[k]} offen sc1" for k in range(8)]
    ol += [f"buffer_load_dwordx2 {v2(vOG+16)}, v{vOo+1}, {srd(rWS)}, s{sOG[8]} offen sc1"]
    o_iss, o_chk = gather("ob", ol, range(vOG+1, vOG+18, 2))
    def c_og():
        P(f"""
        v_lshlrev_b32 v{vOo}, 3, v{vLane}
        v_and_b32 v{vT0}, 7, v{vLane}
        v_mul_u32_u24 v{vOo+1}, {OB_STRIDE}, v{vT0}
        s_and_b32 s{sT0}, s2, 0xf8
        s_mul_i32 s{sT0}, s{sT0}, {OB_STRIDE}
        s_add_u32 s{sT0}, s{sT0}, {WS_OB}
        s_and_b32 s{sT1}, s2, 7
        s_lshl_b32 s{sT1}, s{sT1}, 9
        s_add_u32 s{sOG[0]}, s{sT0}, s{sT1}
        s_bfe_u32 s{sT1}, s2, 0x10002
        s_lshl_b32 s{sT1}, s{sT1}, 7
        s_add_u32 s{sT0}, s{sT0}, s{sT1}
        s_add_u32 s{sOG[8]}, s{sT0}, 4096
        """)
        for k in range(1, 8): P(f"s_add_u32 s{sOG[k]}, s{sOG[k-1]}, {OB_STRIDE}")
        o_iss()
    def c_oc():
        o_chk()
        l = vOG + 16; m = vOG + 17
        P(f"v_mov_b32 v{m}, v{l}")
        xlane("v_max_f32", m, vT0, ["x1", "x2", "r4"])
        P(f"""
        v_sub_f32 v{l}, v{l}, v{m}
        v_exp_f32 v{l}, v{l}
        v_mov_b32 v{m}, v{l}
        """)
        xlane("v_add_f32", m, vT0, ["x1", "x2", "r4"])
        P(f"""
        v_rcp_f32 v{m}, v{m}
        v_mul_f32 v{l}, v{l}, v{m}
        """)
        P(f"v_mul_f32_dpp v{m}, v{l}, v{vOG} row_newbcast:0 {FULL}")
        for k in range(1, 8): P(f"v_fmac_f32_dpp v{m}, v{l}, v{vOG+2*k} row_newbcast:{k} {FULL}")
        P(f"""
        v_and_b32 v{vT1}, 15, v{vLane}
        v_lshrrev_b32 v{vYo}, 4, v{vLane}
        v_lshlrev_b32 v{vYo}, 4, v{vYo}
        v_lshl_add_u32 v{vYo}, v{vT1}, 6, v{vYo}
        v_cmp_gt_u32 vcc, 14, v{vT1}
        v_cndmask_b32 v{vYo}, v{vBig}, v{vYo}, vcc
        v_mov_b32 v{vY+1}, s{sTag}
        v_mov_b32 v{vY+3}, s{sTag}
        """)
        yprep(1)
    def c_op():
        outproj(vOG+17, vRaw, 1); stamp("ybpub")
        yprep(0)
    wo_sched(rWOB, wob)
    B(obg, c_og); B(0, c_oc, W); B(0, c_op)
    wo_sched(rWOA, woa)

    vSA = V.get(4, 4)
    pend = []
    def k_consume(i):
        k = i - 32
        unit, n = k >> 4, k & 15
        t, par, u = n >> 2, (n >> 1) & 1, n & 1
        D = vD[2*(unit & 1) + par]
        first = (t == 0 and u == 0)
        P(f"v_mfma_f32_16x16x32_bf16 {v4(D)}, {a4(sslot[i])}, {v4(vQA+16*u+4*t)}, {0 if first else v4(D)}")
        release(i)
        while pend and (n >= 2 or k == 127):
            pend.pop(0)()
        if n == 15:
            for p_ in range(2):
                pend.append(lambda p_=p_, unit=unit: extract(vD[2*(unit & 1)+p_], vSA + 2*(unit >> 2) + p_, unit & 3, vT0))
            if k == 127:
                while pend: pend.pop(0)()
                c_spub()
    sSC = S.get()
    def c_spub():
        o = vD[0]
        P(f"""
        s_lshl_b32 s{sT0}, s2, 12
        s_lshl_b32 s{sT1}, s{sWv}, 10
        s_add_u32 s{sT0}, s{sT0}, s{sT1}
        s_add_u32 s{sT0}, s{sT0}, {WS_SC}
        v_cvt_pk_bf16_f32 v{o}, v{vSA}, v{vSA+1}
        v_mov_b32 v{o+1}, s{sTag}
        v_cvt_pk_bf16_f32 v{o+2}, v{vSA+2}, v{vSA+3}
        v_mov_b32 v{o+3}, s{sTag}
        """)
        P.vm(f"buffer_store_dwordx4 {v4(o)}, v{vL16}, {srd(rWS)}, s{sT0} offen sc1")
        stamp("scpub")
    vSG = vWQ
    vE = vWQ + 16
    vP = V.get(8, 4); vM, vL = vQB, vQB+1; vWt = V.get()
    sl = [f"buffer_load_dwordx4 {v4(vSG+4*k)}, v{vL16}, {srd(rWS)}, s{sOG[k]} offen sc1" for k in range(4)]
    s_iss, s_chk = gather("sc", sl, range(vSG+1, vSG+16, 2))
    def c_sg():
        P(f"""
        s_and_b32 s{sT0}, s2, 0xfc
        s_lshl_b32 s{sT0}, s{sT0}, 12
        s_lshl_b32 s{sT1}, s{sWv}, 10
        s_add_u32 s{sT0}, s{sT0}, s{sT1}
        s_add_u32 s{sOG[0]}, s{sT0}, {WS_SC}
        """)
        for k in range(1, 4): P(f"s_add_u32 s{sOG[k]}, s{sOG[k-1]}, 4096")
        s_iss()
    def c_sm1():
        s_chk(); stamp("scgot")
        for r in range(8):
            P(f"v_lshlrev_b32 v{vE+2*r}, 16, v{vSG+2*r}")
            P(f"v_and_b32 v{vE+2*r+1}, 0xffff0000, v{vSG+2*r}")
        P(f"v_max3_f32 v{vM}, v{vE}, v{vE+1}, v{vE+2}")
        for r in range(3, 15, 2): P(f"v_max3_f32 v{vM}, v{vM}, v{vE+r}, v{vE+r+1}")
        P(f"v_max_f32 v{vM}, v{vM}, v{vE+15}")
        xlane("v_max_f32", vM, vT0, ["x1", "x2", "r4", "r8", "p16", "p32"])
        P(f"v_mul_f32 v{vM}, s{sC}, v{vM}")
    def c_sm2():
        for r in range(16):
            P(f"v_fma_f32 v{vE+r}, v{vE+r}, s{sC}, -v{vM}")
            P(f"v_exp_f32 v{vE+r}, v{vE+r}")
        for r in range(8): P(f"v_cvt_pk_bf16_f32 v{vP+r}, v{vE+2*r}, v{vE+2*r+1}")
        st['vok'] = True
    def c_sm3():
        for r in range(8): P(f"v_add_f32 v{vE+r}, v{vE+r}, v{vE+8+r}")
        for r in range(4): P(f"v_add_f32 v{vE+r}, v{vE+r}, v{vE+4+r}")
        P(f"""
        v_add_f32 v{vE}, v{vE}, v{vE+2}
        v_add_f32 v{vE+1}, v{vE+1}, v{vE+3}
        v_add_f32 v{vL}, v{vE}, v{vE+1}
        """)
        xlane("v_add_f32", vL, vT0, ["x1", "x2", "r4", "r8", "p16", "p32"])
        P(f"""
        s_lshl_b32 s{sT0}, s{sWv}, 3
        v_mov_b32 v{vT0}, s{sT0}
        ds_write_b64 v{vT0}, {v2(vM)} offset:{L_AST}
        s_waitcnt lgkmcnt(0)
        """)
    vAw, vAr = V.get(), V.get()
    def c_sm4():
        s_ = vE
        P(f"""
        v_mov_b32 v{vT0}, 0
        s_barrier
        ds_read_b128 {v4(s_)}, v{vT0} offset:{L_AST}
        ds_read_b128 {v4(s_+4)}, v{vT0} offset:{L_AST+16}
        v_lshrrev_b32 v{vAw}, 4, v0
        v_lshlrev_b32 v{vAw}, 7, v{vAw}
        v_and_b32 v{vT1}, 7, v{vLane}
        v_lshl_add_u32 v{vAw}, v{vT1}, 4, v{vAw}
        v_lshlrev_b32 v{vAr}, 2, v{vLane}
        v_add_u32 v{vAr}, {L_ARED}, v{vAr}
        s_waitcnt lgkmcnt(0)
        v_max3_f32 v{vT0}, v{s_}, v{s_+2}, v{s_+4}
        v_max_f32 v{vT0}, v{vT0}, v{s_+6}
        """)
        for k in range(4):
            P(f"v_sub_f32 v{s_+2*k}, v{s_+2*k}, v{vT0}")
            P(f"v_exp_f32 v{s_+2*k}, v{s_+2*k}")
        P(f"v_sub_f32 v{vWt}, v{vM}, v{vT0}")
        P(f"v_exp_f32 v{vWt}, v{vWt}")
        P(f"v_mul_f32 v{vT1}, v{s_}, v{s_+1}")
        for k in range(1, 4): P(f"v_fmac_f32 v{vT1}, v{s_+2*k}, v{s_+2*k+1}")
        P(f"v_rcp_f32 v{vT1}, v{vT1}")
        P(f"v_mul_f32 v{vWt}, v{vWt}, v{vT1}")
    B(160+sg, c_sg); B(0, c_sm1, W); B(0, c_sm2); B(0, c_sm3, 14); B(0, c_sm4, 8)
    vFo = V.get(); sF = sOG; sOutO = S.get()
    def c_fin():
        P(f"""
        ; consumer id c = wg < 224: br = c/112, b = (c%112)/28, blk = c%28
        s_mul_i32 s{sT0}, s2, 2341
        s_lshr_b32 s{sT0}, s{sT0}, 16
        s_mul_i32 s{sT1}, s{sT0}, 28
        s_sub_u32 s{sT1}, s2, s{sT1}
        s_mul_i32 s{sF[0]}, s{sT0}, {64*Y_STRIDE}
        s_lshl_b32 s{sOutO}, s{sT1}, 7
        s_add_u32 s{sF[0]}, s{sF[0]}, s{sOutO}
        s_add_u32 s{sF[0]}, s{sF[0]}, {WS_Y}
        s_lshl_b32 s{sOutO}, s{sT1}, 5
        s_and_b32 s{sT1}, s{sT0}, 3
        s_mul_i32 s{sT1}, s{sT1}, 1792
        s_add_u32 s{sOutO}, s{sOutO}, s{sT1}
        s_lshr_b32 s{sT0}, s{sT0}, 2
        s_mul_i32 s{sT0}, s{sT0}, 896
        s_add_u32 s{sOutO}, s{sOutO}, s{sT0}
        v_lshrrev_b32 v{vT0}, 3, v{vLane}
        v_mul_u32_u24 v{vFo}, {Y_STRIDE}, v{vT0}
        v_and_b32 v{vT0}, 7, v{vLane}
        v_lshl_add_u32 v{vFo}, v{vT0}, 4, v{vFo}
        """)
        for k in range(1, 8): P(f"s_add_u32 s{sF[k]}, s{sF[k-1]}, {8*Y_STRIDE}")
    B(0, c_fin, 2)

    vAcc = vD[1]
    prepared = set()
    def v_prep(i):
        v = i - 160
        if i < len(stream) and i not in prepared:
            pvop(v & 1, vP + (v >> 4), v & 15); prepared.add(i)
    def v_consume(i):
        v = i - 160
        v_prep(i)
        P.wait(sid[i])
        P(f"v_mfma_f32_16x16x32_bf16 {v4(vAcc)}, {a4(sslot[i])}, {v4(vTB[v & 1])}, {v4(vAcc) if v else 0}")
        release(i)
        v_prep(i+1)

    nk, nv = 32, 160
    bi = 0; lastbg = 0
    for i in range(len(stream)):
        landed = issue(i)
        c = 0
        while st['kok'] and nk < 160 and nk <= landed and c < kcatch:
            k_consume(nk); nk += 1; c += 1
        c = 0
        while st['vok'] and nv <= landed and c < vcatch:
            v_consume(nv); nv += 1; c += 1
        while bi < len(bg) and bg[bi][0] <= i and lastbg + bg[bi][2] <= i:
            P(f"; ---- step {i}: {bg[bi][1].__qualname__.split('.')[2]}")
            bg[bi][1](); bi += 1; lastbg = i
    assert bi == len(bg) and nk == 160, (bi, len(bg), nk)
    stamp("lastiss")
    while nv < len(stream):
        v_consume(nv); nv += 1
    stamp("vdone")

    r = vE
    for q in range(4): P(f"v_mul_f32 v{vAcc+q}, v{vAcc+q}, v{vWt}")
    P(f"""
    s_mov_b32 exec_lo, 0x00ff00ff
    s_mov_b32 exec_hi, 0xff00ff00
    ds_write_b128 v{vAw}, {v4(vAcc)} offset:{L_ARED}
    s_mov_b64 exec, -1
    s_waitcnt lgkmcnt(0)
    s_barrier
    """)
    for k in range(4): P(f"ds_read2st64_b32 {v2(r+2*k)}, v{vAr} offset0:{2*k} offset1:{2*k+1}")
    P(f"""
    s_waitcnt lgkmcnt(2)
    v_add_f32 v{r}, v{r}, v{r+1}
    v_add_f32 v{r+2}, v{r+2}, v{r+3}
    s_waitcnt lgkmcnt(0)
    v_add_f32 v{r+4}, v{r+4}, v{r+5}
    v_add_f32 v{r+6}, v{r+6}, v{r+7}
    v_add_f32 v{r}, v{r}, v{r+2}
    v_add_f32 v{r+4}, v{r+4}, v{r+6}
    v_add_f32 v{r}, v{r}, v{r+4}
    """)
    outproj(r, vRaw, 0)
    stamp("yapub")
    P(f"""
    s_cmp_lg_u32 s{sWv}, 0
    s_cbranch_scc1 L_done
    s_cmp_ge_u32 s2, 224
    s_cbranch_scc1 L_done
    """)
    f = vWQ
    P.label("L_poll")
    for k in range(8): P.vm(f"buffer_load_dwordx4 {v4(f+4*k)}, v{vFo}, {srd(rWS)}, s{sF[k]} offen sc1")
    P(f"s_add_u32 s{sSpin}, s{sSpin}, 1")
    P(f"s_cmp_gt_u32 s{sSpin}, 0x40000")
    P.waitall()
    P("s_cbranch_scc1 L_got")
    tagcheck(P, range(f+1, f+32, 2), vT0, vT1)
    P("s_cbranch_vccnz L_poll")
    P.label("L_got")
    stamp("fgot")
    for d in (16, 8, 4):
        for k in range(0, d, 4):
            P(f"v_add_f32 v{f+k}, v{f+k}, v{f+k+d}")
            P(f"v_add_f32 v{f+k+2}, v{f+k+2}, v{f+k+2+d}")
    for st_ in ("r8", "p16", "p32"):
        xlane("v_add_f32", f, f+1, [st_]); xlane("v_add_f32", f+2, f+3, [st_])
    P(f"""
    v_cvt_pk_bf16_f32 v{f}, v{f}, v{f+2}
    v_lshlrev_b32 v{f+1}, 2, v{vLane}
    v_mov_b32 v{f+2}, s{sTag}
    s_mov_b64 exec, 0xff
    """)
    P.vm(f"buffer_store_dword v{f}, v{f+1}, {srd(rOUT)}, s{sOutO} offen")
    P(f"""
    s_cmp_lg_u32 s2, 0
    s_cbranch_scc1 L_done
    s_mov_b64 exec, 1
    """)
    P.vm(f"buffer_store_dword v{f+2}, v{f+1}, {srd(rWS)}, 0 offen")
    P.label("L_done")
    if diag:
        P("s_mov_b64 exec, -1")
        stamp("end")
        P(f"""
        s_waitcnt lgkmcnt(0) vmcnt(0)
        s_lshl_b32 s{sT0}, s2, 2
        s_add_u32 s{sT0}, s{sT0}, s{sWv}
        s_lshl_b32 s{sT0}, s{sT0}, 7
        s_add_u32 s{sT0}, s{sT0}, {WS_DIAG}
        v_mov_b32 v{vT1}, 0
        s_mov_b64 exec, 1
        """)
        for n, (name, rr) in enumerate(stamps):
            P(f"v_mov_b32 v{vT0}, s{rr}")
            P.vm(f"buffer_store_dword v{vT0}, v{vT1}, {srd(rWS)}, s{sT0} offen offset:{4*n}")
        P(f"v_mov_b32 v{vT0}, s{sSpin}")
        P.vm(f"buffer_store_dword v{vT0}, v{vT1}, {srd(rWS)}, s{sT0} offen offset:{4*len(stamps)}")
    P.label("L_end")
    P("s_endpgm")

    body, stats = P.render()
    for Q in slow: body += Q.render()[0]
    head = open("cdna_kernels/" + KNAME[:-7] + ".s.ref").read().split("; Override launch")[0]
    txt = head + f"; @launch grid=(256,1,1) block=(256,1,1) lds={L_TOTAL}\n"
    txt += f'.amdgcn_target "amdgcn-amd-amdhsa--gfx950"\n.text\n.globl {KNAME}\n.p2align 8\n.type {KNAME},@function\n{KNAME}:\n'
    txt += body
    txt += f""".section .rodata,"a"
.p2align 6
.amdhsa_kernel {KNAME}
  .amdhsa_next_free_vgpr 512
  .amdhsa_next_free_sgpr 102
  .amdhsa_accum_offset 256
  .amdhsa_group_segment_fixed_size 0
  .amdhsa_kernarg_size 104
  .amdhsa_user_sgpr_count 2
  .amdhsa_user_sgpr_kernarg_segment_ptr 1
  .amdhsa_system_sgpr_workgroup_id_x 1
.end_amdhsa_kernel
"""
    return txt, dict(stats, vhw=V.hw, shw=S.hw, stamps=[n for n, _ in stamps])

if __name__ == "__main__":
    import json
    kw = json.loads(sys.argv[2]) if len(sys.argv) > 2 else {}
    t, s = gen(**kw)
    open(sys.argv[1], "w").write(t)
    print(s, file=sys.stderr)
```

```python
import sys, math, struct
from asmlib import Prog, Alloc
KNAME = "concat_heads__mha_block_cached__sliding_block_cached__decode_kernel"

WS_Q, WS_SC, WS_OB, WS_Y, WS_DIAG = 0x10000, 0x40000, 0x200000, 0x400000, 0x800000
OB_STRIDE, Y_STRIDE = 4352, 3584
L_QRED, L_BRED, L_BST, L_AST, L_ARED, L_TOTAL = 0, 8192, 16384, 16448, 16512, 18560
CS = struct.unpack('<I', struct.pack('<f', math.log2(math.e) / 16.0))[0]
BIG = 0x7ff00000
FULL = "row_mask:0xf bank_mask:0xf"

def gen(W=5, qg=22, sg=28, wflag="nt", diag=False, kcatch=3, vcatch=3, wob=56, woa=100, obg=76, Wtail=None, skip=()):
    P = Prog()
    V = Alloc('v', 1, 256); S = Alloc('s', 3, 100)
    slots = list(range(64))
    def a4(s): return f"a[{4*s}:{4*s+3}]"
    def v4(r): return f"v[{r}:{r+3}]"
    def v2(r): return f"v[{r}:{r+1}]"
    def srd(r): return f"s[{r}:{r+3}]"
    def sp(r): return f"s[{r}:{r+1}]"
    slow = []
    stamps = []
    def stamp(name):
        if diag:
            r = S.get(2); stamps.append((name, r)); P(f"s_memrealtime {sp(r)}")

    rX, rWQ, rBK, rBV, rAK, rAV, rWOA, rWOB, rWS, rOUT = [S.get(4) for _ in range(10)]
    sT0, sT1, sWv, sTag, sOff, sAux, sSel0, sSel1, sC, sSpin = [S.get() for _ in range(10)]
    P("s_cmp_ge_u32 s2, 256")
    P("s_cbranch_scc1 L_end")
    stamp("start")
    P(f"""
    s_lshr_b32 s{sT0}, s2, 7
    s_mul_i32 s{sT0}, s{sT0}, 40
    s_add_u32 s{sT1}, s{sT0}, 24
    s_load_dwordx2 {sp(rX)}, s[0:1], s{sT0}
    s_load_dwordx2 {sp(rWQ)}, s[0:1], s{sT1}
    s_load_dwordx2 {sp(rBK)}, s[0:1], 48
    s_load_dwordx2 {sp(rWS)}, s[0:1], 96
    s_load_dwordx2 {sp(rBV)}, s[0:1], 56
    s_load_dwordx2 {sp(rAK)}, s[0:1], 8
    s_load_dwordx2 {sp(rAV)}, s[0:1], 16
    s_load_dwordx2 {sp(rWOA)}, s[0:1], 32
    s_load_dwordx2 {sp(rWOB)}, s[0:1], 72
    s_load_dwordx2 {sp(rOUT)}, s[0:1], 80
    """)
    for r, sz in [(rX, 3584), (rWQ, 3670016), (rBK, 1 << 26), (rBV, 1 << 26), (rAK, 1 << 27), (rAV, 1 << 27),
                  (rWOA, 3670016), (rWOB, 3670016), (rWS, 1 << 24), (rOUT, 7168)]:
        P(f"s_mov_b32 s{r+2}, {sz}")
        P(f"s_mov_b32 s{r+3}, 0x20000")
    vLane, vT0, vT1, vT2, vBig = [V.get() for _ in range(5)]
    vXo, vWQo, vKo, vVBo, vVAo = [V.get() for _ in range(5)]
    sCB = S.get()
    P(f"""
    v_lshrrev_b32 v{vT0}, 6, v0
    v_and_b32 v{vLane}, 63, v0
    v_readfirstlane_b32 s{sWv}, v{vT0}
    v_mov_b32 v{vBig}, {BIG}
    v_lshrrev_b32 v{vT0}, 2, v0
    v_and_b32 v{vT1}, 3, v0
    v_lshlrev_b32 v{vWQo}, 16, v{vT0}
    v_lshl_add_u32 v{vWQo}, v{vT1}, 4, v{vWQo}
    v_mul_u32_u24 v{vXo}, 896, v{vT1}
    v_lshl_add_u32 v{vXo}, v{vT0}, 4, v{vXo}
    v_cmp_gt_u32 vcc, 56, v{vT0}
    v_cndmask_b32 v{vXo}, v{vBig}, v{vXo}, vcc
    ; q role: 32-column block cb of branch s2>>7 (line neighbours are 8 workgroups apart)
    s_and_b32 s{sCB}, s2, 0x70
    s_and_b32 s{sT0}, s2, 7
    s_lshl_b32 s{sT0}, s{sT0}, 1
    s_or_b32 s{sCB}, s{sCB}, s{sT0}
    s_bfe_u32 s{sT0}, s2, 0x10003
    s_or_b32 s{sCB}, s{sCB}, s{sT0}
    s_lshl_b32 s{sAux}, s{sCB}, 6
    v_bfe_u32 v{vT0}, v{vLane}, 2, 2
    v_lshlrev_b32 v{vKo}, 10, v{vT0}
    v_lshl_add_u32 v{vKo}, v{vT1}, 4, v{vKo}
    v_lshrrev_b32 v{vT0}, 4, v{vLane}
    v_lshl_add_u32 v{vKo}, v{vT0}, 6, v{vKo}
    s_lshr_b32 s{sOff}, s2, 3
    s_lshl_b32 s{sOff}, s{sOff}, 21
    s_and_b32 s{sT0}, s2, 7
    s_lshl_b32 s{sT0}, s{sT0}, 16
    s_add_u32 s{sOff}, s{sOff}, s{sT0}
    s_lshl_b32 s{sT0}, s{sWv}, 12
    s_add_u32 s{sOff}, s{sOff}, s{sT0}
    s_add_u32 s{sOff}, s{sOff}, {3072*512}
    s_waitcnt lgkmcnt(0)
    s_load_dword s{sTag}, {sp(rWS)}, 0
    """)
    stamp("karg")
    vX = V.get(4); vWQ = V.get(32, 4)
    idx = P.vm(f"buffer_load_dwordx4 {v4(vX)}, v{vXo}, {srd(rX)}, 0 offen")
    idwq = []
    for j in range(8):
        if "wq" in skip: continue
        idwq.append(P.vm(f"buffer_load_dwordx4 {v4(vWQ+4*j)}, v{vWQo}, {srd(rWQ)}, s{sAux} offen {wflag}"))
        if j < 7: P(f"s_addk_i32 s{sAux}, 0x2000")

    stream = []
    for k in range(16): stream.append(("BK", k))
    for k in range(16): stream.append(("BV", k))
    for k in range(128): stream.append(("AK", k))
    for k in range(128): stream.append(("AV", k))
    sid = {}; sslot = {}
    def issue(i):
        kind, k = stream[i]
        if k == 0 and kind == "BV":
            P(f"s_sub_u32 s{sOff}, s{sOff}, {3*16384}")
        elif k == 0 and kind == "AK":
            P(f"""
            s_lshl_b32 s{sOff}, s2, 19
            s_lshl_b32 s{sT0}, s{sWv}, 12
            s_add_u32 s{sOff}, s{sOff}, s{sT0}
            """)
        elif k == 0 and kind == "AV":
            P(f"""
            s_lshr_b32 s{sOff}, s2, 2
            s_lshl_b32 s{sOff}, s{sOff}, 21
            s_and_b32 s{sT0}, s2, 3
            s_lshl_b32 s{sT0}, s{sT0}, 7
            s_add_u32 s{sOff}, s{sOff}, s{sT0}
            s_lshl_b32 s{sT0}, s{sWv}, 12
            s_add_u32 s{sOff}, s{sOff}, s{sT0}
            """)
        elif k and (kind == "AV" or k % 4 == 0):
            P(f"s_addk_i32 s{sOff}, 0x4000")
        w = W if (Wtail is None or i < len(stream) - Wtail[0]) else Wtail[1]
        if i >= w: P.wait(sid[i-w])
        s = slots.pop(0); sslot[i] = s
        r, vo = {"BK": (rBK, vKo), "BV": (rBV, vVBo), "AK": (rAK, vKo), "AV": (rAV, vVAo)}[kind]
        imm = 0 if kind == "AV" else (k & 3) * 256
        o = f" offset:{imm}" if imm else ""
        sid[i] = P.vm(f"buffer_load_dwordx4 {a4(s)}, v{vo}, {srd(r)}, s{sOff} offen{o} nt")
        return i - w
    def release(i): slots.append(sslot[i])

    def xlane(op, x, t, steps):
        for st in steps:
            if st in ("x1", "x2", "r4", "r8"):
                d = {"x1": "quad_perm:[1,0,3,2]", "x2": "quad_perm:[2,3,0,1]", "r4": "row_ror:4", "r8": "row_ror:8"}[st]
                P(f"{op}_dpp v{x}, v{x}, v{x} {d} {FULL}")
            else:
                P(f"v_mov_b32 v{t}, v{x}")
                P(f"v_permlane{st[1:]}_swap_b32 v{x}, v{t}")
                P(f"{op} v{x}, v{x}, v{t}")
    def tagcheck(Q, tags, t0, t1):
        tags = list(tags)
        if len(tags) % 2: tags.append(tags[-1])
        first = True
        for a, b in zip(tags[0::2], tags[1::2]):
            d = t0 if first else t1
            Q(f"v_bitop3_b32 v{d}, v{a}, v{b}, s{sTag} bitop3:0x7e")
            if not first: Q(f"v_or_b32 v{t0}, v{t0}, v{t1}")
            first = False
        Q(f"v_cmp_ne_u32 vcc, 0, v{t0}")
    def gather(name, loads, tags):
        ids = []
        def iss():
            if name+"g" in skip: return
            for t in loads: ids.append(P.vm(t))
        def chk():
            if name+"g" in skip: return
            if name+"c" in skip:
                P.wait(*ids); return
            P.wait(*ids)
            tagcheck(P, tags, vT0, vT1)
            P(f"s_cbranch_vccnz L_slow_{name}")
            P.label(f"L_back_{name}")
            Q = Prog()
            Q.label(f"L_slow_{name}")
            Q(f"s_add_u32 s{sSpin}, s{sSpin}, 1")
            Q(f"s_cmp_gt_u32 s{sSpin}, 0x40000")
            Q(f"s_cbranch_scc1 L_back_{name}")
            for t in loads: Q.vm(t)
            Q.waitall()
            tagcheck(Q, tags, vT0, vT1)
            Q(f"s_cbranch_vccnz L_slow_{name}")
            Q(f"s_branch L_back_{name}")
            slow.append(Q)
        return iss, chk
    def extract(D, dst, tau, t):
        rs = [r for r in range(4) if r != tau]
        src = D + tau
        for n, r in enumerate(rs):
            last = n == 2
            m = f"row_mask:0xf bank_mask:{1 << tau:#x}" if last else FULL
            P(f"v_add_f32_dpp v{dst if last else t}, v{D+r}, v{src} row_ror:{(4*(tau-r)) % 16} {m}")
            src = t

    bg = []
    def B(at, fn, after=1): bg.append((at, fn, after))

    vSel = V.get(4); vWOo = V.get(); vL16 = V.get()
    def c_setup():
        P(f"""
        v_lshrrev_b32 v{vT0}, 4, v{vLane}
        v_and_b32 v{vT1}, 15, v{vLane}
        v_lshlrev_b32 v{vVBo}, 10, v{vT0}
        v_lshl_add_u32 v{vVBo}, v{vT1}, 4, v{vVBo}
        v_lshlrev_b32 v{vL16}, 4, v{vLane}
        ; wo lane pattern: (32*(g>>1)+4*(g&1))*896 + 16*n (n<14)
        v_lshrrev_b32 v{vWOo}, 1, v{vT0}
        v_mul_u32_u24 v{vWOo}, {32*896}, v{vWOo}
        v_and_b32 v{vT0}, 1, v{vT0}
        v_mul_u32_u24 v{vT0}, {4*896}, v{vT0}
        v_lshl_add_u32 v{vT0}, v{vT1}, 4, v{vT0}
        v_add_u32 v{vWOo}, v{vWOo}, v{vT0}
        v_cmp_gt_u32 vcc, 14, v{vT1}
        v_cndmask_b32 v{vWOo}, v{vBig}, v{vWOo}, vcc
        v_lshrrev_b32 v{vT0}, 3, v{vLane}
        v_and_b32 v{vT1}, 7, v{vLane}
        v_lshlrev_b32 v{vVAo}, 9, v{vT0}
        v_lshl_add_u32 v{vVAo}, v{vT1}, 4, v{vVAo}
        v_and_b32 v{vT0}, 1, v{vT0}
        v_mul_u32_u24 v{vT0}, 0x0202, v{vT0}
        v_add_u32 v{vT0}, 0x0100, v{vT0}
        v_or_b32 v{vT2}, 0x0c0c0000, v{vT0}
        v_lshlrev_b32 v{vT0}, 16, v{vT0}
        v_or_b32 v{vT0}, 0x0c0c, v{vT0}
        s_mov_b32 vcc_lo, 0xaaaaaaaa
        s_mov_b32 vcc_hi, 0xaaaaaaaa
        v_cndmask_b32 v{vT0}, v{vT2}, v{vT0}, vcc
        v_mov_b32 v{vT2}, 0x0c0c0c0c
        """)
        for r in range(4):
            P(f"s_mov_b32 vcc_lo, {0x03030303 << (2*r):#x}")
            P(f"s_mov_b32 vcc_hi, {0x03030303 << (2*r):#x}")
            P(f"v_cndmask_b32 v{vSel+r}, v{vT2}, v{vT0}, vcc")
        P(f"""
        s_mov_b32 s{sSel0}, 0x05040100
        s_mov_b32 s{sSel1}, 0x07060302
        s_mov_b32 s{sC}, {CS:#x}
        s_mov_b32 s{sSpin}, 0
        """)
    def transp(dst, src, e):
        for q in range(4):
            P(f"v_perm_b32 v{dst+q}, v{src+4*(2*q+1)+(e>>1)}, v{src+4*(2*q)+(e>>1)}, s{sSel1 if e & 1 else sSel0}")

    vQD = V.get(32, 4); vTB = [V.get(4, 4), V.get(4, 4)]
    def c_q(e0):
        def f():
            P.wait(idx, *idwq)
            if e0 == 0: stamp("wq")
            for e in range(e0, e0+4):
                transp(vTB[e & 1], vWQ, e)
                P(f"v_mfma_f32_16x16x32_bf16 {v4(vQD+4*e)}, {v4(vX)}, {v4(vTB[e & 1])}, 0")
        return f
    def c_q3():
        a = vTB[0]; r = vWQ
        P(f"""
        v_lshrrev_b32 v{a}, 4, v0
        v_lshlrev_b32 v{a}, 9, v{a}
        v_and_b32 v{a+1}, 3, v0
        v_lshl_add_u32 v{a}, v{a+1}, 7, v{a}
        s_mov_b32 exec_lo, 0x00f0000f
        s_mov_b32 exec_hi, 0xf0000f00
        """)
        for e in range(8): P(f"ds_write_b128 v{a}, {v4(vQD+4*e)} offset:{L_QRED+16*e}")
        P(f"""
        s_mov_b64 exec, -1
        v_and_b32 v{a}, 31, v{vLane}
        v_lshlrev_b32 v{a}, 4, v{a}
        v_lshrrev_b32 v{a+1}, 5, v{vLane}
        v_lshl_add_u32 v{a}, v{a+1}, 12, v{a}
        s_lshl_b32 s{sT0}, s{sWv}, 2
        v_add_u32 v{a}, s{sT0}, v{a}
        s_waitcnt lgkmcnt(0)
        s_barrier
        """)
        for k in range(4): P(f"ds_read2st64_b32 {v2(r+2*k)}, v{a} offset0:{L_QRED//256+4*k} offset1:{L_QRED//256+4*k+2}")
        P(f"""
        s_add_u32 s{sTag}, s{sTag}, 0x9e3779b9
        s_lshr_b32 s{sT0}, s2, 7
        s_lshl_b32 s{sT0}, s{sT0}, 2
        s_add_u32 s{sT0}, s{sT0}, s{sWv}
        s_lshl_b32 s{sT0}, s{sT0}, 14
        s_lshl_b32 s{sT1}, s{sCB}, 7
        s_add_u32 s{sT0}, s{sT0}, s{sT1}
        s_add_u32 s{sT0}, s{sT0}, {WS_Q}
        v_lshlrev_b32 v{a+2}, 2, v{vLane}
        s_waitcnt lgkmcnt(0)
        v_add_f32 v{r}, v{r}, v{r+1}
        v_add_f32 v{r+2}, v{r+2}, v{r+3}
        v_add_f32 v{r+4}, v{r+4}, v{r+5}
        v_add_f32 v{r+6}, v{r+6}, v{r+7}
        v_add_f32 v{r}, v{r}, v{r+2}
        v_add_f32 v{r+4}, v{r+4}, v{r+6}
        v_add_f32 v{r}, v{r}, v{r+4}
        """)
        xlane("v_add_f32", r, r+1, ["p32"])
        P(f"""
        v_mov_b32_dpp v{r+1}, v{r} quad_perm:[1,0,3,2] {FULL}
        v_cvt_pk_bf16_f32 v{r+2}, v{r}, v{r+1}
        v_mov_b32 v{r+3}, s{sTag}
        s_mov_b32 exec_lo, 0x55555555
        s_mov_b32 exec_hi, 0
        """)
        if "qs" not in skip: P.vm(f"buffer_store_dwordx2 {v2(r+2)}, v{a+2}, {srd(rWS)}, s{sT0} offen sc1")
        P("s_mov_b64 exec, -1")
        stamp("qpub")
    B(W-1, c_setup, 0); B(0, c_q(0), 0); B(0, c_q(4), 0); B(0, c_q3)

    vQA = V.get(32, 4); vQB = V.get(16, 4)
    vG = vQD
    vGo = V.get(2); sQA, sQB = S.get(), S.get()
    ql = [f"buffer_load_dwordx4 {v4(vG+8*u+4*hf)}, v{vGo}, {srd(rWS)}, s{sQA} offen offset:{512*u+16*hf} sc1" for u in range(2) for hf in range(2)]
    ql += [f"buffer_load_dwordx4 {v4(vG+16+8*u+4*hf)}, v{vGo+1}, {srd(rWS)}, s{sQB} offen offset:{512*u+16*hf} sc1" for u in range(2) for hf in range(2)]
    q_iss, q_chk = gather("q", ql, range(vG+1, vG+32, 2))
    def c_qg():
        P(f"""
        v_lshrrev_b32 v{vGo}, 2, v{vLane}
        v_lshlrev_b32 v{vGo}, 5, v{vGo}
        v_and_b32 v{vT0}, 1, v{vLane}
        v_lshl_add_u32 v{vGo+1}, v{vT0}, 10, v{vGo}
        s_lshr_b32 s{sQA}, s2, 2
        s_lshl_b32 s{sQA}, s{sQA}, 10
        s_add_u32 s{sQA}, s{sQA}, {WS_Q}
        s_lshr_b32 s{sQB}, s2, 3
        s_lshl_b32 s{sQB}, s{sQB}, 11
        s_add_u32 s{sQB}, s{sQB}, {WS_Q + 4*16384}
        """)
        q_iss()
    st = dict(kok=False, vok=False)
    def c_qb1():
        q_chk(); stamp("qgot")
        for t in range(2):
            P(f"s_mov_b32 vcc_lo, {0x33333333 << (2*t):#x}"); P(f"s_mov_b32 vcc_hi, {0x33333333 << (2*t):#x}")
            for u in range(2):
                for q in range(4): P(f"v_cndmask_b32 v{vQB+8*u+4*t+q}, 0, v{vG+16+8*u+2*q}, vcc")
    def c_qb2():
        for t in range(4):
            P(f"s_mov_b32 vcc_lo, {0x11111111 << t:#x}"); P(f"s_mov_b32 vcc_hi, {0x11111111 << t:#x}")
            for u in range(2):
                for q in range(4): P(f"v_cndmask_b32 v{vQA+16*u+4*t+q}, 0, v{vG+8*u+2*q}, vcc")
        st['kok'] = True
    B(qg, c_qg); B(0, c_qb1, W); B(0, c_qb2)

    vD = [V.get(4, 4) for _ in range(4)]
    vSB, vMB, vLB, vPB = vWQ, vWQ+1, vWQ+2, vWQ+3
    vDB = vWQ + 8
    vBD = vWQ + 16
    def c_bqk():
        P.wait(sid[15])
        for tau in range(4):
            for n in range(4):
                t, u = n >> 1, n & 1
                P(f"v_mfma_f32_16x16x32_bf16 {v4(vBD+4*tau)}, {a4(sslot[4*tau+n])}, {v4(vQB+8*u+4*t)}, {v4(vBD+4*tau) if n else 0}")
                release(4*tau+n)
        for tau in range(4): extract(vBD+4*tau, vSB, tau, vT0)
    def c_bsm():
        P(f"""
        v_cvt_pk_bf16_f32 v{vSB}, v{vSB}, v{vSB}
        v_and_b32 v{vSB}, 0xffff0000, v{vSB}
        v_mul_f32 v{vSB}, s{sC}, v{vSB}
        v_mov_b32 v{vMB}, v{vSB}
        """)
        xlane("v_max_f32", vMB, vT0, ["x2", "r4", "r8", "p16", "p32"])
        P(f"""
        v_sub_f32 v{vSB}, v{vSB}, v{vMB}
        v_exp_f32 v{vSB}, v{vSB}
        v_mov_b32 v{vLB}, v{vSB}
        v_mov_b32_dpp v{vT1}, v{vSB} quad_perm:[1,0,3,2] {FULL}
        v_cvt_pk_bf16_f32 v{vPB}, v{vSB}, v{vT1}
        """)
        xlane("v_add_f32", vLB, vT0, ["x2", "r4", "r8", "p16", "p32"])
    vBc = [V.get(), V.get()]
    def pvop(k, src, lane):
        P(f"v_mov_b32_dpp v{vBc[k]}, v{src} row_newbcast:{lane} {FULL}")
        for q in range(4): P(f"v_perm_b32 v{vTB[k]+q}, v{vBc[k]}, v{vBc[k]}, v{vSel+q}")
    def c_bpv(m0):
        def f():
            P.wait(sid[31])
            for m in range(m0, m0+4):
                pvop(m & 1, vPB, 2*m)
                for u in range(2):
                    i = 16 + 2*m + u
                    P(f"v_mfma_f32_16x16x32_bf16 {v4(vDB+4*u)}, {a4(sslot[i])}, {v4(vTB[m & 1])}, {v4(vDB+4*u) if m else 0}")
                    release(i)
        return f
    def c_bw():
        a = vBD
        P(f"""
        v_lshrrev_b32 v{a}, 4, v{vLane}
        v_lshlrev_b32 v{a}, 7, v{a}
        v_and_b32 v{a+1}, 7, v{vLane}
        v_lshl_add_u32 v{a}, v{a+1}, 4, v{a}
        v_bfe_u32 v{a+1}, v{vLane}, 3, 1
        v_lshl_add_u32 v{a}, v{a+1}, 10, v{a}
        s_lshl_b32 s{sT0}, s{sWv}, 11
        v_add_u32 v{a}, s{sT0}, v{a}
        s_lshl_b32 s{sT0}, s{sWv}, 4
        v_and_b32 v{a+1}, 1, v{vLane}
        v_lshlrev_b32 v{a+1}, 3, v{a+1}
        v_add_u32 v{a+1}, s{sT0}, v{a+1}
        v_mov_b32 v{a+2}, v{vMB}
        v_mov_b32 v{a+3}, v{vLB}
        ds_write_b128 v{a}, {v4(vDB)} offset:{L_BRED}
        ds_write_b128 v{a}, {v4(vDB+4)} offset:{L_BRED+512}
        ds_write_b64 v{a+1}, {v2(a+2)} offset:{L_BST}
        s_waitcnt lgkmcnt(0)
        """)
    def c_bc():
        a = vWQ; p = vWQ + 4; s_ = vWQ + 12; o = vWQ + 20
        P(f"""
        v_lshlrev_b32 v{a}, 3, v0
        s_lshr_b32 s{sT0}, s{sWv}, 1
        s_lshl_b32 s{sT1}, s{sT0}, 3
        v_mov_b32 v{a+1}, s{sT1}
        s_barrier
        """)
        for k in range(4): P(f"ds_read_b64 {v2(s_+2*k)}, v{a+1} offset:{L_BST+16*k}")
        for k in range(4): P(f"ds_read_b64 {v2(p+2*k)}, v{a} offset:{L_BRED+2048*k}")
        P(f"""
        s_mul_i32 s{sT1}, s2, {OB_STRIDE}
        s_add_u32 s{sT1}, s{sT1}, {WS_OB}
        s_lshl_b32 s{sT0}, s{sT0}, 7
        s_add_u32 s{sT0}, s{sT0}, s{sT1}
        s_add_u32 s{sT0}, s{sT0}, 4096
        v_lshlrev_b32 v{a}, 4, v0
        v_mov_b32 v{o+1}, s{sTag}
        v_mov_b32 v{o+3}, s{sTag}
        v_mov_b32 v{o+5}, s{sTag}
        s_waitcnt lgkmcnt(0)
        v_max3_f32 v{a+2}, v{s_}, v{s_+2}, v{s_+4}
        v_max_f32 v{a+2}, v{a+2}, v{s_+6}
        """)
        for k in range(4):
            P(f"v_sub_f32 v{s_+2*k}, v{s_+2*k}, v{a+2}")
            P(f"v_exp_f32 v{s_+2*k}, v{s_+2*k}")
        P(f"""
        v_mul_f32 v{a+3}, v{s_}, v{s_+1}
        v_mul_f32 v{o}, v{s_}, v{p}
        v_mul_f32 v{o+2}, v{s_}, v{p+1}
        """)
        for k in range(1, 4):
            P(f"v_fmac_f32 v{a+3}, v{s_+2*k}, v{s_+2*k+1}")
            P(f"v_fmac_f32 v{o}, v{s_+2*k}, v{p+2*k}")
            P(f"v_fmac_f32 v{o+2}, v{s_+2*k}, v{p+2*k+1}")
        P(f"""
        v_rcp_f32 v{p}, v{a+3}
        v_log_f32 v{p+1}, v{a+3}
        v_mul_f32 v{o}, v{o}, v{p}
        v_mul_f32 v{o+2}, v{o+2}, v{p}
        v_add_f32 v{o+4}, v{a+2}, v{p+1}
        v_and_b32 v{a+1}, 127, v0
        v_cmp_eq_u32 vcc, 0, v{a+1}
        v_cndmask_b32 v{a+1}, v{vBig}, v{a+1}, vcc
        """)
        if "obs" not in skip:
            P.vm(f"buffer_store_dwordx4 {v4(o)}, v{a}, {srd(rWS)}, s{sT1} offen sc1")
            P.vm(f"buffer_store_dwordx2 {v2(o+4)}, v{a+1}, {srd(rWS)}, s{sT0} offen sc1")
        stamp("obpub")
    B(15+W, c_bqk); B(0, c_bsm); B(31+W, c_bpv(0)); B(0, c_bpv(4)); B(0, c_bw); B(0, c_bc, 3)

    vWO = V.get(64, 4)
    vRaw = vQD
    woids = []
    def c_wol(r, ks, j):
        def f():
            if ks == 0 and j == 0:
                P(f"""
                s_and_b32 s{sCB}, s2, 63
                s_mul_i32 s{sCB}, s{sCB}, {64*896}
                s_mul_i32 s{sT0}, s{sWv}, 224
                s_add_u32 s{sCB}, s{sCB}, s{sT0}
                """)
            row = 8*(j & 3) + 2*ks + (j >> 2)
            P(f"s_add_u32 s{sAux}, s{sCB}, {row*896}")
            if "wo" in skip: woids.append(None)
            else: woids.append(P.vm(f"buffer_load_dwordx4 {v4(vRaw+4*j)}, v{vWOo}, {srd(r)}, s{sAux} offen {wflag}"))
        return f
    def c_wot(ks):
        def f():
            P.wait(woids[-1])
            for e in range(8): transp(vWO+32*ks+4*e, vRaw, e)
        return f
    def wo_sched(r, at):
        for ks in range(2):
            for j in range(8): B(at, c_wol(r, ks, j))
            B(0, c_wot(ks), W)
    vOA = V.get(8, 4); vY = V.get(4, 4); vYo = V.get(); sY = S.get()
    def outproj(o, acc, br):
        P(f"""
        v_mov_b32_dpp v{vT0}, v{o} quad_perm:[1,0,3,2] {FULL}
        v_cvt_pk_bf16_f32 v{vT0}, v{o}, v{vT0}
        """)
        for k in range(8): P(f"v_mov_b32_dpp v{vOA+k}, v{vT0} row_newbcast:{2*k} {FULL}")
        for ks in range(2):
            for e in range(8):
                P(f"v_mfma_f32_16x16x32_bf16 {v4(acc+4*e)}, {v4(vOA+4*ks)}, {v4(vWO+32*ks+4*e)}, {v4(acc+4*e) if ks else 0}")
        for g in range(4):
            for h in range(2):
                P(f"v_mov_b32_dpp v{vY+2*h}, v{acc+4*(2*g+h)} quad_perm:[0,1,2,3] row_mask:{1 << g:#x} bank_mask:0xf")
        if br == 1 and "ybs" in skip: return None
        return P.vm(f"buffer_store_dwordx4 {v4(vY)}, v{vYo}, {srd(rWS)}, s{sY} offen sc1")
    def yprep(br):
        P(f"""
        s_add_u32 s{sY}, s2, {256*br}
        s_mul_i32 s{sY}, s{sY}, {Y_STRIDE}
        s_mul_i32 s{sT0}, s{sWv}, 896
        s_add_u32 s{sY}, s{sY}, s{sT0}
        s_add_u32 s{sY}, s{sY}, {WS_Y}
        """)
    vOG = vWQ
    vOo = V.get(2); sOG = [S.get() for _ in range(9)]
    ol = [f"buffer_load_dwordx2 {v2(vOG+2*k)}, v{vOo}, {srd(rWS)}, s{sOG[k]} offen sc1" for k in range(8)]
    ol += [f"buffer_load_dwordx2 {v2(vOG+16)}, v{vOo+1}, {srd(rWS)}, s{sOG[8]} offen sc1"]
    o_iss, o_chk = gather("ob", ol, range(vOG+1, vOG+18, 2))
    def c_og():
        P(f"""
        v_lshlrev_b32 v{vOo}, 3, v{vLane}
        v_and_b32 v{vT0}, 7, v{vLane}
        v_mul_u32_u24 v{vOo+1}, {OB_STRIDE}, v{vT0}
        s_and_b32 s{sT0}, s2, 0xf8
        s_mul_i32 s{sT0}, s{sT0}, {OB_STRIDE}
        s_add_u32 s{sT0}, s{sT0}, {WS_OB}
        s_and_b32 s{sT1}, s2, 7
        s_lshl_b32 s{sT1}, s{sT1}, 9
        s_add_u32 s{sOG[0]}, s{sT0}, s{sT1}
        s_bfe_u32 s{sT1}, s2, 0x10002
        s_lshl_b32 s{sT1}, s{sT1}, 7
        s_add_u32 s{sT0}, s{sT0}, s{sT1}
        s_add_u32 s{sOG[8]}, s{sT0}, 4096
        """)
        for k in range(1, 8): P(f"s_add_u32 s{sOG[k]}, s{sOG[k-1]}, {OB_STRIDE}")
        o_iss()
    def c_oc():
        o_chk()
        l = vOG + 16; m = vOG + 17
        P(f"v_mov_b32 v{m}, v{l}")
        xlane("v_max_f32", m, vT0, ["x1", "x2", "r4"])
        P(f"""
        v_sub_f32 v{l}, v{l}, v{m}
        v_exp_f32 v{l}, v{l}
        v_mov_b32 v{m}, v{l}
        """)
        xlane("v_add_f32", m, vT0, ["x1", "x2", "r4"])
        P(f"""
        v_rcp_f32 v{m}, v{m}
        v_mul_f32 v{l}, v{l}, v{m}
        """)
        P(f"v_mul_f32_dpp v{m}, v{l}, v{vOG} row_newbcast:0 {FULL}")
        for k in range(1, 8): P(f"v_fmac_f32_dpp v{m}, v{l}, v{vOG+2*k} row_newbcast:{k} {FULL}")
        P(f"""
        v_and_b32 v{vT1}, 15, v{vLane}
        v_lshrrev_b32 v{vYo}, 4, v{vLane}
        v_lshlrev_b32 v{vYo}, 4, v{vYo}
        v_lshl_add_u32 v{vYo}, v{vT1}, 6, v{vYo}
        v_cmp_gt_u32 vcc, 14, v{vT1}
        v_cndmask_b32 v{vYo}, v{vBig}, v{vYo}, vcc
        v_mov_b32 v{vY+1}, s{sTag}
        v_mov_b32 v{vY+3}, s{sTag}
        """)
        yprep(1)
    def c_op():
        outproj(vOG+17, vRaw, 1); stamp("ybpub")
        yprep(0)
    wo_sched(rWOB, wob)
    B(obg, c_og); B(0, c_oc, W); B(0, c_op)
    wo_sched(rWOA, woa)

    vSA = V.get(4, 4)
    pend = []
    def k_consume(i):
        k = i - 32
        unit, n = k >> 4, k & 15
        t, par, u = n >> 2, (n >> 1) & 1, n & 1
        D = vD[2*(unit & 1) + par]
        first = (t == 0 and u == 0)
        P(f"v_mfma_f32_16x16x32_bf16 {v4(D)}, {a4(sslot[i])}, {v4(vQA+16*u+4*t)}, {0 if first else v4(D)}")
        release(i)
        while pend and (n >= 2 or k == 127):
            pend.pop(0)()
        if n == 15:
            for p_ in range(2):
                pend.append(lambda p_=p_, unit=unit: extract(vD[2*(unit & 1)+p_], vSA + 2*(unit >> 2) + p_, unit & 3, vT0))
            if k == 127:
                while pend: pend.pop(0)()
                c_spub()
    sSC = S.get()
    def c_spub():
        o = vD[0]
        P(f"""
        s_lshl_b32 s{sT0}, s2, 12
        s_lshl_b32 s{sT1}, s{sWv}, 10
        s_add_u32 s{sT0}, s{sT0}, s{sT1}
        s_add_u32 s{sT0}, s{sT0}, {WS_SC}
        v_cvt_pk_bf16_f32 v{o}, v{vSA}, v{vSA+1}
        v_mov_b32 v{o+1}, s{sTag}
        v_cvt_pk_bf16_f32 v{o+2}, v{vSA+2}, v{vSA+3}
        v_mov_b32 v{o+3}, s{sTag}
        """)
        if "scs" not in skip: P.vm(f"buffer_store_dwordx4 {v4(o)}, v{vL16}, {srd(rWS)}, s{sT0} offen sc1")
        stamp("scpub")
    vSG = vWQ
    vE = vWQ + 16
    vP = V.get(8, 4); vM, vL = vQB, vQB+1; vWt = V.get()
    sl = [f"buffer_load_dwordx4 {v4(vSG+4*k)}, v{vL16}, {srd(rWS)}, s{sOG[k]} offen sc1" for k in range(4)]
    s_iss, s_chk = gather("sc", sl, range(vSG+1, vSG+16, 2))
    def c_sg():
        P(f"""
        s_and_b32 s{sT0}, s2, 0xfc
        s_lshl_b32 s{sT0}, s{sT0}, 12
        s_lshl_b32 s{sT1}, s{sWv}, 10
        s_add_u32 s{sT0}, s{sT0}, s{sT1}
        s_add_u32 s{sOG[0]}, s{sT0}, {WS_SC}
        """)
        for k in range(1, 4): P(f"s_add_u32 s{sOG[k]}, s{sOG[k-1]}, 4096")
        s_iss()
    def c_sm1():
        s_chk(); stamp("scgot")
        for r in range(8):
            P(f"v_lshlrev_b32 v{vE+2*r}, 16, v{vSG+2*r}")
            P(f"v_and_b32 v{vE+2*r+1}, 0xffff0000, v{vSG+2*r}")
        P(f"v_max3_f32 v{vM}, v{vE}, v{vE+1}, v{vE+2}")
        for r in range(3, 15, 2): P(f"v_max3_f32 v{vM}, v{vM}, v{vE+r}, v{vE+r+1}")
        P(f"v_max_f32 v{vM}, v{vM}, v{vE+15}")
        xlane("v_max_f32", vM, vT0, ["x1", "x2", "r4", "r8", "p16", "p32"])
        P(f"v_mul_f32 v{vM}, s{sC}, v{vM}")
    def c_sm2():
        for r in range(16):
            P(f"v_fma_f32 v{vE+r}, v{vE+r}, s{sC}, -v{vM}")
            P(f"v_exp_f32 v{vE+r}, v{vE+r}")
        for r in range(8): P(f"v_cvt_pk_bf16_f32 v{vP+r}, v{vE+2*r}, v{vE+2*r+1}")
        st['vok'] = True
    def c_sm3():
        for r in range(8): P(f"v_add_f32 v{vE+r}, v{vE+r}, v{vE+8+r}")
        for r in range(4): P(f"v_add_f32 v{vE+r}, v{vE+r}, v{vE+4+r}")
        P(f"""
        v_add_f32 v{vE}, v{vE}, v{vE+2}
        v_add_f32 v{vE+1}, v{vE+1}, v{vE+3}
        v_add_f32 v{vL}, v{vE}, v{vE+1}
        """)
        xlane("v_add_f32", vL, vT0, ["x1", "x2", "r4", "r8", "p16", "p32"])
        P(f"""
        s_lshl_b32 s{sT0}, s{sWv}, 3
        v_mov_b32 v{vT0}, s{sT0}
        ds_write_b64 v{vT0}, {v2(vM)} offset:{L_AST}
        s_waitcnt lgkmcnt(0)
        """)
    vAw, vAr = V.get(), V.get()
    def c_sm4():
        s_ = vE
        P(f"""
        v_mov_b32 v{vT0}, 0
        s_barrier
        ds_read_b128 {v4(s_)}, v{vT0} offset:{L_AST}
        ds_read_b128 {v4(s_+4)}, v{vT0} offset:{L_AST+16}
        v_lshrrev_b32 v{vAw}, 4, v0
        v_lshlrev_b32 v{vAw}, 7, v{vAw}
        v_and_b32 v{vT1}, 7, v{vLane}
        v_lshl_add_u32 v{vAw}, v{vT1}, 4, v{vAw}
        v_lshlrev_b32 v{vAr}, 2, v{vLane}
        v_add_u32 v{vAr}, {L_ARED}, v{vAr}
        s_waitcnt lgkmcnt(0)
        v_max3_f32 v{vT0}, v{s_}, v{s_+2}, v{s_+4}
        v_max_f32 v{vT0}, v{vT0}, v{s_+6}
        """)
        for k in range(4):
            P(f"v_sub_f32 v{s_+2*k}, v{s_+2*k}, v{vT0}")
            P(f"v_exp_f32 v{s_+2*k}, v{s_+2*k}")
        P(f"v_sub_f32 v{vWt}, v{vM}, v{vT0}")
        P(f"v_exp_f32 v{vWt}, v{vWt}")
        P(f"v_mul_f32 v{vT1}, v{s_}, v{s_+1}")
        for k in range(1, 4): P(f"v_fmac_f32 v{vT1}, v{s_+2*k}, v{s_+2*k+1}")
        P(f"v_rcp_f32 v{vT1}, v{vT1}")
        P(f"v_mul_f32 v{vWt}, v{vWt}, v{vT1}")
    B(160+sg, c_sg); B(0, c_sm1, W); B(0, c_sm2); B(0, c_sm3, 14); B(0, c_sm4, 8)
    vFo = V.get(); sF = sOG; sOutO = S.get()
    def c_fin():
        P(f"""
        ; consumer id c = wg < 224: br = c/112, b = (c%112)/28, blk = c%28
        s_mul_i32 s{sT0}, s2, 2341
        s_lshr_b32 s{sT0}, s{sT0}, 16
        s_mul_i32 s{sT1}, s{sT0}, 28
        s_sub_u32 s{sT1}, s2, s{sT1}
        s_mul_i32 s{sF[0]}, s{sT0}, {64*Y_STRIDE}
        s_lshl_b32 s{sOutO}, s{sT1}, 7
        s_add_u32 s{sF[0]}, s{sF[0]}, s{sOutO}
        s_add_u32 s{sF[0]}, s{sF[0]}, {WS_Y}
        s_lshl_b32 s{sOutO}, s{sT1}, 5
        s_and_b32 s{sT1}, s{sT0}, 3
        s_mul_i32 s{sT1}, s{sT1}, 1792
        s_add_u32 s{sOutO}, s{sOutO}, s{sT1}
        s_lshr_b32 s{sT0}, s{sT0}, 2
        s_mul_i32 s{sT0}, s{sT0}, 896
        s_add_u32 s{sOutO}, s{sOutO}, s{sT0}
        v_lshrrev_b32 v{vT0}, 3, v{vLane}
        v_mul_u32_u24 v{vFo}, {Y_STRIDE}, v{vT0}
        v_and_b32 v{vT0}, 7, v{vLane}
        v_lshl_add_u32 v{vFo}, v{vT0}, 4, v{vFo}
        """)
        for k in range(1, 8): P(f"s_add_u32 s{sF[k]}, s{sF[k-1]}, {8*Y_STRIDE}")
    B(0, c_fin, 2)

    vAcc = vD[1]
    prepared = set()
    def v_prep(i):
        v = i - 160
        if i < len(stream) and i not in prepared:
            pvop(v & 1, vP + (v >> 4), v & 15); prepared.add(i)
    def v_consume(i):
        v = i - 160
        v_prep(i)
        P.wait(sid[i])
        P(f"v_mfma_f32_16x16x32_bf16 {v4(vAcc)}, {a4(sslot[i])}, {v4(vTB[v & 1])}, {v4(vAcc) if v else 0}")
        release(i)
        v_prep(i+1)

    nk, nv = 32, 160
    bi = 0; lastbg = 0
    for i in range(len(stream)):
        landed = issue(i)
        c = 0
        while st['kok'] and nk < 160 and nk <= landed and c < kcatch:
            k_consume(nk); nk += 1; c += 1
        c = 0
        while st['vok'] and nv <= landed and c < vcatch:
            v_consume(nv); nv += 1; c += 1
        while bi < len(bg) and bg[bi][0] <= i and lastbg + bg[bi][2] <= i:
            P(f"; ---- step {i}: {bg[bi][1].__qualname__.split('.')[2]}")
            bg[bi][1](); bi += 1; lastbg = i
    assert bi == len(bg) and nk == 160, (bi, len(bg), nk)
    stamp("lastiss")
    while nv < len(stream):
        v_consume(nv); nv += 1
    stamp("vdone")

    r = vE
    for q in range(4): P(f"v_mul_f32 v{vAcc+q}, v{vAcc+q}, v{vWt}")
    P(f"""
    s_mov_b32 exec_lo, 0x00ff00ff
    s_mov_b32 exec_hi, 0xff00ff00
    ds_write_b128 v{vAw}, {v4(vAcc)} offset:{L_ARED}
    s_mov_b64 exec, -1
    s_waitcnt lgkmcnt(0)
    s_barrier
    """)
    for k in range(4): P(f"ds_read2st64_b32 {v2(r+2*k)}, v{vAr} offset0:{2*k} offset1:{2*k+1}")
    P(f"""
    s_waitcnt lgkmcnt(2)
    v_add_f32 v{r}, v{r}, v{r+1}
    v_add_f32 v{r+2}, v{r+2}, v{r+3}
    s_waitcnt lgkmcnt(0)
    v_add_f32 v{r+4}, v{r+4}, v{r+5}
    v_add_f32 v{r+6}, v{r+6}, v{r+7}
    v_add_f32 v{r}, v{r}, v{r+2}
    v_add_f32 v{r+4}, v{r+4}, v{r+6}
    v_add_f32 v{r}, v{r}, v{r+4}
    """)
    outproj(r, vRaw, 0)
    stamp("yapub")
    P(f"""
    s_cmp_lg_u32 s{sWv}, 0
    s_cbranch_scc1 L_done
    s_cmp_ge_u32 s2, {112 if 'ybs' in skip else 224}
    s_cbranch_scc1 L_done
    """)
    f = vWQ
    P.label("L_poll")
    for k in range(8): P.vm(f"buffer_load_dwordx4 {v4(f+4*k)}, v{vFo}, {srd(rWS)}, s{sF[k]} offen sc1")
    P(f"s_add_u32 s{sSpin}, s{sSpin}, 1")
    P(f"s_cmp_gt_u32 s{sSpin}, 0x40000")
    P.waitall()
    P("s_cbranch_scc1 L_got")
    tagcheck(P, range(f+1, f+32, 2), vT0, vT1)
    P("s_cbranch_vccnz L_poll")
    P.label("L_got")
    stamp("fgot")
    for d in (16, 8, 4):
        for k in range(0, d, 4):
            P(f"v_add_f32 v{f+k}, v{f+k}, v{f+k+d}")
            P(f"v_add_f32 v{f+k+2}, v{f+k+2}, v{f+k+2+d}")
    for st_ in ("r8", "p16", "p32"):
        xlane("v_add_f32", f, f+1, [st_]); xlane("v_add_f32", f+2, f+3, [st_])
    P(f"""
    v_cvt_pk_bf16_f32 v{f}, v{f}, v{f+2}
    v_lshlrev_b32 v{f+1}, 2, v{vLane}
    v_mov_b32 v{f+2}, s{sTag}
    s_mov_b64 exec, 0xff
    """)
    P.vm(f"buffer_store_dword v{f}, v{f+1}, {srd(rOUT)}, s{sOutO} offen")
    P(f"""
    s_cmp_lg_u32 s2, 0
    s_cbranch_scc1 L_done
    s_mov_b64 exec, 1
    """)
    P.vm(f"buffer_store_dword v{f+2}, v{f+1}, {srd(rWS)}, 0 offen")
    P.label("L_done")
    if diag:
        P("s_mov_b64 exec, -1")
        stamp("end")
        P(f"""
        s_waitcnt lgkmcnt(0) vmcnt(0)
        s_lshl_b32 s{sT0}, s2, 2
        s_add_u32 s{sT0}, s{sT0}, s{sWv}
        s_lshl_b32 s{sT0}, s{sT0}, 7
        s_add_u32 s{sT0}, s{sT0}, {WS_DIAG}
        v_mov_b32 v{vT1}, 0
        s_mov_b64 exec, 1
        """)
        for n, (name, rr) in enumerate(stamps):
            P(f"v_mov_b32 v{vT0}, s{rr}")
            P.vm(f"buffer_store_dword v{vT0}, v{vT1}, {srd(rWS)}, s{sT0} offen offset:{4*n}")
        P(f"v_mov_b32 v{vT0}, s{sSpin}")
        P.vm(f"buffer_store_dword v{vT0}, v{vT1}, {srd(rWS)}, s{sT0} offen offset:{4*len(stamps)}")
    P.label("L_end")
    P("s_endpgm")

    body, stats = P.render()
    for Q in slow: body += Q.render()[0]
    head = open("cdna_kernels/" + KNAME[:-7] + ".s.ref").read().split("; Override launch")[0]
    txt = head + f"; @launch grid=(256,1,1) block=(256,1,1) lds={L_TOTAL}\n"
    txt += f'.amdgcn_target "amdgcn-amd-amdhsa--gfx950"\n.text\n.globl {KNAME}\n.p2align 8\n.type {KNAME},@function\n{KNAME}:\n'
    txt += body
    txt += f""".section .rodata,"a"
.p2align 6
.amdhsa_kernel {KNAME}
  .amdhsa_next_free_vgpr 512
  .amdhsa_next_free_sgpr 102
  .amdhsa_accum_offset 256
  .amdhsa_group_segment_fixed_size 0
  .amdhsa_kernarg_size 104
  .amdhsa_user_sgpr_count 2
  .amdhsa_user_sgpr_kernarg_segment_ptr 1
  .amdhsa_system_sgpr_workgroup_id_x 1
.end_amdhsa_kernel
"""
    return txt, dict(stats, vhw=V.hw, shw=S.hw, stamps=[n for n, _ in stamps])

if __name__ == "__main__":
    import json
    kw = json.loads(sys.argv[2]) if len(sys.argv) > 2 else {}
    t, s = gen(**kw)
    open(sys.argv[1], "w").write(t)
    print(s, file=sys.stderr)
```

```python
import sys, math, struct
from asmlib import Prog, Alloc
KNAME = "concat_heads__mha_block_cached__sliding_block_cached__decode_kernel"

WS_Q, WS_SC, WS_OB, WS_Y, WS_DIAG = 0x10000, 0x40000, 0x200000, 0x400000, 0x800000
OB_STRIDE, Y_STRIDE = 4352, 3584
L_QRED, L_BRED, L_BST, L_AST, L_ARED, L_TOTAL = 0, 8192, 16384, 16448, 16512, 18560
CS = struct.unpack('<I', struct.pack('<f', math.log2(math.e) / 16.0))[0]
BIG = 0x7ff00000
FULL = "row_mask:0xf bank_mask:0xf"

def gen(W=5, qg=22, sg=28, wflag="nt", diag=False, kcatch=3, vcatch=3, wob=56, woa=100, obg=76, Wtail=None, skip=(), spin=0):
    P = Prog()
    V = Alloc('v', 1, 256); S = Alloc('s', 3, 100)
    slots = list(range(64))
    def a4(s): return f"a[{4*s}:{4*s+3}]"
    def v4(r): return f"v[{r}:{r+3}]"
    def v2(r): return f"v[{r}:{r+1}]"
    def srd(r): return f"s[{r}:{r+3}]"
    def sp(r): return f"s[{r}:{r+1}]"
    slow = []
    stamps = []
    def stamp(name):
        if diag:
            r = S.get(2); stamps.append((name, r)); P(f"s_memrealtime {sp(r)}")

    rX, rWQ, rBK, rBV, rAK, rAV, rWOA, rWOB, rWS, rOUT = [S.get(4) for _ in range(10)]
    sT0, sT1, sWv, sTag, sOff, sAux, sSel0, sSel1, sC, sSpin = [S.get() for _ in range(10)]
    P("s_cmp_ge_u32 s2, 256")
    P("s_cbranch_scc1 L_end")
    stamp("start")
    if spin:
        sSt = S.get(2); sNow = S.get(2); P(f"s_memrealtime {sp(sSt)}")
    P(f"""
    s_lshr_b32 s{sT0}, s2, 7
    s_mul_i32 s{sT0}, s{sT0}, 40
    s_add_u32 s{sT1}, s{sT0}, 24
    s_load_dwordx2 {sp(rX)}, s[0:1], s{sT0}
    s_load_dwordx2 {sp(rWQ)}, s[0:1], s{sT1}
    s_load_dwordx2 {sp(rBK)}, s[0:1], 48
    s_load_dwordx2 {sp(rWS)}, s[0:1], 96
    s_load_dwordx2 {sp(rBV)}, s[0:1], 56
    s_load_dwordx2 {sp(rAK)}, s[0:1], 8
    s_load_dwordx2 {sp(rAV)}, s[0:1], 16
    s_load_dwordx2 {sp(rWOA)}, s[0:1], 32
    s_load_dwordx2 {sp(rWOB)}, s[0:1], 72
    s_load_dwordx2 {sp(rOUT)}, s[0:1], 80
    """)
    for r, sz in [(rX, 3584), (rWQ, 3670016), (rBK, 1 << 26), (rBV, 1 << 26), (rAK, 1 << 27), (rAV, 1 << 27),
                  (rWOA, 3670016), (rWOB, 3670016), (rWS, 1 << 24), (rOUT, 7168)]:
        P(f"s_mov_b32 s{r+2}, {sz}")
        P(f"s_mov_b32 s{r+3}, 0x20000")
    vLane, vT0, vT1, vT2, vBig = [V.get() for _ in range(5)]
    vXo, vWQo, vKo, vVBo, vVAo = [V.get() for _ in range(5)]
    sCB = S.get()
    P(f"""
    v_lshrrev_b32 v{vT0}, 6, v0
    v_and_b32 v{vLane}, 63, v0
    v_readfirstlane_b32 s{sWv}, v{vT0}
    v_mov_b32 v{vBig}, {BIG}
    v_lshrrev_b32 v{vT0}, 2, v0
    v_and_b32 v{vT1}, 3, v0
    v_lshlrev_b32 v{vWQo}, 16, v{vT0}
    v_lshl_add_u32 v{vWQo}, v{vT1}, 4, v{vWQo}
    v_mul_u32_u24 v{vXo}, 896, v{vT1}
    v_lshl_add_u32 v{vXo}, v{vT0}, 4, v{vXo}
    v_cmp_gt_u32 vcc, 56, v{vT0}
    v_cndmask_b32 v{vXo}, v{vBig}, v{vXo}, vcc
    ; q role: 32-column block cb of branch s2>>7 (line neighbours are 8 workgroups apart)
    s_and_b32 s{sCB}, s2, 0x70
    s_and_b32 s{sT0}, s2, 7
    s_lshl_b32 s{sT0}, s{sT0}, 1
    s_or_b32 s{sCB}, s{sCB}, s{sT0}
    s_bfe_u32 s{sT0}, s2, 0x10003
    s_or_b32 s{sCB}, s{sCB}, s{sT0}
    s_lshl_b32 s{sAux}, s{sCB}, 6
    v_bfe_u32 v{vT0}, v{vLane}, 2, 2
    v_lshlrev_b32 v{vKo}, 10, v{vT0}
    v_lshl_add_u32 v{vKo}, v{vT1}, 4, v{vKo}
    v_lshrrev_b32 v{vT0}, 4, v{vLane}
    v_lshl_add_u32 v{vKo}, v{vT0}, 6, v{vKo}
    s_lshr_b32 s{sOff}, s2, 3
    s_lshl_b32 s{sOff}, s{sOff}, 21
    s_and_b32 s{sT0}, s2, 7
    s_lshl_b32 s{sT0}, s{sT0}, 16
    s_add_u32 s{sOff}, s{sOff}, s{sT0}
    s_lshl_b32 s{sT0}, s{sWv}, 12
    s_add_u32 s{sOff}, s{sOff}, s{sT0}
    s_add_u32 s{sOff}, s{sOff}, {3072*512}
    s_waitcnt lgkmcnt(0)
    s_load_dword s{sTag}, {sp(rWS)}, 0
    """)
    stamp("karg")
    vX = V.get(4); vWQ = V.get(32, 4)
    idx = P.vm(f"buffer_load_dwordx4 {v4(vX)}, v{vXo}, {srd(rX)}, 0 offen")
    idwq = []
    for j in range(8):
        if "wq" in skip: continue
        idwq.append(P.vm(f"buffer_load_dwordx4 {v4(vWQ+4*j)}, v{vWQo}, {srd(rWQ)}, s{sAux} offen {wflag}"))
        if j < 7: P(f"s_addk_i32 s{sAux}, 0x2000")

    stream = []
    for k in range(16): stream.append(("BK", k))
    for k in range(16): stream.append(("BV", k))
    for k in range(128): stream.append(("AK", k))
    for k in range(128): stream.append(("AV", k))
    sid = {}; sslot = {}
    def issue(i):
        kind, k = stream[i]
        if k == 0 and kind == "BV":
            P(f"s_sub_u32 s{sOff}, s{sOff}, {3*16384}")
        elif k == 0 and kind == "AK":
            P(f"""
            s_lshl_b32 s{sOff}, s2, 19
            s_lshl_b32 s{sT0}, s{sWv}, 12
            s_add_u32 s{sOff}, s{sOff}, s{sT0}
            """)
        elif k == 0 and kind == "AV":
            P(f"""
            s_lshr_b32 s{sOff}, s2, 2
            s_lshl_b32 s{sOff}, s{sOff}, 21
            s_and_b32 s{sT0}, s2, 3
            s_lshl_b32 s{sT0}, s{sT0}, 7
            s_add_u32 s{sOff}, s{sOff}, s{sT0}
            s_lshl_b32 s{sT0}, s{sWv}, 12
            s_add_u32 s{sOff}, s{sOff}, s{sT0}
            """)
        elif k and (kind == "AV" or k % 4 == 0):
            P(f"s_addk_i32 s{sOff}, 0x4000")
        w = W if (Wtail is None or i < len(stream) - Wtail[0]) else Wtail[1]
        if i >= w: P.wait(sid[i-w])
        s = slots.pop(0); sslot[i] = s
        r, vo = {"BK": (rBK, vKo), "BV": (rBV, vVBo), "AK": (rAK, vKo), "AV": (rAV, vVAo)}[kind]
        imm = 0 if kind == "AV" else (k & 3) * 256
        o = f" offset:{imm}" if imm else ""
        sid[i] = P.vm(f"buffer_load_dwordx4 {a4(s)}, v{vo}, {srd(r)}, s{sOff} offen{o} nt")
        return i - w
    def release(i): slots.append(sslot[i])

    def xlane(op, x, t, steps):
        for st in steps:
            if st in ("x1", "x2", "r4", "r8"):
                d = {"x1": "quad_perm:[1,0,3,2]", "x2": "quad_perm:[2,3,0,1]", "r4": "row_ror:4", "r8": "row_ror:8"}[st]
                P(f"{op}_dpp v{x}, v{x}, v{x} {d} {FULL}")
            else:
                P(f"v_mov_b32 v{t}, v{x}")
                P(f"v_permlane{st[1:]}_swap_b32 v{x}, v{t}")
                P(f"{op} v{x}, v{x}, v{t}")
    def tagcheck(Q, tags, t0, t1):
        tags = list(tags)
        if len(tags) % 2: tags.append(tags[-1])
        first = True
        for a, b in zip(tags[0::2], tags[1::2]):
            d = t0 if first else t1
            Q(f"v_bitop3_b32 v{d}, v{a}, v{b}, s{sTag} bitop3:0x7e")
            if not first: Q(f"v_or_b32 v{t0}, v{t0}, v{t1}")
            first = False
        Q(f"v_cmp_ne_u32 vcc, 0, v{t0}")
    def gather(name, loads, tags):
        ids = []
        def iss():
            if name+"g" in skip: return
            for t in loads: ids.append(P.vm(t))
        def chk():
            if name+"g" in skip: return
            if name+"c" in skip:
                P.wait(*ids); return
            P.wait(*ids)
            tagcheck(P, tags, vT0, vT1)
            P(f"s_cbranch_vccnz L_slow_{name}")
            P.label(f"L_back_{name}")
            Q = Prog()
            Q.label(f"L_slow_{name}")
            Q(f"s_add_u32 s{sSpin}, s{sSpin}, 1")
            Q(f"s_cmp_gt_u32 s{sSpin}, 0x40000")
            Q(f"s_cbranch_scc1 L_back_{name}")
            for t in loads: Q.vm(t)
            Q.waitall()
            tagcheck(Q, tags, vT0, vT1)
            Q(f"s_cbranch_vccnz L_slow_{name}")
            Q(f"s_branch L_back_{name}")
            slow.append(Q)
        return iss, chk
    def extract(D, dst, tau, t):
        rs = [r for r in range(4) if r != tau]
        src = D + tau
        for n, r in enumerate(rs):
            last = n == 2
            m = f"row_mask:0xf bank_mask:{1 << tau:#x}" if last else FULL
            P(f"v_add_f32_dpp v{dst if last else t}, v{D+r}, v{src} row_ror:{(4*(tau-r)) % 16} {m}")
            src = t

    bg = []
    def B(at, fn, after=1): bg.append((at, fn, after))

    vSel = V.get(4); vWOo = V.get(); vL16 = V.get()
    def c_setup():
        P(f"""
        v_lshrrev_b32 v{vT0}, 4, v{vLane}
        v_and_b32 v{vT1}, 15, v{vLane}
        v_lshlrev_b32 v{vVBo}, 10, v{vT0}
        v_lshl_add_u32 v{vVBo}, v{vT1}, 4, v{vVBo}
        v_lshlrev_b32 v{vL16}, 4, v{vLane}
        ; wo lane pattern: (32*(g>>1)+4*(g&1))*896 + 16*n (n<14)
        v_lshrrev_b32 v{vWOo}, 1, v{vT0}
        v_mul_u32_u24 v{vWOo}, {32*896}, v{vWOo}
        v_and_b32 v{vT0}, 1, v{vT0}
        v_mul_u32_u24 v{vT0}, {4*896}, v{vT0}
        v_lshl_add_u32 v{vT0}, v{vT1}, 4, v{vT0}
        v_add_u32 v{vWOo}, v{vWOo}, v{vT0}
        v_cmp_gt_u32 vcc, 14, v{vT1}
        v_cndmask_b32 v{vWOo}, v{vBig}, v{vWOo}, vcc
        v_lshrrev_b32 v{vT0}, 3, v{vLane}
        v_and_b32 v{vT1}, 7, v{vLane}
        v_lshlrev_b32 v{vVAo}, 9, v{vT0}
        v_lshl_add_u32 v{vVAo}, v{vT1}, 4, v{vVAo}
        v_and_b32 v{vT0}, 1, v{vT0}
        v_mul_u32_u24 v{vT0}, 0x0202, v{vT0}
        v_add_u32 v{vT0}, 0x0100, v{vT0}
        v_or_b32 v{vT2}, 0x0c0c0000, v{vT0}
        v_lshlrev_b32 v{vT0}, 16, v{vT0}
        v_or_b32 v{vT0}, 0x0c0c, v{vT0}
        s_mov_b32 vcc_lo, 0xaaaaaaaa
        s_mov_b32 vcc_hi, 0xaaaaaaaa
        v_cndmask_b32 v{vT0}, v{vT2}, v{vT0}, vcc
        v_mov_b32 v{vT2}, 0x0c0c0c0c
        """)
        for r in range(4):
            P(f"s_mov_b32 vcc_lo, {0x03030303 << (2*r):#x}")
            P(f"s_mov_b32 vcc_hi, {0x03030303 << (2*r):#x}")
            P(f"v_cndmask_b32 v{vSel+r}, v{vT2}, v{vT0}, vcc")
        P(f"""
        s_mov_b32 s{sSel0}, 0x05040100
        s_mov_b32 s{sSel1}, 0x07060302
        s_mov_b32 s{sC}, {CS:#x}
        s_mov_b32 s{sSpin}, 0
        """)
    def transp(dst, src, e):
        for q in range(4):
            P(f"v_perm_b32 v{dst+q}, v{src+4*(2*q+1)+(e>>1)}, v{src+4*(2*q)+(e>>1)}, s{sSel1 if e & 1 else sSel0}")

    vQD = V.get(32, 4); vTB = [V.get(4, 4), V.get(4, 4)]
    def c_q(e0):
        def f():
            P.wait(idx, *idwq)
            if e0 == 0: stamp("wq")
            for e in range(e0, e0+4):
                transp(vTB[e & 1], vWQ, e)
                P(f"v_mfma_f32_16x16x32_bf16 {v4(vQD+4*e)}, {v4(vX)}, {v4(vTB[e & 1])}, 0")
        return f
    def c_q3():
        a = vTB[0]; r = vWQ
        P(f"""
        v_lshrrev_b32 v{a}, 4, v0
        v_lshlrev_b32 v{a}, 9, v{a}
        v_and_b32 v{a+1}, 3, v0
        v_lshl_add_u32 v{a}, v{a+1}, 7, v{a}
        s_mov_b32 exec_lo, 0x00f0000f
        s_mov_b32 exec_hi, 0xf0000f00
        """)
        for e in range(8): P(f"ds_write_b128 v{a}, {v4(vQD+4*e)} offset:{L_QRED+16*e}")
        P(f"""
        s_mov_b64 exec, -1
        v_and_b32 v{a}, 31, v{vLane}
        v_lshlrev_b32 v{a}, 4, v{a}
        v_lshrrev_b32 v{a+1}, 5, v{vLane}
        v_lshl_add_u32 v{a}, v{a+1}, 12, v{a}
        s_lshl_b32 s{sT0}, s{sWv}, 2
        v_add_u32 v{a}, s{sT0}, v{a}
        s_waitcnt lgkmcnt(0)
        s_barrier
        """)
        for k in range(4): P(f"ds_read2st64_b32 {v2(r+2*k)}, v{a} offset0:{L_QRED//256+4*k} offset1:{L_QRED//256+4*k+2}")
        P(f"""
        s_add_u32 s{sTag}, s{sTag}, 0x9e3779b9
        s_lshr_b32 s{sT0}, s2, 7
        s_lshl_b32 s{sT0}, s{sT0}, 2
        s_add_u32 s{sT0}, s{sT0}, s{sWv}
        s_lshl_b32 s{sT0}, s{sT0}, 14
        s_lshl_b32 s{sT1}, s{sCB}, 7
        s_add_u32 s{sT0}, s{sT0}, s{sT1}
        s_add_u32 s{sT0}, s{sT0}, {WS_Q}
        v_lshlrev_b32 v{a+2}, 2, v{vLane}
        s_waitcnt lgkmcnt(0)
        v_add_f32 v{r}, v{r}, v{r+1}
        v_add_f32 v{r+2}, v{r+2}, v{r+3}
        v_add_f32 v{r+4}, v{r+4}, v{r+5}
        v_add_f32 v{r+6}, v{r+6}, v{r+7}
        v_add_f32 v{r}, v{r}, v{r+2}
        v_add_f32 v{r+4}, v{r+4}, v{r+6}
        v_add_f32 v{r}, v{r}, v{r+4}
        """)
        xlane("v_add_f32", r, r+1, ["p32"])
        P(f"""
        v_mov_b32_dpp v{r+1}, v{r} quad_perm:[1,0,3,2] {FULL}
        v_cvt_pk_bf16_f32 v{r+2}, v{r}, v{r+1}
        v_mov_b32 v{r+3}, s{sTag}
        s_mov_b32 exec_lo, 0x55555555
        s_mov_b32 exec_hi, 0
        """)
        if "qs" not in skip: P.vm(f"buffer_store_dwordx2 {v2(r+2)}, v{a+2}, {srd(rWS)}, s{sT0} offen sc1")
        P("s_mov_b64 exec, -1")
        stamp("qpub")
    B(W-1, c_setup, 0); B(0, c_q(0), 0); B(0, c_q(4), 0); B(0, c_q3)

    vQA = V.get(32, 4); vQB = V.get(16, 4)
    vG = vQD
    vGo = V.get(2); sQA, sQB = S.get(), S.get()
    ql = [f"buffer_load_dwordx4 {v4(vG+8*u+4*hf)}, v{vGo}, {srd(rWS)}, s{sQA} offen offset:{512*u+16*hf} sc1" for u in range(2) for hf in range(2)]
    ql += [f"buffer_load_dwordx4 {v4(vG+16+8*u+4*hf)}, v{vGo+1}, {srd(rWS)}, s{sQB} offen offset:{512*u+16*hf} sc1" for u in range(2) for hf in range(2)]
    q_iss, q_chk = gather("q", ql, range(vG+1, vG+32, 2))
    def c_qg():
        P(f"""
        v_lshrrev_b32 v{vGo}, 2, v{vLane}
        v_lshlrev_b32 v{vGo}, 5, v{vGo}
        v_and_b32 v{vT0}, 1, v{vLane}
        v_lshl_add_u32 v{vGo+1}, v{vT0}, 10, v{vGo}
        s_lshr_b32 s{sQA}, s2, 2
        s_lshl_b32 s{sQA}, s{sQA}, 10
        s_add_u32 s{sQA}, s{sQA}, {WS_Q}
        s_lshr_b32 s{sQB}, s2, 3
        s_lshl_b32 s{sQB}, s{sQB}, 11
        s_add_u32 s{sQB}, s{sQB}, {WS_Q + 4*16384}
        """)
        q_iss()
    st = dict(kok=False, vok=False)
    def c_qb1():
        q_chk(); stamp("qgot")
        for t in range(2):
            P(f"s_mov_b32 vcc_lo, {0x33333333 << (2*t):#x}"); P(f"s_mov_b32 vcc_hi, {0x33333333 << (2*t):#x}")
            for u in range(2):
                for q in range(4): P(f"v_cndmask_b32 v{vQB+8*u+4*t+q}, 0, v{vG+16+8*u+2*q}, vcc")
    def c_qb2():
        for t in range(4):
            P(f"s_mov_b32 vcc_lo, {0x11111111 << t:#x}"); P(f"s_mov_b32 vcc_hi, {0x11111111 << t:#x}")
            for u in range(2):
                for q in range(4): P(f"v_cndmask_b32 v{vQA+16*u+4*t+q}, 0, v{vG+8*u+2*q}, vcc")
        st['kok'] = True
    B(qg, c_qg); B(0, c_qb1, W); B(0, c_qb2)

    vD = [V.get(4, 4) for _ in range(4)]
    vSB, vMB, vLB, vPB = vWQ, vWQ+1, vWQ+2, vWQ+3
    vDB = vWQ + 8
    vBD = vWQ + 16
    def c_bqk():
        P.wait(sid[15])
        for tau in range(4):
            for n in range(4):
                t, u = n >> 1, n & 1
                P(f"v_mfma_f32_16x16x32_bf16 {v4(vBD+4*tau)}, {a4(sslot[4*tau+n])}, {v4(vQB+8*u+4*t)}, {v4(vBD+4*tau) if n else 0}")
                release(4*tau+n)
        for tau in range(4): extract(vBD+4*tau, vSB, tau, vT0)
    def c_bsm():
        P(f"""
        v_cvt_pk_bf16_f32 v{vSB}, v{vSB}, v{vSB}
        v_and_b32 v{vSB}, 0xffff0000, v{vSB}
        v_mul_f32 v{vSB}, s{sC}, v{vSB}
        v_mov_b32 v{vMB}, v{vSB}
        """)
        xlane("v_max_f32", vMB, vT0, ["x2", "r4", "r8", "p16", "p32"])
        P(f"""
        v_sub_f32 v{vSB}, v{vSB}, v{vMB}
        v_exp_f32 v{vSB}, v{vSB}
        v_mov_b32 v{vLB}, v{vSB}
        v_mov_b32_dpp v{vT1}, v{vSB} quad_perm:[1,0,3,2] {FULL}
        v_cvt_pk_bf16_f32 v{vPB}, v{vSB}, v{vT1}
        """)
        xlane("v_add_f32", vLB, vT0, ["x2", "r4", "r8", "p16", "p32"])
    vBc = [V.get(), V.get()]
    def pvop(k, src, lane):
        P(f"v_mov_b32_dpp v{vBc[k]}, v{src} row_newbcast:{lane} {FULL}")
        for q in range(4): P(f"v_perm_b32 v{vTB[k]+q}, v{vBc[k]}, v{vBc[k]}, v{vSel+q}")
    def c_bpv(m0):
        def f():
            P.wait(sid[31])
            for m in range(m0, m0+4):
                pvop(m & 1, vPB, 2*m)
                for u in range(2):
                    i = 16 + 2*m + u
                    P(f"v_mfma_f32_16x16x32_bf16 {v4(vDB+4*u)}, {a4(sslot[i])}, {v4(vTB[m & 1])}, {v4(vDB+4*u) if m else 0}")
                    release(i)
        return f
    def c_bw():
        a = vBD
        P(f"""
        v_lshrrev_b32 v{a}, 4, v{vLane}
        v_lshlrev_b32 v{a}, 7, v{a}
        v_and_b32 v{a+1}, 7, v{vLane}
        v_lshl_add_u32 v{a}, v{a+1}, 4, v{a}
        v_bfe_u32 v{a+1}, v{vLane}, 3, 1
        v_lshl_add_u32 v{a}, v{a+1}, 10, v{a}
        s_lshl_b32 s{sT0}, s{sWv}, 11
        v_add_u32 v{a}, s{sT0}, v{a}
        s_lshl_b32 s{sT0}, s{sWv}, 4
        v_and_b32 v{a+1}, 1, v{vLane}
        v_lshlrev_b32 v{a+1}, 3, v{a+1}
        v_add_u32 v{a+1}, s{sT0}, v{a+1}
        v_mov_b32 v{a+2}, v{vMB}
        v_mov_b32 v{a+3}, v{vLB}
        ds_write_b128 v{a}, {v4(vDB)} offset:{L_BRED}
        ds_write_b128 v{a}, {v4(vDB+4)} offset:{L_BRED+512}
        ds_write_b64 v{a+1}, {v2(a+2)} offset:{L_BST}
        s_waitcnt lgkmcnt(0)
        """)
    def c_bc():
        a = vWQ; p = vWQ + 4; s_ = vWQ + 12; o = vWQ + 20
        P(f"""
        v_lshlrev_b32 v{a}, 3, v0
        s_lshr_b32 s{sT0}, s{sWv}, 1
        s_lshl_b32 s{sT1}, s{sT0}, 3
        v_mov_b32 v{a+1}, s{sT1}
        s_barrier
        """)
        for k in range(4): P(f"ds_read_b64 {v2(s_+2*k)}, v{a+1} offset:{L_BST+16*k}")
        for k in range(4): P(f"ds_read_b64 {v2(p+2*k)}, v{a} offset:{L_BRED+2048*k}")
        P(f"""
        s_mul_i32 s{sT1}, s2, {OB_STRIDE}
        s_add_u32 s{sT1}, s{sT1}, {WS_OB}
        s_lshl_b32 s{sT0}, s{sT0}, 7
        s_add_u32 s{sT0}, s{sT0}, s{sT1}
        s_add_u32 s{sT0}, s{sT0}, 4096
        v_lshlrev_b32 v{a}, 4, v0
        v_mov_b32 v{o+1}, s{sTag}
        v_mov_b32 v{o+3}, s{sTag}
        v_mov_b32 v{o+5}, s{sTag}
        s_waitcnt lgkmcnt(0)
        v_max3_f32 v{a+2}, v{s_}, v{s_+2}, v{s_+4}
        v_max_f32 v{a+2}, v{a+2}, v{s_+6}
        """)
        for k in range(4):
            P(f"v_sub_f32 v{s_+2*k}, v{s_+2*k}, v{a+2}")
            P(f"v_exp_f32 v{s_+2*k}, v{s_+2*k}")
        P(f"""
        v_mul_f32 v{a+3}, v{s_}, v{s_+1}
        v_mul_f32 v{o}, v{s_}, v{p}
        v_mul_f32 v{o+2}, v{s_}, v{p+1}
        """)
        for k in range(1, 4):
            P(f"v_fmac_f32 v{a+3}, v{s_+2*k}, v{s_+2*k+1}")
            P(f"v_fmac_f32 v{o}, v{s_+2*k}, v{p+2*k}")
            P(f"v_fmac_f32 v{o+2}, v{s_+2*k}, v{p+2*k+1}")
        P(f"""
        v_rcp_f32 v{p}, v{a+3}
        v_log_f32 v{p+1}, v{a+3}
        v_mul_f32 v{o}, v{o}, v{p}
        v_mul_f32 v{o+2}, v{o+2}, v{p}
        v_add_f32 v{o+4}, v{a+2}, v{p+1}
        v_and_b32 v{a+1}, 127, v0
        v_cmp_eq_u32 vcc, 0, v{a+1}
        v_cndmask_b32 v{a+1}, v{vBig}, v{a+1}, vcc
        """)
        if "obs" not in skip:
            P.vm(f"buffer_store_dwordx4 {v4(o)}, v{a}, {srd(rWS)}, s{sT1} offen sc1")
            P.vm(f"buffer_store_dwordx2 {v2(o+4)}, v{a+1}, {srd(rWS)}, s{sT0} offen sc1")
        stamp("obpub")
    B(15+W, c_bqk); B(0, c_bsm); B(31+W, c_bpv(0)); B(0, c_bpv(4)); B(0, c_bw); B(0, c_bc, 3)

    vWO = V.get(64, 4)
    vRaw = vQD
    woids = []
    def c_wol(r, ks, j):
        def f():
            if ks == 0 and j == 0:
                P(f"""
                s_and_b32 s{sCB}, s2, 63
                s_mul_i32 s{sCB}, s{sCB}, {64*896}
                s_mul_i32 s{sT0}, s{sWv}, 224
                s_add_u32 s{sCB}, s{sCB}, s{sT0}
                """)
            row = 8*(j & 3) + 2*ks + (j >> 2)
            P(f"s_add_u32 s{sAux}, s{sCB}, {row*896}")
            if "wo" in skip: woids.append(None)
            else: woids.append(P.vm(f"buffer_load_dwordx4 {v4(vRaw+4*j)}, v{vWOo}, {srd(r)}, s{sAux} offen {wflag}"))
        return f
    def c_wot(ks):
        def f():
            P.wait(woids[-1])
            for e in range(8): transp(vWO+32*ks+4*e, vRaw, e)
        return f
    def wo_sched(r, at):
        for ks in range(2):
            for j in range(8): B(at, c_wol(r, ks, j))
            B(0, c_wot(ks), W)
    vOA = V.get(8, 4); vY = V.get(4, 4); vYo = V.get(); sY = S.get()
    def outproj(o, acc, br):
        P(f"""
        v_mov_b32_dpp v{vT0}, v{o} quad_perm:[1,0,3,2] {FULL}
        v_cvt_pk_bf16_f32 v{vT0}, v{o}, v{vT0}
        """)
        for k in range(8): P(f"v_mov_b32_dpp v{vOA+k}, v{vT0} row_newbcast:{2*k} {FULL}")
        for ks in range(2):
            for e in range(8):
                P(f"v_mfma_f32_16x16x32_bf16 {v4(acc+4*e)}, {v4(vOA+4*ks)}, {v4(vWO+32*ks+4*e)}, {v4(acc+4*e) if ks else 0}")
        for g in range(4):
            for h in range(2):
                P(f"v_mov_b32_dpp v{vY+2*h}, v{acc+4*(2*g+h)} quad_perm:[0,1,2,3] row_mask:{1 << g:#x} bank_mask:0xf")
        if br == 1 and "ybs" in skip: return None
        return P.vm(f"buffer_store_dwordx4 {v4(vY)}, v{vYo}, {srd(rWS)}, s{sY} offen sc1")
    def yprep(br):
        P(f"""
        s_add_u32 s{sY}, s2, {256*br}
        s_mul_i32 s{sY}, s{sY}, {Y_STRIDE}
        s_mul_i32 s{sT0}, s{sWv}, 896
        s_add_u32 s{sY}, s{sY}, s{sT0}
        s_add_u32 s{sY}, s{sY}, {WS_Y}
        """)
    vOG = vWQ
    vOo = V.get(2); sOG = [S.get() for _ in range(9)]
    ol = [f"buffer_load_dwordx2 {v2(vOG+2*k)}, v{vOo}, {srd(rWS)}, s{sOG[k]} offen sc1" for k in range(8)]
    ol += [f"buffer_load_dwordx2 {v2(vOG+16)}, v{vOo+1}, {srd(rWS)}, s{sOG[8]} offen sc1"]
    o_iss, o_chk = gather("ob", ol, range(vOG+1, vOG+18, 2))
    def c_og():
        P(f"""
        v_lshlrev_b32 v{vOo}, 3, v{vLane}
        v_and_b32 v{vT0}, 7, v{vLane}
        v_mul_u32_u24 v{vOo+1}, {OB_STRIDE}, v{vT0}
        s_and_b32 s{sT0}, s2, 0xf8
        s_mul_i32 s{sT0}, s{sT0}, {OB_STRIDE}
        s_add_u32 s{sT0}, s{sT0}, {WS_OB}
        s_and_b32 s{sT1}, s2, 7
        s_lshl_b32 s{sT1}, s{sT1}, 9
        s_add_u32 s{sOG[0]}, s{sT0}, s{sT1}
        s_bfe_u32 s{sT1}, s2, 0x10002
        s_lshl_b32 s{sT1}, s{sT1}, 7
        s_add_u32 s{sT0}, s{sT0}, s{sT1}
        s_add_u32 s{sOG[8]}, s{sT0}, 4096
        """)
        for k in range(1, 8): P(f"s_add_u32 s{sOG[k]}, s{sOG[k-1]}, {OB_STRIDE}")
        o_iss()
    def c_oc():
        o_chk()
        l = vOG + 16; m = vOG + 17
        P(f"v_mov_b32 v{m}, v{l}")
        xlane("v_max_f32", m, vT0, ["x1", "x2", "r4"])
        P(f"""
        v_sub_f32 v{l}, v{l}, v{m}
        v_exp_f32 v{l}, v{l}
        v_mov_b32 v{m}, v{l}
        """)
        xlane("v_add_f32", m, vT0, ["x1", "x2", "r4"])
        P(f"""
        v_rcp_f32 v{m}, v{m}
        v_mul_f32 v{l}, v{l}, v{m}
        """)
        P(f"v_mul_f32_dpp v{m}, v{l}, v{vOG} row_newbcast:0 {FULL}")
        for k in range(1, 8): P(f"v_fmac_f32_dpp v{m}, v{l}, v{vOG+2*k} row_newbcast:{k} {FULL}")
        P(f"""
        v_and_b32 v{vT1}, 15, v{vLane}
        v_lshrrev_b32 v{vYo}, 4, v{vLane}
        v_lshlrev_b32 v{vYo}, 4, v{vYo}
        v_lshl_add_u32 v{vYo}, v{vT1}, 6, v{vYo}
        v_cmp_gt_u32 vcc, 14, v{vT1}
        v_cndmask_b32 v{vYo}, v{vBig}, v{vYo}, vcc
        v_mov_b32 v{vY+1}, s{sTag}
        v_mov_b32 v{vY+3}, s{sTag}
        """)
        yprep(1)
    def c_op():
        outproj(vOG+17, vRaw, 1); stamp("ybpub")
        yprep(0)
    wo_sched(rWOB, wob)
    B(obg, c_og); B(0, c_oc, W); B(0, c_op)
    wo_sched(rWOA, woa)

    vSA = V.get(4, 4)
    pend = []
    def k_consume(i):
        k = i - 32
        unit, n = k >> 4, k & 15
        t, par, u = n >> 2, (n >> 1) & 1, n & 1
        D = vD[2*(unit & 1) + par]
        first = (t == 0 and u == 0)
        P(f"v_mfma_f32_16x16x32_bf16 {v4(D)}, {a4(sslot[i])}, {v4(vQA+16*u+4*t)}, {0 if first else v4(D)}")
        release(i)
        while pend and (n >= 2 or k == 127):
            pend.pop(0)()
        if n == 15:
            for p_ in range(2):
                pend.append(lambda p_=p_, unit=unit: extract(vD[2*(unit & 1)+p_], vSA + 2*(unit >> 2) + p_, unit & 3, vT0))
            if k == 127:
                while pend: pend.pop(0)()
                c_spub()
    sSC = S.get()
    def c_spub():
        o = vD[0]
        P(f"""
        s_lshl_b32 s{sT0}, s2, 12
        s_lshl_b32 s{sT1}, s{sWv}, 10
        s_add_u32 s{sT0}, s{sT0}, s{sT1}
        s_add_u32 s{sT0}, s{sT0}, {WS_SC}
        v_cvt_pk_bf16_f32 v{o}, v{vSA}, v{vSA+1}
        v_mov_b32 v{o+1}, s{sTag}
        v_cvt_pk_bf16_f32 v{o+2}, v{vSA+2}, v{vSA+3}
        v_mov_b32 v{o+3}, s{sTag}
        """)
        if "scs" not in skip: P.vm(f"buffer_store_dwordx4 {v4(o)}, v{vL16}, {srd(rWS)}, s{sT0} offen sc1")
        stamp("scpub")
    vSG = vWQ
    vE = vWQ + 16
    vP = V.get(8, 4); vM, vL = vQB, vQB+1; vWt = V.get()
    sl = [f"buffer_load_dwordx4 {v4(vSG+4*k)}, v{vL16}, {srd(rWS)}, s{sOG[k]} offen sc1" for k in range(4)]
    s_iss, s_chk = gather("sc", sl, range(vSG+1, vSG+16, 2))
    def c_sg():
        P(f"""
        s_and_b32 s{sT0}, s2, 0xfc
        s_lshl_b32 s{sT0}, s{sT0}, 12
        s_lshl_b32 s{sT1}, s{sWv}, 10
        s_add_u32 s{sT0}, s{sT0}, s{sT1}
        s_add_u32 s{sOG[0]}, s{sT0}, {WS_SC}
        """)
        for k in range(1, 4): P(f"s_add_u32 s{sOG[k]}, s{sOG[k-1]}, 4096")
        s_iss()
    def c_sm1():
        s_chk(); stamp("scgot")
        for r in range(8):
            P(f"v_lshlrev_b32 v{vE+2*r}, 16, v{vSG+2*r}")
            P(f"v_and_b32 v{vE+2*r+1}, 0xffff0000, v{vSG+2*r}")
        P(f"v_max3_f32 v{vM}, v{vE}, v{vE+1}, v{vE+2}")
        for r in range(3, 15, 2): P(f"v_max3_f32 v{vM}, v{vM}, v{vE+r}, v{vE+r+1}")
        P(f"v_max_f32 v{vM}, v{vM}, v{vE+15}")
        xlane("v_max_f32", vM, vT0, ["x1", "x2", "r4", "r8", "p16", "p32"])
        P(f"v_mul_f32 v{vM}, s{sC}, v{vM}")
    def c_sm2():
        for r in range(16):
            P(f"v_fma_f32 v{vE+r}, v{vE+r}, s{sC}, -v{vM}")
            P(f"v_exp_f32 v{vE+r}, v{vE+r}")
        for r in range(8): P(f"v_cvt_pk_bf16_f32 v{vP+r}, v{vE+2*r}, v{vE+2*r+1}")
        st['vok'] = True
    def c_sm3():
        for r in range(8): P(f"v_add_f32 v{vE+r}, v{vE+r}, v{vE+8+r}")
        for r in range(4): P(f"v_add_f32 v{vE+r}, v{vE+r}, v{vE+4+r}")
        P(f"""
        v_add_f32 v{vE}, v{vE}, v{vE+2}
        v_add_f32 v{vE+1}, v{vE+1}, v{vE+3}
        v_add_f32 v{vL}, v{vE}, v{vE+1}
        """)
        xlane("v_add_f32", vL, vT0, ["x1", "x2", "r4", "r8", "p16", "p32"])
        P(f"""
        s_lshl_b32 s{sT0}, s{sWv}, 3
        v_mov_b32 v{vT0}, s{sT0}
        ds_write_b64 v{vT0}, {v2(vM)} offset:{L_AST}
        s_waitcnt lgkmcnt(0)
        """)
    vAw, vAr = V.get(), V.get()
    def c_sm4():
        s_ = vE
        P(f"""
        v_mov_b32 v{vT0}, 0
        s_barrier
        ds_read_b128 {v4(s_)}, v{vT0} offset:{L_AST}
        ds_read_b128 {v4(s_+4)}, v{vT0} offset:{L_AST+16}
        v_lshrrev_b32 v{vAw}, 4, v0
        v_lshlrev_b32 v{vAw}, 7, v{vAw}
        v_and_b32 v{vT1}, 7, v{vLane}
        v_lshl_add_u32 v{vAw}, v{vT1}, 4, v{vAw}
        v_lshlrev_b32 v{vAr}, 2, v{vLane}
        v_add_u32 v{vAr}, {L_ARED}, v{vAr}
        s_waitcnt lgkmcnt(0)
        v_max3_f32 v{vT0}, v{s_}, v{s_+2}, v{s_+4}
        v_max_f32 v{vT0}, v{vT0}, v{s_+6}
        """)
        for k in range(4):
            P(f"v_sub_f32 v{s_+2*k}, v{s_+2*k}, v{vT0}")
            P(f"v_exp_f32 v{s_+2*k}, v{s_+2*k}")
        P(f"v_sub_f32 v{vWt}, v{vM}, v{vT0}")
        P(f"v_exp_f32 v{vWt}, v{vWt}")
        P(f"v_mul_f32 v{vT1}, v{s_}, v{s_+1}")
        for k in range(1, 4): P(f"v_fmac_f32 v{vT1}, v{s_+2*k}, v{s_+2*k+1}")
        P(f"v_rcp_f32 v{vT1}, v{vT1}")
        P(f"v_mul_f32 v{vWt}, v{vWt}, v{vT1}")
    B(160+sg, c_sg); B(0, c_sm1, W); B(0, c_sm2); B(0, c_sm3, 14); B(0, c_sm4, 8)
    vFo = V.get(); sF = sOG; sOutO = S.get()
    def c_fin():
        P(f"""
        ; consumer id c = wg < 224: br = c/112, b = (c%112)/28, blk = c%28
        s_mul_i32 s{sT0}, s2, 2341
        s_lshr_b32 s{sT0}, s{sT0}, 16
        s_mul_i32 s{sT1}, s{sT0}, 28
        s_sub_u32 s{sT1}, s2, s{sT1}
        s_mul_i32 s{sF[0]}, s{sT0}, {64*Y_STRIDE}
        s_lshl_b32 s{sOutO}, s{sT1}, 7
        s_add_u32 s{sF[0]}, s{sF[0]}, s{sOutO}
        s_add_u32 s{sF[0]}, s{sF[0]}, {WS_Y}
        s_lshl_b32 s{sOutO}, s{sT1}, 5
        s_and_b32 s{sT1}, s{sT0}, 3
        s_mul_i32 s{sT1}, s{sT1}, 1792
        s_add_u32 s{sOutO}, s{sOutO}, s{sT1}
        s_lshr_b32 s{sT0}, s{sT0}, 2
        s_mul_i32 s{sT0}, s{sT0}, 896
        s_add_u32 s{sOutO}, s{sOutO}, s{sT0}
        v_lshrrev_b32 v{vT0}, 3, v{vLane}
        v_mul_u32_u24 v{vFo}, {Y_STRIDE}, v{vT0}
        v_and_b32 v{vT0}, 7, v{vLane}
        v_lshl_add_u32 v{vFo}, v{vT0}, 4, v{vFo}
        """)
        for k in range(1, 8): P(f"s_add_u32 s{sF[k]}, s{sF[k-1]}, {8*Y_STRIDE}")
    B(0, c_fin, 2)

    vAcc = vD[1]
    prepared = set()
    def v_prep(i):
        v = i - 160
        if i < len(stream) and i not in prepared:
            pvop(v & 1, vP + (v >> 4), v & 15); prepared.add(i)
    def v_consume(i):
        v = i - 160
        v_prep(i)
        P.wait(sid[i])
        P(f"v_mfma_f32_16x16x32_bf16 {v4(vAcc)}, {a4(sslot[i])}, {v4(vTB[v & 1])}, {v4(vAcc) if v else 0}")
        release(i)
        v_prep(i+1)

    nk, nv = 32, 160
    bi = 0; lastbg = 0
    for i in range(len(stream)):
        landed = issue(i)
        c = 0
        while st['kok'] and nk < 160 and nk <= landed and c < kcatch:
            k_consume(nk); nk += 1; c += 1
        c = 0
        while st['vok'] and nv <= landed and c < vcatch:
            v_consume(nv); nv += 1; c += 1
        while bi < len(bg) and bg[bi][0] <= i and lastbg + bg[bi][2] <= i:
            P(f"; ---- step {i}: {bg[bi][1].__qualname__.split('.')[2]}")
            bg[bi][1](); bi += 1; lastbg = i
    assert bi == len(bg) and nk == 160, (bi, len(bg), nk)
    stamp("lastiss")
    while nv < len(stream):
        v_consume(nv); nv += 1
    stamp("vdone")

    r = vE
    for q in range(4): P(f"v_mul_f32 v{vAcc+q}, v{vAcc+q}, v{vWt}")
    P(f"""
    s_mov_b32 exec_lo, 0x00ff00ff
    s_mov_b32 exec_hi, 0xff00ff00
    ds_write_b128 v{vAw}, {v4(vAcc)} offset:{L_ARED}
    s_mov_b64 exec, -1
    s_waitcnt lgkmcnt(0)
    s_barrier
    """)
    for k in range(4): P(f"ds_read2st64_b32 {v2(r+2*k)}, v{vAr} offset0:{2*k} offset1:{2*k+1}")
    P(f"""
    s_waitcnt lgkmcnt(2)
    v_add_f32 v{r}, v{r}, v{r+1}
    v_add_f32 v{r+2}, v{r+2}, v{r+3}
    s_waitcnt lgkmcnt(0)
    v_add_f32 v{r+4}, v{r+4}, v{r+5}
    v_add_f32 v{r+6}, v{r+6}, v{r+7}
    v_add_f32 v{r}, v{r}, v{r+2}
    v_add_f32 v{r+4}, v{r+4}, v{r+6}
    v_add_f32 v{r}, v{r}, v{r+4}
    """)
    outproj(r, vRaw, 0)
    stamp("yapub")
    P(f"""
    s_cmp_lg_u32 s{sWv}, 0
    s_cbranch_scc1 L_done
    s_cmp_ge_u32 s2, {112 if 'ybs' in skip else 224}
    s_cbranch_scc1 L_done
    """)
    f = vWQ
    P.label("L_poll")
    for k in range(8): P.vm(f"buffer_load_dwordx4 {v4(f+4*k)}, v{vFo}, {srd(rWS)}, s{sF[k]} offen sc1")
    P(f"s_add_u32 s{sSpin}, s{sSpin}, 1")
    P(f"s_cmp_gt_u32 s{sSpin}, 0x40000")
    P.waitall()
    P("s_cbranch_scc1 L_got")
    tagcheck(P, range(f+1, f+32, 2), vT0, vT1)
    P("s_cbranch_vccnz L_poll")
    P.label("L_got")
    stamp("fgot")
    for d in (16, 8, 4):
        for k in range(0, d, 4):
            P(f"v_add_f32 v{f+k}, v{f+k}, v{f+k+d}")
            P(f"v_add_f32 v{f+k+2}, v{f+k+2}, v{f+k+2+d}")
    for st_ in ("r8", "p16", "p32"):
        xlane("v_add_f32", f, f+1, [st_]); xlane("v_add_f32", f+2, f+3, [st_])
    P(f"""
    v_cvt_pk_bf16_f32 v{f}, v{f}, v{f+2}
    v_lshlrev_b32 v{f+1}, 2, v{vLane}
    v_mov_b32 v{f+2}, s{sTag}
    s_mov_b64 exec, 0xff
    """)
    P.vm(f"buffer_store_dword v{f}, v{f+1}, {srd(rOUT)}, s{sOutO} offen")
    P(f"""
    s_cmp_lg_u32 s2, 0
    s_cbranch_scc1 L_done
    s_mov_b64 exec, 1
    """)
    P.vm(f"buffer_store_dword v{f+2}, v{f+1}, {srd(rWS)}, 0 offen")
    P.label("L_done")
    if spin:
        P.label("L_spin")
        P(f"""
        s_memrealtime {sp(sNow)}
        s_waitcnt lgkmcnt(0)
        s_sub_u32 s{sNow}, s{sNow}, s{sSt}
        s_cmp_lt_u32 s{sNow}, {spin}
        s_cbranch_scc1 L_spin
        """)
    if diag:
        P("s_mov_b64 exec, -1")
        stamp("end")
        P(f"""
        s_waitcnt lgkmcnt(0) vmcnt(0)
        s_lshl_b32 s{sT0}, s2, 2
        s_add_u32 s{sT0}, s{sT0}, s{sWv}
        s_lshl_b32 s{sT0}, s{sT0}, 7
        s_add_u32 s{sT0}, s{sT0}, {WS_DIAG}
        v_mov_b32 v{vT1}, 0
        s_mov_b64 exec, 1
        """)
        for n, (name, rr) in enumerate(stamps):
            P(f"v_mov_b32 v{vT0}, s{rr}")
            P.vm(f"buffer_store_dword v{vT0}, v{vT1}, {srd(rWS)}, s{sT0} offen offset:{4*n}")
        P(f"v_mov_b32 v{vT0}, s{sSpin}")
        P.vm(f"buffer_store_dword v{vT0}, v{vT1}, {srd(rWS)}, s{sT0} offen offset:{4*len(stamps)}")
    P.label("L_end")
    P("s_endpgm")

    body, stats = P.render()
    for Q in slow: body += Q.render()[0]
    head = open("cdna_kernels/" + KNAME[:-7] + ".s.ref").read().split("; Override launch")[0]
    txt = head + f"; @launch grid=(256,1,1) block=(256,1,1) lds={L_TOTAL}\n"
    txt += f'.amdgcn_target "amdgcn-amd-amdhsa--gfx950"\n.text\n.globl {KNAME}\n.p2align 8\n.type {KNAME},@function\n{KNAME}:\n'
    txt += body
    txt += f""".section .rodata,"a"
.p2align 6
.amdhsa_kernel {KNAME}
  .amdhsa_next_free_vgpr 512
  .amdhsa_next_free_sgpr 102
  .amdhsa_accum_offset 256
  .amdhsa_group_segment_fixed_size 0
  .amdhsa_kernarg_size 104
  .amdhsa_user_sgpr_count 2
  .amdhsa_user_sgpr_kernarg_segment_ptr 1
  .amdhsa_system_sgpr_workgroup_id_x 1
.end_amdhsa_kernel
"""
    return txt, dict(stats, vhw=V.hw, shw=S.hw, stamps=[n for n, _ in stamps])

if __name__ == "__main__":
    import json
    kw = json.loads(sys.argv[2]) if len(sys.argv) > 2 else {}
    t, s = gen(**kw)
    open(sys.argv[1], "w").write(t)
    print(s, file=sys.stderr)
```

```python
import re
REG = re.compile(r'\b([vas])(\d+)\b|\b([vas])\[(\d+):(\d+)\]|\b(vcc|exec)\b')
TRANS = ('v_exp_f32','v_log_f32','v_rcp_f32','v_rsq_f32','v_sqrt_f32')

def regs_of(txt):
    out = []
    for m in REG.finditer(txt):
        if m.group(1): out.append((m.group(1), int(m.group(2))))
        elif m.group(3): out += [(m.group(3), i) for i in range(int(m.group(4)), int(m.group(5))+1)]
        else: out.append((m.group(6), 0))
    return out

def split_ops(rest):
    ops, depth, cur = [], 0, ''
    for ch in rest:
        if ch == '[': depth += 1
        if ch == ']': depth -= 1
        if ch == ',' and depth == 0:
            ops.append(cur.strip()); cur = ''
        else: cur += ch
    if cur.strip(): ops.append(cur.strip())
    return ops

class Ins:
    def __init__(self, txt):
        self.txt = txt
        t = txt.split(';')[0].strip()
        sp = t.split(None, 1)
        self.op = op = sp[0]
        ops = split_ops(sp[1]) if len(sp) > 1 else []
        self.w, self.r = set(), set()
        self.mfma = op.startswith('v_mfma')
        self.valu = op.startswith('v_') and not self.mfma
        self.trans = op in TRANS
        self.dpp = '_dpp' in op
        self.perml = op.startswith('v_permlane')
        self.rdl = op.startswith('v_readlane') or op.startswith('v_readfirstlane')
        self.vmem = op.startswith('buffer_') or op.startswith('global_')
        self.ds = op.startswith('ds_')
        self.store = self.vmem and ('store' in op or 'atomic' in op)
        self.wide_store = self.store and ('x4' in op or 'x3' in op)
        self.states = 1
        if op == 's_nop': self.states = int(ops[0], 0) + 1
        self.cs = set(); self.ab = set(); self.sdata = set(); self.dppsrc = set(); self.lanesel = set()
        if self.mfma:
            self.w = set(regs_of(ops[0])); self.ab = set(regs_of(ops[1]) + regs_of(ops[2])); self.cs = set(regs_of(ops[3]))
            self.r = self.ab | self.cs
        elif self.valu:
            self.w = set(regs_of(ops[0]))
            rest = ops[1:]
            if op.startswith(('v_add_co', 'v_sub_co', 'v_addc_co')):
                self.w |= set(regs_of(ops[1])); rest = ops[2:]
            for o in rest: self.r |= set(regs_of(o))
            if self.perml: self.w |= set(regs_of(ops[1])); self.r |= set(regs_of(ops[0]))
            if op.startswith(('v_fmac', 'v_writelane')) or self.dpp: self.r |= set(regs_of(ops[0]))
            if self.dpp: self.dppsrc = set(regs_of(ops[1].split()[0]))
            if op.startswith('v_readlane'): self.lanesel = set(regs_of(ops[2]))
        elif self.vmem:
            if self.store:
                for o in ops: self.r |= set(regs_of(o))
                self.sdata = set(regs_of(ops[0] if op.startswith('buffer_') else ops[1]))
            else:
                self.w = set(regs_of(ops[0]))
                for o in ops[1:]: self.r |= set(regs_of(o))
        elif self.ds:
            if 'write' in op or 'add' in op:
                for o in ops: self.r |= set(regs_of(o))
            else:
                self.w = set(regs_of(ops[0]))
                for o in ops[1:]: self.r |= set(regs_of(o))
        else:
            if ops and not op.startswith(('s_cmp', 's_cbranch', 's_branch', 's_waitcnt', 's_nop', 's_barrier', 's_sleep', 's_endpgm', 's_setprio')):
                self.w = set(regs_of(ops[0]))
                for o in ops[1:]: self.r |= set(regs_of(o))
            else:
                for o in ops: self.r |= set(regs_of(o))

def isS(r): return r[0] in ('s', 'vcc')

def need(p, c):
    n = 0
    if p.valu:
        wv = {r for r in p.w if r[0] in 'va' and r[0] != 'vcc'}
        ws = {r for r in p.w if isS(r)}
        if c.mfma and wv & c.r: n = max(n, 2)
        if c.dpp and wv & c.dppsrc: n = max(n, 2)
        if c.perml and wv & c.r: n = max(n, 2)
        if c.rdl and wv & c.r: n = max(n, 1)
        if p.trans and c.valu and wv & c.r: n = max(n, 1)
        if c.valu and ws & c.r: n = max(n, 2)
        if c.valu and ws & c.lanesel: n = max(n, 4)
        if c.vmem and ws & c.r: n = max(n, 5)
    if p.mfma:
        if c.mfma:
            if p.w & c.ab: n = max(n, 8)
            if p.w & c.cs and p.w != c.cs: n = max(n, 6)
            if p.w & c.w and p.w != c.cs: n = max(n, 8)
        elif c.valu or c.vmem or c.ds:
            if p.w & (c.r | c.w): n = max(n, 8)
        if c.valu and p.cs & c.w: n = max(n, 3)
    if p.wide_store and p.sdata & c.w: n = max(n, 2)
    return n

class Prog:
    def __init__(self):
        self.ir = []
        self.nid = 0
    def __call__(self, txt):
        for line in txt.strip().split('\n'):
            line = line.strip()
            if line: self.ir.append(('i', line))
    def vm(self, txt):
        self.nid += 1
        self.ir.append(('vm', txt, self.nid)); return self.nid
    def wait(self, *ids):
        self.ir.append(('w', [i for i in ids if i is not None]))
    def cwait(self, strict, loose, test):
        self.ir.append(('cw', strict, loose, test))
    def waitall(self):
        self.ir.append(('wall',))
    def label(self, name):
        self.ir.append(('l', name))
    def raw(self, txt):
        self.ir.append(('raw', txt))
    def fence(self):
        self.ir.append(('f',))
    def render(self):
        out = []; hist = []; order = []; done = -1
        stats = dict(nops=0, waits=0)
        def emit(txt):
            c = Ins(txt)
            dist = 0; pad = 0
            for p in reversed(hist):
                if dist >= 12: break
                pad = max(pad, need(p, c) - dist)
                dist += p.states
            if pad > 0:
                np_ = Ins(f's_nop {pad-1}'); hist.append(np_); out.append('    ' + np_.txt); stats['nops'] += 1
            hist.append(c); out.append('    ' + txt)
            del hist[:-24]
        for it in self.ir:
            if it[0] == 'i':
                if it[1].startswith(';'): out.append('    ' + it[1])
                else: emit(it[1])
            elif it[0] == 'vm':
                emit(it[1]); order.append(it[2])
            elif it[0] == 'w':
                if not it[1]: continue
                pos = max(order.index(i) for i in it[1])
                if pos > done:
                    n = len(order) - 1 - pos
                    assert n <= 63, n
                    emit(f's_waitcnt vmcnt({n})'); done = pos; stats['waits'] += 1
            elif it[0] == 'cw':
                self.ncw = getattr(self, 'ncw', 0) + 1
                ps = order.index(it[1])
                if ps > done:
                    for t in it[3]: emit(t)
                    emit(f's_cbranch_scc1 L_cw{self.ncw}')
                    emit(f's_waitcnt vmcnt({len(order) - 1 - ps})')
                    hist[-1].states = 0
                    out.append(f'L_cw{self.ncw}:')
                if it[2] is not None:
                    pos = order.index(it[2])
                    if pos > done:
                        emit(f's_waitcnt vmcnt({len(order) - 1 - pos})'); done = pos
            elif it[0] == 'wall':
                emit('s_waitcnt vmcnt(0)'); done = len(order) - 1
            elif it[0] == 'l':
                out.append(it[1] + ':')
            elif it[0] == 'raw':
                out.append(it[1])
            elif it[0] == 'f':
                emit('s_nop 7'); emit('s_nop 3')
        return '\n'.join(out) + '\n', stats

class Alloc:
    def __init__(self, kind, lo, hi):
        self.kind, self.free = kind, set(range(lo, hi)); self.hw = lo
    def get(self, n=1, align=None):
        align = align or (1 if n == 1 else (2 if self.kind != 's' or n == 2 else 4))
        for b in sorted(self.free):
            if b % align == 0 and all(b+i in self.free for i in range(n)):
                for i in range(n): self.free.remove(b+i)
                self.hw = max(self.hw, b+n)
                return b
        raise RuntimeError(f'out of {self.kind} regs ({n})')
    def put(self, b, n=1):
        for i in range(n):
            assert b+i not in self.free
            self.free.add(b+i)
```

```python
import sys, math, struct
from asmlib import Prog, Alloc
KNAME = "concat_heads__mha_block_cached__sliding_block_cached__decode_kernel"

WS_Q, WS_SC, WS_Y, WS_DIAG, WS_FC = 0x10000, 0x40000, 0x100000, 0x800000, 0x1e0000
Y_STRIDE = 3584
L_QRED, L_ST, L_RED, L_TOTAL = 0, 8192, 8448, 8448 + 3*2048
CS = struct.unpack('<I', struct.pack('<f', math.log2(math.e) / 16.0))[0]
BIG = 0x7ff00000
FULL = "row_mask:0xf bank_mask:0xf"

def gen(W=5, qg=22, sg=18, wflag="", diag=False, kcatch=3, vcatch=3, wo0=40, wrate=1, skip=(), spin=0, Wpat=None, forcesc1=False, W3=None, WV=None, park=True, pfq=0, pfo=0, pfflag='', gq='', gs='', fc=None):
    P = Prog()
    V = Alloc('v', 1, 256); S = Alloc('s', 3, 100)
    slots = list(range(64))
    def a4(s): return f"a[{4*s}:{4*s+3}]"
    def v4(r): return f"v[{r}:{r+3}]"
    def v3(r): return f"v[{r}:{r+2}]"
    def v2(r): return f"v[{r}:{r+1}]"
    def srd(r): return f"s[{r}:{r+3}]"
    def sp(r): return f"s[{r}:{r+1}]"
    def vcc(m): P(f"s_mov_b32 vcc_lo, {m:#x}"); P(f"s_mov_b32 vcc_hi, {m:#x}")
    slow = []
    stamps = []
    def stamp(name):
        if diag:
            r = S.get(2); stamps.append((name, r)); P(f"s_memrealtime {sp(r)}")
    WM = max(Wpat) if Wpat else W
    WMV = max([WM] + list(W3 or []) + list(WV or []))
    sCls = S.get()
    fcs = dict(start=None, ids={})
    if fc:
        fc = dict(dict(first=12, Pd=24, dW=2, r0=0.6, gain=2.5, ld=''), **fc)
        W0 = WM; WM += fc['dW']; WMV += fc['dW']
        sBoost, sFC = S.get(), S.get()
        cps = list(range(fc['first'], 288 - WMV - 6, fc['Pd']))
    else:
        W0 = WM; cps = []

    rX, rWQ, rBK, rBV, rAK, rAV, rWOA, rWOB, rWS, rOUT = [S.get(4) for _ in range(10)]
    sT0, sT1, sWv, sTag, sOff, sAux, sSel0, sSel1, sC, sSpin, sCB, sTagQ, sFar = [S.get() for _ in range(13)]
    P("s_cmp_ge_u32 s2, 256")
    P("s_cbranch_scc1 L_end")
    stamp("start")
    if spin:
        sSt = S.get(2); sNow = S.get(2); P(f"s_memrealtime {sp(sSt)}")
    P(f"""
    s_lshr_b32 s{sT0}, s2, 7
    s_mul_i32 s{sT0}, s{sT0}, 40
    s_add_u32 s{sT1}, s{sT0}, 24
    s_load_dwordx2 {sp(rX)}, s[0:1], s{sT0}
    s_load_dwordx2 {sp(rWQ)}, s[0:1], s{sT1}
    s_load_dwordx2 {sp(rBK)}, s[0:1], 48
    s_load_dwordx2 {sp(rWS)}, s[0:1], 96
    s_load_dwordx2 {sp(rBV)}, s[0:1], 56
    s_load_dwordx2 {sp(rAK)}, s[0:1], 8
    s_load_dwordx2 {sp(rAV)}, s[0:1], 16
    s_load_dwordx2 {sp(rWOA)}, s[0:1], 32
    s_load_dwordx2 {sp(rWOB)}, s[0:1], 72
    s_load_dwordx2 {sp(rOUT)}, s[0:1], 80
    ; logical id = b(2) | x(3) | t(3): workgroups that are 8 apart share x (L2 locality only)
    s_and_b32 s{sT0}, s2, 7
    s_lshl_b32 s{sT0}, s{sT0}, 3
    s_bfe_u32 s{sT1}, s2, 0x30003
    s_and_b32 s2, s2, 0xc0
    s_or_b32 s2, s2, s{sT0}
    s_or_b32 s2, s2, s{sT1}
    """)
    for r, sz in [(rX, 3584), (rWQ, 3670016), (rBK, 1 << 26), (rBV, 1 << 26), (rAK, 1 << 27), (rAV, 1 << 27),
                  (rWOA, 3670016), (rWOB, 3670016), (rWS, 1 << 24), (rOUT, 7168)]:
        P(f"s_mov_b32 s{r+2}, {sz}")
        P(f"s_mov_b32 s{r+3}, 0x20000")
    vLane, vT0, vT1, vT2, vBig = [V.get() for _ in range(5)]
    vXo, vWQo, vKo, vVo = [V.get() for _ in range(4)]
    P(f"""
    v_lshrrev_b32 v{vT0}, 6, v0
    v_and_b32 v{vLane}, 63, v0
    v_readfirstlane_b32 s{sWv}, v{vT0}
    v_mov_b32 v{vBig}, {BIG}
    v_lshrrev_b32 v{vT0}, 2, v0
    v_and_b32 v{vT1}, 3, v0
    v_lshlrev_b32 v{vWQo}, 16, v{vT0}
    v_lshl_add_u32 v{vWQo}, v{vT1}, 4, v{vWQo}
    v_mul_u32_u24 v{vXo}, 896, v{vT1}
    v_lshl_add_u32 v{vXo}, v{vT0}, 4, v{vXo}
    v_cmp_gt_u32 vcc, 56, v{vT0}
    v_cndmask_b32 v{vXo}, v{vBig}, v{vXo}, vcc
    s_and_b32 s{sCB}, s2, 0x38
    s_lshl_b32 s{sCB}, s{sCB}, 1
    s_and_b32 s{sT0}, s2, 7
    s_or_b32 s{sCB}, s{sCB}, s{sT0}
    s_bfe_u32 s{sT1}, s2, 0x10006
    s_lshl_b32 s{sT1}, s{sT1}, 3
    s_or_b32 s{sCB}, s{sCB}, s{sT1}
    s_lshl_b32 s{sAux}, s{sCB}, 6
    v_bfe_u32 v{vT0}, v{vLane}, 2, 2
    v_lshlrev_b32 v{vKo}, 10, v{vT0}
    v_lshl_add_u32 v{vKo}, v{vT1}, 4, v{vKo}
    v_lshrrev_b32 v{vT0}, 4, v{vLane}
    v_lshl_add_u32 v{vKo}, v{vT0}, 6, v{vKo}
    s_lshr_b32 s{sOff}, s2, 3
    s_lshl_b32 s{sOff}, s{sOff}, 21
    s_and_b32 s{sT0}, s2, 4
    s_lshl_b32 s{sT0}, s{sT0}, 16
    s_add_u32 s{sOff}, s{sOff}, s{sT0}
    s_and_b32 s{sT0}, s2, 3
    s_lshl_b32 s{sT0}, s{sT0}, 14
    s_add_u32 s{sOff}, s{sOff}, s{sT0}
    s_lshl_b32 s{sT0}, s{sWv}, 12
    s_add_u32 s{sOff}, s{sOff}, s{sT0}
    s_add_u32 s{sOff}, s{sOff}, {3072*512}
    s_waitcnt lgkmcnt(0)
    s_load_dword s{sTag}, {sp(rWS)}, 0
    """)
    stamp("karg")
    vX = V.get(4, 4); vWQ = V.get(32, 4)
    idx = P.vm(f"buffer_load_dwordx4 {v4(vX)}, v{vXo}, {srd(rX)}, 0 offen")
    idwq = []
    def wq_loads():
        for j in range(8):
            if "wq" in skip: continue
            idwq.append(P.vm(f"buffer_load_dwordx4 {v4(vWQ+4*j)}, v{vWQo}, {srd(rWQ)}, s{sAux} offen {wflag}"))
            if j < 7: P(f"s_addk_i32 s{sAux}, 0x2000")
    if pfq:
        P(f"""
        v_lshlrev_b32 v{vT2}, 4, v{vLane}
        s_and_b32 s{sT0}, s{sCB}, 15
        s_lshl_b32 s{sT0}, s{sT0}, 2
        s_add_u32 s{sT0}, s{sT0}, s{sWv}
        s_mul_i32 s{sT0}, s{sT0}, {7*8192}
        s_lshr_b32 s{sT1}, s{sCB}, 4
        s_lshl_b32 s{sT1}, s{sT1}, 10
        s_add_u32 s{sT0}, s{sT0}, s{sT1}
        """)
        for j in range(7):
            P.vm(f"buffer_load_dwordx4 {a4(57+j)}, v{vT2}, {srd(rWQ)}, s{sT0} offen {pfflag}")
            if j < 6: P(f"s_addk_i32 s{sT0}, 0x2000")
    else:
        wq_loads()

    stream = []
    for k in range(16): stream.append(("BK", k))
    for k in range(16): stream.append(("BV", k))
    for k in range(128): stream.append(("AK", k))
    for k in range(128): stream.append(("AV", k))
    sid = {}; sslot = {}; land = [-1]
    def issue(i):
        kind, k = stream[i]
        if k == 0 and kind == "BV":
            P(f"""
            s_lshr_b32 s{sOff}, s2, 3
            s_lshl_b32 s{sOff}, s{sOff}, 21
            s_and_b32 s{sT0}, s2, 4
            s_lshl_b32 s{sT0}, s{sT0}, 16
            s_add_u32 s{sOff}, s{sOff}, s{sT0}
            s_and_b32 s{sT0}, s2, 3
            s_lshl_b32 s{sT0}, s{sT0}, 7
            s_add_u32 s{sOff}, s{sOff}, s{sT0}
            s_lshl_b32 s{sT0}, s{sWv}, 12
            s_add_u32 s{sOff}, s{sOff}, s{sT0}
            s_add_u32 s{sOff}, s{sOff}, {3072*512}
            """)
        elif k == 0 and kind == "AK":
            P(f"""
            s_lshr_b32 s{sOff}, s2, 2
            s_lshl_b32 s{sOff}, s{sOff}, 21
            s_and_b32 s{sT0}, s2, 3
            s_lshl_b32 s{sT0}, s{sT0}, 14
            s_add_u32 s{sOff}, s{sOff}, s{sT0}
            s_lshl_b32 s{sT0}, s{sWv}, 12
            s_add_u32 s{sOff}, s{sOff}, s{sT0}
            """)
        elif k == 0 and kind == "AV":
            P(f"""
            s_lshr_b32 s{sOff}, s2, 2
            s_lshl_b32 s{sOff}, s{sOff}, 21
            s_and_b32 s{sT0}, s2, 3
            s_lshl_b32 s{sT0}, s{sT0}, 7
            s_add_u32 s{sOff}, s{sOff}, s{sT0}
            s_lshl_b32 s{sT0}, s{sWv}, 12
            s_add_u32 s{sOff}, s{sOff}, s{sT0}
            """)
        elif k and kind[1] == "V":
            P(f"s_addk_i32 s{sOff}, 0x4000")
        elif k and k % 4 == 0:
            P(f"s_add_u32 s{sOff}, s{sOff}, 0x10000")
        w = Wpat[i % len(Wpat)] if Wpat else W
        if WV and kind == "AV": w = WV[i % len(WV)]
        if fcs['start'] is not None:
            wd = w + fc['dW']
            P.cwait(sid[i-w], sid[i-wd], [f"s_cmp_gt_i32 s{sBoost}, {i - fcs['start']}"]); land[0] = max(land[0], i-wd)
        elif W3 and kind == "AV" and W3[i % len(W3)] > w:
            w3 = W3[i % len(W3)]
            P.cwait(sid[i-w], sid[i-w3], [f"s_cmp_eq_u32 s{sCls}, 3"]); land[0] = max(land[0], i-w3)
        elif i >= w:
            P.wait(sid[i-w]); land[0] = max(land[0], i-w)
        s = slots.pop(0); sslot[i] = s
        r, vo = {"BK": (rBK, vKo), "BV": (rBV, vVo), "AK": (rAK, vKo), "AV": (rAV, vVo)}[kind]
        imm = 0 if kind[1] == "V" else (k & 3) * 256
        o = f" offset:{imm}" if imm else ""
        sid[i] = P.vm(f"buffer_load_dwordx4 {a4(s)}, v{vo}, {srd(r)}, s{sOff} offen{o} nt")
        return land[0]
    def release(i): slots.append(sslot[i])

    def xlane(op, x, t, steps):
        for st in steps:
            if st in ("x1", "x2", "r4", "r8"):
                d = {"x1": "quad_perm:[1,0,3,2]", "x2": "quad_perm:[2,3,0,1]", "r4": "row_ror:4", "r8": "row_ror:8"}[st]
                P(f"{op}_dpp v{x}, v{x}, v{x} {d} {FULL}")
            else:
                P(f"v_mov_b32 v{t}, v{x}")
                P(f"v_permlane{st[1:]}_swap_b32 v{x}, v{t}")
                P(f"{op} v{x}, v{x}, v{t}")
    def tagcheck(Q, tags, stag, mask):
        tags = list(tags)
        if len(tags) % 2: tags.append(tags[-1])
        acc = []
        pairs = list(zip(tags[0::2], tags[1::2]))
        for n, (a, b) in enumerate(pairs):
            d = vT0 if n == 0 else (vT1 if n % 2 else vT2)
            Q(f"v_bitop3_b32 v{d}, v{a}, v{b}, s{stag} bitop3:0x7e")
            if n and n % 2 == 0: Q(f"v_or3_b32 v{vT0}, v{vT0}, v{vT1}, v{vT2}")
            elif n and n == len(pairs)-1: Q(f"v_or_b32 v{vT0}, v{vT0}, v{vT1}")
        Q(f"v_and_b32 v{vT1}, {mask:#x}, v{vT0}")
        Q(f"v_cmp_ne_u32 vcc, 0, v{vT1}")
    def gather(name, loads, tags, stag, mask, first):
        ids = []
        def iss():
            if name+"g" in skip: return
            for t in loads: ids.append(P.vm(t.replace(" sc1", " " + first)))
        def chk():
            if name+"g" in skip: return
            P.wait(*ids)
            tagcheck(P, tags, stag, mask)
            P(f"s_cbranch_vccnz L_slow_{name}")
            P.label(f"L_back_{name}")
            Q = Prog()
            Q.label(f"L_slow_{name}")
            Q(f"s_add_u32 s{sSpin}, s{sSpin}, 1")
            Q(f"s_cmp_gt_u32 s{sSpin}, 0x40000")
            Q(f"s_cbranch_scc1 L_back_{name}")
            for t in loads: Q.vm(t)
            Q.waitall()
            tagcheck(Q, tags, stag, mask)
            Q(f"s_cbranch_vccnz L_slow_{name}")
            Q(f"s_branch L_back_{name}")
            slow.append(Q)
        return iss, chk
    def extract(D, dst, tau, t):
        rs = [r for r in range(4) if r != tau]
        src = D + tau
        for n, r in enumerate(rs):
            last = n == 2
            m = f"row_mask:0xf bank_mask:{1 << tau:#x}" if last else FULL
            P(f"v_add_f32_dpp v{dst if last else t}, v{D+r}, v{src} row_ror:{(4*(tau-r)) % 16} {m}")
            src = t

    bg = []
    def B(at, fn, after=1): bg.append((at, fn, after))

    vSel = V.get(4); vWOo = V.get(); vL12 = V.get()
    def c_setup():
        P(f"""
        v_lshrrev_b32 v{vT0}, 4, v{vLane}
        v_and_b32 v{vT1}, 15, v{vLane}
        v_mul_u32_u24 v{vL12}, 12, v{vLane}
        ; wo lane pattern: (32*(g>>1)+4*(g&1))*896 + 16*n (n<14)
        v_lshrrev_b32 v{vWOo}, 1, v{vT0}
        v_mul_u32_u24 v{vWOo}, {32*896}, v{vWOo}
        v_and_b32 v{vT0}, 1, v{vT0}
        v_mul_u32_u24 v{vT0}, {4*896}, v{vT0}
        v_lshl_add_u32 v{vT0}, v{vT1}, 4, v{vT0}
        v_add_u32 v{vWOo}, v{vWOo}, v{vT0}
        v_cmp_gt_u32 vcc, 14, v{vT1}
        v_cndmask_b32 v{vWOo}, v{vBig}, v{vWOo}, vcc
        v_lshrrev_b32 v{vT0}, 3, v{vLane}
        v_and_b32 v{vT1}, 7, v{vLane}
        v_lshlrev_b32 v{vVo}, 9, v{vT0}
        v_lshl_add_u32 v{vVo}, v{vT1}, 4, v{vVo}
        v_and_b32 v{vT0}, 1, v{vT0}
        v_mul_u32_u24 v{vT0}, 0x0202, v{vT0}
        v_add_u32 v{vT0}, 0x0100, v{vT0}
        v_or_b32 v{vT2}, 0x0c0c0000, v{vT0}
        v_lshlrev_b32 v{vT0}, 16, v{vT0}
        v_or_b32 v{vT0}, 0x0c0c, v{vT0}
        """)
        vcc(0xaaaaaaaa)
        P(f"v_cndmask_b32 v{vT0}, v{vT2}, v{vT0}, vcc")
        P(f"v_mov_b32 v{vT2}, 0x0c0c0c0c")
        for r in range(4):
            vcc(0x03030303 << (2*r)); P(f"v_cndmask_b32 v{vSel+r}, v{vT2}, v{vT0}, vcc")
        P(f"""
        s_mov_b32 s{sSel0}, 0x05040100
        s_mov_b32 s{sSel1}, 0x07060302
        s_mov_b32 s{sC}, {CS:#x}
        s_mov_b32 s{sSpin}, 0
        s_and_b32 s{sCls}, s2, 3
        s_getreg_b32 s{sTagQ}, hwreg(HW_REG_XCC_ID, 0, 4)
        """)
    def transp(dst, src, e):
        for q in range(4):
            P(f"v_perm_b32 v{dst+q}, v{src+4*(2*q+1)+(e>>1)}, v{src+4*(2*q)+(e>>1)}, s{sSel1 if e & 1 else sSel0}")

    vQD = V.get(36, 4); vTB = [V.get(4, 4), V.get(4, 4)]
    def c_q(e0):
        def f():
            P.wait(idx, *idwq)
            if e0 == 0: stamp("wq")
            for e in range(e0, e0+4):
                transp(vTB[e & 1], vWQ, e)
                P(f"v_mfma_f32_16x16x32_bf16 {v4(vQD+4*e)}, {v4(vX)}, {v4(vTB[e & 1])}, 0")
        return f
    def c_q3():
        a = vTB[0]; r = vWQ
        P(f"""
        v_lshrrev_b32 v{a}, 4, v0
        v_lshlrev_b32 v{a}, 9, v{a}
        v_and_b32 v{a+1}, 3, v0
        v_lshl_add_u32 v{a}, v{a+1}, 7, v{a}
        s_mov_b32 exec_lo, 0x00f0000f
        s_mov_b32 exec_hi, 0xf0000f00
        """)
        for e in range(8): P(f"ds_write_b128 v{a}, {v4(vQD+4*e)} offset:{L_QRED+16*e}")
        P(f"""
        s_mov_b64 exec, -1
        v_and_b32 v{a}, 31, v{vLane}
        v_lshlrev_b32 v{a}, 4, v{a}
        v_lshrrev_b32 v{a+1}, 5, v{vLane}
        v_lshl_add_u32 v{a}, v{a+1}, 12, v{a}
        s_lshl_b32 s{sT0}, s{sWv}, 2
        v_add_u32 v{a}, s{sT0}, v{a}
        s_waitcnt lgkmcnt(0)
        """)
    def c_q4():
        a = vTB[0]; r = vWQ
        P("s_barrier")
        for k in range(4): P(f"ds_read2st64_b32 {v2(r+2*k)}, v{a} offset0:{L_QRED//256+4*k} offset1:{L_QRED//256+4*k+2}")
        P(f"""
        s_add_u32 s{sTag}, s{sTag}, 0x9e3779b9
        s_and_b32 s{sT0}, s{sTag}, 0xfffffff0
        s_or_b32 s{sTagQ}, s{sTagQ}, s{sT0}
        s_lshr_b32 s{sT0}, s2, 7
        s_lshl_b32 s{sT0}, s{sT0}, 2
        s_add_u32 s{sT0}, s{sT0}, s{sWv}
        s_lshl_b32 s{sT0}, s{sT0}, 14
        s_lshl_b32 s{sT1}, s{sCB}, 7
        s_add_u32 s{sT0}, s{sT0}, s{sT1}
        s_add_u32 s{sT0}, s{sT0}, {WS_Q}
        v_lshlrev_b32 v{a+2}, 2, v{vLane}
        s_waitcnt lgkmcnt(0)
        v_add_f32 v{r}, v{r}, v{r+1}
        v_add_f32 v{r+2}, v{r+2}, v{r+3}
        v_add_f32 v{r+4}, v{r+4}, v{r+5}
        v_add_f32 v{r+6}, v{r+6}, v{r+7}
        v_add_f32 v{r}, v{r}, v{r+2}
        v_add_f32 v{r+4}, v{r+4}, v{r+6}
        v_add_f32 v{r}, v{r}, v{r+4}
        """)
        xlane("v_add_f32", r, r+1, ["p32"])
        P(f"""
        v_mov_b32_dpp v{r+1}, v{r} quad_perm:[1,0,3,2] {FULL}
        v_cvt_pk_bf16_f32 v{r+2}, v{r}, v{r+1}
        v_mov_b32 v{r+3}, s{sTagQ}
        s_mov_b32 exec_lo, 0x55555555
        s_mov_b32 exec_hi, 0
        """)
        if "qs" not in skip: P.vm(f"buffer_store_dwordx2 {v2(r+2)}, v{a+2}, {srd(rWS)}, s{sT0} offen sc1")
        P("s_mov_b64 exec, -1")
        stamp("qpub")
    B(W0-1, c_setup, 0)
    if pfq: B(pfq, wq_loads, 0)
    B(0, c_q(0), WM+1 if pfq else 0); B(0, c_q(4)); B(0, c_q3); B(0, c_q4)

    vQA = V.get(32, 4); vQB = V.get(16, 4)
    vG = vQD
    vGo = V.get(3); sG = [S.get() for _ in range(8)]
    ql = [f"buffer_load_dwordx4 {v4(vG+8*u+4*hf)}, v{vGo}, {srd(rWS)}, s{sG[0]} offen offset:{512*u+16*hf} sc1" for u in range(2) for hf in range(2)]
    ql += [f"buffer_load_dwordx4 {v4(vG+16+8*u+4*hf)}, v{vGo+1}, {srd(rWS)}, s{sG[1]} offen offset:{512*u+16*hf} sc1" for u in range(2) for hf in range(2)]
    ql += [f"buffer_load_dwordx2 {v2(vG+32)}, v{vGo+2}, {srd(rWS)}, s{sG[2]} offen sc1"]
    q_iss, q_chk = gather("q", ql, range(vG+1, vG+34, 2), sTagQ, 0xfffffff0, gq)
    def c_qg():
        P(f"""
        v_lshrrev_b32 v{vGo}, 2, v{vLane}
        v_lshlrev_b32 v{vGo}, 5, v{vGo}
        v_bfe_u32 v{vT0}, v{vLane}, 1, 1
        v_lshl_add_u32 v{vGo+1}, v{vT0}, 10, v{vGo}
        v_and_b32 v{vT0}, 7, v{vLane}
        v_lshlrev_b32 v{vGo+2}, 7, v{vT0}
        s_lshr_b32 s{sG[0]}, s2, 2
        s_lshl_b32 s{sG[0]}, s{sG[0]}, 10
        s_add_u32 s{sG[0]}, s{sG[0]}, {WS_Q}
        s_xor_b32 s{sG[2]}, s{sG[0]}, 1024
        s_lshr_b32 s{sG[1]}, s2, 3
        s_lshl_b32 s{sG[1]}, s{sG[1]}, 11
        s_add_u32 s{sG[1]}, s{sG[1]}, {WS_Q + 4*16384}
        """)
        q_iss()
    st = dict(kok=False, vok=False)
    def c_qb1():
        q_chk(); stamp("qgot")
        P(f"""
        ; any of the 32 workgroups of this class on another XCC -> write later hand-offs through
        v_cmp_ne_u32 vcc, 0, v{vT0}
        s_or_b32 s{sFar}, vcc_lo, vcc_hi
        """)
        if forcesc1: P(f"s_mov_b32 s{sFar}, 1")
        for t in range(2):
            vcc(0x55555555 << t)
            for u in range(2):
                for q in range(4): P(f"v_cndmask_b32 v{vQB+8*u+4*t+q}, 0, v{vG+16+8*u+2*q}, vcc")
    def c_qb2():
        for t in range(4):
            vcc(0x11111111 << t)
            for u in range(2):
                for q in range(4): P(f"v_cndmask_b32 v{vQA+16*u+4*t+q}, 0, v{vG+8*u+2*q}, vcc")
        st['kok'] = True
    B(qg, c_qg); B(0, c_qb1, WM+1); B(0, c_qb2)

    vD = [V.get(4, 4) for _ in range(4)]
    vSB = V.get()
    def c_bqk():
        P.wait(sid[15])
        D = vWQ
        for tau in range(4):
            for n in range(4):
                t, u = n >> 1, n & 1
                P(f"v_mfma_f32_16x16x32_bf16 {v4(D+4*tau)}, {a4(sslot[4*tau+n])}, {v4(vQB+8*u+4*t)}, {v4(D+4*tau) if n else 0}")
                release(4*tau+n)
        for tau in range(4): extract(D+4*tau, vSB, tau, vT0)
        P(f"""
        v_cvt_pk_bf16_f32 v{vSB}, v{vSB}, v{vSB}
        v_mov_b32 v{vT0}, 0xffff
        v_bfi_b32 v{vSB}, v{vT0}, s{sTag}, v{vSB}
        """)
    B(15+WM, c_bqk)

    vWO = V.get(64, 4)
    vRaw = vQD
    woids = []
    def c_wol(which, ks, js):
        def f():
            if ks == 0 and js[0] == 0:
                if which == 2:
                    P(f"s_and_b32 s{sCB}, s2, 63")
                else:
                    P(f"s_and_b32 s{sCB}, s2, 0x3b")
                    if which: P(f"s_or_b32 s{sCB}, s{sCB}, 4")
                P(f"""
                s_mul_i32 s{sCB}, s{sCB}, {64*896}
                s_mul_i32 s{sT0}, s{sWv}, 224
                s_add_u32 s{sCB}, s{sCB}, s{sT0}
                """)
            for j in js:
                row = 8*(j & 3) + 2*ks + (j >> 2)
                P(f"s_add_u32 s{sAux}, s{sCB}, {row*896}")
                if "wo" in skip: woids.append(None)
                else: woids.append(P.vm(f"buffer_load_dwordx4 {v4(vRaw+4*j)}, v{vWOo}, {srd(rWOA if which == 2 else rWOB)}, s{sAux} offen {wflag}"))
        return f
    def c_wot(ks):
        def f():
            P.wait(woids[-1])
            if park and ks == 0: P("s_waitcnt lgkmcnt(0)")
            for e in range(8): transp(vWO+32*ks+4*e, vRaw, e)
        return f
    def wo_sched(which, at, rate):
        for ks in range(2):
            for j in range(0, 8, rate): B(at, c_wol(which, ks, list(range(j, j+rate))))
            B(0, c_wot(ks), (WMV if (which and not park) else WM)+1)
    vOA = V.get(8, 4); vY = vX; vYo = V.get(); sY = S.get()
    def outproj(o, acc, first):
        P(f"""
        v_mov_b32_dpp v{vT0}, v{o} quad_perm:[1,0,3,2] {FULL}
        v_cvt_pk_bf16_f32 v{vT0}, v{o}, v{vT0}
        """)
        for k in range(8): P(f"v_mov_b32_dpp v{vOA+k}, v{vT0} row_newbcast:{2*k} {FULL}")
        for ks in range(2):
            for e in range(8):
                P(f"v_mfma_f32_16x16x32_bf16 {v4(acc+4*e)}, {v4(vOA+4*ks)}, {v4(vWO+32*ks+4*e)}, {0 if (first and ks == 0) else v4(acc+4*e)}")
    def ysel(acc, dst):
        for g in range(4):
            for h in range(2):
                P(f"v_mov_b32_dpp v{dst+h}, v{acc+4*(2*g+h)} quad_perm:[0,1,2,3] row_mask:{1 << g:#x} bank_mask:0xf")
        for h in range(2): P(f"v_bfi_b32 v{dst+h}, v{vFF}, s{sTag}, v{dst+h}")
    vPk = V.get()
    def c_park(reg):
        def f():
            if reg == 0:
                P(f"v_lshlrev_b32 v{vPk}, 4, v{vLane}")
                P(f"s_lshl_b32 s{sT0}, s{sWv}, 15")
                P(f"s_add_u32 s{sT0}, s{sT0}, {L_TOTAL}")
                P(f"v_add_u32 v{vPk}, s{sT0}, v{vPk}")
            for n in range(16): P(f"ds_write_b128 v{vPk}, {v4(vWO+4*n)} offset:{16384*reg+1024*n}")
        return f
    def c_unpark(reg):
        def f():
            for n in range(16): P(f"ds_read_b128 {v4(vWO+4*n)}, v{vPk} offset:{16384*reg+1024*n}")
        return f
    def c_lgkm(): P("s_waitcnt lgkmcnt(0)")
    def c_pfo(r, j):
        def f():
            if j == 0:
                P(f"""
                s_bfe_u32 s{sT0}, s2, 0x30003
                s_lshl_b32 s{sT0}, s{sT0}, 5
                s_and_b32 s{sT1}, s2, 7
                s_add_u32 s{sT0}, s{sT0}, s{sT1}
                s_lshr_b32 s{sT1}, s2, 6
                s_lshl_b32 s{sT1}, s{sT1}, 3
                s_add_u32 s{sT0}, s{sT0}, s{sT1}
                s_lshl_b32 s{sT0}, s{sT0}, 2
                s_add_u32 s{sT0}, s{sT0}, s{sWv}
                s_mul_i32 s{sY}, s{sT0}, 3584
                v_lshlrev_b32 v{vYo}, 4, v{vLane}
                """)
            if j == 3: P("s_mov_b32 exec_hi, 0")
            P.vm(f"buffer_load_dwordx4 {v4(vOA)}, v{vYo}, {srd(r)}, s{sY} offen offset:{1024*j} {pfflag}")
            if j == 3: P("s_mov_b32 exec_hi, -1")
        return f
    if pfo:
        for r in (rWOA, rWOB):
            for j in range(4): B(wo0 - pfo, c_pfo(r, j))
    if park:
        wo_sched(2, wo0, wrate); B(0, c_park(0)); wo_sched(1, 0, wrate); B(0, c_park(1)); wo_sched(0, 0, wrate)
    else:
        wo_sched(0, wo0, 1)

    vSA = V.get(4, 4)
    pend = []
    def k_consume(i):
        k = i - 32
        unit, n = k >> 4, k & 15
        t, par, u = n >> 2, (n >> 1) & 1, n & 1
        D = vD[2*(unit & 1) + par]
        first = (t == 0 and u == 0)
        P(f"v_mfma_f32_16x16x32_bf16 {v4(D)}, {a4(sslot[i])}, {v4(vQA+16*u+4*t)}, {0 if first else v4(D)}")
        release(i)
        while pend and n >= 2:
            pend.pop(0)()
        if n == 15:
            for p_ in range(2):
                pend.append(lambda p_=p_, unit=unit: extract(vD[2*(unit & 1)+p_], vSA + 2*(unit >> 2) + p_, unit & 3, vT0))
            if k == 127:
                while pend: pend.pop(0)()
                c_spub()
    def c_spub():
        o = vD[0]
        P(f"""
        s_lshl_b32 s{sT0}, s2, 2
        s_add_u32 s{sT0}, s{sT0}, s{sWv}
        s_mul_i32 s{sT0}, s{sT0}, 768
        s_add_u32 s{sT0}, s{sT0}, {WS_SC}
        v_cvt_pk_bf16_f32 v{o}, v{vSA}, v{vSA+1}
        v_cvt_pk_bf16_f32 v{o+1}, v{vSA+2}, v{vSA+3}
        v_mov_b32 v{o+2}, v{vSB}
        """)
        if "scs" not in skip:
            P(f"s_cmp_lg_u32 s{sFar}, 0")
            P("s_cbranch_scc1 L_far_sc")
            P.vm(f"buffer_store_dwordx3 {v3(o)}, v{vL12}, {srd(rWS)}, s{sT0} offen")
            P.label("L_near_sc")
            Q = Prog(); Q.label("L_far_sc")
            Q.vm(f"buffer_store_dwordx3 {v3(o)}, v{vL12}, {srd(rWS)}, s{sT0} offen sc1")
            Q("s_branch L_near_sc"); slow.append(Q)
        stamp("scpub")
    vSG = vWQ
    vE = vQA; vEB = vQA + 16
    vP = V.get(8, 4); vPB = vQB + 4; vM, vL, vMB, vLB = vQB, vQB+1, vQB+2, vQB+3
    vWt, vWtB, vO1, vFF = vQB+8, vQB+9, vQB+10, vQB+11
    sl = [f"buffer_load_dwordx3 {v3(vSG+4*k)}, v{vL12}, {srd(rWS)}, s{sG[k]} offen sc1" for k in range(4)]
    sl += [f"buffer_load_dword v{vSG+16+k}, v{vL12}, {srd(rWS)}, s{sG[4+k]} offen offset:8 sc1" for k in range(4)]
    sbr = [vSG+4*k+2 for k in range(4)] + [vSG+16+k for k in range(4)]
    s_iss, s_chk = gather("sc", sl, sbr, sTag, 0xffff, gs)
    def c_sg():
        P(f"""
        s_and_b32 s{sT0}, s2, 0xfc
        s_lshl_b32 s{sT0}, s{sT0}, 2
        s_add_u32 s{sT0}, s{sT0}, s{sWv}
        s_xor_b32 s{sT1}, s{sT0}, 16
        s_mul_i32 s{sT0}, s{sT0}, 768
        s_mul_i32 s{sT1}, s{sT1}, 768
        s_add_u32 s{sG[0]}, s{sT0}, {WS_SC}
        s_add_u32 s{sG[4]}, s{sT1}, {WS_SC}
        """)
        for k in (1, 2, 3, 5, 6, 7): P(f"s_add_u32 s{sG[k]}, s{sG[k-1]}, 3072")
        s_iss()
    def c_sm1():
        s_chk(); stamp("scgot")
        for r in range(8):
            src = vSG + 4*(r >> 1) + (r & 1)
            P(f"v_lshlrev_b32 v{vE+2*r}, 16, v{src}")
            P(f"v_and_b32 v{vE+2*r+1}, 0xffff0000, v{src}")
        P(f"v_max3_f32 v{vM}, v{vE}, v{vE+1}, v{vE+2}")
        for r in range(3, 15, 2): P(f"v_max3_f32 v{vM}, v{vM}, v{vE+r}, v{vE+r+1}")
        P(f"v_max_f32 v{vM}, v{vM}, v{vE+15}")
        xlane("v_max_f32", vM, vT0, ["x1", "x2", "r4", "r8", "p16", "p32"])
        P(f"v_mul_f32 v{vM}, s{sC}, v{vM}")
    def c_sm2():
        for r in range(16):
            P(f"v_fma_f32 v{vE+r}, v{vE+r}, s{sC}, -v{vM}")
            P(f"v_exp_f32 v{vE+r}, v{vE+r}")
        for r in range(8): P(f"v_cvt_pk_bf16_f32 v{vP+r}, v{vE+2*r}, v{vE+2*r+1}")
    def c_sm3():
        for r in range(8): P(f"v_add_f32 v{vE+r}, v{vE+r}, v{vE+8+r}")
        for r in range(4): P(f"v_add_f32 v{vE+r}, v{vE+r}, v{vE+4+r}")
        P(f"""
        v_add_f32 v{vE}, v{vE}, v{vE+2}
        v_add_f32 v{vE+1}, v{vE+1}, v{vE+3}
        v_add_f32 v{vL}, v{vE}, v{vE+1}
        """)
        xlane("v_add_f32", vL, vT0, ["x1", "x2", "r4", "r8", "p16", "p32"])
    def c_sb1():
        for k in range(8): P(f"v_and_b32 v{vEB+k}, 0xffff0000, v{sbr[k]}")
        P(f"v_max3_f32 v{vMB}, v{vEB}, v{vEB+1}, v{vEB+2}")
        P(f"v_max3_f32 v{vMB}, v{vMB}, v{vEB+3}, v{vEB+4}")
        P(f"v_max3_f32 v{vMB}, v{vMB}, v{vEB+5}, v{vEB+6}")
        P(f"v_max_f32 v{vMB}, v{vMB}, v{vEB+7}")
        xlane("v_max_f32", vMB, vT0, ["x1", "r4", "r8", "p16", "p32"])
        P(f"v_mul_f32 v{vMB}, s{sC}, v{vMB}")
        for k in range(8):
            P(f"v_fma_f32 v{vEB+k}, v{vEB+k}, s{sC}, -v{vMB}")
            P(f"v_exp_f32 v{vEB+k}, v{vEB+k}")
    def c_sb2():
        for k in range(4):
            P(f"v_mov_b32_dpp v{vT0}, v{vEB+k} quad_perm:[1,0,3,2] {FULL}")
            P(f"v_cvt_pk_bf16_f32 v{vPB+k}, v{vEB+k}, v{vT0}")
        for k in range(4): P(f"v_add_f32 v{vEB+k}, v{vEB+k}, v{vEB+4+k}")
        P(f"""
        v_add_f32 v{vEB}, v{vEB}, v{vEB+2}
        v_add_f32 v{vEB+1}, v{vEB+1}, v{vEB+3}
        v_add_f32 v{vLB}, v{vEB}, v{vEB+1}
        """)
        xlane("v_add_f32", vLB, vT0, ["x1", "r4", "r8", "p16", "p32"])
        P(f"""
        v_bfe_u32 v{vT0}, v{vLane}, 1, 1
        v_lshlrev_b32 v{vT0}, 6, v{vT0}
        s_lshl_b32 s{sT0}, s{sWv}, 4
        v_add_u32 v{vT0}, s{sT0}, v{vT0}
        ds_write_b128 v{vT0}, {v4(vM)} offset:{L_ST}
        s_waitcnt lgkmcnt(0)
        """)
    vBc = [V.get(), V.get()]
    def pvop(k, src, lane):
        P(f"v_mov_b32_dpp v{vBc[k]}, v{src} row_newbcast:{lane} {FULL}")
        for q in range(4): P(f"v_perm_b32 v{vTB[k]+q}, v{vBc[k]}, v{vBc[k]}, v{vSel+q}")
    def c_bpv(k):
        def f():
            for tau in range(4):
                i = 16 + 4*tau + k
                for hd in range(2): pvop(hd, vPB+k, 4*tau + 2*hd)
                for hd in range(2):
                    P(f"v_mfma_f32_16x16x32_bf16 {v4(vD[2+hd])}, {a4(sslot[i])}, {v4(vTB[hd])}, {v4(vD[2+hd]) if i > 16 else 0}")
                release(i)
            if k == 3: st['vok'] = True
        return f
    vAw, vAr = V.get(), V.get()
    def c_sm4():
        s_ = vE
        P(f"""
        v_bfe_u32 v{vT0}, v{vLane}, 1, 1
        v_lshlrev_b32 v{vT0}, 6, v{vT0}
        s_barrier
        """)
        for k in range(4): P(f"ds_read_b128 {v4(s_+4*k)}, v{vT0} offset:{L_ST+16*k}")
        P(f"""
        v_lshrrev_b32 v{vAw}, 4, v0
        v_lshlrev_b32 v{vAw}, 7, v{vAw}
        v_and_b32 v{vT1}, 7, v{vLane}
        v_lshl_add_u32 v{vAw}, v{vT1}, 4, v{vAw}
        v_lshlrev_b32 v{vAr}, 2, v{vLane}
        v_mov_b32 v{vFF}, 0xff
        s_waitcnt lgkmcnt(0)
        """)
        for o, m, wt in ((0, vM, vWt), (2, vMB, vWtB)):
            P(f"v_max3_f32 v{vT0}, v{s_+o}, v{s_+4+o}, v{s_+8+o}")
            P(f"v_max_f32 v{vT0}, v{vT0}, v{s_+12+o}")
            for k in range(4):
                P(f"v_sub_f32 v{s_+4*k+o}, v{s_+4*k+o}, v{vT0}")
                P(f"v_exp_f32 v{s_+4*k+o}, v{s_+4*k+o}")
            P(f"v_sub_f32 v{wt}, v{m}, v{vT0}")
            P(f"v_exp_f32 v{wt}, v{wt}")
            P(f"v_mul_f32 v{vT1}, v{s_+o}, v{s_+o+1}")
            for k in range(1, 4): P(f"v_fmac_f32 v{vT1}, v{s_+4*k+o}, v{s_+4*k+o+1}")
            P(f"v_rcp_f32 v{vT1}, v{vT1}")
            P(f"v_mul_f32 v{wt}, v{wt}, v{vT1}")
    def red_write(lst):
        P("s_mov_b32 exec_lo, 0x00ff00ff")
        P("s_mov_b32 exec_hi, 0xff00ff00")
        for acc, reg in lst: P(f"ds_write_b128 v{vAw}, {v4(acc)} offset:{L_RED+2048*reg}")
        P("s_mov_b64 exec, -1")
        P("s_waitcnt lgkmcnt(0)")
    def red_read(r, reg):
        b = (L_RED + 2048*reg)//256
        for k in range(4): P(f"ds_read2st64_b32 {v2(r+2*k)}, v{vAr} offset0:{b+2*k} offset1:{b+2*k+1}")
    def red_sum(r, dst):
        P(f"""
        v_add_f32 v{r}, v{r}, v{r+1}
        v_add_f32 v{r+2}, v{r+2}, v{r+3}
        v_add_f32 v{r+4}, v{r+4}, v{r+5}
        v_add_f32 v{r+6}, v{r+6}, v{r+7}
        v_add_f32 v{r}, v{r}, v{r+2}
        v_add_f32 v{r+4}, v{r+4}, v{r+6}
        v_add_f32 v{dst}, v{r}, v{r+4}
        """)
    def c_br1():
        for hd in range(2):
            for q in range(4):
                P(f"v_mul_f32_dpp v{vD[2+hd]+q}, v{vWtB}, v{vD[2+hd]+q} quad_perm:[{2*hd},{2*hd},{2*hd},{2*hd}] {FULL}")
        red_write([(vD[2], 1), (vD[3], 2)])
    def c_br2():
        P("s_barrier")
        red_read(vWQ, 1); red_read(vWQ+8, 2)
        P("s_waitcnt lgkmcnt(0)")
        red_sum(vWQ, vWQ); red_sum(vWQ+8, vO1)
        outproj(vWQ, vQA, True)
    def c_br3():
        outproj(vO1, vQA, False)
        ysel(vQA, vY+2)
        stamp("ybdone")
    B(160+sg, c_sg); B(0, c_sm1, WMV+1); B(0, c_sm2); B(0, c_sb1); B(0, c_sm3); B(0, c_sb2)
    for k in range(4): B(0, c_bpv(k))
    B(0, c_sm4); B(0, c_br1, 2); B(0, c_br2, 4)
    if park:
        B(0, c_unpark(1), 2); B(0, c_lgkm, 2); B(0, c_br3, 0); B(0, c_unpark(0), 2); B(0, c_lgkm, 2)
    else:
        wo_sched(1, 0, wrate); B(0, c_br3); wo_sched(2, 0, wrate)
    vFo = vWOo; vOo = vL12; sF = sG; sOutO = S.get()
    def c_fin():
        P(f"""
        v_and_b32 v{vT1}, 15, v{vLane}
        v_lshrrev_b32 v{vYo}, 4, v{vLane}
        v_lshlrev_b32 v{vYo}, 4, v{vYo}
        v_lshl_add_u32 v{vYo}, v{vT1}, 6, v{vYo}
        v_cmp_gt_u32 vcc, 14, v{vT1}
        v_cndmask_b32 v{vYo}, v{vBig}, v{vYo}, vcc
        s_mul_i32 s{sY}, s2, {Y_STRIDE}
        s_mul_i32 s{sT0}, s{sWv}, 896
        s_add_u32 s{sY}, s{sY}, s{sT0}
        s_add_u32 s{sY}, s{sY}, {WS_Y}
        ; consumer id < 224: b = id/56, blk = id%56 (8 columns of both branches)
        s_mul_i32 s{sT0}, s2, 1171
        s_lshr_b32 s{sT0}, s{sT0}, 16
        s_mul_i32 s{sT1}, s{sT0}, 56
        s_sub_u32 s{sT1}, s2, s{sT1}
        s_mul_i32 s{sF[0]}, s{sT0}, {64*Y_STRIDE}
        s_lshl_b32 s{sOutO}, s{sT1}, 6
        s_add_u32 s{sF[0]}, s{sF[0]}, s{sOutO}
        s_add_u32 s{sF[0]}, s{sF[0]}, {WS_Y}
        s_lshl_b32 s{sOutO}, s{sT1}, 4
        s_mul_i32 s{sT0}, s{sT0}, 1792
        s_add_u32 s{sOutO}, s{sOutO}, s{sT0}
        v_lshrrev_b32 v{vT0}, 2, v{vLane}
        v_mul_u32_u24 v{vFo}, {Y_STRIDE}, v{vT0}
        v_and_b32 v{vT0}, 3, v{vLane}
        v_lshl_add_u32 v{vFo}, v{vT0}, 4, v{vFo}
        v_lshlrev_b32 v{vOo}, 2, v{vT0}
        v_bfe_u32 v{vT0}, v{vLane}, 4, 1
        v_mul_u32_u24 v{vT0}, 896, v{vT0}
        v_add_u32 v{vOo}, v{vOo}, v{vT0}
        v_lshrrev_b32 v{vT0}, 5, v{vLane}
        v_lshl_add_u32 v{vOo}, v{vT0}, 1, v{vOo}
        """)
        for k in range(1, 4): P(f"s_add_u32 s{sF[k]}, s{sF[k-1]}, {16*Y_STRIDE}")
    B(0, c_fin)

    vAcc = vD[1]
    prepared = set()
    def v_prep(i):
        v = i - 160
        if i < len(stream) and i not in prepared:
            pvop(v & 1, vP + 2*(v & 3) + (v >> 6), (v >> 2) & 15); prepared.add(i)
    def v_consume(i):
        v = i - 160
        v_prep(i)
        P.wait(sid[i])
        P(f"v_mfma_f32_16x16x32_bf16 {v4(vAcc)}, {a4(sslot[i])}, {v4(vTB[v & 1])}, {v4(vAcc) if v else 0}")
        release(i)
        v_prep(i+1)

    if fc:
        vFl, vFs, vFd, vFt = vXo, vWQo, V.get(), V.get()
    def fc_step(i):
        if i in cps:
            c = cps.index(i)
            if c == 0:
                P(f"""
                s_bfe_u32 s{sFC}, s2, 0x30003
                s_lshl_b32 s{sFC}, s{sFC}, 2
                s_add_u32 s{sFC}, s{sFC}, s{sWv}
                s_lshl_b32 s{sFC}, s{sFC}, 12
                s_add_u32 s{sFC}, s{sFC}, {WS_FC}
                s_and_b32 s{sT0}, s2, 7
                s_lshr_b32 s{sT1}, s2, 6
                s_lshl_b32 s{sT1}, s{sT1}, 3
                s_add_u32 s{sT0}, s{sT0}, s{sT1}
                v_lshlrev_b32 v{vFl}, 2, v{vLane}
                v_cmp_eq_u32 vcc, s{sT0}, v{vLane}
                v_cndmask_b32 v{vFs}, v{vBig}, v{vFl}, vcc
                v_cmp_gt_u32 vcc, 32, v{vLane}
                v_cndmask_b32 v{vFl}, v{vBig}, v{vFl}, vcc
                v_mov_b32 v{vFt}, s{sTag}
                """)
            fcs['ids'][c] = P.vm(f"buffer_load_dword v{vFd}, v{vFl}, {srd(rWS)}, s{sFC} offen offset:{128*c} {fc['ld']}")
            P.vm(f"buffer_store_dword v{vFt}, v{vFs}, {srd(rWS)}, s{sFC} offen offset:{128*c}")
        d = (WMV if i >= 160 else WM) + 1
        if i - d in cps and cps.index(i - d) in fcs['ids']:
            c = cps.index(i - d)
            P.wait(fcs['ids'].pop(c))
            g = int(round(fc['gain'] * fc['Pd'] / 32 * 256))
            P(f"""
            v_cmp_eq_u32 vcc, v{vFt}, v{vFd}
            s_bcnt1_i32_b32 s{sBoost}, vcc_lo
            s_sub_i32 s{sBoost}, s{sBoost}, {int(fc['r0'] * 32)}
            s_mul_i32 s{sBoost}, s{sBoost}, {g}
            s_ashr_i32 s{sBoost}, s{sBoost}, 8
            """)
            fcs['start'] = i + 1

    nk, nv = 32, 160
    bi = 0; lastbg = 0
    for i in range(len(stream)):
        landed = issue(i)
        fc_step(i)
        c = 0
        while st['kok'] and nk < 160 and nk <= landed and c < kcatch:
            k_consume(nk); nk += 1; c += 1
        c = 0
        while st['vok'] and nv <= landed and c < vcatch:
            v_consume(nv); nv += 1; c += 1
        while bi < len(bg) and bg[bi][0] <= i and lastbg + bg[bi][2] <= i:
            P(f"; ---- step {i}: {bg[bi][1].__qualname__.split('.')[2]}")
            bg[bi][1](); bi += 1; lastbg = i
    assert bi == len(bg) and nk == 160, (bi, len(bg), nk)
    stamp("lastiss")
    while nv < len(stream):
        v_consume(nv); nv += 1
    stamp("vdone")

    r = vWQ
    for q in range(4): P(f"v_mul_f32 v{vAcc+q}, v{vAcc+q}, v{vWt}")
    red_write([(vAcc, 0)])
    P("s_barrier")
    red_read(r, 0)
    P("s_waitcnt lgkmcnt(0)")
    red_sum(r, r)
    outproj(r, vQA, True)
    ysel(vQA, vY)
    P.vm(f"buffer_store_dwordx4 {v4(vY)}, v{vYo}, {srd(rWS)}, s{sY} offen sc1")
    stamp("yapub")
    mk = [rX, rX+2, rWQ, rWQ+2]
    P(f"""
    s_cmp_lg_u32 s{sWv}, 0
    s_cbranch_scc1 L_done
    s_cmp_ge_u32 s2, 224
    s_cbranch_scc1 L_done
    """)
    f = vWQ
    for k in range(4): P(f"s_mov_b64 {sp(mk[k])}, -1")
    P.label("L_poll")
    for k in range(4):
        P(f"s_mov_b64 exec, {sp(mk[k])}")
        P(f"s_cbranch_execz L_have{k}")
        P.vm(f"buffer_load_dwordx4 {v4(f+4*k)}, v{vFo}, {srd(rWS)}, s{sF[k]} offen sc1")
        P.label(f"L_have{k}")
    P(f"""
    s_mov_b64 exec, -1
    s_add_u32 s{sSpin}, s{sSpin}, 1
    s_cmp_gt_u32 s{sSpin}, 0x40000
    """)
    P.waitall()
    P("s_cbranch_scc1 L_got")
    for k in range(4):
        P(f"v_bitop3_b32 v{f+16+2*k}, v{f+4*k}, v{f+4*k+1}, s{sTag} bitop3:0x7e")
        P(f"v_bitop3_b32 v{f+17+2*k}, v{f+4*k+2}, v{f+4*k+3}, s{sTag} bitop3:0x7e")
        P(f"v_bitop3_b32 v{f+16+2*k}, v{f+16+2*k}, v{f+17+2*k}, v{vFF} bitop3:0xa8")
        P(f"v_cmp_ne_u32 {sp(mk[k])}, 0, v{f+16+2*k}")
    for k in range(4): P(f"s_wqm_b64 {sp(mk[k])}, {sp(mk[k])}")
    P(f"""
    s_or_b64 vcc, {sp(mk[0])}, {sp(mk[1])}
    s_or_b64 vcc, vcc, {sp(mk[2])}
    s_or_b64 vcc, vcc, {sp(mk[3])}
    """)
    if "poll" not in skip: P("s_cbranch_scc1 L_poll")
    P.label("L_got")
    stamp("fgot")
    for k in range(16): P(f"v_and_b32 v{f+k}, 0xffffff00, v{f+k}")
    for d in (8, 4):
        for k in range(d): P(f"v_add_f32 v{f+k}, v{f+k}, v{f+k+d}")
    P(f"""
    v_permlane32_swap_b32 v{f}, v{f+1}
    v_permlane32_swap_b32 v{f+2}, v{f+3}
    v_add_f32 v{f}, v{f}, v{f+1}
    v_add_f32 v{f+2}, v{f+2}, v{f+3}
    v_permlane16_swap_b32 v{f}, v{f+2}
    v_add_f32 v{f}, v{f}, v{f+2}
    """)
    xlane("v_add_f32", f, None, ["r8", "r4"])
    P(f"""
    v_cvt_pk_bf16_f32 v{f}, v{f}, v{f}
    v_mov_b32 v{f+2}, s{sTag}
    s_mov_b32 exec_lo, 0x000f000f
    s_mov_b32 exec_hi, 0x000f000f
    """)
    P.vm(f"buffer_store_short v{f}, v{vOo}, {srd(rOUT)}, s{sOutO} offen")
    P(f"""
    s_cmp_lg_u32 s2, 0
    s_cbranch_scc1 L_done
    s_mov_b64 exec, 1
    """)
    P.vm(f"buffer_store_dword v{f+2}, v{vOo}, {srd(rWS)}, 0 offen")
    P.label("L_done")
    if spin:
        P.label("L_spin")
        P(f"""
        s_memrealtime {sp(sNow)}
        s_waitcnt lgkmcnt(0)
        s_sub_u32 s{sNow}, s{sNow}, s{sSt}
        s_cmp_lt_u32 s{sNow}, {spin}
        s_cbranch_scc1 L_spin
        """)
    if diag:
        P("s_mov_b64 exec, -1")
        stamp("end")
        P(f"""
        s_waitcnt lgkmcnt(0) vmcnt(0)
        s_lshl_b32 s{sT0}, s2, 2
        s_add_u32 s{sT0}, s{sT0}, s{sWv}
        s_lshl_b32 s{sT0}, s{sT0}, 7
        s_add_u32 s{sT0}, s{sT0}, {WS_DIAG}
        v_mov_b32 v{vT1}, 0
        s_mov_b64 exec, 1
        """)
        def dump(sreg, off):
            P(f"v_mov_b32 v{vT0}, s{sreg}")
            P.vm(f"buffer_store_dword v{vT0}, v{vT1}, {srd(rWS)}, s{sT0} offen offset:{off}")
        for n, (name, rr) in enumerate(stamps): dump(rr, 4*n)
        dump(sSpin, 4*len(stamps)); dump(sFar, 116)
        P(f"s_getreg_b32 s{sT1}, hwreg(HW_REG_XCC_ID)"); dump(sT1, 120)
        P(f"s_getreg_b32 s{sT1}, hwreg(HW_REG_HW_ID)"); dump(sT1, 124)
    P.label("L_end")
    P("s_endpgm")

    body, stats = P.render()
    for Q in slow: body += Q.render()[0]
    head = open("cdna_kernels/" + KNAME[:-7] + ".s.ref").read().split("; Override launch")[0]
    txt = head + f"; @launch grid=(256,1,1) block=(256,1,1) lds={L_TOTAL + (131072 if park else 0)}\n"
    txt += f'.amdgcn_target "amdgcn-amd-amdhsa--gfx950"\n.text\n.globl {KNAME}\n.p2align 8\n.type {KNAME},@function\n{KNAME}:\n'
    txt += body
    txt += f""".section .rodata,"a"
.p2align 6
.amdhsa_kernel {KNAME}
  .amdhsa_next_free_vgpr 512
  .amdhsa_next_free_sgpr 102
  .amdhsa_accum_offset 256
  .amdhsa_group_segment_fixed_size 0
  .amdhsa_kernarg_size 104
  .amdhsa_user_sgpr_count 2
  .amdhsa_user_sgpr_kernarg_segment_ptr 1
  .amdhsa_system_sgpr_workgroup_id_x 1
.end_amdhsa_kernel
"""
    return txt, dict(stats, vhw=V.hw, shw=S.hw, stamps=[n for n, _ in stamps], ncons=224)

if __name__ == "__main__":
    import json
    kw = json.loads(sys.argv[2]) if len(sys.argv) > 2 else {}
    t, s = gen(**kw)
    open(sys.argv[1], "w").write(t)
    print(s, file=sys.stderr)
```

```python
import sys, math, struct
from asmlib import Prog, Alloc
KNAME = "concat_heads__mha_block_cached__sliding_block_cached__decode_kernel"

WS_Q, WS_SC, WS_O, WS_Y, WS_FC, WS_DIAG = 0x10000, 0x40000, 0x100000, 0x140000, 0x160000, 0x800000
L_QRED, L_ST, L_RED, L_TOTAL = 0, 2048, 2304, 2304 + 3*2048
CS = struct.unpack('<I', struct.pack('<f', math.log2(math.e) / 16.0))[0]
BIG = 0x7ff00000
FULL = "row_mask:0xf bank_mask:0xf"

def cost(it):
    if it[0] == 'vm': return 8
    if it[0] != 'i': return 2
    t = it[1]
    if t.startswith(';'): return 0
    if t.startswith('v_mfma'): return 16
    if t.startswith(('v_exp', 'v_log', 'v_rcp')): return 10
    if '_dpp' in t or t.startswith('v_permlane'): return 8
    if t.startswith('ds_'): return 12
    if t.startswith('s_waitcnt'): return 60
    if t.startswith('s_barrier'): return 30
    return 4

def gen(W=5, qg=27, sg=18, wflag="", diag=False, wo0=60, skip=(), spin=0, forcefar=False, gq='', gs='', fc=None,
        budget=200, ipf=0, pollflag='nt', maxcatch=4):
    P = Prog()
    V = Alloc('v', 1, 256); S = Alloc('s', 3, 100)
    slots = list(range(64))
    def a4(s): return f"a[{4*s}:{4*s+3}]"
    def v4(r): return f"v[{r}:{r+3}]"
    def v3(r): return f"v[{r}:{r+2}]"
    def v2(r): return f"v[{r}:{r+1}]"
    def srd(r): return f"s[{r}:{r+3}]"
    def sp(r): return f"s[{r}:{r+1}]"
    def vcc(m): P(f"s_mov_b32 vcc_lo, {m:#x}"); P(f"s_mov_b32 vcc_hi, {m:#x}")
    slow = []
    stamps = []
    def stamp(name):
        if diag:
            r = S.get(2); stamps.append((name, r)); P(f"s_memrealtime {sp(r)}")
    fcs = dict(start=None, ids={})
    if fc is not None:
        fc = dict(dict(first=12, Pd=32, dW=2, r0=0.6, gain=2.5, ld=''), **fc)
        WM = W + fc['dW']
        cps = list(range(fc['first'], 288 - WM - 6, fc['Pd']))
    else:
        WM = W; cps = []

    rX, rWQ, rBK, rBV, rAK, rAV, rWO, rWS, rOUT = [S.get(4) for _ in range(9)]
    sT0, sT1, sI, sWv, sTag, sOff, sAux, sSel0, sSel1, sC, sSpin, sCB, sTagQ, sFar, sBoost, sFC, sKo = [S.get() for _ in range(17)]
    vLane, vT0, vT1, vT2, vBig = [V.get() for _ in range(5)]
    vXo, vWQo, vKo, vVo = [V.get() for _ in range(4)]
    def desc(r, sz):
        P(f"s_mov_b32 s{r+2}, {sz}"); P(f"s_mov_b32 s{r+3}, 0x20000")
    P("s_cmp_ge_u32 s2, 256")
    P("s_cbranch_scc1 L_end")
    stamp("start")
    if spin:
        sSt = S.get(2); sNow = S.get(2); P(f"s_memrealtime {sp(sSt)}")
    P(f"""
    s_lshr_b32 s{sKo}, s2, 7
    s_mul_i32 s{sKo}, s{sKo}, 40
    s_load_dwordx2 {sp(rBK)}, s[0:1], 48
    s_load_dwordx2 {sp(rX)}, s[0:1], s{sKo}
    s_load_dwordx2 {sp(rWQ)}, s[0:1], s{sKo} offset:24
    s_load_dwordx2 {sp(rWS)}, s[0:1], 96
    ; logical id = b(2) | x(3) | t(3): workgroups that are 8 apart share x (L2 locality only)
    s_and_b32 s{sT0}, s2, 7
    s_bfe_u32 s{sT1}, s2, 0x30003
    s_bfe_u32 s{sCB}, s2, 0x40003
    s_lshr_b32 s2, s2, 6
    s_lshl3_add_u32 s2, s2, s{sT0}
    s_lshl_b32 s{sOff}, s2, 21
    s_lshl3_add_u32 s2, s2, s{sT1}
    s_lshl4_add_u32 s{sCB}, s{sT0}, s{sCB}
    s_lshl_b32 s{sAux}, s{sCB}, 6
    v_lshrrev_b32 v{vT0}, 6, v0
    v_lshrrev_b32 v{vT2}, 2, v0
    v_readfirstlane_b32 s{sWv}, v{vT0}
    v_and_b32 v{vT1}, 3, v0
    v_lshlrev_b32 v{vWQo}, 12, v{vT2}
    v_add_lshl_u32 v{vWQo}, v{vWQo}, v{vT1}, 4
    v_cmp_gt_u32 vcc, 56, v{vT2}
    v_and_b32 v{vKo}, 3, v{vT2}
    v_mad_u32_u24 v{vXo}, v{vKo}, 55, v{vT2}
    v_add_lshl_u32 v{vXo}, v{vXo}, v{vT1}, 4
    v_lshl_add_u32 v{vKo}, v{vT0}, 2, v{vKo}
    v_cndmask_b32 v{vXo}, 2.0, v{vXo}, vcc
    v_lshl_add_u32 v{vKo}, v{vKo}, 6, v{vT1}
    v_and_b32 v{vT2}, 12, v{vT2}
    v_add_lshl_u32 v{vKo}, v{vKo}, v{vT2}, 4
    s_and_b32 s{sT0}, s{sT1}, 4
    s_mul_i32 s{sT0}, s{sT0}, 3
    s_add_u32 s{sT0}, s{sT0}, s{sT1}
    s_addk_i32 s{sT0}, 96
    s_lshl_b32 s{sT0}, s{sT0}, 14
    s_add_u32 s{sOff}, s{sOff}, s{sT0}
    """)
    desc(rX, 3584); desc(rWQ, 3670016); desc(rBK, 1 << 26)
    P("s_waitcnt lgkmcnt(0)")
    stamp("karg")
    vX = V.get(4, 4); vWQ = V.get(32, 4)
    idx = P.vm(f"buffer_load_dwordx4 {v4(vX)}, v{vXo}, {srd(rX)}, 0 offen")
    idwq = []
    for j in range(8):
        if "wq" in skip: continue
        idwq.append(P.vm(f"buffer_load_dwordx4 {v4(vWQ+4*j)}, v{vWQo}, {srd(rWQ)}, s{sAux} offen {wflag}"))
        if j < 7: P(f"s_addk_i32 s{sAux}, 0x2000")

    stream = []
    for k in range(16): stream.append(("BK", k))
    for k in range(16): stream.append(("BV", k))
    for k in range(128): stream.append(("AK", k))
    for k in range(128): stream.append(("AV", k))
    NS = len(stream)
    sid = {}; sslot = {}; land = [-1]
    def issue(i):
        kind, k = stream[i]
        if k == 0 and kind == "BV":
            P(f"""
            s_and_b32 s{sI}, s2, 3
            s_mul_i32 s{sI}, s{sI}, {16384-128}
            s_add_u32 s{sI}, s{sI}, {3*65536}
            s_sub_u32 s{sOff}, s{sOff}, s{sI}
            """)
        elif k == 0 and kind[0] == "A":
            P(f"""
            s_lshr_b32 s{sOff}, s2, 2
            s_lshl_b32 s{sOff}, s{sOff}, 21
            s_and_b32 s{sI}, s2, 3
            s_lshl_b32 s{sI}, s{sI}, {14 if kind == "AK" else 7}
            s_add_u32 s{sOff}, s{sOff}, s{sI}
            """)
        elif k and kind[1] == "V":
            P(f"s_addk_i32 s{sOff}, 0x4000")
        elif k and k % 4 == 0:
            P(f"s_add_u32 s{sOff}, s{sOff}, 0x10000")
        if fcs['start'] is not None:
            P.cwait(sid[i-W], sid[i-WM], [f"s_cmp_gt_i32 s{sBoost}, {i - fcs['start']}"]); land[0] = max(land[0], i-WM)
        elif i >= W:
            P.wait(sid[i-W]); land[0] = max(land[0], i-W)
        s = slots.pop(0); sslot[i] = s
        r, vo = {"BK": (rBK, vKo), "BV": (rBV, vVo), "AK": (rAK, vKo), "AV": (rAV, vVo)}[kind]
        imm = 0 if kind[1] == "V" else (k & 3) * 256
        o = f" offset:{imm}" if imm else ""
        sid[i] = P.vm(f"buffer_load_dwordx4 {a4(s)}, v{vo}, {srd(r)}, s{sOff} offen{o} nt")
    freed = []
    def release(i): freed.append(sslot[i])

    def xlane(op, x, t, steps):
        for st in steps:
            if st in ("x1", "x2", "r4", "r8"):
                d = {"x1": "quad_perm:[1,0,3,2]", "x2": "quad_perm:[2,3,0,1]", "r4": "row_ror:4", "r8": "row_ror:8"}[st]
                P(f"{op}_dpp v{x}, v{x}, v{x} {d} {FULL}")
            else:
                P(f"v_mov_b32 v{t}, v{x}")
                P(f"v_permlane{st[1:]}_swap_b32 v{x}, v{t}")
                P(f"{op} v{x}, v{x}, v{t}")
    def tagcheck(Q, tags, stag, mask):
        tags = list(tags)
        if len(tags) % 2: tags.append(tags[-1])
        pairs = list(zip(tags[0::2], tags[1::2]))
        for n, (a, b) in enumerate(pairs):
            d = vT0 if n == 0 else (vT1 if n % 2 else vT2)
            Q(f"v_bitop3_b32 v{d}, v{a}, v{b}, s{stag} bitop3:0x7e")
            if n and n % 2 == 0: Q(f"v_or3_b32 v{vT0}, v{vT0}, v{vT1}, v{vT2}")
            elif n and n == len(pairs)-1: Q(f"v_or_b32 v{vT0}, v{vT0}, v{vT1}")
        Q(f"v_and_b32 v{vT1}, {mask:#x}, v{vT0}")
        Q(f"v_cmp_ne_u32 vcc, 0, v{vT1}")
    def gather(name, loads, tags, stag, mask, first):
        ids = []
        def iss():
            if name+"g" in skip: return
            for t in loads: ids.append(P.vm(t.replace(" sc1", " " + first)))
        def chk():
            if name+"g" in skip: return
            P.wait(*ids)
            tagcheck(P, tags, stag, mask)
            P(f"s_cbranch_vccnz L_slow_{name}")
            P.label(f"L_back_{name}")
            Q = Prog()
            Q.label(f"L_slow_{name}")
            Q(f"s_add_u32 s{sSpin}, s{sSpin}, 1")
            Q(f"s_cmp_gt_u32 s{sSpin}, 0x40000")
            Q(f"s_cbranch_scc1 L_back_{name}")
            for t in loads: Q.vm(t)
            Q.waitall()
            tagcheck(Q, tags, stag, mask)
            Q(f"s_cbranch_vccnz L_slow_{name}")
            Q(f"s_branch L_back_{name}")
            slow.append(Q)
        return iss, chk
    def publish(name, txt):
        P(f"s_cmp_lg_u32 s{sFar}, 0")
        P(f"s_cbranch_scc1 L_far_{name}")
        P.vm(txt)
        P.label(f"L_near_{name}")
        Q = Prog(); Q.label(f"L_far_{name}")
        Q.vm(txt + " sc1")
        Q(f"s_branch L_near_{name}"); slow.append(Q)
    def extract(D, dst, tau, t):
        rs = [r for r in range(4) if r != tau]
        src = D + tau
        for n, r in enumerate(rs):
            last = n == 2
            m = f"row_mask:0xf bank_mask:{1 << tau:#x}" if last else FULL
            P(f"v_add_f32_dpp v{dst if last else t}, v{D+r}, v{src} row_ror:{(4*(tau-r)) % 16} {m}")
            src = t
    def transp(dst, src, e):
        for q in range(4):
            P(f"v_perm_b32 v{dst+q}, v{src+4*(2*q+1)+(e>>1)}, v{src+4*(2*q)+(e>>1)}, s{sSel1 if e & 1 else sSel0}")
    def sum8(r, dst):
        P(f"""
        v_add_f32 v{r}, v{r}, v{r+1}
        v_add_f32 v{r+2}, v{r+2}, v{r+3}
        v_add_f32 v{r+4}, v{r+4}, v{r+5}
        v_add_f32 v{r+6}, v{r+6}, v{r+7}
        v_add_f32 v{r}, v{r}, v{r+2}
        v_add_f32 v{r+4}, v{r+4}, v{r+6}
        v_add_f32 v{dst}, v{r}, v{r+4}
        """)

    bg = []
    def B(at, fn, after=0): bg.append((at, fn, after))

    vSel = V.get(4); vL12, vPw, vPr, vL4, vXT = [V.get() for _ in range(5)]
    def c_setup():
        P(f"""
        s_load_dword s{sTag}, {sp(rWS)}, 0
        s_load_dwordx2 {sp(rBV)}, s[0:1], 56
        s_load_dwordx2 {sp(rAK)}, s[0:1], 8
        s_load_dwordx2 {sp(rAV)}, s[0:1], 16
        s_load_dwordx2 {sp(rWO)}, s[0:1], s{sKo} offset:32
        s_load_dwordx2 {sp(rOUT)}, s[0:1], 80
        v_and_b32 v{vLane}, 63, v0
        v_mov_b32 v{vBig}, {BIG}
        """)
        if ipf:
            P(f"s_getpc_b64 {sp(rOUT+2)}")
            P(f"v_lshlrev_b32 v{vT0}, 7, v0")
            P(f"v_cmp_gt_u32 vcc, {ipf}, v0")
            P(f"v_cndmask_b32 v{vT0}, 0, v{vT0}, vcc")
            P.vm(f"global_load_dword v{vXT}, v{vT0}, {sp(rOUT+2)}")
        desc(rBV, 1 << 26); desc(rAK, 1 << 27); desc(rAV, 1 << 27); desc(rWO, 3670016); desc(rWS, 1 << 24); desc(rOUT, 7168)
        P(f"""
        s_mov_b32 s{sSel0}, 0x05040100
        s_mov_b32 s{sSel1}, 0x07060302
        s_mov_b32 s{sC}, {CS:#x}
        s_mov_b32 s{sSpin}, 0
        s_getreg_b32 s{sTagQ}, hwreg(HW_REG_XCC_ID, 0, 4)
        v_mul_u32_u24 v{vL12}, 12, v{vLane}
        v_lshlrev_b32 v{vL4}, 2, v{vLane}
        v_lshlrev_b32 v{vPw}, 3, v0
        v_and_b32 v{vPr}, 3, v0
        v_bfe_u32 v{vT0}, v0, 3, 2
        v_lshl_add_u32 v{vPr}, v{vPr}, 2, v{vT0}
        v_lshrrev_b32 v{vT0}, 6, v0
        v_lshl_add_u32 v{vPr}, v{vT0}, 4, v{vPr}
        v_bfe_u32 v{vT0}, v0, 2, 1
        v_lshl_add_u32 v{vPr}, v{vPr}, 1, v{vT0}
        v_bfe_u32 v{vT0}, v0, 5, 1
        v_lshl_add_u32 v{vPr}, v{vT0}, 8, v{vPr}
        v_lshlrev_b32 v{vPr}, 2, v{vPr}
        v_lshrrev_b32 v{vT0}, 3, v0
        v_and_b32 v{vT1}, 7, v0
        v_lshlrev_b32 v{vVo}, 9, v{vT0}
        v_lshl_add_u32 v{vVo}, v{vT1}, 4, v{vVo}
        v_and_b32 v{vT0}, 1, v{vT0}
        v_mul_u32_u24 v{vT0}, 0x0202, v{vT0}
        v_add_u32 v{vT0}, 0x0100, v{vT0}
        v_or_b32 v{vT2}, 0x0c0c0000, v{vT0}
        v_lshlrev_b32 v{vT0}, 16, v{vT0}
        v_or_b32 v{vT0}, 0x0c0c, v{vT0}
        """)
        vcc(0xaaaaaaaa)
        P(f"v_cndmask_b32 v{vT0}, v{vT2}, v{vT0}, vcc")
        P(f"v_mov_b32 v{vT2}, 0x0c0c0c0c")
        for r in range(4):
            vcc(0x03030303 << (2*r)); P(f"v_cndmask_b32 v{vSel+r}, v{vT2}, v{vT0}, vcc")

    vQD = V.get(36, 4); vTB = [V.get(4, 4), V.get(4, 4)]
    def proj_write(dst, tmp):
        for e0 in (0, 4):
            for n in range(3):
                for e in range(e0, e0+4):
                    D = vQD + 4*e; tau = e & 3
                    r = [x for x in range(4) if x != tau][n]
                    m = f"row_mask:0xf bank_mask:{1 << tau:#x}" if n == 2 else FULL
                    P(f"v_add_f32_dpp v{dst+(e >> 2) if n == 2 else tmp+tau}, v{D+r}, v{tmp+tau if n else D+tau} row_ror:{(4*(tau-r)) % 16} {m}")
        P(f"ds_write_b64 v{vPw}, {v2(dst)} offset:{L_QRED}")
        P("s_waitcnt lgkmcnt(0)")
    def proj_read(r):
        P("s_barrier")
        P(f"ds_read2st64_b32 {v2(r)}, v{vPr} offset0:{L_QRED//256} offset1:{L_QRED//256+2}")
    def proj_sum(r):
        P("s_waitcnt lgkmcnt(0)")
        P(f"v_add_f32 v{r}, v{r}, v{r+1}")
        xlane("v_add_f32", r, r+1, ["p32"])
    def c_q():
        P.wait(idx, *idwq)
        stamp("wq")
        for e in range(8):
            transp(vTB[e & 1], vWQ, e)
            P(f"v_mfma_f32_16x16x32_bf16 {v4(vQD+4*e)}, {v4(vX)}, {v4(vTB[e & 1])}, 0")
        proj_write(vWQ, vWQ+4)
    def c_q4():
        r = vWQ
        proj_read(r)
        P(f"""
        s_add_u32 s{sTag}, s{sTag}, 0x9e3779b9
        s_and_b32 s{sT0}, s{sTag}, 0xfffffff0
        s_or_b32 s{sTagQ}, s{sTagQ}, s{sT0}
        s_lshr_b32 s{sT0}, s2, 7
        s_lshl2_add_u32 s{sT0}, s{sT0}, s{sWv}
        s_lshl_b32 s{sT0}, s{sT0}, 7
        s_add_u32 s{sT0}, s{sT0}, s{sCB}
        s_lshl_b32 s{sT0}, s{sT0}, 7
        s_add_u32 s{sT0}, s{sT0}, {WS_Q}
        v_mov_b32 v{r+9}, s{sTagQ}
        """)
        proj_sum(r)
        P(f"""
        v_mov_b32_dpp v{r+1}, v{r} quad_perm:[1,0,3,2] {FULL}
        v_cvt_pk_bf16_f32 v{r+8}, v{r}, v{r+1}
        s_mov_b32 exec_lo, 0x55555555
        s_mov_b32 exec_hi, 0
        """)
        if "qs" not in skip: P.vm(f"buffer_store_dwordx2 {v2(r+8)}, v{vL4}, {srd(rWS)}, s{sT0} offen sc1")
        P("s_mov_b64 exec, -1")
        stamp("qpub")
    B(W-1, c_setup); B(0, c_q); B(0, c_q4, 1)

    vQA = V.get(32, 4); vQB = V.get(16, 4)
    vG = vQD
    vGo = V.get(3); sG = [S.get() for _ in range(8)]
    ql = [f"buffer_load_dwordx4 {v4(vG+8*u+4*hf)}, v{vGo}, {srd(rWS)}, s{sG[0]} offen offset:{512*u+16*hf} sc1" for u in range(2) for hf in range(2)]
    ql += [f"buffer_load_dwordx4 {v4(vG+16+8*u+4*hf)}, v{vGo+1}, {srd(rWS)}, s{sG[1]} offen offset:{512*u+16*hf} sc1" for u in range(2) for hf in range(2)]
    ql += [f"buffer_load_dwordx2 {v2(vG+32)}, v{vGo+2}, {srd(rWS)}, s{sG[2]} offen sc1"]
    q_iss, q_chk = gather("q", ql, range(vG+1, vG+34, 2), sTagQ, 0xfffffff0, gq)
    def c_qg():
        P(f"""
        v_lshrrev_b32 v{vGo}, 2, v{vLane}
        v_lshlrev_b32 v{vGo}, 5, v{vGo}
        v_bfe_u32 v{vT0}, v{vLane}, 1, 1
        v_lshl_add_u32 v{vGo+1}, v{vT0}, 10, v{vGo}
        v_and_b32 v{vT0}, 7, v{vLane}
        v_lshlrev_b32 v{vGo+2}, 7, v{vT0}
        s_lshr_b32 s{sG[0]}, s2, 2
        s_lshl_b32 s{sG[0]}, s{sG[0]}, 10
        s_add_u32 s{sG[0]}, s{sG[0]}, {WS_Q}
        s_xor_b32 s{sG[2]}, s{sG[0]}, 1024
        s_lshr_b32 s{sG[1]}, s2, 3
        s_lshl_b32 s{sG[1]}, s{sG[1]}, 11
        s_add_u32 s{sG[1]}, s{sG[1]}, {WS_Q + 4*16384}
        """)
        q_iss()
    st = dict(kok=False, vok=False)
    def c_qb():
        q_chk(); stamp("qgot")
        P(f"""
        ; any of the 32 workgroups of this class on another XCC -> write later hand-offs through
        v_cmp_ne_u32 vcc, 0, v{vT0}
        s_or_b32 s{sFar}, vcc_lo, vcc_hi
        """)
        if forcefar: P(f"s_mov_b32 s{sFar}, 1")
        for t in range(4):
            vcc(0x11111111 << t)
            for u in range(2):
                for q in range(4): P(f"v_cndmask_b32 v{vQA+16*u+4*t+q}, 0, v{vG+8*u+2*q}, vcc")
        for t in range(2):
            vcc(0x55555555 << t)
            for u in range(2):
                for q in range(4): P(f"v_cndmask_b32 v{vQB+8*u+4*t+q}, 0, v{vG+16+8*u+2*q}, vcc")
        return 'kok'
    B(qg, c_qg); B(0, c_qb, WM+1)

    vD = [V.get(4, 4) for _ in range(4)]
    vSB = V.get()
    def c_bqk():
        P.wait(sid[15])
        D = vWQ
        for tau in range(4):
            for n in range(4):
                t, u = n >> 1, n & 1
                P(f"v_mfma_f32_16x16x32_bf16 {v4(D+4*tau)}, {a4(sslot[4*tau+n])}, {v4(vQB+8*u+4*t)}, {v4(D+4*tau) if n else 0}")
                release(4*tau+n)
        for tau in range(4): extract(D+4*tau, vSB, tau, vT0)
        P(f"""
        v_cvt_pk_bf16_f32 v{vSB}, v{vSB}, v{vSB}
        v_mov_b32 v{vT0}, 0xffff
        v_bfi_b32 v{vSB}, v{vT0}, s{sTag}, v{vSB}
        """)
    B(15+WM, c_bqk)

    vWO = V.get(32, 4); vWOo = V.get()
    woids = []
    def c_wol(j):
        def c_wo():
            if j == 0:
                P(f"""
                v_lshrrev_b32 v{vT0}, 4, v0
                v_lshlrev_b32 v{vT0}, 5, v{vT0}
                v_and_or_b32 v{vT0}, v0, 12, v{vT0}
                v_mul_u32_u24 v{vWOo}, 896, v{vT0}
                v_and_b32 v{vT0}, 3, v0
                v_lshl_add_u32 v{vWOo}, v{vT0}, 4, v{vWOo}
                s_lshr_b32 s{sT0}, s{sCB}, 4
                s_mul_i32 s{sAux}, s{sT0}, {512*896}
                s_and_b32 s{sT0}, s{sCB}, 15
                s_lshl_b32 s{sT1}, s{sT0}, 6
                s_add_u32 s{sAux}, s{sAux}, s{sT1}
                v_mov_b32 v{vT0}, s{sT0}
                v_cmp_gt_u32 vcc, 14, v{vT0}
                v_cndmask_b32 v{vWOo}, v{vBig}, v{vWOo}, vcc
                """)
            if j == 4: P(f"s_addk_i32 s{sAux}, {16*896}")
            if "wo" in skip: woids.append(None)
            else: woids.append(P.vm(f"buffer_load_dwordx4 {v4(vQD+4*j)}, v{vWOo}, {srd(rWO)}, s{sAux} offen offset:{896*(j & 3)} {wflag}"))
        return c_wo
    def c_wot():
        P.wait(woids[-1])
        for e in range(8): transp(vWO+4*e, vQD, e)
    for j in range(8): B(wo0, c_wol(j), 2)
    B(0, c_wot, WM+1)

    vSA = V.get(4, 4)
    pend = []
    def k_consume(i):
        k = i - 32
        unit, n = k >> 4, k & 15
        t, par, u = n >> 2, (n >> 1) & 1, n & 1
        D = vD[2*(unit & 1) + par]
        first = (t == 0 and u == 0)
        P(f"v_mfma_f32_16x16x32_bf16 {v4(D)}, {a4(sslot[i])}, {v4(vQA+16*u+4*t)}, {0 if first else v4(D)}")
        release(i)
        while pend and n >= 2:
            pend.pop(0)()
        if n == 15:
            for p_ in range(2):
                pend.append(lambda p_=p_, unit=unit: extract(vD[2*(unit & 1)+p_], vSA + 2*(unit >> 2) + p_, unit & 3, vXT))
            if k == 127:
                while pend: pend.pop(0)()
                c_spub()
    def c_spub():
        o = vD[0]
        P(f"""
        s_lshl2_add_u32 s{sI}, s2, s{sWv}
        s_mul_i32 s{sI}, s{sI}, 768
        s_add_u32 s{sI}, s{sI}, {WS_SC}
        v_cvt_pk_bf16_f32 v{o}, v{vSA}, v{vSA+1}
        v_cvt_pk_bf16_f32 v{o+1}, v{vSA+2}, v{vSA+3}
        v_mov_b32 v{o+2}, v{vSB}
        """)
        if "scs" not in skip: publish("sc", f"buffer_store_dwordx3 {v3(o)}, v{vL12}, {srd(rWS)}, s{sI} offen")
        stamp("scpub")
    vSG = vWQ
    vE = vQA; vEB = vQA + 16
    vP = V.get(8, 4); vPB = vQB + 4; vM, vL, vMB, vLB = vQB, vQB+1, vQB+2, vQB+3
    vWt, vWtB, vFF = vQB+8, vQB+9, vQB+10
    sl = [f"buffer_load_dwordx3 {v3(vSG+4*k)}, v{vL12}, {srd(rWS)}, s{sG[k]} offen sc1" for k in range(4)]
    sl += [f"buffer_load_dword v{vSG+16+k}, v{vL12}, {srd(rWS)}, s{sG[4+k]} offen offset:8 sc1" for k in range(4)]
    sbr = [vSG+4*k+2 for k in range(4)] + [vSG+16+k for k in range(4)]
    s_iss, s_chk = gather("sc", sl, sbr, sTag, 0xffff, gs)
    def c_sg():
        P(f"""
        s_and_b32 s{sT0}, s2, 0xfc
        s_lshl2_add_u32 s{sT0}, s{sT0}, s{sWv}
        s_xor_b32 s{sT1}, s{sT0}, 16
        s_mul_i32 s{sT0}, s{sT0}, 768
        s_mul_i32 s{sT1}, s{sT1}, 768
        s_add_u32 s{sG[0]}, s{sT0}, {WS_SC}
        s_add_u32 s{sG[4]}, s{sT1}, {WS_SC}
        """)
        for k in (1, 2, 3, 5, 6, 7): P(f"s_add_u32 s{sG[k]}, s{sG[k-1]}, 3072")
        s_iss()
    def c_sm1():
        s_chk(); stamp("scgot")
        for r in range(8):
            src = vSG + 4*(r >> 1) + (r & 1)
            P(f"v_lshlrev_b32 v{vE+2*r}, 16, v{src}")
            P(f"v_and_b32 v{vE+2*r+1}, 0xffff0000, v{src}")
        P(f"v_max3_f32 v{vM}, v{vE}, v{vE+1}, v{vE+2}")
        for r in range(3, 15, 2): P(f"v_max3_f32 v{vM}, v{vM}, v{vE+r}, v{vE+r+1}")
        P(f"v_max_f32 v{vM}, v{vM}, v{vE+15}")
        xlane("v_max_f32", vM, vT0, ["x1", "x2", "r4", "r8", "p16", "p32"])
        P(f"v_mul_f32 v{vM}, s{sC}, v{vM}")
        for r in range(16):
            P(f"v_fma_f32 v{vE+r}, v{vE+r}, s{sC}, -v{vM}")
            P(f"v_exp_f32 v{vE+r}, v{vE+r}")
        for r in range(8): P(f"v_cvt_pk_bf16_f32 v{vP+r}, v{vE+2*r}, v{vE+2*r+1}")
        return 'vok'
    def c_sm3():
        for r in range(8): P(f"v_add_f32 v{vE+r}, v{vE+r}, v{vE+8+r}")
        sum8(vE, vL)
        xlane("v_add_f32", vL, vT0, ["x1", "x2", "r4", "r8", "p16", "p32"])
    def c_sb1():
        for k in range(8): P(f"v_and_b32 v{vEB+k}, 0xffff0000, v{sbr[k]}")
        P(f"v_max3_f32 v{vMB}, v{vEB}, v{vEB+1}, v{vEB+2}")
        P(f"v_max3_f32 v{vMB}, v{vMB}, v{vEB+3}, v{vEB+4}")
        P(f"v_max3_f32 v{vMB}, v{vMB}, v{vEB+5}, v{vEB+6}")
        P(f"v_max_f32 v{vMB}, v{vMB}, v{vEB+7}")
        xlane("v_max_f32", vMB, vT0, ["x1", "r4", "r8", "p16", "p32"])
        P(f"v_mul_f32 v{vMB}, s{sC}, v{vMB}")
        for k in range(8):
            P(f"v_fma_f32 v{vEB+k}, v{vEB+k}, s{sC}, -v{vMB}")
            P(f"v_exp_f32 v{vEB+k}, v{vEB+k}")
        for k in range(4):
            P(f"v_mov_b32_dpp v{vT0}, v{vEB+k} quad_perm:[1,0,3,2] {FULL}")
            P(f"v_cvt_pk_bf16_f32 v{vPB+k}, v{vEB+k}, v{vT0}")
        sum8(vEB, vLB)
        xlane("v_add_f32", vLB, vT0, ["x1", "r4", "r8", "p16", "p32"])
        P(f"""
        v_bfe_u32 v{vT0}, v{vLane}, 1, 1
        v_lshlrev_b32 v{vT0}, 6, v{vT0}
        s_lshl_b32 s{sT0}, s{sWv}, 4
        v_add_u32 v{vT0}, s{sT0}, v{vT0}
        ds_write_b128 v{vT0}, {v4(vM)} offset:{L_ST}
        """)
    vBc = [V.get(), V.get()]
    vTC = [V.get(4, 4), V.get(4, 4)]
    def pvop(bc, dst, src, lane):
        P(f"v_mov_b32_dpp v{bc}, v{src} row_newbcast:{lane} {FULL}")
        for q in range(4): P(f"v_perm_b32 v{dst+q}, v{bc}, v{bc}, v{vSel+q}")
    def c_bpv():
        for k in range(4):
            for tau in range(4):
                i = 16 + 4*tau + k
                for hd in range(2): pvop(vT0+hd, vTC[hd], vPB+k, 4*tau + 2*hd)
                for hd in range(2):
                    P(f"v_mfma_f32_16x16x32_bf16 {v4(vD[2+hd])}, {a4(sslot[i])}, {v4(vTC[hd])}, {v4(vD[2+hd]) if i > 16 else 0}")
                release(i)
    assert vT1 == vT0 + 1
    vAw, vAr = V.get(), V.get()
    def c_sm4():
        s_ = vE
        P(f"""
        v_bfe_u32 v{vT0}, v{vLane}, 1, 1
        v_lshlrev_b32 v{vT0}, 6, v{vT0}
        s_waitcnt lgkmcnt(0)
        s_barrier
        """)
        for k in range(4): P(f"ds_read_b128 {v4(s_+4*k)}, v{vT0} offset:{L_ST+16*k}")
        P(f"""
        v_lshrrev_b32 v{vAw}, 4, v0
        v_lshlrev_b32 v{vAw}, 7, v{vAw}
        v_and_b32 v{vT1}, 7, v{vLane}
        v_lshl_add_u32 v{vAw}, v{vT1}, 4, v{vAw}
        v_and_b32 v{vAr}, 32, v{vLane}
        v_lshl_add_u32 v{vAr}, v{vT1}, 2, v{vAr}
        v_bfe_u32 v{vT1}, v{vLane}, 3, 2
        v_add_lshl_u32 v{vAr}, v{vAr}, v{vT1}, 2
        s_min_u32 s{sT0}, s{sWv}, 2
        s_lshl_b32 s{sT0}, s{sT0}, 11
        v_add_u32 v{vAr}, s{sT0}, v{vAr}
        v_mov_b32 v{vFF}, 0xff
        s_waitcnt lgkmcnt(0)
        """)
        for o, m, wt in ((0, vM, vWt), (2, vMB, vWtB)):
            P(f"v_max3_f32 v{vT0}, v{s_+o}, v{s_+4+o}, v{s_+8+o}")
            P(f"v_max_f32 v{vT0}, v{vT0}, v{s_+12+o}")
            for k in range(4):
                P(f"v_sub_f32 v{s_+4*k+o}, v{s_+4*k+o}, v{vT0}")
                P(f"v_exp_f32 v{s_+4*k+o}, v{s_+4*k+o}")
            P(f"v_sub_f32 v{wt}, v{m}, v{vT0}")
            P(f"v_exp_f32 v{wt}, v{wt}")
            P(f"v_mul_f32 v{vT1}, v{s_+o}, v{s_+o+1}")
            for k in range(1, 4): P(f"v_fmac_f32 v{vT1}, v{s_+4*k+o}, v{s_+4*k+o+1}")
            P(f"v_rcp_f32 v{vT1}, v{vT1}")
            P(f"v_mul_f32 v{wt}, v{wt}, v{vT1}")
    def red_write(lst):
        P("s_mov_b32 exec_lo, 0x00ff00ff")
        P("s_mov_b32 exec_hi, 0xff00ff00")
        for acc, reg in lst: P(f"ds_write_b128 v{vAw}, {v4(acc)} offset:{L_RED+2048*reg}")
        P("s_mov_b64 exec, -1")
    def c_br1():
        for hd in range(2):
            for q in range(4):
                P(f"v_mul_f32_dpp v{vD[2+hd]+q}, v{vWtB}, v{vD[2+hd]+q} quad_perm:[{2*hd},{2*hd},{2*hd},{2*hd}] {FULL}")
        red_write([(vD[2], 1), (vD[3], 2)])
        stamp("ybdone")
    vOg, vOo, vL16 = vWOo, vL12, vGo
    sOp, sOg, sYp, sYg, sOutO = sG[0:5]
    def c_fin():
        P(f"""
        ; O table [x][slot: A, B kh0, B kh1][b][512] dwords
        s_bfe_u32 s{sT0}, s2, 0x30003
        s_mul_i32 s{sOg}, s{sT0}, {3*8192}
        s_add_u32 s{sOg}, s{sOg}, {WS_O}
        s_lshr_b32 s{sT0}, s2, 6
        s_lshl_b32 s{sT0}, s{sT0}, 11
        s_add_u32 s{sOp}, s{sOg}, s{sT0}
        ; wave 0: A row block t ; waves 1,2: slot 1+kh, row block 4*(wave-1)+s
        s_and_b32 s{sT0}, s2, 4
        s_lshl_b32 s{sT0}, s{sT0}, 3
        s_lshl2_add_u32 s{sT0}, s{sWv}, s{sT0}
        s_and_b32 s{sT1}, s2, 3
        s_add_u32 s{sT0}, s{sT0}, s{sT1}
        s_addk_i32 s{sT0}, 28
        s_and_b32 s{sT1}, s2, 7
        s_cmp_eq_u32 s{sWv}, 0
        s_cselect_b32 s{sT0}, s{sT1}, s{sT0}
        s_lshl_b32 s{sT0}, s{sT0}, 8
        s_add_u32 s{sOp}, s{sOp}, s{sT0}
        s_lshr_b32 s{sT0}, s2, 7
        s_lshl_b32 s{sT1}, s{sT0}, 13
        s_add_u32 s{sOg}, s{sOg}, s{sT1}
        v_bfe_u32 v{vT0}, v0, 2, 2
        v_lshlrev_b32 v{vOg}, 11, v{vT0}
        v_lshrrev_b32 v{vT0}, 4, v0
        v_lshl_add_u32 v{vOg}, v{vT0}, 7, v{vOg}
        v_and_b32 v{vT0}, 3, v0
        v_lshl_add_u32 v{vOg}, v{vT0}, 4, v{vOg}
        s_mul_i32 s{sOutO}, s{sT0}, 896
        s_and_b32 s{sT1}, s{sCB}, 15
        s_lshl4_add_u32 s{sT0}, s{sT0}, s{sT1}
        s_lshl2_add_u32 s{sT0}, s{sT0}, s{sWv}
        s_lshl_b32 s{sT0}, s{sT0}, 10
        s_add_u32 s{sYg}, s{sT0}, {WS_Y}
        s_lshr_b32 s{sT0}, s{sCB}, 4
        s_lshl_b32 s{sT0}, s{sT0}, 7
        s_add_u32 s{sYp}, s{sYg}, s{sT0}
        s_lshl_b32 s{sT1}, s{sT1}, 6
        s_add_u32 s{sOutO}, s{sOutO}, s{sT1}
        s_mul_i32 s{sT1}, s{sWv}, 1792
        s_add_u32 s{sOutO}, s{sOutO}, s{sT1}
        v_lshlrev_b32 v{vL16}, 4, v{vLane}
        v_and_b32 v{vT0}, 7, v{vLane}
        v_lshlrev_b32 v{vOo}, 3, v{vT0}
        v_bfe_u32 v{vT0}, v{vLane}, 4, 1
        v_lshl_add_u32 v{vOo}, v{vT0}, 2, v{vOo}
        v_lshrrev_b32 v{vT0}, 5, v{vLane}
        v_lshl_add_u32 v{vOo}, v{vT0}, 1, v{vOo}
        """)
    B(160+sg, c_sg); B(0, c_sm1, WM+1); B(0, c_sm3); B(0, c_sb1); B(0, c_bpv); B(0, c_sm4); B(0, c_br1); B(0, c_fin)

    vAcc = vD[1]
    prepared = set()
    def v_prep(i):
        v = i - 160
        if i < NS and i not in prepared:
            pvop(vBc[v & 1], vTB[v & 1], vP + 2*(v & 3) + (v >> 6), (v >> 2) & 15); prepared.add(i)
    def v_consume(i):
        v = i - 160
        v_prep(i)
        P.wait(sid[i])
        P(f"v_mfma_f32_16x16x32_bf16 {v4(vAcc)}, {a4(sslot[i])}, {v4(vTB[v & 1])}, {v4(vAcc) if v else 0}")
        release(i)
        v_prep(i+1)

    vFl, vFs, vFd, vFt = vXo, vWQo, V.get(), V.get()
    sFm = S.get(2)
    def fc_step(i):
        if i in cps:
            c = cps.index(i)
            if c == 0:
                P(f"""
                s_bfe_u32 s{sFC}, s2, 0x30003
                s_lshl2_add_u32 s{sFC}, s{sFC}, s{sWv}
                s_lshl_b32 s{sFC}, s{sFC}, 12
                s_add_u32 s{sFC}, s{sFC}, {WS_FC}
                s_and_b32 s{sI}, s2, 7
                s_lshr_b32 s{sBoost}, s2, 6
                s_lshl3_add_u32 s{sI}, s{sBoost}, s{sI}
                v_cmp_eq_u32 {sp(sFm)}, s{sI}, v{vLane}
                v_cndmask_b32 v{vFs}, v{vBig}, v{vL4}, {sp(sFm)}
                v_cmp_gt_u32 {sp(sFm)}, 32, v{vLane}
                v_cndmask_b32 v{vFl}, v{vBig}, v{vL4}, {sp(sFm)}
                v_mov_b32 v{vFt}, s{sTag}
                """)
            fcs['ids'][c] = P.vm(f"buffer_load_dword v{vFd}, v{vFl}, {srd(rWS)}, s{sFC} offen offset:{128*c} {fc['ld']}")
            P.vm(f"buffer_store_dword v{vFt}, v{vFs}, {srd(rWS)}, s{sFC} offen offset:{128*c}")
        if i - WM - 1 in cps:
            c = cps.index(i - WM - 1)
            P.wait(fcs['ids'].pop(c))
            g = int(round(fc['gain'] * fc['Pd'] / 32 * 256))
            P(f"""
            v_cmp_eq_u32 {sp(sFm)}, v{vFt}, v{vFd}
            s_bcnt1_i32_b32 s{sBoost}, s{sFm}
            s_sub_i32 s{sBoost}, s{sBoost}, {int(fc['r0'] * 32)}
            s_mul_i32 s{sBoost}, s{sBoost}, {g}
            s_ashr_i32 s{sBoost}, s{sBoost}, 8
            """)
            fcs['start'] = i + 1

    nk, nv = 32, 160
    bi = 0; lastbg = -1
    cur = None
    def consume_one():
        nonlocal nk, nv
        if st['kok'] and nk < 160 and nk <= land[0]:
            k_consume(nk); nk += 1
        elif st['vok'] and nv <= land[0]:
            v_consume(nv); nv += 1
        else: return False
        slots.extend(freed); freed.clear()
        return True
    def splittable(items, n):
        full = True; open_br = False
        for it in items[:n]:
            if it[0] == 'i':
                t = it[1]
                if t.startswith(('s_mov_b32 exec', 's_mov_b64 exec')): full = t.endswith('-1') and 'b64' in t
                if t.startswith('s_cbranch_scc'): open_br = True
            elif it[0] == 'l': open_br = False
        last = items[n-1]
        if last[0] == 'i' and last[1].startswith(('s_cmp', 's_cbranch', 's_getpc')): return False
        return full and not open_br
    minfree = 99
    for i in range(NS):
        m0 = len(P.ir)
        issue(i); fc_step(i)
        minfree = min(minfree, len(slots))
        used = lambda: sum(cost(x) for x in P.ir[m0:])
        consume_one()
        lim = 10**9 if i == W-1 else budget
        while True:
            if cur is None:
                if bi < len(bg) and bg[bi][0] <= i and lastbg + bg[bi][2] <= i and used() < lim:
                    keep = P.ir; P.ir = []
                    flag = bg[bi][1]()
                    cur = [P.ir, flag, list(freed), 0]; freed.clear(); P.ir = keep; bi += 1
                    if bg[bi-1][1] is not c_setup: lim = min(lim, used() + budget) if i == W-1 else lim
                else: break
            items = cur[0]; n = cur[3]; u = used()
            while n < len(items) and not (u >= lim and n > cur[3] and splittable(items, n)):
                u += cost(items[n]); n += 1
            P.ir.extend(items[cur[3]:n]); cur[3] = n
            if n < len(items): break
            if cur[1]: st[cur[1]] = True
            slots.extend(cur[2]); cur = None; lastbg = i
        c = 1
        while c < maxcatch and (used() < budget or len(slots) < 3) and consume_one(): c += 1
    assert bi == len(bg) and cur is None and nk == 160, (bi, len(bg), nk)
    stamp("lastiss")
    while nv < NS:
        v_consume(nv); nv += 1
    stamp("vdone")

    r = vWQ
    for q in range(4): P(f"v_mul_f32 v{vAcc+q}, v{vAcc+q}, v{vWt}")
    red_write([(vAcc, 0)])
    P("s_waitcnt lgkmcnt(0)")
    P("s_barrier")
    P(f"s_cmp_eq_u32 s{sWv}, 3")
    P("s_cbranch_scc1 L_near_o")
    for k in range(4): P(f"ds_read2st64_b32 {v2(r+2*k)}, v{vAr} offset0:{L_RED//256+2*k} offset1:{L_RED//256+2*k+1}")
    P("s_waitcnt lgkmcnt(0)")
    sum8(r, r)
    P(f"v_bfi_b32 v{r}, v{vFF}, s{sTag}, v{r}")
    publish("o", f"buffer_store_dword v{r}, v{vL4}, {srd(rWS)}, s{sOp} offen")
    stamp("opub")
    P(f"""
    s_and_b32 s{sT0}, s{sCB}, 15
    s_cmp_ge_u32 s{sT0}, 14
    s_cbranch_scc1 L_done
    s_cmp_lg_u32 s{sFar}, 0
    s_cselect_b32 s{sT1}, 0, 64
    s_add_u32 s{sI}, s{sOg}, 8192
    s_cmp_ge_u32 s2, 128
    s_cbranch_scc1 L_pollB
    """)
    g = vQA
    def opoll(Q, name, n):
        lds = [f"buffer_load_dwordx4 {v4(g+4*k)}, v{vOg}, {srd(rWS)}, s{sI if k >= 2 else sOg} offen offset:{64*(k & 1)}" for k in range(n)]
        Q.label(f"L_poll{name}")
        Q(f"s_sub_i32 s{sT1}, s{sT1}, 1")
        Q(f"s_cmp_lt_i32 s{sT1}, 0")
        Q(f"s_cbranch_scc1 L_poll{name}_far")
        for t in lds: Q.vm(t + " " + pollflag)
        Q.label(f"L_poll{name}_chk")
        Q(f"s_add_u32 s{sSpin}, s{sSpin}, 1")
        Q(f"s_cmp_gt_u32 s{sSpin}, 0x40000")
        Q.waitall()
        Q(f"s_cbranch_scc1 L_poll{name}_got")
        tagcheck(Q, range(g, g+4*n), sTag, 0xff)
        if "poll" not in skip: Q(f"s_cbranch_vccnz L_poll{name}")
        Q.label(f"L_poll{name}_got")
        for k in range(4*n): Q(f"v_and_b32 v{g+k}, 0xffffff00, v{g+k}")
        if n == 4:
            for k in range(8): Q(f"v_add_f32 v{g+k}, v{g+k}, v{g+8+k}")
        R = Prog(); R.label(f"L_poll{name}_far")
        for t in lds: R.vm(t + " sc1")
        R(f"s_branch L_poll{name}_chk"); slow.append(R)
    opoll(P, "A", 2)
    P.label("L_proj")
    Q = Prog(); opoll(Q, "B", 4); Q("s_branch L_proj"); slow.append(Q)
    stamp("ogot")
    for q in range(4): P(f"v_cvt_pk_bf16_f32 v{vX+q}, v{g+2*q}, v{g+2*q+1}")
    for e in range(8): P(f"v_mfma_f32_16x16x32_bf16 {v4(vQD+4*e)}, {v4(vX)}, {v4(vWO+4*e)}, 0")
    proj_write(r, r+4); proj_read(r); proj_sum(r)
    P(f"v_bfi_b32 v{r}, v{vFF}, s{sTag}, v{r}")
    P("s_mov_b32 exec_hi, 0")
    P.vm(f"buffer_store_dword v{r}, v{vL4}, {srd(rWS)}, s{sYp} offen sc1")
    stamp("yapub")
    P(f"""
    s_mov_b64 exec, -1
    s_lshr_b32 s{sT0}, s{sCB}, 4
    s_and_b32 s{sT1}, s{sCB}, 7
    s_cmp_lg_u32 s{sT0}, s{sT1}
    s_cbranch_scc1 L_done
    """)
    f = vQA
    P.label("L_pollY")
    P.vm(f"buffer_load_dwordx4 {v4(f)}, v{vL16}, {srd(rWS)}, s{sYg} offen sc1")
    P(f"""
    s_mov_b64 exec, -1
    s_add_u32 s{sSpin}, s{sSpin}, 1
    s_cmp_gt_u32 s{sSpin}, 0x40000
    """)
    P.waitall()
    P("s_cbranch_scc1 L_gotY")
    tagcheck(P, range(f, f+4), sTag, 0xff)
    P("s_wqm_b64 exec, vcc")
    if "poll" not in skip: P("s_cbranch_scc1 L_pollY")
    P.label("L_gotY")
    P("s_mov_b64 exec, -1")
    stamp("fgot")
    for k in range(4): P(f"v_and_b32 v{f+k}, 0xffffff00, v{f+k}")
    P(f"""
    v_permlane32_swap_b32 v{f}, v{f+1}
    v_permlane32_swap_b32 v{f+2}, v{f+3}
    v_add_f32 v{f}, v{f}, v{f+1}
    v_add_f32 v{f+2}, v{f+2}, v{f+3}
    v_permlane16_swap_b32 v{f}, v{f+2}
    v_add_f32 v{f}, v{f}, v{f+2}
    """)
    xlane("v_add_f32", f, None, ["r8"])
    P(f"""
    v_cvt_pk_bf16_f32 v{f}, v{f}, v{f}
    s_mov_b32 exec_lo, 0x00ff00ff
    s_mov_b32 exec_hi, 0x00ff00ff
    """)
    P.vm(f"buffer_store_short v{f}, v{vOo}, {srd(rOUT)}, s{sOutO} offen")
    P(f"""
    s_or_b32 s{sT0}, s2, s{sWv}
    s_cbranch_scc1 L_done
    s_mov_b64 exec, 1
    v_mov_b32 v{f+2}, s{sTag}
    """)
    P.vm(f"buffer_store_dword v{f+2}, v{vOo}, {srd(rWS)}, 0 offen")
    P.label("L_done")
    if spin:
        P.label("L_spin")
        P(f"""
        s_memrealtime {sp(sNow)}
        s_waitcnt lgkmcnt(0)
        s_sub_u32 s{sNow}, s{sNow}, s{sSt}
        s_cmp_lt_u32 s{sNow}, {spin}
        s_cbranch_scc1 L_spin
        """)
    if diag:
        P("s_mov_b64 exec, -1")
        stamp("end")
        P(f"""
        s_waitcnt lgkmcnt(0) vmcnt(0)
        s_lshl_b32 s{sT0}, s2, 2
        s_add_u32 s{sT0}, s{sT0}, s{sWv}
        s_lshl_b32 s{sT0}, s{sT0}, 7
        s_add_u32 s{sT0}, s{sT0}, {WS_DIAG}
        v_mov_b32 v{vT1}, 0
        s_mov_b64 exec, 1
        """)
        def dump(sreg, off):
            P(f"v_mov_b32 v{vT0}, s{sreg}")
            P.vm(f"buffer_store_dword v{vT0}, v{vT1}, {srd(rWS)}, s{sT0} offen offset:{off}")
        for n, (name, rr) in enumerate(stamps): dump(rr, 4*n)
        dump(sSpin, 4*len(stamps)); dump(sFar, 116)
        P(f"s_getreg_b32 s{sT1}, hwreg(HW_REG_XCC_ID)"); dump(sT1, 120)
        P(f"s_getreg_b32 s{sT1}, hwreg(HW_REG_HW_ID)"); dump(sT1, 124)
    P.label("L_end")
    P("s_endpgm")

    body, stats = P.render()
    for Q in slow: body += Q.render()[0]
    head = open("cdna_kernels/" + KNAME[:-7] + ".s.ref").read().split("; Override launch")[0]
    txt = head + f"; @launch grid=(256,1,1) block=(256,1,1) lds={L_TOTAL}\n"
    txt += f'.amdgcn_target "amdgcn-amd-amdhsa--gfx950"\n.text\n.globl {KNAME}\n.p2align 8\n.type {KNAME},@function\n{KNAME}:\n'
    txt += body
    txt += f""".section .rodata,"a"
.p2align 6
.amdhsa_kernel {KNAME}
  .amdhsa_next_free_vgpr 512
  .amdhsa_next_free_sgpr 102
  .amdhsa_accum_offset 256
  .amdhsa_group_segment_fixed_size 0
  .amdhsa_kernarg_size 104
  .amdhsa_user_sgpr_count 2
  .amdhsa_user_sgpr_kernarg_segment_ptr 1
  .amdhsa_system_sgpr_workgroup_id_x 1
.end_amdhsa_kernel
"""
    ids = list(range(256))
    act = [L for L in ids if (((L >> 6) & 1)*8 + (L & 7)) < 14]
    fin = [L for L in act if ((L >> 3) & 7) == (L & 7)]
    return txt, dict(stats, vhw=V.hw, shw=S.hw, minfree=minfree, stamps=[n for n, _ in stamps], who=dict(ogot=act, yapub=act, fgot=fin))

if __name__ == "__main__":
    import json
    kw = json.loads(sys.argv[2]) if len(sys.argv) > 2 else {}
    t, s = gen(**kw)
    open(sys.argv[1], "w").write(t)
    s.pop('who')
    print(s, file=sys.stderr)
```

```python
import sys, math, struct
from asmlib import Prog, Alloc
KNAME = "concat_heads__mha_block_cached__sliding_block_cached__decode_kernel"

WS_Q, WS_SC, WS_O, WS_Y, WS_FC, WS_G, WS_DIAG = 0x10000, 0x40000, 0x100000, 0x130000, 0x150000, 0x180000, 0x800000
L_QRED, L_ST, L_RED, L_TOTAL = 0, 2048, 2304, 2304 + 3*2048
CS = struct.unpack('<I', struct.pack('<f', math.log2(math.e) / 16.0))[0]
BIG = 0x7ff00000
FULL = "row_mask:0xf bank_mask:0xf"

AUXCOST = [8]
def cost(it):
    if it[0] == 'vm': return 8 if ' a[' in it[1] or 'store' in it[1] else AUXCOST[0]
    if it[0] != 'i': return 2
    t = it[1]
    if t.startswith(';'): return 0
    if t.startswith('v_mfma'): return 16
    if t.startswith(('v_exp', 'v_log', 'v_rcp')): return 10
    if '_dpp' in t or t.startswith('v_permlane'): return 8
    if t.startswith('ds_'): return 12
    if t.startswith('s_waitcnt'): return 60
    if t.startswith('s_barrier'): return 30
    return 4

def gen(W=5, qg=27, sg=18, wflag="", diag=False, wo0=60, skip=(), spin=0, forcefar=False, gq='', gs='', fc=None,
        budget=150, ipf=0, pollflag='sc1', maxcatch=4, bpub=276, DO=2, DY=4, warm=None, prew=0, ownw=0, yw=None, tlb=(), wolate=1, swap=False, nearly=0, Wpat=None, WpatV=None, bi8=True, scw=None, auxcost=70, wsw=(4, 'sc1'), prog=True, umaj=True):
    AUXCOST[0] = auxcost
    P = Prog()
    V = Alloc('v', 1, 256); S = Alloc('s', 3, 100)
    slots = list(range(64))
    def a4(s): return f"a[{4*s}:{4*s+3}]"
    def v4(r): return f"v[{r}:{r+3}]"
    def v3(r): return f"v[{r}:{r+2}]"
    def v2(r): return f"v[{r}:{r+1}]"
    def srd(r): return f"s[{r}:{r+3}]"
    def sp(r): return f"s[{r}:{r+1}]"
    def vcc(m): P(f"s_mov_b32 vcc_lo, {m:#x}"); P(f"s_mov_b32 vcc_hi, {m:#x}")
    slow = []
    stamps = []
    def stamp(name):
        if diag:
            r = S.get(2); stamps.append((name, r)); P(f"s_memrealtime {sp(r)}")
    fcs = dict(start=None, ids={})
    if fc is not None:
        fc = dict(dict(first=12, Pd=32, dW=2, r0=0.6, gain=2.5, ld='', xg=0, xd=1, x0=3.5, neg=None), **fc)
        WM = W + fc['dW']
        cps = list(range(fc['first'], 288 - WM - 6, fc['Pd']))
    else:
        WM = W; cps = []

    rX, rWQ, rBK, rBV, rAK, rAV, rWO, rWS, rOUT = [S.get(4) for _ in range(9)]
    sT0, sT1, sI, sWv, sTag, sOff, sAux, sSel0, sSel1, sC, sSpin, sCB, sTagQ, sFar, sBoost, sFC, sKo = [S.get() for _ in range(17)]
    sR, sBr = S.get(), S.get()
    vLane, vT0, vT1, vT2, vBig = [V.get() for _ in range(5)]
    vXo, vWQo, vKo, vVo = [V.get() for _ in range(4)]
    def desc(r, sz):
        P(f"s_mov_b32 s{r+2}, {sz}"); P(f"s_mov_b32 s{r+3}, 0x20000")
    bkb = f"s_or_b32 s{sT0}, s{sT1}, 96" if bi8 else f"""s_and_b32 s{sT0}, s{sT1}, 4
    s_mul_i32 s{sT0}, s{sT0}, 3
    s_add_u32 s{sT0}, s{sT0}, s{sT1}
    s_addk_i32 s{sT0}, 96"""
    P("s_cmp_ge_u32 s2, 256")
    P("s_cbranch_scc1 L_end")
    stamp("start")
    if spin:
        sSt = S.get(2); sNow = S.get(2); P(f"s_memrealtime {sp(sSt)}")
    P(f"""
    s_lshr_b32 s{sKo}, s2, 7
    s_mul_i32 s{sKo}, s{sKo}, 40
    s_load_dwordx2 {sp(rBK)}, s[0:1], 48
    s_load_dwordx2 {sp(rX)}, s[0:1], s{sKo}
    s_load_dwordx2 {sp(rWQ)}, s[0:1], s{sKo} offset:24
    s_load_dwordx2 {sp(rWS)}, s[0:1], 96
    ; logical id = b(2) | x(3) | t(3): workgroups that are 8 apart share x (L2 locality only)
    s_and_b32 s{sT0}, s2, 7
    s_bfe_u32 s{sT1}, s2, 0x30003
    s_bfe_u32 s{sCB}, s2, 0x40003
    s_lshr_b32 s2, s2, 6
    s_lshl3_add_u32 s2, s2, s{sT0}
    s_lshl_b32 s{sOff}, s2, 21
    s_lshl3_add_u32 s2, s2, s{sT1}
    s_lshl4_add_u32 s{sCB}, s{sT0}, s{sCB}
    s_lshl_b32 s{sAux}, s{sCB}, 6
    v_lshrrev_b32 v{vT0}, 6, v0
    v_lshrrev_b32 v{vT2}, 2, v0
    v_readfirstlane_b32 s{sWv}, v{vT0}
    v_and_b32 v{vT1}, 3, v0
    v_lshlrev_b32 v{vWQo}, 12, v{vT2}
    v_add_lshl_u32 v{vWQo}, v{vWQo}, v{vT1}, 4
    v_cmp_gt_u32 vcc, 56, v{vT2}
    v_and_b32 v{vKo}, 3, v{vT2}
    v_mad_u32_u24 v{vXo}, v{vKo}, 55, v{vT2}
    v_add_lshl_u32 v{vXo}, v{vXo}, v{vT1}, 4
    v_lshl_add_u32 v{vKo}, v{vT0}, 2, v{vKo}
    v_cndmask_b32 v{vXo}, 2.0, v{vXo}, vcc
    v_lshl_add_u32 v{vKo}, v{vKo}, 6, v{vT1}
    v_and_b32 v{vT2}, 12, v{vT2}
    v_add_lshl_u32 v{vKo}, v{vKo}, v{vT2}, 4
    {bkb}
    s_lshl_b32 s{sT0}, s{sT0}, 14
    s_add_u32 s{sOff}, s{sOff}, s{sT0}
    """)
    desc(rX, 3584); desc(rWQ, 3670016); desc(rBK, 1 << 26)
    P("s_waitcnt lgkmcnt(0)")
    stamp("karg")
    vX = V.get(4, 4); vWQ = V.get(32, 4)
    idx = P.vm(f"buffer_load_dwordx4 {v4(vX)}, v{vXo}, {srd(rX)}, 0 offen")
    idwq = []
    for j in range(8):
        if "wq" in skip: continue
        idwq.append(P.vm(f"buffer_load_dwordx4 {v4(vWQ+4*j)}, v{vWQo}, {srd(rWQ)}, s{sAux} offen {wflag}"))
        if j < 7: P(f"s_addk_i32 s{sAux}, 0x2000")

    vTl = V.get(2)
    def c_wsw():
        P(f"""
        s_mul_i32 s{sT0}, s2, {4*1152}
        s_add_u32 s{sT0}, s{sT0}, {WS_SC}
        v_lshlrev_b32 v{vTl}, 7, v0
        v_cmp_gt_u32 vcc, 36, v0
        v_cndmask_b32 v{vTl}, 2.0, v{vTl}, vcc
        """)
        desc(rWS, 1 << 24)
        P.vm(f"buffer_load_dword v{vTl+1}, v{vTl}, {srd(rWS)}, s{sT0} offen {wsw[1]}")
    if wsw and wsw[0] < 0: c_wsw()
    stream = []
    for k in range(16): stream.append(("BK", k))
    for k in range(16): stream.append(("BV", k))
    for k in range(128): stream.append(("AK", k))
    for k in range(128): stream.append(("AV", k))
    NS = len(stream)
    sid = {}; sslot = {}; land = [-1]
    def issue(i):
        kind, k = stream[i]
        if k == 0 and kind == "BV":
            P(f"""
            s_and_b32 s{sI}, s2, 3
            s_mul_i32 s{sI}, s{sI}, {16384-128}
            s_add_u32 s{sI}, s{sI}, {3*(131072 if bi8 else 65536)}
            s_sub_u32 s{sOff}, s{sOff}, s{sI}
            """)
        elif k == 0 and kind[0] == "A":
            P(f"""
            s_lshr_b32 s{sOff}, s2, 2
            s_lshl_b32 s{sOff}, s{sOff}, 21
            s_and_b32 s{sI}, s2, 3
            s_lshl_b32 s{sI}, s{sI}, {14 if kind == "AK" else 7}
            s_add_u32 s{sOff}, s{sOff}, s{sI}
            """)
        elif bi8 and k and k % 4 == 0 and kind[0] == "B":
            P(f"s_add_u32 s{sOff}, s{sOff}, {0x20000 if kind == 'BK' else 0x14000}")
        elif k and kind[1] == "V":
            P(f"s_addk_i32 s{sOff}, 0x4000")
        elif k and k % 4 == 0:
            P(f"s_add_u32 s{sOff}, s{sOff}, 0x10000")
        if fcs['start'] is not None:
            pat = WpatV if (WpatV and kind == "AV") else Wpat
            w = pat[i % len(pat)] if pat else W
            if fc['neg'] is not None:
                P.cwait(sid[i-w+1], None, [f"s_cmp_ge_i32 s{sBoost}, {-fc['neg'] - fc.get('ns', 2)*(i - fcs['start'])}"])
            P.cwait(sid[i-w], sid[i-WM], [f"s_cmp_gt_i32 s{sBoost}, {i - fcs['start']}"]); land[0] = max(land[0], i-WM)
        elif i >= W:
            P.wait(sid[i-W]); land[0] = max(land[0], i-W)
        s = slots.pop(0); sslot[i] = s
        r, vo = {"BK": (rBK, vKo), "BV": (rBV, vVo), "AK": (rAK, vKo), "AV": (rAV, vVo)}[kind]
        imm = 0 if kind[1] == "V" else ([0, 512, 256, 768][k & 3] if umaj else (k & 3) * 256)
        o = f" offset:{imm}" if imm else ""
        sid[i] = P.vm(f"buffer_load_dwordx4 {a4(s)}, v{vo}, {srd(r)}, s{sOff} offen{o} nt")
    freed = []
    def release(i): freed.append(sslot[i])

    def xlane(op, x, t, steps):
        for st in steps:
            if st in ("x1", "x2", "r4", "r8"):
                d = {"x1": "quad_perm:[1,0,3,2]", "x2": "quad_perm:[2,3,0,1]", "r4": "row_ror:4", "r8": "row_ror:8"}[st]
                P(f"{op}_dpp v{x}, v{x}, v{x} {d} {FULL}")
            else:
                P(f"v_mov_b32 v{t}, v{x}")
                P(f"v_permlane{st[1:]}_swap_b32 v{x}, v{t}")
                P(f"{op} v{x}, v{x}, v{t}")
    def tagcheck(Q, tags, stag, mask):
        tags = list(tags)
        if len(tags) % 2: tags.append(tags[-1])
        pairs = list(zip(tags[0::2], tags[1::2]))
        for n, (a, b) in enumerate(pairs):
            d = vT0 if n == 0 else (vT1 if n % 2 else vT2)
            Q(f"v_bitop3_b32 v{d}, v{a}, v{b}, s{stag} bitop3:0x7e")
            if n and n % 2 == 0: Q(f"v_or3_b32 v{vT0}, v{vT0}, v{vT1}, v{vT2}")
            elif n and n == len(pairs)-1: Q(f"v_or_b32 v{vT0}, v{vT0}, v{vT1}")
        Q(f"v_and_b32 v{vT1}, {mask:#x}, v{vT0}")
        Q(f"v_cmp_ne_u32 vcc, 0, v{vT1}")
    def gather(name, loads, tags, stag, mask, first):
        ids = []
        def iss():
            if name+"g" in skip: return
            for t in loads: ids.append(P.vm(t.replace(" sc1", " " + first)))
        def chk():
            if name+"g" in skip: return
            P.wait(*ids)
            tagcheck(P, tags, stag, mask)
            P(f"s_cbranch_vccnz L_slow_{name}")
            P.label(f"L_back_{name}")
            Q = Prog()
            Q.label(f"L_slow_{name}")
            Q(f"s_add_u32 s{sSpin}, s{sSpin}, 1")
            Q(f"s_cmp_gt_u32 s{sSpin}, 0x40000")
            Q(f"s_cbranch_scc1 L_back_{name}")
            for t in loads: Q.vm(t)
            Q.waitall()
            tagcheck(Q, tags, stag, mask)
            Q(f"s_cbranch_vccnz L_slow_{name}")
            Q(f"s_branch L_back_{name}")
            slow.append(Q)
        return iss, chk
    def publish(name, txt):
        P(f"s_cmp_lg_u32 s{sFar}, 0")
        P(f"s_cbranch_scc1 L_far_{name}")
        P.vm(txt)
        P.label(f"L_near_{name}")
        Q = Prog(); Q.label(f"L_far_{name}")
        Q.vm(txt + " sc1")
        Q(f"s_branch L_near_{name}"); slow.append(Q)
    def extract(D, dst, tau, t):
        rs = [r for r in range(4) if r != tau]
        src = D + tau
        for n, r in enumerate(rs):
            last = n == 2
            m = f"row_mask:0xf bank_mask:{1 << tau:#x}" if last else FULL
            P(f"v_add_f32_dpp v{dst if last else t}, v{D+r}, v{src} row_ror:{(4*(tau-r)) % 16} {m}")
            src = t
    def transp(dst, src, e):
        for q in range(4):
            P(f"v_perm_b32 v{dst+q}, v{src+4*(2*q+1)+(e>>1)}, v{src+4*(2*q)+(e>>1)}, s{sSel1 if e & 1 else sSel0}")
    def sum8(r, dst):
        P(f"""
        v_add_f32 v{r}, v{r}, v{r+1}
        v_add_f32 v{r+2}, v{r+2}, v{r+3}
        v_add_f32 v{r+4}, v{r+4}, v{r+5}
        v_add_f32 v{r+6}, v{r+6}, v{r+7}
        v_add_f32 v{r}, v{r}, v{r+2}
        v_add_f32 v{r+4}, v{r+4}, v{r+6}
        v_add_f32 v{dst}, v{r}, v{r+4}
        """)

    bg = []
    def B(at, fn, after=0): bg.append((at, fn, after))

    vSel = V.get(4); vL12, vPw, vPr, vL4, vXT = [V.get() for _ in range(5)]
    def c_setup():
        if swap:
            P(f"""
            s_bfe_u32 s{sBr}, s2, 0x10005
            s_mul_i32 s{sKo}, s{sBr}, 40
            s_bfe_u32 s{sT0}, s2, 0x20003
            s_lshr_b32 s{sT1}, s2, 6
            s_lshl2_add_u32 s{sT0}, s{sT0}, s{sT1}
            s_and_b32 s{sT1}, s2, 7
            s_lshl4_add_u32 s{sR}, s{sT1}, s{sT0}
            """)
        else:
            P(f"s_mov_b32 s{sR}, s{sCB}"); P(f"s_lshr_b32 s{sBr}, s2, 7")
        P(f"""
        s_load_dword s{sTag}, {sp(rWS)}, 0
        s_load_dwordx2 {sp(rBV)}, s[0:1], 56
        s_load_dwordx2 {sp(rAK)}, s[0:1], 8
        s_load_dwordx2 {sp(rAV)}, s[0:1], 16
        s_load_dwordx2 {sp(rWO)}, s[0:1], s{sKo} offset:32
        s_load_dwordx2 {sp(rOUT)}, s[0:1], 80
        v_and_b32 v{vLane}, 63, v0
        v_mov_b32 v{vBig}, {BIG}
        """)
        if ipf:
            P(f"s_getpc_b64 {sp(rOUT+2)}")
            P(f"v_lshlrev_b32 v{vT0}, 7, v0")
            P(f"v_cmp_gt_u32 vcc, {ipf}, v0")
            P(f"v_cndmask_b32 v{vT0}, 0, v{vT0}, vcc")
            P.vm(f"global_load_dword v{vXT}, v{vT0}, {sp(rOUT+2)}")
        desc(rBV, 1 << 26); desc(rAK, 1 << 27); desc(rAV, 1 << 27); desc(rWO, 3670016); desc(rWS, 1 << 24); desc(rOUT, 7168)
        P(f"""
        s_mov_b32 s{sSel0}, 0x05040100
        s_mov_b32 s{sSel1}, 0x07060302
        s_mov_b32 s{sC}, {CS:#x}
        s_mov_b32 s{sSpin}, 0
        s_getreg_b32 s{sTagQ}, hwreg(HW_REG_XCC_ID, 0, 4)
        v_mul_u32_u24 v{vL12}, 12, v{vLane}
        v_lshlrev_b32 v{vL4}, 2, v{vLane}
        v_lshlrev_b32 v{vPw}, 3, v0
        v_and_b32 v{vPr}, 3, v0
        v_bfe_u32 v{vT0}, v0, 3, 2
        v_lshl_add_u32 v{vPr}, v{vPr}, 2, v{vT0}
        v_lshrrev_b32 v{vT0}, 6, v0
        v_lshl_add_u32 v{vPr}, v{vT0}, 4, v{vPr}
        v_bfe_u32 v{vT0}, v0, 2, 1
        v_lshl_add_u32 v{vPr}, v{vPr}, 1, v{vT0}
        v_bfe_u32 v{vT0}, v0, 5, 1
        v_lshl_add_u32 v{vPr}, v{vT0}, 8, v{vPr}
        v_lshlrev_b32 v{vPr}, 2, v{vPr}
        v_lshrrev_b32 v{vT0}, 3, v0
        v_and_b32 v{vT1}, 7, v0
        v_lshlrev_b32 v{vVo}, 9, v{vT0}
        v_lshl_add_u32 v{vVo}, v{vT1}, 4, v{vVo}
        v_and_b32 v{vT0}, 1, v{vT0}
        v_mul_u32_u24 v{vT0}, 0x0202, v{vT0}
        v_add_u32 v{vT0}, 0x0100, v{vT0}
        v_or_b32 v{vT2}, 0x0c0c0000, v{vT0}
        v_lshlrev_b32 v{vT0}, 16, v{vT0}
        v_or_b32 v{vT0}, 0x0c0c, v{vT0}
        """)
        vcc(0xaaaaaaaa)
        P(f"v_cndmask_b32 v{vT0}, v{vT2}, v{vT0}, vcc")
        P(f"v_mov_b32 v{vT2}, 0x0c0c0c0c")
        for r in range(4):
            vcc(0x03030303 << (2*r)); P(f"v_cndmask_b32 v{vSel+r}, v{vT2}, v{vT0}, vcc")

    vQD = V.get(36, 4); vTB = [V.get(4, 4), V.get(4, 4)]
    def proj_write(dst, tmp):
        for e0 in (0, 4):
            for n in range(3):
                for e in range(e0, e0+4):
                    D = vQD + 4*e; tau = e & 3
                    r = [x for x in range(4) if x != tau][n]
                    m = f"row_mask:0xf bank_mask:{1 << tau:#x}" if n == 2 else FULL
                    P(f"v_add_f32_dpp v{dst+(e >> 2) if n == 2 else tmp+tau}, v{D+r}, v{tmp+tau if n else D+tau} row_ror:{(4*(tau-r)) % 16} {m}")
        P(f"ds_write_b64 v{vPw}, {v2(dst)} offset:{L_QRED}")
        P("s_waitcnt lgkmcnt(0)")
    def proj_read(r):
        P("s_barrier")
        P(f"ds_read2st64_b32 {v2(r)}, v{vPr} offset0:{L_QRED//256} offset1:{L_QRED//256+2}")
    def proj_sum(r):
        P("s_waitcnt lgkmcnt(0)")
        P(f"v_add_f32 v{r}, v{r}, v{r+1}")
        xlane("v_add_f32", r, r+1, ["p32"])
    def c_q():
        P.wait(idx, *idwq)
        stamp("wq")
        for e in range(8):
            transp(vTB[e & 1], vWQ, e)
            P(f"v_mfma_f32_16x16x32_bf16 {v4(vQD+4*e)}, {v4(vX)}, {v4(vTB[e & 1])}, 0")
        proj_write(vWQ, vWQ+4)
    def c_q4():
        r = vWQ
        proj_read(r)
        P(f"""
        s_add_u32 s{sTag}, s{sTag}, 0x9e3779b9
        s_and_b32 s{sT0}, s{sTag}, 0xfffffff0
        s_or_b32 s{sTagQ}, s{sTagQ}, s{sT0}
        s_lshr_b32 s{sT0}, s2, 7
        s_lshl2_add_u32 s{sT0}, s{sT0}, s{sWv}
        s_lshl_b32 s{sT0}, s{sT0}, 7
        s_add_u32 s{sT0}, s{sT0}, s{sCB}
        s_lshl_b32 s{sT0}, s{sT0}, 7
        s_add_u32 s{sT0}, s{sT0}, {WS_Q}
        v_mov_b32 v{r+9}, s{sTagQ}
        """)
        proj_sum(r)
        P(f"""
        v_mov_b32_dpp v{r+1}, v{r} quad_perm:[1,0,3,2] {FULL}
        v_cvt_pk_bf16_f32 v{r+8}, v{r}, v{r+1}
        s_mov_b32 exec_lo, 0x55555555
        s_mov_b32 exec_hi, 0
        """)
        if "qs" not in skip: P.vm(f"buffer_store_dwordx2 {v2(r+8)}, v{vL4}, {srd(rWS)}, s{sT0} offen sc1")
        P("s_mov_b64 exec, -1")
        stamp("qpub")
    if wsw and 0 <= wsw[0] <= 4: B(W-1, c_wsw)
    B(W-1, c_setup); B(0, c_q); B(0, c_q4, 1)

    vQA = V.get(32, 4); vQB = V.get(16, 4)
    vG = vQD
    vGo = V.get(3); sG = [S.get() for _ in range(8)]
    ql = [f"buffer_load_dwordx4 {v4(vG+8*u+4*hf)}, v{vGo}, {srd(rWS)}, s{sG[0]} offen offset:{512*u+16*hf} sc1" for u in range(2) for hf in range(2)]
    ql += [f"buffer_load_dwordx4 {v4(vG+16+8*u+4*hf)}, v{vGo+1}, {srd(rWS)}, s{sG[1]} offen offset:{512*u+16*hf} sc1" for u in range(2) for hf in range(2)]
    ql += [f"buffer_load_dwordx2 {v2(vG+32)}, v{vGo+2}, {srd(rWS)}, s{sG[2]} offen sc1"]
    q_iss, q_chk = gather("q", ql, range(vG+1, vG+34, 2), sTagQ, 0xfffffff0, gq)
    def c_qg():
        P(f"""
        v_lshrrev_b32 v{vGo}, 2, v{vLane}
        v_lshlrev_b32 v{vGo}, 5, v{vGo}
        v_bfe_u32 v{vT0}, v{vLane}, 1, 1
        v_lshl_add_u32 v{vGo+1}, v{vT0}, 10, v{vGo}
        v_and_b32 v{vT0}, 7, v{vLane}
        v_lshlrev_b32 v{vGo+2}, 7, v{vT0}
        s_lshr_b32 s{sG[0]}, s2, 2
        s_lshl_b32 s{sG[0]}, s{sG[0]}, 10
        s_add_u32 s{sG[0]}, s{sG[0]}, {WS_Q}
        s_xor_b32 s{sG[2]}, s{sG[0]}, 1024
        s_lshr_b32 s{sG[1]}, s2, 3
        s_lshl_b32 s{sG[1]}, s{sG[1]}, 11
        s_add_u32 s{sG[1]}, s{sG[1]}, {WS_Q + 4*16384}
        """)
        q_iss()
    st = dict(kok=False, vok=False)
    def c_qb():
        q_chk(); stamp("qgot")
        P(f"""
        ; any of the 32 workgroups of this class on another XCC -> write later hand-offs through
        v_cmp_ne_u32 vcc, 0, v{vT0}
        s_or_b32 s{sFar}, vcc_lo, vcc_hi
        """)
        if forcefar: P(f"s_mov_b32 s{sFar}, 1")
        for t in range(4):
            vcc(0x11111111 << t)
            for u in range(2):
                for q in range(4): P(f"v_cndmask_b32 v{vQA+16*u+4*t+q}, 0, v{vG+8*u+2*q}, vcc")
        for t in range(2):
            vcc(0x55555555 << t)
            for u in range(2):
                for q in range(4): P(f"v_cndmask_b32 v{vQB+8*u+4*t+q}, 0, v{vG+16+8*u+2*q}, vcc")
        return 'kok'
    def c_scw():
        P(f"""
        s_lshl2_add_u32 s{sT0}, s2, s{sWv}
        s_mul_i32 s{sT0}, s{sT0}, 768
        s_add_u32 s{sT0}, s{sT0}, {WS_SC}
        v_lshlrev_b32 v{vT0}, 7, v{vLane}
        v_cmp_gt_u32 vcc, 6, v{vLane}
        v_cndmask_b32 v{vT0}, v{vBig}, v{vT0}, vcc
        """)
        P.vm(f"buffer_load_dword v{vTl+1}, v{vT0}, {srd(rWS)}, s{sT0} offen {scw[1]}")
    if wsw and wsw[0] > 4: B(wsw[0], c_wsw)
    if scw and scw[0] < qg: B(scw[0], c_scw)
    B(qg, c_qg); B(0, c_qb, WM+1)

    vD = [V.get(4, 4) for _ in range(4)]
    vSB = V.get()
    def c_bqk():
        P.wait(sid[15])
        D = vWQ
        for tau in range(4):
            for n in range(4):
                t, u = (n & 1, n >> 1) if umaj else (n >> 1, n & 1)
                P(f"v_mfma_f32_16x16x32_bf16 {v4(D+4*tau)}, {a4(sslot[4*tau+n])}, {v4(vQB+8*u+4*t)}, {v4(D+4*tau) if n else 0}")
                release(4*tau+n)
        for tau in range(4): extract(D+4*tau, vSB, tau, vT0)
        P(f"""
        v_cvt_pk_bf16_f32 v{vSB}, v{vSB}, v{vSB}
        v_mov_b32 v{vT0}, 0xffff
        v_bfi_b32 v{vSB}, v{vT0}, s{sTag}, v{vSB}
        """)
    B(15+WM, c_bqk)

    vWO = V.get(32, 4); vWOo = V.get()
    woids = []
    def c_wol(j):
        def c_wo():
            if j == 0:
                P(f"""
                v_lshrrev_b32 v{vT0}, 4, v0
                v_lshlrev_b32 v{vT0}, 5, v{vT0}
                v_and_or_b32 v{vT0}, v0, 12, v{vT0}
                v_mul_u32_u24 v{vWOo}, 896, v{vT0}
                v_and_b32 v{vT0}, 3, v0
                v_lshl_add_u32 v{vWOo}, v{vT0}, 4, v{vWOo}
                s_lshr_b32 s{sT0}, s{sR}, 4
                s_mul_i32 s{sAux}, s{sT0}, {512*896}
                s_and_b32 s{sT0}, s{sR}, 15
                s_lshl_b32 s{sT1}, s{sT0}, 6
                s_add_u32 s{sAux}, s{sAux}, s{sT1}
                v_mov_b32 v{vT0}, s{sT0}
                v_cmp_gt_u32 vcc, 14, v{vT0}
                v_cndmask_b32 v{vWOo}, v{vBig}, v{vWOo}, vcc
                """)
            if j == 4: P(f"s_addk_i32 s{sAux}, {16*896}")
            if "wo" in skip: woids.append(None)
            else: woids.append(P.vm(f"buffer_load_dwordx4 {v4(vQD+4*j)}, v{vWOo}, {srd(rWO)}, s{sAux} offen offset:{896*(j & 3)} {wflag}"))
        return c_wo
    def c_wot():
        P.wait(woids[-1])
        for e in range(8): transp(vWO+4*e, vQD, e)
    for j in range(nearly if wolate else 8): B(wo0, c_wol(j), 2)
    if not wolate: B(0, c_wot, WM+1)

    vSA = V.get(4, 4)
    pend = []
    def k_consume(i):
        k = i - 32
        unit, n = k >> 4, k & 15
        t, par, u = n >> 2, (n >> 1) & 1, n & 1
        if umaj: par, u = u, par
        D = vD[2*(unit & 1) + par]
        first = (t == 0 and u == 0)
        P(f"v_mfma_f32_16x16x32_bf16 {v4(D)}, {a4(sslot[i])}, {v4(vQA+16*u+4*t)}, {0 if first else v4(D)}")
        release(i)
        while pend and n >= 2:
            pend.pop(0)()
        if n == 15:
            for p_ in range(2):
                pend.append(lambda p_=p_, unit=unit: extract(vD[2*(unit & 1)+p_], vSA + 2*(unit >> 2) + p_, unit & 3, vXT))
            if k == 127:
                while pend: pend.pop(0)()
                c_spub()
    def c_spub():
        o = vD[0]
        P(f"""
        s_lshl2_add_u32 s{sI}, s2, s{sWv}
        s_mul_i32 s{sI}, s{sI}, 768
        s_add_u32 s{sI}, s{sI}, {WS_SC}
        v_cvt_pk_bf16_f32 v{o}, v{vSA}, v{vSA+1}
        v_cvt_pk_bf16_f32 v{o+1}, v{vSA+2}, v{vSA+3}
        v_mov_b32 v{o+2}, v{vSB}
        """)
        if "scs" not in skip: publish("sc", f"buffer_store_dwordx3 {v3(o)}, v{vL12}, {srd(rWS)}, s{sI} offen")
        stamp("scpub")
    vSG = vWQ
    vE = vQA; vEB = vQA + 16
    vP = V.get(8, 4); vPB = vQB + 4; vM, vL, vMB, vLB = vQB, vQB+1, vQB+2, vQB+3
    vWt, vWtB, vFF = vQB+8, vQB+9, vQB+10
    sl = [f"buffer_load_dwordx3 {v3(vSG+4*k)}, v{vL12}, {srd(rWS)}, s{sG[k]} offen sc1" for k in range(4)]
    sl += [f"buffer_load_dword v{vSG+16+k}, v{vL12}, {srd(rWS)}, s{sG[4+k]} offen offset:8 sc1" for k in range(4)]
    sbr = [vSG+4*k+2 for k in range(4)] + [vSG+16+k for k in range(4)]
    s_iss, s_chk = gather("sc", sl, sbr, sTag, 0xffff, gs)
    def c_sg():
        P(f"""
        s_and_b32 s{sT0}, s2, 0xfc
        s_lshl2_add_u32 s{sT0}, s{sT0}, s{sWv}
        s_xor_b32 s{sT1}, s{sT0}, 16
        s_mul_i32 s{sT0}, s{sT0}, 768
        s_mul_i32 s{sT1}, s{sT1}, 768
        s_add_u32 s{sG[0]}, s{sT0}, {WS_SC}
        s_add_u32 s{sG[4]}, s{sT1}, {WS_SC}
        """)
        for k in (1, 2, 3, 5, 6, 7): P(f"s_add_u32 s{sG[k]}, s{sG[k-1]}, 3072")
        s_iss()
    def c_sm1():
        s_chk(); stamp("scgot")
        for r in range(8):
            src = vSG + 4*(r >> 1) + (r & 1)
            P(f"v_lshlrev_b32 v{vE+2*r}, 16, v{src}")
            P(f"v_and_b32 v{vE+2*r+1}, 0xffff0000, v{src}")
        P(f"v_max3_f32 v{vM}, v{vE}, v{vE+1}, v{vE+2}")
        for r in range(3, 15, 2): P(f"v_max3_f32 v{vM}, v{vM}, v{vE+r}, v{vE+r+1}")
        P(f"v_max_f32 v{vM}, v{vM}, v{vE+15}")
        xlane("v_max_f32", vM, vT0, ["x1", "x2", "r4", "r8", "p16", "p32"])
        P(f"v_mul_f32 v{vM}, s{sC}, v{vM}")
        for r in range(16):
            P(f"v_fma_f32 v{vE+r}, v{vE+r}, s{sC}, -v{vM}")
            P(f"v_exp_f32 v{vE+r}, v{vE+r}")
        for r in range(8): P(f"v_cvt_pk_bf16_f32 v{vP+r}, v{vE+2*r}, v{vE+2*r+1}")
        return 'vok'
    def c_sm3():
        for r in range(8): P(f"v_add_f32 v{vE+r}, v{vE+r}, v{vE+8+r}")
        sum8(vE, vL)
        xlane("v_add_f32", vL, vT0, ["x1", "x2", "r4", "r8", "p16", "p32"])
    def c_sb1():
        for k in range(8): P(f"v_and_b32 v{vEB+k}, 0xffff0000, v{sbr[k]}")
        P(f"v_max3_f32 v{vMB}, v{vEB}, v{vEB+1}, v{vEB+2}")
        P(f"v_max3_f32 v{vMB}, v{vMB}, v{vEB+3}, v{vEB+4}")
        P(f"v_max3_f32 v{vMB}, v{vMB}, v{vEB+5}, v{vEB+6}")
        P(f"v_max_f32 v{vMB}, v{vMB}, v{vEB+7}")
        xlane("v_max_f32", vMB, vT0, ["x1", "r4", "r8", "p16", "p32"])
        P(f"v_mul_f32 v{vMB}, s{sC}, v{vMB}")
        for k in range(8):
            P(f"v_fma_f32 v{vEB+k}, v{vEB+k}, s{sC}, -v{vMB}")
            P(f"v_exp_f32 v{vEB+k}, v{vEB+k}")
        for k in range(4):
            P(f"v_mov_b32_dpp v{vT0}, v{vEB+k} quad_perm:[1,0,3,2] {FULL}")
            P(f"v_cvt_pk_bf16_f32 v{vPB+k}, v{vEB+k}, v{vT0}")
        sum8(vEB, vLB)
        xlane("v_add_f32", vLB, vT0, ["x1", "r4", "r8", "p16", "p32"])
        P(f"""
        v_bfe_u32 v{vT0}, v{vLane}, 1, 1
        v_lshlrev_b32 v{vT0}, 6, v{vT0}
        s_lshl_b32 s{sT0}, s{sWv}, 4
        v_add_u32 v{vT0}, s{sT0}, v{vT0}
        ds_write_b128 v{vT0}, {v4(vM)} offset:{L_ST}
        """)
    vBc = [V.get(), V.get()]
    vTC = [V.get(4, 4), V.get(4, 4)]
    def pvop(bc, dst, src, lane):
        P(f"v_mov_b32_dpp v{bc}, v{src} row_newbcast:{lane} {FULL}")
        for q in range(4): P(f"v_perm_b32 v{dst+q}, v{bc}, v{bc}, v{vSel+q}")
    def c_bpv():
        for k in range(4):
            for tau in range(4):
                i = 16 + 4*tau + k
                for hd in range(2): pvop(vT0+hd, vTC[hd], vPB+k, 4*tau + 2*hd)
                for hd in range(2):
                    P(f"v_mfma_f32_16x16x32_bf16 {v4(vD[2+hd])}, {a4(sslot[i])}, {v4(vTC[hd])}, {v4(vD[2+hd]) if i > 16 else 0}")
                release(i)
    assert vT1 == vT0 + 1
    vAw, vAr = V.get(), V.get()
    def c_sm4():
        s_ = vE
        P(f"""
        v_bfe_u32 v{vT0}, v{vLane}, 1, 1
        v_lshlrev_b32 v{vT0}, 6, v{vT0}
        s_waitcnt lgkmcnt(0)
        s_barrier
        """)
        for k in range(4): P(f"ds_read_b128 {v4(s_+4*k)}, v{vT0} offset:{L_ST+16*k}")
        P(f"""
        v_lshrrev_b32 v{vAw}, 4, v0
        v_lshlrev_b32 v{vAw}, 7, v{vAw}
        v_and_b32 v{vT1}, 7, v{vLane}
        v_lshl_add_u32 v{vAw}, v{vT1}, 4, v{vAw}
        v_and_b32 v{vAr}, 32, v{vLane}
        v_lshl_add_u32 v{vAr}, v{vT1}, 2, v{vAr}
        v_bfe_u32 v{vT1}, v{vLane}, 3, 2
        v_add_lshl_u32 v{vAr}, v{vAr}, v{vT1}, 2
        s_min_u32 s{sT0}, s{sWv}, 2
        s_lshl_b32 s{sT0}, s{sT0}, 11
        v_add_u32 v{vAr}, s{sT0}, v{vAr}
        v_mov_b32 v{vFF}, 0xff
        s_waitcnt lgkmcnt(0)
        """)
        for o, m, wt in ((0, vM, vWt), (2, vMB, vWtB)):
            P(f"v_max3_f32 v{vT0}, v{s_+o}, v{s_+4+o}, v{s_+8+o}")
            P(f"v_max_f32 v{vT0}, v{vT0}, v{s_+12+o}")
            for k in range(4):
                P(f"v_sub_f32 v{s_+4*k+o}, v{s_+4*k+o}, v{vT0}")
                P(f"v_exp_f32 v{s_+4*k+o}, v{s_+4*k+o}")
            P(f"v_sub_f32 v{wt}, v{m}, v{vT0}")
            P(f"v_exp_f32 v{wt}, v{wt}")
            P(f"v_mul_f32 v{vT1}, v{s_+o}, v{s_+o+1}")
            for k in range(1, 4): P(f"v_fmac_f32 v{vT1}, v{s_+4*k+o}, v{s_+4*k+o+1}")
            P(f"v_rcp_f32 v{vT1}, v{vT1}")
            P(f"v_mul_f32 v{wt}, v{wt}, v{vT1}")
    def red_write(lst):
        P("s_mov_b32 exec_lo, 0x00ff00ff")
        P("s_mov_b32 exec_hi, 0xff00ff00")
        for acc, reg in lst: P(f"ds_write_b128 v{vAw}, {v4(acc)} offset:{L_RED+2048*reg}")
        P("s_mov_b64 exec, -1")
    def c_br1():
        for hd in range(2):
            for q in range(4):
                P(f"v_mul_f32_dpp v{vD[2+hd]+q}, v{vWtB}, v{vD[2+hd]+q} quad_perm:[{2*hd},{2*hd},{2*hd},{2*hd}] {FULL}")
        red_write([(vD[2], 1), (vD[3], 2)])
        stamp("ybdone")
    def c_br2():
        r = vWQ
        P("s_waitcnt lgkmcnt(0)")
        P("s_barrier")
        for k in range(4): P(f"ds_read2st64_b32 {v2(r+2*k)}, v{vAr} offset0:{L_RED//256+2*k} offset1:{L_RED//256+2*k+1}")
        P(f"""
        v_add_u32 v{vT0}, 64, v0
        v_and_b32 v{vT0}, 128, v{vT0}
        v_cmp_ne_u32 vcc, 0, v{vT0}
        v_cndmask_b32 v{vT0}, v{vBig}, v{vL4}, vcc
        s_waitcnt lgkmcnt(0)
        """)
        sum8(r, r)
        P(f"v_bfi_b32 v{r}, v{vFF}, s{sTag}, v{r}")
        if prew:
            P(f"""
            v_cmp_gt_u32 vcc, 64, v0
            v_cndmask_b32 v{vT0}, v{vT0}, v{vL4}, vcc
            v_not_b32 v{vT1}, v{r}
            v_cndmask_b32 v{r}, v{r}, v{vT1}, vcc
            """)
        t = f"buffer_store_dword v{r}, v{vT0}, {srd(rWS)}, s{sOp} offen"
        if swap: P.vm(t + " sc1")
        else: publish("ob", t)
    vOg, vOo, vL16 = vGo+1, vL12, vGo
    sOp, sOg, sYp, sYg, sOutO, sOg2 = sG[0:6]
    def c_fin():
        P(f"""
        ; O table [x][slot: A, B kh0, B kh1][b][512] dwords
        s_bfe_u32 s{sT0}, s2, 0x30003
        s_mul_i32 s{sOg}, s{sT0}, {3*8192}
        s_add_u32 s{sOg}, s{sOg}, {WS_O}
        s_lshr_b32 s{sT0}, s2, 6
        s_lshl_b32 s{sT0}, s{sT0}, 11
        s_add_u32 s{sOp}, s{sOg}, s{sT0}
        ; wave 0: A row block t ; waves 1,2: slot 1+kh, row block 4*(wave-1)+s
        s_and_b32 s{sT0}, s2, 4
        s_lshl_b32 s{sT0}, s{sT0}, 3
        s_lshl2_add_u32 s{sT0}, s{sWv}, s{sT0}
        s_and_b32 s{sT1}, s2, 3
        s_add_u32 s{sT0}, s{sT0}, s{sT1}
        s_addk_i32 s{sT0}, 28
        s_and_b32 s{sT1}, s2, 7
        s_cmp_eq_u32 s{sWv}, 0
        s_cselect_b32 s{sT0}, s{sT1}, s{sT0}
        s_lshl_b32 s{sT0}, s{sT0}, 8
        s_add_u32 s{sOp}, s{sOp}, s{sT0}
        s_lshr_b32 s{sT0}, s{sR}, 4
        s_mul_i32 s{sOg}, s{sT0}, 3
        s_add_u32 s{sOg}, s{sOg}, s{sBr}
        s_lshl_b32 s{sOg}, s{sOg}, 13
        s_add_u32 s{sOg}, s{sOg}, {WS_O}
        s_mov_b32 s{sT0}, s{sBr}
        s_add_u32 s{sOg2}, s{sOg}, 8192
        v_bfe_u32 v{vT0}, v0, 2, 2
        v_lshlrev_b32 v{vOg}, 11, v{vT0}
        v_lshrrev_b32 v{vT0}, 4, v0
        v_lshl_add_u32 v{vOg}, v{vT0}, 7, v{vOg}
        v_and_b32 v{vT0}, 3, v0
        v_lshl_add_u32 v{vOg}, v{vT0}, 4, v{vOg}
        s_mul_i32 s{sOutO}, s{sT0}, 896
        s_and_b32 s{sT1}, s{sR}, 15
        s_lshl4_add_u32 s{sT0}, s{sT0}, s{sT1}
        s_lshl2_add_u32 s{sT0}, s{sT0}, s{sWv}
        s_lshl_b32 s{sT0}, s{sT0}, 10
        s_add_u32 s{sYg}, s{sT0}, {WS_Y}
        s_lshr_b32 s{sT0}, s{sR}, 4
        s_lshl_b32 s{sT0}, s{sT0}, 7
        s_add_u32 s{sYp}, s{sYg}, s{sT0}
        s_lshl_b32 s{sT1}, s{sT1}, 6
        s_add_u32 s{sOutO}, s{sOutO}, s{sT1}
        s_mul_i32 s{sT1}, s{sWv}, 1792
        s_add_u32 s{sOutO}, s{sOutO}, s{sT1}
        v_lshlrev_b32 v{vL16}, 4, v{vLane}
        v_and_b32 v{vT0}, 7, v{vLane}
        v_lshlrev_b32 v{vOo}, 3, v{vT0}
        v_bfe_u32 v{vT0}, v{vLane}, 4, 1
        v_lshl_add_u32 v{vOo}, v{vT0}, 2, v{vOo}
        v_lshrrev_b32 v{vT0}, 5, v{vLane}
        v_lshl_add_u32 v{vOo}, v{vT0}, 1, v{vOo}
        """)
    if scw and scw[0] >= qg: B(scw[0], c_scw)
    B(160+sg, c_sg); B(0, c_sm1, WM+1); B(0, c_sm3); B(0, c_sb1); B(0, c_bpv); B(0, c_sm4); B(0, c_br1); B(0, c_fin)
    def c_ownw():
        P(f"v_cmp_gt_u32 vcc, 192, v0")
        P(f"v_cndmask_b32 v{vT0}, v{vBig}, v{vL4}, vcc")
        P.vm(f"buffer_load_dword v{vXT}, v{vT0}, {srd(rWS)}, s{sOp} offen{' sc1' if swap else ''}")
    def c_yw():
        P(f"v_cmp_gt_u32 vcc, 32, v{vLane}")
        P(f"v_cndmask_b32 v{vT0}, v{vBig}, v{vL4}, vcc")
        P.vm(f"buffer_load_dword v{vXT}, v{vT0}, {srd(rWS)}, s{sYp} offen {yw}")
    if yw is not None: B(bpub - 12, c_yw)
    if ownw: B(bpub - ownw, c_ownw)
    if bpub: B(bpub, c_br2)
    def c_warm():
        for k in range(4): P.vm(f"buffer_load_dwordx4 {v4(vQA+4*k)}, v{vOg}, {srd(rWS)}, s{sOg2 if k >= 2 else sOg} offen offset:{64*(k & 1)} {warm[1]}")
    if warm: B(warm[0], c_warm)

    vAcc = vD[1]
    prepared = set()
    def v_prep(i):
        v = i - 160
        if i < NS and i not in prepared:
            pvop(vBc[v & 1], vTB[v & 1], vP + 2*(v & 3) + (v >> 6), (v >> 2) & 15); prepared.add(i)
    def v_consume(i):
        v = i - 160
        v_prep(i)
        P.wait(sid[i])
        P(f"v_mfma_f32_16x16x32_bf16 {v4(vAcc)}, {a4(sslot[i])}, {v4(vTB[v & 1])}, {v4(vAcc) if v else 0}")
        release(i)
        v_prep(i+1)

    vFl, vFs, vFd, vFt = vXo, vWQo, V.get(), V.get()
    sFm = S.get(2)
    xg = fc['xg'] if fc else 0
    if xg:
        vGs, vGl, vBs, vGd = [V.get() for _ in range(4)]; sGl = S.get()
    def fc_step(i):
        if i in cps:
            c = cps.index(i)
            if c == 0:
                P(f"""
                s_bfe_u32 s{sFC}, s2, 0x30003
                s_lshl2_add_u32 s{sFC}, s{sFC}, s{sWv}
                s_lshl_b32 s{sFC}, s{sFC}, {12 if xg else 11}
                s_add_u32 s{sFC}, s{sFC}, {WS_FC}
                s_and_b32 s{sI}, s2, 7
                s_lshr_b32 s{sBoost}, s2, 6
                s_lshl3_add_u32 s{sI}, s{sBoost}, s{sI}
                v_cmp_eq_u32 {sp(sFm)}, s{sI}, v{vLane}
                v_cndmask_b32 v{vFs}, v{vBig}, v{vL4}, {sp(sFm)}
                v_cmp_gt_u32 {sp(sFm)}, 32, v{vLane}
                v_cndmask_b32 v{vFl}, v{vBig}, v{vL4}, {sp(sFm)}
                v_mov_b32 v{vFt}, s{sTag}
                """)
                if xg:
                    P(f"""
                    s_movk_i32 s{sBoost}, 2048
                    v_writelane_b32 v{vFl}, s{sBoost}, 32
                    s_mul_i32 s{sGl}, s{sWv}, 9
                    s_add_u32 s{sGl}, s{sGl}, 2
                    s_cmp_eq_u32 s{sGl}, s{sI}
                    s_cselect_b32 s{sFm}, 0xff, 0
                    s_mov_b32 s{sFm+1}, 0
                    v_mul_u32_u24 v{vGd}, 2176, v{vLane}
                    v_cndmask_b32 v{vGl}, v{vBig}, v{vGd}, {sp(sFm)}
                    s_bfe_u32 s{sI}, s2, 0x30003
                    s_lshl_b32 s{sI}, 1, s{sI}
                    s_and_b32 s{sFm}, s{sFm}, s{sI}
                    v_cndmask_b32 v{vGs}, v{vBig}, v{vGd}, {sp(sFm)}
                    v_cndmask_b32 v{vGl}, v{vGl}, v{vBig}, {sp(sFm)}
                    v_mov_b32 v{vGd}, {2048+128}
                    v_cndmask_b32 v{vBs}, v{vBig}, v{vGd}, {sp(sFm)}
                    s_mul_i32 s{sGl}, s{sWv}, {8*2176}
                    s_add_u32 s{sGl}, s{sGl}, {WS_G}
                    """)
            fcs['ids'][c] = P.vm(f"buffer_load_dword v{vFd}, v{vFl}, {srd(rWS)}, s{sFC} offen offset:{128*c} {fc['ld']}")
            P.vm(f"buffer_store_dword v{vFt}, v{vFs}, {srd(rWS)}, s{sFC} offen offset:{128*c}")
            if xg and c + 1 < len(cps): P.vm(f"buffer_store_dword v{vFt}, v{vGs}, {srd(rWS)}, s{sGl} offen offset:{128*c} sc1")
        if xg and i - fc['xd'] in cps[:-1]:
            c = cps.index(i - fc['xd'])
            fcs['g'] = P.vm(f"buffer_load_dword v{vGd}, v{vGl}, {srd(rWS)}, s{sGl} offen offset:{128*c} sc1")
        if xg and i - fc['xd'] - WM - 1 in cps[:-1]:
            c = cps.index(i - fc['xd'] - WM - 1)
            P.wait(fcs['g'])
            P(f"""
            v_cmp_eq_u32 {sp(sFm)}, v{vFt}, v{vGd}
            s_bcnt1_i32_b32 s{sI}, s{sFm}
            v_add_u32 v{vGd}, s{sI}, v{vFt}
            """)
            P.vm(f"buffer_store_dword v{vGd}, v{vBs}, {srd(rWS)}, s{sFC} offen offset:{128*c}")
        if i - WM - 1 in cps:
            c = cps.index(i - WM - 1)
            P.wait(fcs['ids'].pop(c))
            g = int(round(fc['gain'] * fc['Pd'] / 32 * 256))
            P(f"""
            v_cmp_eq_u32 {sp(sFm)}, v{vFt}, v{vFd}
            s_bcnt1_i32_b32 s{sBoost}, s{sFm}
            s_sub_i32 s{sBoost}, s{sBoost}, {int(fc['r0'] * 32)}
            s_mul_i32 s{sBoost}, s{sBoost}, {g}
            """)
            if xg and c:
                P(f"""
                v_readlane_b32 s{sI}, v{vFd}, 32
                s_sub_u32 s{sI}, s{sI}, s{sTag}
                s_mul_i32 s{sFm}, s{sI}, {int(xg*256)}
                s_sub_i32 s{sFm}, s{sFm}, {int(xg*256*fc['x0'])}
                s_cmp_lt_u32 s{sI}, 8
                s_cselect_b32 s{sI}, s{sFm}, 0
                s_add_i32 s{sBoost}, s{sBoost}, s{sI}
                """)
            P(f"s_ashr_i32 s{sBoost}, s{sBoost}, 8")
            fcs['start'] = i + 1

    def tlb_step(i):
        for at, kind in tlb:
            if at != i: continue
            r = {"AK": rAK, "AV": rAV, "BV": rBV, "WO": rWO}[kind]
            if kind[0] == "A": P(f"s_lshr_b32 s{sI}, s2, 2\ns_lshl_b32 s{sI}, s{sI}, 21")
            elif kind == "BV": P(f"s_lshr_b32 s{sI}, s2, 3\ns_lshl_b32 s{sI}, s{sI}, 21\ns_add_u32 s{sI}, s{sI}, {3072*512}")
            else: P(f"s_lshr_b32 s{sI}, s{sR}, 4\ns_mul_i32 s{sI}, s{sI}, {512*896}")
            P(f"v_cmp_eq_u32 {sp(sFm)}, 0, v0")
            P(f"v_cndmask_b32 v{vTl}, v{vBig}, v0, {sp(sFm)}")
            P.vm(f"buffer_load_dword v{vTl+1}, v{vTl}, {srd(r)}, s{sI} offen nt")

    nk, nv = 32, 160
    bi = 0; lastbg = -1
    cur = None
    def consume_one():
        nonlocal nk, nv
        if st['kok'] and nk < 160 and nk <= land[0]:
            k_consume(nk); nk += 1
        elif st['vok'] and nv <= land[0]:
            v_consume(nv); nv += 1
        else: return False
        slots.extend(freed); freed.clear()
        return True
    def splittable(items, n):
        full = True; open_br = False
        for it in items[:n]:
            if it[0] == 'i':
                t = it[1]
                if t.startswith(('s_mov_b32 exec', 's_mov_b64 exec')): full = t.endswith('-1') and 'b64' in t
                if t.startswith('s_cbranch_scc'): open_br = True
            elif it[0] == 'l': open_br = False
        last = items[n-1]
        if last[0] == 'i' and last[1].startswith(('s_cmp', 's_cbranch', 's_getpc')): return False
        return full and not open_br
    minfree = 99
    for i in range(NS):
        m0 = len(P.ir)
        issue(i); fc_step(i); tlb_step(i)
        minfree = min(minfree, len(slots))
        used = lambda: sum(cost(x) for x in P.ir[m0:])
        consume_one()
        lim = 10**9 if i == W-1 else budget
        while True:
            if cur is None:
                if bi < len(bg) and bg[bi][0] <= i and lastbg + bg[bi][2] <= i and used() < lim:
                    keep = P.ir; P.ir = []
                    flag = bg[bi][1]()
                    cur = [P.ir, flag, list(freed), 0]; freed.clear(); P.ir = keep; bi += 1
                    if bg[bi-1][1] not in (c_setup, c_wsw): lim = min(lim, used() + budget) if i == W-1 else lim
                else: break
            items = cur[0]; n = cur[3]; u = used()
            while n < len(items) and not (u >= lim and n > cur[3] and splittable(items, n)):
                u += cost(items[n]); n += 1
            P.ir.extend(items[cur[3]:n]); cur[3] = n
            if n < len(items): break
            if cur[1]: st[cur[1]] = True
            slots.extend(cur[2]); cur = None; lastbg = i
        c = 1
        while c < maxcatch and (used() < budget or len(slots) < 3) and consume_one(): c += 1
    assert bi == len(bg) and cur is None and nk == 160, (bi, len(bg), nk)
    stamp("lastiss")
    jw = nearly
    while nv < NS:
        if wolate:
            for _ in range(wolate):
                if jw < 8: c_wol(jw)(); jw += 1
        v_consume(nv); nv += 1
    while wolate and jw < 8: c_wol(jw)(); jw += 1
    stamp("vdone")

    r = vWQ
    for q in range(4): P(f"v_mul_f32 v{vAcc+q}, v{vAcc+q}, v{vWt}")
    red_write([(vAcc, 0)])
    P("s_waitcnt lgkmcnt(0)")
    P("s_barrier")
    P(f"s_cmp_lg_u32 s{sWv}, 0" if bpub else f"s_cmp_eq_u32 s{sWv}, 3")
    P("s_cbranch_scc1 L_near_o")
    for k in range(4): P(f"ds_read2st64_b32 {v2(r+2*k)}, v{vAr} offset0:{L_RED//256+2*k} offset1:{L_RED//256+2*k+1}")
    P("s_waitcnt lgkmcnt(0)")
    sum8(r, r)
    P(f"v_bfi_b32 v{r}, v{vFF}, s{sTag}, v{r}")
    t = f"buffer_store_dword v{r}, v{vL4}, {srd(rWS)}, s{sOp} offen"
    if swap: P.vm(t + " sc1"); P.label("L_near_o")
    else: publish("o", t)
    stamp("opub")
    P(f"""
    s_and_b32 s{sT0}, s{sR}, 15
    s_cmp_ge_u32 s{sT0}, 14
    s_cbranch_scc1 L_done
    s_cmp_lg_u32 s{sBr}, 0
    s_cbranch_scc1 L_pollB_in
    """)
    g = vQA; sMiss = sFm
    def ppoll(Q, name, lds, sets, dst, mid=None):
        n = len(lds); D = len(sets)
        Q.label(f"L_poll{name}_in")
        Q(f"s_mov_b64 {sp(sMiss)}, -1")
        for k in range(n): Q(lds[k].replace("@", v4(sets[0]+4*k)))
        if mid: mid(Q, n)
        if D > 1:
            Q(f"s_not_b32 s{sT0}, s{sTag}")
            for b in sets[1:]: Q(f"v_mov_b32 v{b}, s{sT0}")
        Q.label(f"L_poll{name}")
        for d in list(range(1, D)) + [0]:
            b = sets[d]
            Q(f"s_waitcnt vmcnt({n*(D-1)})")
            tagcheck(Q, range(b, b+4*n), sTag, 0xff)
            Q("s_wqm_b64 vcc, vcc")
            Q(f"s_andn2_b64 exec, {sp(sMiss)}, vcc")
            for k in range(4*n): Q(f"v_and_b32 v{dst+k}, 0xffffff00, v{b+k}")
            Q(f"s_and_b64 {sp(sMiss)}, {sp(sMiss)}, vcc")
            Q(f"s_cbranch_scc0 L_got{name}")
            Q(f"s_mov_b64 exec, {sp(sMiss)}")
            for k in range(n): Q(lds[k].replace("@", v4(b+4*k)))
            Q("s_mov_b64 exec, -1")
        Q(f"s_add_u32 s{sSpin}, s{sSpin}, 1")
        Q(f"s_cmp_gt_u32 s{sSpin}, 0x20000")
        Q(f"s_cbranch_scc0 L_poll{name}")
        Q.label(f"L_got{name}")
        Q("s_mov_b64 exec, -1")
    ol = [f"buffer_load_dwordx4 @, v{vOg}, {srd(rWS)}, s{sOg2 if k >= 2 else sOg} offen offset:{64*(k & 1)} {pollflag}" for k in range(4)]
    def mid(Q, n):
        if not wolate: return
        for q in range(4):
            if prog or q == 0: Q(f"s_waitcnt vmcnt({n + (6 - 2*q if prog else 0)})")
            for e in range(8):
                Q(f"v_perm_b32 v{vWO+4*e+q}, v{vQD+4*(2*q+1)+(e>>1)}, v{vQD+4*(2*q)+(e>>1)}, s{sSel1 if e & 1 else sSel0}")
    ppoll(P, "A", ol[:2], [g+8, g+16, g+24][:DO], g, mid)
    P.label("L_proj")
    Q = Prog(); ppoll(Q, "B", ol, [g+16], g, mid)
    for k in range(8): Q(f"v_add_f32 v{g+k}, v{g+k}, v{g+8+k}")
    Q("s_branch L_proj"); slow.append(Q)
    stamp("ogot")
    for q in range(4): P(f"v_cvt_pk_bf16_f32 v{vX+q}, v{g+2*q}, v{g+2*q+1}")
    for e in range(8): P(f"v_mfma_f32_16x16x32_bf16 {v4(vQD+4*e)}, {v4(vX)}, {v4(vWO+4*e)}, 0")
    proj_write(r, r+4); proj_read(r); proj_sum(r)
    P(f"v_bfi_b32 v{r}, v{vFF}, s{sTag}, v{r}")
    P("s_mov_b32 exec_hi, 0")
    t = f"buffer_store_dword v{r}, v{vL4}, {srd(rWS)}, s{sYp} offen"
    if swap: publish("y", t)
    else: P.vm(t + " sc1")
    stamp("yapub")
    P(f"""
    s_mov_b64 exec, -1
    s_lshr_b32 s{sT0}, s{sR}, 4
    s_and_b32 s{sT1}, s{sR}, 7
    s_cmp_lg_u32 s{sT0}, s{sT1}
    s_cbranch_scc1 L_done
    """)
    f = vP
    ppoll(P, "Y", [f"buffer_load_dwordx4 @, v{vL16}, {srd(rWS)}, s{sYg} offen sc1"], [vWO+4*k for k in range(8)][:DY], f)
    stamp("fgot")
    P(f"""
    v_permlane32_swap_b32 v{f}, v{f+1}
    v_permlane32_swap_b32 v{f+2}, v{f+3}
    v_add_f32 v{f}, v{f}, v{f+1}
    v_add_f32 v{f+2}, v{f+2}, v{f+3}
    v_permlane16_swap_b32 v{f}, v{f+2}
    v_add_f32 v{f}, v{f}, v{f+2}
    """)
    xlane("v_add_f32", f, None, ["r8"])
    P(f"""
    v_cvt_pk_bf16_f32 v{f}, v{f}, v{f}
    s_mov_b32 exec_lo, 0x00ff00ff
    s_mov_b32 exec_hi, 0x00ff00ff
    """)
    P.vm(f"buffer_store_short v{f}, v{vOo}, {srd(rOUT)}, s{sOutO} offen")
    P(f"""
    s_or_b32 s{sT0}, s2, s{sWv}
    s_cbranch_scc1 L_done
    s_mov_b64 exec, 1
    v_mov_b32 v{f+2}, s{sTag}
    """)
    P.vm(f"buffer_store_dword v{f+2}, v{vOo}, {srd(rWS)}, 0 offen")
    P.label("L_done")
    if spin:
        P.label("L_spin")
        P(f"""
        s_memrealtime {sp(sNow)}
        s_waitcnt lgkmcnt(0)
        s_sub_u32 s{sNow}, s{sNow}, s{sSt}
        s_cmp_lt_u32 s{sNow}, {spin}
        s_cbranch_scc1 L_spin
        """)
    if diag:
        P("s_mov_b64 exec, -1")
        stamp("end")
        P(f"""
        s_waitcnt lgkmcnt(0) vmcnt(0)
        s_lshl_b32 s{sT0}, s2, 2
        s_add_u32 s{sT0}, s{sT0}, s{sWv}
        s_lshl_b32 s{sT0}, s{sT0}, 7
        s_add_u32 s{sT0}, s{sT0}, {WS_DIAG}
        v_mov_b32 v{vT1}, 0
        s_mov_b64 exec, 1
        """)
        def dump(sreg, off):
            P(f"v_mov_b32 v{vT0}, s{sreg}")
            P.vm(f"buffer_store_dword v{vT0}, v{vT1}, {srd(rWS)}, s{sT0} offen offset:{off}")
        for n, (name, rr) in enumerate(stamps): dump(rr, 4*n)
        dump(sSpin, 4*len(stamps)); dump(sFar, 116)
        P(f"s_getreg_b32 s{sT1}, hwreg(HW_REG_XCC_ID)"); dump(sT1, 120)
        P(f"s_getreg_b32 s{sT1}, hwreg(HW_REG_HW_ID)"); dump(sT1, 124)
    P.label("L_end")
    P("s_endpgm")

    body, stats = P.render()
    for Q in slow: body += Q.render()[0]
    head = open("cdna_kernels/" + KNAME[:-7] + ".s.ref").read().split("; Override launch")[0]
    txt = head + f"; @launch grid=(256,1,1) block=(256,1,1) lds={L_TOTAL}\n"
    txt += f'.amdgcn_target "amdgcn-amd-amdhsa--gfx950"\n.text\n.globl {KNAME}\n.p2align 8\n.type {KNAME},@function\n{KNAME}:\n'
    txt += body
    txt += f""".section .rodata,"a"
.p2align 6
.amdhsa_kernel {KNAME}
  .amdhsa_next_free_vgpr 512
  .amdhsa_next_free_sgpr 102
  .amdhsa_accum_offset 256
  .amdhsa_group_segment_fixed_size 0
  .amdhsa_kernarg_size 104
  .amdhsa_user_sgpr_count 2
  .amdhsa_user_sgpr_kernarg_segment_ptr 1
  .amdhsa_system_sgpr_workgroup_id_x 1
.end_amdhsa_kernel
"""
    ids = list(range(256))
    act = [L for L in ids if (((L >> 6) & 1)*8 + (L & 7)) < 14]
    fin = [L for L in act if ((L >> 3) & 7) == (L & 7)]
    if swap:
        mm = lambda L: 4*((L >> 3) & 3) + (L >> 6)
        act = [L for L in ids if mm(L) < 14]; fin = [L for L in act if (mm(L) & 7) == (L & 7)]
    return txt, dict(stats, vhw=V.hw, shw=S.hw, minfree=minfree, stamps=[n for n, _ in stamps], who=dict(ogot=act, yapub=act, fgot=fin))

if __name__ == "__main__":
    import json
    kw = json.loads(sys.argv[2]) if len(sys.argv) > 2 else {}
    t, s = gen(**kw)
    open(sys.argv[1], "w").write(t)
    s.pop('who')
    print(s, file=sys.stderr)
```

```python
import sys, math, struct
from asmlib import Prog, Alloc
KNAME = "concat_heads__mha_block_cached__sliding_block_cached__decode_kernel"

WS_Q, WS_SC, WS_O, WS_FC, WS_Y, WS_DIAG = 0x10000, 0x40000, 0x100000, 0x130000, 0x140000, 0x800000
L_QRED, L_ST, L_RED, L_TOTAL = 0, 4096, 4352, 4352 + 3*2048
CS = struct.unpack('<I', struct.pack('<f', math.log2(math.e) / 16.0))[0]
BIG = 0x7ff00000
FULL = "row_mask:0xf bank_mask:0xf"

AUXCOST = [8]
def cost(it):
    if it[0] == 'vm': return 8 if ' a[' in it[1] or 'store' in it[1] else AUXCOST[0]
    if it[0] != 'i': return 2
    t = it[1]
    if t.startswith(';'): return 0
    if t.startswith('v_mfma'): return 16
    if t.startswith(('v_exp', 'v_log', 'v_rcp')): return 10
    if '_dpp' in t or t.startswith('v_permlane'): return 8
    if t.startswith('ds_'): return 12
    if t.startswith('s_waitcnt'): return 60
    if t.startswith('s_barrier'): return 30
    return 4

def gen(W=5, qg=30, sg=18, wflag="", woflag="nt", diag=False, skip=(), spin=0, forcefar=False, fc=None, budget=150, maxcatch=4,
        bpub=278, DO=1, DY=3, wolate=1, auxcost=70, wsl=32, first=(3, 2, 2, 2), hello=4, tpad=None, ipf=0, yw=(282, 'p'), noO=True, fakeQ=0):
    AUXCOST[0] = auxcost
    P = Prog()
    V = Alloc('v', 1, 256); S = Alloc('s', 3, 100)
    slots = list(range(64))
    def a4(s): return f"a[{4*s}:{4*s+3}]"
    def v4(r): return f"v[{r}:{r+3}]"
    def v3(r): return f"v[{r}:{r+2}]"
    def v2(r): return f"v[{r}:{r+1}]"
    def srd(r): return f"s[{r}:{r+3}]"
    def sp(r): return f"s[{r}:{r+1}]"
    def vcc(m): P(f"s_mov_b32 vcc_lo, {m:#x}"); P(f"s_mov_b32 vcc_hi, {m:#x}")
    slow = []
    stamps = []
    def stamp(name):
        if diag:
            r = S.get(2); stamps.append((name, r)); P(f"s_memrealtime {sp(r)}")
    fcs = dict(start=None, ids={})
    st = dict(kok=False, vok=False, lgk=False, tag=False)
    if fc is not None:
        fc = dict(dict(first=16, Pd=32, dW=2, r0=0.6, gain=2.5), **fc)
        WM = W + fc['dW']
        cps = list(range(fc['first'], 288 - WM - 6, fc['Pd']))
    else:
        WM = W; cps = []

    rX, rWQ, rBK, rBV, rAK, rAV, rWO, rWS, rOUT = [S.get(4) for _ in range(9)]
    sT0, sT1, sI, sWv, sTag, sOff, sAux, sSel0, sSel1, sC, sSpin, sCB, sTagQ, sFar, sBoost, sFC, sKo = [S.get() for _ in range(17)]
    vLane, vT0, vT1, vT2, vBig = [V.get() for _ in range(5)]
    vXo, vWQo, vKo, vVo = [V.get() for _ in range(4)]
    def desc(r, sz):
        P(f"s_mov_b32 s{r+2}, {sz}"); P(f"s_mov_b32 s{r+3}, 0x20000")
    sDbg = S.get(2); vH = V.get(2)
    hl1 = f"""s_load_dwordx2 {sp(sDbg)}, s[0:1], 88
    s_getreg_b32 s{sTagQ}, hwreg(HW_REG_XCC_ID, 0, 4)
    ; byte (id&7)*32 + (id>>3) of the zeroed debug buffer reports this workgroup's XCC
    s_mul_i32 s{sT0}, s2, 0x101
    s_bfe_u32 s{sT0}, s{sT0}, 0x80003
    v_mov_b32 v{vH}, s{sT0}
    v_add_u32 v{vH+1}, s{sTagQ}, 1"""
    P("s_cmp_ge_u32 s2, 256")
    P("s_cbranch_scc1 L_end")
    stamp("start")
    if spin:
        sSt = S.get(2); sNow = S.get(2); P(f"s_memrealtime {sp(sSt)}")
    P(f"""
    s_lshr_b32 s{sKo}, s2, 7
    s_mul_i32 s{sKo}, s{sKo}, 40
    s_load_dwordx2 {sp(rBK)}, s[0:1], 48
    s_load_dwordx2 {sp(rX)}, s[0:1], s{sKo}
    s_load_dwordx2 {sp(rWQ)}, s[0:1], s{sKo} offset:24
    s_load_dwordx2 {sp(rWS)}, s[0:1], 96
    {hl1}
    ; logical id = b(2) | x(3) | t(3): workgroups that are 8 apart share x (L2 locality only)
    s_and_b32 s{sT0}, s2, 7
    s_bfe_u32 s{sT1}, s2, 0x30003
    s_bfe_u32 s{sCB}, s2, 0x40003
    s_lshr_b32 s2, s2, 6
    s_lshl3_add_u32 s2, s2, s{sT0}
    s_lshl_b32 s{sOff}, s2, 21
    s_lshl3_add_u32 s2, s2, s{sT1}
    s_lshl4_add_u32 s{sCB}, s{sT0}, s{sCB}
    s_lshl_b32 s{sAux}, s{sCB}, 6
    v_lshrrev_b32 v{vT0}, 6, v0
    v_lshrrev_b32 v{vT2}, 2, v0
    v_readfirstlane_b32 s{sWv}, v{vT0}
    v_and_b32 v{vT1}, 3, v0
    v_lshlrev_b32 v{vWQo}, 12, v{vT2}
    v_add_lshl_u32 v{vWQo}, v{vWQo}, v{vT1}, 4
    v_cmp_gt_u32 vcc, 56, v{vT2}
    v_and_b32 v{vKo}, 3, v{vT2}
    v_mad_u32_u24 v{vXo}, v{vKo}, 55, v{vT2}
    v_add_lshl_u32 v{vXo}, v{vXo}, v{vT1}, 4
    v_lshl_add_u32 v{vKo}, v{vT0}, 2, v{vKo}
    v_cndmask_b32 v{vXo}, 2.0, v{vXo}, vcc
    v_lshl_add_u32 v{vKo}, v{vKo}, 6, v{vT1}
    v_and_b32 v{vT2}, 12, v{vT2}
    v_add_lshl_u32 v{vKo}, v{vKo}, v{vT2}, 4
    s_or_b32 s{sT0}, s{sT1}, 96
    s_lshl_b32 s{sT0}, s{sT0}, 14
    s_add_u32 s{sOff}, s{sOff}, s{sT0}
    """)
    if fakeQ:
        P(f"""
        v_lshrrev_b32 v{vT0}, 3, v0
        v_mul_u32_u24 v{vWQo}, {7*512}, v{vT0}
        v_and_b32 v{vT0}, 7, v0
        v_add_lshl_u32 v{vWQo}, v{vWQo}, v{vT0}, 4
        s_and_b32 s{sT0}, s{sCB}, 1
        s_mul_i32 s{sT0}, s{sT0}, {224*8192-64}
        s_add_u32 s{sAux}, s{sAux}, s{sT0}
        """)
    desc(rX, 3584); desc(rWQ, 3670016); desc(rBK, 1 << 26)
    P("s_waitcnt lgkmcnt(0)")
    stamp("karg")
    P.vm(f"global_store_byte v{vH}, v{vH+1}, {sp(sDbg)}")
    vX = V.get(4, 4); vWQ = V.get(32, 4)
    idwq = []
    def wq_load():
        j = len(idwq) - 1
        if j < 0: idwq.append(P.vm(f"buffer_load_dwordx4 {v4(vX)}, v{vXo}, {srd(rX)}, 0 offen"))
        elif "wq" in skip or (fakeQ and j == 7): idwq.append(None)
        else:
            if j: P(f"s_addk_i32 s{sAux}, 0x2000")
            idwq.append(P.vm(f"buffer_load_dwordx4 {v4(vWQ+4*j)}, v{vWQo}, {srd(rWQ)}, s{sAux} offen {wflag}"))
    first = list(first or [9])
    assert sum(first) == 9
    for _ in range(first[0]): wq_load()
    vTl = V.get(2)
    def c_wsw():
        P(f"""
        s_mul_i32 s{sT0}, s2, 3072
        s_add_u32 s{sT0}, s{sT0}, {WS_SC}
        v_mov_b32 v{vTl}, s{sT0}
        """)
        if wsl > 24:
            P(f"""
            v_mul_u32_u24 v{vTl+1}, 768, v{vH}
            v_add_u32 v{vTl+1}, {BIG if noO else WS_O - 24*128}, v{vTl+1}
            v_cmp_gt_u32 vcc, 24, v0
            v_cndmask_b32 v{vTl}, v{vTl+1}, v{vTl}, vcc
            """)
        if wsl > 30:
            P(f"""
            v_lshlrev_b32 v{vTl+1}, 8, v{vH}
            v_add_u32 v{vTl+1}, {WS_FC - 30*128}, v{vTl+1}
            v_cmp_gt_u32 vcc, 30, v0
            v_cndmask_b32 v{vTl}, v{vTl+1}, v{vTl}, vcc
            """)
        P(f"""
        v_lshl_add_u32 v{vTl}, v0, 7, v{vTl}
        v_cmp_gt_u32 vcc, {wsl}, v0
        v_cndmask_b32 v{vTl}, 2.0, v{vTl}, vcc
        """)
        desc(rWS, 1 << 24)
        P.vm(f"buffer_load_dword v{vTl+1}, v{vTl}, {srd(rWS)}, 0 offen sc1")
    stream = []
    for k in range(16): stream.append(("BK", k))
    for k in range(16): stream.append(("BV", k))
    for k in range(128): stream.append(("AK", k))
    for k in range(128): stream.append(("AV", k))
    NS = len(stream)
    sid = {}; sslot = {}; land = [-1]
    def issue(i):
        kind, k = stream[i]
        if k == 0 and kind == "BV":
            assert st['lgk']
            P(f"""
            s_and_b32 s{sI}, s2, 3
            s_mul_i32 s{sI}, s{sI}, {16384-128}
            s_add_u32 s{sI}, s{sI}, {3*131072}
            s_sub_u32 s{sOff}, s{sOff}, s{sI}
            """)
        elif k == 0 and kind[0] == "A":
            P(f"""
            s_lshr_b32 s{sOff}, s2, 2
            s_lshl_b32 s{sOff}, s{sOff}, 21
            s_and_b32 s{sI}, s2, 3
            s_lshl_b32 s{sI}, s{sI}, {14 if kind == "AK" else 7}
            s_add_u32 s{sOff}, s{sOff}, s{sI}
            """)
        elif k and k % 4 == 0 and kind[0] == "B":
            P(f"s_add_u32 s{sOff}, s{sOff}, {0x20000 if kind == 'BK' else 0x14000}")
        elif k and kind[1] == "V":
            P(f"s_addk_i32 s{sOff}, 0x4000")
        elif k and k % 4 == 0:
            P(f"s_add_u32 s{sOff}, s{sOff}, 0x10000")
        if fcs['start'] is not None:
            P.cwait(sid[i-W], sid[i-WM], [f"s_cmp_gt_i32 s{sBoost}, {i - fcs['start']}"]); land[0] = max(land[0], i-WM)
        elif i >= W:
            P.wait(sid[i-W]); land[0] = max(land[0], i-W)
        s = slots.pop(0); sslot[i] = s
        r, vo = {"BK": (rBK, vKo), "BV": (rBV, vVo), "AK": (rAK, vKo), "AV": (rAV, vVo)}[kind]
        imm = 0 if kind[1] == "V" else [0, 512, 256, 768][k & 3]
        o = f" offset:{imm}" if imm else ""
        sid[i] = P.vm(f"buffer_load_dwordx4 {a4(s)}, v{vo}, {srd(r)}, s{sOff} offen{o} nt")
    freed = []
    def release(i): freed.append(sslot[i])

    def xlane(op, x, t, steps):
        for st in steps:
            if st in ("x1", "x2", "r4", "r8"):
                d = {"x1": "quad_perm:[1,0,3,2]", "x2": "quad_perm:[2,3,0,1]", "r4": "row_ror:4", "r8": "row_ror:8"}[st]
                P(f"{op}_dpp v{x}, v{x}, v{x} {d} {FULL}")
            else:
                P(f"v_mov_b32 v{t}, v{x}")
                P(f"v_permlane{st[1:]}_swap_b32 v{x}, v{t}")
                P(f"{op} v{x}, v{x}, v{t}")
    def tagcheck(Q, tags, stag, mask):
        tags = list(tags)
        if len(tags) % 2: tags.append(tags[-1])
        pairs = list(zip(tags[0::2], tags[1::2]))
        for n, (a, b) in enumerate(pairs):
            d = vT0 if n == 0 else (vT1 if n % 2 else vT2)
            Q(f"v_bitop3_b32 v{d}, v{a}, v{b}, s{stag} bitop3:0x7e")
            if n and n % 2 == 0: Q(f"v_or3_b32 v{vT0}, v{vT0}, v{vT1}, v{vT2}")
            elif n and n == len(pairs)-1: Q(f"v_or_b32 v{vT0}, v{vT0}, v{vT1}")
        if mask: Q(f"v_and_b32 v{vT0}, {mask:#x}, v{vT0}")
        Q(f"v_cmp_ne_u32 vcc, 0, v{vT0}")
    def gather(name, loads, tags, stag, mask):
        ids = []
        def iss():
            if name+"g" in skip: return
            for n, t in enumerate(loads): ids.append(publish(f"{name}{n}", t.replace(" sc1", "")))
        def chk():
            if name+"g" in skip: return
            P.wait(*ids)
            tagcheck(P, tags, stag, mask)
            P(f"s_cbranch_vccnz L_slow_{name}")
            P.label(f"L_back_{name}")
            Q = Prog()
            Q.label(f"L_slow_{name}")
            Q(f"s_add_u32 s{sSpin}, s{sSpin}, 1")
            Q(f"s_cmp_gt_u32 s{sSpin}, 0x40000")
            Q(f"s_cbranch_scc1 L_back_{name}")
            for t in loads: Q.vm(t)
            Q.waitall()
            tagcheck(Q, tags, stag, mask)
            Q(f"s_cbranch_vccnz L_slow_{name}")
            Q(f"s_branch L_back_{name}")
            slow.append(Q)
        return iss, chk
    def publish(name, txt):
        P(f"s_cmp_lg_u32 s{sFar}, 0")
        P(f"s_cbranch_scc1 L_far_{name}")
        i = P.vm(txt)
        P.label(f"L_near_{name}")
        Q = Prog(); Q.label(f"L_far_{name}")
        Q.vm(txt.rstrip() + " sc1")
        Q(f"s_branch L_near_{name}"); slow.append(Q)
        return i
    def extract(D, dst, tau, t):
        rs = [r for r in range(4) if r != tau]
        src = D + tau
        for n, r in enumerate(rs):
            last = n == 2
            m = f"row_mask:0xf bank_mask:{1 << tau:#x}" if last else FULL
            P(f"v_add_f32_dpp v{dst if last else t}, v{D+r}, v{src} row_ror:{(4*(tau-r)) % 16} {m}")
            src = t
    def transp(dst, src, e):
        for q in range(4):
            P(f"v_perm_b32 v{dst+q}, v{src+4*(2*q+1)+(e>>1)}, v{src+4*(2*q)+(e>>1)}, s{sSel1 if e & 1 else sSel0}")
    def sum8(r, dst):
        P(f"""
        v_add_f32 v{r}, v{r}, v{r+1}
        v_add_f32 v{r+2}, v{r+2}, v{r+3}
        v_add_f32 v{r+4}, v{r+4}, v{r+5}
        v_add_f32 v{r+6}, v{r+6}, v{r+7}
        v_add_f32 v{r}, v{r}, v{r+2}
        v_add_f32 v{r+4}, v{r+4}, v{r+6}
        v_add_f32 v{dst}, v{r}, v{r+4}
        """)

    bg = []
    def B(at, fn, after=0): bg.append((at, fn, after))

    vSel = V.get(4); vL12, vPw, vPr, vL4, vXT = [V.get() for _ in range(5)]
    def c_setup():
        P(f"""
        s_load_dword s{sTag}, {sp(rWS)}, 0
        s_load_dwordx2 {sp(rBV)}, s[0:1], 56
        s_load_dwordx2 {sp(rAK)}, s[0:1], 8
        s_load_dwordx2 {sp(rAV)}, s[0:1], 16
        s_load_dwordx2 {sp(rWO)}, s[0:1], s{sKo} offset:32
        s_load_dwordx2 {sp(rOUT)}, s[0:1], 80
        v_and_b32 v{vLane}, 63, v0
        v_mov_b32 v{vBig}, {BIG}
        """)
        if ipf:
            P(f"s_getpc_b64 {sp(rOUT+2)}")
            P(f"v_lshlrev_b32 v{vT0}, 7, v0")
            P(f"v_cmp_gt_u32 vcc, {ipf}, v0")
            P(f"v_cndmask_b32 v{vT0}, 0, v{vT0}, vcc")
            P.vm(f"global_load_dword v{vXT}, v{vT0}, {sp(rOUT+2)}")
        desc(rBV, 1 << 26); desc(rAK, 1 << 27); desc(rAV, 1 << 27); desc(rWO, 3670016); desc(rOUT, 7168)
        P(f"""
        s_mov_b32 s{sSel0}, 0x05040100
        s_mov_b32 s{sSel1}, 0x07060302
        s_mov_b32 s{sC}, {CS:#x}
        s_mov_b32 s{sSpin}, 0
        v_mul_u32_u24 v{vL12}, 12, v{vLane}
        v_lshlrev_b32 v{vL4}, 2, v{vLane}
        v_lshlrev_b32 v{vPw}, 3, v0
        v_and_b32 v{vPr}, 3, v0
        v_bfe_u32 v{vT0}, v0, 3, 2
        v_lshl_add_u32 v{vPr}, v{vPr}, 2, v{vT0}
        v_lshrrev_b32 v{vT0}, 6, v0
        v_lshl_add_u32 v{vPr}, v{vT0}, 4, v{vPr}
        v_bfe_u32 v{vT0}, v0, 2, 1
        v_lshl_add_u32 v{vPr}, v{vPr}, 1, v{vT0}
        v_bfe_u32 v{vT0}, v0, 5, 1
        v_lshl_add_u32 v{vPr}, v{vT0}, 8, v{vPr}
        v_lshlrev_b32 v{vPr}, 2, v{vPr}
        v_lshrrev_b32 v{vT0}, 3, v0
        v_and_b32 v{vT1}, 7, v0
        v_lshlrev_b32 v{vVo}, 9, v{vT0}
        v_lshl_add_u32 v{vVo}, v{vT1}, 4, v{vVo}
        v_and_b32 v{vT0}, 1, v{vT0}
        v_mul_u32_u24 v{vT0}, 0x0202, v{vT0}
        v_add_u32 v{vT0}, 0x0100, v{vT0}
        v_or_b32 v{vT2}, 0x0c0c0000, v{vT0}
        v_lshlrev_b32 v{vT0}, 16, v{vT0}
        v_or_b32 v{vT0}, 0x0c0c, v{vT0}
        """)
        vcc(0xaaaaaaaa)
        P(f"v_cndmask_b32 v{vT0}, v{vT2}, v{vT0}, vcc")
        P(f"v_mov_b32 v{vT2}, 0x0c0c0c0c")
        for r in range(4):
            vcc(0x03030303 << (2*r)); P(f"v_cndmask_b32 v{vSel+r}, v{vT2}, v{vT0}, vcc")

    vQD = V.get(32, 4); vTB = [V.get(4, 4), V.get(4, 4)]
    def proj_write(dst, tmp):
        for e0 in (0, 4):
            for n in range(3):
                for e in range(e0, e0+4):
                    D = vQD + 4*e; tau = e & 3
                    r = [x for x in range(4) if x != tau][n]
                    m = f"row_mask:0xf bank_mask:{1 << tau:#x}" if n == 2 else FULL
                    P(f"v_add_f32_dpp v{dst+(e >> 2) if n == 2 else tmp+tau}, v{D+r}, v{tmp+tau if n else D+tau} row_ror:{(4*(tau-r)) % 16} {m}")
        P(f"ds_write_b64 v{vPw}, {v2(dst)} offset:{L_QRED}")
        P("s_waitcnt lgkmcnt(0)")
    def proj_read(r):
        P("s_barrier")
        P(f"ds_read2st64_b32 {v2(r)}, v{vPr} offset0:{L_QRED//256} offset1:{L_QRED//256+2}")
    def proj_sum(r):
        P("s_waitcnt lgkmcnt(0)")
        P(f"v_add_f32 v{r}, v{r}, v{r+1}")
        xlane("v_add_f32", r, r+1, ["p32"])
    vFl, vFs, vFd, vFt = vXo, vWQo, V.get(), V.get()
    sFm = S.get(2)
    def tag_setup():
        P(f"""
        s_add_u32 s{sTag}, s{sTag}, 0x9e3779b9
        """)
    def fc_setup():
        P(f"""
        ; one line per (class, wave, checkpoint): a dword for each of the 32 workgroups of the class
        s_bfe_u32 s{sFC}, s2, 0x30003
        s_lshl2_add_u32 s{sFC}, s{sFC}, s{sWv}
        s_lshl_b32 s{sFC}, s{sFC}, 11
        s_add_u32 s{sFC}, s{sFC}, {WS_FC}
        s_and_b32 s{sI}, s2, 7
        s_lshr_b32 s{sBoost}, s2, 6
        s_lshl3_add_u32 s{sI}, s{sBoost}, s{sI}
        v_cmp_eq_u32 {sp(sFm)}, s{sI}, v{vLane}
        v_cndmask_b32 v{vFs}, v{vBig}, v{vL4}, {sp(sFm)}
        v_cmp_gt_u32 {sp(sFm)}, 32, v{vLane}
        v_cndmask_b32 v{vFl}, v{vBig}, v{vL4}, {sp(sFm)}
        """)
    hid = []
    def c_hello2():
        P(f"v_and_b32 v{vH}, 0xe0, v{vH}")
        P(f"v_and_or_b32 v{vH}, v0, 31, v{vH}")
        hid.append(P.vm(f"global_load_ubyte v{vH}, v{vH}, {sp(sDbg)}"))
    def c_q():
        P.wait(*idwq)
        stamp("wq")
        for e in range(8):
            transp(vTB[e & 1], vWQ, e)
            P(f"v_mfma_f32_16x16x32_bf16 {v4(vQD+4*e)}, {v4(vX)}, {v4(vTB[e & 1])}, 0")
        proj_write(vWQ, vWQ+4)
        return 'lgk'
    def c_q4():
        r = vWQ
        proj_read(r)
        tag_setup()
        P(f"""
        s_lshr_b32 s{sT0}, s2, 7
        s_lshl2_add_u32 s{sT0}, s{sT0}, s{sWv}
        s_lshl_b32 s{sT0}, s{sT0}, 7
        s_add_u32 s{sT0}, s{sT0}, s{sCB}
        s_lshl_b32 s{sT0}, s{sT0}, 7
        s_add_u32 s{sT0}, s{sT0}, {WS_Q}
        v_mov_b32 v{r+9}, s{sTag}
        """)
        proj_sum(r)
        if True:
            P.wait(*hid)
            P(f"""
            ; class-local hand-offs go through L2 only if all 32 workgroups of the class were seen to report this XCC
            v_cmp_ne_u32 vcc, v{vH}, v{vH+1}
            s_mov_b32 s{sFar}, vcc_lo
            """)
            if forcefar: P(f"s_mov_b32 s{sFar}, 1")
        P(f"""
        v_mov_b32_dpp v{r+1}, v{r} quad_perm:[1,0,3,2] {FULL}
        v_cvt_pk_bf16_f32 v{r+8}, v{r}, v{r+1}
        s_mov_b32 exec_lo, 0x55555555
        s_mov_b32 exec_hi, 0
        """)
        publish("q", f"buffer_store_dwordx2 {v2(r+8)}, v{vL4}, {srd(rWS)}, s{sT0} offen")
        P("s_mov_b64 exec, -1")
        stamp("qpub")
        return 'tag'
    B(W-1, c_wsw); B(0, c_setup); B(hello, c_hello2)
    B(len(first) - 2 + (W if len(first) > 1 else 0), c_q); B(hello + W + 1, c_q4, 1)

    vQA = V.get(32, 4); vQB = V.get(16, 4)
    vG = vQD
    vGo = V.get(2); sG = [S.get() for _ in range(8)]
    ql = [f"buffer_load_dwordx4 {v4(vG+8*u+4*hf)}, v{vGo}, {srd(rWS)}, s{sG[0]} offen offset:{512*u+16*hf} sc1" for u in range(2) for hf in range(2)]
    ql += [f"buffer_load_dwordx4 {v4(vG+16+8*u+4*hf)}, v{vGo+1}, {srd(rWS)}, s{sG[1]} offen offset:{512*u+16*hf} sc1" for u in range(2) for hf in range(2)]
    q_iss, q_chk = gather("q", ql, range(vG+1, vG+32, 2), sTag, None)
    def c_qg():
        P(f"""
        v_lshrrev_b32 v{vGo}, 2, v{vLane}
        v_lshlrev_b32 v{vGo}, 5, v{vGo}
        v_bfe_u32 v{vT0}, v{vLane}, 1, 1
        v_lshl_add_u32 v{vGo+1}, v{vT0}, 10, v{vGo}
        s_lshr_b32 s{sG[0]}, s2, 2
        s_lshl_b32 s{sG[0]}, s{sG[0]}, 10
        s_add_u32 s{sG[0]}, s{sG[0]}, {WS_Q}
        s_lshr_b32 s{sG[1]}, s2, 3
        s_lshl_b32 s{sG[1]}, s{sG[1]}, 11
        s_add_u32 s{sG[1]}, s{sG[1]}, {WS_Q + 4*16384}
        """)
        q_iss()
    def c_qb():
        q_chk(); stamp("qgot")
        for t in range(4):
            vcc(0x11111111 << t)
            for u in range(2):
                for q in range(4): P(f"v_cndmask_b32 v{vQA+16*u+4*t+q}, 0, v{vG+8*u+2*q}, vcc")
        for t in range(2):
            vcc(0x55555555 << t)
            for u in range(2):
                for q in range(4): P(f"v_cndmask_b32 v{vQB+8*u+4*t+q}, 0, v{vG+16+8*u+2*q}, vcc")
        return 'kok'
    B(qg, c_qg); B(0, c_qb, WM+1)

    vD = [V.get(4, 4) for _ in range(4)]
    vSB = V.get()
    def c_bqk():
        P.wait(sid[15])
        D = vWQ
        for tau in range(4):
            for n in range(4):
                t, u = n & 1, n >> 1
                P(f"v_mfma_f32_16x16x32_bf16 {v4(D+4*tau)}, {a4(sslot[4*tau+n])}, {v4(vQB+8*u+4*t)}, {v4(D+4*tau) if n else 0}")
                release(4*tau+n)
        for tau in range(4): extract(D+4*tau, vSB, tau, vT0)
        P(f"""
        v_cvt_pk_bf16_f32 v{vSB}, v{vSB}, v{vSB}
        v_mov_b32 v{vT0}, 0xffff
        v_bfi_b32 v{vSB}, v{vT0}, s{sTag}, v{vSB}
        """)
    B(15+WM, c_bqk)

    vWO = V.get(32, 4); vWOo = V.get()
    def wo_load(j):
        if j == 4: P(f"s_addk_i32 s{sAux}, {4*896}")
        if "wo" not in skip:
            P.vm(f"buffer_load_dwordx4 {v4(vQD+4*j)}, v{vWOo}, {srd(rWO)}, s{sAux} offen offset:{896*(j & 3)} {woflag}")

    vSA = V.get(4, 4)
    pend = []
    def k_consume(i):
        k = i - 32
        unit, n = k >> 4, k & 15
        t, u, par = n >> 2, (n >> 1) & 1, n & 1
        D = vD[2*(unit & 1) + par]
        first = (t == 0 and u == 0)
        P(f"v_mfma_f32_16x16x32_bf16 {v4(D)}, {a4(sslot[i])}, {v4(vQA+16*u+4*t)}, {0 if first else v4(D)}")
        release(i)
        while pend and n >= 2:
            pend.pop(0)()
        if n == 15:
            for p_ in range(2):
                pend.append(lambda p_=p_, unit=unit: extract(vD[2*(unit & 1)+p_], vSA + 2*(unit >> 2) + p_, unit & 3, vXT))
            if k == 127:
                while pend: pend.pop(0)()
                c_spub()
    def c_spub():
        o = vD[0]
        P(f"""
        s_lshl2_add_u32 s{sI}, s2, s{sWv}
        s_mul_i32 s{sI}, s{sI}, 768
        s_add_u32 s{sI}, s{sI}, {WS_SC}
        v_cvt_pk_bf16_f32 v{o}, v{vSA}, v{vSA+1}
        v_cvt_pk_bf16_f32 v{o+1}, v{vSA+2}, v{vSA+3}
        v_mov_b32 v{o+2}, v{vSB}
        """)
        if "scs" not in skip: publish("sc", f"buffer_store_dwordx3 {v3(o)}, v{vL12}, {srd(rWS)}, s{sI} offen")
        stamp("scpub")
    vSG = vWQ
    vE = vQA; vEB = vQA + 16
    vP = V.get(8, 4); vPB = vQB + 4; vM, vL, vMB, vLB = vQB, vQB+1, vQB+2, vQB+3
    vWt, vWtB, vFF = vQB+8, vQB+9, vQB+10
    sl = [f"buffer_load_dwordx3 {v3(vSG+4*k)}, v{vL12}, {srd(rWS)}, s{sG[k]} offen sc1" for k in range(4)]
    sl += [f"buffer_load_dword v{vSG+16+k}, v{vL12}, {srd(rWS)}, s{sG[4+k]} offen offset:8 sc1" for k in range(4)]
    sbr = [vSG+4*k+2 for k in range(4)] + [vSG+16+k for k in range(4)]
    s_iss, s_chk = gather("sc", sl, sbr, sTag, 0xffff)
    def c_sg():
        P(f"""
        s_and_b32 s{sT0}, s2, 0xfc
        s_lshl2_add_u32 s{sT0}, s{sT0}, s{sWv}
        s_xor_b32 s{sT1}, s{sT0}, 16
        s_mul_i32 s{sT0}, s{sT0}, 768
        s_mul_i32 s{sT1}, s{sT1}, 768
        s_add_u32 s{sG[0]}, s{sT0}, {WS_SC}
        s_add_u32 s{sG[4]}, s{sT1}, {WS_SC}
        """)
        for k in (1, 2, 3, 5, 6, 7): P(f"s_add_u32 s{sG[k]}, s{sG[k-1]}, 3072")
        s_iss()
    def c_sm1():
        s_chk(); stamp("scgot")
        for r in range(8):
            src = vSG + 4*(r >> 1) + (r & 1)
            P(f"v_lshlrev_b32 v{vE+2*r}, 16, v{src}")
            P(f"v_and_b32 v{vE+2*r+1}, 0xffff0000, v{src}")
        P(f"v_max3_f32 v{vM}, v{vE}, v{vE+1}, v{vE+2}")
        for r in range(3, 15, 2): P(f"v_max3_f32 v{vM}, v{vM}, v{vE+r}, v{vE+r+1}")
        P(f"v_max_f32 v{vM}, v{vM}, v{vE+15}")
        xlane("v_max_f32", vM, vT0, ["x1", "x2", "r4", "r8", "p16", "p32"])
        P(f"v_mul_f32 v{vM}, s{sC}, v{vM}")
        for r in range(16):
            P(f"v_fma_f32 v{vE+r}, v{vE+r}, s{sC}, -v{vM}")
            P(f"v_exp_f32 v{vE+r}, v{vE+r}")
        for r in range(8): P(f"v_cvt_pk_bf16_f32 v{vP+r}, v{vE+2*r}, v{vE+2*r+1}")
        return 'vok'
    def c_sm3():
        for r in range(8): P(f"v_add_f32 v{vE+r}, v{vE+r}, v{vE+8+r}")
        sum8(vE, vL)
        xlane("v_add_f32", vL, vT0, ["x1", "x2", "r4", "r8", "p16", "p32"])
    def c_sb1():
        for k in range(8): P(f"v_and_b32 v{vEB+k}, 0xffff0000, v{sbr[k]}")
        P(f"v_max3_f32 v{vMB}, v{vEB}, v{vEB+1}, v{vEB+2}")
        P(f"v_max3_f32 v{vMB}, v{vMB}, v{vEB+3}, v{vEB+4}")
        P(f"v_max3_f32 v{vMB}, v{vMB}, v{vEB+5}, v{vEB+6}")
        P(f"v_max_f32 v{vMB}, v{vMB}, v{vEB+7}")
        xlane("v_max_f32", vMB, vT0, ["x1", "r4", "r8", "p16", "p32"])
        P(f"v_mul_f32 v{vMB}, s{sC}, v{vMB}")
        for k in range(8):
            P(f"v_fma_f32 v{vEB+k}, v{vEB+k}, s{sC}, -v{vMB}")
            P(f"v_exp_f32 v{vEB+k}, v{vEB+k}")
        for k in range(4):
            P(f"v_mov_b32_dpp v{vT0}, v{vEB+k} quad_perm:[1,0,3,2] {FULL}")
            P(f"v_cvt_pk_bf16_f32 v{vPB+k}, v{vEB+k}, v{vT0}")
        sum8(vEB, vLB)
        xlane("v_add_f32", vLB, vT0, ["x1", "r4", "r8", "p16", "p32"])
        P(f"""
        v_bfe_u32 v{vT0}, v{vLane}, 1, 1
        v_lshlrev_b32 v{vT0}, 6, v{vT0}
        s_lshl_b32 s{sT0}, s{sWv}, 4
        v_add_u32 v{vT0}, s{sT0}, v{vT0}
        ds_write_b128 v{vT0}, {v4(vM)} offset:{L_ST}
        """)
    vBc = [V.get(), V.get()]
    vTC = [V.get(4, 4), V.get(4, 4)]
    def pvop(bc, dst, src, lane):
        P(f"v_mov_b32_dpp v{bc}, v{src} row_newbcast:{lane} {FULL}")
        for q in range(4): P(f"v_perm_b32 v{dst+q}, v{bc}, v{bc}, v{vSel+q}")
    def c_bpv():
        for k in range(4):
            for tau in range(4):
                i = 16 + 4*tau + k
                for hd in range(2): pvop(vT0+hd, vTC[hd], vPB+k, 4*tau + 2*hd)
                for hd in range(2):
                    P(f"v_mfma_f32_16x16x32_bf16 {v4(vD[2+hd])}, {a4(sslot[i])}, {v4(vTC[hd])}, {v4(vD[2+hd]) if i > 16 else 0}")
                release(i)
    assert vT1 == vT0 + 1
    vAw, vAr = V.get(), V.get()
    def c_sm4():
        s_ = vE
        P(f"""
        v_bfe_u32 v{vT0}, v{vLane}, 1, 1
        v_lshlrev_b32 v{vT0}, 6, v{vT0}
        s_waitcnt lgkmcnt(0)
        s_barrier
        """)
        for k in range(4): P(f"ds_read_b128 {v4(s_+4*k)}, v{vT0} offset:{L_ST+16*k}")
        P(f"""
        v_lshrrev_b32 v{vAw}, 4, v0
        v_lshlrev_b32 v{vAw}, 7, v{vAw}
        v_and_b32 v{vT1}, 7, v{vLane}
        v_lshl_add_u32 v{vAw}, v{vT1}, 4, v{vAw}
        v_and_b32 v{vAr}, 32, v{vLane}
        v_lshl_add_u32 v{vAr}, v{vT1}, 2, v{vAr}
        v_bfe_u32 v{vT1}, v{vLane}, 3, 2
        v_add_lshl_u32 v{vAr}, v{vAr}, v{vT1}, 2
        s_min_u32 s{sT0}, s{sWv}, 2
        s_lshl_b32 s{sT0}, s{sT0}, 11
        v_add_u32 v{vAr}, s{sT0}, v{vAr}
        v_mov_b32 v{vFF}, 0xff
        s_waitcnt lgkmcnt(0)
        """)
        for o, m, wt in ((0, vM, vWt), (2, vMB, vWtB)):
            P(f"v_max3_f32 v{vT0}, v{s_+o}, v{s_+4+o}, v{s_+8+o}")
            P(f"v_max_f32 v{vT0}, v{vT0}, v{s_+12+o}")
            for k in range(4):
                P(f"v_sub_f32 v{s_+4*k+o}, v{s_+4*k+o}, v{vT0}")
                P(f"v_exp_f32 v{s_+4*k+o}, v{s_+4*k+o}")
            P(f"v_sub_f32 v{wt}, v{m}, v{vT0}")
            P(f"v_exp_f32 v{wt}, v{wt}")
            P(f"v_mul_f32 v{vT1}, v{s_+o}, v{s_+o+1}")
            for k in range(1, 4): P(f"v_fmac_f32 v{vT1}, v{s_+4*k+o}, v{s_+4*k+o+1}")
            P(f"v_rcp_f32 v{vT1}, v{vT1}")
            P(f"v_mul_f32 v{wt}, v{wt}, v{vT1}")
    def red_write(lst):
        P("s_mov_b32 exec_lo, 0x00ff00ff")
        P("s_mov_b32 exec_hi, 0xff00ff00")
        for acc, reg in lst: P(f"ds_write_b128 v{vAw}, {v4(acc)} offset:{L_RED+2048*reg}")
        P("s_mov_b64 exec, -1")
    def c_br1():
        for hd in range(2):
            for q in range(4):
                P(f"v_mul_f32_dpp v{vD[2+hd]+q}, v{vWtB}, v{vD[2+hd]+q} quad_perm:[{2*hd},{2*hd},{2*hd},{2*hd}] {FULL}")
        red_write([(vD[2], 1), (vD[3], 2)])
        stamp("ybdone")
    def c_br2():
        r = vWQ
        P("s_waitcnt lgkmcnt(0)")
        P("s_barrier")
        for k in range(4): P(f"ds_read2st64_b32 {v2(r+2*k)}, v{vAr} offset0:{L_RED//256+2*k} offset1:{L_RED//256+2*k+1}")
        P(f"""
        v_add_u32 v{vT0}, 64, v0
        v_and_b32 v{vT0}, 128, v{vT0}
        v_cmp_ne_u32 vcc, 0, v{vT0}
        v_cndmask_b32 v{vT0}, v{vBig}, v{vL4}, vcc
        s_waitcnt lgkmcnt(0)
        """)
        sum8(r, r)
        P(f"v_bfi_b32 v{r}, v{vFF}, s{sTag}, v{r}")
        publish("ob", f"buffer_store_dword v{r}, v{vT0}, {srd(rWS)}, s{sOp} offen")
    vOg, vOo, vYo = vGo+1, vL12, vGo
    vY0, vY1, vBp = V.get(), V.get(), V.get()
    sOp, sOg, sYp, sYg, sOutO = sG[0:5]
    sYx, sOwn = rX, rX+2
    def c_fin():
        P(f"""
        ; O table [x][slot: A, B kh0, B kh1][b][512] dwords
        s_bfe_u32 s{sT0}, s2, 0x30003
        s_mul_i32 s{sOg}, s{sT0}, {3*8192}
        s_add_u32 s{sOg}, s{sOg}, {WS_O}
        s_lshr_b32 s{sT0}, s2, 6
        s_lshl_b32 s{sT0}, s{sT0}, 11
        s_add_u32 s{sOp}, s{sOg}, s{sT0}
        ; wave 0: A row block t ; waves 1,2: slot 1+kh, row block 4*(wave-1)+s
        s_and_b32 s{sT0}, s2, 4
        s_lshl_b32 s{sT0}, s{sT0}, 3
        s_lshl2_add_u32 s{sT0}, s{sWv}, s{sT0}
        s_and_b32 s{sT1}, s2, 3
        s_add_u32 s{sT0}, s{sT0}, s{sT1}
        s_addk_i32 s{sT0}, 28
        s_and_b32 s{sT1}, s2, 7
        s_cmp_eq_u32 s{sWv}, 0
        s_cselect_b32 s{sT0}, s{sT1}, s{sT0}
        s_lshl_b32 s{sT0}, s{sT0}, 8
        s_add_u32 s{sOp}, s{sOp}, s{sT0}
        s_lshr_b32 s{sT0}, s2, 7
        s_lshl_b32 s{sT0}, s{sT0}, 13
        s_add_u32 s{sOg}, s{sOg}, s{sT0}
        s_and_b32 s{sT1}, s{sCB}, 1
        s_lshl_b32 s{sT1}, s{sT1}, 10
        s_add_u32 s{sOg}, s{sOg}, s{sT1}
        v_bfe_u32 v{vT0}, v0, 1, 1
        v_mul_lo_u32 v{vOg}, v{vT0}, s{sT0}
        v_bfe_u32 v{vT0}, v0, 2, 2
        v_lshl_add_u32 v{vOg}, v{vT0}, 11, v{vOg}
        v_lshrrev_b32 v{vT0}, 4, v0
        v_lshl_add_u32 v{vOg}, v{vT0}, 6, v{vOg}
        v_and_b32 v{vT0}, 1, v0
        v_lshl_add_u32 v{vOg}, v{vT0}, 5, v{vOg}
        ; wo lane (row group tid>>3, 16-byte chunk tid&7)
        v_lshrrev_b32 v{vT0}, 3, v0
        v_mul_u32_u24 v{vWOo}, {8*896}, v{vT0}
        v_and_b32 v{vT0}, 7, v0
        v_lshl_add_u32 v{vWOo}, v{vT0}, 4, v{vWOo}
        s_and_b32 s{sT1}, s{sCB}, 15
        v_mov_b32 v{vT1}, s{sT1}
        v_cmp_gt_u32 vcc, 14, v{vT1}
        v_cndmask_b32 v{vWOo}, v{vBig}, v{vWOo}, vcc
        s_lshr_b32 s{sT0}, s{sCB}, 4
        s_and_b32 s{sAux}, s{sCB}, 1
        s_lshl1_add_u32 s{sAux}, s{sT0}, s{sAux}
        s_mul_i32 s{sAux}, s{sAux}, {256*896}
        s_and_b32 s{sT0}, s{sCB}, 14
        s_lshl_b32 s{sT0}, s{sT0}, 6
        s_add_u32 s{sAux}, s{sAux}, s{sT0}
        v_lshlrev_b32 v{vPw}, 4, v0
        v_and_b32 v{vPr}, 1, v0
        v_bfe_u32 v{vT1}, v0, 3, 3
        v_lshl_add_u32 v{vPr}, v{vPr}, 3, v{vT1}
        v_lshrrev_b32 v{vT1}, 6, v0
        v_lshl_add_u32 v{vPr}, v{vT1}, 4, v{vPr}
        v_bfe_u32 v{vT1}, v0, 1, 2
        v_lshl_add_u32 v{vPr}, v{vPr}, 2, v{vT1}
        v_lshlrev_b32 v{vPr}, 2, v{vPr}
        v_lshlrev_b32 v{vOo}, 3, v{vT0}
        v_bfe_u32 v{vT0}, v{vLane}, 4, 1
        v_lshl_add_u32 v{vOo}, v{vT0}, 2, v{vOo}
        v_lshrrev_b32 v{vT0}, 5, v{vLane}
        v_lshl_add_u32 v{vOo}, v{vT0}, 1, v{vOo}
        v_mul_u32_u24 v{vYo}, {8192-128}, v{vT0}
        v_add_u32 v{vYo}, v{vYo}, v{vL4}
        s_lshr_b32 s{sT0}, s2, 7
        s_mul_i32 s{sT0}, s{sT0}, 14
        s_add_u32 s{sT0}, s{sT0}, s{sT1}
        s_lshl_b32 s{sOutO}, s{sT0}, 6
        s_mul_i32 s{sYp}, s{sWv}, 1792
        s_add_u32 s{sOutO}, s{sOutO}, s{sYp}
        s_lshl2_add_u32 s{sT0}, s{sT0}, s{sWv}
        s_lshl_b32 s{sT0}, s{sT0}, 11
        s_add_u32 s{sYg}, s{sT0}, {WS_Y}
        s_and_b32 s{sT1}, s{sCB}, 1
        s_mul_i32 s{sT0}, s{sT1}, {8192-1024}
        s_sub_u32 s{sYp}, s{sYg}, s{sT0}
        s_lshr_b32 s{sT0}, s{sCB}, 4
        s_lshl_b32 s{sI}, s{sT0}, 7
        s_add_u32 s{sYp}, s{sYp}, s{sI}
        ; block m is summed by its workgroup of class m&7, which keeps that half of its own result in registers
        s_lshl_b32 s{sI}, s{sT0}, 3
        s_lshl_b64 {sp(sOwn)}, 0xff, s{sI}
        s_lshl_b32 s{sI}, s{sT1}, 7
        v_lshl_add_u32 v{vBp}, v{vOo}, 1, s{sI}
        s_xor_b32 s{sI}, s{sT1}, 1
        s_lshl_b32 s{sI}, s{sI}, 10
        v_lshlrev_b32 v{vY0}, 4, v{vLane}
        v_add_u32 v{vY1}, 1024, v{vY0}
        v_add_u32 v{vT0}, s{sI}, v{vY0}
        v_cndmask_b32 v{vY0}, v{vY0}, v{vT0}, {sp(sOwn)}
        v_cndmask_b32 v{vY1}, v{vY1}, v{vT0}, {sp(sOwn)}
        s_sub_u32 s{sYx}, 0, s{sT1}
        s_not_b32 s{sYx+1}, s{sYx}
        s_and_b32 s{sT1}, s{sCB}, 7
        s_cmp_eq_u32 s{sT0}, s{sT1}
        s_cselect_b64 {sp(sYx)}, {sp(sYx)}, -1
        """)
    B(160+sg, c_sg); B(0, c_sm1, WM+1); B(0, c_sm3); B(0, c_sb1); B(0, c_bpv); B(0, c_sm4); B(0, c_br1); B(0, c_fin)
    def c_yw():
        if yw[1] == "c":
            P(f"""
            s_cmp_eq_u64 {sp(sYx)}, -1
            s_cselect_b32 s{sT0}, 0, 16
            v_lshlrev_b32 v{vT0}, 7, v{vLane}
            v_cmp_gt_u32 vcc, s{sT0}, v{vLane}
            v_cndmask_b32 v{vT0}, v{vBig}, v{vT0}, vcc
            """)
            P.vm(f"buffer_load_dword v{vTl+1}, v{vT0}, {srd(rWS)}, s{sYg} offen sc1")
        else:
            P.vm(f"buffer_load_dword v{vTl+1}, v{vYo}, {srd(rWS)}, s{sYp} offen sc1")
    if yw and yw[0] < bpub: B(yw[0], c_yw)
    B(bpub, c_br2)
    if yw and yw[0] >= bpub: B(yw[0], c_yw)

    vAcc = vD[1]
    prepared = set()
    def v_prep(i):
        v = i - 160
        if i < NS and i not in prepared:
            pvop(vBc[v & 1], vTB[v & 1], vP + 2*(v & 3) + (v >> 6), (v >> 2) & 15); prepared.add(i)
    def v_consume(i):
        v = i - 160
        v_prep(i)
        P.wait(sid[i])
        P(f"v_mfma_f32_16x16x32_bf16 {v4(vAcc)}, {a4(sslot[i])}, {v4(vTB[v & 1])}, {v4(vAcc) if v else 0}")
        release(i)
        v_prep(i+1)

    def fc_step(i):
        if i in cps:
            c = cps.index(i)
            if c == 0:
                assert st['tag']
                fc_setup()
                P(f"v_mov_b32 v{vFt}, s{sTag}")
            fcs['ids'][c] = P.vm(f"buffer_load_dword v{vFd}, v{vFl}, {srd(rWS)}, s{sFC} offen offset:{128*c}")
            P.vm(f"buffer_store_dword v{vFt}, v{vFs}, {srd(rWS)}, s{sFC} offen offset:{128*c}")
        if i - WM - 1 in cps:
            c = cps.index(i - WM - 1)
            P.wait(fcs['ids'].pop(c))
            g = int(round(fc['gain'] * fc['Pd'] / 32 * 256))
            P(f"""
            v_cmp_eq_u32 {sp(sFm)}, v{vFt}, v{vFd}
            s_bcnt1_i32_b32 s{sBoost}, s{sFm}
            s_sub_i32 s{sBoost}, s{sBoost}, {int(fc['r0'] * 32)}
            s_mul_i32 s{sBoost}, s{sBoost}, {g}
            """)
            P(f"s_ashr_i32 s{sBoost}, s{sBoost}, 8")
            fcs['start'] = i + 1

    nk, nv = 32, 160
    jw = 0
    bi = 0; lastbg = -1
    cur = None
    def consume_one():
        nonlocal nk, nv
        if st['kok'] and nk < 160 and nk <= land[0]:
            k_consume(nk); nk += 1
        elif st['vok'] and nv <= land[0]:
            v_consume(nv); nv += 1
        else: return False
        slots.extend(freed); freed.clear()
        return True
    def splittable(items, n):
        full = True; open_br = False
        for it in items[:n]:
            if it[0] == 'i':
                t = it[1]
                if t.startswith(('s_mov_b32 exec', 's_mov_b64 exec')): full = t.endswith('-1') and 'b64' in t
                if t.startswith('s_cbranch_scc'): open_br = True
            elif it[0] == 'l': open_br = False
        last = items[n-1]
        if last[0] == 'i' and last[1].startswith(('s_cmp', 's_cbranch', 's_getpc')): return False
        return full and not open_br
    minfree = 99
    for i in range(NS):
        m0 = len(P.ir)
        issue(i); fc_step(i)
        if i + 1 < len(first):
            for _ in range(first[i+1]): wq_load()
        minfree = min(minfree, len(slots))
        used = lambda: sum(cost(x) for x in P.ir[m0:])
        consume_one()
        lim = 10**9 if i == W-1 else budget
        while True:
            if cur is None:
                if bi < len(bg) and bg[bi][0] <= i and lastbg + bg[bi][2] <= i and used() < lim:
                    keep = P.ir; P.ir = []
                    flag = bg[bi][1]()
                    cur = [P.ir, flag, list(freed), 0]; freed.clear(); P.ir = keep; bi += 1
                    if bg[bi-1][1] not in (c_setup, c_wsw, c_hello2): lim = min(lim, used() + budget) if i == W-1 else lim
                else: break
            items = cur[0]; n = cur[3]; u = used()
            while n < len(items) and not (u >= lim and n > cur[3] and splittable(items, n)):
                u += cost(items[n]); n += 1
            P.ir.extend(items[cur[3]:n]); cur[3] = n
            if n < len(items): break
            if cur[1]: st[cur[1]] = True
            slots.extend(cur[2]); cur = None; lastbg = i
        c = 1
        while c < maxcatch and (used() < budget or len(slots) < 3) and consume_one(): c += 1
    assert bi == len(bg) and cur is None and nk == 160, (bi, len(bg), nk)
    stamp("lastiss")
    if tpad is not None:
        P("s_branch L_tail"); P.raw(f".p2align {tpad[0]}")
        if tpad[1]: P.raw(f".fill {tpad[1]}, 4, 0xbf800000")
        P.label("L_tail")
    while nv < NS:
        for _ in range(wolate):
            if jw < 8: wo_load(jw); jw += 1
        v_consume(nv); nv += 1
    while jw < 8: wo_load(jw); jw += 1
    stamp("vdone")

    r = vWQ
    for q in range(4): P(f"v_mul_f32 v{vAcc+q}, v{vAcc+q}, v{vWt}")
    red_write([(vAcc, 0)])
    P("s_waitcnt lgkmcnt(0)")
    P("s_barrier")
    P(f"s_cmp_lg_u32 s{sWv}, 0")
    P("s_cbranch_scc1 L_near_o")
    for k in range(4): P(f"ds_read2st64_b32 {v2(r+2*k)}, v{vAr} offset0:{L_RED//256+2*k} offset1:{L_RED//256+2*k+1}")
    P("s_waitcnt lgkmcnt(0)")
    sum8(r, r)
    P(f"v_bfi_b32 v{r}, v{vFF}, s{sTag}, v{r}")
    publish("o", f"buffer_store_dword v{r}, v{vL4}, {srd(rWS)}, s{sOp} offen")
    stamp("opub")
    P(f"""
    s_and_b32 s{sT0}, s{sCB}, 15
    s_cmp_ge_u32 s{sT0}, 14
    s_cbranch_scc1 L_done
    """)
    g = vQA; sMiss = sFm
    def ppoll(Q, name, lds, sets, dst, mid=None):
        n = len(lds); D = len(sets)
        for k in range(n): Q(lds[k].replace("@", v4(sets[0]+4*k)))
        Q(f"s_mov_b64 {sp(sMiss)}, -1")
        if mid: mid(Q, n)
        if D > 1:
            Q(f"s_not_b32 s{sT0}, s{sTag}")
            for b in sets[1:]: Q(f"v_mov_b32 v{b}, s{sT0}")
        Q.label(f"L_poll{name}")
        for d in list(range(1, D)) + [0]:
            b = sets[d]
            Q(f"s_waitcnt vmcnt({n*(D-1)})")
            tagcheck(Q, range(b, b+4*n), sTag, 0xff)
            Q("s_wqm_b64 vcc, vcc")
            Q(f"s_andn2_b64 exec, {sp(sMiss)}, vcc")
            for k in range(4*n): Q(f"v_and_b32 v{dst+k}, 0xffffff00, v{b+k}")
            Q(f"s_and_b64 {sp(sMiss)}, {sp(sMiss)}, vcc")
            Q(f"s_cbranch_scc0 L_got{name}")
            Q(f"s_mov_b64 exec, {sp(sMiss)}")
            for k in range(n): Q(lds[k].replace("@", v4(b+4*k)))
            Q("s_mov_b64 exec, -1")
        Q(f"s_add_u32 s{sSpin}, s{sSpin}, 1")
        Q(f"s_cmp_gt_u32 s{sSpin}, 0x20000")
        Q(f"s_cbranch_scc0 L_poll{name}")
        Q.label(f"L_got{name}")
        Q("s_mov_b64 exec, -1")
    def mid(Q, n):
        for q in range(4):
            Q(f"s_waitcnt vmcnt({n + 6 - 2*q})")
            for e in range(8):
                Q(f"v_perm_b32 v{vWO+4*e+q}, v{vQD+4*(2*q+1)+(e>>1)}, v{vQD+4*(2*q)+(e>>1)}, s{sSel1 if e & 1 else sSel0}")
    ppoll(P, "O", [f"buffer_load_dwordx4 @, v{vOg}, {srd(rWS)}, s{sOg} offen offset:{16*k} sc1" for k in range(2)], [g+8, g+16, g+24][:DO], g, mid)
    P("s_cmp_ge_u32 s2, 128")
    P("s_cbranch_scc1 L_addB")
    P.label("L_proj")
    Q = Prog(); Q.label("L_addB")
    for k in range(8): Q(f"v_add_f32_dpp v{g+k}, v{g+k}, v{g+k} quad_perm:[2,3,0,1] {FULL}")
    Q("s_branch L_proj"); slow.insert(0, Q)
    stamp("ogot")
    for q in range(4): P(f"v_cvt_pk_bf16_f32 v{vX+q}, v{g+2*q}, v{g+2*q+1}")
    for e in range(8): P(f"v_mfma_f32_16x16x32_bf16 {v4(vQD+4*e)}, {v4(vX)}, {v4(vWO+4*e)}, 0")
    for e in range(8):
        h = e & 1
        P(f"v_add_f32_dpp v{r+(e >> 1)}, v{vQD+4*e+1-h}, v{vQD+4*e+h} row_ror:8 row_mask:0xf bank_mask:{0xc if h else 0x3:#x}")
    P(f"""
    ds_write_b128 v{vPw}, {v4(r)} offset:{L_QRED}
    s_waitcnt lgkmcnt(0)
    s_barrier
    ds_read2st64_b32 {v2(r)}, v{vPr} offset0:{L_QRED//256} offset1:{L_QRED//256+4}
    ds_read2st64_b32 {v2(r+2)}, v{vPr} offset0:{L_QRED//256+8} offset1:{L_QRED//256+12}
    s_cmp_eq_u64 {sp(sYx)}, -1
    s_waitcnt lgkmcnt(0)
    v_add_f32 v{r}, v{r}, v{r+1}
    v_add_f32 v{r+2}, v{r+2}, v{r+3}
    v_add_f32 v{r}, v{r}, v{r+2}
    v_bfi_b32 v{r+1}, v{vFF}, s{sTag}, v{r}
    s_mov_b64 exec, {sp(sYx)}
    """)
    P.vm(f"buffer_store_dword v{r+1}, v{vYo}, {srd(rWS)}, s{sYp} offen sc1")
    stamp("yapub")
    P("s_cbranch_scc1 L_done")
    P("s_mov_b64 exec, -1")
    f = vP
    def midy(Q, n): Q(f"ds_bpermute_b32 v{r+2}, v{vBp}, v{r}")
    ppoll(P, "Y", [f"buffer_load_dwordx4 @, v{vy}, {srd(rWS)}, s{sYg} offen sc1" for vy in (vY0, vY1)], [vWO+8*k for k in range(4)][:DY], f, midy)
    stamp("fgot")
    P(f"s_not_b64 exec, {sp(sOwn)}")
    for k in range(4): P(f"v_add_f32 v{f+k}, v{f+k}, v{f+4+k}")
    P("s_mov_b64 exec, -1")
    P(f"""
    v_permlane32_swap_b32 v{f}, v{f+1}
    v_permlane32_swap_b32 v{f+2}, v{f+3}
    v_add_f32 v{f}, v{f}, v{f+1}
    v_add_f32 v{f+2}, v{f+2}, v{f+3}
    v_permlane16_swap_b32 v{f}, v{f+2}
    v_add_f32 v{f}, v{f}, v{f+2}
    """)
    xlane("v_add_f32", f, None, ["r8"])
    P("s_waitcnt lgkmcnt(0)")
    P(f"v_add_f32 v{f}, v{f}, v{r+2}")
    P(f"""
    v_cvt_pk_bf16_f32 v{f}, v{f}, v{f}
    s_mov_b32 exec_lo, 0x00ff00ff
    s_mov_b32 exec_hi, 0x00ff00ff
    """)
    P.vm(f"buffer_store_short v{f}, v{vOo}, {srd(rOUT)}, s{sOutO} offen")
    P(f"""
    s_cmp_lg_u32 s{sOutO}, 0
    s_cbranch_scc1 L_done
    s_mov_b64 exec, 1
    v_mov_b32 v{f+2}, s{sTag}
    """)
    P.vm(f"buffer_store_dword v{f+2}, v{vOo}, {srd(rWS)}, 0 offen")
    P.label("L_done")
    if spin:
        P.label("L_spin")
        P(f"""
        s_memrealtime {sp(sNow)}
        s_waitcnt lgkmcnt(0)
        s_sub_u32 s{sNow}, s{sNow}, s{sSt}
        s_cmp_lt_u32 s{sNow}, {spin}
        s_cbranch_scc1 L_spin
        """)
    if diag:
        P("s_mov_b64 exec, -1")
        stamp("end")
        P(f"""
        s_waitcnt lgkmcnt(0) vmcnt(0)
        s_lshl_b32 s{sT0}, s2, 2
        s_add_u32 s{sT0}, s{sT0}, s{sWv}
        s_lshl_b32 s{sT0}, s{sT0}, 7
        s_add_u32 s{sT0}, s{sT0}, {WS_DIAG}
        v_mov_b32 v{vT1}, 0
        s_mov_b64 exec, 1
        """)
        def dump(sreg, off):
            P(f"v_mov_b32 v{vT0}, s{sreg}")
            P.vm(f"buffer_store_dword v{vT0}, v{vT1}, {srd(rWS)}, s{sT0} offen offset:{off}")
        for n, (name, rr) in enumerate(stamps): dump(rr, 4*n)
        dump(sSpin, 4*len(stamps)); dump(sFar, 116)
        P(f"s_getreg_b32 s{sT1}, hwreg(HW_REG_XCC_ID)"); dump(sT1, 120)
        P(f"s_getreg_b32 s{sT1}, hwreg(HW_REG_HW_ID)"); dump(sT1, 124)
    P.label("L_end")
    P("s_endpgm")

    body, stats = P.render()
    for Q in slow: body += Q.render()[0]
    head = open("cdna_kernels/" + KNAME[:-7] + ".s.ref").read().split("; Override launch")[0]
    txt = head + f"; @launch grid=(256,1,1) block=(256,1,1) lds={L_TOTAL}\n"
    txt += f'.amdgcn_target "amdgcn-amd-amdhsa--gfx950"\n.text\n.globl {KNAME}\n.p2align 8\n.type {KNAME},@function\n{KNAME}:\n'
    txt += body
    txt += f""".section .rodata,"a"
.p2align 6
.amdhsa_kernel {KNAME}
  .amdhsa_next_free_vgpr 512
  .amdhsa_next_free_sgpr 102
  .amdhsa_accum_offset 256
  .amdhsa_group_segment_fixed_size 0
  .amdhsa_kernarg_size 104
  .amdhsa_user_sgpr_count 2
  .amdhsa_user_sgpr_kernarg_segment_ptr 1
  .amdhsa_system_sgpr_workgroup_id_x 1
.end_amdhsa_kernel
"""
    ids = list(range(256))
    act = [L for L in ids if (((L >> 6) & 1)*8 + (L & 7)) < 14]
    fin = [L for L in act if ((L >> 3) & 7) == (L & 7)]
    return txt, dict(stats, vhw=V.hw, shw=S.hw, minfree=minfree, stamps=[n for n, _ in stamps], who=dict(ogot=act, yapub=act, fgot=fin))

if __name__ == "__main__":
    import json
    kw = json.loads(sys.argv[2]) if len(sys.argv) > 2 else {}
    t, s = gen(**kw)
    open(sys.argv[1], "w").write(t)
    s.pop('who')
    print(s, file=sys.stderr)
```

```python
import sys, math, struct
from asmlib import Prog, Alloc
KNAME = "concat_heads__mha_block_cached__sliding_block_cached__decode_kernel"

WS_Q, WS_SC, WS_O, WS_FC, WS_Y, WS_G, WS_DIAG = 0x10000, 0x40000, 0x100000, 0x130000, 0x140000, 0x180000, 0x800000
L_QRED, L_ST, L_RED, L_TOTAL = 0, 4096, 4352, 4352 + 3*2048
CS = struct.unpack('<I', struct.pack('<f', math.log2(math.e) / 16.0))[0]
BIG = 0x7ff00000
FULL = "row_mask:0xf bank_mask:0xf"

AUXCOST = [8]
def cost(it):
    if it[0] == 'vm': return 8 if ' a[' in it[1] or 'store' in it[1] else AUXCOST[0]
    if it[0] != 'i': return 2
    t = it[1]
    if t.startswith(';'): return 0
    if t.startswith('v_mfma'): return 16
    if t.startswith(('v_exp', 'v_log', 'v_rcp')): return 10
    if '_dpp' in t or t.startswith('v_permlane'): return 8
    if t.startswith('ds_'): return 12
    if t.startswith('s_waitcnt'): return 60
    if t.startswith('s_barrier'): return 30
    return 4

HEADER = """;
; One launch, 256 workgroups x 4 waves (one wave per SIMD); generated by a script, straight-line code.
; Logical id = b(2) | x(3) | t(3); the 32 workgroups with the same x form a class (A heads 2x, 2x+1, B kv head x).
;   1. q = x @ wq: every workgroup computes one 32-column block for the 4 batches and hands it to its class.
;   2. K streams (B window, then A), keys split over the workgroups of a (batch, head); MFMA scores, rounded to bf16.
;   3. scores are exchanged inside the (batch, x) group; every wave takes the true max / sum of its keys, the
;   4. V streams split along the head dimension (64 columns per workgroup); MFMA P.V gives normalised o slices.
;   5. o is handed to the class; 28 workgroups multiply it with a 256 x 64 block of wo; 16 partial sums per
;      output are added by one wave and stored as bf16.
; earlier launch is never accepted. Class-local hand-offs stay in L2 only after all 32 workgroups of the class
; have been seen (through d_debug) on this XCC; otherwise every store and load of them is sc1.
"""

def gen(W=5, qg=33, sg=18, wflag="", woflag="nt", diag=False, skip=(), spin=0, forcefar=False, fc=None, budget=150, maxcatch=4,
        bpub=278, DO=1, DY=3, wolate=1, auxcost=70, wsl=32, first=(3, 2, 2, 2), hello=4, tpad=None, ipf=1, tlb=None, qw=True, zones=(), rot=None, swap=False, ow=None, W0=(24, 6), yw=(282, 'p'), noO=True, fakeQ=0):
    AUXCOST[0] = auxcost
    P = Prog()
    V = Alloc('v', 1, 256); S = Alloc('s', 3, 100)
    slots = list(range(64))
    def a4(s): return f"a[{4*s}:{4*s+3}]"
    def v4(r): return f"v[{r}:{r+3}]"
    def v3(r): return f"v[{r}:{r+2}]"
    def v2(r): return f"v[{r}:{r+1}]"
    def srd(r): return f"s[{r}:{r+3}]"
    def sp(r): return f"s[{r}:{r+1}]"
    def vcc(m): P(f"s_mov_b32 vcc_lo, {m:#x}"); P(f"s_mov_b32 vcc_hi, {m:#x}")
    slow = []
    stamps = []
    def stamp(name):
        if diag:
            r = S.get(2); stamps.append((name, r)); P(f"s_memrealtime {sp(r)}")
    fcs = dict(start=None, ids={})
    st = dict(kok=False, vok=False, lgk=False, tag=False)
    if fc is not None:
        fc = dict(dict(first=16, Pd=32, dW=2, r0=0.6, gain=2.5, xg=0, x0=3.5, xd=1, xc=(1, 3, 5), hold=True, neg=None, ns=2, s3=10, cps=(16, 40, 72, 104, 136, 168, 196, 224, 248, 266), tab=(4, -8, 2, -8, 10, 0, 6, -4)), **fc)
        WM = W + fc['dW']
        cps = list(fc['cps'] or range(fc['first'], 288 - WM - 6, fc['Pd']))
    else:
        WM = W; cps = []

    rX, rWQ, rBK, rBV, rAK, rAV, rWO, rWS, rOUT = [S.get(4) for _ in range(9)]
    sT0, sT1, sI, sWv, sTag, sOff, sAux, sSel0, sSel1, sC, sSpin, sCB, sTagQ, sFar, sBoost, sFC, sKo = [S.get() for _ in range(17)]
    vLane, vT0, vT1, vT2, vBig = [V.get() for _ in range(5)]
    vXo, vWQo, vKo, vVo = [V.get() for _ in range(4)]
    def desc(r, sz):
        P(f"s_mov_b32 s{r+2}, {sz}"); P(f"s_mov_b32 s{r+3}, 0x20000")
    sDbg = S.get(2); vH = V.get(2)
    hl1 = f"""s_load_dwordx2 {sp(sDbg)}, s[0:1], 88
    s_getreg_b32 s{sTagQ}, hwreg(HW_REG_XCC_ID, 0, 4)
    ; byte (id&7)*32 + (id>>3) of the zeroed debug buffer reports this workgroup's XCC
    s_mul_i32 s{sT0}, s2, 0x101
    s_bfe_u32 s{sT0}, s{sT0}, 0x80003
    v_mov_b32 v{vH}, s{sT0}
    v_add_u32 v{vH+1}, s{sTagQ}, 1"""
    P("s_cmp_ge_u32 s2, 256")
    P("s_cbranch_scc1 L_end")
    stamp("start")
    if spin:
        sSt = S.get(2); sNow = S.get(2); P(f"s_memrealtime {sp(sSt)}")
    P(f"""
    s_lshr_b32 s{sKo}, s2, 7
    s_mul_i32 s{sKo}, s{sKo}, 40
    s_load_dwordx2 {sp(rBK)}, s[0:1], 48
    s_load_dwordx2 {sp(rX)}, s[0:1], s{sKo}
    s_load_dwordx2 {sp(rWQ)}, s[0:1], s{sKo} offset:24
    s_load_dwordx2 {sp(rWS)}, s[0:1], 96
    {hl1}
    ; logical id = b(2) | x(3) | t(3): workgroups that are 8 apart share x (L2 locality only)
    s_and_b32 s{sT0}, s2, 7
    s_bfe_u32 s{sT1}, s2, 0x30003
    s_bfe_u32 s{sCB}, s2, 0x40003
    s_lshr_b32 s2, s2, 6
    s_lshl3_add_u32 s2, s2, s{sT0}
    s_lshl_b32 s{sOff}, s2, 21
    s_lshl3_add_u32 s2, s2, s{sT1}
    s_lshl4_add_u32 s{sCB}, s{sT0}, s{sCB}
    s_lshl_b32 s{sAux}, s{sCB}, 6
    v_lshrrev_b32 v{vT0}, 6, v0
    v_lshrrev_b32 v{vT2}, 2, v0
    v_readfirstlane_b32 s{sWv}, v{vT0}
    v_and_b32 v{vT1}, 3, v0
    v_lshlrev_b32 v{vWQo}, 12, v{vT2}
    v_add_lshl_u32 v{vWQo}, v{vWQo}, v{vT1}, 4
    v_cmp_gt_u32 vcc, 56, v{vT2}
    v_and_b32 v{vKo}, 3, v{vT2}
    v_mad_u32_u24 v{vXo}, v{vKo}, 55, v{vT2}
    v_add_lshl_u32 v{vXo}, v{vXo}, v{vT1}, 4
    v_lshl_add_u32 v{vKo}, v{vT0}, 2, v{vKo}
    v_cndmask_b32 v{vXo}, 2.0, v{vXo}, vcc
    v_lshl_add_u32 v{vKo}, v{vKo}, 6, v{vT1}
    v_and_b32 v{vT2}, 12, v{vT2}
    v_add_lshl_u32 v{vKo}, v{vKo}, v{vT2}, 4
    s_or_b32 s{sT0}, s{sT1}, 96
    s_lshl_b32 s{sT0}, s{sT0}, 14
    s_add_u32 s{sOff}, s{sOff}, s{sT0}
    """)
    if fakeQ:
        P(f"""
        v_lshrrev_b32 v{vT0}, 3, v0
        v_mul_u32_u24 v{vWQo}, {7*512}, v{vT0}
        v_and_b32 v{vT0}, 7, v0
        v_add_lshl_u32 v{vWQo}, v{vWQo}, v{vT0}, 4
        s_and_b32 s{sT0}, s{sCB}, 1
        s_mul_i32 s{sT0}, s{sT0}, {224*8192-64}
        s_add_u32 s{sAux}, s{sAux}, s{sT0}
        """)
    desc(rX, 3584); desc(rWQ, 3670016); desc(rBK, 1 << 26)
    P("s_waitcnt lgkmcnt(0)")
    stamp("karg")
    P.vm(f"global_store_byte v{vH}, v{vH+1}, {sp(sDbg)}")
    vX = V.get(4, 4); vWQ = V.get(32, 4)
    idwq = []
    def wq_load():
        j = len(idwq) - 1
        if j < 0: idwq.append(P.vm(f"buffer_load_dwordx4 {v4(vX)}, v{vXo}, {srd(rX)}, 0 offen"))
        elif "wq" in skip or (fakeQ and j == 7): idwq.append(None)
        else:
            if j: P(f"s_addk_i32 s{sAux}, 0x2000")
            idwq.append(P.vm(f"buffer_load_dwordx4 {v4(vWQ+4*j)}, v{vWQo}, {srd(rWQ)}, s{sAux} offen {wflag}"))
    first = list(first or [9])
    assert sum(first) == 9
    for _ in range(first[0]): wq_load()
    vTl = V.get(2)
    def c_wsw():
        P(f"""
        s_mul_i32 s{sT0}, s2, 3072
        s_add_u32 s{sT0}, s{sT0}, {WS_SC}
        v_mov_b32 v{vTl}, s{sT0}
        """)
        if qw:
            P(f"""
            s_lshr_b32 s{sT0}, s2, 7
            s_lshl_b32 s{sT0}, s{sT0}, 9
            s_add_u32 s{sT0}, s{sT0}, s{sCB}
            s_lshl_b32 s{sT0}, s{sT0}, 7
            s_add_u32 s{sT0}, s{sT0}, {(WS_Q - 24*16384) & 0xffffffff}
            v_mul_u32_u24 v{vTl+1}, {16384-128}, v0
            v_add_u32 v{vTl+1}, s{sT0}, v{vTl+1}
            v_cmp_gt_u32 vcc, 24, v0
            v_cndmask_b32 v{vTl}, v{vTl+1}, v{vTl}, vcc
            v_cmp_gt_u32 vcc, 28, v0
            v_cndmask_b32 v{vTl}, 2.0, v{vTl}, vcc
            """)
        elif wsl > 24:
            P(f"""
            v_mul_u32_u24 v{vTl+1}, 768, v{vH}
            v_add_u32 v{vTl+1}, {BIG if noO else WS_O - 24*128}, v{vTl+1}
            v_cmp_gt_u32 vcc, 24, v0
            v_cndmask_b32 v{vTl}, v{vTl+1}, v{vTl}, vcc
            """)
        if wsl > 30:
            P(f"""
            v_lshlrev_b32 v{vTl+1}, 8, v{vH}
            v_add_u32 v{vTl+1}, {WS_FC - 30*128}, v{vTl+1}
            v_cmp_gt_u32 vcc, 30, v0
            v_cndmask_b32 v{vTl}, v{vTl+1}, v{vTl}, vcc
            """)
        P(f"""
        v_lshl_add_u32 v{vTl}, v0, 7, v{vTl}
        v_cmp_gt_u32 vcc, {wsl}, v0
        v_cndmask_b32 v{vTl}, 2.0, v{vTl}, vcc
        """)
        desc(rWS, 1 << 24)
        P.vm(f"buffer_load_dword v{vTl+1}, v{vTl}, {srd(rWS)}, 0 offen sc1")
    stream = []
    for k in range(16): stream.append(("BK", k))
    for k in range(16): stream.append(("BV", k))
    for k in range(128): stream.append(("AK", k))
    for k in range(128): stream.append(("AV", k))
    NS = len(stream)
    sid = {}; sslot = {}; land = [-1]
    def issue(i):
        kind, k = stream[i]
        if k == 0 and kind == "BV":
            assert st['lgk']
            P(f"""
            s_and_b32 s{sI}, s2, 3
            s_mul_i32 s{sI}, s{sI}, {16384-128}
            s_add_u32 s{sI}, s{sI}, {3*131072}
            s_sub_u32 s{sOff}, s{sOff}, s{sI}
            """)
        elif k == 0 and kind[0] == "A" and rot:
            vo = vKo if kind == "AK" else vVo
            P(f"""
            s_lshr_b32 s{sI}, s2, 2
            s_lshl_b32 s{sI}, s{sI}, 21
            v_add_u32 v{vo}, s{sI}, v{vo}
            s_bfe_u32 s{sOff}, s2, {rot[0]:#x}
            s_lshl_b32 s{sOff}, s{sOff}, {rot[1]}
            s_and_b32 s{sI}, s2, 3
            s_lshl_b32 s{sI}, s{sI}, {14 if kind == "AK" else 7}
            s_add_u32 s{sOff}, s{sOff}, s{sI}
            """)
        elif k == 0 and kind[0] == "A":
            P(f"""
            s_lshr_b32 s{sOff}, s2, 2
            s_lshl_b32 s{sOff}, s{sOff}, 21
            s_and_b32 s{sI}, s2, 3
            s_lshl_b32 s{sI}, s{sI}, {14 if kind == "AK" else 7}
            s_add_u32 s{sOff}, s{sOff}, s{sI}
            """)
        elif k and k % 4 == 0 and kind[0] == "B":
            P(f"s_add_u32 s{sOff}, s{sOff}, {0x20000 if kind == 'BK' else 0x14000}")
        elif k and kind[1] == "V":
            P(f"s_addk_i32 s{sOff}, 0x4000")
        elif k and k % 4 == 0:
            P(f"s_add_u32 s{sOff}, s{sOff}, 0x10000")
        if rot and kind[0] == "A" and k and k % 32 == 0: P(f"s_and_b32 s{sOff}, s{sOff}, 0x1fffff")
        wz = [z[2] for z in zones if z[0] <= i < z[1]]
        if wz and fcs['start'] is not None:
            P.cwait(sid[i-wz[0]], sid[i-WM], [f"s_cmp_gt_i32 s{sBoost}, {i - fcs['start']}"]); land[0] = max(land[0], i-WM)
        elif fcs['start'] is not None:
            if fc['neg'] is not None:
                P.cwait(sid[i-W+1], None, [f"s_cmp_ge_i32 s{sBoost}, {-fc['neg'] - fc['ns']*(i - fcs['start'])}"])
            P.cwait(sid[i-W], sid[i-WM], [f"s_cmp_gt_i32 s{sBoost}, {i - fcs['start']}"]); land[0] = max(land[0], i-WM)
        else:
            w0 = W0[1] if (W0 and i < W0[0]) else W
            if i >= w0: P.wait(sid[i-w0]); land[0] = max(land[0], i-w0)
        s = slots.pop(0); sslot[i] = s
        r, vo = {"BK": (rBK, vKo), "BV": (rBV, vVo), "AK": (rAK, vKo), "AV": (rAV, vVo)}[kind]
        imm = 0 if kind[1] == "V" else [0, 512, 256, 768][k & 3]
        o = f" offset:{imm}" if imm else ""
        sid[i] = P.vm(f"buffer_load_dwordx4 {a4(s)}, v{vo}, {srd(r)}, s{sOff} offen{o} nt")
    freed = []
    def release(i): freed.append(sslot[i])

    def xlane(op, x, t, steps):
        for st in steps:
            if st in ("x1", "x2", "r4", "r8"):
                d = {"x1": "quad_perm:[1,0,3,2]", "x2": "quad_perm:[2,3,0,1]", "r4": "row_ror:4", "r8": "row_ror:8"}[st]
                P(f"{op}_dpp v{x}, v{x}, v{x} {d} {FULL}")
            else:
                P(f"v_mov_b32 v{t}, v{x}")
                P(f"v_permlane{st[1:]}_swap_b32 v{x}, v{t}")
                P(f"{op} v{x}, v{x}, v{t}")
    def tagcheck(Q, tags, stag, mask):
        tags = list(tags)
        if len(tags) % 2: tags.append(tags[-1])
        pairs = list(zip(tags[0::2], tags[1::2]))
        for n, (a, b) in enumerate(pairs):
            d = vT0 if n == 0 else (vT1 if n % 2 else vT2)
            Q(f"v_bitop3_b32 v{d}, v{a}, v{b}, s{stag} bitop3:0x7e")
            if n and n % 2 == 0: Q(f"v_or3_b32 v{vT0}, v{vT0}, v{vT1}, v{vT2}")
            elif n and n == len(pairs)-1: Q(f"v_or_b32 v{vT0}, v{vT0}, v{vT1}")
        if mask: Q(f"v_and_b32 v{vT0}, {mask:#x}, v{vT0}")
        Q(f"v_cmp_ne_u32 vcc, 0, v{vT0}")
    def gather(name, loads, tags, stag, mask):
        ids = []
        def iss():
            if name+"g" in skip: return
            for n, t in enumerate(loads): ids.append(publish(f"{name}{n}", t.replace(" sc1", "")))
        def chk():
            if name+"g" in skip: return
            P.wait(*ids)
            tagcheck(P, tags, stag, mask)
            P(f"s_cbranch_vccnz L_slow_{name}")
            P.label(f"L_back_{name}")
            Q = Prog()
            Q.label(f"L_slow_{name}")
            Q(f"s_add_u32 s{sSpin}, s{sSpin}, 1")
            Q(f"s_cmp_gt_u32 s{sSpin}, 0x40000")
            Q(f"s_cbranch_scc1 L_back_{name}")
            for t in loads: Q.vm(t)
            Q.waitall()
            tagcheck(Q, tags, stag, mask)
            Q(f"s_cbranch_vccnz L_slow_{name}")
            Q(f"s_branch L_back_{name}")
            slow.append(Q)
        return iss, chk
    def publish(name, txt):
        P(f"s_cmp_lg_u32 s{sFar}, 0")
        P(f"s_cbranch_scc1 L_far_{name}")
        i = P.vm(txt)
        P.label(f"L_near_{name}")
        Q = Prog(); Q.label(f"L_far_{name}")
        Q.vm(txt.rstrip() + " sc1")
        Q(f"s_branch L_near_{name}"); slow.append(Q)
        return i
    def extract(D, dst, tau, t):
        rs = [r for r in range(4) if r != tau]
        src = D + tau
        for n, r in enumerate(rs):
            last = n == 2
            m = f"row_mask:0xf bank_mask:{1 << tau:#x}" if last else FULL
            P(f"v_add_f32_dpp v{dst if last else t}, v{D+r}, v{src} row_ror:{(4*(tau-r)) % 16} {m}")
            src = t
    def transp(dst, src, e):
        for q in range(4):
            P(f"v_perm_b32 v{dst+q}, v{src+4*(2*q+1)+(e>>1)}, v{src+4*(2*q)+(e>>1)}, s{sSel1 if e & 1 else sSel0}")
    def sum8(r, dst):
        P(f"""
        v_add_f32 v{r}, v{r}, v{r+1}
        v_add_f32 v{r+2}, v{r+2}, v{r+3}
        v_add_f32 v{r+4}, v{r+4}, v{r+5}
        v_add_f32 v{r+6}, v{r+6}, v{r+7}
        v_add_f32 v{r}, v{r}, v{r+2}
        v_add_f32 v{r+4}, v{r+4}, v{r+6}
        v_add_f32 v{dst}, v{r}, v{r+4}
        """)

    bg = []
    def B(at, fn, after=0): bg.append((at, fn, after))

    vSel = V.get(4); vL12, vPw, vPr, vL4, vXT = [V.get() for _ in range(5)]
    def c_setup():
        if swap:
            P(f"s_bfe_u32 s{sKo}, s2, 0x10005")
            P(f"s_mul_i32 s{sKo}, s{sKo}, 40")
        P(f"""
        s_load_dword s{sTag}, {sp(rWS)}, 0
        s_load_dwordx2 {sp(rBV)}, s[0:1], 56
        s_load_dwordx2 {sp(rAK)}, s[0:1], 8
        s_load_dwordx2 {sp(rAV)}, s[0:1], 16
        s_load_dwordx2 {sp(rWO)}, s[0:1], s{sKo} offset:32
        s_load_dwordx2 {sp(rOUT)}, s[0:1], 80
        v_and_b32 v{vLane}, 63, v0
        v_mov_b32 v{vBig}, {BIG}
        """)
        if ipf:
            P(f"s_getpc_b64 {sp(rOUT+2)}")
            P.label("L_pc")
            P(f"""
            v_and_b32 v{vT0}, {31 if ipf > 1 else 255}, v{vH}
            v_min_u32 v{vT1}, {ipf-1}, v0
            v_mad_u32_u24 v{vT0}, v{vT0}, {ipf}, v{vT1}
            v_lshlrev_b32 v{vT0}, 7, v{vT0}
            v_min_u32 v{vT0}, L_code_end-L_pc-4, v{vT0}
            """)
            P.vm(f"global_load_dword v{vXT}, v{vT0}, {sp(rOUT+2)}")
        desc(rBV, 1 << 26); desc(rAK, 1 << 27); desc(rAV, 1 << 27); desc(rWO, 3670016); desc(rOUT, 7168)
        P(f"""
        s_mov_b32 s{sSel0}, 0x05040100
        s_mov_b32 s{sSel1}, 0x07060302
        s_mov_b32 s{sC}, {CS:#x}
        s_mov_b32 s{sSpin}, 0
        v_mul_u32_u24 v{vL12}, 12, v{vLane}
        v_lshlrev_b32 v{vL4}, 2, v{vLane}
        v_lshlrev_b32 v{vPw}, 3, v0
        v_and_b32 v{vPr}, 3, v0
        v_bfe_u32 v{vT0}, v0, 3, 2
        v_lshl_add_u32 v{vPr}, v{vPr}, 2, v{vT0}
        v_lshrrev_b32 v{vT0}, 6, v0
        v_lshl_add_u32 v{vPr}, v{vT0}, 4, v{vPr}
        v_bfe_u32 v{vT0}, v0, 2, 1
        v_lshl_add_u32 v{vPr}, v{vPr}, 1, v{vT0}
        v_bfe_u32 v{vT0}, v0, 5, 1
        v_lshl_add_u32 v{vPr}, v{vT0}, 8, v{vPr}
        v_lshlrev_b32 v{vPr}, 2, v{vPr}
        v_lshrrev_b32 v{vT0}, 3, v0
        v_and_b32 v{vT1}, 7, v0
        v_lshlrev_b32 v{vVo}, 9, v{vT0}
        v_lshl_add_u32 v{vVo}, v{vT1}, 4, v{vVo}
        v_and_b32 v{vT0}, 1, v{vT0}
        v_mul_u32_u24 v{vT0}, 0x0202, v{vT0}
        v_add_u32 v{vT0}, 0x0100, v{vT0}
        v_or_b32 v{vT2}, 0x0c0c0000, v{vT0}
        v_lshlrev_b32 v{vT0}, 16, v{vT0}
        v_or_b32 v{vT0}, 0x0c0c, v{vT0}
        """)
        vcc(0xaaaaaaaa)
        P(f"v_cndmask_b32 v{vT0}, v{vT2}, v{vT0}, vcc")
        P(f"v_mov_b32 v{vT2}, 0x0c0c0c0c")
        for r in range(4):
            vcc(0x03030303 << (2*r)); P(f"v_cndmask_b32 v{vSel+r}, v{vT2}, v{vT0}, vcc")

    vQD = V.get(32, 4); vTB = [V.get(4, 4), V.get(4, 4)]
    def proj_write(dst, tmp):
        for e0 in (0, 4):
            for n in range(3):
                for e in range(e0, e0+4):
                    D = vQD + 4*e; tau = e & 3
                    r = [x for x in range(4) if x != tau][n]
                    m = f"row_mask:0xf bank_mask:{1 << tau:#x}" if n == 2 else FULL
                    P(f"v_add_f32_dpp v{dst+(e >> 2) if n == 2 else tmp+tau}, v{D+r}, v{tmp+tau if n else D+tau} row_ror:{(4*(tau-r)) % 16} {m}")
        P(f"ds_write_b64 v{vPw}, {v2(dst)} offset:{L_QRED}")
        P("s_waitcnt lgkmcnt(0)")
    def proj_read(r):
        P("s_barrier")
        P(f"ds_read2st64_b32 {v2(r)}, v{vPr} offset0:{L_QRED//256} offset1:{L_QRED//256+2}")
    def proj_sum(r):
        P("s_waitcnt lgkmcnt(0)")
        P(f"v_add_f32 v{r}, v{r}, v{r+1}")
        xlane("v_add_f32", r, r+1, ["p32"])
    vFl, vFs, vFd, vFt = vXo, vWQo, V.get(), V.get()
    sFm = S.get(2)
    def tag_setup():
        P(f"""
        s_add_u32 s{sTag}, s{sTag}, 0x9e3779b9
        """)
    def fc_setup():
        P(f"""
        ; one line per (class, wave, checkpoint): a dword for each of the 32 workgroups of the class
        s_bfe_u32 s{sFC}, s2, 0x30003
        s_lshl2_add_u32 s{sFC}, s{sFC}, s{sWv}
        s_lshl_b32 s{sFC}, s{sFC}, 11
        s_add_u32 s{sFC}, s{sFC}, {WS_FC}
        s_and_b32 s{sI}, s2, 7
        s_lshr_b32 s{sBoost}, s2, 6
        s_lshl3_add_u32 s{sI}, s{sBoost}, s{sI}
        v_cmp_eq_u32 {sp(sFm)}, s{sI}, v{vLane}
        v_cndmask_b32 v{vFs}, v{vBig}, v{vL4}, {sp(sFm)}
        v_cmp_gt_u32 {sp(sFm)}, 32, v{vLane}
        v_cndmask_b32 v{vFl}, v{vBig}, v{vL4}, {sp(sFm)}
        """)
    hid = []
    def c_hello2():
        P(f"v_and_b32 v{vH}, 0xe0, v{vH}")
        P(f"v_and_or_b32 v{vH}, v0, 31, v{vH}")
        hid.append(P.vm(f"global_load_ubyte v{vH}, v{vH}, {sp(sDbg)}"))
    def c_q():
        P.wait(*idwq)
        stamp("wq")
        for e in range(8):
            transp(vTB[e & 1], vWQ, e)
            P(f"v_mfma_f32_16x16x32_bf16 {v4(vQD+4*e)}, {v4(vX)}, {v4(vTB[e & 1])}, 0")
        proj_write(vWQ, vWQ+4)
        return 'lgk'
    def c_q4():
        r = vWQ
        proj_read(r)
        tag_setup()
        P(f"""
        s_lshr_b32 s{sT0}, s2, 7
        s_lshl2_add_u32 s{sT0}, s{sT0}, s{sWv}
        s_lshl_b32 s{sT0}, s{sT0}, 7
        s_add_u32 s{sT0}, s{sT0}, s{sCB}
        s_lshl_b32 s{sT0}, s{sT0}, 7
        s_add_u32 s{sT0}, s{sT0}, {WS_Q}
        v_mov_b32 v{r+9}, s{sTag}
        """)
        proj_sum(r)
        if True:
            P.wait(*hid)
            P(f"""
            ; class-local hand-offs go through L2 only if all 32 workgroups of the class were seen to report this XCC
            v_cmp_ne_u32 vcc, v{vH}, v{vH+1}
            s_mov_b32 s{sFar}, vcc_lo
            """)
            if forcefar: P(f"s_mov_b32 s{sFar}, 1")
        P(f"""
        v_mov_b32_dpp v{r+1}, v{r} quad_perm:[1,0,3,2] {FULL}
        v_cvt_pk_bf16_f32 v{r+8}, v{r}, v{r+1}
        s_mov_b32 exec_lo, 0x55555555
        s_mov_b32 exec_hi, 0
        """)
        publish("q", f"buffer_store_dwordx2 {v2(r+8)}, v{vL4}, {srd(rWS)}, s{sT0} offen")
        P("s_mov_b64 exec, -1")
        stamp("qpub")
        return 'tag'
    def c_tlb():
        P(f"""
        s_lshr_b32 s{sT0}, s2, 2
        s_lshl_b32 s{sT0}, s{sT0}, 21
        s_lshr_b32 s{sT1}, s{sCB}, 4
        s_mul_i32 s{sT1}, s{sT1}, {512*896}
        v_cmp_eq_u32 vcc, 0, v0
        v_cndmask_b32 v{vT0}, 2.0, v0, vcc
        s_waitcnt lgkmcnt(0)
        """)
        if "V" in tlb: P.vm(f"buffer_load_dword v{vTl}, v{vT0}, {srd(rBV)}, s{sOff} offen nt")
        if "K" in tlb: P.vm(f"buffer_load_dword v{vTl}, v{vT0}, {srd(rAK)}, s{sT0} offen nt")
        if "A" in tlb: P.vm(f"buffer_load_dword v{vTl}, v{vT0}, {srd(rAV)}, s{sT0} offen nt")
        if "W" in tlb: P.vm(f"buffer_load_dword v{vTl}, v{vT0}, {srd(rWO)}, s{sT1} offen nt")
        if "O" in tlb: P.vm(f"buffer_load_dword v{vTl}, v{vT0}, {srd(rOUT)}, 0 offen nt")
    B(W-1, c_wsw); B(0, c_setup)
    if tlb: B(0, c_tlb)
    B(hello, c_hello2)
    B(len(first) - 2 + (W if len(first) > 1 else 0), c_q); B(hello + W + 1, c_q4, 1)

    vQA = V.get(32, 4); vQB = V.get(16, 4)
    vG = vQD
    vGo = V.get(2); sG = [S.get() for _ in range(8)]
    ql = [f"buffer_load_dwordx4 {v4(vG+8*u+4*hf)}, v{vGo}, {srd(rWS)}, s{sG[0]} offen offset:{512*u+16*hf} sc1" for u in range(2) for hf in range(2)]
    ql += [f"buffer_load_dwordx4 {v4(vG+16+8*u+4*hf)}, v{vGo+1}, {srd(rWS)}, s{sG[1]} offen offset:{512*u+16*hf} sc1" for u in range(2) for hf in range(2)]
    q_iss, q_chk = gather("q", ql, range(vG+1, vG+32, 2), sTag, None)
    def c_qg():
        P(f"""
        v_lshrrev_b32 v{vGo}, 2, v{vLane}
        v_lshlrev_b32 v{vGo}, 5, v{vGo}
        v_bfe_u32 v{vT0}, v{vLane}, 1, 1
        v_lshl_add_u32 v{vGo+1}, v{vT0}, 10, v{vGo}
        s_lshr_b32 s{sG[0]}, s2, 2
        s_lshl_b32 s{sG[0]}, s{sG[0]}, 10
        s_add_u32 s{sG[0]}, s{sG[0]}, {WS_Q}
        s_lshr_b32 s{sG[1]}, s2, 3
        s_lshl_b32 s{sG[1]}, s{sG[1]}, 11
        s_add_u32 s{sG[1]}, s{sG[1]}, {WS_Q + 4*16384}
        """)
        q_iss()
    def c_qb():
        q_chk(); stamp("qgot")
        for t in range(4):
            vcc(0x11111111 << t)
            for u in range(2):
                for q in range(4): P(f"v_cndmask_b32 v{vQA+16*u+4*t+q}, 0, v{vG+8*u+2*q}, vcc")
        for t in range(2):
            vcc(0x55555555 << t)
            for u in range(2):
                for q in range(4): P(f"v_cndmask_b32 v{vQB+8*u+4*t+q}, 0, v{vG+16+8*u+2*q}, vcc")
        return 'kok'
    B(qg, c_qg); B(0, c_qb, WM+1)

    vD = [V.get(4, 4) for _ in range(4)]
    vSB = V.get()
    def c_bqk():
        P.wait(sid[15])
        D = vWQ
        for tau in range(4):
            for n in range(4):
                t, u = n & 1, n >> 1
                P(f"v_mfma_f32_16x16x32_bf16 {v4(D+4*tau)}, {a4(sslot[4*tau+n])}, {v4(vQB+8*u+4*t)}, {v4(D+4*tau) if n else 0}")
                release(4*tau+n)
        for tau in range(4): extract(D+4*tau, vSB, tau, vT0)
        P(f"""
        v_cvt_pk_bf16_f32 v{vSB}, v{vSB}, v{vSB}
        v_mov_b32 v{vT0}, 0xffff
        v_bfi_b32 v{vSB}, v{vT0}, s{sTag}, v{vSB}
        """)
    B(15+WM, c_bqk)

    vWO = V.get(32, 4); vWOo = V.get()
    def wo_load(j):
        if j == 4: P(f"s_addk_i32 s{sAux}, {4*896}")
        if "wo" not in skip:
            P.vm(f"buffer_load_dwordx4 {v4(vQD+4*j)}, v{vWOo}, {srd(rWO)}, s{sAux} offen offset:{896*(j & 3)} {woflag}")

    vSA = V.get(4, 4)
    pend = []
    def k_consume(i):
        k = i - 32
        unit, n = k >> 4, k & 15
        t, u, par = n >> 2, (n >> 1) & 1, n & 1
        D = vD[2*(unit & 1) + par]
        first = (t == 0 and u == 0)
        P(f"v_mfma_f32_16x16x32_bf16 {v4(D)}, {a4(sslot[i])}, {v4(vQA+16*u+4*t)}, {0 if first else v4(D)}")
        release(i)
        while pend and n >= 2:
            pend.pop(0)()
        if n == 15:
            for p_ in range(2):
                pend.append(lambda p_=p_, unit=unit: extract(vD[2*(unit & 1)+p_], vSA + 2*(unit >> 2) + p_, unit & 3, vXT))
            if k == 127:
                while pend: pend.pop(0)()
                c_spub()
    def c_spub():
        o = vD[0]
        P(f"""
        s_lshl2_add_u32 s{sI}, s2, s{sWv}
        s_mul_i32 s{sI}, s{sI}, 768
        s_add_u32 s{sI}, s{sI}, {WS_SC}
        v_cvt_pk_bf16_f32 v{o}, v{vSA}, v{vSA+1}
        v_cvt_pk_bf16_f32 v{o+1}, v{vSA+2}, v{vSA+3}
        v_mov_b32 v{o+2}, v{vSB}
        """)
        if "scs" not in skip: publish("sc", f"buffer_store_dwordx3 {v3(o)}, v{vL12}, {srd(rWS)}, s{sI} offen")
        stamp("scpub")
    vSG = vWQ
    vE = vQA; vEB = vQA + 16
    vP = V.get(8, 4); vPB = vQB + 4; vM, vL, vMB, vLB = vQB, vQB+1, vQB+2, vQB+3
    vWt, vWtB, vFF = vQB+8, vQB+9, vQB+10
    sl = [f"buffer_load_dwordx3 {v3(vSG+4*k)}, v{vL12}, {srd(rWS)}, s{sG[k]} offen sc1" for k in range(4)]
    sl += [f"buffer_load_dword v{vSG+16+k}, v{vL12}, {srd(rWS)}, s{sG[4+k]} offen offset:8 sc1" for k in range(4)]
    sbr = [vSG+4*k+2 for k in range(4)] + [vSG+16+k for k in range(4)]
    s_iss, s_chk = gather("sc", sl, sbr, sTag, 0xffff)
    def c_sg():
        P(f"""
        s_and_b32 s{sT0}, s2, 0xfc
        s_lshl2_add_u32 s{sT0}, s{sT0}, s{sWv}
        s_xor_b32 s{sT1}, s{sT0}, 16
        s_mul_i32 s{sT0}, s{sT0}, 768
        s_mul_i32 s{sT1}, s{sT1}, 768
        s_add_u32 s{sG[0]}, s{sT0}, {WS_SC}
        s_add_u32 s{sG[4]}, s{sT1}, {WS_SC}
        """)
        for k in (1, 2, 3, 5, 6, 7): P(f"s_add_u32 s{sG[k]}, s{sG[k-1]}, 3072")
        s_iss()
    def c_sm1():
        s_chk(); stamp("scgot")
        for r in range(8):
            src = vSG + 4*(r >> 1) + (r & 1)
            P(f"v_lshlrev_b32 v{vE+2*r}, 16, v{src}")
            P(f"v_and_b32 v{vE+2*r+1}, 0xffff0000, v{src}")
        P(f"v_max3_f32 v{vM}, v{vE}, v{vE+1}, v{vE+2}")
        for r in range(3, 15, 2): P(f"v_max3_f32 v{vM}, v{vM}, v{vE+r}, v{vE+r+1}")
        P(f"v_max_f32 v{vM}, v{vM}, v{vE+15}")
        xlane("v_max_f32", vM, vT0, ["x1", "x2", "r4", "r8", "p16", "p32"])
        P(f"v_mul_f32 v{vM}, s{sC}, v{vM}")
        for r in range(16):
            P(f"v_fma_f32 v{vE+r}, v{vE+r}, s{sC}, -v{vM}")
            P(f"v_exp_f32 v{vE+r}, v{vE+r}")
        for r in range(8): P(f"v_cvt_pk_bf16_f32 v{vP+r}, v{vE+2*r}, v{vE+2*r+1}")
        return 'vok'
    def c_sm3():
        for r in range(8): P(f"v_add_f32 v{vE+r}, v{vE+r}, v{vE+8+r}")
        sum8(vE, vL)
        xlane("v_add_f32", vL, vT0, ["x1", "x2", "r4", "r8", "p16", "p32"])
    def c_sb1():
        for k in range(8): P(f"v_and_b32 v{vEB+k}, 0xffff0000, v{sbr[k]}")
        P(f"v_max3_f32 v{vMB}, v{vEB}, v{vEB+1}, v{vEB+2}")
        P(f"v_max3_f32 v{vMB}, v{vMB}, v{vEB+3}, v{vEB+4}")
        P(f"v_max3_f32 v{vMB}, v{vMB}, v{vEB+5}, v{vEB+6}")
        P(f"v_max_f32 v{vMB}, v{vMB}, v{vEB+7}")
        xlane("v_max_f32", vMB, vT0, ["x1", "r4", "r8", "p16", "p32"])
        P(f"v_mul_f32 v{vMB}, s{sC}, v{vMB}")
        for k in range(8):
            P(f"v_fma_f32 v{vEB+k}, v{vEB+k}, s{sC}, -v{vMB}")
            P(f"v_exp_f32 v{vEB+k}, v{vEB+k}")
        for k in range(4):
            P(f"v_mov_b32_dpp v{vT0}, v{vEB+k} quad_perm:[1,0,3,2] {FULL}")
            P(f"v_cvt_pk_bf16_f32 v{vPB+k}, v{vEB+k}, v{vT0}")
        sum8(vEB, vLB)
        xlane("v_add_f32", vLB, vT0, ["x1", "r4", "r8", "p16", "p32"])
        P(f"""
        v_bfe_u32 v{vT0}, v{vLane}, 1, 1
        v_lshlrev_b32 v{vT0}, 6, v{vT0}
        s_lshl_b32 s{sT0}, s{sWv}, 4
        v_add_u32 v{vT0}, s{sT0}, v{vT0}
        ds_write_b128 v{vT0}, {v4(vM)} offset:{L_ST}
        """)
    vBc = [V.get(), V.get()]
    vTC = [V.get(4, 4), V.get(4, 4)]
    def pvop(bc, dst, src, lane):
        P(f"v_mov_b32_dpp v{bc}, v{src} row_newbcast:{lane} {FULL}")
        for q in range(4): P(f"v_perm_b32 v{dst+q}, v{bc}, v{bc}, v{vSel+q}")
    def c_bpv():
        for k in range(4):
            for tau in range(4):
                i = 16 + 4*tau + k
                for hd in range(2): pvop(vT0+hd, vTC[hd], vPB+k, 4*tau + 2*hd)
                for hd in range(2):
                    P(f"v_mfma_f32_16x16x32_bf16 {v4(vD[2+hd])}, {a4(sslot[i])}, {v4(vTC[hd])}, {v4(vD[2+hd]) if i > 16 else 0}")
                release(i)
    assert vT1 == vT0 + 1
    vAw, vAr = V.get(), V.get()
    def c_sm4():
        s_ = vE
        P(f"""
        v_bfe_u32 v{vT0}, v{vLane}, 1, 1
        v_lshlrev_b32 v{vT0}, 6, v{vT0}
        s_waitcnt lgkmcnt(0)
        s_barrier
        """)
        for k in range(4): P(f"ds_read_b128 {v4(s_+4*k)}, v{vT0} offset:{L_ST+16*k}")
        P(f"""
        v_lshrrev_b32 v{vAw}, 4, v0
        v_lshlrev_b32 v{vAw}, 7, v{vAw}
        v_and_b32 v{vT1}, 7, v{vLane}
        v_lshl_add_u32 v{vAw}, v{vT1}, 4, v{vAw}
        v_and_b32 v{vAr}, 32, v{vLane}
        v_lshl_add_u32 v{vAr}, v{vT1}, 2, v{vAr}
        v_bfe_u32 v{vT1}, v{vLane}, 3, 2
        v_add_lshl_u32 v{vAr}, v{vAr}, v{vT1}, 2
        s_min_u32 s{sT0}, s{sWv}, 2
        s_lshl_b32 s{sT0}, s{sT0}, 11
        v_add_u32 v{vAr}, s{sT0}, v{vAr}
        v_mov_b32 v{vFF}, 0xff
        s_waitcnt lgkmcnt(0)
        """)
        for o, m, wt in ((0, vM, vWt), (2, vMB, vWtB)):
            P(f"v_max3_f32 v{vT0}, v{s_+o}, v{s_+4+o}, v{s_+8+o}")
            P(f"v_max_f32 v{vT0}, v{vT0}, v{s_+12+o}")
            for k in range(4):
                P(f"v_sub_f32 v{s_+4*k+o}, v{s_+4*k+o}, v{vT0}")
                P(f"v_exp_f32 v{s_+4*k+o}, v{s_+4*k+o}")
            P(f"v_sub_f32 v{wt}, v{m}, v{vT0}")
            P(f"v_exp_f32 v{wt}, v{wt}")
            P(f"v_mul_f32 v{vT1}, v{s_+o}, v{s_+o+1}")
            for k in range(1, 4): P(f"v_fmac_f32 v{vT1}, v{s_+4*k+o}, v{s_+4*k+o+1}")
            P(f"v_rcp_f32 v{vT1}, v{vT1}")
            P(f"v_mul_f32 v{wt}, v{wt}, v{vT1}")
    def red_write(lst):
        P("s_mov_b32 exec_lo, 0x00ff00ff")
        P("s_mov_b32 exec_hi, 0xff00ff00")
        for acc, reg in lst: P(f"ds_write_b128 v{vAw}, {v4(acc)} offset:{L_RED+2048*reg}")
        P("s_mov_b64 exec, -1")
    def c_br1():
        for hd in range(2):
            for q in range(4):
                P(f"v_mul_f32_dpp v{vD[2+hd]+q}, v{vWtB}, v{vD[2+hd]+q} quad_perm:[{2*hd},{2*hd},{2*hd},{2*hd}] {FULL}")
        red_write([(vD[2], 1), (vD[3], 2)])
        stamp("ybdone")
    def c_br2():
        r = vWQ
        P("s_waitcnt lgkmcnt(0)")
        P("s_barrier")
        for k in range(4): P(f"ds_read2st64_b32 {v2(r+2*k)}, v{vAr} offset0:{L_RED//256+2*k} offset1:{L_RED//256+2*k+1}")
        P(f"""
        v_add_u32 v{vT0}, 64, v0
        v_and_b32 v{vT0}, 128, v{vT0}
        v_cmp_ne_u32 vcc, 0, v{vT0}
        v_cndmask_b32 v{vT0}, v{vBig}, v{vL4}, vcc
        s_waitcnt lgkmcnt(0)
        """)
        sum8(r, r)
        P(f"v_bfi_b32 v{r}, v{vFF}, s{sTag}, v{r}")
        t = f"buffer_store_dword v{r}, v{vT0}, {srd(rWS)}, s{sOp} offen"
        if swap: P.vm(t + " sc1")
        else: publish("ob", t)
    vOg, vOo, vYo = vGo+1, vL12, vGo
    vY0, vY1, vBp = V.get(), V.get(), V.get()
    sOp, sOg, sYp, sYg, sOutO = sG[0:5]
    sYx, sOwn = rX, rX+2
    brx = "s_bfe_u32 s%d, s2, 0x10005" % sT0 if swap else "s_lshr_b32 s%d, s2, 7" % sT0
    def c_fin():
        if swap:
            P(f"""
            s_bfe_u32 s{sT0}, s2, 0x20003
            s_lshr_b32 s{sT1}, s2, 6
            s_lshl2_add_u32 s{sT0}, s{sT0}, s{sT1}
            s_and_b32 s{sT1}, s2, 7
            s_lshl4_add_u32 s{sCB}, s{sT1}, s{sT0}
            """)
        P(f"""
        ; O table [x][slot: A, B kh0, B kh1][b][512] dwords
        s_bfe_u32 s{sT0}, s2, 0x30003
        s_mul_i32 s{sOg}, s{sT0}, {3*8192}
        s_add_u32 s{sOg}, s{sOg}, {WS_O}
        s_lshr_b32 s{sT0}, s2, 6
        s_lshl_b32 s{sT0}, s{sT0}, 11
        s_add_u32 s{sOp}, s{sOg}, s{sT0}
        ; wave 0: A row block t ; waves 1,2: slot 1+kh, row block 4*(wave-1)+s
        s_and_b32 s{sT0}, s2, 4
        s_lshl_b32 s{sT0}, s{sT0}, 3
        s_lshl2_add_u32 s{sT0}, s{sWv}, s{sT0}
        s_and_b32 s{sT1}, s2, 3
        s_add_u32 s{sT0}, s{sT0}, s{sT1}
        s_addk_i32 s{sT0}, 28
        s_and_b32 s{sT1}, s2, 7
        s_cmp_eq_u32 s{sWv}, 0
        s_cselect_b32 s{sT0}, s{sT1}, s{sT0}
        s_lshl_b32 s{sT0}, s{sT0}, 8
        s_add_u32 s{sOp}, s{sOp}, s{sT0}
        s_lshr_b32 s{sT0}, s{sCB}, 4
        s_mul_i32 s{sOg}, s{sT0}, {3*8192}
        s_add_u32 s{sOg}, s{sOg}, {WS_O}
        {brx}
        s_lshl_b32 s{sT0}, s{sT0}, 13
        s_add_u32 s{sOg}, s{sOg}, s{sT0}
        s_and_b32 s{sT1}, s{sCB}, 1
        s_lshl_b32 s{sT1}, s{sT1}, 10
        s_add_u32 s{sOg}, s{sOg}, s{sT1}
        v_bfe_u32 v{vT0}, v0, 1, 1
        v_mul_lo_u32 v{vOg}, v{vT0}, s{sT0}
        v_bfe_u32 v{vT0}, v0, 2, 2
        v_lshl_add_u32 v{vOg}, v{vT0}, 11, v{vOg}
        v_lshrrev_b32 v{vT0}, 4, v0
        v_lshl_add_u32 v{vOg}, v{vT0}, 6, v{vOg}
        v_and_b32 v{vT0}, 1, v0
        v_lshl_add_u32 v{vOg}, v{vT0}, 5, v{vOg}
        ; wo lane (row group tid>>3, 16-byte chunk tid&7)
        v_lshrrev_b32 v{vT0}, 3, v0
        v_mul_u32_u24 v{vWOo}, {8*896}, v{vT0}
        v_and_b32 v{vT0}, 7, v0
        v_lshl_add_u32 v{vWOo}, v{vT0}, 4, v{vWOo}
        s_and_b32 s{sT1}, s{sCB}, 15
        v_mov_b32 v{vT1}, s{sT1}
        v_cmp_gt_u32 vcc, 14, v{vT1}
        v_cndmask_b32 v{vWOo}, v{vBig}, v{vWOo}, vcc
        s_lshr_b32 s{sT0}, s{sCB}, 4
        s_and_b32 s{sAux}, s{sCB}, 1
        s_lshl1_add_u32 s{sAux}, s{sT0}, s{sAux}
        s_mul_i32 s{sAux}, s{sAux}, {256*896}
        s_and_b32 s{sT0}, s{sCB}, 14
        s_lshl_b32 s{sT0}, s{sT0}, 6
        s_add_u32 s{sAux}, s{sAux}, s{sT0}
        v_lshlrev_b32 v{vPw}, 4, v0
        v_and_b32 v{vPr}, 1, v0
        v_bfe_u32 v{vT1}, v0, 3, 3
        v_lshl_add_u32 v{vPr}, v{vPr}, 3, v{vT1}
        v_lshrrev_b32 v{vT1}, 6, v0
        v_lshl_add_u32 v{vPr}, v{vT1}, 4, v{vPr}
        v_bfe_u32 v{vT1}, v0, 1, 2
        v_lshl_add_u32 v{vPr}, v{vPr}, 2, v{vT1}
        v_lshlrev_b32 v{vPr}, 2, v{vPr}
        v_lshlrev_b32 v{vOo}, 3, v{vT0}
        v_bfe_u32 v{vT0}, v{vLane}, 4, 1
        v_lshl_add_u32 v{vOo}, v{vT0}, 2, v{vOo}
        v_lshrrev_b32 v{vT0}, 5, v{vLane}
        v_lshl_add_u32 v{vOo}, v{vT0}, 1, v{vOo}
        v_mul_u32_u24 v{vYo}, {8192-128}, v{vT0}
        v_add_u32 v{vYo}, v{vYo}, v{vL4}
        {brx}
        s_mul_i32 s{sT0}, s{sT0}, 14
        s_add_u32 s{sT0}, s{sT0}, s{sT1}
        s_lshl_b32 s{sOutO}, s{sT0}, 6
        s_mul_i32 s{sYp}, s{sWv}, 1792
        s_add_u32 s{sOutO}, s{sOutO}, s{sYp}
        s_lshl2_add_u32 s{sT0}, s{sT0}, s{sWv}
        s_lshl_b32 s{sT0}, s{sT0}, 11
        s_add_u32 s{sYg}, s{sT0}, {WS_Y}
        s_and_b32 s{sT1}, s{sCB}, 1
        s_mul_i32 s{sT0}, s{sT1}, {8192-1024}
        s_sub_u32 s{sYp}, s{sYg}, s{sT0}
        s_lshr_b32 s{sT0}, s{sCB}, 4
        s_lshl_b32 s{sI}, s{sT0}, 7
        s_add_u32 s{sYp}, s{sYp}, s{sI}
        ; block m is summed by its workgroup of class m&7, which keeps that half of its own result in registers
        s_lshl_b32 s{sI}, s{sT0}, 3
        s_lshl_b64 {sp(sOwn)}, 0xff, s{sI}
        s_lshl_b32 s{sI}, s{sT1}, 7
        v_lshl_add_u32 v{vBp}, v{vOo}, 1, s{sI}
        s_xor_b32 s{sI}, s{sT1}, 1
        s_lshl_b32 s{sI}, s{sI}, 10
        v_lshlrev_b32 v{vY0}, 4, v{vLane}
        v_add_u32 v{vY1}, 1024, v{vY0}
        v_add_u32 v{vT0}, s{sI}, v{vY0}
        v_cndmask_b32 v{vY0}, v{vY0}, v{vT0}, {sp(sOwn)}
        v_cndmask_b32 v{vY1}, v{vY1}, v{vT0}, {sp(sOwn)}
        s_sub_u32 s{sYx}, 0, s{sT1}
        s_not_b32 s{sYx+1}, s{sYx}
        s_and_b32 s{sT1}, s{sCB}, 7
        s_cmp_eq_u32 s{sT0}, s{sT1}
        s_cselect_b64 {sp(sYx)}, {sp(sYx)}, -1
        """)
    B(160+sg, c_sg); B(0, c_sm1, WM+1); B(0, c_sm3); B(0, c_sb1); B(0, c_bpv); B(0, c_sm4); B(0, c_br1); B(0, c_fin)
    def c_yw():
        if yw[1] == "c":
            P(f"""
            s_cmp_eq_u64 {sp(sYx)}, -1
            s_cselect_b32 s{sT0}, 0, 16
            v_lshlrev_b32 v{vT0}, 7, v{vLane}
            v_cmp_gt_u32 vcc, s{sT0}, v{vLane}
            v_cndmask_b32 v{vT0}, v{vBig}, v{vT0}, vcc
            """)
            P.vm(f"buffer_load_dword v{vTl+1}, v{vT0}, {srd(rWS)}, s{sYg} offen sc1")
        else:
            P.vm(f"buffer_load_dword v{vTl+1}, v{vYo}, {srd(rWS)}, s{sYp} offen sc1")
    if yw and yw[0] < bpub: B(yw[0], c_yw)
    def c_ow():
        P(f"v_cmp_gt_u32 vcc, 192, v0")
        P(f"v_cndmask_b32 v{vT0}, v{vBig}, v{vL4}, vcc")
        P.vm(f"buffer_load_dword v{vTl+1}, v{vT0}, {srd(rWS)}, s{sOp} offen sc1")
    if ow: B(ow, c_ow)
    if bpub: B(bpub, c_br2)
    if yw and yw[0] >= bpub: B(yw[0], c_yw)

    vAcc = vD[1]
    prepared = set()
    def v_prep(i):
        v = i - 160
        if i < NS and i not in prepared:
            pvop(vBc[v & 1], vTB[v & 1], vP + 2*(v & 3) + (v >> 6), (v >> 2) & 15); prepared.add(i)
    def v_consume(i):
        v = i - 160
        v_prep(i)
        P.wait(sid[i])
        P(f"v_mfma_f32_16x16x32_bf16 {v4(vAcc)}, {a4(sslot[i])}, {v4(vTB[v & 1])}, {v4(vAcc) if v else 0}")
        release(i)
        v_prep(i+1)

    xg = fc['xg'] if fc else 0
    if xg:
        vGs, vGl, vBs, vGd = [V.get() for _ in range(4)]; sBias = S.get()
        xcs = [cps[c] for c in fc['xc']]
        GL = 0x4000
    def fc_step(i):
        if i in cps:
            c = cps.index(i)
            if c == 0:
                assert st['tag']
                fc_setup()
                P(f"v_mov_b32 v{vFt}, s{sTag}")
                if fc['tab']:
                    m = min(fc['tab']); t = sum(((x - m)//2) << (4*k) for k, x in enumerate(fc['tab']))
                    P(f"""
                    s_lshl_b32 s{sTagQ}, s{sTagQ}, 2
                    s_lshr_b32 s{sTagQ}, {t:#x}, s{sTagQ}
                    s_and_b32 s{sTagQ}, s{sTagQ}, 15
                    s_lshl1_add_u32 s{sTagQ}, s{sTagQ}, {m}
                    """)
                if xg:
                    P(f"""
                    s_bfe_u32 s{sBias}, s2, 0x30003
                    s_lshl_b32 s{sBoost}, s{sBias}, 11
                    s_add_u32 s{sBoost}, s{sBoost}, {WS_G + GL}
                    v_mov_b32 v{vBs}, s{sBoost}
                    s_sub_u32 s{sBoost}, s{sBoost}, s{sFC}
                    v_writelane_b32 v{vFl}, s{sBoost}, 32
                    s_lshl2_add_u32 s{sI}, s{sI}, s{sWv}
                    s_cmp_eq_u32 s{sI}, {4*13+1}
                    s_cselect_b32 s{sFm}, 0xff, 0
                    s_mov_b32 s{sFm+1}, 0
                    v_lshlrev_b32 v{vGd}, 11, v{vLane}
                    v_add_u32 v{vGd}, {WS_G}, v{vGd}
                    v_cndmask_b32 v{vGl}, v{vBig}, v{vGd}, {sp(sFm)}
                    s_lshl_b32 s{sBias}, 1, s{sBias}
                    s_and_b32 s{sFm}, s{sFm}, s{sBias}
                    v_cndmask_b32 v{vGs}, v{vBig}, v{vGd}, {sp(sFm)}
                    v_cndmask_b32 v{vGl}, v{vGl}, v{vBig}, {sp(sFm)}
                    v_cndmask_b32 v{vBs}, v{vBig}, v{vBs}, {sp(sFm)}
                    s_mov_b32 s{sBias}, 0
                    """)
            look = xg and c - 1 in fc['xc']
            if xg and not look: P("s_mov_b32 exec_hi, 0")
            fcs['ids'][c] = P.vm(f"buffer_load_dword v{vFd}, v{vFl}, {srd(rWS)}, s{sFC} offen offset:{128*c}")
            if xg and not look: P("s_mov_b32 exec_hi, -1")
            P.vm(f"buffer_store_dword v{vFt}, v{vFs}, {srd(rWS)}, s{sFC} offen offset:{128*c}")
            if xg and i in xcs: P.vm(f"buffer_store_dword v{vFt}, v{vGs}, {srd(rWS)}, 0 offen offset:{128*c} sc1")
        if xg and i - fc['xd'] in xcs:
            fcs['g'] = P.vm(f"buffer_load_dword v{vGd}, v{vGl}, {srd(rWS)}, 0 offen offset:{128*cps.index(i - fc['xd'])} sc1")
        if xg and i - fc['xd'] - WM - 1 in xcs:
            c = cps.index(i - fc['xd'] - WM - 1)
            P.wait(fcs['g'])
            P(f"""
            v_cmp_eq_u32 {sp(sFm)}, v{vFt}, v{vGd}
            s_bcnt1_i32_b32 s{sFm}, s{sFm}
            v_add_u32 v{vGd}, s{sFm}, v{vFt}
            """)
            P.vm(f"buffer_store_dword v{vGd}, v{vBs}, {srd(rWS)}, 0 offen offset:{128*(c+1)}")
        if i - WM - 1 in cps:
            c = cps.index(i - WM - 1)
            P.wait(fcs['ids'].pop(c))
            pd = fc['Pd'] if not fc['cps'] else ((cps[c+1] - cps[c]) if c + 1 < len(cps) else NS - i)
            g = int(round(fc['gain'] * pd / 32 * 256))
            if fc['s3'] and i >= 150 and not fcs.get('s3'):
                fcs['s3'] = True
                P(f"""
                s_and_b32 s{sBoost}, s2, 3
                s_cmp_eq_u32 s{sBoost}, 3
                s_cselect_b32 s{sBoost}, {fc['s3']}, 0
                s_add_i32 s{sTagQ}, s{sTagQ}, s{sBoost}
                """)
            P(f"""
            v_cmp_eq_u32 {sp(sFm)}, v{vFt}, v{vFd}
            s_bcnt1_i32_b32 s{sBoost}, s{sFm}
            s_mul_i32 s{sBoost}, s{sBoost}, {g}
            s_sub_i32 s{sBoost}, s{sBoost}, {int(fc['r0'] * 32)*g}
            """)
            if xg and c - 1 in fc['xc']:
                P(f"""
                v_readlane_b32 s{sFm}, v{vFd}, 32
                s_sub_u32 s{sFm}, s{sFm}, s{sTag}
                s_mul_i32 s{sBias}, s{sFm}, {int(xg*256)}
                s_sub_i32 s{sBias}, s{sBias}, {int(xg*256*fc['x0'])}
                s_cmp_lt_u32 s{sFm}, 8
                s_cselect_b32 s{sBias}, s{sBias}, 0
                """)
            if xg and (fc['hold'] or c - 1 in fc['xc']): P(f"s_add_i32 s{sBoost}, s{sBoost}, s{sBias}")
            P(f"s_ashr_i32 s{sBoost}, s{sBoost}, 8")
            if fc['tab']: P(f"s_add_i32 s{sBoost}, s{sBoost}, s{sTagQ}")
            fcs['start'] = i + 1

    nk, nv = 32, 160
    jw = 0
    bi = 0; lastbg = -1
    cur = None
    def consume_one():
        nonlocal nk, nv
        if st['kok'] and nk < 160 and nk <= land[0]:
            k_consume(nk); nk += 1
        elif st['vok'] and nv <= land[0]:
            v_consume(nv); nv += 1
        else: return False
        slots.extend(freed); freed.clear()
        return True
    def splittable(items, n):
        full = True; open_br = False
        for it in items[:n]:
            if it[0] == 'i':
                t = it[1]
                if t.startswith(('s_mov_b32 exec', 's_mov_b64 exec')): full = t.endswith('-1') and 'b64' in t
                if t.startswith('s_cbranch_scc'): open_br = True
            elif it[0] == 'l': open_br = False
        last = items[n-1]
        if last[0] == 'i' and last[1].startswith(('s_cmp', 's_cbranch', 's_getpc')): return False
        return full and not open_br
    minfree = 99
    for i in range(NS):
        m0 = len(P.ir)
        issue(i); fc_step(i)
        if i + 1 < len(first):
            for _ in range(first[i+1]): wq_load()
        minfree = min(minfree, len(slots))
        used = lambda: sum(cost(x) for x in P.ir[m0:])
        consume_one()
        lim = 10**9 if i == W-1 else budget
        while True:
            if cur is None:
                if bi < len(bg) and bg[bi][0] <= i and lastbg + bg[bi][2] <= i and used() < lim:
                    keep = P.ir; P.ir = []
                    flag = bg[bi][1]()
                    cur = [P.ir, flag, list(freed), 0]; freed.clear(); P.ir = keep; bi += 1
                    if bg[bi-1][1] not in (c_setup, c_wsw, c_hello2, c_tlb): lim = min(lim, used() + budget) if i == W-1 else lim
                else: break
            items = cur[0]; n = cur[3]; u = used()
            while n < len(items) and not (u >= lim and n > cur[3] and splittable(items, n)):
                u += cost(items[n]); n += 1
            P.ir.extend(items[cur[3]:n]); cur[3] = n
            if n < len(items): break
            if cur[1]: st[cur[1]] = True
            slots.extend(cur[2]); cur = None; lastbg = i
        c = 1
        while c < maxcatch and (used() < budget or len(slots) < 3) and consume_one(): c += 1
    assert bi == len(bg) and cur is None and nk == 160, (bi, len(bg), nk)
    stamp("lastiss")
    if tpad is not None:
        P("s_branch L_tail"); P.raw(f".p2align {tpad[0]}")
        if tpad[1]: P.raw(f".fill {tpad[1]}, 4, 0xbf800000")
        P.label("L_tail")
    while nv < NS:
        for _ in range(wolate):
            if jw < 8: wo_load(jw); jw += 1
        v_consume(nv); nv += 1
    while jw < 8: wo_load(jw); jw += 1
    stamp("vdone")

    r = vWQ
    for q in range(4): P(f"v_mul_f32 v{vAcc+q}, v{vAcc+q}, v{vWt}")
    red_write([(vAcc, 0)])
    P("s_waitcnt lgkmcnt(0)")
    P("s_barrier")
    P(f"s_cmp_lg_u32 s{sWv}, 0" if bpub else f"s_cmp_eq_u32 s{sWv}, 3")
    P("s_cbranch_scc1 L_near_o")
    for k in range(4): P(f"ds_read2st64_b32 {v2(r+2*k)}, v{vAr} offset0:{L_RED//256+2*k} offset1:{L_RED//256+2*k+1}")
    P("s_waitcnt lgkmcnt(0)")
    sum8(r, r)
    P(f"v_bfi_b32 v{r}, v{vFF}, s{sTag}, v{r}")
    t = f"buffer_store_dword v{r}, v{vL4}, {srd(rWS)}, s{sOp} offen"
    if swap: P.vm(t + " sc1"); P.label("L_near_o")
    else: publish("o", t)
    stamp("opub")
    P(f"""
    s_and_b32 s{sT0}, s{sCB}, 15
    s_cmp_ge_u32 s{sT0}, 14
    s_cbranch_scc1 L_done
    """)
    g = vQA; sMiss = sFm
    def ppoll(Q, name, lds, sets, dst, mid=None):
        n = len(lds); D = len(sets)
        for k in range(n): Q(lds[k].replace("@", v4(sets[0]+4*k)))
        Q(f"s_mov_b64 {sp(sMiss)}, -1")
        if mid: mid(Q, n)
        if D > 1:
            Q(f"s_not_b32 s{sT0}, s{sTag}")
            for b in sets[1:]: Q(f"v_mov_b32 v{b}, s{sT0}")
        Q.label(f"L_poll{name}")
        for d in list(range(1, D)) + [0]:
            b = sets[d]
            Q(f"s_waitcnt vmcnt({n*(D-1)})")
            tagcheck(Q, range(b, b+4*n), sTag, 0xff)
            Q("s_wqm_b64 vcc, vcc")
            Q(f"s_andn2_b64 exec, {sp(sMiss)}, vcc")
            for k in range(4*n): Q(f"v_and_b32 v{dst+k}, 0xffffff00, v{b+k}")
            Q(f"s_and_b64 {sp(sMiss)}, {sp(sMiss)}, vcc")
            Q(f"s_cbranch_scc0 L_got{name}")
            Q(f"s_mov_b64 exec, {sp(sMiss)}")
            for k in range(n): Q(lds[k].replace("@", v4(b+4*k)))
            Q("s_mov_b64 exec, -1")
        Q(f"s_add_u32 s{sSpin}, s{sSpin}, 1")
        Q(f"s_cmp_gt_u32 s{sSpin}, 0x20000")
        Q(f"s_cbranch_scc0 L_poll{name}")
        Q.label(f"L_got{name}")
        Q("s_mov_b64 exec, -1")
    def mid(Q, n):
        for q in range(4):
            Q(f"s_waitcnt vmcnt({n + 6 - 2*q})")
            for e in range(8):
                Q(f"v_perm_b32 v{vWO+4*e+q}, v{vQD+4*(2*q+1)+(e>>1)}, v{vQD+4*(2*q)+(e>>1)}, s{sSel1 if e & 1 else sSel0}")
    ppoll(P, "O", [f"buffer_load_dwordx4 @, v{vOg}, {srd(rWS)}, s{sOg} offen offset:{16*k} sc1" for k in range(2)], [g+8, g+16, g+24][:DO], g, mid)
    P("s_bitcmp1_b32 s2, 5" if swap else "s_cmp_ge_u32 s2, 128")
    P("s_cbranch_scc1 L_addB")
    P.label("L_proj")
    Q = Prog(); Q.label("L_addB")
    for k in range(8): Q(f"v_add_f32_dpp v{g+k}, v{g+k}, v{g+k} quad_perm:[2,3,0,1] {FULL}")
    Q("s_branch L_proj"); slow.insert(0, Q)
    stamp("ogot")
    for q in range(4): P(f"v_cvt_pk_bf16_f32 v{vX+q}, v{g+2*q}, v{g+2*q+1}")
    for e in range(8): P(f"v_mfma_f32_16x16x32_bf16 {v4(vQD+4*e)}, {v4(vX)}, {v4(vWO+4*e)}, 0")
    for e in range(8):
        h = e & 1
        P(f"v_add_f32_dpp v{r+(e >> 1)}, v{vQD+4*e+1-h}, v{vQD+4*e+h} row_ror:8 row_mask:0xf bank_mask:{0xc if h else 0x3:#x}")
    P(f"""
    ds_write_b128 v{vPw}, {v4(r)} offset:{L_QRED}
    s_waitcnt lgkmcnt(0)
    s_barrier
    ds_read2st64_b32 {v2(r)}, v{vPr} offset0:{L_QRED//256} offset1:{L_QRED//256+4}
    ds_read2st64_b32 {v2(r+2)}, v{vPr} offset0:{L_QRED//256+8} offset1:{L_QRED//256+12}
    s_cmp_eq_u64 {sp(sYx)}, -1
    s_waitcnt lgkmcnt(0)
    v_add_f32 v{r}, v{r}, v{r+1}
    v_add_f32 v{r+2}, v{r+2}, v{r+3}
    v_add_f32 v{r}, v{r}, v{r+2}
    v_bfi_b32 v{r+1}, v{vFF}, s{sTag}, v{r}
    s_mov_b64 exec, {sp(sYx)}
    """)
    t = f"buffer_store_dword v{r+1}, v{vYo}, {srd(rWS)}, s{sYp} offen"
    if swap: publish("y", t); P(f"s_cmp_eq_u64 {sp(sYx)}, -1")
    else: P.vm(t + " sc1")
    stamp("yapub")
    P("s_cbranch_scc1 L_done")
    P("s_mov_b64 exec, -1")
    f = vP
    def midy(Q, n): Q(f"ds_bpermute_b32 v{r+2}, v{vBp}, v{r}")
    ppoll(P, "Y", [f"buffer_load_dwordx4 @, v{vy}, {srd(rWS)}, s{sYg} offen sc1" for vy in (vY0, vY1)], [vWO+8*k for k in range(4)][:DY], f, midy)
    stamp("fgot")
    P(f"s_not_b64 exec, {sp(sOwn)}")
    for k in range(4): P(f"v_add_f32 v{f+k}, v{f+k}, v{f+4+k}")
    P("s_mov_b64 exec, -1")
    P(f"""
    v_permlane32_swap_b32 v{f}, v{f+1}
    v_permlane32_swap_b32 v{f+2}, v{f+3}
    v_add_f32 v{f}, v{f}, v{f+1}
    v_add_f32 v{f+2}, v{f+2}, v{f+3}
    v_permlane16_swap_b32 v{f}, v{f+2}
    v_add_f32 v{f}, v{f}, v{f+2}
    """)
    xlane("v_add_f32", f, None, ["r8"])
    P("s_waitcnt lgkmcnt(0)")
    P(f"v_add_f32 v{f}, v{f}, v{r+2}")
    P(f"""
    v_cvt_pk_bf16_f32 v{f}, v{f}, v{f}
    s_mov_b32 exec_lo, 0x00ff00ff
    s_mov_b32 exec_hi, 0x00ff00ff
    """)
    P.vm(f"buffer_store_short v{f}, v{vOo}, {srd(rOUT)}, s{sOutO} offen")
    P(f"""
    s_cmp_lg_u32 s{sOutO}, 0
    s_cbranch_scc1 L_done
    s_mov_b64 exec, 1
    v_mov_b32 v{f+2}, s{sTag}
    """)
    P.vm(f"buffer_store_dword v{f+2}, v{vOo}, {srd(rWS)}, 0 offen")
    P.label("L_done")
    if spin:
        P.label("L_spin")
        P(f"""
        s_memrealtime {sp(sNow)}
        s_waitcnt lgkmcnt(0)
        s_sub_u32 s{sNow}, s{sNow}, s{sSt}
        s_cmp_lt_u32 s{sNow}, {spin}
        s_cbranch_scc1 L_spin
        """)
    if diag:
        P("s_mov_b64 exec, -1")
        stamp("end")
        P(f"""
        s_waitcnt lgkmcnt(0) vmcnt(0)
        s_lshl_b32 s{sT0}, s2, 2
        s_add_u32 s{sT0}, s{sT0}, s{sWv}
        s_lshl_b32 s{sT0}, s{sT0}, 7
        s_add_u32 s{sT0}, s{sT0}, {WS_DIAG}
        v_mov_b32 v{vT1}, 0
        s_mov_b64 exec, 1
        """)
        def dump(sreg, off):
            P(f"v_mov_b32 v{vT0}, s{sreg}")
            P.vm(f"buffer_store_dword v{vT0}, v{vT1}, {srd(rWS)}, s{sT0} offen offset:{off}")
        for n, (name, rr) in enumerate(stamps): dump(rr, 4*n)
        dump(sSpin, 4*len(stamps)); dump(sFar, 116)
        P(f"s_getreg_b32 s{sT1}, hwreg(HW_REG_XCC_ID)"); dump(sT1, 120)
        P(f"s_getreg_b32 s{sT1}, hwreg(HW_REG_HW_ID)"); dump(sT1, 124)
    P.label("L_end")
    P("s_endpgm")

    body, stats = P.render()
    for Q in slow: body += Q.render()[0]
    body += 'L_code_end:\n'
    head = open("cdna_kernels/" + KNAME[:-7] + ".s.ref").read().split("; Override launch")[0]
    txt = head + f"; @launch grid=(256,1,1) block=(256,1,1) lds={L_TOTAL}\n" + HEADER
    txt += f'.amdgcn_target "amdgcn-amd-amdhsa--gfx950"\n.text\n.globl {KNAME}\n.p2align 8\n.type {KNAME},@function\n{KNAME}:\n'
    txt += body
    txt += f""".section .rodata,"a"
.p2align 6
.amdhsa_kernel {KNAME}
  .amdhsa_next_free_vgpr 512
  .amdhsa_next_free_sgpr 102
  .amdhsa_accum_offset 256
  .amdhsa_group_segment_fixed_size 0
  .amdhsa_kernarg_size 104
  .amdhsa_user_sgpr_count 2
  .amdhsa_user_sgpr_kernarg_segment_ptr 1
  .amdhsa_system_sgpr_workgroup_id_x 1
.end_amdhsa_kernel
"""
    ids = list(range(256))
    act = [L for L in ids if (((L >> 6) & 1)*8 + (L & 7)) < 14]
    fin = [L for L in act if ((L >> 3) & 7) == (L & 7)]
    if swap:
        mm = lambda L: 4*((L >> 3) & 3) + (L >> 6)
        act = [L for L in ids if mm(L) < 14]; fin = [L for L in act if (mm(L) & 7) == (L & 7)]
    return txt, dict(stats, vhw=V.hw, shw=S.hw, minfree=minfree, stamps=[n for n, _ in stamps], who=dict(ogot=act, yapub=act, fgot=fin))

if __name__ == "__main__":
    import json
    kw = json.loads(sys.argv[2]) if len(sys.argv) > 2 else {}
    t, s = gen(**kw)
    open(sys.argv[1], "w").write(t)
    s.pop('who')
    print(s, file=sys.stderr)
```

```python
import sys, math, struct
from asmlib import Prog, Alloc
KNAME = "concat_heads__mha_block_cached__sliding_block_cached__decode_kernel"

WS_Q, WS_SC, WS_O, WS_FC, WS_Y, WS_G, WS_DIAG = 0x10000, 0x40000, 0x100000, 0x130000, 0x140000, 0x180000, 0x800000
L_QRED, L_ST, L_RED, L_TOTAL = 0, 4096, 4352, 4352 + 3*2048
CS = struct.unpack('<I', struct.pack('<f', math.log2(math.e) / 16.0))[0]
BIG = 0x7ff00000
FULL = "row_mask:0xf bank_mask:0xf"

AUXCOST = [8]
def cost(it):
    if it[0] == 'vm': return 8 if ' a[' in it[1] or 'store' in it[1] else AUXCOST[0]
    if it[0] != 'i': return 2
    t = it[1]
    if t.startswith(';'): return 0
    if t.startswith('v_mfma'): return 16
    if t.startswith(('v_exp', 'v_log', 'v_rcp')): return 10
    if '_dpp' in t or t.startswith('v_permlane'): return 8
    if t.startswith('ds_'): return 12
    if t.startswith('s_waitcnt'): return 60
    if t.startswith('s_barrier'): return 30
    return 4

HEADER = """;
; One launch, 256 workgroups x 4 waves (one wave per SIMD); generated by a script, straight-line code.
; Logical id = b(2) | x(3) | t(3); the 32 workgroups with the same x form a class (A heads 2x, 2x+1, B kv head x).
;   1. q = x @ wq: every workgroup computes one 32-column block for the 4 batches and hands it to its class.
;   2. K streams (B window, then A), keys split over the workgroups of a (batch, head); MFMA scores, rounded to bf16.
;   3. scores are exchanged inside the (batch, x) group; every wave takes the true max / sum of its keys, the
;   4. V streams split along the head dimension (64 columns per workgroup); MFMA P.V gives normalised o slices.
;   5. o is handed to the class; 28 workgroups multiply it with a 256 x 64 block of wo; 16 partial sums per
;      output are added by one wave and stored as bf16.
; earlier launch is never accepted. Class-local hand-offs stay in L2 only after all 32 workgroups of the class
; have been seen (through d_debug) on this XCC; otherwise every store and load of them is sc1.
"""

def gen(W=5, qg=33, sg=18, wflag="", woflag="nt", diag=False, skip=(), spin=0, forcefar=False, fc=None, budget=150, maxcatch=4,
        bpub=278, DO=1, DY=3, wolate=1, auxcost=70, wsl=32, first=(3, 2, 2, 2), hello=4, tpad=None, ipf=1, ipf0=False, tlb=None, qw=True, zones=(), rot=None, swap=False, ow=None, W0=(24, 6), yw=(282, 'p'), noO=True, fakeQ=0):
    AUXCOST[0] = auxcost
    P = Prog()
    V = Alloc('v', 1, 256); S = Alloc('s', 3, 100)
    slots = list(range(64))
    def a4(s): return f"a[{4*s}:{4*s+3}]"
    def v4(r): return f"v[{r}:{r+3}]"
    def v3(r): return f"v[{r}:{r+2}]"
    def v2(r): return f"v[{r}:{r+1}]"
    def srd(r): return f"s[{r}:{r+3}]"
    def sp(r): return f"s[{r}:{r+1}]"
    def vcc(m): P(f"s_mov_b32 vcc_lo, {m:#x}"); P(f"s_mov_b32 vcc_hi, {m:#x}")
    slow = []
    stamps = []
    def stamp(name):
        if diag:
            r = S.get(2); stamps.append((name, r)); P(f"s_memrealtime {sp(r)}")
    fcs = dict(start=None, ids={})
    st = dict(kok=False, vok=False, lgk=False, tag=False)
    if fc is not None:
        fc = dict(dict(first=16, Pd=32, dW=2, r0=0.6, gain=2.5, xg=0, x0=3.5, xd=1, xc=(1, 3, 5), hold=True, neg=None, ns=2, s3=10, cps=(16, 40, 72, 104, 136, 168, 196, 224, 248, 266), tab=(4, -8, 2, -8, 10, 0, 6, -4)), **fc)
        WM = W + fc['dW']
        cps = list(fc['cps'] or range(fc['first'], 288 - WM - 6, fc['Pd']))
    else:
        WM = W; cps = []

    rX, rWQ, rBK, rBV, rAK, rAV, rWO, rWS, rOUT = [S.get(4) for _ in range(9)]
    sT0, sT1, sI, sWv, sTag, sOff, sAux, sSel0, sSel1, sC, sSpin, sCB, sTagQ, sFar, sBoost, sFC, sKo = [S.get() for _ in range(17)]
    vLane, vT0, vT1, vT2, vBig = [V.get() for _ in range(5)]
    vXo, vWQo, vKo, vVo = [V.get() for _ in range(4)]
    def desc(r, sz):
        P(f"s_mov_b32 s{r+2}, {sz}"); P(f"s_mov_b32 s{r+3}, 0x20000")
    sDbg = S.get(2); vH = V.get(2)
    vXT = V.get()
    def code_pf():
        P(f"s_getpc_b64 {sp(rOUT+2)}")
        P.label("L_pc")
        P(f"""
        v_and_b32 v{vT0}, {31 if ipf > 1 else 255}, v{vH}
        v_min_u32 v{vT1}, {ipf-1}, v0
        v_mad_u32_u24 v{vT0}, v{vT0}, {ipf}, v{vT1}
        v_lshlrev_b32 v{vT0}, 7, v{vT0}
        v_min_u32 v{vT0}, L_code_end-L_pc-4, v{vT0}
        """)
        P.vm(f"global_load_dword v{vXT}, v{vT0}, {sp(rOUT+2)}")
    hl1 = f"""s_load_dwordx2 {sp(sDbg)}, s[0:1], 88
    s_getreg_b32 s{sTagQ}, hwreg(HW_REG_XCC_ID, 0, 4)
    ; byte (id&7)*32 + (id>>3) of the zeroed debug buffer reports this workgroup's XCC
    s_mul_i32 s{sT0}, s2, 0x101
    s_bfe_u32 s{sT0}, s{sT0}, 0x80003
    v_mov_b32 v{vH}, s{sT0}
    v_add_u32 v{vH+1}, s{sTagQ}, 1"""
    P("s_cmp_ge_u32 s2, 256")
    P("s_cbranch_scc1 L_end")
    stamp("start")
    if spin:
        sSt = S.get(2); sNow = S.get(2); P(f"s_memrealtime {sp(sSt)}")
    P(f"""
    s_lshr_b32 s{sKo}, s2, 7
    s_mul_i32 s{sKo}, s{sKo}, 40
    s_load_dwordx2 {sp(rBK)}, s[0:1], 48
    s_load_dwordx2 {sp(rX)}, s[0:1], s{sKo}
    s_load_dwordx2 {sp(rWQ)}, s[0:1], s{sKo} offset:24
    s_load_dwordx2 {sp(rWS)}, s[0:1], 96
    {hl1}
    """)
    if ipf and ipf0: code_pf()
    P(f"""
    ; logical id = b(2) | x(3) | t(3): workgroups that are 8 apart share x (L2 locality only)
    s_and_b32 s{sT0}, s2, 7
    s_bfe_u32 s{sT1}, s2, 0x30003
    s_bfe_u32 s{sCB}, s2, 0x40003
    s_lshr_b32 s2, s2, 6
    s_lshl3_add_u32 s2, s2, s{sT0}
    s_lshl_b32 s{sOff}, s2, 21
    s_lshl3_add_u32 s2, s2, s{sT1}
    s_lshl4_add_u32 s{sCB}, s{sT0}, s{sCB}
    s_lshl_b32 s{sAux}, s{sCB}, 6
    v_lshrrev_b32 v{vT0}, 6, v0
    v_lshrrev_b32 v{vT2}, 2, v0
    v_readfirstlane_b32 s{sWv}, v{vT0}
    v_and_b32 v{vT1}, 3, v0
    v_lshlrev_b32 v{vWQo}, 12, v{vT2}
    v_add_lshl_u32 v{vWQo}, v{vWQo}, v{vT1}, 4
    v_cmp_gt_u32 vcc, 56, v{vT2}
    v_and_b32 v{vKo}, 3, v{vT2}
    v_mad_u32_u24 v{vXo}, v{vKo}, 55, v{vT2}
    v_add_lshl_u32 v{vXo}, v{vXo}, v{vT1}, 4
    v_lshl_add_u32 v{vKo}, v{vT0}, 2, v{vKo}
    v_cndmask_b32 v{vXo}, 2.0, v{vXo}, vcc
    v_lshl_add_u32 v{vKo}, v{vKo}, 6, v{vT1}
    v_and_b32 v{vT2}, 12, v{vT2}
    v_add_lshl_u32 v{vKo}, v{vKo}, v{vT2}, 4
    s_or_b32 s{sT0}, s{sT1}, 96
    s_lshl_b32 s{sT0}, s{sT0}, 14
    s_add_u32 s{sOff}, s{sOff}, s{sT0}
    """)
    if fakeQ:
        P(f"""
        v_lshrrev_b32 v{vT0}, 3, v0
        v_mul_u32_u24 v{vWQo}, {7*512}, v{vT0}
        v_and_b32 v{vT0}, 7, v0
        v_add_lshl_u32 v{vWQo}, v{vWQo}, v{vT0}, 4
        s_and_b32 s{sT0}, s{sCB}, 1
        s_mul_i32 s{sT0}, s{sT0}, {224*8192-64}
        s_add_u32 s{sAux}, s{sAux}, s{sT0}
        """)
    desc(rX, 3584); desc(rWQ, 3670016); desc(rBK, 1 << 26)
    P("s_waitcnt lgkmcnt(0)")
    stamp("karg")
    P.vm(f"global_store_byte v{vH}, v{vH+1}, {sp(sDbg)}")
    vX = V.get(4, 4); vWQ = V.get(32, 4)
    idwq = []
    def wq_load():
        j = len(idwq) - 1
        if j < 0: idwq.append(P.vm(f"buffer_load_dwordx4 {v4(vX)}, v{vXo}, {srd(rX)}, 0 offen"))
        elif "wq" in skip or (fakeQ and j == 7): idwq.append(None)
        else:
            if j: P(f"s_addk_i32 s{sAux}, 0x2000")
            idwq.append(P.vm(f"buffer_load_dwordx4 {v4(vWQ+4*j)}, v{vWQo}, {srd(rWQ)}, s{sAux} offen {wflag}"))
    first = list(first or [9])
    assert sum(first) == 9
    for _ in range(first[0]): wq_load()
    vTl = V.get(2)
    def c_wsw():
        P(f"""
        s_mul_i32 s{sT0}, s2, 3072
        s_add_u32 s{sT0}, s{sT0}, {WS_SC}
        v_mov_b32 v{vTl}, s{sT0}
        """)
        if qw:
            P(f"""
            s_lshr_b32 s{sT0}, s2, 7
            s_lshl_b32 s{sT0}, s{sT0}, 9
            s_add_u32 s{sT0}, s{sT0}, s{sCB}
            s_lshl_b32 s{sT0}, s{sT0}, 7
            s_add_u32 s{sT0}, s{sT0}, {(WS_Q - 24*16384) & 0xffffffff}
            v_mul_u32_u24 v{vTl+1}, {16384-128}, v0
            v_add_u32 v{vTl+1}, s{sT0}, v{vTl+1}
            v_cmp_gt_u32 vcc, 24, v0
            v_cndmask_b32 v{vTl}, v{vTl+1}, v{vTl}, vcc
            v_cmp_gt_u32 vcc, 28, v0
            v_cndmask_b32 v{vTl}, 2.0, v{vTl}, vcc
            """)
        elif wsl > 24:
            P(f"""
            v_mul_u32_u24 v{vTl+1}, 768, v{vH}
            v_add_u32 v{vTl+1}, {BIG if noO else WS_O - 24*128}, v{vTl+1}
            v_cmp_gt_u32 vcc, 24, v0
            v_cndmask_b32 v{vTl}, v{vTl+1}, v{vTl}, vcc
            """)
        if wsl > 30:
            P(f"""
            v_lshlrev_b32 v{vTl+1}, 8, v{vH}
            v_add_u32 v{vTl+1}, {WS_FC - 30*128}, v{vTl+1}
            v_cmp_gt_u32 vcc, 30, v0
            v_cndmask_b32 v{vTl}, v{vTl+1}, v{vTl}, vcc
            """)
        P(f"""
        v_lshl_add_u32 v{vTl}, v0, 7, v{vTl}
        v_cmp_gt_u32 vcc, {wsl}, v0
        v_cndmask_b32 v{vTl}, 2.0, v{vTl}, vcc
        """)
        desc(rWS, 1 << 24)
        P.vm(f"buffer_load_dword v{vTl+1}, v{vTl}, {srd(rWS)}, 0 offen sc1")
    stream = []
    for k in range(16): stream.append(("BK", k))
    for k in range(16): stream.append(("BV", k))
    for k in range(128): stream.append(("AK", k))
    for k in range(128): stream.append(("AV", k))
    NS = len(stream)
    sid = {}; sslot = {}; land = [-1]
    def issue(i):
        kind, k = stream[i]
        if k == 0 and kind == "BV":
            assert st['lgk']
            P(f"""
            s_and_b32 s{sI}, s2, 3
            s_mul_i32 s{sI}, s{sI}, {16384-128}
            s_add_u32 s{sI}, s{sI}, {3*131072}
            s_sub_u32 s{sOff}, s{sOff}, s{sI}
            """)
        elif k == 0 and kind[0] == "A" and rot:
            vo = vKo if kind == "AK" else vVo
            P(f"""
            s_lshr_b32 s{sI}, s2, 2
            s_lshl_b32 s{sI}, s{sI}, 21
            v_add_u32 v{vo}, s{sI}, v{vo}
            s_bfe_u32 s{sOff}, s2, {rot[0]:#x}
            s_lshl_b32 s{sOff}, s{sOff}, {rot[1]}
            s_and_b32 s{sI}, s2, 3
            s_lshl_b32 s{sI}, s{sI}, {14 if kind == "AK" else 7}
            s_add_u32 s{sOff}, s{sOff}, s{sI}
            """)
        elif k == 0 and kind[0] == "A":
            P(f"""
            s_lshr_b32 s{sOff}, s2, 2
            s_lshl_b32 s{sOff}, s{sOff}, 21
            s_and_b32 s{sI}, s2, 3
            s_lshl_b32 s{sI}, s{sI}, {14 if kind == "AK" else 7}
            s_add_u32 s{sOff}, s{sOff}, s{sI}
            """)
        elif k and k % 4 == 0 and kind[0] == "B":
            P(f"s_add_u32 s{sOff}, s{sOff}, {0x20000 if kind == 'BK' else 0x14000}")
        elif k and kind[1] == "V":
            P(f"s_addk_i32 s{sOff}, 0x4000")
        elif k and k % 4 == 0:
            P(f"s_add_u32 s{sOff}, s{sOff}, 0x10000")
        if rot and kind[0] == "A" and k and k % 32 == 0: P(f"s_and_b32 s{sOff}, s{sOff}, 0x1fffff")
        wz = [z[2] for z in zones if z[0] <= i < z[1]]
        if wz and fcs['start'] is not None:
            P.cwait(sid[i-wz[0]], sid[i-WM], [f"s_cmp_gt_i32 s{sBoost}, {i - fcs['start']}"]); land[0] = max(land[0], i-WM)
        elif fcs['start'] is not None:
            if fc['neg'] is not None:
                P.cwait(sid[i-W+1], None, [f"s_cmp_ge_i32 s{sBoost}, {-fc['neg'] - fc['ns']*(i - fcs['start'])}"])
            P.cwait(sid[i-W], sid[i-WM], [f"s_cmp_gt_i32 s{sBoost}, {i - fcs['start']}"]); land[0] = max(land[0], i-WM)
        else:
            w0 = W0[1] if (W0 and i < W0[0]) else W
            if i >= w0: P.wait(sid[i-w0]); land[0] = max(land[0], i-w0)
        s = slots.pop(0); sslot[i] = s
        r, vo = {"BK": (rBK, vKo), "BV": (rBV, vVo), "AK": (rAK, vKo), "AV": (rAV, vVo)}[kind]
        imm = 0 if kind[1] == "V" else [0, 512, 256, 768][k & 3]
        o = f" offset:{imm}" if imm else ""
        sid[i] = P.vm(f"buffer_load_dwordx4 {a4(s)}, v{vo}, {srd(r)}, s{sOff} offen{o} nt")
    freed = []
    def release(i): freed.append(sslot[i])

    def xlane(op, x, t, steps):
        for st in steps:
            if st in ("x1", "x2", "r4", "r8"):
                d = {"x1": "quad_perm:[1,0,3,2]", "x2": "quad_perm:[2,3,0,1]", "r4": "row_ror:4", "r8": "row_ror:8"}[st]
                P(f"{op}_dpp v{x}, v{x}, v{x} {d} {FULL}")
            else:
                P(f"v_mov_b32 v{t}, v{x}")
                P(f"v_permlane{st[1:]}_swap_b32 v{x}, v{t}")
                P(f"{op} v{x}, v{x}, v{t}")
    def tagcheck(Q, tags, stag, mask):
        tags = list(tags)
        if len(tags) % 2: tags.append(tags[-1])
        pairs = list(zip(tags[0::2], tags[1::2]))
        for n, (a, b) in enumerate(pairs):
            d = vT0 if n == 0 else (vT1 if n % 2 else vT2)
            Q(f"v_bitop3_b32 v{d}, v{a}, v{b}, s{stag} bitop3:0x7e")
            if n and n % 2 == 0: Q(f"v_or3_b32 v{vT0}, v{vT0}, v{vT1}, v{vT2}")
            elif n and n == len(pairs)-1: Q(f"v_or_b32 v{vT0}, v{vT0}, v{vT1}")
        if mask: Q(f"v_and_b32 v{vT0}, {mask:#x}, v{vT0}")
        Q(f"v_cmp_ne_u32 vcc, 0, v{vT0}")
    def gather(name, loads, tags, stag, mask):
        ids = []
        def iss():
            if name+"g" in skip: return
            for n, t in enumerate(loads): ids.append(publish(f"{name}{n}", t.replace(" sc1", "")))
        def chk():
            if name+"g" in skip: return
            P.wait(*ids)
            tagcheck(P, tags, stag, mask)
            P(f"s_cbranch_vccnz L_slow_{name}")
            P.label(f"L_back_{name}")
            Q = Prog()
            Q.label(f"L_slow_{name}")
            Q(f"s_add_u32 s{sSpin}, s{sSpin}, 1")
            Q(f"s_cmp_gt_u32 s{sSpin}, 0x40000")
            Q(f"s_cbranch_scc1 L_back_{name}")
            for t in loads: Q.vm(t)
            Q.waitall()
            tagcheck(Q, tags, stag, mask)
            Q(f"s_cbranch_vccnz L_slow_{name}")
            Q(f"s_branch L_back_{name}")
            slow.append(Q)
        return iss, chk
    def publish(name, txt):
        P(f"s_cmp_lg_u32 s{sFar}, 0")
        P(f"s_cbranch_scc1 L_far_{name}")
        i = P.vm(txt)
        P.label(f"L_near_{name}")
        Q = Prog(); Q.label(f"L_far_{name}")
        Q.vm(txt.rstrip() + " sc1")
        Q(f"s_branch L_near_{name}"); slow.append(Q)
        return i
    def extract(D, dst, tau, t):
        rs = [r for r in range(4) if r != tau]
        src = D + tau
        for n, r in enumerate(rs):
            last = n == 2
            m = f"row_mask:0xf bank_mask:{1 << tau:#x}" if last else FULL
            P(f"v_add_f32_dpp v{dst if last else t}, v{D+r}, v{src} row_ror:{(4*(tau-r)) % 16} {m}")
            src = t
    def transp(dst, src, e):
        for q in range(4):
            P(f"v_perm_b32 v{dst+q}, v{src+4*(2*q+1)+(e>>1)}, v{src+4*(2*q)+(e>>1)}, s{sSel1 if e & 1 else sSel0}")
    def sum8(r, dst):
        P(f"""
        v_add_f32 v{r}, v{r}, v{r+1}
        v_add_f32 v{r+2}, v{r+2}, v{r+3}
        v_add_f32 v{r+4}, v{r+4}, v{r+5}
        v_add_f32 v{r+6}, v{r+6}, v{r+7}
        v_add_f32 v{r}, v{r}, v{r+2}
        v_add_f32 v{r+4}, v{r+4}, v{r+6}
        v_add_f32 v{dst}, v{r}, v{r+4}
        """)

    bg = []
    def B(at, fn, after=0): bg.append((at, fn, after))

    vSel = V.get(4); vL12, vPw, vPr, vL4 = [V.get() for _ in range(4)]
    def c_setup():
        if swap:
            P(f"s_bfe_u32 s{sKo}, s2, 0x10005")
            P(f"s_mul_i32 s{sKo}, s{sKo}, 40")
        P(f"""
        s_load_dword s{sTag}, {sp(rWS)}, 0
        s_load_dwordx2 {sp(rBV)}, s[0:1], 56
        s_load_dwordx2 {sp(rAK)}, s[0:1], 8
        s_load_dwordx2 {sp(rAV)}, s[0:1], 16
        s_load_dwordx2 {sp(rWO)}, s[0:1], s{sKo} offset:32
        s_load_dwordx2 {sp(rOUT)}, s[0:1], 80
        v_and_b32 v{vLane}, 63, v0
        v_mov_b32 v{vBig}, {BIG}
        """)
        if ipf and not ipf0: code_pf()
        desc(rBV, 1 << 26); desc(rAK, 1 << 27); desc(rAV, 1 << 27); desc(rWO, 3670016); desc(rOUT, 7168)
        P(f"""
        s_mov_b32 s{sSel0}, 0x05040100
        s_mov_b32 s{sSel1}, 0x07060302
        s_mov_b32 s{sC}, {CS:#x}
        s_mov_b32 s{sSpin}, 0
        v_mul_u32_u24 v{vL12}, 12, v{vLane}
        v_lshlrev_b32 v{vL4}, 2, v{vLane}
        v_lshlrev_b32 v{vPw}, 3, v0
        v_and_b32 v{vPr}, 3, v0
        v_bfe_u32 v{vT0}, v0, 3, 2
        v_lshl_add_u32 v{vPr}, v{vPr}, 2, v{vT0}
        v_lshrrev_b32 v{vT0}, 6, v0
        v_lshl_add_u32 v{vPr}, v{vT0}, 4, v{vPr}
        v_bfe_u32 v{vT0}, v0, 2, 1
        v_lshl_add_u32 v{vPr}, v{vPr}, 1, v{vT0}
        v_bfe_u32 v{vT0}, v0, 5, 1
        v_lshl_add_u32 v{vPr}, v{vT0}, 8, v{vPr}
        v_lshlrev_b32 v{vPr}, 2, v{vPr}
        v_lshrrev_b32 v{vT0}, 3, v0
        v_and_b32 v{vT1}, 7, v0
        v_lshlrev_b32 v{vVo}, 9, v{vT0}
        v_lshl_add_u32 v{vVo}, v{vT1}, 4, v{vVo}
        v_and_b32 v{vT0}, 1, v{vT0}
        v_mul_u32_u24 v{vT0}, 0x0202, v{vT0}
        v_add_u32 v{vT0}, 0x0100, v{vT0}
        v_or_b32 v{vT2}, 0x0c0c0000, v{vT0}
        v_lshlrev_b32 v{vT0}, 16, v{vT0}
        v_or_b32 v{vT0}, 0x0c0c, v{vT0}
        """)
        vcc(0xaaaaaaaa)
        P(f"v_cndmask_b32 v{vT0}, v{vT2}, v{vT0}, vcc")
        P(f"v_mov_b32 v{vT2}, 0x0c0c0c0c")
        for r in range(4):
            vcc(0x03030303 << (2*r)); P(f"v_cndmask_b32 v{vSel+r}, v{vT2}, v{vT0}, vcc")

    vQD = V.get(32, 4); vTB = [V.get(4, 4), V.get(4, 4)]
    def proj_write(dst, tmp):
        for e0 in (0, 4):
            for n in range(3):
                for e in range(e0, e0+4):
                    D = vQD + 4*e; tau = e & 3
                    r = [x for x in range(4) if x != tau][n]
                    m = f"row_mask:0xf bank_mask:{1 << tau:#x}" if n == 2 else FULL
                    P(f"v_add_f32_dpp v{dst+(e >> 2) if n == 2 else tmp+tau}, v{D+r}, v{tmp+tau if n else D+tau} row_ror:{(4*(tau-r)) % 16} {m}")
        P(f"ds_write_b64 v{vPw}, {v2(dst)} offset:{L_QRED}")
        P("s_waitcnt lgkmcnt(0)")
    def proj_read(r):
        P("s_barrier")
        P(f"ds_read2st64_b32 {v2(r)}, v{vPr} offset0:{L_QRED//256} offset1:{L_QRED//256+2}")
    def proj_sum(r):
        P("s_waitcnt lgkmcnt(0)")
        P(f"v_add_f32 v{r}, v{r}, v{r+1}")
        xlane("v_add_f32", r, r+1, ["p32"])
    vFl, vFs, vFd, vFt = vXo, vWQo, V.get(), V.get()
    sFm = S.get(2)
    def tag_setup():
        P(f"""
        s_add_u32 s{sTag}, s{sTag}, 0x9e3779b9
        """)
    def fc_setup():
        P(f"""
        ; one line per (class, wave, checkpoint): a dword for each of the 32 workgroups of the class
        s_bfe_u32 s{sFC}, s2, 0x30003
        s_lshl2_add_u32 s{sFC}, s{sFC}, s{sWv}
        s_lshl_b32 s{sFC}, s{sFC}, 11
        s_add_u32 s{sFC}, s{sFC}, {WS_FC}
        s_and_b32 s{sI}, s2, 7
        s_lshr_b32 s{sBoost}, s2, 6
        s_lshl3_add_u32 s{sI}, s{sBoost}, s{sI}
        v_cmp_eq_u32 {sp(sFm)}, s{sI}, v{vLane}
        v_cndmask_b32 v{vFs}, v{vBig}, v{vL4}, {sp(sFm)}
        v_cmp_gt_u32 {sp(sFm)}, 32, v{vLane}
        v_cndmask_b32 v{vFl}, v{vBig}, v{vL4}, {sp(sFm)}
        """)
    hid = []
    def c_hello2():
        P(f"v_and_b32 v{vH}, 0xe0, v{vH}")
        P(f"v_and_or_b32 v{vH}, v0, 31, v{vH}")
        hid.append(P.vm(f"global_load_ubyte v{vH}, v{vH}, {sp(sDbg)}"))
    def c_q():
        P.wait(*idwq)
        stamp("wq")
        for e in range(8):
            transp(vTB[e & 1], vWQ, e)
            P(f"v_mfma_f32_16x16x32_bf16 {v4(vQD+4*e)}, {v4(vX)}, {v4(vTB[e & 1])}, 0")
        proj_write(vWQ, vWQ+4)
        return 'lgk'
    def c_q4():
        r = vWQ
        proj_read(r)
        tag_setup()
        P(f"""
        s_lshr_b32 s{sT0}, s2, 7
        s_lshl2_add_u32 s{sT0}, s{sT0}, s{sWv}
        s_lshl_b32 s{sT0}, s{sT0}, 7
        s_add_u32 s{sT0}, s{sT0}, s{sCB}
        s_lshl_b32 s{sT0}, s{sT0}, 7
        s_add_u32 s{sT0}, s{sT0}, {WS_Q}
        v_mov_b32 v{r+9}, s{sTag}
        """)
        proj_sum(r)
        if True:
            P.wait(*hid)
            P(f"""
            ; class-local hand-offs go through L2 only if all 32 workgroups of the class were seen to report this XCC
            v_cmp_ne_u32 vcc, v{vH}, v{vH+1}
            s_mov_b32 s{sFar}, vcc_lo
            """)
            if forcefar: P(f"s_mov_b32 s{sFar}, 1")
        P(f"""
        v_mov_b32_dpp v{r+1}, v{r} quad_perm:[1,0,3,2] {FULL}
        v_cvt_pk_bf16_f32 v{r+8}, v{r}, v{r+1}
        s_mov_b32 exec_lo, 0x55555555
        s_mov_b32 exec_hi, 0
        """)
        publish("q", f"buffer_store_dwordx2 {v2(r+8)}, v{vL4}, {srd(rWS)}, s{sT0} offen")
        P("s_mov_b64 exec, -1")
        stamp("qpub")
        return 'tag'
    def c_tlb():
        P(f"""
        s_lshr_b32 s{sT0}, s2, 2
        s_lshl_b32 s{sT0}, s{sT0}, 21
        s_lshr_b32 s{sT1}, s{sCB}, 4
        s_mul_i32 s{sT1}, s{sT1}, {512*896}
        v_cmp_eq_u32 vcc, 0, v0
        v_cndmask_b32 v{vT0}, 2.0, v0, vcc
        s_waitcnt lgkmcnt(0)
        """)
        if "V" in tlb: P.vm(f"buffer_load_dword v{vTl}, v{vT0}, {srd(rBV)}, s{sOff} offen nt")
        if "K" in tlb: P.vm(f"buffer_load_dword v{vTl}, v{vT0}, {srd(rAK)}, s{sT0} offen nt")
        if "A" in tlb: P.vm(f"buffer_load_dword v{vTl}, v{vT0}, {srd(rAV)}, s{sT0} offen nt")
        if "W" in tlb: P.vm(f"buffer_load_dword v{vTl}, v{vT0}, {srd(rWO)}, s{sT1} offen nt")
        if "O" in tlb: P.vm(f"buffer_load_dword v{vTl}, v{vT0}, {srd(rOUT)}, 0 offen nt")
    B(W-1, c_wsw); B(0, c_setup)
    if tlb: B(0, c_tlb)
    B(hello, c_hello2)
    B(len(first) - 2 + (W if len(first) > 1 else 0), c_q); B(hello + W + 1, c_q4, 1)

    vQA = V.get(32, 4); vQB = V.get(16, 4)
    vG = vQD
    vGo = V.get(2); sG = [S.get() for _ in range(8)]
    ql = [f"buffer_load_dwordx4 {v4(vG+8*u+4*hf)}, v{vGo}, {srd(rWS)}, s{sG[0]} offen offset:{512*u+16*hf} sc1" for u in range(2) for hf in range(2)]
    ql += [f"buffer_load_dwordx4 {v4(vG+16+8*u+4*hf)}, v{vGo+1}, {srd(rWS)}, s{sG[1]} offen offset:{512*u+16*hf} sc1" for u in range(2) for hf in range(2)]
    q_iss, q_chk = gather("q", ql, range(vG+1, vG+32, 2), sTag, None)
    def c_qg():
        P(f"""
        v_lshrrev_b32 v{vGo}, 2, v{vLane}
        v_lshlrev_b32 v{vGo}, 5, v{vGo}
        v_bfe_u32 v{vT0}, v{vLane}, 1, 1
        v_lshl_add_u32 v{vGo+1}, v{vT0}, 10, v{vGo}
        s_lshr_b32 s{sG[0]}, s2, 2
        s_lshl_b32 s{sG[0]}, s{sG[0]}, 10
        s_add_u32 s{sG[0]}, s{sG[0]}, {WS_Q}
        s_lshr_b32 s{sG[1]}, s2, 3
        s_lshl_b32 s{sG[1]}, s{sG[1]}, 11
        s_add_u32 s{sG[1]}, s{sG[1]}, {WS_Q + 4*16384}
        """)
        q_iss()
    def c_qb():
        q_chk(); stamp("qgot")
        for t in range(4):
            vcc(0x11111111 << t)
            for u in range(2):
                for q in range(4): P(f"v_cndmask_b32 v{vQA+16*u+4*t+q}, 0, v{vG+8*u+2*q}, vcc")
        for t in range(2):
            vcc(0x55555555 << t)
            for u in range(2):
                for q in range(4): P(f"v_cndmask_b32 v{vQB+8*u+4*t+q}, 0, v{vG+16+8*u+2*q}, vcc")
        return 'kok'
    B(qg, c_qg); B(0, c_qb, WM+1)

    vD = [V.get(4, 4) for _ in range(4)]
    vSB = V.get()
    def c_bqk():
        P.wait(sid[15])
        D = vWQ
        for tau in range(4):
            for n in range(4):
                t, u = n & 1, n >> 1
                P(f"v_mfma_f32_16x16x32_bf16 {v4(D+4*tau)}, {a4(sslot[4*tau+n])}, {v4(vQB+8*u+4*t)}, {v4(D+4*tau) if n else 0}")
                release(4*tau+n)
        for tau in range(4): extract(D+4*tau, vSB, tau, vT0)
        P(f"""
        v_cvt_pk_bf16_f32 v{vSB}, v{vSB}, v{vSB}
        v_mov_b32 v{vT0}, 0xffff
        v_bfi_b32 v{vSB}, v{vT0}, s{sTag}, v{vSB}
        """)
    B(15+WM, c_bqk)

    vWO = V.get(32, 4); vWOo = V.get()
    def wo_load(j):
        if j == 4: P(f"s_addk_i32 s{sAux}, {4*896}")
        if "wo" not in skip:
            P.vm(f"buffer_load_dwordx4 {v4(vQD+4*j)}, v{vWOo}, {srd(rWO)}, s{sAux} offen offset:{896*(j & 3)} {woflag}")

    vSA = V.get(4, 4)
    pend = []
    def k_consume(i):
        k = i - 32
        unit, n = k >> 4, k & 15
        t, u, par = n >> 2, (n >> 1) & 1, n & 1
        D = vD[2*(unit & 1) + par]
        first = (t == 0 and u == 0)
        P(f"v_mfma_f32_16x16x32_bf16 {v4(D)}, {a4(sslot[i])}, {v4(vQA+16*u+4*t)}, {0 if first else v4(D)}")
        release(i)
        while pend and n >= 2:
            pend.pop(0)()
        if n == 15:
            for p_ in range(2):
                pend.append(lambda p_=p_, unit=unit: extract(vD[2*(unit & 1)+p_], vSA + 2*(unit >> 2) + p_, unit & 3, vXT))
            if k == 127:
                while pend: pend.pop(0)()
                c_spub()
    def c_spub():
        o = vD[0]
        P(f"""
        s_lshl2_add_u32 s{sI}, s2, s{sWv}
        s_mul_i32 s{sI}, s{sI}, 768
        s_add_u32 s{sI}, s{sI}, {WS_SC}
        v_cvt_pk_bf16_f32 v{o}, v{vSA}, v{vSA+1}
        v_cvt_pk_bf16_f32 v{o+1}, v{vSA+2}, v{vSA+3}
        v_mov_b32 v{o+2}, v{vSB}
        """)
        if "scs" not in skip: publish("sc", f"buffer_store_dwordx3 {v3(o)}, v{vL12}, {srd(rWS)}, s{sI} offen")
        stamp("scpub")
    vSG = vWQ
    vE = vQA; vEB = vQA + 16
    vP = V.get(8, 4); vPB = vQB + 4; vM, vL, vMB, vLB = vQB, vQB+1, vQB+2, vQB+3
    vWt, vWtB, vFF = vQB+8, vQB+9, vQB+10
    sl = [f"buffer_load_dwordx3 {v3(vSG+4*k)}, v{vL12}, {srd(rWS)}, s{sG[k]} offen sc1" for k in range(4)]
    sl += [f"buffer_load_dword v{vSG+16+k}, v{vL12}, {srd(rWS)}, s{sG[4+k]} offen offset:8 sc1" for k in range(4)]
    sbr = [vSG+4*k+2 for k in range(4)] + [vSG+16+k for k in range(4)]
    s_iss, s_chk = gather("sc", sl, sbr, sTag, 0xffff)
    def c_sg():
        P(f"""
        s_and_b32 s{sT0}, s2, 0xfc
        s_lshl2_add_u32 s{sT0}, s{sT0}, s{sWv}
        s_xor_b32 s{sT1}, s{sT0}, 16
        s_mul_i32 s{sT0}, s{sT0}, 768
        s_mul_i32 s{sT1}, s{sT1}, 768
        s_add_u32 s{sG[0]}, s{sT0}, {WS_SC}
        s_add_u32 s{sG[4]}, s{sT1}, {WS_SC}
        """)
        for k in (1, 2, 3, 5, 6, 7): P(f"s_add_u32 s{sG[k]}, s{sG[k-1]}, 3072")
        s_iss()
    def c_sm1():
        s_chk(); stamp("scgot")
        for r in range(8):
            src = vSG + 4*(r >> 1) + (r & 1)
            P(f"v_lshlrev_b32 v{vE+2*r}, 16, v{src}")
            P(f"v_and_b32 v{vE+2*r+1}, 0xffff0000, v{src}")
        P(f"v_max3_f32 v{vM}, v{vE}, v{vE+1}, v{vE+2}")
        for r in range(3, 15, 2): P(f"v_max3_f32 v{vM}, v{vM}, v{vE+r}, v{vE+r+1}")
        P(f"v_max_f32 v{vM}, v{vM}, v{vE+15}")
        xlane("v_max_f32", vM, vT0, ["x1", "x2", "r4", "r8", "p16", "p32"])
        P(f"v_mul_f32 v{vM}, s{sC}, v{vM}")
        for r in range(16):
            P(f"v_fma_f32 v{vE+r}, v{vE+r}, s{sC}, -v{vM}")
            P(f"v_exp_f32 v{vE+r}, v{vE+r}")
        for r in range(8): P(f"v_cvt_pk_bf16_f32 v{vP+r}, v{vE+2*r}, v{vE+2*r+1}")
        return 'vok'
    def c_sm3():
        for r in range(8): P(f"v_add_f32 v{vE+r}, v{vE+r}, v{vE+8+r}")
        sum8(vE, vL)
        xlane("v_add_f32", vL, vT0, ["x1", "x2", "r4", "r8", "p16", "p32"])
    def c_sb1():
        for k in range(8): P(f"v_and_b32 v{vEB+k}, 0xffff0000, v{sbr[k]}")
        P(f"v_max3_f32 v{vMB}, v{vEB}, v{vEB+1}, v{vEB+2}")
        P(f"v_max3_f32 v{vMB}, v{vMB}, v{vEB+3}, v{vEB+4}")
        P(f"v_max3_f32 v{vMB}, v{vMB}, v{vEB+5}, v{vEB+6}")
        P(f"v_max_f32 v{vMB}, v{vMB}, v{vEB+7}")
        xlane("v_max_f32", vMB, vT0, ["x1", "r4", "r8", "p16", "p32"])
        P(f"v_mul_f32 v{vMB}, s{sC}, v{vMB}")
        for k in range(8):
            P(f"v_fma_f32 v{vEB+k}, v{vEB+k}, s{sC}, -v{vMB}")
            P(f"v_exp_f32 v{vEB+k}, v{vEB+k}")
        for k in range(4):
            P(f"v_mov_b32_dpp v{vT0}, v{vEB+k} quad_perm:[1,0,3,2] {FULL}")
            P(f"v_cvt_pk_bf16_f32 v{vPB+k}, v{vEB+k}, v{vT0}")
        sum8(vEB, vLB)
        xlane("v_add_f32", vLB, vT0, ["x1", "r4", "r8", "p16", "p32"])
        P(f"""
        v_bfe_u32 v{vT0}, v{vLane}, 1, 1
        v_lshlrev_b32 v{vT0}, 6, v{vT0}
        s_lshl_b32 s{sT0}, s{sWv}, 4
        v_add_u32 v{vT0}, s{sT0}, v{vT0}
        ds_write_b128 v{vT0}, {v4(vM)} offset:{L_ST}
        """)
    vBc = [V.get(), V.get()]
    vTC = [V.get(4, 4), V.get(4, 4)]
    def pvop(bc, dst, src, lane):
        P(f"v_mov_b32_dpp v{bc}, v{src} row_newbcast:{lane} {FULL}")
        for q in range(4): P(f"v_perm_b32 v{dst+q}, v{bc}, v{bc}, v{vSel+q}")
    def c_bpv():
        for k in range(4):
            for tau in range(4):
                i = 16 + 4*tau + k
                for hd in range(2): pvop(vT0+hd, vTC[hd], vPB+k, 4*tau + 2*hd)
                for hd in range(2):
                    P(f"v_mfma_f32_16x16x32_bf16 {v4(vD[2+hd])}, {a4(sslot[i])}, {v4(vTC[hd])}, {v4(vD[2+hd]) if i > 16 else 0}")
                release(i)
    assert vT1 == vT0 + 1
    vAw, vAr = V.get(), V.get()
    def c_sm4():
        s_ = vE
        P(f"""
        v_bfe_u32 v{vT0}, v{vLane}, 1, 1
        v_lshlrev_b32 v{vT0}, 6, v{vT0}
        s_waitcnt lgkmcnt(0)
        s_barrier
        """)
        for k in range(4): P(f"ds_read_b128 {v4(s_+4*k)}, v{vT0} offset:{L_ST+16*k}")
        P(f"""
        v_lshrrev_b32 v{vAw}, 4, v0
        v_lshlrev_b32 v{vAw}, 7, v{vAw}
        v_and_b32 v{vT1}, 7, v{vLane}
        v_lshl_add_u32 v{vAw}, v{vT1}, 4, v{vAw}
        v_and_b32 v{vAr}, 32, v{vLane}
        v_lshl_add_u32 v{vAr}, v{vT1}, 2, v{vAr}
        v_bfe_u32 v{vT1}, v{vLane}, 3, 2
        v_add_lshl_u32 v{vAr}, v{vAr}, v{vT1}, 2
        s_min_u32 s{sT0}, s{sWv}, 2
        s_lshl_b32 s{sT0}, s{sT0}, 11
        v_add_u32 v{vAr}, s{sT0}, v{vAr}
        v_mov_b32 v{vFF}, 0xff
        s_waitcnt lgkmcnt(0)
        """)
        for o, m, wt in ((0, vM, vWt), (2, vMB, vWtB)):
            P(f"v_max3_f32 v{vT0}, v{s_+o}, v{s_+4+o}, v{s_+8+o}")
            P(f"v_max_f32 v{vT0}, v{vT0}, v{s_+12+o}")
            for k in range(4):
                P(f"v_sub_f32 v{s_+4*k+o}, v{s_+4*k+o}, v{vT0}")
                P(f"v_exp_f32 v{s_+4*k+o}, v{s_+4*k+o}")
            P(f"v_sub_f32 v{wt}, v{m}, v{vT0}")
            P(f"v_exp_f32 v{wt}, v{wt}")
            P(f"v_mul_f32 v{vT1}, v{s_+o}, v{s_+o+1}")
            for k in range(1, 4): P(f"v_fmac_f32 v{vT1}, v{s_+4*k+o}, v{s_+4*k+o+1}")
            P(f"v_rcp_f32 v{vT1}, v{vT1}")
            P(f"v_mul_f32 v{wt}, v{wt}, v{vT1}")
    def red_write(lst):
        P("s_mov_b32 exec_lo, 0x00ff00ff")
        P("s_mov_b32 exec_hi, 0xff00ff00")
        for acc, reg in lst: P(f"ds_write_b128 v{vAw}, {v4(acc)} offset:{L_RED+2048*reg}")
        P("s_mov_b64 exec, -1")
    def c_br1():
        for hd in range(2):
            for q in range(4):
                P(f"v_mul_f32_dpp v{vD[2+hd]+q}, v{vWtB}, v{vD[2+hd]+q} quad_perm:[{2*hd},{2*hd},{2*hd},{2*hd}] {FULL}")
        red_write([(vD[2], 1), (vD[3], 2)])
        stamp("ybdone")
    def c_br2():
        r = vWQ
        P("s_waitcnt lgkmcnt(0)")
        P("s_barrier")
        for k in range(4): P(f"ds_read2st64_b32 {v2(r+2*k)}, v{vAr} offset0:{L_RED//256+2*k} offset1:{L_RED//256+2*k+1}")
        P(f"""
        v_add_u32 v{vT0}, 64, v0
        v_and_b32 v{vT0}, 128, v{vT0}
        v_cmp_ne_u32 vcc, 0, v{vT0}
        v_cndmask_b32 v{vT0}, v{vBig}, v{vL4}, vcc
        s_waitcnt lgkmcnt(0)
        """)
        sum8(r, r)
        P(f"v_bfi_b32 v{r}, v{vFF}, s{sTag}, v{r}")
        t = f"buffer_store_dword v{r}, v{vT0}, {srd(rWS)}, s{sOp} offen"
        if swap: P.vm(t + " sc1")
        else: publish("ob", t)
    vOg, vOo, vYo = vGo+1, vL12, vGo
    vY0, vY1, vBp = V.get(), V.get(), V.get()
    sOp, sOg, sYp, sYg, sOutO = sG[0:5]
    sYx, sOwn = rX, rX+2
    brx = "s_bfe_u32 s%d, s2, 0x10005" % sT0 if swap else "s_lshr_b32 s%d, s2, 7" % sT0
    def c_fin():
        if swap:
            P(f"""
            s_bfe_u32 s{sT0}, s2, 0x20003
            s_lshr_b32 s{sT1}, s2, 6
            s_lshl2_add_u32 s{sT0}, s{sT0}, s{sT1}
            s_and_b32 s{sT1}, s2, 7
            s_lshl4_add_u32 s{sCB}, s{sT1}, s{sT0}
            """)
        P(f"""
        ; O table [x][slot: A, B kh0, B kh1][b][512] dwords
        s_bfe_u32 s{sT0}, s2, 0x30003
        s_mul_i32 s{sOg}, s{sT0}, {3*8192}
        s_add_u32 s{sOg}, s{sOg}, {WS_O}
        s_lshr_b32 s{sT0}, s2, 6
        s_lshl_b32 s{sT0}, s{sT0}, 11
        s_add_u32 s{sOp}, s{sOg}, s{sT0}
        ; wave 0: A row block t ; waves 1,2: slot 1+kh, row block 4*(wave-1)+s
        s_and_b32 s{sT0}, s2, 4
        s_lshl_b32 s{sT0}, s{sT0}, 3
        s_lshl2_add_u32 s{sT0}, s{sWv}, s{sT0}
        s_and_b32 s{sT1}, s2, 3
        s_add_u32 s{sT0}, s{sT0}, s{sT1}
        s_addk_i32 s{sT0}, 28
        s_and_b32 s{sT1}, s2, 7
        s_cmp_eq_u32 s{sWv}, 0
        s_cselect_b32 s{sT0}, s{sT1}, s{sT0}
        s_lshl_b32 s{sT0}, s{sT0}, 8
        s_add_u32 s{sOp}, s{sOp}, s{sT0}
        s_lshr_b32 s{sT0}, s{sCB}, 4
        s_mul_i32 s{sOg}, s{sT0}, {3*8192}
        s_add_u32 s{sOg}, s{sOg}, {WS_O}
        {brx}
        s_lshl_b32 s{sT0}, s{sT0}, 13
        s_add_u32 s{sOg}, s{sOg}, s{sT0}
        s_and_b32 s{sT1}, s{sCB}, 1
        s_lshl_b32 s{sT1}, s{sT1}, 10
        s_add_u32 s{sOg}, s{sOg}, s{sT1}
        v_bfe_u32 v{vT0}, v0, 1, 1
        v_mul_lo_u32 v{vOg}, v{vT0}, s{sT0}
        v_bfe_u32 v{vT0}, v0, 2, 2
        v_lshl_add_u32 v{vOg}, v{vT0}, 11, v{vOg}
        v_lshrrev_b32 v{vT0}, 4, v0
        v_lshl_add_u32 v{vOg}, v{vT0}, 6, v{vOg}
        v_and_b32 v{vT0}, 1, v0
        v_lshl_add_u32 v{vOg}, v{vT0}, 5, v{vOg}
        ; wo lane (row group tid>>3, 16-byte chunk tid&7)
        v_lshrrev_b32 v{vT0}, 3, v0
        v_mul_u32_u24 v{vWOo}, {8*896}, v{vT0}
        v_and_b32 v{vT0}, 7, v0
        v_lshl_add_u32 v{vWOo}, v{vT0}, 4, v{vWOo}
        s_and_b32 s{sT1}, s{sCB}, 15
        v_mov_b32 v{vT1}, s{sT1}
        v_cmp_gt_u32 vcc, 14, v{vT1}
        v_cndmask_b32 v{vWOo}, v{vBig}, v{vWOo}, vcc
        s_lshr_b32 s{sT0}, s{sCB}, 4
        s_and_b32 s{sAux}, s{sCB}, 1
        s_lshl1_add_u32 s{sAux}, s{sT0}, s{sAux}
        s_mul_i32 s{sAux}, s{sAux}, {256*896}
        s_and_b32 s{sT0}, s{sCB}, 14
        s_lshl_b32 s{sT0}, s{sT0}, 6
        s_add_u32 s{sAux}, s{sAux}, s{sT0}
        v_lshlrev_b32 v{vPw}, 4, v0
        v_and_b32 v{vPr}, 1, v0
        v_bfe_u32 v{vT1}, v0, 3, 3
        v_lshl_add_u32 v{vPr}, v{vPr}, 3, v{vT1}
        v_lshrrev_b32 v{vT1}, 6, v0
        v_lshl_add_u32 v{vPr}, v{vT1}, 4, v{vPr}
        v_bfe_u32 v{vT1}, v0, 1, 2
        v_lshl_add_u32 v{vPr}, v{vPr}, 2, v{vT1}
        v_lshlrev_b32 v{vPr}, 2, v{vPr}
        v_lshlrev_b32 v{vOo}, 3, v{vT0}
        v_bfe_u32 v{vT0}, v{vLane}, 4, 1
        v_lshl_add_u32 v{vOo}, v{vT0}, 2, v{vOo}
        v_lshrrev_b32 v{vT0}, 5, v{vLane}
        v_lshl_add_u32 v{vOo}, v{vT0}, 1, v{vOo}
        v_mul_u32_u24 v{vYo}, {8192-128}, v{vT0}
        v_add_u32 v{vYo}, v{vYo}, v{vL4}
        {brx}
        s_mul_i32 s{sT0}, s{sT0}, 14
        s_add_u32 s{sT0}, s{sT0}, s{sT1}
        s_lshl_b32 s{sOutO}, s{sT0}, 6
        s_mul_i32 s{sYp}, s{sWv}, 1792
        s_add_u32 s{sOutO}, s{sOutO}, s{sYp}
        s_lshl2_add_u32 s{sT0}, s{sT0}, s{sWv}
        s_lshl_b32 s{sT0}, s{sT0}, 11
        s_add_u32 s{sYg}, s{sT0}, {WS_Y}
        s_and_b32 s{sT1}, s{sCB}, 1
        s_mul_i32 s{sT0}, s{sT1}, {8192-1024}
        s_sub_u32 s{sYp}, s{sYg}, s{sT0}
        s_lshr_b32 s{sT0}, s{sCB}, 4
        s_lshl_b32 s{sI}, s{sT0}, 7
        s_add_u32 s{sYp}, s{sYp}, s{sI}
        ; block m is summed by its workgroup of class m&7, which keeps that half of its own result in registers
        s_lshl_b32 s{sI}, s{sT0}, 3
        s_lshl_b64 {sp(sOwn)}, 0xff, s{sI}
        s_lshl_b32 s{sI}, s{sT1}, 7
        v_lshl_add_u32 v{vBp}, v{vOo}, 1, s{sI}
        s_xor_b32 s{sI}, s{sT1}, 1
        s_lshl_b32 s{sI}, s{sI}, 10
        v_lshlrev_b32 v{vY0}, 4, v{vLane}
        v_add_u32 v{vY1}, 1024, v{vY0}
        v_add_u32 v{vT0}, s{sI}, v{vY0}
        v_cndmask_b32 v{vY0}, v{vY0}, v{vT0}, {sp(sOwn)}
        v_cndmask_b32 v{vY1}, v{vY1}, v{vT0}, {sp(sOwn)}
        s_sub_u32 s{sYx}, 0, s{sT1}
        s_not_b32 s{sYx+1}, s{sYx}
        s_and_b32 s{sT1}, s{sCB}, 7
        s_cmp_eq_u32 s{sT0}, s{sT1}
        s_cselect_b64 {sp(sYx)}, {sp(sYx)}, -1
        """)
    B(160+sg, c_sg); B(0, c_sm1, WM+1); B(0, c_sm3); B(0, c_sb1); B(0, c_bpv); B(0, c_sm4); B(0, c_br1); B(0, c_fin)
    def c_yw():
        if yw[1] == "c":
            P(f"""
            s_cmp_eq_u64 {sp(sYx)}, -1
            s_cselect_b32 s{sT0}, 0, 16
            v_lshlrev_b32 v{vT0}, 7, v{vLane}
            v_cmp_gt_u32 vcc, s{sT0}, v{vLane}
            v_cndmask_b32 v{vT0}, v{vBig}, v{vT0}, vcc
            """)
            P.vm(f"buffer_load_dword v{vTl+1}, v{vT0}, {srd(rWS)}, s{sYg} offen sc1")
        else:
            P.vm(f"buffer_load_dword v{vTl+1}, v{vYo}, {srd(rWS)}, s{sYp} offen sc1")
    if yw and yw[0] < bpub: B(yw[0], c_yw)
    def c_ow():
        P(f"v_cmp_gt_u32 vcc, 192, v0")
        P(f"v_cndmask_b32 v{vT0}, v{vBig}, v{vL4}, vcc")
        P.vm(f"buffer_load_dword v{vTl+1}, v{vT0}, {srd(rWS)}, s{sOp} offen sc1")
    if ow: B(ow, c_ow)
    if bpub: B(bpub, c_br2)
    if yw and yw[0] >= bpub: B(yw[0], c_yw)

    vAcc = vD[1]
    prepared = set()
    def v_prep(i):
        v = i - 160
        if i < NS and i not in prepared:
            pvop(vBc[v & 1], vTB[v & 1], vP + 2*(v & 3) + (v >> 6), (v >> 2) & 15); prepared.add(i)
    def v_consume(i):
        v = i - 160
        v_prep(i)
        P.wait(sid[i])
        P(f"v_mfma_f32_16x16x32_bf16 {v4(vAcc)}, {a4(sslot[i])}, {v4(vTB[v & 1])}, {v4(vAcc) if v else 0}")
        release(i)
        v_prep(i+1)

    xg = fc['xg'] if fc else 0
    if xg:
        vGs, vGl, vBs, vGd = [V.get() for _ in range(4)]; sBias = S.get()
        xcs = [cps[c] for c in fc['xc']]
        GL = 0x4000
    def fc_step(i):
        if i in cps:
            c = cps.index(i)
            if c == 0:
                assert st['tag']
                fc_setup()
                P(f"v_mov_b32 v{vFt}, s{sTag}")
                if fc['tab']:
                    m = min(fc['tab']); t = sum(((x - m)//2) << (4*k) for k, x in enumerate(fc['tab']))
                    P(f"""
                    s_lshl_b32 s{sTagQ}, s{sTagQ}, 2
                    s_lshr_b32 s{sTagQ}, {t:#x}, s{sTagQ}
                    s_and_b32 s{sTagQ}, s{sTagQ}, 15
                    s_lshl1_add_u32 s{sTagQ}, s{sTagQ}, {m}
                    """)
                if xg:
                    P(f"""
                    s_bfe_u32 s{sBias}, s2, 0x30003
                    s_lshl_b32 s{sBoost}, s{sBias}, 11
                    s_add_u32 s{sBoost}, s{sBoost}, {WS_G + GL}
                    v_mov_b32 v{vBs}, s{sBoost}
                    s_sub_u32 s{sBoost}, s{sBoost}, s{sFC}
                    v_writelane_b32 v{vFl}, s{sBoost}, 32
                    s_lshl2_add_u32 s{sI}, s{sI}, s{sWv}
                    s_cmp_eq_u32 s{sI}, {4*13+1}
                    s_cselect_b32 s{sFm}, 0xff, 0
                    s_mov_b32 s{sFm+1}, 0
                    v_lshlrev_b32 v{vGd}, 11, v{vLane}
                    v_add_u32 v{vGd}, {WS_G}, v{vGd}
                    v_cndmask_b32 v{vGl}, v{vBig}, v{vGd}, {sp(sFm)}
                    s_lshl_b32 s{sBias}, 1, s{sBias}
                    s_and_b32 s{sFm}, s{sFm}, s{sBias}
                    v_cndmask_b32 v{vGs}, v{vBig}, v{vGd}, {sp(sFm)}
                    v_cndmask_b32 v{vGl}, v{vGl}, v{vBig}, {sp(sFm)}
                    v_cndmask_b32 v{vBs}, v{vBig}, v{vBs}, {sp(sFm)}
                    s_mov_b32 s{sBias}, 0
                    """)
            look = xg and c - 1 in fc['xc']
            if xg and not look: P("s_mov_b32 exec_hi, 0")
            fcs['ids'][c] = P.vm(f"buffer_load_dword v{vFd}, v{vFl}, {srd(rWS)}, s{sFC} offen offset:{128*c}")
            if xg and not look: P("s_mov_b32 exec_hi, -1")
            P.vm(f"buffer_store_dword v{vFt}, v{vFs}, {srd(rWS)}, s{sFC} offen offset:{128*c}")
            if xg and i in xcs: P.vm(f"buffer_store_dword v{vFt}, v{vGs}, {srd(rWS)}, 0 offen offset:{128*c} sc1")
        if xg and i - fc['xd'] in xcs:
            fcs['g'] = P.vm(f"buffer_load_dword v{vGd}, v{vGl}, {srd(rWS)}, 0 offen offset:{128*cps.index(i - fc['xd'])} sc1")
        if xg and i - fc['xd'] - WM - 1 in xcs:
            c = cps.index(i - fc['xd'] - WM - 1)
            P.wait(fcs['g'])
            P(f"""
            v_cmp_eq_u32 {sp(sFm)}, v{vFt}, v{vGd}
            s_bcnt1_i32_b32 s{sFm}, s{sFm}
            v_add_u32 v{vGd}, s{sFm}, v{vFt}
            """)
            P.vm(f"buffer_store_dword v{vGd}, v{vBs}, {srd(rWS)}, 0 offen offset:{128*(c+1)}")
        if i - WM - 1 in cps:
            c = cps.index(i - WM - 1)
            P.wait(fcs['ids'].pop(c))
            pd = fc['Pd'] if not fc['cps'] else ((cps[c+1] - cps[c]) if c + 1 < len(cps) else NS - i)
            g = int(round(fc['gain'] * pd / 32 * 256))
            if fc['s3'] and i >= 150 and not fcs.get('s3'):
                fcs['s3'] = True
                P(f"""
                s_and_b32 s{sBoost}, s2, 3
                s_cmp_eq_u32 s{sBoost}, 3
                s_cselect_b32 s{sBoost}, {fc['s3']}, 0
                s_add_i32 s{sTagQ}, s{sTagQ}, s{sBoost}
                """)
            P(f"""
            v_cmp_eq_u32 {sp(sFm)}, v{vFt}, v{vFd}
            s_bcnt1_i32_b32 s{sBoost}, s{sFm}
            s_mul_i32 s{sBoost}, s{sBoost}, {g}
            s_sub_i32 s{sBoost}, s{sBoost}, {int(fc['r0'] * 32)*g}
            """)
            if xg and c - 1 in fc['xc']:
                P(f"""
                v_readlane_b32 s{sFm}, v{vFd}, 32
                s_sub_u32 s{sFm}, s{sFm}, s{sTag}
                s_mul_i32 s{sBias}, s{sFm}, {int(xg*256)}
                s_sub_i32 s{sBias}, s{sBias}, {int(xg*256*fc['x0'])}
                s_cmp_lt_u32 s{sFm}, 8
                s_cselect_b32 s{sBias}, s{sBias}, 0
                """)
            if xg and (fc['hold'] or c - 1 in fc['xc']): P(f"s_add_i32 s{sBoost}, s{sBoost}, s{sBias}")
            P(f"s_ashr_i32 s{sBoost}, s{sBoost}, 8")
            if fc['tab']: P(f"s_add_i32 s{sBoost}, s{sBoost}, s{sTagQ}")
            fcs['start'] = i + 1

    nk, nv = 32, 160
    jw = 0
    bi = 0; lastbg = -1
    cur = None
    def consume_one():
        nonlocal nk, nv
        if st['kok'] and nk < 160 and nk <= land[0]:
            k_consume(nk); nk += 1
        elif st['vok'] and nv <= land[0]:
            v_consume(nv); nv += 1
        else: return False
        slots.extend(freed); freed.clear()
        return True
    def splittable(items, n):
        full = True; open_br = False
        for it in items[:n]:
            if it[0] == 'i':
                t = it[1]
                if t.startswith(('s_mov_b32 exec', 's_mov_b64 exec')): full = t.endswith('-1') and 'b64' in t
                if t.startswith('s_cbranch_scc'): open_br = True
            elif it[0] == 'l': open_br = False
        last = items[n-1]
        if last[0] == 'i' and last[1].startswith(('s_cmp', 's_cbranch', 's_getpc')): return False
        return full and not open_br
    minfree = 99
    for i in range(NS):
        m0 = len(P.ir)
        issue(i); fc_step(i)
        if i + 1 < len(first):
            for _ in range(first[i+1]): wq_load()
        minfree = min(minfree, len(slots))
        used = lambda: sum(cost(x) for x in P.ir[m0:])
        consume_one()
        lim = 10**9 if i == W-1 else budget
        while True:
            if cur is None:
                if bi < len(bg) and bg[bi][0] <= i and lastbg + bg[bi][2] <= i and used() < lim:
                    keep = P.ir; P.ir = []
                    flag = bg[bi][1]()
                    cur = [P.ir, flag, list(freed), 0]; freed.clear(); P.ir = keep; bi += 1
                    if bg[bi-1][1] not in (c_setup, c_wsw, c_hello2, c_tlb): lim = min(lim, used() + budget) if i == W-1 else lim
                else: break
            items = cur[0]; n = cur[3]; u = used()
            while n < len(items) and not (u >= lim and n > cur[3] and splittable(items, n)):
                u += cost(items[n]); n += 1
            P.ir.extend(items[cur[3]:n]); cur[3] = n
            if n < len(items): break
            if cur[1]: st[cur[1]] = True
            slots.extend(cur[2]); cur = None; lastbg = i
        c = 1
        while c < maxcatch and (used() < budget or len(slots) < 3) and consume_one(): c += 1
    assert bi == len(bg) and cur is None and nk == 160, (bi, len(bg), nk)
    stamp("lastiss")
    if tpad is not None:
        P("s_branch L_tail"); P.raw(f".p2align {tpad[0]}")
        if tpad[1]: P.raw(f".fill {tpad[1]}, 4, 0xbf800000")
        P.label("L_tail")
    while nv < NS:
        for _ in range(wolate):
            if jw < 8: wo_load(jw); jw += 1
        v_consume(nv); nv += 1
    while jw < 8: wo_load(jw); jw += 1
    stamp("vdone")

    r = vWQ
    for q in range(4): P(f"v_mul_f32 v{vAcc+q}, v{vAcc+q}, v{vWt}")
    red_write([(vAcc, 0)])
    P("s_waitcnt lgkmcnt(0)")
    P("s_barrier")
    P(f"s_cmp_lg_u32 s{sWv}, 0" if bpub else f"s_cmp_eq_u32 s{sWv}, 3")
    P("s_cbranch_scc1 L_near_o")
    for k in range(4): P(f"ds_read2st64_b32 {v2(r+2*k)}, v{vAr} offset0:{L_RED//256+2*k} offset1:{L_RED//256+2*k+1}")
    P("s_waitcnt lgkmcnt(0)")
    sum8(r, r)
    P(f"v_bfi_b32 v{r}, v{vFF}, s{sTag}, v{r}")
    t = f"buffer_store_dword v{r}, v{vL4}, {srd(rWS)}, s{sOp} offen"
    if swap: P.vm(t + " sc1"); P.label("L_near_o")
    else: publish("o", t)
    stamp("opub")
    P(f"""
    s_and_b32 s{sT0}, s{sCB}, 15
    s_cmp_ge_u32 s{sT0}, 14
    s_cbranch_scc1 L_done
    """)
    g = vQA; sMiss = sFm
    def ppoll(Q, name, lds, sets, dst, mid=None):
        n = len(lds); D = len(sets)
        for k in range(n): Q(lds[k].replace("@", v4(sets[0]+4*k)))
        Q(f"s_mov_b64 {sp(sMiss)}, -1")
        if mid: mid(Q, n)
        if D > 1:
            Q(f"s_not_b32 s{sT0}, s{sTag}")
            for b in sets[1:]: Q(f"v_mov_b32 v{b}, s{sT0}")
        Q.label(f"L_poll{name}")
        for d in list(range(1, D)) + [0]:
            b = sets[d]
            Q(f"s_waitcnt vmcnt({n*(D-1)})")
            tagcheck(Q, range(b, b+4*n), sTag, 0xff)
            Q("s_wqm_b64 vcc, vcc")
            Q(f"s_andn2_b64 exec, {sp(sMiss)}, vcc")
            for k in range(4*n): Q(f"v_and_b32 v{dst+k}, 0xffffff00, v{b+k}")
            Q(f"s_and_b64 {sp(sMiss)}, {sp(sMiss)}, vcc")
            Q(f"s_cbranch_scc0 L_got{name}")
            Q(f"s_mov_b64 exec, {sp(sMiss)}")
            for k in range(n): Q(lds[k].replace("@", v4(b+4*k)))
            Q("s_mov_b64 exec, -1")
        Q(f"s_add_u32 s{sSpin}, s{sSpin}, 1")
        Q(f"s_cmp_gt_u32 s{sSpin}, 0x20000")
        Q(f"s_cbranch_scc0 L_poll{name}")
        Q.label(f"L_got{name}")
        Q("s_mov_b64 exec, -1")
    def mid(Q, n):
        for q in range(4):
            Q(f"s_waitcnt vmcnt({n + 6 - 2*q})")
            for e in range(8):
                Q(f"v_perm_b32 v{vWO+4*e+q}, v{vQD+4*(2*q+1)+(e>>1)}, v{vQD+4*(2*q)+(e>>1)}, s{sSel1 if e & 1 else sSel0}")
    ppoll(P, "O", [f"buffer_load_dwordx4 @, v{vOg}, {srd(rWS)}, s{sOg} offen offset:{16*k} sc1" for k in range(2)], [g+8, g+16, g+24][:DO], g, mid)
    P("s_bitcmp1_b32 s2, 5" if swap else "s_cmp_ge_u32 s2, 128")
    P("s_cbranch_scc1 L_addB")
    P.label("L_proj")
    Q = Prog(); Q.label("L_addB")
    for k in range(8): Q(f"v_add_f32_dpp v{g+k}, v{g+k}, v{g+k} quad_perm:[2,3,0,1] {FULL}")
    Q("s_branch L_proj"); slow.insert(0, Q)
    stamp("ogot")
    for q in range(4): P(f"v_cvt_pk_bf16_f32 v{vX+q}, v{g+2*q}, v{g+2*q+1}")
    for e in range(8): P(f"v_mfma_f32_16x16x32_bf16 {v4(vQD+4*e)}, {v4(vX)}, {v4(vWO+4*e)}, 0")
    for e in range(8):
        h = e & 1
        P(f"v_add_f32_dpp v{r+(e >> 1)}, v{vQD+4*e+1-h}, v{vQD+4*e+h} row_ror:8 row_mask:0xf bank_mask:{0xc if h else 0x3:#x}")
    P(f"""
    ds_write_b128 v{vPw}, {v4(r)} offset:{L_QRED}
    s_waitcnt lgkmcnt(0)
    s_barrier
    ds_read2st64_b32 {v2(r)}, v{vPr} offset0:{L_QRED//256} offset1:{L_QRED//256+4}
    ds_read2st64_b32 {v2(r+2)}, v{vPr} offset0:{L_QRED//256+8} offset1:{L_QRED//256+12}
    s_cmp_eq_u64 {sp(sYx)}, -1
    s_waitcnt lgkmcnt(0)
    v_add_f32 v{r}, v{r}, v{r+1}
    v_add_f32 v{r+2}, v{r+2}, v{r+3}
    v_add_f32 v{r}, v{r}, v{r+2}
    v_bfi_b32 v{r+1}, v{vFF}, s{sTag}, v{r}
    s_mov_b64 exec, {sp(sYx)}
    """)
    t = f"buffer_store_dword v{r+1}, v{vYo}, {srd(rWS)}, s{sYp} offen"
    if swap: publish("y", t); P(f"s_cmp_eq_u64 {sp(sYx)}, -1")
    else: P.vm(t + " sc1")
    stamp("yapub")
    P("s_cbranch_scc1 L_done")
    P("s_mov_b64 exec, -1")
    f = vP
    def midy(Q, n): Q(f"ds_bpermute_b32 v{r+2}, v{vBp}, v{r}")
    ppoll(P, "Y", [f"buffer_load_dwordx4 @, v{vy}, {srd(rWS)}, s{sYg} offen sc1" for vy in (vY0, vY1)], [vWO+8*k for k in range(4)][:DY], f, midy)
    stamp("fgot")
    P(f"s_not_b64 exec, {sp(sOwn)}")
    for k in range(4): P(f"v_add_f32 v{f+k}, v{f+k}, v{f+4+k}")
    P("s_mov_b64 exec, -1")
    P(f"""
    v_permlane32_swap_b32 v{f}, v{f+1}
    v_permlane32_swap_b32 v{f+2}, v{f+3}
    v_add_f32 v{f}, v{f}, v{f+1}
    v_add_f32 v{f+2}, v{f+2}, v{f+3}
    v_permlane16_swap_b32 v{f}, v{f+2}
    v_add_f32 v{f}, v{f}, v{f+2}
    """)
    xlane("v_add_f32", f, None, ["r8"])
    P("s_waitcnt lgkmcnt(0)")
    P(f"v_add_f32 v{f}, v{f}, v{r+2}")
    P(f"""
    v_cvt_pk_bf16_f32 v{f}, v{f}, v{f}
    s_mov_b32 exec_lo, 0x00ff00ff
    s_mov_b32 exec_hi, 0x00ff00ff
    """)
    P.vm(f"buffer_store_short v{f}, v{vOo}, {srd(rOUT)}, s{sOutO} offen")
    P(f"""
    s_cmp_lg_u32 s{sOutO}, 0
    s_cbranch_scc1 L_done
    s_mov_b64 exec, 1
    v_mov_b32 v{f+2}, s{sTag}
    """)
    P.vm(f"buffer_store_dword v{f+2}, v{vOo}, {srd(rWS)}, 0 offen")
    P.label("L_done")
    if spin:
        P.label("L_spin")
        P(f"""
        s_memrealtime {sp(sNow)}
        s_waitcnt lgkmcnt(0)
        s_sub_u32 s{sNow}, s{sNow}, s{sSt}
        s_cmp_lt_u32 s{sNow}, {spin}
        s_cbranch_scc1 L_spin
        """)
    if diag:
        P("s_mov_b64 exec, -1")
        stamp("end")
        P(f"""
        s_waitcnt lgkmcnt(0) vmcnt(0)
        s_lshl_b32 s{sT0}, s2, 2
        s_add_u32 s{sT0}, s{sT0}, s{sWv}
        s_lshl_b32 s{sT0}, s{sT0}, 7
        s_add_u32 s{sT0}, s{sT0}, {WS_DIAG}
        v_mov_b32 v{vT1}, 0
        s_mov_b64 exec, 1
        """)
        def dump(sreg, off):
            P(f"v_mov_b32 v{vT0}, s{sreg}")
            P.vm(f"buffer_store_dword v{vT0}, v{vT1}, {srd(rWS)}, s{sT0} offen offset:{off}")
        for n, (name, rr) in enumerate(stamps): dump(rr, 4*n)
        dump(sSpin, 4*len(stamps)); dump(sFar, 116)
        P(f"s_getreg_b32 s{sT1}, hwreg(HW_REG_XCC_ID)"); dump(sT1, 120)
        P(f"s_getreg_b32 s{sT1}, hwreg(HW_REG_HW_ID)"); dump(sT1, 124)
    P.label("L_end")
    P("s_endpgm")

    body, stats = P.render()
    for Q in slow: body += Q.render()[0]
    body += 'L_code_end:\n'
    head = open("cdna_kernels/" + KNAME[:-7] + ".s.ref").read().split("; Override launch")[0]
    txt = head + f"; @launch grid=(256,1,1) block=(256,1,1) lds={L_TOTAL}\n" + HEADER
    txt += f'.amdgcn_target "amdgcn-amd-amdhsa--gfx950"\n.text\n.globl {KNAME}\n.p2align 8\n.type {KNAME},@function\n{KNAME}:\n'
    txt += body
    txt += f""".section .rodata,"a"
.p2align 6
.amdhsa_kernel {KNAME}
  .amdhsa_next_free_vgpr 512
  .amdhsa_next_free_sgpr 102
  .amdhsa_accum_offset 256
  .amdhsa_group_segment_fixed_size 0
  .amdhsa_kernarg_size 104
  .amdhsa_user_sgpr_count 2
  .amdhsa_user_sgpr_kernarg_segment_ptr 1
  .amdhsa_system_sgpr_workgroup_id_x 1
.end_amdhsa_kernel
"""
    ids = list(range(256))
    act = [L for L in ids if (((L >> 6) & 1)*8 + (L & 7)) < 14]
    fin = [L for L in act if ((L >> 3) & 7) == (L & 7)]
    if swap:
        mm = lambda L: 4*((L >> 3) & 3) + (L >> 6)
        act = [L for L in ids if mm(L) < 14]; fin = [L for L in act if (mm(L) & 7) == (L & 7)]
    return txt, dict(stats, vhw=V.hw, shw=S.hw, minfree=minfree, stamps=[n for n, _ in stamps], who=dict(ogot=act, yapub=act, fgot=fin))

if __name__ == "__main__":
    import json
    kw = json.loads(sys.argv[2]) if len(sys.argv) > 2 else {}
    t, s = gen(**kw)
    open(sys.argv[1], "w").write(t)
    s.pop('who')
    print(s, file=sys.stderr)
```

```python
import sys, math, struct
from asmlib import Prog, Alloc
KNAME = "concat_heads__mha_block_cached__sliding_block_cached__decode_kernel"

WS_Q, WS_SC, WS_O, WS_FC, WS_Y, WS_G, WS_DIAG = 0x10000, 0x40000, 0x100000, 0x130000, 0x140000, 0x180000, 0x800000
L_QRED, L_ST, L_RED, L_TOTAL = 0, 4096, 4352, 4352 + 3*2048
CS = struct.unpack('<I', struct.pack('<f', math.log2(math.e) / 16.0))[0]
BIG = 0x7ff00000
FULL = "row_mask:0xf bank_mask:0xf"

AUXCOST = [8]
def cost(it):
    if it[0] == 'vm': return 8 if ' a[' in it[1] or 'store' in it[1] else AUXCOST[0]
    if it[0] != 'i': return 2
    t = it[1]
    if t.startswith(';'): return 0
    if t.startswith('v_mfma'): return 16
    if t.startswith(('v_exp', 'v_log', 'v_rcp')): return 10
    if '_dpp' in t or t.startswith('v_permlane'): return 8
    if t.startswith('ds_'): return 12
    if t.startswith('s_waitcnt'): return 60
    if t.startswith('s_barrier'): return 30
    return 4

HEADER = """;
; One launch, 256 workgroups x 4 waves (one wave per SIMD); generated by a script, straight-line code.
; Logical id = b(2) | x(3) | t(3); the 32 workgroups with the same x form a class (A heads 2x, 2x+1, B kv head x).
;   1. q = x @ wq: every workgroup computes one 32-column block for the 4 batches and hands it to its class.
;   2. K streams (B window, then A), keys split over the workgroups of a (batch, head); MFMA scores, rounded to bf16.
;   3. scores are exchanged inside the (batch, x) group; every wave takes the true max / sum of its keys, the
;   4. V streams split along the head dimension (64 columns per workgroup); MFMA P.V gives normalised o slices.
;   5. o is handed to the class; 28 workgroups multiply it with a 256 x 64 block of wo; 16 partial sums per
;      output are added by one wave and stored as bf16.
; earlier launch is never accepted. Class-local hand-offs stay in L2 only after all 32 workgroups of the class
; have been seen (through d_debug) on this XCC; otherwise every store and load of them is sc1.
"""

def gen(W=5, qg=33, sg=18, wflag="", woflag="nt", diag=False, skip=(), spin=0, forcefar=False, fc=None, budget=150, maxcatch=4,
        bpub=278, DO=1, DY=3, wolate=1, auxcost=70, wsl=32, first=(3, 2, 2, 2), hello=4, tpad=None, ipf=7, ipf0=True, tlb=None, qw=True, zones=(), rot=None, swap=False, ow=None, W0=(24, 6), yw=(282, 'p'), noO=True, fakeQ=0, xpos=0, hpos=0, spinif=None):
    AUXCOST[0] = auxcost
    P = Prog()
    V = Alloc('v', 1, 256); S = Alloc('s', 3, 100)
    slots = list(range(64))
    def a4(s): return f"a[{4*s}:{4*s+3}]"
    def v4(r): return f"v[{r}:{r+3}]"
    def v3(r): return f"v[{r}:{r+2}]"
    def v2(r): return f"v[{r}:{r+1}]"
    def srd(r): return f"s[{r}:{r+3}]"
    def sp(r): return f"s[{r}:{r+1}]"
    def vcc(m): P(f"s_mov_b32 vcc_lo, {m:#x}"); P(f"s_mov_b32 vcc_hi, {m:#x}")
    slow = []
    stamps = []
    def stamp(name):
        if diag:
            r = S.get(2); stamps.append((name, r)); P(f"s_memrealtime {sp(r)}")
    fcs = dict(start=None, ids={})
    st = dict(kok=False, vok=False, lgk=False, tag=False)
    if fc is not None:
        fc = dict(dict(first=16, Pd=32, dW=2, r0=0.6, gain=2.5, xg=0, x0=3.5, xd=1, xc=(1, 3, 5), hold=True, neg=None, ns=2, s3=10, cps=(16, 40, 72, 104, 136, 168, 196, 224, 248, 266), tab=(4, -8, 2, -8, 10, 0, 6, -4)), **fc)
        WM = W + fc['dW']
        cps = list(fc['cps'] or range(fc['first'], 288 - WM - 6, fc['Pd']))
    else:
        WM = W; cps = []

    rX, rWQ, rBK, rBV, rAK, rAV, rWO, rWS, rOUT = [S.get(4) for _ in range(9)]
    sT0, sT1, sI, sWv, sTag, sOff, sAux, sSel0, sSel1, sC, sSpin, sCB, sTagQ, sFar, sBoost, sFC, sKo = [S.get() for _ in range(17)]
    vLane, vT0, vT1, vT2, vBig = [V.get() for _ in range(5)]
    vXo, vWQo, vKo, vVo = [V.get() for _ in range(4)]
    def desc(r, sz):
        P(f"s_mov_b32 s{r+2}, {sz}"); P(f"s_mov_b32 s{r+3}, 0x20000")
    sDbg = S.get(2); vH = V.get(2)
    vXT = V.get()
    def code_pf():
        P(f"s_getpc_b64 {sp(rOUT+2)}")
        P.label("L_pc")
        P(f"""
        v_and_b32 v{vT0}, {31 if ipf > 1 else 255}, v{vH}
        v_min_u32 v{vT1}, {ipf-1}, v0
        v_mad_u32_u24 v{vT0}, v{vT0}, {ipf}, v{vT1}
        v_lshlrev_b32 v{vT0}, 7, v{vT0}
        v_min_u32 v{vT0}, L_code_end-L_pc-4, v{vT0}
        """)
        P.vm(f"global_load_dword v{vXT}, v{vT0}, {sp(rOUT+2)}")
    hl1 = f"""s_load_dwordx2 {sp(sDbg)}, s[0:1], 88
    s_getreg_b32 s{sTagQ}, hwreg(HW_REG_XCC_ID, 0, 4)
    ; byte (id&7)*32 + (id>>3) of the zeroed debug buffer reports this workgroup's XCC
    s_mul_i32 s{sT0}, s2, 0x101
    s_bfe_u32 s{sT0}, s{sT0}, 0x80003
    v_mov_b32 v{vH}, s{sT0}
    v_add_u32 v{vH+1}, s{sTagQ}, 1"""
    P("s_cmp_ge_u32 s2, 256")
    P("s_cbranch_scc1 L_end")
    stamp("start")
    if spin:
        sSt = S.get(2); sNow = S.get(2); P(f"s_memrealtime {sp(sSt)}")
    P(f"""
    s_lshr_b32 s{sKo}, s2, 7
    s_mul_i32 s{sKo}, s{sKo}, 40
    s_load_dwordx2 {sp(rBK)}, s[0:1], 48
    s_load_dwordx2 {sp(rX)}, s[0:1], s{sKo}
    s_load_dwordx2 {sp(rWQ)}, s[0:1], s{sKo} offset:24
    s_load_dwordx2 {sp(rWS)}, s[0:1], 96
    {hl1}
    """)
    if ipf and ipf0: code_pf()
    P(f"""
    ; logical id = b(2) | x(3) | t(3): workgroups that are 8 apart share x (L2 locality only)
    s_and_b32 s{sT0}, s2, 7
    s_bfe_u32 s{sT1}, s2, 0x30003
    s_bfe_u32 s{sCB}, s2, 0x40003
    s_lshr_b32 s2, s2, 6
    s_lshl3_add_u32 s2, s2, s{sT0}
    s_lshl_b32 s{sOff}, s2, 21
    s_lshl3_add_u32 s2, s2, s{sT1}
    s_lshl4_add_u32 s{sCB}, s{sT0}, s{sCB}
    s_lshl_b32 s{sAux}, s{sCB}, 6
    v_lshrrev_b32 v{vT0}, 6, v0
    v_lshrrev_b32 v{vT2}, 2, v0
    v_readfirstlane_b32 s{sWv}, v{vT0}
    v_and_b32 v{vT1}, 3, v0
    v_lshlrev_b32 v{vWQo}, 12, v{vT2}
    v_add_lshl_u32 v{vWQo}, v{vWQo}, v{vT1}, 4
    v_cmp_gt_u32 vcc, 56, v{vT2}
    v_and_b32 v{vKo}, 3, v{vT2}
    v_mad_u32_u24 v{vXo}, v{vKo}, 55, v{vT2}
    v_add_lshl_u32 v{vXo}, v{vXo}, v{vT1}, 4
    v_lshl_add_u32 v{vKo}, v{vT0}, 2, v{vKo}
    v_cndmask_b32 v{vXo}, 2.0, v{vXo}, vcc
    v_lshl_add_u32 v{vKo}, v{vKo}, 6, v{vT1}
    v_and_b32 v{vT2}, 12, v{vT2}
    v_add_lshl_u32 v{vKo}, v{vKo}, v{vT2}, 4
    s_or_b32 s{sT0}, s{sT1}, 96
    s_lshl_b32 s{sT0}, s{sT0}, 14
    s_add_u32 s{sOff}, s{sOff}, s{sT0}
    """)
    if fakeQ:
        P(f"""
        v_lshrrev_b32 v{vT0}, 3, v0
        v_mul_u32_u24 v{vWQo}, {7*512}, v{vT0}
        v_and_b32 v{vT0}, 7, v0
        v_add_lshl_u32 v{vWQo}, v{vWQo}, v{vT0}, 4
        s_and_b32 s{sT0}, s{sCB}, 1
        s_mul_i32 s{sT0}, s{sT0}, {224*8192-64}
        s_add_u32 s{sAux}, s{sAux}, s{sT0}
        """)
    desc(rX, 3584); desc(rWQ, 3670016); desc(rBK, 1 << 26)
    P("s_waitcnt lgkmcnt(0)")
    stamp("karg")
    def hello_store(): P.vm(f"global_store_byte v{vH}, v{vH+1}, {sp(sDbg)}")
    if hpos == 0: hello_store()
    vX = V.get(4, 4); vWQ = V.get(32, 4)
    idwq = []
    def wq_load():
        n = len(idwq); j = n if n < xpos else n - 1
        if n == xpos: idwq.append(P.vm(f"buffer_load_dwordx4 {v4(vX)}, v{vXo}, {srd(rX)}, 0 offen"))
        elif "wq" in skip or (fakeQ and j == 7): idwq.append(None)
        else:
            if j: P(f"s_addk_i32 s{sAux}, 0x2000")
            idwq.append(P.vm(f"buffer_load_dwordx4 {v4(vWQ+4*j)}, v{vWQo}, {srd(rWQ)}, s{sAux} offen {wflag}"))
    first = list(first or [9])
    assert sum(first) == 9
    for _ in range(first[0]): wq_load()
    vTl = V.get(2)
    def c_wsw():
        P(f"""
        s_mul_i32 s{sT0}, s2, 3072
        s_add_u32 s{sT0}, s{sT0}, {WS_SC}
        v_mov_b32 v{vTl}, s{sT0}
        """)
        if qw:
            P(f"""
            s_lshr_b32 s{sT0}, s2, 7
            s_lshl_b32 s{sT0}, s{sT0}, 9
            s_add_u32 s{sT0}, s{sT0}, s{sCB}
            s_lshl_b32 s{sT0}, s{sT0}, 7
            s_add_u32 s{sT0}, s{sT0}, {(WS_Q - 24*16384) & 0xffffffff}
            v_mul_u32_u24 v{vTl+1}, {16384-128}, v0
            v_add_u32 v{vTl+1}, s{sT0}, v{vTl+1}
            v_cmp_gt_u32 vcc, 24, v0
            v_cndmask_b32 v{vTl}, v{vTl+1}, v{vTl}, vcc
            v_cmp_gt_u32 vcc, 28, v0
            v_cndmask_b32 v{vTl}, 2.0, v{vTl}, vcc
            """)
        elif wsl > 24:
            P(f"""
            v_mul_u32_u24 v{vTl+1}, 768, v{vH}
            v_add_u32 v{vTl+1}, {BIG if noO else WS_O - 24*128}, v{vTl+1}
            v_cmp_gt_u32 vcc, 24, v0
            v_cndmask_b32 v{vTl}, v{vTl+1}, v{vTl}, vcc
            """)
        if wsl > 30:
            P(f"""
            v_lshlrev_b32 v{vTl+1}, 8, v{vH}
            v_add_u32 v{vTl+1}, {WS_FC - 30*128}, v{vTl+1}
            v_cmp_gt_u32 vcc, 30, v0
            v_cndmask_b32 v{vTl}, v{vTl+1}, v{vTl}, vcc
            """)
        P(f"""
        v_lshl_add_u32 v{vTl}, v0, 7, v{vTl}
        v_cmp_gt_u32 vcc, {wsl}, v0
        v_cndmask_b32 v{vTl}, 2.0, v{vTl}, vcc
        """)
        desc(rWS, 1 << 24)
        P.vm(f"buffer_load_dword v{vTl+1}, v{vTl}, {srd(rWS)}, 0 offen sc1")
    stream = []
    for k in range(16): stream.append(("BK", k))
    for k in range(16): stream.append(("BV", k))
    for k in range(128): stream.append(("AK", k))
    for k in range(128): stream.append(("AV", k))
    NS = len(stream)
    sid = {}; sslot = {}; land = [-1]
    def issue(i):
        kind, k = stream[i]
        if k == 0 and kind == "BV":
            assert st['lgk']
            P(f"""
            s_and_b32 s{sI}, s2, 3
            s_mul_i32 s{sI}, s{sI}, {16384-128}
            s_add_u32 s{sI}, s{sI}, {3*131072}
            s_sub_u32 s{sOff}, s{sOff}, s{sI}
            """)
        elif k == 0 and kind[0] == "A" and rot:
            vo = vKo if kind == "AK" else vVo
            P(f"""
            s_lshr_b32 s{sI}, s2, 2
            s_lshl_b32 s{sI}, s{sI}, 21
            v_add_u32 v{vo}, s{sI}, v{vo}
            s_bfe_u32 s{sOff}, s2, {rot[0]:#x}
            s_lshl_b32 s{sOff}, s{sOff}, {rot[1]}
            s_and_b32 s{sI}, s2, 3
            s_lshl_b32 s{sI}, s{sI}, {14 if kind == "AK" else 7}
            s_add_u32 s{sOff}, s{sOff}, s{sI}
            """)
        elif k == 0 and kind[0] == "A":
            P(f"""
            s_lshr_b32 s{sOff}, s2, 2
            s_lshl_b32 s{sOff}, s{sOff}, 21
            s_and_b32 s{sI}, s2, 3
            s_lshl_b32 s{sI}, s{sI}, {14 if kind == "AK" else 7}
            s_add_u32 s{sOff}, s{sOff}, s{sI}
            """)
        elif k and k % 4 == 0 and kind[0] == "B":
            P(f"s_add_u32 s{sOff}, s{sOff}, {0x20000 if kind == 'BK' else 0x14000}")
        elif k and kind[1] == "V":
            P(f"s_addk_i32 s{sOff}, 0x4000")
        elif k and k % 4 == 0:
            P(f"s_add_u32 s{sOff}, s{sOff}, 0x10000")
        if rot and kind[0] == "A" and k and k % 32 == 0: P(f"s_and_b32 s{sOff}, s{sOff}, 0x1fffff")
        wz = [z[2] for z in zones if z[0] <= i < z[1]]
        if wz and fcs['start'] is not None:
            P.cwait(sid[i-wz[0]], sid[i-WM], [f"s_cmp_gt_i32 s{sBoost}, {i - fcs['start']}"]); land[0] = max(land[0], i-WM)
        elif fcs['start'] is not None:
            if fc['neg'] is not None:
                P.cwait(sid[i-W+1], None, [f"s_cmp_ge_i32 s{sBoost}, {-fc['neg'] - fc['ns']*(i - fcs['start'])}"])
            P.cwait(sid[i-W], sid[i-WM], [f"s_cmp_gt_i32 s{sBoost}, {i - fcs['start']}"]); land[0] = max(land[0], i-WM)
        else:
            w0 = W0[1] if (W0 and i < W0[0]) else W
            if i >= w0: P.wait(sid[i-w0]); land[0] = max(land[0], i-w0)
        s = slots.pop(0); sslot[i] = s
        r, vo = {"BK": (rBK, vKo), "BV": (rBV, vVo), "AK": (rAK, vKo), "AV": (rAV, vVo)}[kind]
        imm = 0 if kind[1] == "V" else [0, 512, 256, 768][k & 3]
        o = f" offset:{imm}" if imm else ""
        sid[i] = P.vm(f"buffer_load_dwordx4 {a4(s)}, v{vo}, {srd(r)}, s{sOff} offen{o} nt")
    freed = []
    def release(i): freed.append(sslot[i])

    def xlane(op, x, t, steps):
        for st in steps:
            if st in ("x1", "x2", "r4", "r8"):
                d = {"x1": "quad_perm:[1,0,3,2]", "x2": "quad_perm:[2,3,0,1]", "r4": "row_ror:4", "r8": "row_ror:8"}[st]
                P(f"{op}_dpp v{x}, v{x}, v{x} {d} {FULL}")
            else:
                P(f"v_mov_b32 v{t}, v{x}")
                P(f"v_permlane{st[1:]}_swap_b32 v{x}, v{t}")
                P(f"{op} v{x}, v{x}, v{t}")
    def tagcheck(Q, tags, stag, mask):
        tags = list(tags)
        if isinstance(stag, list): pairs = [(tags[k], tags[k+4], stag[k]) for k in range(4)]
        else: pairs = [(a, b, stag) for a, b in zip(tags[0::2], tags[1::2])]
        for n, (a, b, tg) in enumerate(pairs):
            d = vT0 if n == 0 else (vT1 if n % 2 else vT2)
            Q(f"v_bitop3_b32 v{d}, v{a}, v{b}, {tg} bitop3:0x7e")
            if n and n % 2 == 0: Q(f"v_or3_b32 v{vT0}, v{vT0}, v{vT1}, v{vT2}")
            elif n and n == len(pairs)-1: Q(f"v_or_b32 v{vT0}, v{vT0}, v{vT1}")
        if mask: Q(f"v_and_b32 v{vT0}, {mask:#x}, v{vT0}")
        Q(f"v_cmp_ne_u32 vcc, 0, v{vT0}")
    def gather(name, loads, tags, stag, mask):
        ids = []
        def iss():
            if name+"g" in skip: return
            for n, t in enumerate(loads): ids.append(publish(f"{name}{n}", t.replace(" sc1", "")))
        def chk():
            if name+"g" in skip: return
            P.wait(*ids)
            tagcheck(P, tags, stag, mask)
            P(f"s_cbranch_vccnz L_slow_{name}")
            P.label(f"L_back_{name}")
            Q = Prog()
            Q.label(f"L_slow_{name}")
            Q(f"s_add_u32 s{sSpin}, s{sSpin}, 1")
            Q(f"s_cmp_gt_u32 s{sSpin}, 0x40000")
            Q(f"s_cbranch_scc1 L_back_{name}")
            for t in loads: Q.vm(t)
            Q.waitall()
            tagcheck(Q, tags, stag, mask)
            Q(f"s_cbranch_vccnz L_slow_{name}")
            Q(f"s_branch L_back_{name}")
            slow.append(Q)
        return iss, chk
    def publish(name, txt):
        P(f"s_cmp_lg_u32 s{sFar}, 0")
        P(f"s_cbranch_scc1 L_far_{name}")
        i = P.vm(txt)
        P.label(f"L_near_{name}")
        Q = Prog(); Q.label(f"L_far_{name}")
        Q.vm(txt.rstrip() + " sc1")
        Q(f"s_branch L_near_{name}"); slow.append(Q)
        return i
    def extract(D, dst, tau, t):
        rs = [r for r in range(4) if r != tau]
        src = D + tau
        for n, r in enumerate(rs):
            last = n == 2
            m = f"row_mask:0xf bank_mask:{1 << tau:#x}" if last else FULL
            P(f"v_add_f32_dpp v{dst if last else t}, v{D+r}, v{src} row_ror:{(4*(tau-r)) % 16} {m}")
            src = t
    def transp(dst, src, e):
        for q in range(4):
            P(f"v_perm_b32 v{dst+q}, v{src+4*(2*q+1)+(e>>1)}, v{src+4*(2*q)+(e>>1)}, s{sSel1 if e & 1 else sSel0}")
    def sum8(r, dst):
        P(f"""
        v_add_f32 v{r}, v{r}, v{r+1}
        v_add_f32 v{r+2}, v{r+2}, v{r+3}
        v_add_f32 v{r+4}, v{r+4}, v{r+5}
        v_add_f32 v{r+6}, v{r+6}, v{r+7}
        v_add_f32 v{r}, v{r}, v{r+2}
        v_add_f32 v{r+4}, v{r+4}, v{r+6}
        v_add_f32 v{dst}, v{r}, v{r+4}
        """)

    bg = []
    def B(at, fn, after=0): bg.append((at, fn, after))

    vSel = V.get(4); vL12, vPw, vPr, vL4 = [V.get() for _ in range(4)]
    def c_setup():
        if swap:
            P(f"s_bfe_u32 s{sKo}, s2, 0x10005")
            P(f"s_mul_i32 s{sKo}, s{sKo}, 40")
        P(f"""
        s_load_dword s{sTag}, {sp(rWS)}, 0
        s_load_dwordx2 {sp(rBV)}, s[0:1], 56
        s_load_dwordx2 {sp(rAK)}, s[0:1], 8
        s_load_dwordx2 {sp(rAV)}, s[0:1], 16
        s_load_dwordx2 {sp(rWO)}, s[0:1], s{sKo} offset:32
        s_load_dwordx2 {sp(rOUT)}, s[0:1], 80
        v_and_b32 v{vLane}, 63, v0
        v_mov_b32 v{vBig}, {BIG}
        """)
        if ipf and not ipf0: code_pf()
        desc(rBV, 1 << 26); desc(rAK, 1 << 27); desc(rAV, 1 << 27); desc(rWO, 3670016); desc(rOUT, 7168)
        P(f"""
        s_mov_b32 s{sSel0}, 0x05040100
        s_mov_b32 s{sSel1}, 0x07060302
        s_mov_b32 s{sC}, {CS:#x}
        s_mov_b32 s{sSpin}, 0
        v_mul_u32_u24 v{vL12}, 12, v{vLane}
        v_lshlrev_b32 v{vL4}, 2, v{vLane}
        v_lshlrev_b32 v{vPw}, 3, v0
        v_and_b32 v{vPr}, 3, v0
        v_bfe_u32 v{vT0}, v0, 3, 2
        v_lshl_add_u32 v{vPr}, v{vPr}, 2, v{vT0}
        v_lshrrev_b32 v{vT0}, 6, v0
        v_lshl_add_u32 v{vPr}, v{vT0}, 4, v{vPr}
        v_bfe_u32 v{vT0}, v0, 2, 1
        v_lshl_add_u32 v{vPr}, v{vPr}, 1, v{vT0}
        v_bfe_u32 v{vT0}, v0, 5, 1
        v_lshl_add_u32 v{vPr}, v{vT0}, 8, v{vPr}
        v_lshlrev_b32 v{vPr}, 2, v{vPr}
        v_lshrrev_b32 v{vT0}, 3, v0
        v_and_b32 v{vT1}, 7, v0
        v_lshlrev_b32 v{vVo}, 9, v{vT0}
        v_lshl_add_u32 v{vVo}, v{vT1}, 4, v{vVo}
        v_and_b32 v{vT0}, 1, v{vT0}
        v_mul_u32_u24 v{vT0}, 0x0202, v{vT0}
        v_add_u32 v{vT0}, 0x0100, v{vT0}
        v_or_b32 v{vT2}, 0x0c0c0000, v{vT0}
        v_lshlrev_b32 v{vT0}, 16, v{vT0}
        v_or_b32 v{vT0}, 0x0c0c, v{vT0}
        """)
        vcc(0xaaaaaaaa)
        P(f"v_cndmask_b32 v{vT0}, v{vT2}, v{vT0}, vcc")
        P(f"v_mov_b32 v{vT2}, 0x0c0c0c0c")
        for r in range(4):
            vcc(0x03030303 << (2*r)); P(f"v_cndmask_b32 v{vSel+r}, v{vT2}, v{vT0}, vcc")

    vQD = V.get(32, 4); vTB = [V.get(4, 4), V.get(4, 4)]
    def proj_write(dst, tmp):
        for e0 in (0, 4):
            for n in range(3):
                for e in range(e0, e0+4):
                    D = vQD + 4*e; tau = e & 3
                    r = [x for x in range(4) if x != tau][n]
                    m = f"row_mask:0xf bank_mask:{1 << tau:#x}" if n == 2 else FULL
                    P(f"v_add_f32_dpp v{dst+(e >> 2) if n == 2 else tmp+tau}, v{D+r}, v{tmp+tau if n else D+tau} row_ror:{(4*(tau-r)) % 16} {m}")
        P(f"ds_write_b64 v{vPw}, {v2(dst)} offset:{L_QRED}")
        P("s_waitcnt lgkmcnt(0)")
    def proj_read(r):
        P("s_barrier")
        P(f"ds_read2st64_b32 {v2(r)}, v{vPr} offset0:{L_QRED//256} offset1:{L_QRED//256+2}")
    def proj_sum(r):
        P("s_waitcnt lgkmcnt(0)")
        P(f"v_add_f32 v{r}, v{r}, v{r+1}")
        xlane("v_add_f32", r, r+1, ["p32"])
    vFl, vFs, vFd, vFt = vXo, vWQo, V.get(), V.get()
    sFm = S.get(2)
    def tag_setup():
        P(f"""
        s_add_u32 s{sTag}, s{sTag}, 0x9e3779b9
        """)
    def fc_setup():
        P(f"""
        ; one line per (class, wave, checkpoint): a dword for each of the 32 workgroups of the class
        s_bfe_u32 s{sFC}, s2, 0x30003
        s_lshl2_add_u32 s{sFC}, s{sFC}, s{sWv}
        s_lshl_b32 s{sFC}, s{sFC}, 11
        s_add_u32 s{sFC}, s{sFC}, {WS_FC}
        s_and_b32 s{sI}, s2, 7
        s_lshr_b32 s{sBoost}, s2, 6
        s_lshl3_add_u32 s{sI}, s{sBoost}, s{sI}
        v_cmp_eq_u32 {sp(sFm)}, s{sI}, v{vLane}
        v_cndmask_b32 v{vFs}, v{vBig}, v{vL4}, {sp(sFm)}
        v_cmp_gt_u32 {sp(sFm)}, 32, v{vLane}
        v_cndmask_b32 v{vFl}, v{vBig}, v{vL4}, {sp(sFm)}
        """)
    hid = []
    def c_hello2():
        P(f"v_and_b32 v{vH}, 0xe0, v{vH}")
        P(f"v_and_or_b32 v{vH}, v0, 31, v{vH}")
        hid.append(P.vm(f"global_load_ubyte v{vH}, v{vH}, {sp(sDbg)}"))
    def c_q():
        P.wait(*idwq)
        stamp("wq")
        for e in range(8):
            transp(vTB[e & 1], vWQ, e)
            P(f"v_mfma_f32_16x16x32_bf16 {v4(vQD+4*e)}, {v4(vX)}, {v4(vTB[e & 1])}, 0")
        proj_write(vWQ, vWQ+4)
        return 'lgk'
    def c_q4():
        r = vWQ
        proj_read(r)
        tag_setup()
        P(f"""
        s_lshr_b32 s{sT0}, s2, 7
        s_lshl2_add_u32 s{sT0}, s{sT0}, s{sWv}
        s_lshl_b32 s{sT0}, s{sT0}, 7
        s_add_u32 s{sT0}, s{sT0}, s{sCB}
        s_lshl_b32 s{sT0}, s{sT0}, 7
        s_add_u32 s{sT0}, s{sT0}, {WS_Q}
        v_mov_b32 v{r+9}, s{sTag}
        """)
        proj_sum(r)
        if True:
            P.wait(*hid)
            P(f"""
            ; class-local hand-offs go through L2 only if all 32 workgroups of the class were seen to report this XCC
            v_cmp_ne_u32 vcc, v{vH}, v{vH+1}
            s_mov_b32 s{sFar}, vcc_lo
            """)
            if forcefar: P(f"s_mov_b32 s{sFar}, 1")
        P(f"""
        v_mov_b32_dpp v{r+1}, v{r} quad_perm:[1,0,3,2] {FULL}
        v_cvt_pk_bf16_f32 v{r+8}, v{r}, v{r+1}
        s_mov_b32 exec_lo, 0x55555555
        s_mov_b32 exec_hi, 0
        """)
        publish("q", f"buffer_store_dwordx2 {v2(r+8)}, v{vL4}, {srd(rWS)}, s{sT0} offen")
        P("s_mov_b64 exec, -1")
        stamp("qpub")
        return 'tag'
    def c_tlb():
        P(f"""
        s_lshr_b32 s{sT0}, s2, 2
        s_lshl_b32 s{sT0}, s{sT0}, 21
        s_lshr_b32 s{sT1}, s{sCB}, 4
        s_mul_i32 s{sT1}, s{sT1}, {512*896}
        v_cmp_eq_u32 vcc, 0, v0
        v_cndmask_b32 v{vT0}, 2.0, v0, vcc
        s_waitcnt lgkmcnt(0)
        """)
        if "V" in tlb: P.vm(f"buffer_load_dword v{vTl}, v{vT0}, {srd(rBV)}, s{sOff} offen nt")
        if "K" in tlb: P.vm(f"buffer_load_dword v{vTl}, v{vT0}, {srd(rAK)}, s{sT0} offen nt")
        if "A" in tlb: P.vm(f"buffer_load_dword v{vTl}, v{vT0}, {srd(rAV)}, s{sT0} offen nt")
        if "W" in tlb: P.vm(f"buffer_load_dword v{vTl}, v{vT0}, {srd(rWO)}, s{sT1} offen nt")
        if "O" in tlb: P.vm(f"buffer_load_dword v{vTl}, v{vT0}, {srd(rOUT)}, 0 offen nt")
    B(W-1, c_wsw); B(0, c_setup)
    if tlb: B(0, c_tlb)
    B(hello, c_hello2)
    B(len(first) - 2 + (W if len(first) > 1 else 0), c_q); B(hello + W + 1, c_q4, 1)

    vQA = V.get(32, 4); vQB = V.get(16, 4)
    vG = vQD
    vGo = V.get(2); sG = [S.get() for _ in range(8)]
    ql = [f"buffer_load_dwordx4 {v4(vG+8*u+4*hf)}, v{vGo}, {srd(rWS)}, s{sG[0]} offen offset:{512*u+16*hf} sc1" for u in range(2) for hf in range(2)]
    ql += [f"buffer_load_dwordx4 {v4(vG+16+8*u+4*hf)}, v{vGo+1}, {srd(rWS)}, s{sG[1]} offen offset:{512*u+16*hf} sc1" for u in range(2) for hf in range(2)]
    q_iss, q_chk = gather("q", ql, range(vG+1, vG+32, 2), f's{sTag}', None)
    def c_qg():
        P(f"""
        v_lshrrev_b32 v{vGo}, 2, v{vLane}
        v_lshlrev_b32 v{vGo}, 5, v{vGo}
        v_bfe_u32 v{vT0}, v{vLane}, 1, 1
        v_lshl_add_u32 v{vGo+1}, v{vT0}, 10, v{vGo}
        s_lshr_b32 s{sG[0]}, s2, 2
        s_lshl_b32 s{sG[0]}, s{sG[0]}, 10
        s_add_u32 s{sG[0]}, s{sG[0]}, {WS_Q}
        s_lshr_b32 s{sG[1]}, s2, 3
        s_lshl_b32 s{sG[1]}, s{sG[1]}, 11
        s_add_u32 s{sG[1]}, s{sG[1]}, {WS_Q + 4*16384}
        """)
        q_iss()
    def c_qb():
        q_chk(); stamp("qgot")
        for t in range(4):
            vcc(0x11111111 << t)
            for u in range(2):
                for q in range(4): P(f"v_cndmask_b32 v{vQA+16*u+4*t+q}, 0, v{vG+8*u+2*q}, vcc")
        for t in range(2):
            vcc(0x55555555 << t)
            for u in range(2):
                for q in range(4): P(f"v_cndmask_b32 v{vQB+8*u+4*t+q}, 0, v{vG+16+8*u+2*q}, vcc")
        return 'kok'
    B(qg, c_qg); B(0, c_qb, WM+1)

    vD = [V.get(4, 4) for _ in range(4)]
    vSB, vTb = V.get(), V.get()
    def c_bqk():
        P.wait(sid[15])
        D = vWQ
        for tau in range(4):
            for n in range(4):
                t, u = n & 1, n >> 1
                P(f"v_mfma_f32_16x16x32_bf16 {v4(D+4*tau)}, {a4(sslot[4*tau+n])}, {v4(vQB+8*u+4*t)}, {v4(D+4*tau) if n else 0}")
                release(4*tau+n)
        for tau in range(4): extract(D+4*tau, vSB, tau, vT0)
        P(f"""
        v_cvt_pk_bf16_f32 v{vSB}, v{vSB}, v{vSB}
        v_lshlrev_b32 v{vT0}, 4, v0
        v_lshrrev_b32 v{vTb}, v{vT0}, s{sTag}
        v_mov_b32 v{vT0}, 0xffff
        v_bfi_b32 v{vSB}, v{vT0}, v{vTb}, v{vSB}
        """)
    B(15+WM, c_bqk)

    vWO = V.get(32, 4); vWOo = V.get()
    def wo_load(j):
        if j == 4: P(f"s_addk_i32 s{sAux}, {4*896}")
        if "wo" not in skip:
            P.vm(f"buffer_load_dwordx4 {v4(vQD+4*j)}, v{vWOo}, {srd(rWO)}, s{sAux} offen offset:{896*(j & 3)} {woflag}")

    vSA = V.get(4, 4)
    pend = []
    def k_consume(i):
        k = i - 32
        unit, n = k >> 4, k & 15
        t, u, par = n >> 2, (n >> 1) & 1, n & 1
        D = vD[2*(unit & 1) + par]
        first = (t == 0 and u == 0)
        P(f"v_mfma_f32_16x16x32_bf16 {v4(D)}, {a4(sslot[i])}, {v4(vQA+16*u+4*t)}, {0 if first else v4(D)}")
        release(i)
        while pend and n >= 2:
            pend.pop(0)()
        if n == 15:
            for p_ in range(2):
                pend.append(lambda p_=p_, unit=unit: extract(vD[2*(unit & 1)+p_], vSA + 2*(unit >> 2) + p_, unit & 3, vXT))
            if k == 127:
                while pend: pend.pop(0)()
                c_spub()
    def c_spub():
        o = vD[0]
        P(f"""
        s_lshl2_add_u32 s{sI}, s2, s{sWv}
        s_mul_i32 s{sI}, s{sI}, 768
        s_add_u32 s{sI}, s{sI}, {WS_SC}
        v_cvt_pk_bf16_f32 v{o}, v{vSA}, v{vSA+1}
        v_cvt_pk_bf16_f32 v{o+1}, v{vSA+2}, v{vSA+3}
        v_mov_b32 v{o+2}, v{vSB}
        """)
        if "scs" not in skip: publish("sc", f"buffer_store_dwordx3 {v3(o)}, v{vL12}, {srd(rWS)}, s{sI} offen")
        stamp("scpub")
    vSG = vWQ
    vE = vQA; vEB = vQA + 16
    vP = V.get(8, 4); vPB = vQB + 4; vM, vL, vMB, vLB = vQB, vQB+1, vQB+2, vQB+3
    vWt, vWtB, vFF = vQB+8, vQB+9, vQB+10
    sl = [f"buffer_load_dwordx3 {v3(vSG+4*k)}, v{vL12}, {srd(rWS)}, s{sG[k]} offen sc1" for k in range(4)]
    sl += [f"buffer_load_dword v{vSG+16+k}, v{vL12}, {srd(rWS)}, s{sG[4+k]} offen offset:8 sc1" for k in range(4)]
    sbr = [vSG+4*k+2 for k in range(4)] + [vSG+16+k for k in range(4)]
    s_iss, s_chk = gather("sc", sl, sbr, f'v{vTb}', 0xffff)
    def c_sg():
        P(f"""
        s_and_b32 s{sT0}, s2, 0xfc
        s_lshl2_add_u32 s{sT0}, s{sT0}, s{sWv}
        s_xor_b32 s{sT1}, s{sT0}, 16
        s_mul_i32 s{sT0}, s{sT0}, 768
        s_mul_i32 s{sT1}, s{sT1}, 768
        s_add_u32 s{sG[0]}, s{sT0}, {WS_SC}
        s_add_u32 s{sG[4]}, s{sT1}, {WS_SC}
        """)
        for k in (1, 2, 3, 5, 6, 7): P(f"s_add_u32 s{sG[k]}, s{sG[k-1]}, 3072")
        s_iss()
    def c_sm1():
        s_chk(); stamp("scgot")
        for r in range(8):
            src = vSG + 4*(r >> 1) + (r & 1)
            P(f"v_lshlrev_b32 v{vE+2*r}, 16, v{src}")
            P(f"v_and_b32 v{vE+2*r+1}, 0xffff0000, v{src}")
        P(f"v_max3_f32 v{vM}, v{vE}, v{vE+1}, v{vE+2}")
        for r in range(3, 15, 2): P(f"v_max3_f32 v{vM}, v{vM}, v{vE+r}, v{vE+r+1}")
        P(f"v_max_f32 v{vM}, v{vM}, v{vE+15}")
        xlane("v_max_f32", vM, vT0, ["x1", "x2", "r4", "r8", "p16", "p32"])
        P(f"v_mul_f32 v{vM}, s{sC}, v{vM}")
        for r in range(16):
            P(f"v_fma_f32 v{vE+r}, v{vE+r}, s{sC}, -v{vM}")
            P(f"v_exp_f32 v{vE+r}, v{vE+r}")
        for r in range(8): P(f"v_cvt_pk_bf16_f32 v{vP+r}, v{vE+2*r}, v{vE+2*r+1}")
        return 'vok'
    def c_sm3():
        for r in range(8): P(f"v_add_f32 v{vE+r}, v{vE+r}, v{vE+8+r}")
        sum8(vE, vL)
        xlane("v_add_f32", vL, vT0, ["x1", "x2", "r4", "r8", "p16", "p32"])
    def c_sb1():
        for k in range(8): P(f"v_and_b32 v{vEB+k}, 0xffff0000, v{sbr[k]}")
        P(f"v_max3_f32 v{vMB}, v{vEB}, v{vEB+1}, v{vEB+2}")
        P(f"v_max3_f32 v{vMB}, v{vMB}, v{vEB+3}, v{vEB+4}")
        P(f"v_max3_f32 v{vMB}, v{vMB}, v{vEB+5}, v{vEB+6}")
        P(f"v_max_f32 v{vMB}, v{vMB}, v{vEB+7}")
        xlane("v_max_f32", vMB, vT0, ["x1", "r4", "r8", "p16", "p32"])
        P(f"v_mul_f32 v{vMB}, s{sC}, v{vMB}")
        for k in range(8):
            P(f"v_fma_f32 v{vEB+k}, v{vEB+k}, s{sC}, -v{vMB}")
            P(f"v_exp_f32 v{vEB+k}, v{vEB+k}")
        for k in range(4):
            P(f"v_mov_b32_dpp v{vT0}, v{vEB+k} quad_perm:[1,0,3,2] {FULL}")
            P(f"v_cvt_pk_bf16_f32 v{vPB+k}, v{vEB+k}, v{vT0}")
        sum8(vEB, vLB)
        xlane("v_add_f32", vLB, vT0, ["x1", "r4", "r8", "p16", "p32"])
        P(f"""
        v_bfe_u32 v{vT0}, v{vLane}, 1, 1
        v_lshlrev_b32 v{vT0}, 6, v{vT0}
        s_lshl_b32 s{sT0}, s{sWv}, 4
        v_add_u32 v{vT0}, s{sT0}, v{vT0}
        ds_write_b128 v{vT0}, {v4(vM)} offset:{L_ST}
        """)
    vBc = [V.get(), V.get()]
    vTC = [V.get(4, 4), V.get(4, 4)]
    def pvop(bc, dst, src, lane):
        P(f"v_mov_b32_dpp v{bc}, v{src} row_newbcast:{lane} {FULL}")
        for q in range(4): P(f"v_perm_b32 v{dst+q}, v{bc}, v{bc}, v{vSel+q}")
    def c_bpv():
        for k in range(4):
            for tau in range(4):
                i = 16 + 4*tau + k
                for hd in range(2): pvop(vT0+hd, vTC[hd], vPB+k, 4*tau + 2*hd)
                for hd in range(2):
                    P(f"v_mfma_f32_16x16x32_bf16 {v4(vD[2+hd])}, {a4(sslot[i])}, {v4(vTC[hd])}, {v4(vD[2+hd]) if i > 16 else 0}")
                release(i)
    assert vT1 == vT0 + 1
    vAw, vAr = V.get(), V.get()
    def c_sm4():
        s_ = vE
        P(f"""
        v_bfe_u32 v{vT0}, v{vLane}, 1, 1
        v_lshlrev_b32 v{vT0}, 6, v{vT0}
        s_waitcnt lgkmcnt(0)
        s_barrier
        """)
        for k in range(4): P(f"ds_read_b128 {v4(s_+4*k)}, v{vT0} offset:{L_ST+16*k}")
        P(f"""
        v_lshrrev_b32 v{vAw}, 4, v0
        v_lshlrev_b32 v{vAw}, 7, v{vAw}
        v_and_b32 v{vT1}, 7, v{vLane}
        v_lshl_add_u32 v{vAw}, v{vT1}, 4, v{vAw}
        v_and_b32 v{vAr}, 32, v{vLane}
        v_lshl_add_u32 v{vAr}, v{vT1}, 2, v{vAr}
        v_bfe_u32 v{vT1}, v{vLane}, 3, 2
        v_add_lshl_u32 v{vAr}, v{vAr}, v{vT1}, 2
        s_min_u32 s{sT0}, s{sWv}, 2
        s_lshl_b32 s{sT0}, s{sT0}, 11
        v_add_u32 v{vAr}, s{sT0}, v{vAr}
        v_mov_b32 v{vFF}, 0xff
        s_waitcnt lgkmcnt(0)
        """)
        for o, m, wt in ((0, vM, vWt), (2, vMB, vWtB)):
            P(f"v_max3_f32 v{vT0}, v{s_+o}, v{s_+4+o}, v{s_+8+o}")
            P(f"v_max_f32 v{vT0}, v{vT0}, v{s_+12+o}")
            for k in range(4):
                P(f"v_sub_f32 v{s_+4*k+o}, v{s_+4*k+o}, v{vT0}")
                P(f"v_exp_f32 v{s_+4*k+o}, v{s_+4*k+o}")
            P(f"v_sub_f32 v{wt}, v{m}, v{vT0}")
            P(f"v_exp_f32 v{wt}, v{wt}")
            P(f"v_mul_f32 v{vT1}, v{s_+o}, v{s_+o+1}")
            for k in range(1, 4): P(f"v_fmac_f32 v{vT1}, v{s_+4*k+o}, v{s_+4*k+o+1}")
            P(f"v_rcp_f32 v{vT1}, v{vT1}")
            P(f"v_mul_f32 v{wt}, v{wt}, v{vT1}")
    def red_write(lst):
        P("s_mov_b32 exec_lo, 0x00ff00ff")
        P("s_mov_b32 exec_hi, 0xff00ff00")
        for acc, reg in lst: P(f"ds_write_b128 v{vAw}, {v4(acc)} offset:{L_RED+2048*reg}")
        P("s_mov_b64 exec, -1")
    def c_br1():
        for hd in range(2):
            for q in range(4):
                P(f"v_mul_f32_dpp v{vD[2+hd]+q}, v{vWtB}, v{vD[2+hd]+q} quad_perm:[{2*hd},{2*hd},{2*hd},{2*hd}] {FULL}")
        red_write([(vD[2], 1), (vD[3], 2)])
        stamp("ybdone")
    def c_br2():
        r = vWQ
        P("s_waitcnt lgkmcnt(0)")
        P("s_barrier")
        for k in range(4): P(f"ds_read2st64_b32 {v2(r+2*k)}, v{vAr} offset0:{L_RED//256+2*k} offset1:{L_RED//256+2*k+1}")
        P(f"""
        v_add_u32 v{vT0}, 64, v0
        v_and_b32 v{vT0}, 128, v{vT0}
        v_cmp_ne_u32 vcc, 0, v{vT0}
        v_cndmask_b32 v{vT0}, v{vBig}, v{vL4}, vcc
        s_waitcnt lgkmcnt(0)
        """)
        sum8(r, r)
        P(f"v_bfi_b32 v{r}, v{vFF}, v{vTb}, v{r}")
        t = f"buffer_store_dword v{r}, v{vT0}, {srd(rWS)}, s{sOp} offen"
        if swap: P.vm(t + " sc1")
        else: publish("ob", t)
    vOg, vOo, vYo = vGo+1, vL12, vGo
    vY0, vY1, vBp = V.get(), V.get(), V.get()
    sOp, sOg, sYp, sYg, sOutO = sG[0:5]
    sYx, sOwn = rX, rX+2
    brx = "s_bfe_u32 s%d, s2, 0x10005" % sT0 if swap else "s_lshr_b32 s%d, s2, 7" % sT0
    def c_fin():
        if swap:
            P(f"""
            s_bfe_u32 s{sT0}, s2, 0x20003
            s_lshr_b32 s{sT1}, s2, 6
            s_lshl2_add_u32 s{sT0}, s{sT0}, s{sT1}
            s_and_b32 s{sT1}, s2, 7
            s_lshl4_add_u32 s{sCB}, s{sT1}, s{sT0}
            """)
        P(f"""
        ; o and y words carry byte (column&3) of the tag in their low byte
        v_lshlrev_b32 v{vT0}, 3, v0
        v_lshrrev_b32 v{vTb}, v{vT0}, s{sTag}
        s_lshr_b32 s{sG[5]}, s{sTag}, 8
        s_lshr_b32 s{sG[6]}, s{sTag}, 16
        s_lshr_b32 s{sG[7]}, s{sTag}, 24
        ; O table [x][slot: A, B kh0, B kh1][b][512] dwords
        s_bfe_u32 s{sT0}, s2, 0x30003
        s_mul_i32 s{sOg}, s{sT0}, {3*8192}
        s_add_u32 s{sOg}, s{sOg}, {WS_O}
        s_lshr_b32 s{sT0}, s2, 6
        s_lshl_b32 s{sT0}, s{sT0}, 11
        s_add_u32 s{sOp}, s{sOg}, s{sT0}
        ; wave 0: A row block t ; waves 1,2: slot 1+kh, row block 4*(wave-1)+s
        s_and_b32 s{sT0}, s2, 4
        s_lshl_b32 s{sT0}, s{sT0}, 3
        s_lshl2_add_u32 s{sT0}, s{sWv}, s{sT0}
        s_and_b32 s{sT1}, s2, 3
        s_add_u32 s{sT0}, s{sT0}, s{sT1}
        s_addk_i32 s{sT0}, 28
        s_and_b32 s{sT1}, s2, 7
        s_cmp_eq_u32 s{sWv}, 0
        s_cselect_b32 s{sT0}, s{sT1}, s{sT0}
        s_lshl_b32 s{sT0}, s{sT0}, 8
        s_add_u32 s{sOp}, s{sOp}, s{sT0}
        s_lshr_b32 s{sT0}, s{sCB}, 4
        s_mul_i32 s{sOg}, s{sT0}, {3*8192}
        s_add_u32 s{sOg}, s{sOg}, {WS_O}
        {brx}
        s_lshl_b32 s{sT0}, s{sT0}, 13
        s_add_u32 s{sOg}, s{sOg}, s{sT0}
        s_and_b32 s{sT1}, s{sCB}, 1
        s_lshl_b32 s{sT1}, s{sT1}, 10
        s_add_u32 s{sOg}, s{sOg}, s{sT1}
        v_bfe_u32 v{vT0}, v0, 1, 1
        v_mul_lo_u32 v{vOg}, v{vT0}, s{sT0}
        v_bfe_u32 v{vT0}, v0, 2, 2
        v_lshl_add_u32 v{vOg}, v{vT0}, 11, v{vOg}
        v_lshrrev_b32 v{vT0}, 4, v0
        v_lshl_add_u32 v{vOg}, v{vT0}, 6, v{vOg}
        v_and_b32 v{vT0}, 1, v0
        v_lshl_add_u32 v{vOg}, v{vT0}, 5, v{vOg}
        ; wo lane (row group tid>>3, 16-byte chunk tid&7)
        v_lshrrev_b32 v{vT0}, 3, v0
        v_mul_u32_u24 v{vWOo}, {8*896}, v{vT0}
        v_and_b32 v{vT0}, 7, v0
        v_lshl_add_u32 v{vWOo}, v{vT0}, 4, v{vWOo}
        s_and_b32 s{sT1}, s{sCB}, 15
        v_mov_b32 v{vT1}, s{sT1}
        v_cmp_gt_u32 vcc, 14, v{vT1}
        v_cndmask_b32 v{vWOo}, v{vBig}, v{vWOo}, vcc
        s_lshr_b32 s{sT0}, s{sCB}, 4
        s_and_b32 s{sAux}, s{sCB}, 1
        s_lshl1_add_u32 s{sAux}, s{sT0}, s{sAux}
        s_mul_i32 s{sAux}, s{sAux}, {256*896}
        s_and_b32 s{sT0}, s{sCB}, 14
        s_lshl_b32 s{sT0}, s{sT0}, 6
        s_add_u32 s{sAux}, s{sAux}, s{sT0}
        v_lshlrev_b32 v{vPw}, 4, v0
        v_and_b32 v{vPr}, 1, v0
        v_bfe_u32 v{vT1}, v0, 3, 3
        v_lshl_add_u32 v{vPr}, v{vPr}, 3, v{vT1}
        v_lshrrev_b32 v{vT1}, 6, v0
        v_lshl_add_u32 v{vPr}, v{vT1}, 4, v{vPr}
        v_bfe_u32 v{vT1}, v0, 1, 2
        v_lshl_add_u32 v{vPr}, v{vPr}, 2, v{vT1}
        v_lshlrev_b32 v{vPr}, 2, v{vPr}
        v_lshlrev_b32 v{vOo}, 3, v{vT0}
        v_bfe_u32 v{vT0}, v{vLane}, 4, 1
        v_lshl_add_u32 v{vOo}, v{vT0}, 2, v{vOo}
        v_lshrrev_b32 v{vT0}, 5, v{vLane}
        v_lshl_add_u32 v{vOo}, v{vT0}, 1, v{vOo}
        v_mul_u32_u24 v{vYo}, {8192-128}, v{vT0}
        v_add_u32 v{vYo}, v{vYo}, v{vL4}
        {brx}
        s_mul_i32 s{sT0}, s{sT0}, 14
        s_add_u32 s{sT0}, s{sT0}, s{sT1}
        s_lshl_b32 s{sOutO}, s{sT0}, 6
        s_mul_i32 s{sYp}, s{sWv}, 1792
        s_add_u32 s{sOutO}, s{sOutO}, s{sYp}
        s_lshl2_add_u32 s{sT0}, s{sT0}, s{sWv}
        s_lshl_b32 s{sT0}, s{sT0}, 11
        s_add_u32 s{sYg}, s{sT0}, {WS_Y}
        s_and_b32 s{sT1}, s{sCB}, 1
        s_mul_i32 s{sT0}, s{sT1}, {8192-1024}
        s_sub_u32 s{sYp}, s{sYg}, s{sT0}
        s_lshr_b32 s{sT0}, s{sCB}, 4
        s_lshl_b32 s{sI}, s{sT0}, 7
        s_add_u32 s{sYp}, s{sYp}, s{sI}
        ; block m is summed by its workgroup of class m&7, which keeps that half of its own result in registers
        s_lshl_b32 s{sI}, s{sT0}, 3
        s_lshl_b64 {sp(sOwn)}, 0xff, s{sI}
        s_lshl_b32 s{sI}, s{sT1}, 7
        v_lshl_add_u32 v{vBp}, v{vOo}, 1, s{sI}
        s_xor_b32 s{sI}, s{sT1}, 1
        s_lshl_b32 s{sI}, s{sI}, 10
        v_lshlrev_b32 v{vY0}, 4, v{vLane}
        v_add_u32 v{vY1}, 1024, v{vY0}
        v_add_u32 v{vT0}, s{sI}, v{vY0}
        v_cndmask_b32 v{vY0}, v{vY0}, v{vT0}, {sp(sOwn)}
        v_cndmask_b32 v{vY1}, v{vY1}, v{vT0}, {sp(sOwn)}
        s_sub_u32 s{sYx}, 0, s{sT1}
        s_not_b32 s{sYx+1}, s{sYx}
        s_and_b32 s{sT1}, s{sCB}, 7
        s_cmp_eq_u32 s{sT0}, s{sT1}
        s_cselect_b64 {sp(sYx)}, {sp(sYx)}, -1
        """)
    B(160+sg, c_sg); B(0, c_sm1, WM+1); B(0, c_sm3); B(0, c_sb1); B(0, c_bpv); B(0, c_sm4); B(0, c_br1); B(0, c_fin)
    def c_yw():
        if yw[1] == "c":
            P(f"""
            s_cmp_eq_u64 {sp(sYx)}, -1
            s_cselect_b32 s{sT0}, 0, 16
            v_lshlrev_b32 v{vT0}, 7, v{vLane}
            v_cmp_gt_u32 vcc, s{sT0}, v{vLane}
            v_cndmask_b32 v{vT0}, v{vBig}, v{vT0}, vcc
            """)
            P.vm(f"buffer_load_dword v{vTl+1}, v{vT0}, {srd(rWS)}, s{sYg} offen sc1")
        else:
            P.vm(f"buffer_load_dword v{vTl+1}, v{vYo}, {srd(rWS)}, s{sYp} offen sc1")
    if yw and yw[0] < bpub: B(yw[0], c_yw)
    def c_ow():
        P(f"v_cmp_gt_u32 vcc, 192, v0")
        P(f"v_cndmask_b32 v{vT0}, v{vBig}, v{vL4}, vcc")
        P.vm(f"buffer_load_dword v{vTl+1}, v{vT0}, {srd(rWS)}, s{sOp} offen sc1")
    if ow: B(ow, c_ow)
    if bpub: B(bpub, c_br2)
    if yw and yw[0] >= bpub: B(yw[0], c_yw)

    vAcc = vD[1]
    prepared = set()
    def v_prep(i):
        v = i - 160
        if i < NS and i not in prepared:
            pvop(vBc[v & 1], vTB[v & 1], vP + 2*(v & 3) + (v >> 6), (v >> 2) & 15); prepared.add(i)
    def v_consume(i):
        v = i - 160
        v_prep(i)
        P.wait(sid[i])
        P(f"v_mfma_f32_16x16x32_bf16 {v4(vAcc)}, {a4(sslot[i])}, {v4(vTB[v & 1])}, {v4(vAcc) if v else 0}")
        release(i)
        v_prep(i+1)

    xg = fc['xg'] if fc else 0
    if xg:
        vGs, vGl, vBs, vGd = [V.get() for _ in range(4)]; sBias = S.get()
        xcs = [cps[c] for c in fc['xc']]
        GL = 0x4000
    def fc_step(i):
        if i in cps:
            c = cps.index(i)
            if c == 0:
                assert st['tag']
                fc_setup()
                P(f"v_mov_b32 v{vFt}, s{sTag}")
                if fc['tab']:
                    m = min(fc['tab']); t = sum(((x - m)//2) << (4*k) for k, x in enumerate(fc['tab']))
                    P(f"""
                    s_lshl_b32 s{sTagQ}, s{sTagQ}, 2
                    s_lshr_b32 s{sTagQ}, {t:#x}, s{sTagQ}
                    s_and_b32 s{sTagQ}, s{sTagQ}, 15
                    s_lshl1_add_u32 s{sTagQ}, s{sTagQ}, {m}
                    """)
                if xg:
                    P(f"""
                    s_bfe_u32 s{sBias}, s2, 0x30003
                    s_lshl_b32 s{sBoost}, s{sBias}, 11
                    s_add_u32 s{sBoost}, s{sBoost}, {WS_G + GL}
                    v_mov_b32 v{vBs}, s{sBoost}
                    s_sub_u32 s{sBoost}, s{sBoost}, s{sFC}
                    v_writelane_b32 v{vFl}, s{sBoost}, 32
                    s_lshl2_add_u32 s{sI}, s{sI}, s{sWv}
                    s_cmp_eq_u32 s{sI}, {4*13+1}
                    s_cselect_b32 s{sFm}, 0xff, 0
                    s_mov_b32 s{sFm+1}, 0
                    v_lshlrev_b32 v{vGd}, 11, v{vLane}
                    v_add_u32 v{vGd}, {WS_G}, v{vGd}
                    v_cndmask_b32 v{vGl}, v{vBig}, v{vGd}, {sp(sFm)}
                    s_lshl_b32 s{sBias}, 1, s{sBias}
                    s_and_b32 s{sFm}, s{sFm}, s{sBias}
                    v_cndmask_b32 v{vGs}, v{vBig}, v{vGd}, {sp(sFm)}
                    v_cndmask_b32 v{vGl}, v{vGl}, v{vBig}, {sp(sFm)}
                    v_cndmask_b32 v{vBs}, v{vBig}, v{vBs}, {sp(sFm)}
                    s_mov_b32 s{sBias}, 0
                    """)
            look = xg and c - 1 in fc['xc']
            if xg and not look: P("s_mov_b32 exec_hi, 0")
            fcs['ids'][c] = P.vm(f"buffer_load_dword v{vFd}, v{vFl}, {srd(rWS)}, s{sFC} offen offset:{128*c}")
            if xg and not look: P("s_mov_b32 exec_hi, -1")
            P.vm(f"buffer_store_dword v{vFt}, v{vFs}, {srd(rWS)}, s{sFC} offen offset:{128*c}")
            if xg and i in xcs: P.vm(f"buffer_store_dword v{vFt}, v{vGs}, {srd(rWS)}, 0 offen offset:{128*c} sc1")
        if xg and i - fc['xd'] in xcs:
            fcs['g'] = P.vm(f"buffer_load_dword v{vGd}, v{vGl}, {srd(rWS)}, 0 offen offset:{128*cps.index(i - fc['xd'])} sc1")
        if xg and i - fc['xd'] - WM - 1 in xcs:
            c = cps.index(i - fc['xd'] - WM - 1)
            P.wait(fcs['g'])
            P(f"""
            v_cmp_eq_u32 {sp(sFm)}, v{vFt}, v{vGd}
            s_bcnt1_i32_b32 s{sFm}, s{sFm}
            v_add_u32 v{vGd}, s{sFm}, v{vFt}
            """)
            P.vm(f"buffer_store_dword v{vGd}, v{vBs}, {srd(rWS)}, 0 offen offset:{128*(c+1)}")
        if i - WM - 1 in cps:
            c = cps.index(i - WM - 1)
            P.wait(fcs['ids'].pop(c))
            pd = fc['Pd'] if not fc['cps'] else ((cps[c+1] - cps[c]) if c + 1 < len(cps) else NS - i)
            g = int(round(fc['gain'] * pd / 32 * 256))
            if fc['s3'] and i >= 150 and not fcs.get('s3'):
                fcs['s3'] = True
                P(f"""
                s_and_b32 s{sBoost}, s2, 3
                s_cmp_eq_u32 s{sBoost}, 3
                s_cselect_b32 s{sBoost}, {fc['s3']}, 0
                s_add_i32 s{sTagQ}, s{sTagQ}, s{sBoost}
                """)
            P(f"""
            v_cmp_eq_u32 {sp(sFm)}, v{vFt}, v{vFd}
            s_bcnt1_i32_b32 s{sBoost}, s{sFm}
            s_mul_i32 s{sBoost}, s{sBoost}, {g}
            s_sub_i32 s{sBoost}, s{sBoost}, {int(fc['r0'] * 32)*g}
            """)
            if xg and c - 1 in fc['xc']:
                P(f"""
                v_readlane_b32 s{sFm}, v{vFd}, 32
                s_sub_u32 s{sFm}, s{sFm}, s{sTag}
                s_mul_i32 s{sBias}, s{sFm}, {int(xg*256)}
                s_sub_i32 s{sBias}, s{sBias}, {int(xg*256*fc['x0'])}
                s_cmp_lt_u32 s{sFm}, 8
                s_cselect_b32 s{sBias}, s{sBias}, 0
                """)
            if xg and (fc['hold'] or c - 1 in fc['xc']): P(f"s_add_i32 s{sBoost}, s{sBoost}, s{sBias}")
            P(f"s_ashr_i32 s{sBoost}, s{sBoost}, 8")
            if fc['tab']: P(f"s_add_i32 s{sBoost}, s{sBoost}, s{sTagQ}")
            fcs['start'] = i + 1

    nk, nv = 32, 160
    jw = 0
    bi = 0; lastbg = -1
    cur = None
    def consume_one():
        nonlocal nk, nv
        if st['kok'] and nk < 160 and nk <= land[0]:
            k_consume(nk); nk += 1
        elif st['vok'] and nv <= land[0]:
            v_consume(nv); nv += 1
        else: return False
        slots.extend(freed); freed.clear()
        return True
    def splittable(items, n):
        full = True; open_br = False
        for it in items[:n]:
            if it[0] == 'i':
                t = it[1]
                if t.startswith(('s_mov_b32 exec', 's_mov_b64 exec')): full = t.endswith('-1') and 'b64' in t
                if t.startswith('s_cbranch_scc'): open_br = True
            elif it[0] == 'l': open_br = False
        last = items[n-1]
        if last[0] == 'i' and last[1].startswith(('s_cmp', 's_cbranch', 's_getpc')): return False
        return full and not open_br
    minfree = 99
    for i in range(NS):
        m0 = len(P.ir)
        issue(i); fc_step(i)
        if i + 1 == hpos: hello_store()
        if i + 1 < len(first):
            for _ in range(first[i+1]): wq_load()
        minfree = min(minfree, len(slots))
        used = lambda: sum(cost(x) for x in P.ir[m0:])
        consume_one()
        lim = 10**9 if i == W-1 else budget
        while True:
            if cur is None:
                if bi < len(bg) and bg[bi][0] <= i and lastbg + bg[bi][2] <= i and used() < lim:
                    keep = P.ir; P.ir = []
                    flag = bg[bi][1]()
                    cur = [P.ir, flag, list(freed), 0]; freed.clear(); P.ir = keep; bi += 1
                    if bg[bi-1][1] not in (c_setup, c_wsw, c_hello2, c_tlb): lim = min(lim, used() + budget) if i == W-1 else lim
                else: break
            items = cur[0]; n = cur[3]; u = used()
            while n < len(items) and not (u >= lim and n > cur[3] and splittable(items, n)):
                u += cost(items[n]); n += 1
            P.ir.extend(items[cur[3]:n]); cur[3] = n
            if n < len(items): break
            if cur[1]: st[cur[1]] = True
            slots.extend(cur[2]); cur = None; lastbg = i
        c = 1
        while c < maxcatch and (used() < budget or len(slots) < 3) and consume_one(): c += 1
    assert bi == len(bg) and cur is None and nk == 160, (bi, len(bg), nk)
    stamp("lastiss")
    if spinif == "retry": P(f"s_mov_b32 s1, s{sSpin}")
    if tpad is not None:
        P("s_branch L_tail"); P.raw(f".p2align {tpad[0]}")
        if tpad[1]: P.raw(f".fill {tpad[1]}, 4, 0xbf800000")
        P.label("L_tail")
    while nv < NS:
        for _ in range(wolate):
            if jw < 8: wo_load(jw); jw += 1
        v_consume(nv); nv += 1
    while jw < 8: wo_load(jw); jw += 1
    stamp("vdone")

    r = vWQ
    for q in range(4): P(f"v_mul_f32 v{vAcc+q}, v{vAcc+q}, v{vWt}")
    red_write([(vAcc, 0)])
    P("s_waitcnt lgkmcnt(0)")
    P("s_barrier")
    P(f"s_cmp_lg_u32 s{sWv}, 0" if bpub else f"s_cmp_eq_u32 s{sWv}, 3")
    P("s_cbranch_scc1 L_near_o")
    for k in range(4): P(f"ds_read2st64_b32 {v2(r+2*k)}, v{vAr} offset0:{L_RED//256+2*k} offset1:{L_RED//256+2*k+1}")
    P("s_waitcnt lgkmcnt(0)")
    sum8(r, r)
    P(f"v_bfi_b32 v{r}, v{vFF}, v{vTb}, v{r}")
    t = f"buffer_store_dword v{r}, v{vL4}, {srd(rWS)}, s{sOp} offen"
    if swap: P.vm(t + " sc1"); P.label("L_near_o")
    else: publish("o", t)
    stamp("opub")
    P(f"""
    s_and_b32 s{sT0}, s{sCB}, 15
    s_cmp_ge_u32 s{sT0}, 14
    s_cbranch_scc1 L_done
    """)
    g = vQA; sMiss = sFm
    def ppoll(Q, name, lds, sets, dst, mid=None):
        n = len(lds); D = len(sets)
        for k in range(n): Q(lds[k].replace("@", v4(sets[0]+4*k)))
        Q(f"s_mov_b64 {sp(sMiss)}, -1")
        if mid: mid(Q, n)
        if D > 1:
            Q(f"s_not_b32 s{sT0}, s{sTag}")
            for b in sets[1:]: Q(f"v_mov_b32 v{b}, s{sT0}")
        Q.label(f"L_poll{name}")
        for d in list(range(1, D)) + [0]:
            b = sets[d]
            Q(f"s_waitcnt vmcnt({n*(D-1)})")
            tagcheck(Q, range(b, b+4*n), [f's{x}' for x in [sTag] + sG[5:8]], 0xff)
            Q("s_wqm_b64 vcc, vcc")
            Q(f"s_andn2_b64 exec, {sp(sMiss)}, vcc")
            for k in range(4*n): Q(f"v_and_b32 v{dst+k}, 0xffffff00, v{b+k}")
            Q(f"s_and_b64 {sp(sMiss)}, {sp(sMiss)}, vcc")
            Q(f"s_cbranch_scc0 L_got{name}")
            Q(f"s_mov_b64 exec, {sp(sMiss)}")
            for k in range(n): Q(lds[k].replace("@", v4(b+4*k)))
            Q("s_mov_b64 exec, -1")
        Q(f"s_add_u32 s{sSpin}, s{sSpin}, 1")
        Q(f"s_cmp_gt_u32 s{sSpin}, 0x20000")
        Q(f"s_cbranch_scc0 L_poll{name}")
        Q.label(f"L_got{name}")
        Q("s_mov_b64 exec, -1")
    def mid(Q, n):
        for q in range(4):
            Q(f"s_waitcnt vmcnt({n + 6 - 2*q})")
            for e in range(8):
                Q(f"v_perm_b32 v{vWO+4*e+q}, v{vQD+4*(2*q+1)+(e>>1)}, v{vQD+4*(2*q)+(e>>1)}, s{sSel1 if e & 1 else sSel0}")
    ppoll(P, "O", [f"buffer_load_dwordx4 @, v{vOg}, {srd(rWS)}, s{sOg} offen offset:{16*k} sc1" for k in range(2)], [g+8, g+16, g+24][:DO], g, mid)
    P("s_bitcmp1_b32 s2, 5" if swap else "s_cmp_ge_u32 s2, 128")
    P("s_cbranch_scc1 L_addB")
    P.label("L_proj")
    Q = Prog(); Q.label("L_addB")
    for k in range(8): Q(f"v_add_f32_dpp v{g+k}, v{g+k}, v{g+k} quad_perm:[2,3,0,1] {FULL}")
    Q("s_branch L_proj"); slow.insert(0, Q)
    stamp("ogot")
    for q in range(4): P(f"v_cvt_pk_bf16_f32 v{vX+q}, v{g+2*q}, v{g+2*q+1}")
    for e in range(8): P(f"v_mfma_f32_16x16x32_bf16 {v4(vQD+4*e)}, {v4(vX)}, {v4(vWO+4*e)}, 0")
    for e in range(8):
        h = e & 1
        P(f"v_add_f32_dpp v{r+(e >> 1)}, v{vQD+4*e+1-h}, v{vQD+4*e+h} row_ror:8 row_mask:0xf bank_mask:{0xc if h else 0x3:#x}")
    P(f"""
    ds_write_b128 v{vPw}, {v4(r)} offset:{L_QRED}
    s_waitcnt lgkmcnt(0)
    s_barrier
    ds_read2st64_b32 {v2(r)}, v{vPr} offset0:{L_QRED//256} offset1:{L_QRED//256+4}
    ds_read2st64_b32 {v2(r+2)}, v{vPr} offset0:{L_QRED//256+8} offset1:{L_QRED//256+12}
    s_cmp_eq_u64 {sp(sYx)}, -1
    s_waitcnt lgkmcnt(0)
    v_add_f32 v{r}, v{r}, v{r+1}
    v_add_f32 v{r+2}, v{r+2}, v{r+3}
    v_add_f32 v{r}, v{r}, v{r+2}
    v_bfi_b32 v{r+1}, v{vFF}, v{vTb}, v{r}
    s_mov_b64 exec, {sp(sYx)}
    """)
    t = f"buffer_store_dword v{r+1}, v{vYo}, {srd(rWS)}, s{sYp} offen"
    if swap: publish("y", t); P(f"s_cmp_eq_u64 {sp(sYx)}, -1")
    else: P.vm(t + " sc1")
    stamp("yapub")
    P("s_cbranch_scc1 L_done")
    P("s_mov_b64 exec, -1")
    f = vP
    def midy(Q, n): Q(f"ds_bpermute_b32 v{r+2}, v{vBp}, v{r}")
    ppoll(P, "Y", [f"buffer_load_dwordx4 @, v{vy}, {srd(rWS)}, s{sYg} offen sc1" for vy in (vY0, vY1)], [vWO+8*k for k in range(4)][:DY], f, midy)
    stamp("fgot")
    P(f"s_not_b64 exec, {sp(sOwn)}")
    for k in range(4): P(f"v_add_f32 v{f+k}, v{f+k}, v{f+4+k}")
    P("s_mov_b64 exec, -1")
    P(f"""
    v_permlane32_swap_b32 v{f}, v{f+1}
    v_permlane32_swap_b32 v{f+2}, v{f+3}
    v_add_f32 v{f}, v{f}, v{f+1}
    v_add_f32 v{f+2}, v{f+2}, v{f+3}
    v_permlane16_swap_b32 v{f}, v{f+2}
    v_add_f32 v{f}, v{f}, v{f+2}
    """)
    xlane("v_add_f32", f, None, ["r8"])
    P("s_waitcnt lgkmcnt(0)")
    P(f"v_add_f32 v{f}, v{f}, v{r+2}")
    P(f"""
    v_cvt_pk_bf16_f32 v{f}, v{f}, v{f}
    s_mov_b32 exec_lo, 0x00ff00ff
    s_mov_b32 exec_hi, 0x00ff00ff
    """)
    P.vm(f"buffer_store_short v{f}, v{vOo}, {srd(rOUT)}, s{sOutO} offen")
    P(f"""
    s_cmp_lg_u32 s{sOutO}, 0
    s_cbranch_scc1 L_done
    s_mov_b64 exec, 1
    v_mov_b32 v{f+2}, s{sTag}
    """)
    P.vm(f"buffer_store_dword v{f+2}, v{vOo}, {srd(rWS)}, 0 offen")
    P.label("L_done")
    if spin:
        if spinif == "far": P(f"s_cmp_eq_u32 s{sFar}, 0\ns_cbranch_scc1 L_end")
        if spinif == "retry": P(f"s_cmp_eq_u32 s1, 0\ns_cbranch_scc1 L_end")
        P.label("L_spin")
        P(f"""
        s_memrealtime {sp(sNow)}
        s_waitcnt lgkmcnt(0)
        s_sub_u32 s{sNow}, s{sNow}, s{sSt}
        s_cmp_lt_u32 s{sNow}, {spin}
        s_cbranch_scc1 L_spin
        """)
    if diag:
        P("s_mov_b64 exec, -1")
        stamp("end")
        P(f"""
        s_waitcnt lgkmcnt(0) vmcnt(0)
        s_lshl_b32 s{sT0}, s2, 2
        s_add_u32 s{sT0}, s{sT0}, s{sWv}
        s_lshl_b32 s{sT0}, s{sT0}, 7
        s_add_u32 s{sT0}, s{sT0}, {WS_DIAG}
        v_mov_b32 v{vT1}, 0
        s_mov_b64 exec, 1
        """)
        def dump(sreg, off):
            P(f"v_mov_b32 v{vT0}, s{sreg}")
            P.vm(f"buffer_store_dword v{vT0}, v{vT1}, {srd(rWS)}, s{sT0} offen offset:{off}")
        for n, (name, rr) in enumerate(stamps): dump(rr, 4*n)
        dump(sSpin, 4*len(stamps)); dump(sFar, 116)
        P(f"s_getreg_b32 s{sT1}, hwreg(HW_REG_XCC_ID)"); dump(sT1, 120)
        P(f"s_getreg_b32 s{sT1}, hwreg(HW_REG_HW_ID)"); dump(sT1, 124)
    P.label("L_end")
    P("s_endpgm")

    body, stats = P.render()
    for Q in slow: body += Q.render()[0]
    body += 'L_code_end:\n'
    head = open("cdna_kernels/" + KNAME[:-7] + ".s.ref").read().split("; Override launch")[0]
    txt = head + f"; @launch grid=(256,1,1) block=(256,1,1) lds={L_TOTAL}\n" + HEADER
    txt += f'.amdgcn_target "amdgcn-amd-amdhsa--gfx950"\n.text\n.globl {KNAME}\n.p2align 8\n.type {KNAME},@function\n{KNAME}:\n'
    txt += body
    txt += f""".section .rodata,"a"
.p2align 6
.amdhsa_kernel {KNAME}
  .amdhsa_next_free_vgpr 512
  .amdhsa_next_free_sgpr 102
  .amdhsa_accum_offset 256
  .amdhsa_group_segment_fixed_size 0
  .amdhsa_kernarg_size 104
  .amdhsa_user_sgpr_count 2
  .amdhsa_user_sgpr_kernarg_segment_ptr 1
  .amdhsa_system_sgpr_workgroup_id_x 1
.end_amdhsa_kernel
"""
    ids = list(range(256))
    act = [L for L in ids if (((L >> 6) & 1)*8 + (L & 7)) < 14]
    fin = [L for L in act if ((L >> 3) & 7) == (L & 7)]
    if swap:
        mm = lambda L: 4*((L >> 3) & 3) + (L >> 6)
        act = [L for L in ids if mm(L) < 14]; fin = [L for L in act if (mm(L) & 7) == (L & 7)]
    return txt, dict(stats, vhw=V.hw, shw=S.hw, minfree=minfree, stamps=[n for n, _ in stamps], who=dict(ogot=act, yapub=act, fgot=fin))

if __name__ == "__main__":
    import json
    kw = json.loads(sys.argv[2]) if len(sys.argv) > 2 else {}
    t, s = gen(**kw)
    open(sys.argv[1], "w").write(t)
    s.pop('who')
    print(s, file=sys.stderr)
```

```python
import sys, math, struct
from asmlib import Prog, Alloc
KNAME = "concat_heads__mha_block_cached__sliding_block_cached__decode_kernel"

WS_Q, WS_SC, WS_O, WS_FC, WS_Y, WS_G, WS_DIAG = 0x10000, 0x40000, 0x100000, 0x130000, 0x140000, 0x180000, 0x800000
L_QRED, L_ST, L_RED, L_TOTAL = 0, 4096, 4352, 4352 + 3*2048
CS = struct.unpack('<I', struct.pack('<f', math.log2(math.e) / 16.0))[0]
BIG = 0x7ff00000
FULL = "row_mask:0xf bank_mask:0xf"

AUXCOST = [8]
def cost(it):
    if it[0] == 'vm': return 8 if ' a[' in it[1] or 'store' in it[1] else AUXCOST[0]
    if it[0] != 'i': return 2
    t = it[1]
    if t.startswith(';'): return 0
    if t.startswith('v_mfma'): return 16
    if t.startswith(('v_exp', 'v_log', 'v_rcp')): return 10
    if '_dpp' in t or t.startswith('v_permlane'): return 8
    if t.startswith('ds_'): return 12
    if t.startswith('s_waitcnt'): return 60
    if t.startswith('s_barrier'): return 30
    return 4

HEADER = """;
; One launch, 256 workgroups x 4 waves (one wave per SIMD); generated by a script, straight-line code.
; Logical id = b(2) | x(3) | t(3); the 32 workgroups with the same x form a class (A heads 2x, 2x+1, B kv head x).
;   1. q = x @ wq: every workgroup computes one 32-column block for the 4 batches and hands it to its class.
;   2. K streams (B window, then A), keys split over the workgroups of a (batch, head); MFMA scores, rounded to bf16.
;   3. scores are exchanged inside the (batch, x) group; every wave takes the true max / sum of its keys, the
;   4. V streams split along the head dimension (64 columns per workgroup); MFMA P.V gives normalised o slices.
;   5. o is handed to the class; 28 workgroups multiply it with a 256 x 64 block of wo; 16 partial sums per
;      output are added by one wave and stored as bf16.
; earlier launch is never accepted. Class-local hand-offs stay in L2 only after all 32 workgroups of the class
; have been seen (through d_debug) on this XCC; otherwise every store and load of them is sc1.
"""

def gen(W=5, qg=33, sg=18, wflag="", woflag="nt", diag=False, skip=(), spin=0, forcefar=False, fc=None, budget=150, maxcatch=4,
        bpub=278, DO=1, DY=3, wolate=1, auxcost=70, wsl=32, first=(3, 2, 2, 2), hello=4, tpad=None, ipf=7, ipf0=True, tlb=None, qw=True, zones=(), rot=None, swap=False, ow=None, W0=(24, 6), yw=(282, 'p'), noO=True, fakeQ=0, xpos=0, hpos=0, spinif=None, probe=None):
    AUXCOST[0] = auxcost
    P = Prog()
    V = Alloc('v', 1, 256); S = Alloc('s', 3, 100)
    slots = list(range(64))
    def a4(s): return f"a[{4*s}:{4*s+3}]"
    def v4(r): return f"v[{r}:{r+3}]"
    def v3(r): return f"v[{r}:{r+2}]"
    def v2(r): return f"v[{r}:{r+1}]"
    def srd(r): return f"s[{r}:{r+3}]"
    def sp(r): return f"s[{r}:{r+1}]"
    def vcc(m): P(f"s_mov_b32 vcc_lo, {m:#x}"); P(f"s_mov_b32 vcc_hi, {m:#x}")
    slow = []
    stamps = []
    def stamp(name):
        if probe and name == probe[0]:
            P(f"s_memrealtime {sp(sPr)}")
        if diag:
            r = S.get(2); stamps.append((name, r)); P(f"s_memrealtime {sp(r)}")
    fcs = dict(start=None, ids={})
    if probe: sPr = S.get(2); sLim = S.get()
    st = dict(kok=False, vok=False, lgk=False, tag=False)
    if fc is not None:
        fc = dict(dict(first=16, Pd=32, dW=2, r0=0.6, gain=2.5, xg=0, x0=3.5, xd=1, xc=(1, 3, 5), hold=True, neg=None, ns=2, s3=10, cps=(16, 40, 72, 104, 136, 168, 196, 224, 248, 266), tab=(4, -8, 2, -8, 10, 0, 6, -4)), **fc)
        WM = W + fc['dW']
        cps = list(fc['cps'] or range(fc['first'], 288 - WM - 6, fc['Pd']))
    else:
        WM = W; cps = []

    rX, rWQ, rBK, rBV, rAK, rAV, rWO, rWS, rOUT = [S.get(4) for _ in range(9)]
    sT0, sT1, sI, sWv, sTag, sOff, sAux, sSel0, sSel1, sC, sSpin, sCB, sTagQ, sFar, sBoost, sFC, sKo = [S.get() for _ in range(17)]
    vLane, vT0, vT1, vT2, vBig = [V.get() for _ in range(5)]
    vXo, vWQo, vKo, vVo = [V.get() for _ in range(4)]
    def desc(r, sz):
        P(f"s_mov_b32 s{r+2}, {sz}"); P(f"s_mov_b32 s{r+3}, 0x20000")
    sDbg = S.get(2); vH = V.get(2)
    vXT = V.get()
    def code_pf():
        P(f"s_getpc_b64 {sp(rOUT+2)}")
        P.label("L_pc")
        P(f"""
        v_and_b32 v{vT0}, {31 if ipf > 1 else 255}, v{vH}
        v_min_u32 v{vT1}, {ipf-1}, v0
        v_mad_u32_u24 v{vT0}, v{vT0}, {ipf}, v{vT1}
        v_lshlrev_b32 v{vT0}, 7, v{vT0}
        v_min_u32 v{vT0}, L_code_end-L_pc-4, v{vT0}
        """)
        P.vm(f"global_load_dword v{vXT}, v{vT0}, {sp(rOUT+2)}")
    hl1 = f"""s_load_dwordx2 {sp(sDbg)}, s[0:1], 88
    s_getreg_b32 s{sTagQ}, hwreg(HW_REG_XCC_ID, 0, 4)
    ; byte (id&7)*32 + (id>>3) of the zeroed debug buffer reports this workgroup's XCC
    s_mul_i32 s{sT0}, s2, 0x101
    s_bfe_u32 s{sT0}, s{sT0}, 0x80003
    v_mov_b32 v{vH}, s{sT0}
    v_add_u32 v{vH+1}, s{sTagQ}, 1"""
    P("s_cmp_ge_u32 s2, 256")
    P("s_cbranch_scc1 L_end")
    stamp("start")
    if spin:
        sSt = S.get(2); sNow = S.get(2); P(f"s_memrealtime {sp(sSt)}")
    P(f"""
    s_lshr_b32 s{sKo}, s2, 7
    s_mul_i32 s{sKo}, s{sKo}, 40
    s_load_dwordx2 {sp(rBK)}, s[0:1], 48
    s_load_dwordx2 {sp(rX)}, s[0:1], s{sKo}
    s_load_dwordx2 {sp(rWQ)}, s[0:1], s{sKo} offset:24
    s_load_dwordx2 {sp(rWS)}, s[0:1], 96
    {hl1}
    """)
    if probe and probe[0] == "kfast": P("s_waitcnt lgkmcnt(0)"); stamp("kfast")
    if ipf and ipf0: code_pf()
    P(f"""
    ; logical id = b(2) | x(3) | t(3): workgroups that are 8 apart share x (L2 locality only)
    s_and_b32 s{sT0}, s2, 7
    s_bfe_u32 s{sT1}, s2, 0x30003
    s_bfe_u32 s{sCB}, s2, 0x40003
    s_lshr_b32 s2, s2, 6
    s_lshl3_add_u32 s2, s2, s{sT0}
    s_lshl_b32 s{sOff}, s2, 21
    s_lshl3_add_u32 s2, s2, s{sT1}
    s_lshl4_add_u32 s{sCB}, s{sT0}, s{sCB}
    s_lshl_b32 s{sAux}, s{sCB}, 6
    v_lshrrev_b32 v{vT0}, 6, v0
    v_lshrrev_b32 v{vT2}, 2, v0
    v_readfirstlane_b32 s{sWv}, v{vT0}
    v_and_b32 v{vT1}, 3, v0
    v_lshlrev_b32 v{vWQo}, 12, v{vT2}
    v_add_lshl_u32 v{vWQo}, v{vWQo}, v{vT1}, 4
    v_cmp_gt_u32 vcc, 56, v{vT2}
    v_and_b32 v{vKo}, 3, v{vT2}
    v_mad_u32_u24 v{vXo}, v{vKo}, 55, v{vT2}
    v_add_lshl_u32 v{vXo}, v{vXo}, v{vT1}, 4
    v_lshl_add_u32 v{vKo}, v{vT0}, 2, v{vKo}
    v_cndmask_b32 v{vXo}, 2.0, v{vXo}, vcc
    v_lshl_add_u32 v{vKo}, v{vKo}, 6, v{vT1}
    v_and_b32 v{vT2}, 12, v{vT2}
    v_add_lshl_u32 v{vKo}, v{vKo}, v{vT2}, 4
    s_or_b32 s{sT0}, s{sT1}, 96
    s_lshl_b32 s{sT0}, s{sT0}, 14
    s_add_u32 s{sOff}, s{sOff}, s{sT0}
    """)
    if fakeQ:
        P(f"""
        v_lshrrev_b32 v{vT0}, 3, v0
        v_mul_u32_u24 v{vWQo}, {7*512}, v{vT0}
        v_and_b32 v{vT0}, 7, v0
        v_add_lshl_u32 v{vWQo}, v{vWQo}, v{vT0}, 4
        s_and_b32 s{sT0}, s{sCB}, 1
        s_mul_i32 s{sT0}, s{sT0}, {224*8192-64}
        s_add_u32 s{sAux}, s{sAux}, s{sT0}
        """)
    desc(rX, 3584); desc(rWQ, 3670016); desc(rBK, 1 << 26)
    if probe and probe[0] == "pre": stamp("pre")
    P("s_waitcnt lgkmcnt(0)")
    stamp("karg")
    def hello_store(): P.vm(f"global_store_byte v{vH}, v{vH+1}, {sp(sDbg)}")
    if hpos == 0: hello_store()
    vX = V.get(4, 4); vWQ = V.get(32, 4)
    idwq = []
    def wq_load():
        n = len(idwq); j = n if n < xpos else n - 1
        if n == xpos: idwq.append(P.vm(f"buffer_load_dwordx4 {v4(vX)}, v{vXo}, {srd(rX)}, 0 offen"))
        elif "wq" in skip or (fakeQ and j == 7): idwq.append(None)
        else:
            if j: P(f"s_addk_i32 s{sAux}, 0x2000")
            idwq.append(P.vm(f"buffer_load_dwordx4 {v4(vWQ+4*j)}, v{vWQo}, {srd(rWQ)}, s{sAux} offen {wflag}"))
    first = list(first or [9])
    assert sum(first) == 9
    for _ in range(first[0]): wq_load()
    vTl = V.get(2)
    def c_wsw():
        P(f"""
        s_mul_i32 s{sT0}, s2, 3072
        s_add_u32 s{sT0}, s{sT0}, {WS_SC}
        v_mov_b32 v{vTl}, s{sT0}
        """)
        if qw:
            P(f"""
            s_lshr_b32 s{sT0}, s2, 7
            s_lshl_b32 s{sT0}, s{sT0}, 9
            s_add_u32 s{sT0}, s{sT0}, s{sCB}
            s_lshl_b32 s{sT0}, s{sT0}, 7
            s_add_u32 s{sT0}, s{sT0}, {(WS_Q - 24*16384) & 0xffffffff}
            v_mul_u32_u24 v{vTl+1}, {16384-128}, v0
            v_add_u32 v{vTl+1}, s{sT0}, v{vTl+1}
            v_cmp_gt_u32 vcc, 24, v0
            v_cndmask_b32 v{vTl}, v{vTl+1}, v{vTl}, vcc
            v_cmp_gt_u32 vcc, 28, v0
            v_cndmask_b32 v{vTl}, 2.0, v{vTl}, vcc
            """)
        elif wsl > 24:
            P(f"""
            v_mul_u32_u24 v{vTl+1}, 768, v{vH}
            v_add_u32 v{vTl+1}, {BIG if noO else WS_O - 24*128}, v{vTl+1}
            v_cmp_gt_u32 vcc, 24, v0
            v_cndmask_b32 v{vTl}, v{vTl+1}, v{vTl}, vcc
            """)
        if wsl > 30:
            P(f"""
            v_lshlrev_b32 v{vTl+1}, 8, v{vH}
            v_add_u32 v{vTl+1}, {WS_FC - 30*128}, v{vTl+1}
            v_cmp_gt_u32 vcc, 30, v0
            v_cndmask_b32 v{vTl}, v{vTl+1}, v{vTl}, vcc
            """)
        P(f"""
        v_lshl_add_u32 v{vTl}, v0, 7, v{vTl}
        v_cmp_gt_u32 vcc, {wsl}, v0
        v_cndmask_b32 v{vTl}, 2.0, v{vTl}, vcc
        """)
        desc(rWS, 1 << 24)
        P.vm(f"buffer_load_dword v{vTl+1}, v{vTl}, {srd(rWS)}, 0 offen sc1")
    stream = []
    for k in range(16): stream.append(("BK", k))
    for k in range(16): stream.append(("BV", k))
    for k in range(128): stream.append(("AK", k))
    for k in range(128): stream.append(("AV", k))
    NS = len(stream)
    sid = {}; sslot = {}; land = [-1]
    def issue(i):
        kind, k = stream[i]
        if k == 0 and kind == "BV":
            assert st['lgk']
            P(f"""
            s_and_b32 s{sI}, s2, 3
            s_mul_i32 s{sI}, s{sI}, {16384-128}
            s_add_u32 s{sI}, s{sI}, {3*131072}
            s_sub_u32 s{sOff}, s{sOff}, s{sI}
            """)
        elif k == 0 and kind[0] == "A" and rot:
            vo = vKo if kind == "AK" else vVo
            P(f"""
            s_lshr_b32 s{sI}, s2, 2
            s_lshl_b32 s{sI}, s{sI}, 21
            v_add_u32 v{vo}, s{sI}, v{vo}
            s_bfe_u32 s{sOff}, s2, {rot[0]:#x}
            s_lshl_b32 s{sOff}, s{sOff}, {rot[1]}
            s_and_b32 s{sI}, s2, 3
            s_lshl_b32 s{sI}, s{sI}, {14 if kind == "AK" else 7}
            s_add_u32 s{sOff}, s{sOff}, s{sI}
            """)
        elif k == 0 and kind[0] == "A":
            P(f"""
            s_lshr_b32 s{sOff}, s2, 2
            s_lshl_b32 s{sOff}, s{sOff}, 21
            s_and_b32 s{sI}, s2, 3
            s_lshl_b32 s{sI}, s{sI}, {14 if kind == "AK" else 7}
            s_add_u32 s{sOff}, s{sOff}, s{sI}
            """)
        elif k and k % 4 == 0 and kind[0] == "B":
            P(f"s_add_u32 s{sOff}, s{sOff}, {0x20000 if kind == 'BK' else 0x14000}")
        elif k and kind[1] == "V":
            P(f"s_addk_i32 s{sOff}, 0x4000")
        elif k and k % 4 == 0:
            P(f"s_add_u32 s{sOff}, s{sOff}, 0x10000")
        if rot and kind[0] == "A" and k and k % 32 == 0: P(f"s_and_b32 s{sOff}, s{sOff}, 0x1fffff")
        wz = [z[2] for z in zones if z[0] <= i < z[1]]
        if wz and fcs['start'] is not None:
            P.cwait(sid[i-wz[0]], sid[i-WM], [f"s_cmp_gt_i32 s{sBoost}, {i - fcs['start']}"]); land[0] = max(land[0], i-WM)
        elif fcs['start'] is not None:
            if fc['neg'] is not None:
                P.cwait(sid[i-W+1], None, [f"s_cmp_ge_i32 s{sBoost}, {-fc['neg'] - fc['ns']*(i - fcs['start'])}"])
            P.cwait(sid[i-W], sid[i-WM], [f"s_cmp_gt_i32 s{sBoost}, {i - fcs['start']}"]); land[0] = max(land[0], i-WM)
        else:
            w0 = W0[1] if (W0 and i < W0[0]) else W
            if i >= w0: P.wait(sid[i-w0]); land[0] = max(land[0], i-w0)
        s = slots.pop(0); sslot[i] = s
        r, vo = {"BK": (rBK, vKo), "BV": (rBV, vVo), "AK": (rAK, vKo), "AV": (rAV, vVo)}[kind]
        imm = 0 if kind[1] == "V" else [0, 512, 256, 768][k & 3]
        o = f" offset:{imm}" if imm else ""
        sid[i] = P.vm(f"buffer_load_dwordx4 {a4(s)}, v{vo}, {srd(r)}, s{sOff} offen{o} nt")
    freed = []
    def release(i): freed.append(sslot[i])

    def xlane(op, x, t, steps):
        for st in steps:
            if st in ("x1", "x2", "r4", "r8"):
                d = {"x1": "quad_perm:[1,0,3,2]", "x2": "quad_perm:[2,3,0,1]", "r4": "row_ror:4", "r8": "row_ror:8"}[st]
                P(f"{op}_dpp v{x}, v{x}, v{x} {d} {FULL}")
            else:
                P(f"v_mov_b32 v{t}, v{x}")
                P(f"v_permlane{st[1:]}_swap_b32 v{x}, v{t}")
                P(f"{op} v{x}, v{x}, v{t}")
    def tagcheck(Q, tags, stag, mask):
        tags = list(tags)
        if isinstance(stag, list): pairs = [(tags[k], tags[k+4], stag[k]) for k in range(4)]
        else: pairs = [(a, b, stag) for a, b in zip(tags[0::2], tags[1::2])]
        for n, (a, b, tg) in enumerate(pairs):
            d = vT0 if n == 0 else (vT1 if n % 2 else vT2)
            Q(f"v_bitop3_b32 v{d}, v{a}, v{b}, {tg} bitop3:0x7e")
            if n and n % 2 == 0: Q(f"v_or3_b32 v{vT0}, v{vT0}, v{vT1}, v{vT2}")
            elif n and n == len(pairs)-1: Q(f"v_or_b32 v{vT0}, v{vT0}, v{vT1}")
        if mask: Q(f"v_and_b32 v{vT0}, {mask:#x}, v{vT0}")
        Q(f"v_cmp_ne_u32 vcc, 0, v{vT0}")
    def gather(name, loads, tags, stag, mask):
        ids = []
        def iss():
            if name+"g" in skip: return
            for n, t in enumerate(loads): ids.append(publish(f"{name}{n}", t.replace(" sc1", "")))
        def chk():
            if name+"g" in skip: return
            P.wait(*ids)
            tagcheck(P, tags, stag, mask)
            P(f"s_cbranch_vccnz L_slow_{name}")
            P.label(f"L_back_{name}")
            Q = Prog()
            Q.label(f"L_slow_{name}")
            Q(f"s_add_u32 s{sSpin}, s{sSpin}, 1")
            Q(f"s_cmp_gt_u32 s{sSpin}, 0x40000")
            Q(f"s_cbranch_scc1 L_back_{name}")
            for t in loads: Q.vm(t)
            Q.waitall()
            tagcheck(Q, tags, stag, mask)
            Q(f"s_cbranch_vccnz L_slow_{name}")
            Q(f"s_branch L_back_{name}")
            slow.append(Q)
        return iss, chk
    def publish(name, txt):
        P(f"s_cmp_lg_u32 s{sFar}, 0")
        P(f"s_cbranch_scc1 L_far_{name}")
        i = P.vm(txt)
        P.label(f"L_near_{name}")
        Q = Prog(); Q.label(f"L_far_{name}")
        Q.vm(txt.rstrip() + " sc1")
        Q(f"s_branch L_near_{name}"); slow.append(Q)
        return i
    def extract(D, dst, tau, t):
        rs = [r for r in range(4) if r != tau]
        src = D + tau
        for n, r in enumerate(rs):
            last = n == 2
            m = f"row_mask:0xf bank_mask:{1 << tau:#x}" if last else FULL
            P(f"v_add_f32_dpp v{dst if last else t}, v{D+r}, v{src} row_ror:{(4*(tau-r)) % 16} {m}")
            src = t
    def transp(dst, src, e):
        for q in range(4):
            P(f"v_perm_b32 v{dst+q}, v{src+4*(2*q+1)+(e>>1)}, v{src+4*(2*q)+(e>>1)}, s{sSel1 if e & 1 else sSel0}")
    def sum8(r, dst):
        P(f"""
        v_add_f32 v{r}, v{r}, v{r+1}
        v_add_f32 v{r+2}, v{r+2}, v{r+3}
        v_add_f32 v{r+4}, v{r+4}, v{r+5}
        v_add_f32 v{r+6}, v{r+6}, v{r+7}
        v_add_f32 v{r}, v{r}, v{r+2}
        v_add_f32 v{r+4}, v{r+4}, v{r+6}
        v_add_f32 v{dst}, v{r}, v{r+4}
        """)

    bg = []
    def B(at, fn, after=0): bg.append((at, fn, after))

    vSel = V.get(4); vL12, vPw, vPr, vL4 = [V.get() for _ in range(4)]
    def c_setup():
        if swap:
            P(f"s_bfe_u32 s{sKo}, s2, 0x10005")
            P(f"s_mul_i32 s{sKo}, s{sKo}, 40")
        P(f"""
        s_load_dword s{sTag}, {sp(rWS)}, 0
        s_load_dwordx2 {sp(rBV)}, s[0:1], 56
        s_load_dwordx2 {sp(rAK)}, s[0:1], 8
        s_load_dwordx2 {sp(rAV)}, s[0:1], 16
        s_load_dwordx2 {sp(rWO)}, s[0:1], s{sKo} offset:32
        s_load_dwordx2 {sp(rOUT)}, s[0:1], 80
        v_and_b32 v{vLane}, 63, v0
        v_mov_b32 v{vBig}, {BIG}
        """)
        if ipf and not ipf0: code_pf()
        desc(rBV, 1 << 26); desc(rAK, 1 << 27); desc(rAV, 1 << 27); desc(rWO, 3670016); desc(rOUT, 7168)
        P(f"""
        s_mov_b32 s{sSel0}, 0x05040100
        s_mov_b32 s{sSel1}, 0x07060302
        s_mov_b32 s{sC}, {CS:#x}
        s_mov_b32 s{sSpin}, 0
        v_mul_u32_u24 v{vL12}, 12, v{vLane}
        v_lshlrev_b32 v{vL4}, 2, v{vLane}
        v_lshlrev_b32 v{vPw}, 3, v0
        v_and_b32 v{vPr}, 3, v0
        v_bfe_u32 v{vT0}, v0, 3, 2
        v_lshl_add_u32 v{vPr}, v{vPr}, 2, v{vT0}
        v_lshrrev_b32 v{vT0}, 6, v0
        v_lshl_add_u32 v{vPr}, v{vT0}, 4, v{vPr}
        v_bfe_u32 v{vT0}, v0, 2, 1
        v_lshl_add_u32 v{vPr}, v{vPr}, 1, v{vT0}
        v_bfe_u32 v{vT0}, v0, 5, 1
        v_lshl_add_u32 v{vPr}, v{vT0}, 8, v{vPr}
        v_lshlrev_b32 v{vPr}, 2, v{vPr}
        v_lshrrev_b32 v{vT0}, 3, v0
        v_and_b32 v{vT1}, 7, v0
        v_lshlrev_b32 v{vVo}, 9, v{vT0}
        v_lshl_add_u32 v{vVo}, v{vT1}, 4, v{vVo}
        v_and_b32 v{vT0}, 1, v{vT0}
        v_mul_u32_u24 v{vT0}, 0x0202, v{vT0}
        v_add_u32 v{vT0}, 0x0100, v{vT0}
        v_or_b32 v{vT2}, 0x0c0c0000, v{vT0}
        v_lshlrev_b32 v{vT0}, 16, v{vT0}
        v_or_b32 v{vT0}, 0x0c0c, v{vT0}
        """)
        vcc(0xaaaaaaaa)
        P(f"v_cndmask_b32 v{vT0}, v{vT2}, v{vT0}, vcc")
        P(f"v_mov_b32 v{vT2}, 0x0c0c0c0c")
        for r in range(4):
            vcc(0x03030303 << (2*r)); P(f"v_cndmask_b32 v{vSel+r}, v{vT2}, v{vT0}, vcc")

    vQD = V.get(32, 4); vTB = [V.get(4, 4), V.get(4, 4)]
    def proj_write(dst, tmp):
        for e0 in (0, 4):
            for n in range(3):
                for e in range(e0, e0+4):
                    D = vQD + 4*e; tau = e & 3
                    r = [x for x in range(4) if x != tau][n]
                    m = f"row_mask:0xf bank_mask:{1 << tau:#x}" if n == 2 else FULL
                    P(f"v_add_f32_dpp v{dst+(e >> 2) if n == 2 else tmp+tau}, v{D+r}, v{tmp+tau if n else D+tau} row_ror:{(4*(tau-r)) % 16} {m}")
        P(f"ds_write_b64 v{vPw}, {v2(dst)} offset:{L_QRED}")
        P("s_waitcnt lgkmcnt(0)")
    def proj_read(r):
        P("s_barrier")
        P(f"ds_read2st64_b32 {v2(r)}, v{vPr} offset0:{L_QRED//256} offset1:{L_QRED//256+2}")
    def proj_sum(r):
        P("s_waitcnt lgkmcnt(0)")
        P(f"v_add_f32 v{r}, v{r}, v{r+1}")
        xlane("v_add_f32", r, r+1, ["p32"])
    vFl, vFs, vFd, vFt = vXo, vWQo, V.get(), V.get()
    sFm = S.get(2)
    def tag_setup():
        P(f"""
        ; hand-off tag of this launch: differs in every byte from the tag the previous launch left at ws[0]
        s_add_u32 s{sTag}, s{sTag}, 0x9e3779b9
        """)
    def fc_setup():
        P(f"""
        ; one line per (class, wave, checkpoint): a dword for each of the 32 workgroups of the class
        s_bfe_u32 s{sFC}, s2, 0x30003
        s_lshl2_add_u32 s{sFC}, s{sFC}, s{sWv}
        s_lshl_b32 s{sFC}, s{sFC}, 11
        s_add_u32 s{sFC}, s{sFC}, {WS_FC}
        s_and_b32 s{sI}, s2, 7
        s_lshr_b32 s{sBoost}, s2, 6
        s_lshl3_add_u32 s{sI}, s{sBoost}, s{sI}
        v_cmp_eq_u32 {sp(sFm)}, s{sI}, v{vLane}
        v_cndmask_b32 v{vFs}, v{vBig}, v{vL4}, {sp(sFm)}
        v_cmp_gt_u32 {sp(sFm)}, 32, v{vLane}
        v_cndmask_b32 v{vFl}, v{vBig}, v{vL4}, {sp(sFm)}
        """)
    hid = []
    def c_hello2():
        P(f"v_and_b32 v{vH}, 0xe0, v{vH}")
        P(f"v_and_or_b32 v{vH}, v0, 31, v{vH}")
        hid.append(P.vm(f"global_load_ubyte v{vH}, v{vH}, {sp(sDbg)}"))
    def c_q():
        P.wait(*idwq)
        stamp("wq")
        for e in range(8):
            transp(vTB[e & 1], vWQ, e)
            P(f"v_mfma_f32_16x16x32_bf16 {v4(vQD+4*e)}, {v4(vX)}, {v4(vTB[e & 1])}, 0")
        proj_write(vWQ, vWQ+4)
        return 'lgk'
    def c_q4():
        r = vWQ
        proj_read(r)
        tag_setup()
        P(f"""
        s_lshr_b32 s{sT0}, s2, 7
        s_lshl2_add_u32 s{sT0}, s{sT0}, s{sWv}
        s_lshl_b32 s{sT0}, s{sT0}, 7
        s_add_u32 s{sT0}, s{sT0}, s{sCB}
        s_lshl_b32 s{sT0}, s{sT0}, 7
        s_add_u32 s{sT0}, s{sT0}, {WS_Q}
        v_mov_b32 v{r+9}, s{sTag}
        """)
        proj_sum(r)
        if True:
            P.wait(*hid)
            P(f"""
            ; class-local hand-offs go through L2 only if all 32 workgroups of the class were seen to report this XCC
            v_cmp_ne_u32 vcc, v{vH}, v{vH+1}
            s_mov_b32 s{sFar}, vcc_lo
            """)
            if forcefar: P(f"s_mov_b32 s{sFar}, 1")
        P(f"""
        v_mov_b32_dpp v{r+1}, v{r} quad_perm:[1,0,3,2] {FULL}
        v_cvt_pk_bf16_f32 v{r+8}, v{r}, v{r+1}
        s_mov_b32 exec_lo, 0x55555555
        s_mov_b32 exec_hi, 0
        """)
        publish("q", f"buffer_store_dwordx2 {v2(r+8)}, v{vL4}, {srd(rWS)}, s{sT0} offen")
        P("s_mov_b64 exec, -1")
        stamp("qpub")
        return 'tag'
    def c_tlb():
        P(f"""
        s_lshr_b32 s{sT0}, s2, 2
        s_lshl_b32 s{sT0}, s{sT0}, 21
        s_lshr_b32 s{sT1}, s{sCB}, 4
        s_mul_i32 s{sT1}, s{sT1}, {512*896}
        v_cmp_eq_u32 vcc, 0, v0
        v_cndmask_b32 v{vT0}, 2.0, v0, vcc
        s_waitcnt lgkmcnt(0)
        """)
        if "V" in tlb: P.vm(f"buffer_load_dword v{vTl}, v{vT0}, {srd(rBV)}, s{sOff} offen nt")
        if "K" in tlb: P.vm(f"buffer_load_dword v{vTl}, v{vT0}, {srd(rAK)}, s{sT0} offen nt")
        if "A" in tlb: P.vm(f"buffer_load_dword v{vTl}, v{vT0}, {srd(rAV)}, s{sT0} offen nt")
        if "W" in tlb: P.vm(f"buffer_load_dword v{vTl}, v{vT0}, {srd(rWO)}, s{sT1} offen nt")
        if "O" in tlb: P.vm(f"buffer_load_dword v{vTl}, v{vT0}, {srd(rOUT)}, 0 offen nt")
    B(W-1, c_wsw); B(0, c_setup)
    if tlb: B(0, c_tlb)
    B(hello, c_hello2)
    B(len(first) - 2 + (W if len(first) > 1 else 0), c_q); B(hello + W + 1, c_q4, 1)

    vQA = V.get(32, 4); vQB = V.get(16, 4)
    vG = vQD
    vGo = V.get(2); sG = [S.get() for _ in range(8)]
    ql = [f"buffer_load_dwordx4 {v4(vG+8*u+4*hf)}, v{vGo}, {srd(rWS)}, s{sG[0]} offen offset:{512*u+16*hf} sc1" for u in range(2) for hf in range(2)]
    ql += [f"buffer_load_dwordx4 {v4(vG+16+8*u+4*hf)}, v{vGo+1}, {srd(rWS)}, s{sG[1]} offen offset:{512*u+16*hf} sc1" for u in range(2) for hf in range(2)]
    q_iss, q_chk = gather("q", ql, range(vG+1, vG+32, 2), f's{sTag}', None)
    def c_qg():
        P(f"""
        v_lshrrev_b32 v{vGo}, 2, v{vLane}
        v_lshlrev_b32 v{vGo}, 5, v{vGo}
        v_bfe_u32 v{vT0}, v{vLane}, 1, 1
        v_lshl_add_u32 v{vGo+1}, v{vT0}, 10, v{vGo}
        s_lshr_b32 s{sG[0]}, s2, 2
        s_lshl_b32 s{sG[0]}, s{sG[0]}, 10
        s_add_u32 s{sG[0]}, s{sG[0]}, {WS_Q}
        s_lshr_b32 s{sG[1]}, s2, 3
        s_lshl_b32 s{sG[1]}, s{sG[1]}, 11
        s_add_u32 s{sG[1]}, s{sG[1]}, {WS_Q + 4*16384}
        """)
        q_iss()
    def c_qb():
        q_chk(); stamp("qgot")
        for t in range(4):
            vcc(0x11111111 << t)
            for u in range(2):
                for q in range(4): P(f"v_cndmask_b32 v{vQA+16*u+4*t+q}, 0, v{vG+8*u+2*q}, vcc")
        for t in range(2):
            vcc(0x55555555 << t)
            for u in range(2):
                for q in range(4): P(f"v_cndmask_b32 v{vQB+8*u+4*t+q}, 0, v{vG+16+8*u+2*q}, vcc")
        return 'kok'
    B(qg, c_qg); B(0, c_qb, WM+1)

    vD = [V.get(4, 4) for _ in range(4)]
    vSB, vTb = V.get(), V.get()
    def c_bqk():
        P.wait(sid[15])
        D = vWQ
        for tau in range(4):
            for n in range(4):
                t, u = n & 1, n >> 1
                P(f"v_mfma_f32_16x16x32_bf16 {v4(D+4*tau)}, {a4(sslot[4*tau+n])}, {v4(vQB+8*u+4*t)}, {v4(D+4*tau) if n else 0}")
                release(4*tau+n)
        for tau in range(4): extract(D+4*tau, vSB, tau, vT0)
        P(f"""
        v_cvt_pk_bf16_f32 v{vSB}, v{vSB}, v{vSB}
        v_lshlrev_b32 v{vT0}, 4, v0
        v_lshrrev_b32 v{vTb}, v{vT0}, s{sTag}
        v_mov_b32 v{vT0}, 0xffff
        v_bfi_b32 v{vSB}, v{vT0}, v{vTb}, v{vSB}
        """)
    B(15+WM, c_bqk)

    vWO = V.get(32, 4); vWOo = V.get()
    def wo_load(j):
        if j == 4: P(f"s_addk_i32 s{sAux}, {4*896}")
        if "wo" not in skip:
            P.vm(f"buffer_load_dwordx4 {v4(vQD+4*j)}, v{vWOo}, {srd(rWO)}, s{sAux} offen offset:{896*(j & 3)} {woflag}")

    vSA = V.get(4, 4)
    pend = []
    def k_consume(i):
        k = i - 32
        unit, n = k >> 4, k & 15
        t, u, par = n >> 2, (n >> 1) & 1, n & 1
        D = vD[2*(unit & 1) + par]
        first = (t == 0 and u == 0)
        P(f"v_mfma_f32_16x16x32_bf16 {v4(D)}, {a4(sslot[i])}, {v4(vQA+16*u+4*t)}, {0 if first else v4(D)}")
        release(i)
        while pend and n >= 2:
            pend.pop(0)()
        if n == 15:
            for p_ in range(2):
                pend.append(lambda p_=p_, unit=unit: extract(vD[2*(unit & 1)+p_], vSA + 2*(unit >> 2) + p_, unit & 3, vXT))
            if k == 127:
                while pend: pend.pop(0)()
                c_spub()
    def c_spub():
        o = vD[0]
        P(f"""
        s_lshl2_add_u32 s{sI}, s2, s{sWv}
        s_mul_i32 s{sI}, s{sI}, 768
        s_add_u32 s{sI}, s{sI}, {WS_SC}
        v_cvt_pk_bf16_f32 v{o}, v{vSA}, v{vSA+1}
        v_cvt_pk_bf16_f32 v{o+1}, v{vSA+2}, v{vSA+3}
        v_mov_b32 v{o+2}, v{vSB}
        """)
        if "scs" not in skip: publish("sc", f"buffer_store_dwordx3 {v3(o)}, v{vL12}, {srd(rWS)}, s{sI} offen")
        stamp("scpub")
    vSG = vWQ
    vE = vQA; vEB = vQA + 16
    vP = V.get(8, 4); vPB = vQB + 4; vM, vL, vMB, vLB = vQB, vQB+1, vQB+2, vQB+3
    vWt, vWtB, vFF = vQB+8, vQB+9, vQB+10
    sl = [f"buffer_load_dwordx3 {v3(vSG+4*k)}, v{vL12}, {srd(rWS)}, s{sG[k]} offen sc1" for k in range(4)]
    sl += [f"buffer_load_dword v{vSG+16+k}, v{vL12}, {srd(rWS)}, s{sG[4+k]} offen offset:8 sc1" for k in range(4)]
    sbr = [vSG+4*k+2 for k in range(4)] + [vSG+16+k for k in range(4)]
    s_iss, s_chk = gather("sc", sl, sbr, f'v{vTb}', 0xffff)
    def c_sg():
        P(f"""
        s_and_b32 s{sT0}, s2, 0xfc
        s_lshl2_add_u32 s{sT0}, s{sT0}, s{sWv}
        s_xor_b32 s{sT1}, s{sT0}, 16
        s_mul_i32 s{sT0}, s{sT0}, 768
        s_mul_i32 s{sT1}, s{sT1}, 768
        s_add_u32 s{sG[0]}, s{sT0}, {WS_SC}
        s_add_u32 s{sG[4]}, s{sT1}, {WS_SC}
        """)
        for k in (1, 2, 3, 5, 6, 7): P(f"s_add_u32 s{sG[k]}, s{sG[k-1]}, 3072")
        s_iss()
    def c_sm1():
        s_chk(); stamp("scgot")
        for r in range(8):
            src = vSG + 4*(r >> 1) + (r & 1)
            P(f"v_lshlrev_b32 v{vE+2*r}, 16, v{src}")
            P(f"v_and_b32 v{vE+2*r+1}, 0xffff0000, v{src}")
        P(f"v_max3_f32 v{vM}, v{vE}, v{vE+1}, v{vE+2}")
        for r in range(3, 15, 2): P(f"v_max3_f32 v{vM}, v{vM}, v{vE+r}, v{vE+r+1}")
        P(f"v_max_f32 v{vM}, v{vM}, v{vE+15}")
        xlane("v_max_f32", vM, vT0, ["x1", "x2", "r4", "r8", "p16", "p32"])
        P(f"v_mul_f32 v{vM}, s{sC}, v{vM}")
        for r in range(16):
            P(f"v_fma_f32 v{vE+r}, v{vE+r}, s{sC}, -v{vM}")
            P(f"v_exp_f32 v{vE+r}, v{vE+r}")
        for r in range(8): P(f"v_cvt_pk_bf16_f32 v{vP+r}, v{vE+2*r}, v{vE+2*r+1}")
        return 'vok'
    def c_sm3():
        for r in range(8): P(f"v_add_f32 v{vE+r}, v{vE+r}, v{vE+8+r}")
        sum8(vE, vL)
        xlane("v_add_f32", vL, vT0, ["x1", "x2", "r4", "r8", "p16", "p32"])
    def c_sb1():
        for k in range(8): P(f"v_and_b32 v{vEB+k}, 0xffff0000, v{sbr[k]}")
        P(f"v_max3_f32 v{vMB}, v{vEB}, v{vEB+1}, v{vEB+2}")
        P(f"v_max3_f32 v{vMB}, v{vMB}, v{vEB+3}, v{vEB+4}")
        P(f"v_max3_f32 v{vMB}, v{vMB}, v{vEB+5}, v{vEB+6}")
        P(f"v_max_f32 v{vMB}, v{vMB}, v{vEB+7}")
        xlane("v_max_f32", vMB, vT0, ["x1", "r4", "r8", "p16", "p32"])
        P(f"v_mul_f32 v{vMB}, s{sC}, v{vMB}")
        for k in range(8):
            P(f"v_fma_f32 v{vEB+k}, v{vEB+k}, s{sC}, -v{vMB}")
            P(f"v_exp_f32 v{vEB+k}, v{vEB+k}")
        for k in range(4):
            P(f"v_mov_b32_dpp v{vT0}, v{vEB+k} quad_perm:[1,0,3,2] {FULL}")
            P(f"v_cvt_pk_bf16_f32 v{vPB+k}, v{vEB+k}, v{vT0}")
        sum8(vEB, vLB)
        xlane("v_add_f32", vLB, vT0, ["x1", "r4", "r8", "p16", "p32"])
        P(f"""
        v_bfe_u32 v{vT0}, v{vLane}, 1, 1
        v_lshlrev_b32 v{vT0}, 6, v{vT0}
        s_lshl_b32 s{sT0}, s{sWv}, 4
        v_add_u32 v{vT0}, s{sT0}, v{vT0}
        ds_write_b128 v{vT0}, {v4(vM)} offset:{L_ST}
        """)
    vBc = [V.get(), V.get()]
    vTC = [V.get(4, 4), V.get(4, 4)]
    def pvop(bc, dst, src, lane):
        P(f"v_mov_b32_dpp v{bc}, v{src} row_newbcast:{lane} {FULL}")
        for q in range(4): P(f"v_perm_b32 v{dst+q}, v{bc}, v{bc}, v{vSel+q}")
    def c_bpv():
        for k in range(4):
            for tau in range(4):
                i = 16 + 4*tau + k
                for hd in range(2): pvop(vT0+hd, vTC[hd], vPB+k, 4*tau + 2*hd)
                for hd in range(2):
                    P(f"v_mfma_f32_16x16x32_bf16 {v4(vD[2+hd])}, {a4(sslot[i])}, {v4(vTC[hd])}, {v4(vD[2+hd]) if i > 16 else 0}")
                release(i)
    assert vT1 == vT0 + 1
    vAw, vAr = V.get(), V.get()
    def c_sm4():
        s_ = vE
        P(f"""
        v_bfe_u32 v{vT0}, v{vLane}, 1, 1
        v_lshlrev_b32 v{vT0}, 6, v{vT0}
        s_waitcnt lgkmcnt(0)
        s_barrier
        """)
        for k in range(4): P(f"ds_read_b128 {v4(s_+4*k)}, v{vT0} offset:{L_ST+16*k}")
        P(f"""
        v_lshrrev_b32 v{vAw}, 4, v0
        v_lshlrev_b32 v{vAw}, 7, v{vAw}
        v_and_b32 v{vT1}, 7, v{vLane}
        v_lshl_add_u32 v{vAw}, v{vT1}, 4, v{vAw}
        v_and_b32 v{vAr}, 32, v{vLane}
        v_lshl_add_u32 v{vAr}, v{vT1}, 2, v{vAr}
        v_bfe_u32 v{vT1}, v{vLane}, 3, 2
        v_add_lshl_u32 v{vAr}, v{vAr}, v{vT1}, 2
        s_min_u32 s{sT0}, s{sWv}, 2
        s_lshl_b32 s{sT0}, s{sT0}, 11
        v_add_u32 v{vAr}, s{sT0}, v{vAr}
        v_mov_b32 v{vFF}, 0xff
        s_waitcnt lgkmcnt(0)
        """)
        for o, m, wt in ((0, vM, vWt), (2, vMB, vWtB)):
            P(f"v_max3_f32 v{vT0}, v{s_+o}, v{s_+4+o}, v{s_+8+o}")
            P(f"v_max_f32 v{vT0}, v{vT0}, v{s_+12+o}")
            for k in range(4):
                P(f"v_sub_f32 v{s_+4*k+o}, v{s_+4*k+o}, v{vT0}")
                P(f"v_exp_f32 v{s_+4*k+o}, v{s_+4*k+o}")
            P(f"v_sub_f32 v{wt}, v{m}, v{vT0}")
            P(f"v_exp_f32 v{wt}, v{wt}")
            P(f"v_mul_f32 v{vT1}, v{s_+o}, v{s_+o+1}")
            for k in range(1, 4): P(f"v_fmac_f32 v{vT1}, v{s_+4*k+o}, v{s_+4*k+o+1}")
            P(f"v_rcp_f32 v{vT1}, v{vT1}")
            P(f"v_mul_f32 v{wt}, v{wt}, v{vT1}")
    def red_write(lst):
        P("s_mov_b32 exec_lo, 0x00ff00ff")
        P("s_mov_b32 exec_hi, 0xff00ff00")
        for acc, reg in lst: P(f"ds_write_b128 v{vAw}, {v4(acc)} offset:{L_RED+2048*reg}")
        P("s_mov_b64 exec, -1")
    def c_br1():
        for hd in range(2):
            for q in range(4):
                P(f"v_mul_f32_dpp v{vD[2+hd]+q}, v{vWtB}, v{vD[2+hd]+q} quad_perm:[{2*hd},{2*hd},{2*hd},{2*hd}] {FULL}")
        red_write([(vD[2], 1), (vD[3], 2)])
        stamp("ybdone")
    def c_br2():
        r = vWQ
        P("s_waitcnt lgkmcnt(0)")
        P("s_barrier")
        for k in range(4): P(f"ds_read2st64_b32 {v2(r+2*k)}, v{vAr} offset0:{L_RED//256+2*k} offset1:{L_RED//256+2*k+1}")
        P(f"""
        v_add_u32 v{vT0}, 64, v0
        v_and_b32 v{vT0}, 128, v{vT0}
        v_cmp_ne_u32 vcc, 0, v{vT0}
        v_cndmask_b32 v{vT0}, v{vBig}, v{vL4}, vcc
        s_waitcnt lgkmcnt(0)
        """)
        sum8(r, r)
        P(f"v_bfi_b32 v{r}, v{vFF}, v{vTb}, v{r}")
        t = f"buffer_store_dword v{r}, v{vT0}, {srd(rWS)}, s{sOp} offen"
        if swap: P.vm(t + " sc1")
        else: publish("ob", t)
    vOg, vOo, vYo = vGo+1, vL12, vGo
    vY0, vY1, vBp = V.get(), V.get(), V.get()
    sOp, sOg, sYp, sYg, sOutO = sG[0:5]
    sYx, sOwn = rX, rX+2
    brx = "s_bfe_u32 s%d, s2, 0x10005" % sT0 if swap else "s_lshr_b32 s%d, s2, 7" % sT0
    def c_fin():
        if swap:
            P(f"""
            s_bfe_u32 s{sT0}, s2, 0x20003
            s_lshr_b32 s{sT1}, s2, 6
            s_lshl2_add_u32 s{sT0}, s{sT0}, s{sT1}
            s_and_b32 s{sT1}, s2, 7
            s_lshl4_add_u32 s{sCB}, s{sT1}, s{sT0}
            """)
        P(f"""
        ; o and y words carry byte (column&3) of the tag in their low byte
        v_lshlrev_b32 v{vT0}, 3, v0
        v_lshrrev_b32 v{vTb}, v{vT0}, s{sTag}
        s_lshr_b32 s{sG[5]}, s{sTag}, 8
        s_lshr_b32 s{sG[6]}, s{sTag}, 16
        s_lshr_b32 s{sG[7]}, s{sTag}, 24
        ; O table [x][slot: A, B kh0, B kh1][b][512] dwords
        s_bfe_u32 s{sT0}, s2, 0x30003
        s_mul_i32 s{sOg}, s{sT0}, {3*8192}
        s_add_u32 s{sOg}, s{sOg}, {WS_O}
        s_lshr_b32 s{sT0}, s2, 6
        s_lshl_b32 s{sT0}, s{sT0}, 11
        s_add_u32 s{sOp}, s{sOg}, s{sT0}
        ; wave 0: A row block t ; waves 1,2: slot 1+kh, row block 4*(wave-1)+s
        s_and_b32 s{sT0}, s2, 4
        s_lshl_b32 s{sT0}, s{sT0}, 3
        s_lshl2_add_u32 s{sT0}, s{sWv}, s{sT0}
        s_and_b32 s{sT1}, s2, 3
        s_add_u32 s{sT0}, s{sT0}, s{sT1}
        s_addk_i32 s{sT0}, 28
        s_and_b32 s{sT1}, s2, 7
        s_cmp_eq_u32 s{sWv}, 0
        s_cselect_b32 s{sT0}, s{sT1}, s{sT0}
        s_lshl_b32 s{sT0}, s{sT0}, 8
        s_add_u32 s{sOp}, s{sOp}, s{sT0}
        s_lshr_b32 s{sT0}, s{sCB}, 4
        s_mul_i32 s{sOg}, s{sT0}, {3*8192}
        s_add_u32 s{sOg}, s{sOg}, {WS_O}
        {brx}
        s_lshl_b32 s{sT0}, s{sT0}, 13
        s_add_u32 s{sOg}, s{sOg}, s{sT0}
        s_and_b32 s{sT1}, s{sCB}, 1
        s_lshl_b32 s{sT1}, s{sT1}, 10
        s_add_u32 s{sOg}, s{sOg}, s{sT1}
        v_bfe_u32 v{vT0}, v0, 1, 1
        v_mul_lo_u32 v{vOg}, v{vT0}, s{sT0}
        v_bfe_u32 v{vT0}, v0, 2, 2
        v_lshl_add_u32 v{vOg}, v{vT0}, 11, v{vOg}
        v_lshrrev_b32 v{vT0}, 4, v0
        v_lshl_add_u32 v{vOg}, v{vT0}, 6, v{vOg}
        v_and_b32 v{vT0}, 1, v0
        v_lshl_add_u32 v{vOg}, v{vT0}, 5, v{vOg}
        ; wo lane (row group tid>>3, 16-byte chunk tid&7)
        v_lshrrev_b32 v{vT0}, 3, v0
        v_mul_u32_u24 v{vWOo}, {8*896}, v{vT0}
        v_and_b32 v{vT0}, 7, v0
        v_lshl_add_u32 v{vWOo}, v{vT0}, 4, v{vWOo}
        s_and_b32 s{sT1}, s{sCB}, 15
        v_mov_b32 v{vT1}, s{sT1}
        v_cmp_gt_u32 vcc, 14, v{vT1}
        v_cndmask_b32 v{vWOo}, v{vBig}, v{vWOo}, vcc
        s_lshr_b32 s{sT0}, s{sCB}, 4
        s_and_b32 s{sAux}, s{sCB}, 1
        s_lshl1_add_u32 s{sAux}, s{sT0}, s{sAux}
        s_mul_i32 s{sAux}, s{sAux}, {256*896}
        s_and_b32 s{sT0}, s{sCB}, 14
        s_lshl_b32 s{sT0}, s{sT0}, 6
        s_add_u32 s{sAux}, s{sAux}, s{sT0}
        v_lshlrev_b32 v{vPw}, 4, v0
        v_and_b32 v{vPr}, 1, v0
        v_bfe_u32 v{vT1}, v0, 3, 3
        v_lshl_add_u32 v{vPr}, v{vPr}, 3, v{vT1}
        v_lshrrev_b32 v{vT1}, 6, v0
        v_lshl_add_u32 v{vPr}, v{vT1}, 4, v{vPr}
        v_bfe_u32 v{vT1}, v0, 1, 2
        v_lshl_add_u32 v{vPr}, v{vPr}, 2, v{vT1}
        v_lshlrev_b32 v{vPr}, 2, v{vPr}
        v_lshlrev_b32 v{vOo}, 3, v{vT0}
        v_bfe_u32 v{vT0}, v{vLane}, 4, 1
        v_lshl_add_u32 v{vOo}, v{vT0}, 2, v{vOo}
        v_lshrrev_b32 v{vT0}, 5, v{vLane}
        v_lshl_add_u32 v{vOo}, v{vT0}, 1, v{vOo}
        v_mul_u32_u24 v{vYo}, {8192-128}, v{vT0}
        v_add_u32 v{vYo}, v{vYo}, v{vL4}
        {brx}
        s_mul_i32 s{sT0}, s{sT0}, 14
        s_add_u32 s{sT0}, s{sT0}, s{sT1}
        s_lshl_b32 s{sOutO}, s{sT0}, 6
        s_mul_i32 s{sYp}, s{sWv}, 1792
        s_add_u32 s{sOutO}, s{sOutO}, s{sYp}
        s_lshl2_add_u32 s{sT0}, s{sT0}, s{sWv}
        s_lshl_b32 s{sT0}, s{sT0}, 11
        s_add_u32 s{sYg}, s{sT0}, {WS_Y}
        s_and_b32 s{sT1}, s{sCB}, 1
        s_mul_i32 s{sT0}, s{sT1}, {8192-1024}
        s_sub_u32 s{sYp}, s{sYg}, s{sT0}
        s_lshr_b32 s{sT0}, s{sCB}, 4
        s_lshl_b32 s{sI}, s{sT0}, 7
        s_add_u32 s{sYp}, s{sYp}, s{sI}
        ; block m is summed by its workgroup of class m&7, which keeps that half of its own result in registers
        s_lshl_b32 s{sI}, s{sT0}, 3
        s_lshl_b64 {sp(sOwn)}, 0xff, s{sI}
        s_lshl_b32 s{sI}, s{sT1}, 7
        v_lshl_add_u32 v{vBp}, v{vOo}, 1, s{sI}
        s_xor_b32 s{sI}, s{sT1}, 1
        s_lshl_b32 s{sI}, s{sI}, 10
        v_lshlrev_b32 v{vY0}, 4, v{vLane}
        v_add_u32 v{vY1}, 1024, v{vY0}
        v_add_u32 v{vT0}, s{sI}, v{vY0}
        v_cndmask_b32 v{vY0}, v{vY0}, v{vT0}, {sp(sOwn)}
        v_cndmask_b32 v{vY1}, v{vY1}, v{vT0}, {sp(sOwn)}
        s_sub_u32 s{sYx}, 0, s{sT1}
        s_not_b32 s{sYx+1}, s{sYx}
        s_and_b32 s{sT1}, s{sCB}, 7
        s_cmp_eq_u32 s{sT0}, s{sT1}
        s_cselect_b64 {sp(sYx)}, {sp(sYx)}, -1
        """)
    B(160+sg, c_sg); B(0, c_sm1, WM+1); B(0, c_sm3); B(0, c_sb1); B(0, c_bpv); B(0, c_sm4); B(0, c_br1); B(0, c_fin)
    def c_yw():
        if yw[1] == "c":
            P(f"""
            s_cmp_eq_u64 {sp(sYx)}, -1
            s_cselect_b32 s{sT0}, 0, 16
            v_lshlrev_b32 v{vT0}, 7, v{vLane}
            v_cmp_gt_u32 vcc, s{sT0}, v{vLane}
            v_cndmask_b32 v{vT0}, v{vBig}, v{vT0}, vcc
            """)
            P.vm(f"buffer_load_dword v{vTl+1}, v{vT0}, {srd(rWS)}, s{sYg} offen sc1")
        else:
            P.vm(f"buffer_load_dword v{vTl+1}, v{vYo}, {srd(rWS)}, s{sYp} offen sc1")
    if yw and yw[0] < bpub: B(yw[0], c_yw)
    def c_ow():
        P(f"v_cmp_gt_u32 vcc, 192, v0")
        P(f"v_cndmask_b32 v{vT0}, v{vBig}, v{vL4}, vcc")
        P.vm(f"buffer_load_dword v{vTl+1}, v{vT0}, {srd(rWS)}, s{sOp} offen sc1")
    if ow: B(ow, c_ow)
    if bpub: B(bpub, c_br2)
    if yw and yw[0] >= bpub: B(yw[0], c_yw)

    vAcc = vD[1]
    prepared = set()
    def v_prep(i):
        v = i - 160
        if i < NS and i not in prepared:
            pvop(vBc[v & 1], vTB[v & 1], vP + 2*(v & 3) + (v >> 6), (v >> 2) & 15); prepared.add(i)
    def v_consume(i):
        v = i - 160
        v_prep(i)
        P.wait(sid[i])
        P(f"v_mfma_f32_16x16x32_bf16 {v4(vAcc)}, {a4(sslot[i])}, {v4(vTB[v & 1])}, {v4(vAcc) if v else 0}")
        release(i)
        v_prep(i+1)

    xg = fc['xg'] if fc else 0
    if xg:
        vGs, vGl, vBs, vGd = [V.get() for _ in range(4)]; sBias = S.get()
        xcs = [cps[c] for c in fc['xc']]
        GL = 0x4000
    def fc_step(i):
        if i in cps:
            c = cps.index(i)
            if c == 0:
                assert st['tag']
                fc_setup()
                P(f"v_mov_b32 v{vFt}, s{sTag}")
                if fc['tab']:
                    m = min(fc['tab']); t = sum(((x - m)//2) << (4*k) for k, x in enumerate(fc['tab']))
                    P(f"""
                    s_lshl_b32 s{sTagQ}, s{sTagQ}, 2
                    s_lshr_b32 s{sTagQ}, {t:#x}, s{sTagQ}
                    s_and_b32 s{sTagQ}, s{sTagQ}, 15
                    s_lshl1_add_u32 s{sTagQ}, s{sTagQ}, {m}
                    """)
                if xg:
                    P(f"""
                    s_bfe_u32 s{sBias}, s2, 0x30003
                    s_lshl_b32 s{sBoost}, s{sBias}, 11
                    s_add_u32 s{sBoost}, s{sBoost}, {WS_G + GL}
                    v_mov_b32 v{vBs}, s{sBoost}
                    s_sub_u32 s{sBoost}, s{sBoost}, s{sFC}
                    v_writelane_b32 v{vFl}, s{sBoost}, 32
                    s_lshl2_add_u32 s{sI}, s{sI}, s{sWv}
                    s_cmp_eq_u32 s{sI}, {4*13+1}
                    s_cselect_b32 s{sFm}, 0xff, 0
                    s_mov_b32 s{sFm+1}, 0
                    v_lshlrev_b32 v{vGd}, 11, v{vLane}
                    v_add_u32 v{vGd}, {WS_G}, v{vGd}
                    v_cndmask_b32 v{vGl}, v{vBig}, v{vGd}, {sp(sFm)}
                    s_lshl_b32 s{sBias}, 1, s{sBias}
                    s_and_b32 s{sFm}, s{sFm}, s{sBias}
                    v_cndmask_b32 v{vGs}, v{vBig}, v{vGd}, {sp(sFm)}
                    v_cndmask_b32 v{vGl}, v{vGl}, v{vBig}, {sp(sFm)}
                    v_cndmask_b32 v{vBs}, v{vBig}, v{vBs}, {sp(sFm)}
                    s_mov_b32 s{sBias}, 0
                    """)
            look = xg and c - 1 in fc['xc']
            if xg and not look: P("s_mov_b32 exec_hi, 0")
            fcs['ids'][c] = P.vm(f"buffer_load_dword v{vFd}, v{vFl}, {srd(rWS)}, s{sFC} offen offset:{128*c}")
            if xg and not look: P("s_mov_b32 exec_hi, -1")
            P.vm(f"buffer_store_dword v{vFt}, v{vFs}, {srd(rWS)}, s{sFC} offen offset:{128*c}")
            if xg and i in xcs: P.vm(f"buffer_store_dword v{vFt}, v{vGs}, {srd(rWS)}, 0 offen offset:{128*c} sc1")
        if xg and i - fc['xd'] in xcs:
            fcs['g'] = P.vm(f"buffer_load_dword v{vGd}, v{vGl}, {srd(rWS)}, 0 offen offset:{128*cps.index(i - fc['xd'])} sc1")
        if xg and i - fc['xd'] - WM - 1 in xcs:
            c = cps.index(i - fc['xd'] - WM - 1)
            P.wait(fcs['g'])
            P(f"""
            v_cmp_eq_u32 {sp(sFm)}, v{vFt}, v{vGd}
            s_bcnt1_i32_b32 s{sFm}, s{sFm}
            v_add_u32 v{vGd}, s{sFm}, v{vFt}
            """)
            P.vm(f"buffer_store_dword v{vGd}, v{vBs}, {srd(rWS)}, 0 offen offset:{128*(c+1)}")
        if i - WM - 1 in cps:
            c = cps.index(i - WM - 1)
            P.wait(fcs['ids'].pop(c))
            pd = fc['Pd'] if not fc['cps'] else ((cps[c+1] - cps[c]) if c + 1 < len(cps) else NS - i)
            g = int(round(fc['gain'] * pd / 32 * 256))
            if fc['s3'] and i >= 150 and not fcs.get('s3'):
                fcs['s3'] = True
                P(f"""
                s_and_b32 s{sBoost}, s2, 3
                s_cmp_eq_u32 s{sBoost}, 3
                s_cselect_b32 s{sBoost}, {fc['s3']}, 0
                s_add_i32 s{sTagQ}, s{sTagQ}, s{sBoost}
                """)
            P(f"""
            v_cmp_eq_u32 {sp(sFm)}, v{vFt}, v{vFd}
            s_bcnt1_i32_b32 s{sBoost}, s{sFm}
            s_mul_i32 s{sBoost}, s{sBoost}, {g}
            s_sub_i32 s{sBoost}, s{sBoost}, {int(fc['r0'] * 32)*g}
            """)
            if xg and c - 1 in fc['xc']:
                P(f"""
                v_readlane_b32 s{sFm}, v{vFd}, 32
                s_sub_u32 s{sFm}, s{sFm}, s{sTag}
                s_mul_i32 s{sBias}, s{sFm}, {int(xg*256)}
                s_sub_i32 s{sBias}, s{sBias}, {int(xg*256*fc['x0'])}
                s_cmp_lt_u32 s{sFm}, 8
                s_cselect_b32 s{sBias}, s{sBias}, 0
                """)
            if xg and (fc['hold'] or c - 1 in fc['xc']): P(f"s_add_i32 s{sBoost}, s{sBoost}, s{sBias}")
            P(f"s_ashr_i32 s{sBoost}, s{sBoost}, 8")
            if fc['tab']: P(f"s_add_i32 s{sBoost}, s{sBoost}, s{sTagQ}")
            fcs['start'] = i + 1

    nk, nv = 32, 160
    jw = 0
    bi = 0; lastbg = -1
    cur = None
    def consume_one():
        nonlocal nk, nv
        if st['kok'] and nk < 160 and nk <= land[0]:
            k_consume(nk); nk += 1
        elif st['vok'] and nv <= land[0]:
            v_consume(nv); nv += 1
        else: return False
        slots.extend(freed); freed.clear()
        return True
    def splittable(items, n):
        full = True; open_br = False
        for it in items[:n]:
            if it[0] == 'i':
                t = it[1]
                if t.startswith(('s_mov_b32 exec', 's_mov_b64 exec')): full = t.endswith('-1') and 'b64' in t
                if t.startswith('s_cbranch_scc'): open_br = True
            elif it[0] == 'l': open_br = False
        last = items[n-1]
        if last[0] == 'i' and last[1].startswith(('s_cmp', 's_cbranch', 's_getpc')): return False
        return full and not open_br
    minfree = 99
    for i in range(NS):
        m0 = len(P.ir)
        issue(i); fc_step(i)
        if i + 1 == hpos: hello_store()
        if i + 1 < len(first):
            for _ in range(first[i+1]): wq_load()
        minfree = min(minfree, len(slots))
        used = lambda: sum(cost(x) for x in P.ir[m0:])
        consume_one()
        lim = 10**9 if i == W-1 else budget
        while True:
            if cur is None:
                if bi < len(bg) and bg[bi][0] <= i and lastbg + bg[bi][2] <= i and used() < lim:
                    keep = P.ir; P.ir = []
                    flag = bg[bi][1]()
                    cur = [P.ir, flag, list(freed), 0]; freed.clear(); P.ir = keep; bi += 1
                    if bg[bi-1][1] not in (c_setup, c_wsw, c_hello2, c_tlb): lim = min(lim, used() + budget) if i == W-1 else lim
                else: break
            items = cur[0]; n = cur[3]; u = used()
            while n < len(items) and not (u >= lim and n > cur[3] and splittable(items, n)):
                u += cost(items[n]); n += 1
            P.ir.extend(items[cur[3]:n]); cur[3] = n
            if n < len(items): break
            if cur[1]: st[cur[1]] = True
            slots.extend(cur[2]); cur = None; lastbg = i
        c = 1
        while c < maxcatch and (used() < budget or len(slots) < 3) and consume_one(): c += 1
    assert bi == len(bg) and cur is None and nk == 160, (bi, len(bg), nk)
    stamp("lastiss")
    if spinif == "retry": P(f"s_mov_b32 s1, s{sSpin}")
    if tpad is not None:
        P("s_branch L_tail"); P.raw(f".p2align {tpad[0]}")
        if tpad[1]: P.raw(f".fill {tpad[1]}, 4, 0xbf800000")
        P.label("L_tail")
    while nv < NS:
        for _ in range(wolate):
            if jw < 8: wo_load(jw); jw += 1
        v_consume(nv); nv += 1
    while jw < 8: wo_load(jw); jw += 1
    stamp("vdone")

    r = vWQ
    for q in range(4): P(f"v_mul_f32 v{vAcc+q}, v{vAcc+q}, v{vWt}")
    red_write([(vAcc, 0)])
    P("s_waitcnt lgkmcnt(0)")
    P("s_barrier")
    P(f"s_cmp_lg_u32 s{sWv}, 0" if bpub else f"s_cmp_eq_u32 s{sWv}, 3")
    P("s_cbranch_scc1 L_near_o")
    for k in range(4): P(f"ds_read2st64_b32 {v2(r+2*k)}, v{vAr} offset0:{L_RED//256+2*k} offset1:{L_RED//256+2*k+1}")
    P("s_waitcnt lgkmcnt(0)")
    sum8(r, r)
    P(f"v_bfi_b32 v{r}, v{vFF}, v{vTb}, v{r}")
    t = f"buffer_store_dword v{r}, v{vL4}, {srd(rWS)}, s{sOp} offen"
    if swap: P.vm(t + " sc1"); P.label("L_near_o")
    else: publish("o", t)
    stamp("opub")
    P(f"""
    s_and_b32 s{sT0}, s{sCB}, 15
    s_cmp_ge_u32 s{sT0}, 14
    s_cbranch_scc1 L_done
    """)
    g = vQA; sMiss = sFm
    def ppoll(Q, name, lds, sets, dst, mid=None):
        n = len(lds); D = len(sets)
        for k in range(n): Q(lds[k].replace("@", v4(sets[0]+4*k)))
        Q(f"s_mov_b64 {sp(sMiss)}, -1")
        if mid: mid(Q, n)
        if D > 1:
            Q(f"s_not_b32 s{sT0}, s{sTag}")
            for b in sets[1:]: Q(f"v_mov_b32 v{b}, s{sT0}")
        Q.label(f"L_poll{name}")
        for d in list(range(1, D)) + [0]:
            b = sets[d]
            Q(f"s_waitcnt vmcnt({n*(D-1)})")
            tagcheck(Q, range(b, b+4*n), [f's{x}' for x in [sTag] + sG[5:8]], 0xff)
            Q("s_wqm_b64 vcc, vcc")
            Q(f"s_andn2_b64 exec, {sp(sMiss)}, vcc")
            for k in range(4*n): Q(f"v_and_b32 v{dst+k}, 0xffffff00, v{b+k}")
            Q(f"s_and_b64 {sp(sMiss)}, {sp(sMiss)}, vcc")
            Q(f"s_cbranch_scc0 L_got{name}")
            Q(f"s_mov_b64 exec, {sp(sMiss)}")
            for k in range(n): Q(lds[k].replace("@", v4(b+4*k)))
            Q("s_mov_b64 exec, -1")
        Q(f"s_add_u32 s{sSpin}, s{sSpin}, 1")
        Q(f"s_cmp_gt_u32 s{sSpin}, 0x20000")
        Q(f"s_cbranch_scc0 L_poll{name}")
        Q.label(f"L_got{name}")
        Q("s_mov_b64 exec, -1")
    def mid(Q, n):
        for q in range(4):
            Q(f"s_waitcnt vmcnt({n + 6 - 2*q})")
            for e in range(8):
                Q(f"v_perm_b32 v{vWO+4*e+q}, v{vQD+4*(2*q+1)+(e>>1)}, v{vQD+4*(2*q)+(e>>1)}, s{sSel1 if e & 1 else sSel0}")
    ppoll(P, "O", [f"buffer_load_dwordx4 @, v{vOg}, {srd(rWS)}, s{sOg} offen offset:{16*k} sc1" for k in range(2)], [g+8, g+16, g+24][:DO], g, mid)
    P("s_bitcmp1_b32 s2, 5" if swap else "s_cmp_ge_u32 s2, 128")
    P("s_cbranch_scc1 L_addB")
    P.label("L_proj")
    Q = Prog(); Q.label("L_addB")
    for k in range(8): Q(f"v_add_f32_dpp v{g+k}, v{g+k}, v{g+k} quad_perm:[2,3,0,1] {FULL}")
    Q("s_branch L_proj"); slow.insert(0, Q)
    stamp("ogot")
    for q in range(4): P(f"v_cvt_pk_bf16_f32 v{vX+q}, v{g+2*q}, v{g+2*q+1}")
    for e in range(8): P(f"v_mfma_f32_16x16x32_bf16 {v4(vQD+4*e)}, {v4(vX)}, {v4(vWO+4*e)}, 0")
    for e in range(8):
        h = e & 1
        P(f"v_add_f32_dpp v{r+(e >> 1)}, v{vQD+4*e+1-h}, v{vQD+4*e+h} row_ror:8 row_mask:0xf bank_mask:{0xc if h else 0x3:#x}")
    P(f"""
    ds_write_b128 v{vPw}, {v4(r)} offset:{L_QRED}
    s_waitcnt lgkmcnt(0)
    s_barrier
    ds_read2st64_b32 {v2(r)}, v{vPr} offset0:{L_QRED//256} offset1:{L_QRED//256+4}
    ds_read2st64_b32 {v2(r+2)}, v{vPr} offset0:{L_QRED//256+8} offset1:{L_QRED//256+12}
    s_cmp_eq_u64 {sp(sYx)}, -1
    s_waitcnt lgkmcnt(0)
    v_add_f32 v{r}, v{r}, v{r+1}
    v_add_f32 v{r+2}, v{r+2}, v{r+3}
    v_add_f32 v{r}, v{r}, v{r+2}
    v_bfi_b32 v{r+1}, v{vFF}, v{vTb}, v{r}
    s_mov_b64 exec, {sp(sYx)}
    """)
    t = f"buffer_store_dword v{r+1}, v{vYo}, {srd(rWS)}, s{sYp} offen"
    if swap: publish("y", t); P(f"s_cmp_eq_u64 {sp(sYx)}, -1")
    else: P.vm(t + " sc1")
    stamp("yapub")
    P("s_cbranch_scc1 L_done")
    P("s_mov_b64 exec, -1")
    f = vP
    def midy(Q, n): Q(f"ds_bpermute_b32 v{r+2}, v{vBp}, v{r}")
    ppoll(P, "Y", [f"buffer_load_dwordx4 @, v{vy}, {srd(rWS)}, s{sYg} offen sc1" for vy in (vY0, vY1)], [vWO+8*k for k in range(4)][:DY], f, midy)
    stamp("fgot")
    P(f"s_not_b64 exec, {sp(sOwn)}")
    for k in range(4): P(f"v_add_f32 v{f+k}, v{f+k}, v{f+4+k}")
    P("s_mov_b64 exec, -1")
    P(f"""
    v_permlane32_swap_b32 v{f}, v{f+1}
    v_permlane32_swap_b32 v{f+2}, v{f+3}
    v_add_f32 v{f}, v{f}, v{f+1}
    v_add_f32 v{f+2}, v{f+2}, v{f+3}
    v_permlane16_swap_b32 v{f}, v{f+2}
    v_add_f32 v{f}, v{f}, v{f+2}
    """)
    xlane("v_add_f32", f, None, ["r8"])
    P("s_waitcnt lgkmcnt(0)")
    P(f"v_add_f32 v{f}, v{f}, v{r+2}")
    P(f"""
    v_cvt_pk_bf16_f32 v{f}, v{f}, v{f}
    s_mov_b32 exec_lo, 0x00ff00ff
    s_mov_b32 exec_hi, 0x00ff00ff
    """)
    P.vm(f"buffer_store_short v{f}, v{vOo}, {srd(rOUT)}, s{sOutO} offen")
    P(f"""
    s_cmp_lg_u32 s{sOutO}, 0
    s_cbranch_scc1 L_done
    s_mov_b64 exec, 1
    v_mov_b32 v{f+2}, s{sTag}
    """)
    P.vm(f"buffer_store_dword v{f+2}, v{vOo}, {srd(rWS)}, 0 offen")
    P.label("L_done")
    if spin:
        if spinif == "far": P(f"s_cmp_eq_u32 s{sFar}, 0\ns_cbranch_scc1 L_end")
        if spinif == "retry": P(f"s_cmp_eq_u32 s1, 0\ns_cbranch_scc1 L_end")
        if probe:
            P(f"s_waitcnt lgkmcnt(0)\ns_sub_u32 s{sLim}, s{sPr}, s{sSt}\ns_mul_i32 s{sLim}, s{sLim}, {probe[1]}\ns_add_u32 s{sLim}, s{sLim}, {spin}")
            if len(probe) > 2: P(f"s_and_b32 s{sT0}, s2, {probe[2]}\ns_cmp_lg_u32 s{sT0}, {probe[3]}\ns_cbranch_scc1 L_end")
        P.label("L_spin")
        P(f"""
        s_memrealtime {sp(sNow)}
        s_waitcnt lgkmcnt(0)
        s_sub_u32 s{sNow}, s{sNow}, s{sSt}
        s_cmp_lt_u32 s{sNow}, {('s%d' % sLim) if probe else spin}
        s_cbranch_scc1 L_spin
        """)
    if diag:
        P("s_mov_b64 exec, -1")
        stamp("end")
        P(f"""
        s_waitcnt lgkmcnt(0) vmcnt(0)
        s_lshl_b32 s{sT0}, s2, 2
        s_add_u32 s{sT0}, s{sT0}, s{sWv}
        s_lshl_b32 s{sT0}, s{sT0}, 7
        s_add_u32 s{sT0}, s{sT0}, {WS_DIAG}
        v_mov_b32 v{vT1}, 0
        s_mov_b64 exec, 1
        """)
        def dump(sreg, off):
            P(f"v_mov_b32 v{vT0}, s{sreg}")
            P.vm(f"buffer_store_dword v{vT0}, v{vT1}, {srd(rWS)}, s{sT0} offen offset:{off}")
        for n, (name, rr) in enumerate(stamps): dump(rr, 4*n)
        dump(sSpin, 4*len(stamps)); dump(sFar, 116)
        P(f"s_getreg_b32 s{sT1}, hwreg(HW_REG_XCC_ID)"); dump(sT1, 120)
        P(f"s_getreg_b32 s{sT1}, hwreg(HW_REG_HW_ID)"); dump(sT1, 124)
    P.label("L_end")
    P("s_endpgm")

    body, stats = P.render()
    for Q in slow: body += Q.render()[0]
    body += 'L_code_end:\n'
    head = open("cdna_kernels/" + KNAME[:-7] + ".s.ref").read().split("; Override launch")[0]
    txt = head + f"; @launch grid=(256,1,1) block=(256,1,1) lds={L_TOTAL}\n" + HEADER
    txt += f'.amdgcn_target "amdgcn-amd-amdhsa--gfx950"\n.text\n.globl {KNAME}\n.p2align 8\n.type {KNAME},@function\n{KNAME}:\n'
    txt += body
    txt += f""".section .rodata,"a"
.p2align 6
.amdhsa_kernel {KNAME}
  .amdhsa_next_free_vgpr 512
  .amdhsa_next_free_sgpr 102
  .amdhsa_accum_offset 256
  .amdhsa_group_segment_fixed_size 0
  .amdhsa_kernarg_size 104
  .amdhsa_user_sgpr_count 2
  .amdhsa_user_sgpr_kernarg_segment_ptr 1
  .amdhsa_system_sgpr_workgroup_id_x 1
.end_amdhsa_kernel
"""
    ids = list(range(256))
    act = [L for L in ids if (((L >> 6) & 1)*8 + (L & 7)) < 14]
    fin = [L for L in act if ((L >> 3) & 7) == (L & 7)]
    if swap:
        mm = lambda L: 4*((L >> 3) & 3) + (L >> 6)
        act = [L for L in ids if mm(L) < 14]; fin = [L for L in act if (mm(L) & 7) == (L & 7)]
    return txt, dict(stats, vhw=V.hw, shw=S.hw, minfree=minfree, stamps=[n for n, _ in stamps], who=dict(ogot=act, yapub=act, fgot=fin))

if __name__ == "__main__":
    import json
    kw = json.loads(sys.argv[2]) if len(sys.argv) > 2 else {}
    t, s = gen(**kw)
    open(sys.argv[1], "w").write(t)
    s.pop('who')
    print(s, file=sys.stderr)
```

```python
import sys, math, struct
from asmlib import Prog, Alloc
KNAME = "concat_heads__mha_block_cached__sliding_block_cached__decode_kernel"

WS_Q, WS_SC, WS_O, WS_FC, WS_Y, WS_G, WS_DIAG = 0x10000, 0x40000, 0x100000, 0x130000, 0x140000, 0x180000, 0x800000
L_QRED, L_ST, L_RED, L_TOTAL = 0, 4096, 4352, 4352 + 3*2048
CS = struct.unpack('<I', struct.pack('<f', math.log2(math.e) / 16.0))[0]
BIG = 0x7ff00000
FULL = "row_mask:0xf bank_mask:0xf"

AUXCOST = [8]
def cost(it):
    if it[0] == 'vm': return 8 if ' a[' in it[1] or 'store' in it[1] else AUXCOST[0]
    if it[0] != 'i': return 2
    t = it[1]
    if t.startswith(';'): return 0
    if t.startswith('v_mfma'): return 16
    if t.startswith(('v_exp', 'v_log', 'v_rcp')): return 10
    if '_dpp' in t or t.startswith('v_permlane'): return 8
    if t.startswith('ds_'): return 12
    if t.startswith('s_waitcnt'): return 60
    if t.startswith('s_barrier'): return 30
    return 4

HEADER = """;
; One launch, 256 workgroups x 4 waves (one wave per SIMD); generated by a script, straight-line code.
; Logical id = b(2) | x(3) | t(3); the 32 workgroups with the same x form a class (A heads 2x, 2x+1, B kv head x).
;   1. q = x @ wq: every workgroup computes one 32-column block for the 4 batches and hands it to its class.
;   2. K streams (B window, then A), keys split over the workgroups of a (batch, head); MFMA scores, rounded to bf16.
;   3. scores are exchanged inside the (batch, x) group; every wave takes the true max / sum of its keys, the
;   4. V streams split along the head dimension (64 columns per workgroup); MFMA P.V gives normalised o slices.
;   5. o is handed to the class; 28 workgroups multiply it with a 256 x 64 block of wo; 16 partial sums per
;      output are added by one wave and stored as bf16.
; earlier launch is never accepted. Class-local hand-offs stay in L2 only after all 32 workgroups of the class
; have been seen (through d_debug) on this XCC; otherwise every store and load of them is sc1.
"""

def gen(W=5, qg=33, sg=18, wflag="", woflag="nt", diag=False, skip=(), spin=0, forcefar=False, fc=None, budget=150, maxcatch=4,
        bpub=278, DO=1, DY=3, wolate=1, auxcost=70, wsl=32, first=(5, 4), hello=5, tpad=None, ipf=6, ipf0=True, tlb=None, qw=True, zones=(), rot=None, swap=False, ow=None, W0=(24, 6), yw=(282, 'p'), noO=True, fakeQ=0, xpos=0, hpos=0, spinif=None, probe=None, fast=3, top=True, recheck=120):
    AUXCOST[0] = auxcost
    P = Prog()
    V = Alloc('v', 1, 256); S = Alloc('s', 3, 100)
    slots = list(range(64))
    def a4(s): return f"a[{4*s}:{4*s+3}]"
    def v4(r): return f"v[{r}:{r+3}]"
    def v3(r): return f"v[{r}:{r+2}]"
    def v2(r): return f"v[{r}:{r+1}]"
    def srd(r): return f"s[{r}:{r+3}]"
    def sp(r): return f"s[{r}:{r+1}]"
    def vcc(m): P(f"s_mov_b32 vcc_lo, {m:#x}"); P(f"s_mov_b32 vcc_hi, {m:#x}")
    slow = []
    stamps = []
    def stamp(name):
        if probe and name == probe[0]:
            P(f"s_memrealtime {sp(sPr)}")
        if diag:
            r = S.get(2); stamps.append((name, r)); P(f"s_memrealtime {sp(r)}")
    fcs = dict(start=None, ids={})
    if probe: sPr = S.get(2); sLim = S.get()
    st = dict(kok=False, vok=False, lgk=False, tag=False)
    if fc is not None:
        fc = dict(dict(first=16, Pd=32, dW=2, r0=0.6, gain=2.5, xg=0, x0=3.5, xd=1, xc=(1, 3, 5), hold=True, neg=None, ns=2, s3=10, cps=(16, 40, 72, 104, 136, 168, 196, 224, 248, 266), tab=(4, -8, 2, -8, 10, 0, 6, -4)), **fc)
        WM = W + fc['dW']
        cps = list(fc['cps'] or range(fc['first'], 288 - WM - 6, fc['Pd']))
    else:
        WM = W; cps = []

    rX, rWQ, rBK, rBV, rAK, rAV, rWO, rWS, rOUT = [S.get(4) for _ in range(9)]
    sT0, sT1, sI, sWv, sTag, sOff, sAux, sSel0, sSel1, sC, sSpin, sCB, sTagQ, sFar, sBoost, sFC, sKo = [S.get() for _ in range(17)]
    vLane, vT0, vT1, vT2, vBig = [V.get() for _ in range(5)]
    vXo, vWQo, vKo, vVo = [V.get() for _ in range(4)]
    def desc(r, sz):
        P(f"s_mov_b32 s{r+2}, {sz}"); P(f"s_mov_b32 s{r+3}, 0x20000")
    sDbg = S.get(2); vH = V.get(2)
    vXT = V.get()
    def code_pf_top():
        P("; the straight-line code below is read once: each workgroup pulls its share of it towards its L2 now")
        P(f"s_getpc_b64 {sp(rOUT+2)}")
        P.label("L_pc")
        P(f"""
        s_lshr_b32 s{sT0}, s2, 3
        s_mulk_i32 s{sT0}, {128*ipf}
        v_min_u32 v{vT1}, {ipf-1}, v0
        v_lshl_add_u32 v{vT1}, v{vT1}, 7, s{sT0}
        """)
        P.vm(f"global_load_dword v{vXT}, v{vT1}, {sp(rOUT+2)}")
    def code_pf():
        if top: return
        P(f"s_getpc_b64 {sp(rOUT+2)}")
        P.label("L_pc")
        P(f"""
        v_and_b32 v{vT0}, {31 if ipf > 1 else 255}, v{vH}
        v_min_u32 v{vT1}, {ipf-1}, v0
        v_mad_u32_u24 v{vT0}, v{vT0}, {ipf}, v{vT1}
        v_lshlrev_b32 v{vT0}, 7, v{vT0}
        v_min_u32 v{vT0}, L_code_end-L_pc-4, v{vT0}
        """)
        P.vm(f"global_load_dword v{vXT}, v{vT0}, {sp(rOUT+2)}")
    hl1 = f"""s_load_dwordx2 {sp(sDbg)}, s[0:1], 88
    s_getreg_b32 s{sTagQ}, hwreg(HW_REG_XCC_ID, 0, 4)
    ; byte (id&7)*32 + (id>>3) of the zeroed debug buffer reports this workgroup's XCC
    s_mul_i32 s{sT0}, s2, 0x101
    s_bfe_u32 s{sT0}, s{sT0}, 0x80003
    v_mov_b32 v{vH}, s{sT0}
    v_add_u32 v{vH+1}, s{sTagQ}, 1"""
    if fast:
        P("s_cmpk_ge_u32 s2, 256")
        P("s_cbranch_scc1 L_end")
        stamp("start")
        if spin:
            sSt = S.get(2); sNow = S.get(2); P(f"s_memrealtime {sp(sSt)}")
        P(f"""
        s_load_dwordx2 {sp(rBK)}, s[0:1], 48
        s_load_dwordx2 {sp(rWS)}, s[0:1], 96
        """)
        if top: code_pf_top()
        P(f"""
        ; logical id = b(2) | x(3) | t(3): workgroups that are 8 apart share x (L2 locality only)
        s_and_b32 s{sCB}, s2, 7
        s_lshr_b32 s{sI}, s2, 6
        s_lshl3_add_u32 s{sI}, s{sI}, s{sCB}
        s_bfe_u32 s{sT1}, s2, 0x30003
        s_lshl4_add_u32 s{sOff}, s{sI}, 12
        s_lshl3_add_u32 s{sOff}, s{sOff}, s{sT1}
        s_lshl_b32 s{sOff}, s{sOff}, 14
        s_lshl_b32 s{rBK+2}, 1, 26
        s_mov_b32 s{rBK+3}, 0x20000
        v_lshrrev_b32 v{vT0}, 6, v0
        v_lshrrev_b32 v{vT2}, 2, v0
        v_and_b32 v{vT1}, 3, v0
        v_and_b32 v{vXo}, 3, v{vT2}
        v_lshl_add_u32 v{vKo}, v{vT0}, 2, v{vXo}
        v_lshl_add_u32 v{vKo}, v{vKo}, 6, v{vT1}
        v_and_b32 v{vWQo}, 12, v{vT2}
        v_add_lshl_u32 v{vKo}, v{vKo}, v{vWQo}, 4
        s_waitcnt lgkmcnt(0)
        """)
        stamp("karg")
    def block2():
        P(f"""
        s_lshr_b32 s{sKo}, s2, 7
        s_mul_i32 s{sKo}, s{sKo}, 40
        s_load_dwordx2 {sp(rX)}, s[0:1], s{sKo}
        s_load_dwordx2 {sp(rWQ)}, s[0:1], s{sKo} offset:24
        {hl1}
        s_bfe_u32 s{sT0}, s2, 0x40003
        s_lshl4_add_u32 s{sCB}, s{sCB}, s{sT0}
        s_lshl_b32 s{sAux}, s{sCB}, 6
        s_lshl3_add_u32 s2, s{sI}, s{sT1}
        v_readfirstlane_b32 s{sWv}, v{vT0}
        v_lshlrev_b32 v{vWQo}, 12, v{vT2}
        v_add_lshl_u32 v{vWQo}, v{vWQo}, v{vT1}, 4
        v_cmp_gt_u32 vcc, 56, v{vT2}
        v_mad_u32_u24 v{vXo}, v{vXo}, 55, v{vT2}
        v_add_lshl_u32 v{vXo}, v{vXo}, v{vT1}, 4
        v_cndmask_b32 v{vXo}, 2.0, v{vXo}, vcc
        """)
        if ipf and ipf0: code_pf()
        desc(rX, 3584); desc(rWQ, 3670016)
        P("s_waitcnt lgkmcnt(0)")
        hello_store()
    if not fast:
        P("s_cmp_ge_u32 s2, 256")
        P("s_cbranch_scc1 L_end")
        stamp("start")
        if spin:
            sSt = S.get(2); sNow = S.get(2); P(f"s_memrealtime {sp(sSt)}")
        if top == "first": code_pf_top()
        P(f"""
        s_lshr_b32 s{sKo}, s2, 7
        s_mul_i32 s{sKo}, s{sKo}, 40
        s_load_dwordx2 {sp(rBK)}, s[0:1], 48
        s_load_dwordx2 {sp(rX)}, s[0:1], s{sKo}
        s_load_dwordx2 {sp(rWQ)}, s[0:1], s{sKo} offset:24
        s_load_dwordx2 {sp(rWS)}, s[0:1], 96
        {hl1}
        """)
        if probe and probe[0] == "kfast": P("s_waitcnt lgkmcnt(0)"); stamp("kfast")
        if ipf and ipf0: code_pf()
        P(f"""
        ; logical id = b(2) | x(3) | t(3): workgroups that are 8 apart share x (L2 locality only)
        s_and_b32 s{sT0}, s2, 7
        s_bfe_u32 s{sT1}, s2, 0x30003
        s_bfe_u32 s{sCB}, s2, 0x40003
        s_lshr_b32 s2, s2, 6
        s_lshl3_add_u32 s2, s2, s{sT0}
        s_lshl_b32 s{sOff}, s2, 21
        s_lshl3_add_u32 s2, s2, s{sT1}
        s_lshl4_add_u32 s{sCB}, s{sT0}, s{sCB}
        s_lshl_b32 s{sAux}, s{sCB}, 6
        v_lshrrev_b32 v{vT0}, 6, v0
        v_lshrrev_b32 v{vT2}, 2, v0
        v_readfirstlane_b32 s{sWv}, v{vT0}
        v_and_b32 v{vT1}, 3, v0
        v_lshlrev_b32 v{vWQo}, 12, v{vT2}
        v_add_lshl_u32 v{vWQo}, v{vWQo}, v{vT1}, 4
        v_cmp_gt_u32 vcc, 56, v{vT2}
        v_and_b32 v{vKo}, 3, v{vT2}
        v_mad_u32_u24 v{vXo}, v{vKo}, 55, v{vT2}
        v_add_lshl_u32 v{vXo}, v{vXo}, v{vT1}, 4
        v_lshl_add_u32 v{vKo}, v{vT0}, 2, v{vKo}
        v_cndmask_b32 v{vXo}, 2.0, v{vXo}, vcc
        v_lshl_add_u32 v{vKo}, v{vKo}, 6, v{vT1}
        v_and_b32 v{vT2}, 12, v{vT2}
        v_add_lshl_u32 v{vKo}, v{vKo}, v{vT2}, 4
        s_or_b32 s{sT0}, s{sT1}, 96
        s_lshl_b32 s{sT0}, s{sT0}, 14
        s_add_u32 s{sOff}, s{sOff}, s{sT0}
        """)
        if fakeQ:
            P(f"""
            v_lshrrev_b32 v{vT0}, 3, v0
            v_mul_u32_u24 v{vWQo}, {7*512}, v{vT0}
            v_and_b32 v{vT0}, 7, v0
            v_add_lshl_u32 v{vWQo}, v{vWQo}, v{vT0}, 4
            s_and_b32 s{sT0}, s{sCB}, 1
            s_mul_i32 s{sT0}, s{sT0}, {224*8192-64}
            s_add_u32 s{sAux}, s{sAux}, s{sT0}
            """)
        desc(rX, 3584); desc(rWQ, 3670016); desc(rBK, 1 << 26)
        if probe and probe[0] == "pre": stamp("pre")
        P("s_waitcnt lgkmcnt(0)")
        stamp("karg")
    def hello_store(): P.vm(f"global_store_byte v{vH}, v{vH+1}, {sp(sDbg)}")
    if hpos == 0 and not fast: hello_store()
    vX = V.get(4, 4); vWQ = V.get(32, 4)
    idwq = []
    def wq_load():
        n = len(idwq); j = n if n < xpos else n - 1
        if n == xpos: idwq.append(P.vm(f"buffer_load_dwordx4 {v4(vX)}, v{vXo}, {srd(rX)}, 0 offen"))
        elif "wq" in skip or (fakeQ and j == 7): idwq.append(None)
        else:
            if j: P(f"s_addk_i32 s{sAux}, 0x2000")
            idwq.append(P.vm(f"buffer_load_dwordx4 {v4(vWQ+4*j)}, v{vWQo}, {srd(rWQ)}, s{sAux} offen {wflag}"))
    first = [0]*fast + list(first or [9])
    assert sum(first) == 9
    for _ in range(first[0]): wq_load()
    vTl = V.get(2)
    def c_wsw():
        P(f"""
        s_mul_i32 s{sT0}, s2, 3072
        s_add_u32 s{sT0}, s{sT0}, {WS_SC}
        v_mov_b32 v{vTl}, s{sT0}
        """)
        if qw:
            P(f"""
            s_lshr_b32 s{sT0}, s2, 7
            s_lshl_b32 s{sT0}, s{sT0}, 9
            s_add_u32 s{sT0}, s{sT0}, s{sCB}
            s_lshl_b32 s{sT0}, s{sT0}, 7
            s_add_u32 s{sT0}, s{sT0}, {(WS_Q - 24*16384) & 0xffffffff}
            v_mul_u32_u24 v{vTl+1}, {16384-128}, v0
            v_add_u32 v{vTl+1}, s{sT0}, v{vTl+1}
            v_cmp_gt_u32 vcc, 24, v0
            v_cndmask_b32 v{vTl}, v{vTl+1}, v{vTl}, vcc
            v_cmp_gt_u32 vcc, 28, v0
            v_cndmask_b32 v{vTl}, 2.0, v{vTl}, vcc
            """)
        elif wsl > 24:
            P(f"""
            v_mul_u32_u24 v{vTl+1}, 768, v{vH}
            v_add_u32 v{vTl+1}, {BIG if noO else WS_O - 24*128}, v{vTl+1}
            v_cmp_gt_u32 vcc, 24, v0
            v_cndmask_b32 v{vTl}, v{vTl+1}, v{vTl}, vcc
            """)
        if wsl > 30:
            P(f"""
            v_lshlrev_b32 v{vTl+1}, 8, v{vH}
            v_add_u32 v{vTl+1}, {WS_FC - 30*128}, v{vTl+1}
            v_cmp_gt_u32 vcc, 30, v0
            v_cndmask_b32 v{vTl}, v{vTl+1}, v{vTl}, vcc
            """)
        P(f"""
        v_lshl_add_u32 v{vTl}, v0, 7, v{vTl}
        v_cmp_gt_u32 vcc, {wsl}, v0
        v_cndmask_b32 v{vTl}, 2.0, v{vTl}, vcc
        """)
        desc(rWS, 1 << 24)
        P.vm(f"buffer_load_dword v{vTl+1}, v{vTl}, {srd(rWS)}, 0 offen sc1")
    stream = []
    for k in range(16): stream.append(("BK", k))
    for k in range(16): stream.append(("BV", k))
    for k in range(128): stream.append(("AK", k))
    for k in range(128): stream.append(("AV", k))
    NS = len(stream)
    sid = {}; sslot = {}; land = [-1]
    def issue(i):
        kind, k = stream[i]
        if k == 0 and kind == "BV":
            assert st['lgk']
            P(f"""
            s_and_b32 s{sI}, s2, 3
            s_mul_i32 s{sI}, s{sI}, {16384-128}
            s_add_u32 s{sI}, s{sI}, {3*131072}
            s_sub_u32 s{sOff}, s{sOff}, s{sI}
            """)
        elif k == 0 and kind[0] == "A" and rot:
            vo = vKo if kind == "AK" else vVo
            P(f"""
            s_lshr_b32 s{sI}, s2, 2
            s_lshl_b32 s{sI}, s{sI}, 21
            v_add_u32 v{vo}, s{sI}, v{vo}
            s_bfe_u32 s{sOff}, s2, {rot[0]:#x}
            s_lshl_b32 s{sOff}, s{sOff}, {rot[1]}
            s_and_b32 s{sI}, s2, 3
            s_lshl_b32 s{sI}, s{sI}, {14 if kind == "AK" else 7}
            s_add_u32 s{sOff}, s{sOff}, s{sI}
            """)
        elif k == 0 and kind[0] == "A":
            P(f"""
            s_lshr_b32 s{sOff}, s2, 2
            s_lshl_b32 s{sOff}, s{sOff}, 21
            s_and_b32 s{sI}, s2, 3
            s_lshl_b32 s{sI}, s{sI}, {14 if kind == "AK" else 7}
            s_add_u32 s{sOff}, s{sOff}, s{sI}
            """)
        elif k and k % 4 == 0 and kind[0] == "B":
            P(f"s_add_u32 s{sOff}, s{sOff}, {0x20000 if kind == 'BK' else 0x14000}")
        elif k and kind[1] == "V":
            P(f"s_addk_i32 s{sOff}, 0x4000")
        elif k and k % 4 == 0:
            P(f"s_add_u32 s{sOff}, s{sOff}, 0x10000")
        if rot and kind[0] == "A" and k and k % 32 == 0: P(f"s_and_b32 s{sOff}, s{sOff}, 0x1fffff")
        wz = [z[2] for z in zones if z[0] <= i < z[1]]
        if wz and fcs['start'] is not None:
            P.cwait(sid[i-wz[0]], sid[i-WM], [f"s_cmp_gt_i32 s{sBoost}, {i - fcs['start']}"]); land[0] = max(land[0], i-WM)
        elif fcs['start'] is not None:
            if fc['neg'] is not None:
                P.cwait(sid[i-W+1], None, [f"s_cmp_ge_i32 s{sBoost}, {-fc['neg'] - fc['ns']*(i - fcs['start'])}"])
            P.cwait(sid[i-W], sid[i-WM], [f"s_cmp_gt_i32 s{sBoost}, {i - fcs['start']}"]); land[0] = max(land[0], i-WM)
        else:
            w0 = W0[1] if (W0 and i < W0[0]) else W
            if i >= w0: P.wait(sid[i-w0]); land[0] = max(land[0], i-w0)
        s = slots.pop(0); sslot[i] = s
        r, vo = {"BK": (rBK, vKo), "BV": (rBV, vVo), "AK": (rAK, vKo), "AV": (rAV, vVo)}[kind]
        imm = 0 if kind[1] == "V" else [0, 512, 256, 768][k & 3]
        o = f" offset:{imm}" if imm else ""
        sid[i] = P.vm(f"buffer_load_dwordx4 {a4(s)}, v{vo}, {srd(r)}, s{sOff} offen{o} nt")
    freed = []
    def release(i): freed.append(sslot[i])

    def xlane(op, x, t, steps):
        for st in steps:
            if st in ("x1", "x2", "r4", "r8"):
                d = {"x1": "quad_perm:[1,0,3,2]", "x2": "quad_perm:[2,3,0,1]", "r4": "row_ror:4", "r8": "row_ror:8"}[st]
                P(f"{op}_dpp v{x}, v{x}, v{x} {d} {FULL}")
            else:
                P(f"v_mov_b32 v{t}, v{x}")
                P(f"v_permlane{st[1:]}_swap_b32 v{x}, v{t}")
                P(f"{op} v{x}, v{x}, v{t}")
    def tagcheck(Q, tags, stag, mask):
        tags = list(tags)
        if isinstance(stag, list): pairs = [(tags[k], tags[k+4], stag[k]) for k in range(4)]
        else: pairs = [(a, b, stag) for a, b in zip(tags[0::2], tags[1::2])]
        for n, (a, b, tg) in enumerate(pairs):
            d = vT0 if n == 0 else (vT1 if n % 2 else vT2)
            Q(f"v_bitop3_b32 v{d}, v{a}, v{b}, {tg} bitop3:0x7e")
            if n and n % 2 == 0: Q(f"v_or3_b32 v{vT0}, v{vT0}, v{vT1}, v{vT2}")
            elif n and n == len(pairs)-1: Q(f"v_or_b32 v{vT0}, v{vT0}, v{vT1}")
        if mask: Q(f"v_and_b32 v{vT0}, {mask:#x}, v{vT0}")
        Q(f"v_cmp_ne_u32 vcc, 0, v{vT0}")
    def gather(name, loads, tags, stag, mask):
        ids = []
        def iss():
            if name+"g" in skip: return
            for n, t in enumerate(loads): ids.append(publish(f"{name}{n}", t.replace(" sc1", "")))
        def chk():
            if name+"g" in skip: return
            P.wait(*ids)
            tagcheck(P, tags, stag, mask)
            P(f"s_cbranch_vccnz L_slow_{name}")
            P.label(f"L_back_{name}")
            Q = Prog()
            Q.label(f"L_slow_{name}")
            Q(f"s_add_u32 s{sSpin}, s{sSpin}, 1")
            Q(f"s_cmp_gt_u32 s{sSpin}, 0x40000")
            Q(f"s_cbranch_scc1 L_back_{name}")
            for t in loads: Q.vm(t)
            Q.waitall()
            tagcheck(Q, tags, stag, mask)
            Q(f"s_cbranch_vccnz L_slow_{name}")
            Q(f"s_branch L_back_{name}")
            slow.append(Q)
        return iss, chk
    def publish(name, txt):
        P(f"s_cmp_lg_u32 s{sFar}, 0")
        P(f"s_cbranch_scc1 L_far_{name}")
        i = P.vm(txt)
        P.label(f"L_near_{name}")
        Q = Prog(); Q.label(f"L_far_{name}")
        Q.vm(txt.rstrip() + " sc1")
        Q(f"s_branch L_near_{name}"); slow.append(Q)
        return i
    def extract(D, dst, tau, t):
        rs = [r for r in range(4) if r != tau]
        src = D + tau
        for n, r in enumerate(rs):
            last = n == 2
            m = f"row_mask:0xf bank_mask:{1 << tau:#x}" if last else FULL
            P(f"v_add_f32_dpp v{dst if last else t}, v{D+r}, v{src} row_ror:{(4*(tau-r)) % 16} {m}")
            src = t
    def transp(dst, src, e):
        for q in range(4):
            P(f"v_perm_b32 v{dst+q}, v{src+4*(2*q+1)+(e>>1)}, v{src+4*(2*q)+(e>>1)}, s{sSel1 if e & 1 else sSel0}")
    def sum8(r, dst):
        P(f"""
        v_add_f32 v{r}, v{r}, v{r+1}
        v_add_f32 v{r+2}, v{r+2}, v{r+3}
        v_add_f32 v{r+4}, v{r+4}, v{r+5}
        v_add_f32 v{r+6}, v{r+6}, v{r+7}
        v_add_f32 v{r}, v{r}, v{r+2}
        v_add_f32 v{r+4}, v{r+4}, v{r+6}
        v_add_f32 v{dst}, v{r}, v{r+4}
        """)

    bg = []
    def B(at, fn, after=0): bg.append((at, fn, after))

    vSel = V.get(4); vL12, vPw, vPr, vL4 = [V.get() for _ in range(4)]
    def c_setup():
        if swap:
            P(f"s_bfe_u32 s{sKo}, s2, 0x10005")
            P(f"s_mul_i32 s{sKo}, s{sKo}, 40")
        P(f"""
        s_load_dword s{sTag}, {sp(rWS)}, 0
        s_load_dwordx2 {sp(rBV)}, s[0:1], 56
        s_load_dwordx2 {sp(rAK)}, s[0:1], 8
        s_load_dwordx2 {sp(rAV)}, s[0:1], 16
        s_load_dwordx2 {sp(rWO)}, s[0:1], s{sKo} offset:32
        s_load_dwordx2 {sp(rOUT)}, s[0:1], 80
        v_and_b32 v{vLane}, 63, v0
        v_mov_b32 v{vBig}, {BIG}
        """)
        if ipf and not ipf0: code_pf()
        desc(rBV, 1 << 26); desc(rAK, 1 << 27); desc(rAV, 1 << 27); desc(rWO, 3670016); desc(rOUT, 7168)
        P(f"""
        s_mov_b32 s{sSel0}, 0x05040100
        s_mov_b32 s{sSel1}, 0x07060302
        s_mov_b32 s{sC}, {CS:#x}
        s_mov_b32 s{sSpin}, 0
        v_mul_u32_u24 v{vL12}, 12, v{vLane}
        v_lshlrev_b32 v{vL4}, 2, v{vLane}
        v_lshlrev_b32 v{vPw}, 3, v0
        v_and_b32 v{vPr}, 3, v0
        v_bfe_u32 v{vT0}, v0, 3, 2
        v_lshl_add_u32 v{vPr}, v{vPr}, 2, v{vT0}
        v_lshrrev_b32 v{vT0}, 6, v0
        v_lshl_add_u32 v{vPr}, v{vT0}, 4, v{vPr}
        v_bfe_u32 v{vT0}, v0, 2, 1
        v_lshl_add_u32 v{vPr}, v{vPr}, 1, v{vT0}
        v_bfe_u32 v{vT0}, v0, 5, 1
        v_lshl_add_u32 v{vPr}, v{vT0}, 8, v{vPr}
        v_lshlrev_b32 v{vPr}, 2, v{vPr}
        v_lshrrev_b32 v{vT0}, 3, v0
        v_and_b32 v{vT1}, 7, v0
        v_lshlrev_b32 v{vVo}, 9, v{vT0}
        v_lshl_add_u32 v{vVo}, v{vT1}, 4, v{vVo}
        v_and_b32 v{vT0}, 1, v{vT0}
        v_mul_u32_u24 v{vT0}, 0x0202, v{vT0}
        v_add_u32 v{vT0}, 0x0100, v{vT0}
        v_or_b32 v{vT2}, 0x0c0c0000, v{vT0}
        v_lshlrev_b32 v{vT0}, 16, v{vT0}
        v_or_b32 v{vT0}, 0x0c0c, v{vT0}
        """)
        vcc(0xaaaaaaaa)
        P(f"v_cndmask_b32 v{vT0}, v{vT2}, v{vT0}, vcc")
        P(f"v_mov_b32 v{vT2}, 0x0c0c0c0c")
        for r in range(4):
            vcc(0x03030303 << (2*r)); P(f"v_cndmask_b32 v{vSel+r}, v{vT2}, v{vT0}, vcc")

    vQD = V.get(32, 4); vTB = [V.get(4, 4), V.get(4, 4)]
    def proj_write(dst, tmp):
        for e0 in (0, 4):
            for n in range(3):
                for e in range(e0, e0+4):
                    D = vQD + 4*e; tau = e & 3
                    r = [x for x in range(4) if x != tau][n]
                    m = f"row_mask:0xf bank_mask:{1 << tau:#x}" if n == 2 else FULL
                    P(f"v_add_f32_dpp v{dst+(e >> 2) if n == 2 else tmp+tau}, v{D+r}, v{tmp+tau if n else D+tau} row_ror:{(4*(tau-r)) % 16} {m}")
        P(f"ds_write_b64 v{vPw}, {v2(dst)} offset:{L_QRED}")
        P("s_waitcnt lgkmcnt(0)")
    def proj_read(r):
        P("s_barrier")
        P(f"ds_read2st64_b32 {v2(r)}, v{vPr} offset0:{L_QRED//256} offset1:{L_QRED//256+2}")
    def proj_sum(r):
        P("s_waitcnt lgkmcnt(0)")
        P(f"v_add_f32 v{r}, v{r}, v{r+1}")
        xlane("v_add_f32", r, r+1, ["p32"])
    vFl, vFs, vFd, vFt = vXo, vWQo, V.get(), V.get()
    sFm = S.get(2)
    def tag_setup():
        P(f"""
        ; hand-off tag of this launch: differs in every byte from the tag the previous launch left at ws[0]
        s_add_u32 s{sTag}, s{sTag}, 0x9e3779b9
        """)
    def fc_setup():
        P(f"""
        ; one line per (class, wave, checkpoint): a dword for each of the 32 workgroups of the class
        s_bfe_u32 s{sFC}, s2, 0x30003
        s_lshl2_add_u32 s{sFC}, s{sFC}, s{sWv}
        s_lshl_b32 s{sFC}, s{sFC}, 11
        s_add_u32 s{sFC}, s{sFC}, {WS_FC}
        s_and_b32 s{sI}, s2, 7
        s_lshr_b32 s{sBoost}, s2, 6
        s_lshl3_add_u32 s{sI}, s{sBoost}, s{sI}
        v_cmp_eq_u32 {sp(sFm)}, s{sI}, v{vLane}
        v_cndmask_b32 v{vFs}, v{vBig}, v{vL4}, {sp(sFm)}
        v_cmp_gt_u32 {sp(sFm)}, 32, v{vLane}
        v_cndmask_b32 v{vFl}, v{vBig}, v{vL4}, {sp(sFm)}
        """)
    hid = []; vHd = V.get()
    def c_hello2():
        P(f"v_and_b32 v{vH}, 0xe0, v{vH}")
        P(f"v_and_or_b32 v{vH}, v0, 31, v{vH}")
        hid.append(P.vm(f"global_load_ubyte v{vHd}, v{vH}, {sp(sDbg)}"))
    def c_q():
        P.wait(*idwq)
        stamp("wq")
        for e in range(8):
            transp(vTB[e & 1], vWQ, e)
            P(f"v_mfma_f32_16x16x32_bf16 {v4(vQD+4*e)}, {v4(vX)}, {v4(vTB[e & 1])}, 0")
        proj_write(vWQ, vWQ+4)
        return 'lgk'
    def c_q4():
        r = vWQ
        proj_read(r)
        tag_setup()
        P(f"""
        s_lshr_b32 s{sT0}, s2, 7
        s_lshl2_add_u32 s{sT0}, s{sT0}, s{sWv}
        s_lshl_b32 s{sT0}, s{sT0}, 7
        s_add_u32 s{sT0}, s{sT0}, s{sCB}
        s_lshl_b32 s{sT0}, s{sT0}, 7
        s_add_u32 s{sT0}, s{sT0}, {WS_Q}
        v_mov_b32 v{r+9}, s{sTag}
        """)
        proj_sum(r)
        if True:
            P.wait(*hid)
            P(f"""
            ; class-local hand-offs go through L2 only if all 32 workgroups of the class were seen to report this XCC
            v_cmp_ne_u32 vcc, v{vHd}, v{vH+1}
            s_mov_b32 s{sFar}, vcc_lo
            """)
            if forcefar: P(f"s_mov_b32 s{sFar}, 1")
        P(f"""
        v_mov_b32_dpp v{r+1}, v{r} quad_perm:[1,0,3,2] {FULL}
        v_cvt_pk_bf16_f32 v{r+8}, v{r}, v{r+1}
        s_mov_b32 exec_lo, 0x55555555
        s_mov_b32 exec_hi, 0
        """)
        publish("q", f"buffer_store_dwordx2 {v2(r+8)}, v{vL4}, {srd(rWS)}, s{sT0} offen")
        P("s_mov_b64 exec, -1")
        stamp("qpub")
        return 'tag'
    def c_tlb():
        P(f"""
        s_lshr_b32 s{sT0}, s2, 2
        s_lshl_b32 s{sT0}, s{sT0}, 21
        s_lshr_b32 s{sT1}, s{sCB}, 4
        s_mul_i32 s{sT1}, s{sT1}, {512*896}
        v_cmp_eq_u32 vcc, 0, v0
        v_cndmask_b32 v{vT0}, 2.0, v0, vcc
        s_waitcnt lgkmcnt(0)
        """)
        if "V" in tlb: P.vm(f"buffer_load_dword v{vTl}, v{vT0}, {srd(rBV)}, s{sOff} offen nt")
        if "K" in tlb: P.vm(f"buffer_load_dword v{vTl}, v{vT0}, {srd(rAK)}, s{sT0} offen nt")
        if "A" in tlb: P.vm(f"buffer_load_dword v{vTl}, v{vT0}, {srd(rAV)}, s{sT0} offen nt")
        if "W" in tlb: P.vm(f"buffer_load_dword v{vTl}, v{vT0}, {srd(rWO)}, s{sT1} offen nt")
        if "O" in tlb: P.vm(f"buffer_load_dword v{vTl}, v{vT0}, {srd(rOUT)}, 0 offen nt")
    S0 = max(W, fast) - 1
    B(S0, c_wsw); B(0, c_setup)
    if tlb: B(0, c_tlb)
    B(hello, c_hello2)
    B(len(first) - 2 + (W if len(first) > 1 else 0), c_q); B(hello + W + 1, c_q4, 1)

    vQA = V.get(32, 4); vQB = V.get(16, 4)
    vG = vQD
    vGo = V.get(2); sG = [S.get() for _ in range(8)]
    ql = [f"buffer_load_dwordx4 {v4(vG+8*u+4*hf)}, v{vGo}, {srd(rWS)}, s{sG[0]} offen offset:{512*u+16*hf} sc1" for u in range(2) for hf in range(2)]
    ql += [f"buffer_load_dwordx4 {v4(vG+16+8*u+4*hf)}, v{vGo+1}, {srd(rWS)}, s{sG[1]} offen offset:{512*u+16*hf} sc1" for u in range(2) for hf in range(2)]
    q_iss, q_chk = gather("q", ql, range(vG+1, vG+32, 2), f's{sTag}', None)
    def c_qg():
        P(f"""
        v_lshrrev_b32 v{vGo}, 2, v{vLane}
        v_lshlrev_b32 v{vGo}, 5, v{vGo}
        v_bfe_u32 v{vT0}, v{vLane}, 1, 1
        v_lshl_add_u32 v{vGo+1}, v{vT0}, 10, v{vGo}
        s_lshr_b32 s{sG[0]}, s2, 2
        s_lshl_b32 s{sG[0]}, s{sG[0]}, 10
        s_add_u32 s{sG[0]}, s{sG[0]}, {WS_Q}
        s_lshr_b32 s{sG[1]}, s2, 3
        s_lshl_b32 s{sG[1]}, s{sG[1]}, 11
        s_add_u32 s{sG[1]}, s{sG[1]}, {WS_Q + 4*16384}
        """)
        q_iss()
    def c_qb():
        q_chk(); stamp("qgot")
        for t in range(4):
            vcc(0x11111111 << t)
            for u in range(2):
                for q in range(4): P(f"v_cndmask_b32 v{vQA+16*u+4*t+q}, 0, v{vG+8*u+2*q}, vcc")
        for t in range(2):
            vcc(0x55555555 << t)
            for u in range(2):
                for q in range(4): P(f"v_cndmask_b32 v{vQB+8*u+4*t+q}, 0, v{vG+16+8*u+2*q}, vcc")
        return 'kok'
    B(qg, c_qg); B(0, c_qb, WM+1)

    vD = [V.get(4, 4) for _ in range(4)]
    vSB, vTb = V.get(), V.get()
    def c_bqk():
        P.wait(sid[15])
        D = vWQ
        for tau in range(4):
            for n in range(4):
                t, u = n & 1, n >> 1
                P(f"v_mfma_f32_16x16x32_bf16 {v4(D+4*tau)}, {a4(sslot[4*tau+n])}, {v4(vQB+8*u+4*t)}, {v4(D+4*tau) if n else 0}")
                release(4*tau+n)
        for tau in range(4): extract(D+4*tau, vSB, tau, vT0)
        P(f"""
        v_cvt_pk_bf16_f32 v{vSB}, v{vSB}, v{vSB}
        v_lshlrev_b32 v{vT0}, 4, v0
        v_lshrrev_b32 v{vTb}, v{vT0}, s{sTag}
        v_mov_b32 v{vT0}, 0xffff
        v_bfi_b32 v{vSB}, v{vT0}, v{vTb}, v{vSB}
        """)
    B(15+WM, c_bqk)

    vWO = V.get(32, 4); vWOo = V.get()
    def wo_load(j):
        if j == 4: P(f"s_addk_i32 s{sAux}, {4*896}")
        if "wo" not in skip:
            P.vm(f"buffer_load_dwordx4 {v4(vQD+4*j)}, v{vWOo}, {srd(rWO)}, s{sAux} offen offset:{896*(j & 3)} {woflag}")

    vSA = V.get(4, 4)
    pend = []
    def k_consume(i):
        k = i - 32
        unit, n = k >> 4, k & 15
        t, u, par = n >> 2, (n >> 1) & 1, n & 1
        D = vD[2*(unit & 1) + par]
        first = (t == 0 and u == 0)
        P(f"v_mfma_f32_16x16x32_bf16 {v4(D)}, {a4(sslot[i])}, {v4(vQA+16*u+4*t)}, {0 if first else v4(D)}")
        release(i)
        while pend and n >= 2:
            pend.pop(0)()
        if n == 15:
            for p_ in range(2):
                pend.append(lambda p_=p_, unit=unit: extract(vD[2*(unit & 1)+p_], vSA + 2*(unit >> 2) + p_, unit & 3, vXT))
            if k == 127:
                while pend: pend.pop(0)()
                c_spub()
    def c_spub():
        o = vD[0]
        P(f"""
        s_lshl2_add_u32 s{sI}, s2, s{sWv}
        s_mul_i32 s{sI}, s{sI}, 768
        s_add_u32 s{sI}, s{sI}, {WS_SC}
        v_cvt_pk_bf16_f32 v{o}, v{vSA}, v{vSA+1}
        v_cvt_pk_bf16_f32 v{o+1}, v{vSA+2}, v{vSA+3}
        v_mov_b32 v{o+2}, v{vSB}
        """)
        if "scs" not in skip: publish("sc", f"buffer_store_dwordx3 {v3(o)}, v{vL12}, {srd(rWS)}, s{sI} offen")
        stamp("scpub")
    vSG = vWQ
    vE = vQA; vEB = vQA + 16
    vP = V.get(8, 4); vPB = vQB + 4; vM, vL, vMB, vLB = vQB, vQB+1, vQB+2, vQB+3
    vWt, vWtB, vFF = vQB+8, vQB+9, vQB+10
    sl = [f"buffer_load_dwordx3 {v3(vSG+4*k)}, v{vL12}, {srd(rWS)}, s{sG[k]} offen sc1" for k in range(4)]
    sl += [f"buffer_load_dword v{vSG+16+k}, v{vL12}, {srd(rWS)}, s{sG[4+k]} offen offset:8 sc1" for k in range(4)]
    sbr = [vSG+4*k+2 for k in range(4)] + [vSG+16+k for k in range(4)]
    s_iss, s_chk = gather("sc", sl, sbr, f'v{vTb}', 0xffff)
    def c_sg():
        P(f"""
        s_and_b32 s{sT0}, s2, 0xfc
        s_lshl2_add_u32 s{sT0}, s{sT0}, s{sWv}
        s_xor_b32 s{sT1}, s{sT0}, 16
        s_mul_i32 s{sT0}, s{sT0}, 768
        s_mul_i32 s{sT1}, s{sT1}, 768
        s_add_u32 s{sG[0]}, s{sT0}, {WS_SC}
        s_add_u32 s{sG[4]}, s{sT1}, {WS_SC}
        """)
        for k in (1, 2, 3, 5, 6, 7): P(f"s_add_u32 s{sG[k]}, s{sG[k-1]}, 3072")
        s_iss()
    def c_sm1():
        s_chk(); stamp("scgot")
        for r in range(8):
            src = vSG + 4*(r >> 1) + (r & 1)
            P(f"v_lshlrev_b32 v{vE+2*r}, 16, v{src}")
            P(f"v_and_b32 v{vE+2*r+1}, 0xffff0000, v{src}")
        P(f"v_max3_f32 v{vM}, v{vE}, v{vE+1}, v{vE+2}")
        for r in range(3, 15, 2): P(f"v_max3_f32 v{vM}, v{vM}, v{vE+r}, v{vE+r+1}")
        P(f"v_max_f32 v{vM}, v{vM}, v{vE+15}")
        xlane("v_max_f32", vM, vT0, ["x1", "x2", "r4", "r8", "p16", "p32"])
        P(f"v_mul_f32 v{vM}, s{sC}, v{vM}")
        for r in range(16):
            P(f"v_fma_f32 v{vE+r}, v{vE+r}, s{sC}, -v{vM}")
            P(f"v_exp_f32 v{vE+r}, v{vE+r}")
        for r in range(8): P(f"v_cvt_pk_bf16_f32 v{vP+r}, v{vE+2*r}, v{vE+2*r+1}")
        return 'vok'
    def c_sm3():
        for r in range(8): P(f"v_add_f32 v{vE+r}, v{vE+r}, v{vE+8+r}")
        sum8(vE, vL)
        xlane("v_add_f32", vL, vT0, ["x1", "x2", "r4", "r8", "p16", "p32"])
    def c_sb1():
        for k in range(8): P(f"v_and_b32 v{vEB+k}, 0xffff0000, v{sbr[k]}")
        P(f"v_max3_f32 v{vMB}, v{vEB}, v{vEB+1}, v{vEB+2}")
        P(f"v_max3_f32 v{vMB}, v{vMB}, v{vEB+3}, v{vEB+4}")
        P(f"v_max3_f32 v{vMB}, v{vMB}, v{vEB+5}, v{vEB+6}")
        P(f"v_max_f32 v{vMB}, v{vMB}, v{vEB+7}")
        xlane("v_max_f32", vMB, vT0, ["x1", "r4", "r8", "p16", "p32"])
        P(f"v_mul_f32 v{vMB}, s{sC}, v{vMB}")
        for k in range(8):
            P(f"v_fma_f32 v{vEB+k}, v{vEB+k}, s{sC}, -v{vMB}")
            P(f"v_exp_f32 v{vEB+k}, v{vEB+k}")
        for k in range(4):
            P(f"v_mov_b32_dpp v{vT0}, v{vEB+k} quad_perm:[1,0,3,2] {FULL}")
            P(f"v_cvt_pk_bf16_f32 v{vPB+k}, v{vEB+k}, v{vT0}")
        sum8(vEB, vLB)
        xlane("v_add_f32", vLB, vT0, ["x1", "r4", "r8", "p16", "p32"])
        P(f"""
        v_bfe_u32 v{vT0}, v{vLane}, 1, 1
        v_lshlrev_b32 v{vT0}, 6, v{vT0}
        s_lshl_b32 s{sT0}, s{sWv}, 4
        v_add_u32 v{vT0}, s{sT0}, v{vT0}
        ds_write_b128 v{vT0}, {v4(vM)} offset:{L_ST}
        """)
    vBc = [V.get(), V.get()]
    vTC = [V.get(4, 4), V.get(4, 4)]
    def pvop(bc, dst, src, lane):
        P(f"v_mov_b32_dpp v{bc}, v{src} row_newbcast:{lane} {FULL}")
        for q in range(4): P(f"v_perm_b32 v{dst+q}, v{bc}, v{bc}, v{vSel+q}")
    def c_bpv():
        for k in range(4):
            for tau in range(4):
                i = 16 + 4*tau + k
                for hd in range(2): pvop(vT0+hd, vTC[hd], vPB+k, 4*tau + 2*hd)
                for hd in range(2):
                    P(f"v_mfma_f32_16x16x32_bf16 {v4(vD[2+hd])}, {a4(sslot[i])}, {v4(vTC[hd])}, {v4(vD[2+hd]) if i > 16 else 0}")
                release(i)
    assert vT1 == vT0 + 1
    vAw, vAr = V.get(), V.get()
    def c_sm4():
        s_ = vE
        P(f"""
        v_bfe_u32 v{vT0}, v{vLane}, 1, 1
        v_lshlrev_b32 v{vT0}, 6, v{vT0}
        s_waitcnt lgkmcnt(0)
        s_barrier
        """)
        for k in range(4): P(f"ds_read_b128 {v4(s_+4*k)}, v{vT0} offset:{L_ST+16*k}")
        P(f"""
        v_lshrrev_b32 v{vAw}, 4, v0
        v_lshlrev_b32 v{vAw}, 7, v{vAw}
        v_and_b32 v{vT1}, 7, v{vLane}
        v_lshl_add_u32 v{vAw}, v{vT1}, 4, v{vAw}
        v_and_b32 v{vAr}, 32, v{vLane}
        v_lshl_add_u32 v{vAr}, v{vT1}, 2, v{vAr}
        v_bfe_u32 v{vT1}, v{vLane}, 3, 2
        v_add_lshl_u32 v{vAr}, v{vAr}, v{vT1}, 2
        s_min_u32 s{sT0}, s{sWv}, 2
        s_lshl_b32 s{sT0}, s{sT0}, 11
        v_add_u32 v{vAr}, s{sT0}, v{vAr}
        v_mov_b32 v{vFF}, 0xff
        s_waitcnt lgkmcnt(0)
        """)
        for o, m, wt in ((0, vM, vWt), (2, vMB, vWtB)):
            P(f"v_max3_f32 v{vT0}, v{s_+o}, v{s_+4+o}, v{s_+8+o}")
            P(f"v_max_f32 v{vT0}, v{vT0}, v{s_+12+o}")
            for k in range(4):
                P(f"v_sub_f32 v{s_+4*k+o}, v{s_+4*k+o}, v{vT0}")
                P(f"v_exp_f32 v{s_+4*k+o}, v{s_+4*k+o}")
            P(f"v_sub_f32 v{wt}, v{m}, v{vT0}")
            P(f"v_exp_f32 v{wt}, v{wt}")
            P(f"v_mul_f32 v{vT1}, v{s_+o}, v{s_+o+1}")
            for k in range(1, 4): P(f"v_fmac_f32 v{vT1}, v{s_+4*k+o}, v{s_+4*k+o+1}")
            P(f"v_rcp_f32 v{vT1}, v{vT1}")
            P(f"v_mul_f32 v{wt}, v{wt}, v{vT1}")
    def red_write(lst):
        P("s_mov_b32 exec_lo, 0x00ff00ff")
        P("s_mov_b32 exec_hi, 0xff00ff00")
        for acc, reg in lst: P(f"ds_write_b128 v{vAw}, {v4(acc)} offset:{L_RED+2048*reg}")
        P("s_mov_b64 exec, -1")
    def c_br1():
        for hd in range(2):
            for q in range(4):
                P(f"v_mul_f32_dpp v{vD[2+hd]+q}, v{vWtB}, v{vD[2+hd]+q} quad_perm:[{2*hd},{2*hd},{2*hd},{2*hd}] {FULL}")
        red_write([(vD[2], 1), (vD[3], 2)])
        stamp("ybdone")
    def c_br2():
        r = vWQ
        P("s_waitcnt lgkmcnt(0)")
        P("s_barrier")
        for k in range(4): P(f"ds_read2st64_b32 {v2(r+2*k)}, v{vAr} offset0:{L_RED//256+2*k} offset1:{L_RED//256+2*k+1}")
        P(f"""
        v_add_u32 v{vT0}, 64, v0
        v_and_b32 v{vT0}, 128, v{vT0}
        v_cmp_ne_u32 vcc, 0, v{vT0}
        v_cndmask_b32 v{vT0}, v{vBig}, v{vL4}, vcc
        s_waitcnt lgkmcnt(0)
        """)
        sum8(r, r)
        P(f"v_bfi_b32 v{r}, v{vFF}, v{vTb}, v{r}")
        t = f"buffer_store_dword v{r}, v{vT0}, {srd(rWS)}, s{sOp} offen"
        if swap: P.vm(t + " sc1")
        else: publish("ob", t)
    vOg, vOo, vYo = vGo+1, vL12, vGo
    vY0, vY1, vBp = V.get(), V.get(), V.get()
    sOp, sOg, sYp, sYg, sOutO = sG[0:5]
    sYx, sOwn = rX, rX+2
    brx = "s_bfe_u32 s%d, s2, 0x10005" % sT0 if swap else "s_lshr_b32 s%d, s2, 7" % sT0
    def c_fin():
        if swap:
            P(f"""
            s_bfe_u32 s{sT0}, s2, 0x20003
            s_lshr_b32 s{sT1}, s2, 6
            s_lshl2_add_u32 s{sT0}, s{sT0}, s{sT1}
            s_and_b32 s{sT1}, s2, 7
            s_lshl4_add_u32 s{sCB}, s{sT1}, s{sT0}
            """)
        P(f"""
        ; o and y words carry byte (column&3) of the tag in their low byte
        v_lshlrev_b32 v{vT0}, 3, v0
        v_lshrrev_b32 v{vTb}, v{vT0}, s{sTag}
        s_lshr_b32 s{sG[5]}, s{sTag}, 8
        s_lshr_b32 s{sG[6]}, s{sTag}, 16
        s_lshr_b32 s{sG[7]}, s{sTag}, 24
        ; O table [x][slot: A, B kh0, B kh1][b][512] dwords
        s_bfe_u32 s{sT0}, s2, 0x30003
        s_mul_i32 s{sOg}, s{sT0}, {3*8192}
        s_add_u32 s{sOg}, s{sOg}, {WS_O}
        s_lshr_b32 s{sT0}, s2, 6
        s_lshl_b32 s{sT0}, s{sT0}, 11
        s_add_u32 s{sOp}, s{sOg}, s{sT0}
        ; wave 0: A row block t ; waves 1,2: slot 1+kh, row block 4*(wave-1)+s
        s_and_b32 s{sT0}, s2, 4
        s_lshl_b32 s{sT0}, s{sT0}, 3
        s_lshl2_add_u32 s{sT0}, s{sWv}, s{sT0}
        s_and_b32 s{sT1}, s2, 3
        s_add_u32 s{sT0}, s{sT0}, s{sT1}
        s_addk_i32 s{sT0}, 28
        s_and_b32 s{sT1}, s2, 7
        s_cmp_eq_u32 s{sWv}, 0
        s_cselect_b32 s{sT0}, s{sT1}, s{sT0}
        s_lshl_b32 s{sT0}, s{sT0}, 8
        s_add_u32 s{sOp}, s{sOp}, s{sT0}
        s_lshr_b32 s{sT0}, s{sCB}, 4
        s_mul_i32 s{sOg}, s{sT0}, {3*8192}
        s_add_u32 s{sOg}, s{sOg}, {WS_O}
        {brx}
        s_lshl_b32 s{sT0}, s{sT0}, 13
        s_add_u32 s{sOg}, s{sOg}, s{sT0}
        s_and_b32 s{sT1}, s{sCB}, 1
        s_lshl_b32 s{sT1}, s{sT1}, 10
        s_add_u32 s{sOg}, s{sOg}, s{sT1}
        v_bfe_u32 v{vT0}, v0, 1, 1
        v_mul_lo_u32 v{vOg}, v{vT0}, s{sT0}
        v_bfe_u32 v{vT0}, v0, 2, 2
        v_lshl_add_u32 v{vOg}, v{vT0}, 11, v{vOg}
        v_lshrrev_b32 v{vT0}, 4, v0
        v_lshl_add_u32 v{vOg}, v{vT0}, 6, v{vOg}
        v_and_b32 v{vT0}, 1, v0
        v_lshl_add_u32 v{vOg}, v{vT0}, 5, v{vOg}
        ; wo lane (row group tid>>3, 16-byte chunk tid&7)
        v_lshrrev_b32 v{vT0}, 3, v0
        v_mul_u32_u24 v{vWOo}, {8*896}, v{vT0}
        v_and_b32 v{vT0}, 7, v0
        v_lshl_add_u32 v{vWOo}, v{vT0}, 4, v{vWOo}
        s_and_b32 s{sT1}, s{sCB}, 15
        v_mov_b32 v{vT1}, s{sT1}
        v_cmp_gt_u32 vcc, 14, v{vT1}
        v_cndmask_b32 v{vWOo}, v{vBig}, v{vWOo}, vcc
        s_lshr_b32 s{sT0}, s{sCB}, 4
        s_and_b32 s{sAux}, s{sCB}, 1
        s_lshl1_add_u32 s{sAux}, s{sT0}, s{sAux}
        s_mul_i32 s{sAux}, s{sAux}, {256*896}
        s_and_b32 s{sT0}, s{sCB}, 14
        s_lshl_b32 s{sT0}, s{sT0}, 6
        s_add_u32 s{sAux}, s{sAux}, s{sT0}
        v_lshlrev_b32 v{vPw}, 4, v0
        v_and_b32 v{vPr}, 1, v0
        v_bfe_u32 v{vT1}, v0, 3, 3
        v_lshl_add_u32 v{vPr}, v{vPr}, 3, v{vT1}
        v_lshrrev_b32 v{vT1}, 6, v0
        v_lshl_add_u32 v{vPr}, v{vT1}, 4, v{vPr}
        v_bfe_u32 v{vT1}, v0, 1, 2
        v_lshl_add_u32 v{vPr}, v{vPr}, 2, v{vT1}
        v_lshlrev_b32 v{vPr}, 2, v{vPr}
        v_lshlrev_b32 v{vOo}, 3, v{vT0}
        v_bfe_u32 v{vT0}, v{vLane}, 4, 1
        v_lshl_add_u32 v{vOo}, v{vT0}, 2, v{vOo}
        v_lshrrev_b32 v{vT0}, 5, v{vLane}
        v_lshl_add_u32 v{vOo}, v{vT0}, 1, v{vOo}
        v_mul_u32_u24 v{vYo}, {8192-128}, v{vT0}
        v_add_u32 v{vYo}, v{vYo}, v{vL4}
        {brx}
        s_mul_i32 s{sT0}, s{sT0}, 14
        s_add_u32 s{sT0}, s{sT0}, s{sT1}
        s_lshl_b32 s{sOutO}, s{sT0}, 6
        s_mul_i32 s{sYp}, s{sWv}, 1792
        s_add_u32 s{sOutO}, s{sOutO}, s{sYp}
        s_lshl2_add_u32 s{sT0}, s{sT0}, s{sWv}
        s_lshl_b32 s{sT0}, s{sT0}, 11
        s_add_u32 s{sYg}, s{sT0}, {WS_Y}
        s_and_b32 s{sT1}, s{sCB}, 1
        s_mul_i32 s{sT0}, s{sT1}, {8192-1024}
        s_sub_u32 s{sYp}, s{sYg}, s{sT0}
        s_lshr_b32 s{sT0}, s{sCB}, 4
        s_lshl_b32 s{sI}, s{sT0}, 7
        s_add_u32 s{sYp}, s{sYp}, s{sI}
        ; block m is summed by its workgroup of class m&7, which keeps that half of its own result in registers
        s_lshl_b32 s{sI}, s{sT0}, 3
        s_lshl_b64 {sp(sOwn)}, 0xff, s{sI}
        s_lshl_b32 s{sI}, s{sT1}, 7
        v_lshl_add_u32 v{vBp}, v{vOo}, 1, s{sI}
        s_xor_b32 s{sI}, s{sT1}, 1
        s_lshl_b32 s{sI}, s{sI}, 10
        v_lshlrev_b32 v{vY0}, 4, v{vLane}
        v_add_u32 v{vY1}, 1024, v{vY0}
        v_add_u32 v{vT0}, s{sI}, v{vY0}
        v_cndmask_b32 v{vY0}, v{vY0}, v{vT0}, {sp(sOwn)}
        v_cndmask_b32 v{vY1}, v{vY1}, v{vT0}, {sp(sOwn)}
        s_sub_u32 s{sYx}, 0, s{sT1}
        s_not_b32 s{sYx+1}, s{sYx}
        s_and_b32 s{sT1}, s{sCB}, 7
        s_cmp_eq_u32 s{sT0}, s{sT1}
        s_cselect_b64 {sp(sYx)}, {sp(sYx)}, -1
        """)
    def c_re1(): hid.append(P.vm(f"global_load_ubyte v{vHd}, v{vH}, {sp(sDbg)} nt"))
    def c_re2():
        P.wait(hid[-1])
        P(f"""
        ; second look: a report that arrived after the first one no longer keeps the class off the L2 path
        v_cmp_ne_u32 vcc, v{vHd}, v{vH+1}
        s_mov_b32 s{sFar}, vcc_lo
        """)
        if forcefar: P(f"s_mov_b32 s{sFar}, 1")
    if recheck: B(recheck, c_re1); B(0, c_re2, WM+1)
    B(160+sg, c_sg); B(0, c_sm1, WM+1); B(0, c_sm3); B(0, c_sb1); B(0, c_bpv); B(0, c_sm4); B(0, c_br1); B(0, c_fin)
    def c_yw():
        if yw[1] == "c":
            P(f"""
            s_cmp_eq_u64 {sp(sYx)}, -1
            s_cselect_b32 s{sT0}, 0, 16
            v_lshlrev_b32 v{vT0}, 7, v{vLane}
            v_cmp_gt_u32 vcc, s{sT0}, v{vLane}
            v_cndmask_b32 v{vT0}, v{vBig}, v{vT0}, vcc
            """)
            P.vm(f"buffer_load_dword v{vTl+1}, v{vT0}, {srd(rWS)}, s{sYg} offen sc1")
        else:
            P.vm(f"buffer_load_dword v{vTl+1}, v{vYo}, {srd(rWS)}, s{sYp} offen sc1")
    if yw and yw[0] < bpub: B(yw[0], c_yw)
    def c_ow():
        P(f"v_cmp_gt_u32 vcc, 192, v0")
        P(f"v_cndmask_b32 v{vT0}, v{vBig}, v{vL4}, vcc")
        P.vm(f"buffer_load_dword v{vTl+1}, v{vT0}, {srd(rWS)}, s{sOp} offen sc1")
    if ow: B(ow, c_ow)
    if bpub: B(bpub, c_br2)
    if yw and yw[0] >= bpub: B(yw[0], c_yw)

    vAcc = vD[1]
    prepared = set()
    def v_prep(i):
        v = i - 160
        if i < NS and i not in prepared:
            pvop(vBc[v & 1], vTB[v & 1], vP + 2*(v & 3) + (v >> 6), (v >> 2) & 15); prepared.add(i)
    def v_consume(i):
        v = i - 160
        v_prep(i)
        P.wait(sid[i])
        P(f"v_mfma_f32_16x16x32_bf16 {v4(vAcc)}, {a4(sslot[i])}, {v4(vTB[v & 1])}, {v4(vAcc) if v else 0}")
        release(i)
        v_prep(i+1)

    xg = fc['xg'] if fc else 0
    if xg:
        vGs, vGl, vBs, vGd = [V.get() for _ in range(4)]; sBias = S.get()
        xcs = [cps[c] for c in fc['xc']]
        GL = 0x4000
    def fc_step(i):
        if i in cps:
            c = cps.index(i)
            if c == 0:
                assert st['tag']
                fc_setup()
                P(f"v_mov_b32 v{vFt}, s{sTag}")
                if fc['tab']:
                    m = min(fc['tab']); t = sum(((x - m)//2) << (4*k) for k, x in enumerate(fc['tab']))
                    P(f"""
                    s_lshl_b32 s{sTagQ}, s{sTagQ}, 2
                    s_lshr_b32 s{sTagQ}, {t:#x}, s{sTagQ}
                    s_and_b32 s{sTagQ}, s{sTagQ}, 15
                    s_lshl1_add_u32 s{sTagQ}, s{sTagQ}, {m}
                    """)
                if xg:
                    P(f"""
                    s_bfe_u32 s{sBias}, s2, 0x30003
                    s_lshl_b32 s{sBoost}, s{sBias}, 11
                    s_add_u32 s{sBoost}, s{sBoost}, {WS_G + GL}
                    v_mov_b32 v{vBs}, s{sBoost}
                    s_sub_u32 s{sBoost}, s{sBoost}, s{sFC}
                    v_writelane_b32 v{vFl}, s{sBoost}, 32
                    s_lshl2_add_u32 s{sI}, s{sI}, s{sWv}
                    s_cmp_eq_u32 s{sI}, {4*13+1}
                    s_cselect_b32 s{sFm}, 0xff, 0
                    s_mov_b32 s{sFm+1}, 0
                    v_lshlrev_b32 v{vGd}, 11, v{vLane}
                    v_add_u32 v{vGd}, {WS_G}, v{vGd}
                    v_cndmask_b32 v{vGl}, v{vBig}, v{vGd}, {sp(sFm)}
                    s_lshl_b32 s{sBias}, 1, s{sBias}
                    s_and_b32 s{sFm}, s{sFm}, s{sBias}
                    v_cndmask_b32 v{vGs}, v{vBig}, v{vGd}, {sp(sFm)}
                    v_cndmask_b32 v{vGl}, v{vGl}, v{vBig}, {sp(sFm)}
                    v_cndmask_b32 v{vBs}, v{vBig}, v{vBs}, {sp(sFm)}
                    s_mov_b32 s{sBias}, 0
                    """)
            look = xg and c - 1 in fc['xc']
            if xg and not look: P("s_mov_b32 exec_hi, 0")
            fcs['ids'][c] = P.vm(f"buffer_load_dword v{vFd}, v{vFl}, {srd(rWS)}, s{sFC} offen offset:{128*c}")
            if xg and not look: P("s_mov_b32 exec_hi, -1")
            P.vm(f"buffer_store_dword v{vFt}, v{vFs}, {srd(rWS)}, s{sFC} offen offset:{128*c}")
            if xg and i in xcs: P.vm(f"buffer_store_dword v{vFt}, v{vGs}, {srd(rWS)}, 0 offen offset:{128*c} sc1")
        if xg and i - fc['xd'] in xcs:
            fcs['g'] = P.vm(f"buffer_load_dword v{vGd}, v{vGl}, {srd(rWS)}, 0 offen offset:{128*cps.index(i - fc['xd'])} sc1")
        if xg and i - fc['xd'] - WM - 1 in xcs:
            c = cps.index(i - fc['xd'] - WM - 1)
            P.wait(fcs['g'])
            P(f"""
            v_cmp_eq_u32 {sp(sFm)}, v{vFt}, v{vGd}
            s_bcnt1_i32_b32 s{sFm}, s{sFm}
            v_add_u32 v{vGd}, s{sFm}, v{vFt}
            """)
            P.vm(f"buffer_store_dword v{vGd}, v{vBs}, {srd(rWS)}, 0 offen offset:{128*(c+1)}")
        if i - WM - 1 in cps:
            c = cps.index(i - WM - 1)
            P.wait(fcs['ids'].pop(c))
            pd = fc['Pd'] if not fc['cps'] else ((cps[c+1] - cps[c]) if c + 1 < len(cps) else NS - i)
            g = int(round(fc['gain'] * pd / 32 * 256))
            if fc['s3'] and i >= 150 and not fcs.get('s3'):
                fcs['s3'] = True
                P(f"""
                s_and_b32 s{sBoost}, s2, 3
                s_cmp_eq_u32 s{sBoost}, 3
                s_cselect_b32 s{sBoost}, {fc['s3']}, 0
                s_add_i32 s{sTagQ}, s{sTagQ}, s{sBoost}
                """)
            P(f"""
            v_cmp_eq_u32 {sp(sFm)}, v{vFt}, v{vFd}
            s_bcnt1_i32_b32 s{sBoost}, s{sFm}
            s_mul_i32 s{sBoost}, s{sBoost}, {g}
            s_sub_i32 s{sBoost}, s{sBoost}, {int(fc['r0'] * 32)*g}
            """)
            if xg and c - 1 in fc['xc']:
                P(f"""
                v_readlane_b32 s{sFm}, v{vFd}, 32
                s_sub_u32 s{sFm}, s{sFm}, s{sTag}
                s_mul_i32 s{sBias}, s{sFm}, {int(xg*256)}
                s_sub_i32 s{sBias}, s{sBias}, {int(xg*256*fc['x0'])}
                s_cmp_lt_u32 s{sFm}, 8
                s_cselect_b32 s{sBias}, s{sBias}, 0
                """)
            if xg and (fc['hold'] or c - 1 in fc['xc']): P(f"s_add_i32 s{sBoost}, s{sBoost}, s{sBias}")
            P(f"s_ashr_i32 s{sBoost}, s{sBoost}, 8")
            if fc['tab']: P(f"s_add_i32 s{sBoost}, s{sBoost}, s{sTagQ}")
            fcs['start'] = i + 1

    nk, nv = 32, 160
    jw = 0
    bi = 0; lastbg = -1
    cur = None
    def consume_one():
        nonlocal nk, nv
        if st['kok'] and nk < 160 and nk <= land[0]:
            k_consume(nk); nk += 1
        elif st['vok'] and nv <= land[0]:
            v_consume(nv); nv += 1
        else: return False
        slots.extend(freed); freed.clear()
        return True
    def splittable(items, n):
        full = True; open_br = False
        for it in items[:n]:
            if it[0] == 'i':
                t = it[1]
                if t.startswith(('s_mov_b32 exec', 's_mov_b64 exec')): full = t.endswith('-1') and 'b64' in t
                if t.startswith('s_cbranch_scc'): open_br = True
            elif it[0] == 'l': open_br = False
        last = items[n-1]
        if last[0] == 'i' and last[1].startswith(('s_cmp', 's_cbranch', 's_getpc')): return False
        return full and not open_br
    minfree = 99
    for i in range(NS):
        m0 = len(P.ir)
        issue(i); fc_step(i)
        if i + 1 == hpos: hello_store()
        if i + 1 == fast: block2()
        if i + 1 < len(first):
            for _ in range(first[i+1]): wq_load()
        minfree = min(minfree, len(slots))
        used = lambda: sum(cost(x) for x in P.ir[m0:])
        consume_one()
        lim = 10**9 if i == S0 else budget
        while True:
            if cur is None:
                if bi < len(bg) and bg[bi][0] <= i and lastbg + bg[bi][2] <= i and used() < lim:
                    keep = P.ir; P.ir = []
                    flag = bg[bi][1]()
                    cur = [P.ir, flag, list(freed), 0]; freed.clear(); P.ir = keep; bi += 1
                    if bg[bi-1][1] not in (c_setup, c_wsw, c_hello2, c_tlb): lim = min(lim, used() + budget) if i == S0 else lim
                else: break
            items = cur[0]; n = cur[3]; u = used()
            while n < len(items) and not (u >= lim and n > cur[3] and splittable(items, n)):
                u += cost(items[n]); n += 1
            P.ir.extend(items[cur[3]:n]); cur[3] = n
            if n < len(items): break
            if cur[1]: st[cur[1]] = True
            slots.extend(cur[2]); cur = None; lastbg = i
        c = 1
        while c < maxcatch and (used() < budget or len(slots) < 3) and consume_one(): c += 1
    assert bi == len(bg) and cur is None and nk == 160, (bi, len(bg), nk)
    stamp("lastiss")
    if spinif == "retry": P(f"s_mov_b32 s1, s{sSpin}")
    if tpad is not None:
        P("s_branch L_tail"); P.raw(f".p2align {tpad[0]}")
        if tpad[1]: P.raw(f".fill {tpad[1]}, 4, 0xbf800000")
        P.label("L_tail")
    while nv < NS:
        for _ in range(wolate):
            if jw < 8: wo_load(jw); jw += 1
        v_consume(nv); nv += 1
    while jw < 8: wo_load(jw); jw += 1
    stamp("vdone")

    r = vWQ
    for q in range(4): P(f"v_mul_f32 v{vAcc+q}, v{vAcc+q}, v{vWt}")
    red_write([(vAcc, 0)])
    P("s_waitcnt lgkmcnt(0)")
    P("s_barrier")
    P(f"s_cmp_lg_u32 s{sWv}, 0" if bpub else f"s_cmp_eq_u32 s{sWv}, 3")
    P("s_cbranch_scc1 L_near_o")
    for k in range(4): P(f"ds_read2st64_b32 {v2(r+2*k)}, v{vAr} offset0:{L_RED//256+2*k} offset1:{L_RED//256+2*k+1}")
    P("s_waitcnt lgkmcnt(0)")
    sum8(r, r)
    P(f"v_bfi_b32 v{r}, v{vFF}, v{vTb}, v{r}")
    t = f"buffer_store_dword v{r}, v{vL4}, {srd(rWS)}, s{sOp} offen"
    if swap: P.vm(t + " sc1"); P.label("L_near_o")
    else: publish("o", t)
    stamp("opub")
    P(f"""
    s_and_b32 s{sT0}, s{sCB}, 15
    s_cmp_ge_u32 s{sT0}, 14
    s_cbranch_scc1 L_done
    """)
    g = vQA; sMiss = sFm
    def ppoll(Q, name, lds, sets, dst, mid=None):
        n = len(lds); D = len(sets)
        for k in range(n): Q(lds[k].replace("@", v4(sets[0]+4*k)))
        Q(f"s_mov_b64 {sp(sMiss)}, -1")
        if mid: mid(Q, n)
        if D > 1:
            Q(f"s_not_b32 s{sT0}, s{sTag}")
            for b in sets[1:]: Q(f"v_mov_b32 v{b}, s{sT0}")
        Q.label(f"L_poll{name}")
        for d in list(range(1, D)) + [0]:
            b = sets[d]
            Q(f"s_waitcnt vmcnt({n*(D-1)})")
            tagcheck(Q, range(b, b+4*n), [f's{x}' for x in [sTag] + sG[5:8]], 0xff)
            Q("s_wqm_b64 vcc, vcc")
            Q(f"s_andn2_b64 exec, {sp(sMiss)}, vcc")
            for k in range(4*n): Q(f"v_and_b32 v{dst+k}, 0xffffff00, v{b+k}")
            Q(f"s_and_b64 {sp(sMiss)}, {sp(sMiss)}, vcc")
            Q(f"s_cbranch_scc0 L_got{name}")
            Q(f"s_mov_b64 exec, {sp(sMiss)}")
            for k in range(n): Q(lds[k].replace("@", v4(b+4*k)))
            Q("s_mov_b64 exec, -1")
        Q(f"s_add_u32 s{sSpin}, s{sSpin}, 1")
        Q(f"s_cmp_gt_u32 s{sSpin}, 0x20000")
        Q(f"s_cbranch_scc0 L_poll{name}")
        Q.label(f"L_got{name}")
        Q("s_mov_b64 exec, -1")
    def mid(Q, n):
        for q in range(4):
            Q(f"s_waitcnt vmcnt({n + 6 - 2*q})")
            for e in range(8):
                Q(f"v_perm_b32 v{vWO+4*e+q}, v{vQD+4*(2*q+1)+(e>>1)}, v{vQD+4*(2*q)+(e>>1)}, s{sSel1 if e & 1 else sSel0}")
    ppoll(P, "O", [f"buffer_load_dwordx4 @, v{vOg}, {srd(rWS)}, s{sOg} offen offset:{16*k} sc1" for k in range(2)], [g+8, g+16, g+24][:DO], g, mid)
    P("s_bitcmp1_b32 s2, 5" if swap else "s_cmp_ge_u32 s2, 128")
    P("s_cbranch_scc1 L_addB")
    P.label("L_proj")
    Q = Prog(); Q.label("L_addB")
    for k in range(8): Q(f"v_add_f32_dpp v{g+k}, v{g+k}, v{g+k} quad_perm:[2,3,0,1] {FULL}")
    Q("s_branch L_proj"); slow.insert(0, Q)
    stamp("ogot")
    for q in range(4): P(f"v_cvt_pk_bf16_f32 v{vX+q}, v{g+2*q}, v{g+2*q+1}")
    for e in range(8): P(f"v_mfma_f32_16x16x32_bf16 {v4(vQD+4*e)}, {v4(vX)}, {v4(vWO+4*e)}, 0")
    for e in range(8):
        h = e & 1
        P(f"v_add_f32_dpp v{r+(e >> 1)}, v{vQD+4*e+1-h}, v{vQD+4*e+h} row_ror:8 row_mask:0xf bank_mask:{0xc if h else 0x3:#x}")
    P(f"""
    ds_write_b128 v{vPw}, {v4(r)} offset:{L_QRED}
    s_waitcnt lgkmcnt(0)
    s_barrier
    ds_read2st64_b32 {v2(r)}, v{vPr} offset0:{L_QRED//256} offset1:{L_QRED//256+4}
    ds_read2st64_b32 {v2(r+2)}, v{vPr} offset0:{L_QRED//256+8} offset1:{L_QRED//256+12}
    s_cmp_eq_u64 {sp(sYx)}, -1
    s_waitcnt lgkmcnt(0)
    v_add_f32 v{r}, v{r}, v{r+1}
    v_add_f32 v{r+2}, v{r+2}, v{r+3}
    v_add_f32 v{r}, v{r}, v{r+2}
    v_bfi_b32 v{r+1}, v{vFF}, v{vTb}, v{r}
    s_mov_b64 exec, {sp(sYx)}
    """)
    t = f"buffer_store_dword v{r+1}, v{vYo}, {srd(rWS)}, s{sYp} offen"
    if swap: publish("y", t); P(f"s_cmp_eq_u64 {sp(sYx)}, -1")
    else: P.vm(t + " sc1")
    stamp("yapub")
    P("s_cbranch_scc1 L_done")
    P("s_mov_b64 exec, -1")
    f = vP
    def midy(Q, n): Q(f"ds_bpermute_b32 v{r+2}, v{vBp}, v{r}")
    ppoll(P, "Y", [f"buffer_load_dwordx4 @, v{vy}, {srd(rWS)}, s{sYg} offen sc1" for vy in (vY0, vY1)], [vWO+8*k for k in range(4)][:DY], f, midy)
    stamp("fgot")
    P(f"s_not_b64 exec, {sp(sOwn)}")
    for k in range(4): P(f"v_add_f32 v{f+k}, v{f+k}, v{f+4+k}")
    P("s_mov_b64 exec, -1")
    P(f"""
    v_permlane32_swap_b32 v{f}, v{f+1}
    v_permlane32_swap_b32 v{f+2}, v{f+3}
    v_add_f32 v{f}, v{f}, v{f+1}
    v_add_f32 v{f+2}, v{f+2}, v{f+3}
    v_permlane16_swap_b32 v{f}, v{f+2}
    v_add_f32 v{f}, v{f}, v{f+2}
    """)
    xlane("v_add_f32", f, None, ["r8"])
    P("s_waitcnt lgkmcnt(0)")
    P(f"v_add_f32 v{f}, v{f}, v{r+2}")
    P(f"""
    v_cvt_pk_bf16_f32 v{f}, v{f}, v{f}
    s_mov_b32 exec_lo, 0x00ff00ff
    s_mov_b32 exec_hi, 0x00ff00ff
    """)
    P.vm(f"buffer_store_short v{f}, v{vOo}, {srd(rOUT)}, s{sOutO} offen")
    P(f"""
    s_cmp_lg_u32 s{sOutO}, 0
    s_cbranch_scc1 L_done
    s_mov_b64 exec, 1
    v_mov_b32 v{f+2}, s{sTag}
    """)
    P.vm(f"buffer_store_dword v{f+2}, v{vOo}, {srd(rWS)}, 0 offen")
    P.label("L_done")
    if spin:
        if spinif == "far": P(f"s_cmp_eq_u32 s{sFar}, 0\ns_cbranch_scc1 L_end")
        if spinif == "retry": P(f"s_cmp_eq_u32 s1, 0\ns_cbranch_scc1 L_end")
        if probe:
            P(f"s_waitcnt lgkmcnt(0)\ns_sub_u32 s{sLim}, s{sPr}, s{sSt}\ns_mul_i32 s{sLim}, s{sLim}, {probe[1]}\ns_add_u32 s{sLim}, s{sLim}, {spin}")
            if len(probe) > 2: P(f"s_and_b32 s{sT0}, s2, {probe[2]}\ns_cmp_lg_u32 s{sT0}, {probe[3]}\ns_cbranch_scc1 L_end")
        P.label("L_spin")
        P(f"""
        s_memrealtime {sp(sNow)}
        s_waitcnt lgkmcnt(0)
        s_sub_u32 s{sNow}, s{sNow}, s{sSt}
        s_cmp_lt_u32 s{sNow}, {('s%d' % sLim) if probe else spin}
        s_cbranch_scc1 L_spin
        """)
    if diag:
        P("s_mov_b64 exec, -1")
        stamp("end")
        P(f"""
        s_waitcnt lgkmcnt(0) vmcnt(0)
        s_lshl_b32 s{sT0}, s2, 2
        s_add_u32 s{sT0}, s{sT0}, s{sWv}
        s_lshl_b32 s{sT0}, s{sT0}, 7
        s_add_u32 s{sT0}, s{sT0}, {WS_DIAG}
        v_mov_b32 v{vT1}, 0
        s_mov_b64 exec, 1
        """)
        def dump(sreg, off):
            P(f"v_mov_b32 v{vT0}, s{sreg}")
            P.vm(f"buffer_store_dword v{vT0}, v{vT1}, {srd(rWS)}, s{sT0} offen offset:{off}")
        for n, (name, rr) in enumerate(stamps): dump(rr, 4*n)
        dump(sSpin, 4*len(stamps)); dump(sFar, 116)
        P(f"s_getreg_b32 s{sT1}, hwreg(HW_REG_XCC_ID)"); dump(sT1, 120)
        P(f"s_getreg_b32 s{sT1}, hwreg(HW_REG_HW_ID)"); dump(sT1, 124)
    P.label("L_end")
    P("s_endpgm")

    body, stats = P.render()
    for Q in slow: body += Q.render()[0]
    body += 'L_code_end:\n'
    if top: body += f'.if {32*128*ipf} > L_code_end - L_pc\n.fill ({32*128*ipf} - (L_code_end - L_pc))/4, 4, 0xbf810000\n.endif\n'
    head = open("cdna_kernels/" + KNAME[:-7] + ".s.ref").read().split("; Override launch")[0]
    txt = head + f"; @launch grid=(256,1,1) block=(256,1,1) lds={L_TOTAL}\n" + HEADER
    txt += f'.amdgcn_target "amdgcn-amd-amdhsa--gfx950"\n.text\n.globl {KNAME}\n.p2align 8\n.type {KNAME},@function\n{KNAME}:\n'
    txt += body
    txt += f""".section .rodata,"a"
.p2align 6
.amdhsa_kernel {KNAME}
  .amdhsa_next_free_vgpr 512
  .amdhsa_next_free_sgpr 102
  .amdhsa_accum_offset 256
  .amdhsa_group_segment_fixed_size 0
  .amdhsa_kernarg_size 104
  .amdhsa_user_sgpr_count 2
  .amdhsa_user_sgpr_kernarg_segment_ptr 1
  .amdhsa_system_sgpr_workgroup_id_x 1
.end_amdhsa_kernel
"""
    ids = list(range(256))
    act = [L for L in ids if (((L >> 6) & 1)*8 + (L & 7)) < 14]
    fin = [L for L in act if ((L >> 3) & 7) == (L & 7)]
    if swap:
        mm = lambda L: 4*((L >> 3) & 3) + (L >> 6)
        act = [L for L in ids if mm(L) < 14]; fin = [L for L in act if (mm(L) & 7) == (L & 7)]
    return txt, dict(stats, vhw=V.hw, shw=S.hw, minfree=minfree, stamps=[n for n, _ in stamps], who=dict(ogot=act, yapub=act, fgot=fin))

if __name__ == "__main__":
    import json
    kw = json.loads(sys.argv[2]) if len(sys.argv) > 2 else {}
    t, s = gen(**kw)
    open(sys.argv[1], "w").write(t)
    s.pop('who')
    print(s, file=sys.stderr)
```

```python
import sys, math, struct
from asmlib import Prog, Alloc
KNAME = "concat_heads__mha_block_cached__sliding_block_cached__decode_kernel"

WS_Q, WS_SC, WS_O, WS_FC, WS_Y, WS_G, WS_DIAG = 0x10000, 0x40000, 0x100000, 0x130000, 0x140000, 0x180000, 0x800000
L_QRED, L_ST, L_RED, L_TOTAL = 0, 4096, 4352, 4352 + 3*2048
CS = struct.unpack('<I', struct.pack('<f', math.log2(math.e) / 16.0))[0]
BIG = 0x7ff00000
FULL = "row_mask:0xf bank_mask:0xf"

AUXCOST = [8]
def cost(it):
    if it[0] == 'vm': return 8 if ' a[' in it[1] or 'store' in it[1] else AUXCOST[0]
    if it[0] != 'i': return 2
    t = it[1]
    if t.startswith(';'): return 0
    if t.startswith('v_mfma'): return 16
    if t.startswith(('v_exp', 'v_log', 'v_rcp')): return 10
    if '_dpp' in t or t.startswith('v_permlane'): return 8
    if t.startswith('ds_'): return 12
    if t.startswith('s_waitcnt'): return 60
    if t.startswith('s_barrier'): return 30
    return 4

HEADER = """;
; One launch, 256 workgroups x 4 waves (one wave per SIMD); generated by a script, straight-line code.
; Logical id = b(2) | x(3) | t(3); the 32 workgroups with the same x form a class (A heads 2x, 2x+1, B kv head x).
;   1. q = x @ wq: every workgroup computes one 32-column block for the 4 batches and hands it to its class.
;   2. K streams (B window, then A), keys split over the workgroups of a (batch, head); MFMA scores, rounded to bf16.
;   3. scores are exchanged inside the (batch, x) group; every wave takes the true max / sum of its keys, the
;   4. V streams split along the head dimension (64 columns per workgroup); MFMA P.V gives normalised o slices.
;   5. o is written through for everyone while wo streams in; 224 workgroups multiply it with a 256 x 64 block
;      of wo (a class owns two column blocks of one branch); the 16 partial sums of an output are handed to
;      one wave of the class, added and stored as bf16.
; Hand-offs carry an in-band tag = ws[0] + constant (ws[0] is replaced by the tag at the end), so data of an
; earlier launch is never accepted. Class-local hand-offs stay in L2 only after all 32 workgroups of the class
; have been seen (through d_debug) on this XCC; otherwise every store and load of them is sc1.
"""

def gen(W=5, qg=33, sg=21, wflag="", woflag="nt", diag=False, skip=(), spin=0, forcefar=False, fc=None, budget=150, maxcatch=4,
        bpub=283, DO=1, DY=2, wolate=1, auxcost=70, wsl=32, first=(5, 4), hello=5, tpad=None, ipf=6, ipf0=True, tlb=None, qw=True, zones=(), rot=None, swap=True, ow=None, W0=(24, 6), yw=(287, 'p'), noO=True, fakeQ=0, xpos=0, hpos=0, spinif=None, probe=None, fast=3, top=True, recheck=120, prm=False, wopace=(6, None), opos=3, ypf=False, ytail=6, bsplit=232, btail=2):
    AUXCOST[0] = auxcost
    P = Prog()
    V = Alloc('v', 1, 256); S = Alloc('s', 3, 100)
    slots = list(range(64))
    def a4(s): return f"a[{4*s}:{4*s+3}]"
    def v4(r): return f"v[{r}:{r+3}]"
    def v3(r): return f"v[{r}:{r+2}]"
    def v2(r): return f"v[{r}:{r+1}]"
    def srd(r): return f"s[{r}:{r+3}]"
    def sp(r): return f"s[{r}:{r+1}]"
    def vcc(m): P(f"s_mov_b32 vcc_lo, {m:#x}"); P(f"s_mov_b32 vcc_hi, {m:#x}")
    slow = []
    stamps = []
    def stamp(name):
        if probe and name == probe[0]:
            P(f"s_memrealtime {sp(sPr)}")
        if diag:
            r = S.get(2); stamps.append((name, r)); P(f"s_memrealtime {sp(r)}")
    fcs = dict(start=None, ids={})
    if probe: sPr = S.get(2); sLim = S.get()
    st = dict(kok=False, vok=False, lgk=False, tag=False)
    if fc is not None:
        fc = dict(dict(first=16, Pd=32, dW=2, r0=0.6, gain=2.5, xg=0, x0=3.5, xd=1, xc=(1, 3, 5), hold=True, neg=None, ns=2, s3=10, cps=(16, 40, 72, 104, 136, 168, 196, 224, 248, 266), tab=(4, -8, 2, -8, 10, 0, 6, -4)), **fc)
        WM = W + fc['dW']
        cps = list(fc['cps'] or range(fc['first'], 288 - WM - 6, fc['Pd']))
    else:
        WM = W; cps = []

    rX, rWQ, rBK, rBV, rAK, rAV, rWO, rWS, rOUT = [S.get(4) for _ in range(9)]
    sT0, sT1, sI, sWv, sTag, sOff, sAux, sSel0, sSel1, sC, sSpin, sCB, sTagQ, sFar, sBoost, sFC, sKo = [S.get() for _ in range(17)]
    vLane, vT0, vT1, vT2, vBig = [V.get() for _ in range(5)]
    vXo, vWQo, vKo, vVo = [V.get() for _ in range(4)]
    def desc(r, sz):
        P(f"s_mov_b32 s{r+2}, {sz}"); P(f"s_mov_b32 s{r+3}, 0x20000")
    sDbg = S.get(2); vH = V.get(2)
    vXT = V.get()
    def code_pf_top():
        P("; the straight-line code below is read once: each workgroup pulls its share of it towards its L2 now")
        P(f"s_getpc_b64 {sp(rOUT+2)}")
        P.label("L_pc")
        P(f"""
        s_lshr_b32 s{sT0}, s2, 3
        s_mulk_i32 s{sT0}, {128*ipf}
        v_min_u32 v{vT1}, {ipf-1}, v0
        v_lshl_add_u32 v{vT1}, v{vT1}, 7, s{sT0}
        """)
        P.vm(f"global_load_dword v{vXT}, v{vT1}, {sp(rOUT+2)}")
    def code_pf():
        if top: return
        P(f"s_getpc_b64 {sp(rOUT+2)}")
        P.label("L_pc")
        P(f"""
        v_and_b32 v{vT0}, {31 if ipf > 1 else 255}, v{vH}
        v_min_u32 v{vT1}, {ipf-1}, v0
        v_mad_u32_u24 v{vT0}, v{vT0}, {ipf}, v{vT1}
        v_lshlrev_b32 v{vT0}, 7, v{vT0}
        v_min_u32 v{vT0}, L_code_end-L_pc-4, v{vT0}
        """)
        P.vm(f"global_load_dword v{vXT}, v{vT0}, {sp(rOUT+2)}")
    hl1 = f"""s_load_dwordx2 {sp(sDbg)}, s[0:1], 88
    s_getreg_b32 s{sTagQ}, hwreg(HW_REG_XCC_ID, 0, 4)
    ; byte (id&7)*32 + (id>>3) of the zeroed debug buffer reports this workgroup's XCC
    s_mul_i32 s{sT0}, s2, 0x101
    s_bfe_u32 s{sT0}, s{sT0}, 0x80003
    v_mov_b32 v{vH}, s{sT0}
    v_add_u32 v{vH+1}, s{sTagQ}, 1"""
    if fast:
        P("s_cmpk_ge_u32 s2, 256")
        P("s_cbranch_scc1 L_end")
        stamp("start")
        if spin:
            sSt = S.get(2); sNow = S.get(2); P(f"s_memrealtime {sp(sSt)}")
        P(f"""
        s_load_dwordx2 {sp(rBK)}, s[0:1], 48
        s_load_dwordx2 {sp(rWS)}, s[0:1], 96
        """)
        if top: code_pf_top()
        P(f"""
        ; logical id = b(2) | x(3) | t(3): workgroups that are 8 apart share x (L2 locality only)
        s_and_b32 s{sCB}, s2, 7
        s_lshr_b32 s{sI}, s2, 6
        s_lshl3_add_u32 s{sI}, s{sI}, s{sCB}
        s_bfe_u32 s{sT1}, s2, 0x30003
        s_lshl4_add_u32 s{sOff}, s{sI}, 12
        s_lshl3_add_u32 s{sOff}, s{sOff}, s{sT1}
        s_lshl_b32 s{sOff}, s{sOff}, 14
        s_lshl_b32 s{rBK+2}, 1, 26
        s_mov_b32 s{rBK+3}, 0x20000
        v_lshrrev_b32 v{vT0}, 6, v0
        v_lshrrev_b32 v{vT2}, 2, v0
        v_and_b32 v{vT1}, 3, v0
        v_and_b32 v{vXo}, 3, v{vT2}
        v_lshl_add_u32 v{vKo}, v{vT0}, 2, v{vXo}
        v_lshl_add_u32 v{vKo}, v{vKo}, 6, v{vT1}
        v_and_b32 v{vWQo}, 12, v{vT2}
        v_add_lshl_u32 v{vKo}, v{vKo}, v{vWQo}, 4
        s_waitcnt lgkmcnt(0)
        """)
        stamp("karg")
    def block2():
        P(f"""
        s_lshr_b32 s{sKo}, s2, 7
        s_mul_i32 s{sKo}, s{sKo}, 40
        s_load_dwordx2 {sp(rX)}, s[0:1], s{sKo}
        s_load_dwordx2 {sp(rWQ)}, s[0:1], s{sKo} offset:24
        {hl1}
        s_bfe_u32 s{sT0}, s2, 0x40003
        s_lshl4_add_u32 s{sCB}, s{sCB}, s{sT0}
        s_lshl_b32 s{sAux}, s{sCB}, 6
        s_lshl3_add_u32 s2, s{sI}, s{sT1}
        v_readfirstlane_b32 s{sWv}, v{vT0}
        v_lshlrev_b32 v{vWQo}, 12, v{vT2}
        v_add_lshl_u32 v{vWQo}, v{vWQo}, v{vT1}, 4
        v_cmp_gt_u32 vcc, 56, v{vT2}
        v_mad_u32_u24 v{vXo}, v{vXo}, 55, v{vT2}
        v_add_lshl_u32 v{vXo}, v{vXo}, v{vT1}, 4
        v_cndmask_b32 v{vXo}, 2.0, v{vXo}, vcc
        """)
        if ipf and ipf0: code_pf()
        desc(rX, 3584); desc(rWQ, 3670016)
        P("s_waitcnt lgkmcnt(0)")
        hello_store()
    if not fast:
        P("s_cmp_ge_u32 s2, 256")
        P("s_cbranch_scc1 L_end")
        stamp("start")
        if spin:
            sSt = S.get(2); sNow = S.get(2); P(f"s_memrealtime {sp(sSt)}")
        if top == "first": code_pf_top()
        P(f"""
        s_lshr_b32 s{sKo}, s2, 7
        s_mul_i32 s{sKo}, s{sKo}, 40
        s_load_dwordx2 {sp(rBK)}, s[0:1], 48
        s_load_dwordx2 {sp(rX)}, s[0:1], s{sKo}
        s_load_dwordx2 {sp(rWQ)}, s[0:1], s{sKo} offset:24
        s_load_dwordx2 {sp(rWS)}, s[0:1], 96
        {hl1}
        """)
        if probe and probe[0] == "kfast": P("s_waitcnt lgkmcnt(0)"); stamp("kfast")
        if ipf and ipf0: code_pf()
        P(f"""
        ; logical id = b(2) | x(3) | t(3): workgroups that are 8 apart share x (L2 locality only)
        s_and_b32 s{sT0}, s2, 7
        s_bfe_u32 s{sT1}, s2, 0x30003
        s_bfe_u32 s{sCB}, s2, 0x40003
        s_lshr_b32 s2, s2, 6
        s_lshl3_add_u32 s2, s2, s{sT0}
        s_lshl_b32 s{sOff}, s2, 21
        s_lshl3_add_u32 s2, s2, s{sT1}
        s_lshl4_add_u32 s{sCB}, s{sT0}, s{sCB}
        s_lshl_b32 s{sAux}, s{sCB}, 6
        v_lshrrev_b32 v{vT0}, 6, v0
        v_lshrrev_b32 v{vT2}, 2, v0
        v_readfirstlane_b32 s{sWv}, v{vT0}
        v_and_b32 v{vT1}, 3, v0
        v_lshlrev_b32 v{vWQo}, 12, v{vT2}
        v_add_lshl_u32 v{vWQo}, v{vWQo}, v{vT1}, 4
        v_cmp_gt_u32 vcc, 56, v{vT2}
        v_and_b32 v{vKo}, 3, v{vT2}
        v_mad_u32_u24 v{vXo}, v{vKo}, 55, v{vT2}
        v_add_lshl_u32 v{vXo}, v{vXo}, v{vT1}, 4
        v_lshl_add_u32 v{vKo}, v{vT0}, 2, v{vKo}
        v_cndmask_b32 v{vXo}, 2.0, v{vXo}, vcc
        v_lshl_add_u32 v{vKo}, v{vKo}, 6, v{vT1}
        v_and_b32 v{vT2}, 12, v{vT2}
        v_add_lshl_u32 v{vKo}, v{vKo}, v{vT2}, 4
        s_or_b32 s{sT0}, s{sT1}, 96
        s_lshl_b32 s{sT0}, s{sT0}, 14
        s_add_u32 s{sOff}, s{sOff}, s{sT0}
        """)
        if fakeQ:
            P(f"""
            v_lshrrev_b32 v{vT0}, 3, v0
            v_mul_u32_u24 v{vWQo}, {7*512}, v{vT0}
            v_and_b32 v{vT0}, 7, v0
            v_add_lshl_u32 v{vWQo}, v{vWQo}, v{vT0}, 4
            s_and_b32 s{sT0}, s{sCB}, 1
            s_mul_i32 s{sT0}, s{sT0}, {224*8192-64}
            s_add_u32 s{sAux}, s{sAux}, s{sT0}
            """)
        desc(rX, 3584); desc(rWQ, 3670016); desc(rBK, 1 << 26)
        if probe and probe[0] == "pre": stamp("pre")
        P("s_waitcnt lgkmcnt(0)")
        stamp("karg")
    def hello_store(): P.vm(f"global_store_byte v{vH}, v{vH+1}, {sp(sDbg)}")
    if hpos == 0 and not fast: hello_store()
    vX = V.get(4, 4); vWQ = V.get(32, 4)
    idwq = []
    def wq_load():
        n = len(idwq); j = n if n < xpos else n - 1
        if n == xpos: idwq.append(P.vm(f"buffer_load_dwordx4 {v4(vX)}, v{vXo}, {srd(rX)}, 0 offen"))
        elif "wq" in skip or (fakeQ and j == 7): idwq.append(None)
        else:
            if j: P(f"s_addk_i32 s{sAux}, 0x2000")
            idwq.append(P.vm(f"buffer_load_dwordx4 {v4(vWQ+4*j)}, v{vWQo}, {srd(rWQ)}, s{sAux} offen {wflag}"))
    first = [0]*fast + list(first or [9])
    assert sum(first) == 9
    for _ in range(first[0]): wq_load()
    vTl = V.get(2)
    def c_wsw():
        P(f"""
        s_mul_i32 s{sT0}, s2, 3072
        s_add_u32 s{sT0}, s{sT0}, {WS_SC}
        v_mov_b32 v{vTl}, s{sT0}
        """)
        if qw:
            P(f"""
            s_lshr_b32 s{sT0}, s2, 7
            s_lshl_b32 s{sT0}, s{sT0}, 9
            s_add_u32 s{sT0}, s{sT0}, s{sCB}
            s_lshl_b32 s{sT0}, s{sT0}, 7
            s_add_u32 s{sT0}, s{sT0}, {(WS_Q - 24*16384) & 0xffffffff}
            v_mul_u32_u24 v{vTl+1}, {16384-128}, v0
            v_add_u32 v{vTl+1}, s{sT0}, v{vTl+1}
            v_cmp_gt_u32 vcc, 24, v0
            v_cndmask_b32 v{vTl}, v{vTl+1}, v{vTl}, vcc
            v_cmp_gt_u32 vcc, 28, v0
            v_cndmask_b32 v{vTl}, 2.0, v{vTl}, vcc
            """)
        elif wsl > 24:
            P(f"""
            v_mul_u32_u24 v{vTl+1}, 768, v{vH}
            v_add_u32 v{vTl+1}, {BIG if noO else WS_O - 24*128}, v{vTl+1}
            v_cmp_gt_u32 vcc, 24, v0
            v_cndmask_b32 v{vTl}, v{vTl+1}, v{vTl}, vcc
            """)
        if wsl > 30:
            P(f"""
            v_lshlrev_b32 v{vTl+1}, 8, v{vH}
            v_add_u32 v{vTl+1}, {WS_FC - 30*128}, v{vTl+1}
            v_cmp_gt_u32 vcc, 30, v0
            v_cndmask_b32 v{vTl}, v{vTl+1}, v{vTl}, vcc
            """)
        if ypf:
            P(f"""
            s_bfe_u32 s{sT0}, s2, 0x10005
            s_lshl_b32 s{sT0}, s{sT0}, 14
            s_sub_u32 s{sT0}, {WS_Y - 32*128}, s{sT0}
            v_lshl_add_u32 v{vTl+1}, v{vH}, 10, s{sT0}
            v_cmp_gt_u32 vcc, 32, v0
            v_cndmask_b32 v{vTl}, v{vTl+1}, v{vTl}, vcc
            s_and_b32 s{sT0}, s2, 0x98
            s_cmp_eq_u32 s{sT0}, 0x98
            s_cselect_b32 s{sT0}, 32, 40
            """)
        P(f"""
        v_lshl_add_u32 v{vTl}, v0, 7, v{vTl}
        v_cmp_gt_u32 vcc, {'s%d' % sT0 if ypf else wsl}, v0
        v_cndmask_b32 v{vTl}, 2.0, v{vTl}, vcc
        """)
        desc(rWS, 1 << 24)
        P.vm(f"buffer_load_dword v{vTl+1}, v{vTl}, {srd(rWS)}, 0 offen sc1")
    stream = []
    for k in range(16): stream.append(("BK", k))
    for k in range(16): stream.append(("BV", k))
    for k in range(128): stream.append(("AK", k))
    for k in range(128): stream.append(("AV", k))
    NS = len(stream)
    sid = {}; sslot = {}; land = [-1]
    def issue(i):
        kind, k = stream[i]
        if k == 0 and kind == "BV":
            assert st['lgk']
            P(f"""
            s_and_b32 s{sI}, s2, 3
            s_mul_i32 s{sI}, s{sI}, {16384-128}
            s_add_u32 s{sI}, s{sI}, {3*131072}
            s_sub_u32 s{sOff}, s{sOff}, s{sI}
            """)
        elif k == 0 and kind[0] == "A" and rot:
            vo = vKo if kind == "AK" else vVo
            P(f"""
            s_lshr_b32 s{sI}, s2, 2
            s_lshl_b32 s{sI}, s{sI}, 21
            v_add_u32 v{vo}, s{sI}, v{vo}
            s_bfe_u32 s{sOff}, s2, {rot[0]:#x}
            s_lshl_b32 s{sOff}, s{sOff}, {rot[1]}
            s_and_b32 s{sI}, s2, 3
            s_lshl_b32 s{sI}, s{sI}, {14 if kind == "AK" else 7}
            s_add_u32 s{sOff}, s{sOff}, s{sI}
            """)
        elif k == 0 and kind[0] == "A":
            P(f"""
            s_lshr_b32 s{sOff}, s2, 2
            s_lshl_b32 s{sOff}, s{sOff}, 21
            s_and_b32 s{sI}, s2, 3
            s_lshl_b32 s{sI}, s{sI}, {14 if kind == "AK" else 7}
            s_add_u32 s{sOff}, s{sOff}, s{sI}
            """)
        elif k and k % 4 == 0 and kind[0] == "B":
            P(f"s_add_u32 s{sOff}, s{sOff}, {0x20000 if kind == 'BK' else 0x14000}")
        elif k and kind[1] == "V":
            P(f"s_addk_i32 s{sOff}, 0x4000")
        elif k and k % 4 == 0:
            P(f"s_add_u32 s{sOff}, s{sOff}, 0x10000")
        if rot and kind[0] == "A" and k and k % 32 == 0: P(f"s_and_b32 s{sOff}, s{sOff}, 0x1fffff")
        wz = [z[2] for z in zones if z[0] <= i < z[1]]
        if wz and fcs['start'] is not None:
            P.cwait(sid[i-wz[0]], sid[i-WM], [f"s_cmp_gt_i32 s{sBoost}, {i - fcs['start']}"]); land[0] = max(land[0], i-WM)
        elif fcs['start'] is not None:
            if fc['neg'] is not None:
                P.cwait(sid[i-W+1], None, [f"s_cmp_ge_i32 s{sBoost}, {-fc['neg'] - fc['ns']*(i - fcs['start'])}"])
            P.cwait(sid[i-W], sid[i-WM], [f"s_cmp_gt_i32 s{sBoost}, {i - fcs['start']}"]); land[0] = max(land[0], i-WM)
        else:
            w0 = W0[1] if (W0 and i < W0[0]) else W
            if i >= w0: P.wait(sid[i-w0]); land[0] = max(land[0], i-w0)
        s = slots.pop(0); sslot[i] = s
        r, vo = {"BK": (rBK, vKo), "BV": (rBV, vVo), "AK": (rAK, vKo), "AV": (rAV, vVo)}[kind]
        imm = 0 if kind[1] == "V" else [0, 512, 256, 768][k & 3]
        o = f" offset:{imm}" if imm else ""
        sid[i] = P.vm(f"buffer_load_dwordx4 {a4(s)}, v{vo}, {srd(r)}, s{sOff} offen{o} nt")
    freed = []
    def release(i): freed.append(sslot[i])

    def xlane(op, x, t, steps):
        for st in steps:
            if st in ("x1", "x2", "r4", "r8"):
                d = {"x1": "quad_perm:[1,0,3,2]", "x2": "quad_perm:[2,3,0,1]", "r4": "row_ror:4", "r8": "row_ror:8"}[st]
                P(f"{op}_dpp v{x}, v{x}, v{x} {d} {FULL}")
            else:
                P(f"v_mov_b32 v{t}, v{x}")
                P(f"v_permlane{st[1:]}_swap_b32 v{x}, v{t}")
                P(f"{op} v{x}, v{x}, v{t}")
    def tagcheck(Q, tags, stag, mask):
        tags = list(tags)
        if isinstance(stag, list): pairs = [(tags[k], tags[k+4], stag[k]) for k in range(4)]
        else: pairs = [(a, b, stag) for a, b in zip(tags[0::2], tags[1::2])]
        for n, (a, b, tg) in enumerate(pairs):
            d = vT0 if n == 0 else (vT1 if n % 2 else vT2)
            Q(f"v_bitop3_b32 v{d}, v{a}, v{b}, {tg} bitop3:0x7e")
            if n and n % 2 == 0: Q(f"v_or3_b32 v{vT0}, v{vT0}, v{vT1}, v{vT2}")
            elif n and n == len(pairs)-1: Q(f"v_or_b32 v{vT0}, v{vT0}, v{vT1}")
        if mask: Q(f"v_and_b32 v{vT0}, {mask:#x}, v{vT0}")
        Q(f"v_cmp_ne_u32 vcc, 0, v{vT0}")
    def gather(name, loads, tags, stag, mask):
        ids = []
        def iss():
            if name+"g" in skip: return
            for n, t in enumerate(loads): ids.append(publish(f"{name}{n}", t.replace(" sc1", "")))
        def chk():
            if name+"g" in skip: return
            P.wait(*ids)
            tagcheck(P, tags, stag, mask)
            P(f"s_cbranch_vccnz L_slow_{name}")
            P.label(f"L_back_{name}")
            Q = Prog()
            Q.label(f"L_slow_{name}")
            Q(f"s_add_u32 s{sSpin}, s{sSpin}, 1")
            Q(f"s_cmp_gt_u32 s{sSpin}, 0x40000")
            Q(f"s_cbranch_scc1 L_back_{name}")
            for t in loads: Q.vm(t)
            Q.waitall()
            tagcheck(Q, tags, stag, mask)
            Q(f"s_cbranch_vccnz L_slow_{name}")
            Q(f"s_branch L_back_{name}")
            slow.append(Q)
        return iss, chk
    def publish(name, txt):
        P(f"s_cmp_lg_u32 s{sFar}, 0")
        P(f"s_cbranch_scc1 L_far_{name}")
        i = P.vm(txt)
        P.label(f"L_near_{name}")
        Q = Prog(); Q.label(f"L_far_{name}")
        Q.vm(txt.rstrip() + " sc1")
        Q(f"s_branch L_near_{name}"); slow.append(Q)
        return i
    def extract(D, dst, tau, t):
        rs = [r for r in range(4) if r != tau]
        src = D + tau
        for n, r in enumerate(rs):
            last = n == 2
            m = f"row_mask:0xf bank_mask:{1 << tau:#x}" if last else FULL
            P(f"v_add_f32_dpp v{dst if last else t}, v{D+r}, v{src} row_ror:{(4*(tau-r)) % 16} {m}")
            src = t
    def transp(dst, src, e):
        for q in range(4):
            P(f"v_perm_b32 v{dst+q}, v{src+4*(2*q+1)+(e>>1)}, v{src+4*(2*q)+(e>>1)}, s{sSel1 if e & 1 else sSel0}")
    def sum8(r, dst):
        P(f"""
        v_add_f32 v{r}, v{r}, v{r+1}
        v_add_f32 v{r+2}, v{r+2}, v{r+3}
        v_add_f32 v{r+4}, v{r+4}, v{r+5}
        v_add_f32 v{r+6}, v{r+6}, v{r+7}
        v_add_f32 v{r}, v{r}, v{r+2}
        v_add_f32 v{r+4}, v{r+4}, v{r+6}
        v_add_f32 v{dst}, v{r}, v{r+4}
        """)

    bg = []
    def B(at, fn, after=0): bg.append((at, fn, after))

    vSel = V.get(4); vL12, vPw, vPr, vL4 = [V.get() for _ in range(4)]
    def c_setup():
        if swap:
            P(f"s_bfe_u32 s{sKo}, s2, 0x10005")
            P(f"s_mul_i32 s{sKo}, s{sKo}, 40")
        P(f"""
        s_load_dword s{sTag}, {sp(rWS)}, 0
        s_load_dwordx2 {sp(rBV)}, s[0:1], 56
        s_load_dwordx2 {sp(rAK)}, s[0:1], 8
        s_load_dwordx2 {sp(rAV)}, s[0:1], 16
        s_load_dwordx2 {sp(rWO)}, s[0:1], s{sKo} offset:32
        s_load_dwordx2 {sp(rOUT)}, s[0:1], 80
        v_and_b32 v{vLane}, 63, v0
        v_mov_b32 v{vBig}, {BIG}
        """)
        if ipf and not ipf0: code_pf()
        desc(rBV, 1 << 26); desc(rAK, 1 << 27); desc(rAV, 1 << 27); desc(rWO, 3670016); desc(rOUT, 7168)
        P(f"""
        s_mov_b32 s{sSel0}, 0x05040100
        s_mov_b32 s{sSel1}, 0x07060302
        s_mov_b32 s{sC}, {CS:#x}
        s_mov_b32 s{sSpin}, 0
        v_mul_u32_u24 v{vL12}, 12, v{vLane}
        v_lshlrev_b32 v{vL4}, 2, v{vLane}
        v_lshlrev_b32 v{vPw}, 3, v0
        v_and_b32 v{vPr}, 3, v0
        v_bfe_u32 v{vT0}, v0, 3, 2
        v_lshl_add_u32 v{vPr}, v{vPr}, 2, v{vT0}
        v_lshrrev_b32 v{vT0}, 6, v0
        v_lshl_add_u32 v{vPr}, v{vT0}, 4, v{vPr}
        v_bfe_u32 v{vT0}, v0, 2, 1
        v_lshl_add_u32 v{vPr}, v{vPr}, 1, v{vT0}
        v_bfe_u32 v{vT0}, v0, 5, 1
        v_lshl_add_u32 v{vPr}, v{vT0}, 8, v{vPr}
        v_lshlrev_b32 v{vPr}, 2, v{vPr}
        v_lshrrev_b32 v{vT0}, 3, v0
        v_and_b32 v{vT1}, 7, v0
        v_lshlrev_b32 v{vVo}, 9, v{vT0}
        v_lshl_add_u32 v{vVo}, v{vT1}, 4, v{vVo}
        v_and_b32 v{vT0}, 1, v{vT0}
        v_mul_u32_u24 v{vT0}, 0x0202, v{vT0}
        v_add_u32 v{vT0}, 0x0100, v{vT0}
        v_or_b32 v{vT2}, 0x0c0c0000, v{vT0}
        v_lshlrev_b32 v{vT0}, 16, v{vT0}
        v_or_b32 v{vT0}, 0x0c0c, v{vT0}
        """)
        vcc(0xaaaaaaaa)
        P(f"v_cndmask_b32 v{vT0}, v{vT2}, v{vT0}, vcc")
        P(f"v_mov_b32 v{vT2}, 0x0c0c0c0c")
        for r in range(4):
            vcc(0x03030303 << (2*r)); P(f"v_cndmask_b32 v{vSel+r}, v{vT2}, v{vT0}, vcc")

    vQD = V.get(32, 4); vTB = [V.get(4, 4), V.get(4, 4)]
    def proj_write(dst, tmp):
        for e0 in (0, 4):
            for n in range(3):
                for e in range(e0, e0+4):
                    D = vQD + 4*e; tau = e & 3
                    r = [x for x in range(4) if x != tau][n]
                    m = f"row_mask:0xf bank_mask:{1 << tau:#x}" if n == 2 else FULL
                    P(f"v_add_f32_dpp v{dst+(e >> 2) if n == 2 else tmp+tau}, v{D+r}, v{tmp+tau if n else D+tau} row_ror:{(4*(tau-r)) % 16} {m}")
        P(f"ds_write_b64 v{vPw}, {v2(dst)} offset:{L_QRED}")
        P("s_waitcnt lgkmcnt(0)")
    def proj_read(r):
        P("s_barrier")
        P(f"ds_read2st64_b32 {v2(r)}, v{vPr} offset0:{L_QRED//256} offset1:{L_QRED//256+2}")
    def proj_sum(r):
        P("s_waitcnt lgkmcnt(0)")
        P(f"v_add_f32 v{r}, v{r}, v{r+1}")
        xlane("v_add_f32", r, r+1, ["p32"])
    vFl, vFs, vFd, vFt = vXo, vWQo, V.get(), V.get()
    sFm = S.get(2)
    def tag_setup():
        P(f"""
        ; hand-off tag of this launch: differs in every byte from the tag the previous launch left at ws[0]
        s_add_u32 s{sTag}, s{sTag}, 0x9e3779b9
        """)
    def fc_setup():
        P(f"""
        ; one line per (class, wave, checkpoint): a dword for each of the 32 workgroups of the class
        s_bfe_u32 s{sFC}, s2, 0x30003
        s_lshl2_add_u32 s{sFC}, s{sFC}, s{sWv}
        s_lshl_b32 s{sFC}, s{sFC}, 11
        s_add_u32 s{sFC}, s{sFC}, {WS_FC}
        s_and_b32 s{sI}, s2, 7
        s_lshr_b32 s{sBoost}, s2, 6
        s_lshl3_add_u32 s{sI}, s{sBoost}, s{sI}
        v_cmp_eq_u32 {sp(sFm)}, s{sI}, v{vLane}
        v_cndmask_b32 v{vFs}, v{vBig}, v{vL4}, {sp(sFm)}
        v_cmp_gt_u32 {sp(sFm)}, 32, v{vLane}
        v_cndmask_b32 v{vFl}, v{vBig}, v{vL4}, {sp(sFm)}
        """)
    hid = []; vHd = V.get()
    def c_hello2():
        P(f"v_and_b32 v{vH}, 0xe0, v{vH}")
        P(f"v_and_or_b32 v{vH}, v0, 31, v{vH}")
        hid.append(P.vm(f"global_load_ubyte v{vHd}, v{vH}, {sp(sDbg)}"))
    def c_q():
        P.wait(*idwq)
        stamp("wq")
        for e in range(8):
            transp(vTB[e & 1], vWQ, e)
            P(f"v_mfma_f32_16x16x32_bf16 {v4(vQD+4*e)}, {v4(vX)}, {v4(vTB[e & 1])}, 0")
        proj_write(vWQ, vWQ+4)
        return 'lgk'
    def c_q4():
        r = vWQ
        proj_read(r)
        tag_setup()
        P(f"""
        s_lshr_b32 s{sT0}, s2, 7
        s_lshl2_add_u32 s{sT0}, s{sT0}, s{sWv}
        s_lshl_b32 s{sT0}, s{sT0}, 7
        s_add_u32 s{sT0}, s{sT0}, s{sCB}
        s_lshl_b32 s{sT0}, s{sT0}, 7
        s_add_u32 s{sT0}, s{sT0}, {WS_Q}
        v_mov_b32 v{r+9}, s{sTag}
        """)
        proj_sum(r)
        if True:
            P.wait(*hid)
            P(f"""
            ; class-local hand-offs go through L2 only if all 32 workgroups of the class were seen to report this XCC
            v_cmp_ne_u32 vcc, v{vHd}, v{vH+1}
            s_mov_b32 s{sFar}, vcc_lo
            """)
            if forcefar: P(f"s_mov_b32 s{sFar}, 1")
        P(f"""
        v_mov_b32_dpp v{r+1}, v{r} quad_perm:[1,0,3,2] {FULL}
        v_cvt_pk_bf16_f32 v{r+8}, v{r}, v{r+1}
        s_mov_b32 exec_lo, 0x55555555
        s_mov_b32 exec_hi, 0
        """)
        publish("q", f"buffer_store_dwordx2 {v2(r+8)}, v{vL4}, {srd(rWS)}, s{sT0} offen")
        P("s_mov_b64 exec, -1")
        stamp("qpub")
        return 'tag'
    def c_tlb():
        P(f"""
        s_lshr_b32 s{sT0}, s2, 2
        s_lshl_b32 s{sT0}, s{sT0}, 21
        s_lshr_b32 s{sT1}, s{sCB}, 4
        s_mul_i32 s{sT1}, s{sT1}, {512*896}
        v_cmp_eq_u32 vcc, 0, v0
        v_cndmask_b32 v{vT0}, 2.0, v0, vcc
        s_waitcnt lgkmcnt(0)
        """)
        if "V" in tlb: P.vm(f"buffer_load_dword v{vTl}, v{vT0}, {srd(rBV)}, s{sOff} offen nt")
        if "K" in tlb: P.vm(f"buffer_load_dword v{vTl}, v{vT0}, {srd(rAK)}, s{sT0} offen nt")
        if "A" in tlb: P.vm(f"buffer_load_dword v{vTl}, v{vT0}, {srd(rAV)}, s{sT0} offen nt")
        if "W" in tlb: P.vm(f"buffer_load_dword v{vTl}, v{vT0}, {srd(rWO)}, s{sT1} offen nt")
        if "O" in tlb: P.vm(f"buffer_load_dword v{vTl}, v{vT0}, {srd(rOUT)}, 0 offen nt")
    S0 = max(W, fast) - 1
    B(S0, c_wsw); B(0, c_setup)
    if tlb: B(0, c_tlb)
    B(hello, c_hello2)
    B(len(first) - 2 + (W if len(first) > 1 else 0), c_q); B(hello + W + 1, c_q4, 1)

    vQA = V.get(32, 4); vQB = V.get(16, 4)
    vG = vQD
    vGo = V.get(2); sG = [S.get() for _ in range(8)]
    ql = [f"buffer_load_dwordx4 {v4(vG+8*u+4*hf)}, v{vGo}, {srd(rWS)}, s{sG[0]} offen offset:{512*u+16*hf} sc1" for u in range(2) for hf in range(2)]
    ql += [f"buffer_load_dwordx4 {v4(vG+16+8*u+4*hf)}, v{vGo+1}, {srd(rWS)}, s{sG[1]} offen offset:{512*u+16*hf} sc1" for u in range(2) for hf in range(2)]
    q_iss, q_chk = gather("q", ql, range(vG+1, vG+32, 2), f's{sTag}', None)
    def c_qg():
        P(f"""
        v_lshrrev_b32 v{vGo}, 2, v{vLane}
        v_lshlrev_b32 v{vGo}, 5, v{vGo}
        v_bfe_u32 v{vT0}, v{vLane}, 1, 1
        v_lshl_add_u32 v{vGo+1}, v{vT0}, 10, v{vGo}
        s_lshr_b32 s{sG[0]}, s2, 2
        s_lshl_b32 s{sG[0]}, s{sG[0]}, 10
        s_add_u32 s{sG[0]}, s{sG[0]}, {WS_Q}
        s_lshr_b32 s{sG[1]}, s2, 3
        s_lshl_b32 s{sG[1]}, s{sG[1]}, 11
        s_add_u32 s{sG[1]}, s{sG[1]}, {WS_Q + 4*16384}
        """)
        q_iss()
    def c_qb():
        q_chk(); stamp("qgot")
        if spinif == "nq": P(f"s_mov_b32 s1, s{sSpin}")
        if spinif == "ns": P(f"s_mov_b32 s{sSpin}, 0")
        if spinif == "far1": P(f"s_min_u32 s1, s{sFar}, 20")
        for t in range(4):
            vcc(0x11111111 << t)
            for u in range(2):
                for q in range(4): P(f"v_cndmask_b32 v{vQA+16*u+4*t+q}, 0, v{vG+8*u+2*q}, vcc")
        for t in range(2):
            vcc(0x55555555 << t)
            for u in range(2):
                for q in range(4): P(f"v_cndmask_b32 v{vQB+8*u+4*t+q}, 0, v{vG+16+8*u+2*q}, vcc")
        return 'kok'
    B(qg, c_qg); B(0, c_qb, WM+1)

    vD = [V.get(4, 4) for _ in range(4)]
    vSB, vTb = V.get(), V.get()
    def c_bqk():
        P.wait(sid[15])
        D = vWQ
        for tau in range(4):
            for n in range(4):
                t, u = n & 1, n >> 1
                P(f"v_mfma_f32_16x16x32_bf16 {v4(D+4*tau)}, {a4(sslot[4*tau+n])}, {v4(vQB+8*u+4*t)}, {v4(D+4*tau) if n else 0}")
                release(4*tau+n)
        for tau in range(4): extract(D+4*tau, vSB, tau, vT0)
        P(f"""
        v_cvt_pk_bf16_f32 v{vSB}, v{vSB}, v{vSB}
        v_lshlrev_b32 v{vT0}, 4, v0
        v_lshrrev_b32 v{vTb}, v{vT0}, s{sTag}
        v_mov_b32 v{vT0}, 0xffff
        v_bfi_b32 v{vSB}, v{vT0}, v{vTb}, v{vSB}
        """)
    B(15+WM, c_bqk)

    vWO = V.get(32, 4); vWOo = V.get()
    def wo_load(j):
        if j == 4: P(f"s_addk_i32 s{sAux}, {4*896}")
        if "wo" not in skip:
            P.vm(f"buffer_load_dwordx4 {v4(vQD+4*j)}, v{vWOo}, {srd(rWO)}, s{sAux} offen offset:{896*(j & 3)} {woflag}")

    vSA = V.get(4, 4)
    pend = []
    def k_consume(i):
        k = i - 32
        unit, n = k >> 4, k & 15
        t, u, par = n >> 2, (n >> 1) & 1, n & 1
        D = vD[2*(unit & 1) + par]
        first = (t == 0 and u == 0)
        P(f"v_mfma_f32_16x16x32_bf16 {v4(D)}, {a4(sslot[i])}, {v4(vQA+16*u+4*t)}, {0 if first else v4(D)}")
        release(i)
        while pend and n >= 2:
            pend.pop(0)()
        if n == 15:
            for p_ in range(2):
                pend.append(lambda p_=p_, unit=unit: extract(vD[2*(unit & 1)+p_], vSA + 2*(unit >> 2) + p_, unit & 3, vXT))
            if k == 127:
                while pend: pend.pop(0)()
                c_spub()
    def c_spub():
        o = vD[0]
        P(f"""
        s_lshl2_add_u32 s{sI}, s2, s{sWv}
        s_mul_i32 s{sI}, s{sI}, 768
        s_add_u32 s{sI}, s{sI}, {WS_SC}
        v_cvt_pk_bf16_f32 v{o}, v{vSA}, v{vSA+1}
        v_cvt_pk_bf16_f32 v{o+1}, v{vSA+2}, v{vSA+3}
        v_mov_b32 v{o+2}, v{vSB}
        """)
        if "scs" not in skip: publish("sc", f"buffer_store_dwordx3 {v3(o)}, v{vL12}, {srd(rWS)}, s{sI} offen")
        stamp("scpub")
    vSG = vWQ
    vE = vQA; vEB = vQA + 16
    vP = V.get(8, 4); vPB = vQB + 4; vM, vL, vMB, vLB = vQB, vQB+1, vQB+2, vQB+3
    vWt, vWtB, vFF = vQB+8, vQB+9, vQB+10
    sl = [f"buffer_load_dwordx3 {v3(vSG+4*k)}, v{vL12}, {srd(rWS)}, s{sG[k]} offen sc1" for k in range(4)]
    sl += [f"buffer_load_dword v{vSG+16+k}, v{vL12}, {srd(rWS)}, s{sG[4+k]} offen offset:8 sc1" for k in range(4)]
    sbr = [vSG+4*k+2 for k in range(4)] + [vSG+16+k for k in range(4)]
    s_iss, s_chk = gather("sc", sl, sbr, f'v{vTb}', 0xffff)
    def c_sg():
        P(f"""
        s_and_b32 s{sT0}, s2, 0xfc
        s_lshl2_add_u32 s{sT0}, s{sT0}, s{sWv}
        s_xor_b32 s{sT1}, s{sT0}, 16
        s_mul_i32 s{sT0}, s{sT0}, 768
        s_mul_i32 s{sT1}, s{sT1}, 768
        s_add_u32 s{sG[0]}, s{sT0}, {WS_SC}
        s_add_u32 s{sG[4]}, s{sT1}, {WS_SC}
        """)
        for k in (1, 2, 3, 5, 6, 7): P(f"s_add_u32 s{sG[k]}, s{sG[k-1]}, 3072")
        s_iss()
    def c_sm1():
        s_chk(); stamp("scgot")
        for r in range(8):
            src = vSG + 4*(r >> 1) + (r & 1)
            P(f"v_lshlrev_b32 v{vE+2*r}, 16, v{src}")
            P(f"v_and_b32 v{vE+2*r+1}, 0xffff0000, v{src}")
        P(f"v_max3_f32 v{vM}, v{vE}, v{vE+1}, v{vE+2}")
        for r in range(3, 15, 2): P(f"v_max3_f32 v{vM}, v{vM}, v{vE+r}, v{vE+r+1}")
        P(f"v_max_f32 v{vM}, v{vM}, v{vE+15}")
        xlane("v_max_f32", vM, vT0, ["x1", "x2", "r4", "r8", "p16", "p32"])
        P(f"v_mul_f32 v{vM}, s{sC}, v{vM}")
        for r in range(16):
            P(f"v_fma_f32 v{vE+r}, v{vE+r}, s{sC}, -v{vM}")
            P(f"v_exp_f32 v{vE+r}, v{vE+r}")
        for r in range(8): P(f"v_cvt_pk_bf16_f32 v{vP+r}, v{vE+2*r}, v{vE+2*r+1}")
        return 'vok'
    def c_sm3():
        for r in range(8): P(f"v_add_f32 v{vE+r}, v{vE+r}, v{vE+8+r}")
        sum8(vE, vL)
        xlane("v_add_f32", vL, vT0, ["x1", "x2", "r4", "r8", "p16", "p32"])
    def c_sb1():
        for k in range(8): P(f"v_and_b32 v{vEB+k}, 0xffff0000, v{sbr[k]}")
        P(f"v_max3_f32 v{vMB}, v{vEB}, v{vEB+1}, v{vEB+2}")
        P(f"v_max3_f32 v{vMB}, v{vMB}, v{vEB+3}, v{vEB+4}")
        P(f"v_max3_f32 v{vMB}, v{vMB}, v{vEB+5}, v{vEB+6}")
        P(f"v_max_f32 v{vMB}, v{vMB}, v{vEB+7}")
        xlane("v_max_f32", vMB, vT0, ["x1", "r4", "r8", "p16", "p32"])
        P(f"v_mul_f32 v{vMB}, s{sC}, v{vMB}")
        for k in range(8):
            P(f"v_fma_f32 v{vEB+k}, v{vEB+k}, s{sC}, -v{vMB}")
            P(f"v_exp_f32 v{vEB+k}, v{vEB+k}")
        for k in range(4):
            P(f"v_mov_b32_dpp v{vT0}, v{vEB+k} quad_perm:[1,0,3,2] {FULL}")
            P(f"v_cvt_pk_bf16_f32 v{vPB+k}, v{vEB+k}, v{vT0}")
        sum8(vEB, vLB)
        xlane("v_add_f32", vLB, vT0, ["x1", "r4", "r8", "p16", "p32"])
        P(f"""
        v_bfe_u32 v{vT0}, v{vLane}, 1, 1
        v_lshlrev_b32 v{vT0}, 6, v{vT0}
        s_lshl_b32 s{sT0}, s{sWv}, 4
        v_add_u32 v{vT0}, s{sT0}, v{vT0}
        ds_write_b128 v{vT0}, {v4(vM)} offset:{L_ST}
        """)
    vBc = [V.get(), V.get()]
    vTC = [V.get(4, 4), V.get(4, 4)]
    def pvop(bc, dst, src, lane):
        P(f"v_mov_b32_dpp v{bc}, v{src} row_newbcast:{lane} {FULL}")
        for q in range(4): P(f"v_perm_b32 v{dst+q}, v{bc}, v{bc}, v{vSel+q}")
    def c_bpv():
        for k in range(4):
            for tau in range(4):
                i = 16 + 4*tau + k
                for hd in range(2): pvop(vT0+hd, vTC[hd], vPB+k, 4*tau + 2*hd)
                for hd in range(2):
                    P(f"v_mfma_f32_16x16x32_bf16 {v4(vD[2+hd])}, {a4(sslot[i])}, {v4(vTC[hd])}, {v4(vD[2+hd]) if i > 16 else 0}")
                release(i)
    assert vT1 == vT0 + 1
    vAw, vAr = V.get(), V.get()
    def c_sm4():
        s_ = vE
        P(f"""
        v_bfe_u32 v{vT0}, v{vLane}, 1, 1
        v_lshlrev_b32 v{vT0}, 6, v{vT0}
        s_waitcnt lgkmcnt(0)
        s_barrier
        """)
        for k in range(4): P(f"ds_read_b128 {v4(s_+4*k)}, v{vT0} offset:{L_ST+16*k}")
        P(f"""
        v_lshrrev_b32 v{vAw}, 4, v0
        v_lshlrev_b32 v{vAw}, 7, v{vAw}
        v_and_b32 v{vT1}, 7, v{vLane}
        v_lshl_add_u32 v{vAw}, v{vT1}, 4, v{vAw}
        v_and_b32 v{vAr}, 32, v{vLane}
        v_lshl_add_u32 v{vAr}, v{vT1}, 2, v{vAr}
        v_bfe_u32 v{vT1}, v{vLane}, 3, 2
        v_add_lshl_u32 v{vAr}, v{vAr}, v{vT1}, 2
        s_min_u32 s{sT0}, s{sWv}, 2
        s_lshl_b32 s{sT0}, s{sT0}, 11
        v_add_u32 v{vAr}, s{sT0}, v{vAr}
        v_mov_b32 v{vFF}, 0xff
        s_waitcnt lgkmcnt(0)
        """)
        for o, m, wt in ((0, vM, vWt), (2, vMB, vWtB)):
            P(f"v_max3_f32 v{vT0}, v{s_+o}, v{s_+4+o}, v{s_+8+o}")
            P(f"v_max_f32 v{vT0}, v{vT0}, v{s_+12+o}")
            for k in range(4):
                P(f"v_sub_f32 v{s_+4*k+o}, v{s_+4*k+o}, v{vT0}")
                P(f"v_exp_f32 v{s_+4*k+o}, v{s_+4*k+o}")
            P(f"v_sub_f32 v{wt}, v{m}, v{vT0}")
            P(f"v_exp_f32 v{wt}, v{wt}")
            P(f"v_mul_f32 v{vT1}, v{s_+o}, v{s_+o+1}")
            for k in range(1, 4): P(f"v_fmac_f32 v{vT1}, v{s_+4*k+o}, v{s_+4*k+o+1}")
            P(f"v_rcp_f32 v{vT1}, v{vT1}")
            P(f"v_mul_f32 v{wt}, v{wt}, v{vT1}")
    def red_write(lst):
        P("s_mov_b32 exec_lo, 0x00ff00ff")
        P("s_mov_b32 exec_hi, 0xff00ff00")
        for acc, reg in lst: P(f"ds_write_b128 v{vAw}, {v4(acc)} offset:{L_RED+2048*reg}")
        P("s_mov_b64 exec, -1")
    def c_br1():
        for hd in range(2):
            for q in range(4):
                P(f"v_mul_f32_dpp v{vD[2+hd]+q}, v{vWtB}, v{vD[2+hd]+q} quad_perm:[{2*hd},{2*hd},{2*hd},{2*hd}] {FULL}")
        red_write([(vD[2], 1), (vD[3], 2)])
        stamp("ybdone")
    vOb = V.get(2)
    def c_br2():
        r = vWQ
        P("s_waitcnt lgkmcnt(0)")
        P("s_barrier")
        for k in range(4): P(f"ds_read2st64_b32 {v2(r+2*k)}, v{vAr} offset0:{L_RED//256+2*k} offset1:{L_RED//256+2*k+1}")
        P(f"""
        v_add_u32 v{vOb}, 64, v0
        v_and_b32 v{vOb}, 128, v{vOb}
        v_cmp_ne_u32 vcc, 0, v{vOb}
        v_cndmask_b32 v{vOb}, v{vBig}, v{vL4}, vcc
        s_waitcnt lgkmcnt(0)
        """)
        sum8(r, r)
        P(f"v_bfi_b32 v{vOb+1}, v{vFF}, v{vTb}, v{r}")
        if not bsplit: c_br3()
    def c_br3():
        t = f"buffer_store_dword v{vOb+1}, v{vOb}, {srd(rWS)}, s{sOp} offen"
        if swap: P.vm(t + " sc1")
        else: publish("ob", t)
    vOg, vOo, vYo = vGo+1, vL12, vGo
    vY0, vY1, vBp = V.get(), V.get(), V.get()
    sOp, sOg, sYp, sYg, sOutO = sG[0:5]
    sYx, sOwn = rX, rX+2
    brx = "s_bfe_u32 s%d, s2, 0x10005" % sT0 if swap else "s_lshr_b32 s%d, s2, 7" % sT0
    def c_fin():
        if prm:
            P(f"""
            ; projection role m = (b&1)*8 + 2*s + kh: the workgroups without a block are ones with s = 3
            s_and_b32 s{sT0}, s2, 3
            s_bfe_u32 s{sT1}, s2, 0x10002
            s_lshl1_add_u32 s{sT0}, s{sT0}, s{sT1}
            s_andn2_b32 s{sCB}, s{sCB}, 7
            s_or_b32 s{sCB}, s{sCB}, s{sT0}
            """)
        if swap:
            P(f"""
            s_bfe_u32 s{sT0}, s2, 0x20003
            s_lshr_b32 s{sT1}, s2, 6
            s_lshl2_add_u32 s{sT0}, s{sT0}, s{sT1}
            s_and_b32 s{sT1}, s2, 7
            s_lshl4_add_u32 s{sCB}, s{sT1}, s{sT0}
            """)
        P(f"""
        ; o and y words carry byte (column&3) of the tag in their low byte
        v_lshlrev_b32 v{vT0}, 3, v0
        v_lshrrev_b32 v{vTb}, v{vT0}, s{sTag}
        s_lshr_b32 s{sG[5]}, s{sTag}, 8
        s_lshr_b32 s{sG[6]}, s{sTag}, 16
        s_lshr_b32 s{sG[7]}, s{sTag}, 24
        ; O table [x][slot: A, B kh0, B kh1][b][512] dwords
        s_bfe_u32 s{sT0}, s2, 0x30003
        s_mul_i32 s{sOg}, s{sT0}, {3*8192}
        s_add_u32 s{sOg}, s{sOg}, {WS_O}
        s_lshr_b32 s{sT0}, s2, 6
        s_lshl_b32 s{sT0}, s{sT0}, 11
        s_add_u32 s{sOp}, s{sOg}, s{sT0}
        ; wave 0: A row block t ; waves 1,2: slot 1+kh, row block 4*(wave-1)+s
        s_and_b32 s{sT0}, s2, 4
        s_lshl_b32 s{sT0}, s{sT0}, 3
        s_lshl2_add_u32 s{sT0}, s{sWv}, s{sT0}
        s_and_b32 s{sT1}, s2, 3
        s_add_u32 s{sT0}, s{sT0}, s{sT1}
        s_addk_i32 s{sT0}, 28
        s_and_b32 s{sT1}, s2, 7
        s_cmp_eq_u32 s{sWv}, 0
        s_cselect_b32 s{sT0}, s{sT1}, s{sT0}
        s_lshl_b32 s{sT0}, s{sT0}, 8
        s_add_u32 s{sOp}, s{sOp}, s{sT0}
        s_lshr_b32 s{sT0}, s{sCB}, 4
        s_mul_i32 s{sOg}, s{sT0}, {3*8192}
        s_add_u32 s{sOg}, s{sOg}, {WS_O}
        {brx}
        s_lshl_b32 s{sT0}, s{sT0}, 13
        s_add_u32 s{sOg}, s{sOg}, s{sT0}
        s_and_b32 s{sT1}, s{sCB}, 1
        s_lshl_b32 s{sT1}, s{sT1}, 10
        s_add_u32 s{sOg}, s{sOg}, s{sT1}
        v_bfe_u32 v{vT0}, v0, 1, 1
        v_mul_lo_u32 v{vOg}, v{vT0}, s{sT0}
        v_bfe_u32 v{vT0}, v0, 2, 2
        v_lshl_add_u32 v{vOg}, v{vT0}, 11, v{vOg}
        v_lshrrev_b32 v{vT0}, 4, v0
        v_lshl_add_u32 v{vOg}, v{vT0}, 6, v{vOg}
        v_and_b32 v{vT0}, 1, v0
        v_lshl_add_u32 v{vOg}, v{vT0}, 5, v{vOg}
        ; wo lane (row group tid>>3, 16-byte chunk tid&7)
        v_lshrrev_b32 v{vT0}, 3, v0
        v_mul_u32_u24 v{vWOo}, {8*896}, v{vT0}
        v_and_b32 v{vT0}, 7, v0
        v_lshl_add_u32 v{vWOo}, v{vT0}, 4, v{vWOo}
        s_and_b32 s{sT1}, s{sCB}, 15
        v_mov_b32 v{vT1}, s{sT1}
        v_cmp_gt_u32 vcc, 14, v{vT1}
        v_cndmask_b32 v{vWOo}, v{vBig}, v{vWOo}, vcc
        s_lshr_b32 s{sT0}, s{sCB}, 4
        s_and_b32 s{sAux}, s{sCB}, 1
        s_lshl1_add_u32 s{sAux}, s{sT0}, s{sAux}
        s_mul_i32 s{sAux}, s{sAux}, {256*896}
        s_and_b32 s{sT0}, s{sCB}, 14
        s_lshl_b32 s{sT0}, s{sT0}, 6
        s_add_u32 s{sAux}, s{sAux}, s{sT0}
        v_lshlrev_b32 v{vPw}, 4, v0
        v_and_b32 v{vPr}, 1, v0
        v_bfe_u32 v{vT1}, v0, 3, 3
        v_lshl_add_u32 v{vPr}, v{vPr}, 3, v{vT1}
        v_lshrrev_b32 v{vT1}, 6, v0
        v_lshl_add_u32 v{vPr}, v{vT1}, 4, v{vPr}
        v_bfe_u32 v{vT1}, v0, 1, 2
        v_lshl_add_u32 v{vPr}, v{vPr}, 2, v{vT1}
        v_lshlrev_b32 v{vPr}, 2, v{vPr}
        v_lshlrev_b32 v{vOo}, 3, v{vT0}
        v_bfe_u32 v{vT0}, v{vLane}, 4, 1
        v_lshl_add_u32 v{vOo}, v{vT0}, 2, v{vOo}
        v_lshrrev_b32 v{vT0}, 5, v{vLane}
        v_lshl_add_u32 v{vOo}, v{vT0}, 1, v{vOo}
        v_mul_u32_u24 v{vYo}, {8192-128}, v{vT0}
        v_add_u32 v{vYo}, v{vYo}, v{vL4}
        {brx}
        s_mul_i32 s{sT0}, s{sT0}, 14
        s_add_u32 s{sT0}, s{sT0}, s{sT1}
        s_lshl_b32 s{sOutO}, s{sT0}, 6
        s_mul_i32 s{sYp}, s{sWv}, 1792
        s_add_u32 s{sOutO}, s{sOutO}, s{sYp}
        s_lshl2_add_u32 s{sT0}, s{sT0}, s{sWv}
        s_lshl_b32 s{sT0}, s{sT0}, 11
        s_add_u32 s{sYg}, s{sT0}, {WS_Y}
        s_and_b32 s{sT1}, s{sCB}, 1
        s_mul_i32 s{sT0}, s{sT1}, {8192-1024}
        s_sub_u32 s{sYp}, s{sYg}, s{sT0}
        s_lshr_b32 s{sT0}, s{sCB}, 4
        s_lshl_b32 s{sI}, s{sT0}, 7
        s_add_u32 s{sYp}, s{sYp}, s{sI}
        ; block m is summed by its workgroup of row block m&7, which keeps that half of its own result in registers
        s_lshl_b32 s{sI}, s{sT0}, 3
        s_lshl_b64 {sp(sOwn)}, 0xff, s{sI}
        s_lshl_b32 s{sI}, s{sT1}, 7
        v_lshl_add_u32 v{vBp}, v{vOo}, 1, s{sI}
        s_xor_b32 s{sI}, s{sT1}, 1
        s_lshl_b32 s{sI}, s{sI}, 10
        v_lshlrev_b32 v{vY0}, 4, v{vLane}
        v_add_u32 v{vY1}, 1024, v{vY0}
        v_add_u32 v{vT0}, s{sI}, v{vY0}
        v_cndmask_b32 v{vY0}, v{vY0}, v{vT0}, {sp(sOwn)}
        v_cndmask_b32 v{vY1}, v{vY1}, v{vT0}, {sp(sOwn)}
        s_sub_u32 s{sYx}, 0, s{sT1}
        s_not_b32 s{sYx+1}, s{sYx}
        s_and_b32 s{sT1}, s{sCB}, 7
        s_cmp_eq_u32 s{sT0}, s{sT1}
        s_cselect_b64 {sp(sYx)}, {sp(sYx)}, -1
        """)
    def c_re1(): hid.append(P.vm(f"global_load_ubyte v{vHd}, v{vH}, {sp(sDbg)} nt"))
    def c_re2():
        P.wait(hid[-1])
        P(f"""
        ; second look: a report that arrived after the first one no longer keeps the class off the L2 path
        v_cmp_ne_u32 vcc, v{vHd}, v{vH+1}
        s_mov_b32 s{sFar}, vcc_lo
        """)
        if forcefar: P(f"s_mov_b32 s{sFar}, 1")
    if recheck: B(recheck, c_re1); B(0, c_re2, WM+1)
    B(160+sg, c_sg); B(0, c_sm1, WM+1); B(0, c_sm3); B(0, c_sb1); B(0, c_bpv); B(0, c_sm4); B(0, c_br1); B(0, c_fin)
    def c_yw():
        if yw[1] == "c":
            P(f"""
            s_cmp_eq_u64 {sp(sYx)}, -1
            s_cselect_b32 s{sT0}, 0, 16
            v_lshlrev_b32 v{vT0}, 7, v{vLane}
            v_cmp_gt_u32 vcc, s{sT0}, v{vLane}
            v_cndmask_b32 v{vT0}, v{vBig}, v{vT0}, vcc
            """)
            P.vm(f"buffer_load_dword v{vTl+1}, v{vT0}, {srd(rWS)}, s{sYg} offen sc1")
        else:
            P.vm(f"buffer_load_dword v{vTl+1}, v{vYo}, {srd(rWS)}, s{sYp} offen sc1")
    if yw and yw[0] < bpub: B(yw[0], c_yw)
    def c_ow():
        P(f"v_cmp_gt_u32 vcc, 192, v0")
        P(f"v_cndmask_b32 v{vT0}, v{vBig}, v{vL4}, vcc")
        P.vm(f"buffer_load_dword v{vTl+1}, v{vT0}, {srd(rWS)}, s{sOp} offen sc1")
    if ow: B(ow, c_ow)
    if bsplit:
        B(bsplit, c_br2)
        if btail is None: B(bpub, c_br3)
    elif bpub: B(bpub, c_br2)
    if yw and yw[0] >= bpub and ytail is None: B(yw[0], c_yw)

    vAcc = vD[1]
    prepared = set()
    def v_prep(i):
        v = i - 160
        if i < NS and i not in prepared:
            pvop(vBc[v & 1], vTB[v & 1], vP + 2*(v & 3) + (v >> 6), (v >> 2) & 15); prepared.add(i)
    def v_consume(i):
        v = i - 160
        v_prep(i)
        P.wait(sid[i])
        P(f"v_mfma_f32_16x16x32_bf16 {v4(vAcc)}, {a4(sslot[i])}, {v4(vTB[v & 1])}, {v4(vAcc) if v else 0}")
        release(i)
        v_prep(i+1)

    xg = fc['xg'] if fc else 0
    if xg:
        vGs, vGl, vBs, vGd = [V.get() for _ in range(4)]; sBias = S.get()
        xcs = [cps[c] for c in fc['xc']]
        GL = 0x4000
    def fc_step(i):
        if i in cps:
            c = cps.index(i)
            if c == 0:
                assert st['tag']
                fc_setup()
                P(f"v_mov_b32 v{vFt}, s{sTag}")
                if fc['tab']:
                    m = min(fc['tab']); t = sum(((x - m)//2) << (4*k) for k, x in enumerate(fc['tab']))
                    P(f"""
                    s_lshl_b32 s{sTagQ}, s{sTagQ}, 2
                    s_lshr_b32 s{sTagQ}, {t:#x}, s{sTagQ}
                    s_and_b32 s{sTagQ}, s{sTagQ}, 15
                    s_lshl1_add_u32 s{sTagQ}, s{sTagQ}, {m}
                    """)
                if xg:
                    P(f"""
                    s_bfe_u32 s{sBias}, s2, 0x30003
                    s_lshl_b32 s{sBoost}, s{sBias}, 11
                    s_add_u32 s{sBoost}, s{sBoost}, {WS_G + GL}
                    v_mov_b32 v{vBs}, s{sBoost}
                    s_sub_u32 s{sBoost}, s{sBoost}, s{sFC}
                    v_writelane_b32 v{vFl}, s{sBoost}, 32
                    s_lshl2_add_u32 s{sI}, s{sI}, s{sWv}
                    s_cmp_eq_u32 s{sI}, {4*13+1}
                    s_cselect_b32 s{sFm}, 0xff, 0
                    s_mov_b32 s{sFm+1}, 0
                    v_lshlrev_b32 v{vGd}, 11, v{vLane}
                    v_add_u32 v{vGd}, {WS_G}, v{vGd}
                    v_cndmask_b32 v{vGl}, v{vBig}, v{vGd}, {sp(sFm)}
                    s_lshl_b32 s{sBias}, 1, s{sBias}
                    s_and_b32 s{sFm}, s{sFm}, s{sBias}
                    v_cndmask_b32 v{vGs}, v{vBig}, v{vGd}, {sp(sFm)}
                    v_cndmask_b32 v{vGl}, v{vGl}, v{vBig}, {sp(sFm)}
                    v_cndmask_b32 v{vBs}, v{vBig}, v{vBs}, {sp(sFm)}
                    s_mov_b32 s{sBias}, 0
                    """)
            look = xg and c - 1 in fc['xc']
            if xg and not look: P("s_mov_b32 exec_hi, 0")
            fcs['ids'][c] = P.vm(f"buffer_load_dword v{vFd}, v{vFl}, {srd(rWS)}, s{sFC} offen offset:{128*c}")
            if xg and not look: P("s_mov_b32 exec_hi, -1")
            P.vm(f"buffer_store_dword v{vFt}, v{vFs}, {srd(rWS)}, s{sFC} offen offset:{128*c}")
            if xg and i in xcs: P.vm(f"buffer_store_dword v{vFt}, v{vGs}, {srd(rWS)}, 0 offen offset:{128*c} sc1")
        if xg and i - fc['xd'] in xcs:
            fcs['g'] = P.vm(f"buffer_load_dword v{vGd}, v{vGl}, {srd(rWS)}, 0 offen offset:{128*cps.index(i - fc['xd'])} sc1")
        if xg and i - fc['xd'] - WM - 1 in xcs:
            c = cps.index(i - fc['xd'] - WM - 1)
            P.wait(fcs['g'])
            P(f"""
            v_cmp_eq_u32 {sp(sFm)}, v{vFt}, v{vGd}
            s_bcnt1_i32_b32 s{sFm}, s{sFm}
            v_add_u32 v{vGd}, s{sFm}, v{vFt}
            """)
            P.vm(f"buffer_store_dword v{vGd}, v{vBs}, {srd(rWS)}, 0 offen offset:{128*(c+1)}")
        if i - WM - 1 in cps:
            c = cps.index(i - WM - 1)
            P.wait(fcs['ids'].pop(c))
            pd = fc['Pd'] if not fc['cps'] else ((cps[c+1] - cps[c]) if c + 1 < len(cps) else NS - i)
            g = int(round(fc['gain'] * pd / 32 * 256))
            if fc['s3'] and i >= 150 and not fcs.get('s3'):
                fcs['s3'] = True
                P(f"""
                s_and_b32 s{sBoost}, s2, 3
                s_cmp_eq_u32 s{sBoost}, 3
                s_cselect_b32 s{sBoost}, {fc['s3']}, 0
                s_add_i32 s{sTagQ}, s{sTagQ}, s{sBoost}
                """)
            P(f"""
            v_cmp_eq_u32 {sp(sFm)}, v{vFt}, v{vFd}
            s_bcnt1_i32_b32 s{sBoost}, s{sFm}
            s_mul_i32 s{sBoost}, s{sBoost}, {g}
            s_sub_i32 s{sBoost}, s{sBoost}, {int(fc['r0'] * 32)*g}
            """)
            if xg and c - 1 in fc['xc']:
                P(f"""
                v_readlane_b32 s{sFm}, v{vFd}, 32
                s_sub_u32 s{sFm}, s{sFm}, s{sTag}
                s_mul_i32 s{sBias}, s{sFm}, {int(xg*256)}
                s_sub_i32 s{sBias}, s{sBias}, {int(xg*256*fc['x0'])}
                s_cmp_lt_u32 s{sFm}, 8
                s_cselect_b32 s{sBias}, s{sBias}, 0
                """)
            if xg and (fc['hold'] or c - 1 in fc['xc']): P(f"s_add_i32 s{sBoost}, s{sBoost}, s{sBias}")
            P(f"s_ashr_i32 s{sBoost}, s{sBoost}, 8")
            if fc['tab']: P(f"s_add_i32 s{sBoost}, s{sBoost}, s{sTagQ}")
            fcs['start'] = i + 1

    nk, nv = 32, 160
    jw = 0
    bi = 0; lastbg = -1
    cur = None
    def consume_one():
        nonlocal nk, nv
        if st['kok'] and nk < 160 and nk <= land[0]:
            k_consume(nk); nk += 1
        elif st['vok'] and nv <= land[0]:
            v_consume(nv); nv += 1
        else: return False
        slots.extend(freed); freed.clear()
        return True
    def splittable(items, n):
        full = True; open_br = False
        for it in items[:n]:
            if it[0] == 'i':
                t = it[1]
                if t.startswith(('s_mov_b32 exec', 's_mov_b64 exec')): full = t.endswith('-1') and 'b64' in t
                if t.startswith('s_cbranch_scc'): open_br = True
            elif it[0] == 'l': open_br = False
        last = items[n-1]
        if last[0] == 'i' and last[1].startswith(('s_cmp', 's_cbranch', 's_getpc')): return False
        return full and not open_br
    minfree = 99
    for i in range(NS):
        m0 = len(P.ir)
        issue(i); fc_step(i)
        if i + 1 == hpos: hello_store()
        if i + 1 == fast: block2()
        if i + 1 < len(first):
            for _ in range(first[i+1]): wq_load()
        minfree = min(minfree, len(slots))
        used = lambda: sum(cost(x) for x in P.ir[m0:])
        consume_one()
        lim = 10**9 if i == S0 else budget
        while True:
            if cur is None:
                if bi < len(bg) and bg[bi][0] <= i and lastbg + bg[bi][2] <= i and used() < lim:
                    keep = P.ir; P.ir = []
                    flag = bg[bi][1]()
                    cur = [P.ir, flag, list(freed), 0]; freed.clear(); P.ir = keep; bi += 1
                    if bg[bi-1][1] not in (c_setup, c_wsw, c_hello2, c_tlb): lim = min(lim, used() + budget) if i == S0 else lim
                else: break
            items = cur[0]; n = cur[3]; u = used()
            while n < len(items) and not (u >= lim and n > cur[3] and splittable(items, n)):
                u += cost(items[n]); n += 1
            P.ir.extend(items[cur[3]:n]); cur[3] = n
            if n < len(items): break
            if cur[1]: st[cur[1]] = True
            slots.extend(cur[2]); cur = None; lastbg = i
        c = 1
        while c < maxcatch and (used() < budget or len(slots) < 3) and consume_one(): c += 1
    assert bi == len(bg) and cur is None and nk == 160, (bi, len(bg), nk)
    stamp("lastiss")
    P("; ---- tail begins")
    if spinif in ("retry", "ns"): P(f"s_mov_b32 s1, s{sSpin}")
    if tpad is not None:
        P("s_branch L_tail"); P.raw(f".p2align {tpad[0]}")
        if tpad[1]: P.raw(f".fill {tpad[1]}, 4, 0xbf800000")
        P.label("L_tail")
    while nv < NS:
        for _ in range(wolate):
            if jw < 8:
                if wopace:
                    tgt = sid[min(NS - 1, NS + jw - wopace[0])]
                    if wopace[1] is None: P.wait(tgt)
                    else: P.cwait(tgt, None, [f"s_cmp_gt_i32 s{sBoost}, {wopace[1]}"])
                if ytail == jw: c_yw()
                if btail == jw: c_br3()
                wo_load(jw); jw += 1
        v_consume(nv); nv += 1
    while jw < 8: wo_load(jw); jw += 1
    stamp("vdone")

    r = vWQ
    for q in range(4): P(f"v_mul_f32 v{vAcc+q}, v{vAcc+q}, v{vWt}")
    red_write([(vAcc, 0)])
    P("s_waitcnt lgkmcnt(0)")
    P("s_barrier")
    P(f"s_cmp_lg_u32 s{sWv}, 0" if bpub else f"s_cmp_eq_u32 s{sWv}, 3")
    P("s_cbranch_scc1 L_near_o")
    for k in range(4): P(f"ds_read2st64_b32 {v2(r+2*k)}, v{vAr} offset0:{L_RED//256+2*k} offset1:{L_RED//256+2*k+1}")
    P("s_waitcnt lgkmcnt(0)")
    sum8(r, r)
    P(f"v_bfi_b32 v{r}, v{vFF}, v{vTb}, v{r}")
    t = f"buffer_store_dword v{r}, v{vL4}, {srd(rWS)}, s{sOp} offen"
    if swap: P.vm(t + " sc1"); P.label("L_near_o")
    else: publish("o", t)
    stamp("opub")
    P(f"""
    s_and_b32 s{sT0}, s{sCB}, 15
    s_cmp_ge_u32 s{sT0}, 14
    s_cbranch_scc1 L_done
    """)
    g = vQA; sMiss = sFm
    def ppoll(Q, name, lds, sets, dst, mid=None):
        n = len(lds); D = len(sets)
        def first():
            for k in range(n): Q(lds[k].replace("@", v4(sets[0]+4*k)))
        mid(Q, n, first)
        Q(f"s_mov_b64 {sp(sMiss)}, -1")
        if D > 1:
            Q(f"s_not_b32 s{sT0}, s{sTag}")
            for b in sets[1:]: Q(f"v_mov_b32 v{b}, s{sT0}")
        Q.label(f"L_poll{name}")
        for d in list(range(1, D)) + [0]:
            b = sets[d]
            Q(f"s_waitcnt vmcnt({n*(D-1)})")
            tagcheck(Q, range(b, b+4*n), [f's{x}' for x in [sTag] + sG[5:8]], 0xff)
            Q("s_wqm_b64 vcc, vcc")
            Q(f"s_andn2_b64 exec, {sp(sMiss)}, vcc")
            for k in range(4*n): Q(f"v_and_b32 v{dst+k}, 0xffffff00, v{b+k}")
            Q(f"s_and_b64 {sp(sMiss)}, {sp(sMiss)}, vcc")
            Q(f"s_cbranch_scc0 L_got{name}")
            Q(f"s_mov_b64 exec, {sp(sMiss)}")
            for k in range(n): Q(lds[k].replace("@", v4(b+4*k)))
            Q("s_mov_b64 exec, -1")
        Q(f"s_add_u32 s{sSpin}, s{sSpin}, 1")
        Q(f"s_cmp_gt_u32 s{sSpin}, 0x20000")
        Q(f"s_cbranch_scc0 L_poll{name}")
        Q.label(f"L_got{name}")
        Q("s_mov_b64 exec, -1")
    def mid(Q, n, first):
        if opos == 0: first()
        for q in range(4):
            Q(f"s_waitcnt vmcnt({(n if q >= opos else 0) + 6 - 2*q + sum(1 for z in (ytail, btail) if z is not None and z > 2*q+1)})")
            if q + 1 == opos: first()
            for e in range(8):
                Q(f"v_perm_b32 v{vWO+4*e+q}, v{vQD+4*(2*q+1)+(e>>1)}, v{vQD+4*(2*q)+(e>>1)}, s{sSel1 if e & 1 else sSel0}")
    ppoll(P, "O", [f"buffer_load_dwordx4 @, v{vOg}, {srd(rWS)}, s{sOg} offen offset:{16*k} sc1" for k in range(2)], [g+8, g+16, g+24][:DO], g, mid)
    P("s_bitcmp1_b32 s2, 5" if swap else "s_cmp_ge_u32 s2, 128")
    P("s_cbranch_scc1 L_addB")
    P.label("L_proj")
    Q = Prog(); Q.label("L_addB")
    for k in range(8): Q(f"v_add_f32_dpp v{g+k}, v{g+k}, v{g+k} quad_perm:[2,3,0,1] {FULL}")
    Q("s_branch L_proj"); slow.insert(0, Q)
    stamp("ogot")
    for q in range(4): P(f"v_cvt_pk_bf16_f32 v{vX+q}, v{g+2*q}, v{g+2*q+1}")
    for e in range(8): P(f"v_mfma_f32_16x16x32_bf16 {v4(vQD+4*e)}, {v4(vX)}, {v4(vWO+4*e)}, 0")
    for e in range(8):
        h = e & 1
        P(f"v_add_f32_dpp v{r+(e >> 1)}, v{vQD+4*e+1-h}, v{vQD+4*e+h} row_ror:8 row_mask:0xf bank_mask:{0xc if h else 0x3:#x}")
    P(f"""
    ds_write_b128 v{vPw}, {v4(r)} offset:{L_QRED}
    s_waitcnt lgkmcnt(0)
    s_barrier
    ds_read2st64_b32 {v2(r)}, v{vPr} offset0:{L_QRED//256} offset1:{L_QRED//256+4}
    ds_read2st64_b32 {v2(r+2)}, v{vPr} offset0:{L_QRED//256+8} offset1:{L_QRED//256+12}
    s_cmp_eq_u64 {sp(sYx)}, -1
    s_waitcnt lgkmcnt(0)
    v_add_f32 v{r}, v{r}, v{r+1}
    v_add_f32 v{r+2}, v{r+2}, v{r+3}
    v_add_f32 v{r}, v{r}, v{r+2}
    v_bfi_b32 v{r+1}, v{vFF}, v{vTb}, v{r}
    s_mov_b64 exec, {sp(sYx)}
    """)
    t = f"buffer_store_dword v{r+1}, v{vYo}, {srd(rWS)}, s{sYp} offen"
    if swap: publish("y", t); P(f"s_cmp_eq_u64 {sp(sYx)}, -1")
    else: P.vm(t + " sc1")
    stamp("yapub")
    P("s_cbranch_scc1 L_done")
    P("s_mov_b64 exec, -1")
    f = vP
    def midy(Q, n, first): first(); Q(f"ds_bpermute_b32 v{r+2}, v{vBp}, v{r}")
    ppoll(P, "Y", [f"buffer_load_dwordx4 @, v{vy}, {srd(rWS)}, s{sYg} offen sc1" for vy in (vY0, vY1)], [vWO+8*k for k in range(4)][:DY], f, midy)
    stamp("fgot")
    P(f"s_not_b64 exec, {sp(sOwn)}")
    for k in range(4): P(f"v_add_f32 v{f+k}, v{f+k}, v{f+4+k}")
    P("s_mov_b64 exec, -1")
    P(f"""
    v_permlane32_swap_b32 v{f}, v{f+1}
    v_permlane32_swap_b32 v{f+2}, v{f+3}
    v_add_f32 v{f}, v{f}, v{f+1}
    v_add_f32 v{f+2}, v{f+2}, v{f+3}
    v_permlane16_swap_b32 v{f}, v{f+2}
    v_add_f32 v{f}, v{f}, v{f+2}
    """)
    xlane("v_add_f32", f, None, ["r8"])
    P("s_waitcnt lgkmcnt(0)")
    P(f"v_add_f32 v{f}, v{f}, v{r+2}")
    P(f"""
    v_cvt_pk_bf16_f32 v{f}, v{f}, v{f}
    s_mov_b32 exec_lo, 0x00ff00ff
    s_mov_b32 exec_hi, 0x00ff00ff
    """)
    P.vm(f"buffer_store_short v{f}, v{vOo}, {srd(rOUT)}, s{sOutO} offen")
    P(f"""
    s_cmp_lg_u32 s{sOutO}, 0
    s_cbranch_scc1 L_done
    s_mov_b64 exec, 1
    v_mov_b32 v{f+2}, s{sTag}
    """)
    P.vm(f"buffer_store_dword v{f+2}, v{vOo}, {srd(rWS)}, 0 offen")
    P.label("L_done")
    if spin:
        if spinif == "far": P(f"s_cmp_eq_u32 s{sFar}, 0\ns_cbranch_scc1 L_end")
        if spinif == "retry": P(f"s_cmp_eq_u32 s1, 0\ns_cbranch_scc1 L_end")
        if spinif in ("nq", "ns", "far1"): P(f"s_waitcnt lgkmcnt(0)\ns_mul_i32 s1, s1, 100\ns_add_u32 s{sSt}, s{sSt}, s1")
        if probe:
            P(f"s_waitcnt lgkmcnt(0)\ns_sub_u32 s{sLim}, s{sPr}, s{sSt}\ns_mul_i32 s{sLim}, s{sLim}, {probe[1]}\ns_add_u32 s{sLim}, s{sLim}, {spin}")
            if len(probe) > 2: P(f"s_and_b32 s{sT0}, s2, {probe[2]}\ns_cmp_lg_u32 s{sT0}, {probe[3]}\ns_cbranch_scc1 L_end")
        P.label("L_spin")
        P(f"""
        s_memrealtime {sp(sNow)}
        s_waitcnt lgkmcnt(0)
        s_sub_u32 s{sNow}, s{sNow}, s{sSt}
        s_cmp_lt_i32 s{sNow}, {('s%d' % sLim) if probe else spin}
        s_cbranch_scc1 L_spin
        """)
    if diag:
        P("s_mov_b64 exec, -1")
        stamp("end")
        P(f"""
        s_waitcnt lgkmcnt(0) vmcnt(0)
        s_lshl_b32 s{sT0}, s2, 2
        s_add_u32 s{sT0}, s{sT0}, s{sWv}
        s_lshl_b32 s{sT0}, s{sT0}, 7
        s_add_u32 s{sT0}, s{sT0}, {WS_DIAG}
        v_mov_b32 v{vT1}, 0
        s_mov_b64 exec, 1
        """)
        def dump(sreg, off):
            P(f"v_mov_b32 v{vT0}, s{sreg}")
            P.vm(f"buffer_store_dword v{vT0}, v{vT1}, {srd(rWS)}, s{sT0} offen offset:{off}")
        for n, (name, rr) in enumerate(stamps): dump(rr, 4*n)
        dump(sSpin, 4*len(stamps)); dump(sFar, 116)
        P(f"s_getreg_b32 s{sT1}, hwreg(HW_REG_XCC_ID)"); dump(sT1, 120)
        P(f"s_getreg_b32 s{sT1}, hwreg(HW_REG_HW_ID)"); dump(sT1, 124)
    P.label("L_end")
    P("s_endpgm")

    body, stats = P.render()
    for Q in slow: body += Q.render()[0]
    body += 'L_code_end:\n'
    if top: body += f'.if {32*128*ipf} > L_code_end - L_pc\n.fill ({32*128*ipf} - (L_code_end - L_pc))/4, 4, 0xbf810000\n.endif\n'
    head = open("cdna_kernels/" + KNAME[:-7] + ".s.ref").read().split("; Override launch")[0]
    txt = head + f"; @launch grid=(256,1,1) block=(256,1,1) lds={L_TOTAL}\n" + HEADER
    txt += f'.amdgcn_target "amdgcn-amd-amdhsa--gfx950"\n.text\n.globl {KNAME}\n.p2align 8\n.type {KNAME},@function\n{KNAME}:\n'
    txt += body
    txt += f""".section .rodata,"a"
.p2align 6
.amdhsa_kernel {KNAME}
  .amdhsa_next_free_vgpr 512
  .amdhsa_next_free_sgpr 102
  .amdhsa_accum_offset 256
  .amdhsa_group_segment_fixed_size 0
  .amdhsa_kernarg_size 104
  .amdhsa_user_sgpr_count 2
  .amdhsa_user_sgpr_kernarg_segment_ptr 1
  .amdhsa_system_sgpr_workgroup_id_x 1
.end_amdhsa_kernel
"""
    ids = list(range(256))
    act = [L for L in ids if (((L >> 6) & 1)*8 + (L & 7)) < 14]
    fin = [L for L in act if ((L >> 3) & 7) == (L & 7)]
    if prm:
        mm = lambda L: ((L >> 6) & 1)*8 + 2*(L & 3) + ((L >> 2) & 1)
        act = [L for L in ids if mm(L) < 14]; fin = [L for L in act if (mm(L) & 7) == ((L >> 3) & 7)]
    if swap:
        mm = lambda L: 4*((L >> 3) & 3) + (L >> 6)
        act = [L for L in ids if mm(L) < 14]; fin = [L for L in act if (mm(L) & 7) == (L & 7)]
    return txt, dict(stats, vhw=V.hw, shw=S.hw, minfree=minfree, stamps=[n for n, _ in stamps], who=dict(ogot=act, yapub=act, fgot=fin))

if __name__ == "__main__":
    import json
    kw = json.loads(sys.argv[2]) if len(sys.argv) > 2 else {}
    t, s = gen(**kw)
    open(sys.argv[1], "w").write(t)
    s.pop('who')
    print(s, file=sys.stderr)
```

```python
import sys, math, struct
from asmlib import Prog, Alloc
KNAME = "concat_heads__mha_block_cached__sliding_block_cached__decode_kernel"

WS_Q, WS_SC, WS_O, WS_FC, WS_Y, WS_G, WS_DIAG = 0x10000, 0x40000, 0x100000, 0x130000, 0x140000, 0x180000, 0x800000
L_QRED, L_ST, L_RED, L_TOTAL = 0, 4096, 4352, 4352 + 3*2048
CS = struct.unpack('<I', struct.pack('<f', math.log2(math.e) / 16.0))[0]
BIG = 0x7ff00000
FULL = "row_mask:0xf bank_mask:0xf"

AUXCOST = [8]
def cost(it):
    if it[0] == 'vm': return 8 if ' a[' in it[1] or 'store' in it[1] else AUXCOST[0]
    if it[0] != 'i': return 2
    t = it[1]
    if t.startswith(';'): return 0
    if t.startswith('v_mfma'): return 16
    if t.startswith(('v_exp', 'v_log', 'v_rcp')): return 10
    if '_dpp' in t or t.startswith('v_permlane'): return 8
    if t.startswith('ds_'): return 12
    if t.startswith('s_waitcnt'): return 60
    if t.startswith('s_barrier'): return 30
    return 4

HEADER = """;
; One launch, 256 workgroups x 4 waves (one wave per SIMD); generated by a script, straight-line code.
; Logical id = b(2) | x(3) | t(3); the 32 workgroups with the same x form a class (A heads 2x, 2x+1, B kv head x).
;   1. q = x @ wq: every workgroup computes one 32-column block for the 4 batches and hands it to its class.
;   2. K streams (B window, then A), keys split over the workgroups of a (batch, head); MFMA scores, rounded to bf16.
;   3. scores are exchanged inside the (batch, x) group; every wave takes the true max / sum of its keys, the
;   4. V streams split along the head dimension (64 columns per workgroup); MFMA P.V gives normalised o slices.
;   5. o is written through for everyone while wo streams in; 224 workgroups multiply it with a 256 x 64 block
;      of wo (a class owns two column blocks of one branch); the 16 partial sums of an output are handed to
;      one wave of the class, added and stored as bf16.
; Hand-offs carry an in-band tag = ws[0] + constant (ws[0] is replaced by the tag at the end), so data of an
; earlier launch is never accepted. Class-local hand-offs stay in L2 only after all 32 workgroups of the class
; have been seen (through d_debug) on this XCC; otherwise every store and load of them is sc1.
"""

def gen(W=5, qg=33, sg=21, wflag="", woflag="nt", diag=False, skip=(), spin=0, forcefar=False, fc=None, budget=150, maxcatch=4,
        bpub=283, DO=1, DY=2, wolate=1, auxcost=70, wsl=32, first=(5, 4), hello=5, tpad=None, ipf=6, ipf0=True, tlb=None, qw=True, zones=(), rot=None, swap=True, ow=None, W0=(24, 6), yw=(287, 'p'), noO=True, fakeQ=0, xpos=0, hpos=0, spinif=None, probe=None, fast=3, top=True, recheck=120, prm=False, wopace=(5, None), opos=3, ypf=False, ytail=6, bsplit=232, btail=2, late=1, tight=True, rdw=True):
    AUXCOST[0] = auxcost
    P = Prog()
    V = Alloc('v', 1, 256); S = Alloc('s', 3, 100)
    slots = list(range(64))
    def a4(s): return f"a[{4*s}:{4*s+3}]"
    def v4(r): return f"v[{r}:{r+3}]"
    def v3(r): return f"v[{r}:{r+2}]"
    def v2(r): return f"v[{r}:{r+1}]"
    def srd(r): return f"s[{r}:{r+3}]"
    def sp(r): return f"s[{r}:{r+1}]"
    def vcc(m): P(f"s_mov_b32 vcc_lo, {m:#x}"); P(f"s_mov_b32 vcc_hi, {m:#x}")
    slow = []
    stamps = []
    def stamp(name):
        if probe and name == probe[0]:
            P(f"s_memrealtime {sp(sPr)}")
        if diag:
            r = S.get(2); stamps.append((name, r)); P(f"s_memrealtime {sp(r)}")
    fcs = dict(start=None, ids={})
    if probe: sPr = S.get(2); sLim = S.get()
    st = dict(kok=False, vok=False, lgk=False, tag=False)
    if fc is not None:
        fc = dict(dict(first=16, Pd=32, dW=2, r0=0.6, gain=2.5, xg=0, x0=3.5, xd=1, xc=(1, 3, 5), hold=True, neg=None, ns=2, s3=10, cps=(16, 40, 72, 104, 136, 168, 196, 224, 248, 266), tab=(4, -8, 2, -8, 10, 0, 6, -4)), **fc)
        WM = W + fc['dW']
        cps = list(fc['cps'] or range(fc['first'], 288 - WM - 6, fc['Pd']))
    else:
        WM = W; cps = []

    rX, rWQ, rBK, rBV, rAK, rAV, rWO, rWS, rOUT = [S.get(4) for _ in range(9)]
    sT0, sT1, sI, sWv, sTag, sOff, sAux, sSel0, sSel1, sC, sSpin, sCB, sTagQ, sFar, sBoost, sFC, sKo = [S.get() for _ in range(17)]
    vLane, vT0, vT1, vT2, vBig = [V.get() for _ in range(5)]
    vXo, vWQo, vKo, vVo = [V.get() for _ in range(4)]
    def desc(r, sz):
        P(f"s_mov_b32 s{r+2}, {sz}"); P(f"s_mov_b32 s{r+3}, 0x20000")
    sDbg = S.get(2); vH = V.get(2)
    vXT = V.get()
    def code_pf_top():
        P("; the straight-line code below is read once: each workgroup pulls its share of it towards its L2 now")
        P(f"s_getpc_b64 {sp(rOUT+2)}")
        P.label("L_pc")
        P(f"""
        s_lshr_b32 s{sT0}, s2, 3
        s_mulk_i32 s{sT0}, {128*ipf}
        v_min_u32 v{vT1}, {ipf-1}, v0
        v_lshl_add_u32 v{vT1}, v{vT1}, 7, s{sT0}
        """)
        P.vm(f"global_load_dword v{vXT}, v{vT1}, {sp(rOUT+2)}")
    def code_pf():
        if top: return
        P(f"s_getpc_b64 {sp(rOUT+2)}")
        P.label("L_pc")
        P(f"""
        v_and_b32 v{vT0}, {31 if ipf > 1 else 255}, v{vH}
        v_min_u32 v{vT1}, {ipf-1}, v0
        v_mad_u32_u24 v{vT0}, v{vT0}, {ipf}, v{vT1}
        v_lshlrev_b32 v{vT0}, 7, v{vT0}
        v_min_u32 v{vT0}, L_code_end-L_pc-4, v{vT0}
        """)
        P.vm(f"global_load_dword v{vXT}, v{vT0}, {sp(rOUT+2)}")
    hl1 = f"""s_load_dwordx2 {sp(sDbg)}, s[0:1], 88
    s_getreg_b32 s{sTagQ}, hwreg(HW_REG_XCC_ID, 0, 4)
    ; byte (id&7)*32 + (id>>3) of the zeroed debug buffer reports this workgroup's XCC
    s_mul_i32 s{sT0}, s2, 0x101
    s_bfe_u32 s{sT0}, s{sT0}, 0x80003
    v_mov_b32 v{vH}, s{sT0}
    v_add_u32 v{vH+1}, s{sTagQ}, 1"""
    if fast:
        P("s_cmpk_ge_u32 s2, 256")
        P("s_cbranch_scc1 L_end")
        stamp("start")
        if spin:
            sSt = S.get(2); sNow = S.get(2); P(f"s_memrealtime {sp(sSt)}")
        P(f"""
        s_load_dwordx2 {sp(rBK)}, s[0:1], 48
        s_load_dwordx2 {sp(rWS)}, s[0:1], 96
        """)
        if top: code_pf_top()
        P(f"""
        ; logical id = b(2) | x(3) | t(3): workgroups that are 8 apart share x (L2 locality only)
        s_and_b32 s{sCB}, s2, 7
        s_lshr_b32 s{sI}, s2, 6
        s_lshl3_add_u32 s{sI}, s{sI}, s{sCB}
        s_bfe_u32 s{sT1}, s2, 0x30003
        s_lshl4_add_u32 s{sOff}, s{sI}, 12
        s_lshl3_add_u32 s{sOff}, s{sOff}, s{sT1}
        s_lshl_b32 s{sOff}, s{sOff}, 14
        s_lshl_b32 s{rBK+2}, 1, 26
        s_mov_b32 s{rBK+3}, 0x20000
        v_lshrrev_b32 v{vT0}, 6, v0
        v_lshrrev_b32 v{vT2}, 2, v0
        v_and_b32 v{vT1}, 3, v0
        v_and_b32 v{vXo}, 3, v{vT2}
        v_lshl_add_u32 v{vKo}, v{vT0}, 2, v{vXo}
        v_lshl_add_u32 v{vKo}, v{vKo}, 6, v{vT1}
        v_and_b32 v{vWQo}, 12, v{vT2}
        v_add_lshl_u32 v{vKo}, v{vKo}, v{vWQo}, 4
        s_waitcnt lgkmcnt(0)
        """)
        stamp("karg")
    def block2():
        P(f"""
        s_lshr_b32 s{sKo}, s2, 7
        s_mul_i32 s{sKo}, s{sKo}, 40
        s_load_dwordx2 {sp(rX)}, s[0:1], s{sKo}
        s_load_dwordx2 {sp(rWQ)}, s[0:1], s{sKo} offset:24
        {hl1}
        s_bfe_u32 s{sT0}, s2, 0x40003
        s_lshl4_add_u32 s{sCB}, s{sCB}, s{sT0}
        s_lshl_b32 s{sAux}, s{sCB}, 6
        s_lshl3_add_u32 s2, s{sI}, s{sT1}
        v_readfirstlane_b32 s{sWv}, v{vT0}
        v_lshlrev_b32 v{vWQo}, 12, v{vT2}
        v_add_lshl_u32 v{vWQo}, v{vWQo}, v{vT1}, 4
        v_cmp_gt_u32 vcc, 56, v{vT2}
        v_mad_u32_u24 v{vXo}, v{vXo}, 55, v{vT2}
        v_add_lshl_u32 v{vXo}, v{vXo}, v{vT1}, 4
        v_cndmask_b32 v{vXo}, 2.0, v{vXo}, vcc
        """)
        if ipf and ipf0: code_pf()
        desc(rX, 3584); desc(rWQ, 3670016)
        P("s_waitcnt lgkmcnt(0)")
        hello_store()
    if not fast:
        P("s_cmp_ge_u32 s2, 256")
        P("s_cbranch_scc1 L_end")
        stamp("start")
        if spin:
            sSt = S.get(2); sNow = S.get(2); P(f"s_memrealtime {sp(sSt)}")
        if top == "first": code_pf_top()
        P(f"""
        s_lshr_b32 s{sKo}, s2, 7
        s_mul_i32 s{sKo}, s{sKo}, 40
        s_load_dwordx2 {sp(rBK)}, s[0:1], 48
        s_load_dwordx2 {sp(rX)}, s[0:1], s{sKo}
        s_load_dwordx2 {sp(rWQ)}, s[0:1], s{sKo} offset:24
        s_load_dwordx2 {sp(rWS)}, s[0:1], 96
        {hl1}
        """)
        if probe and probe[0] == "kfast": P("s_waitcnt lgkmcnt(0)"); stamp("kfast")
        if ipf and ipf0: code_pf()
        P(f"""
        ; logical id = b(2) | x(3) | t(3): workgroups that are 8 apart share x (L2 locality only)
        s_and_b32 s{sT0}, s2, 7
        s_bfe_u32 s{sT1}, s2, 0x30003
        s_bfe_u32 s{sCB}, s2, 0x40003
        s_lshr_b32 s2, s2, 6
        s_lshl3_add_u32 s2, s2, s{sT0}
        s_lshl_b32 s{sOff}, s2, 21
        s_lshl3_add_u32 s2, s2, s{sT1}
        s_lshl4_add_u32 s{sCB}, s{sT0}, s{sCB}
        s_lshl_b32 s{sAux}, s{sCB}, 6
        v_lshrrev_b32 v{vT0}, 6, v0
        v_lshrrev_b32 v{vT2}, 2, v0
        v_readfirstlane_b32 s{sWv}, v{vT0}
        v_and_b32 v{vT1}, 3, v0
        v_lshlrev_b32 v{vWQo}, 12, v{vT2}
        v_add_lshl_u32 v{vWQo}, v{vWQo}, v{vT1}, 4
        v_cmp_gt_u32 vcc, 56, v{vT2}
        v_and_b32 v{vKo}, 3, v{vT2}
        v_mad_u32_u24 v{vXo}, v{vKo}, 55, v{vT2}
        v_add_lshl_u32 v{vXo}, v{vXo}, v{vT1}, 4
        v_lshl_add_u32 v{vKo}, v{vT0}, 2, v{vKo}
        v_cndmask_b32 v{vXo}, 2.0, v{vXo}, vcc
        v_lshl_add_u32 v{vKo}, v{vKo}, 6, v{vT1}
        v_and_b32 v{vT2}, 12, v{vT2}
        v_add_lshl_u32 v{vKo}, v{vKo}, v{vT2}, 4
        s_or_b32 s{sT0}, s{sT1}, 96
        s_lshl_b32 s{sT0}, s{sT0}, 14
        s_add_u32 s{sOff}, s{sOff}, s{sT0}
        """)
        if fakeQ:
            P(f"""
            v_lshrrev_b32 v{vT0}, 3, v0
            v_mul_u32_u24 v{vWQo}, {7*512}, v{vT0}
            v_and_b32 v{vT0}, 7, v0
            v_add_lshl_u32 v{vWQo}, v{vWQo}, v{vT0}, 4
            s_and_b32 s{sT0}, s{sCB}, 1
            s_mul_i32 s{sT0}, s{sT0}, {224*8192-64}
            s_add_u32 s{sAux}, s{sAux}, s{sT0}
            """)
        desc(rX, 3584); desc(rWQ, 3670016); desc(rBK, 1 << 26)
        if probe and probe[0] == "pre": stamp("pre")
        P("s_waitcnt lgkmcnt(0)")
        stamp("karg")
    def hello_store(): P.vm(f"global_store_byte v{vH}, v{vH+1}, {sp(sDbg)}")
    if hpos == 0 and not fast: hello_store()
    vX = V.get(4, 4); vWQ = V.get(32, 4)
    idwq = []
    def wq_load():
        n = len(idwq); j = n if n < xpos else n - 1
        if n == xpos: idwq.append(P.vm(f"buffer_load_dwordx4 {v4(vX)}, v{vXo}, {srd(rX)}, 0 offen"))
        elif "wq" in skip or (fakeQ and j == 7): idwq.append(None)
        else:
            if j: P(f"s_addk_i32 s{sAux}, 0x2000")
            idwq.append(P.vm(f"buffer_load_dwordx4 {v4(vWQ+4*j)}, v{vWQo}, {srd(rWQ)}, s{sAux} offen {wflag}"))
    first = [0]*fast + list(first or [9])
    assert sum(first) == 9
    for _ in range(first[0]): wq_load()
    vTl = V.get(2)
    def c_wsw():
        P(f"""
        s_mul_i32 s{sT0}, s2, 3072
        s_add_u32 s{sT0}, s{sT0}, {WS_SC}
        v_mov_b32 v{vTl}, s{sT0}
        """)
        if qw:
            P(f"""
            s_lshr_b32 s{sT0}, s2, 7
            s_lshl_b32 s{sT0}, s{sT0}, 9
            s_add_u32 s{sT0}, s{sT0}, s{sCB}
            s_lshl_b32 s{sT0}, s{sT0}, 7
            s_add_u32 s{sT0}, s{sT0}, {(WS_Q - 24*16384) & 0xffffffff}
            v_mul_u32_u24 v{vTl+1}, {16384-128}, v0
            v_add_u32 v{vTl+1}, s{sT0}, v{vTl+1}
            v_cmp_gt_u32 vcc, 24, v0
            v_cndmask_b32 v{vTl}, v{vTl+1}, v{vTl}, vcc
            v_cmp_gt_u32 vcc, 28, v0
            v_cndmask_b32 v{vTl}, 2.0, v{vTl}, vcc
            """)
        elif wsl > 24:
            P(f"""
            v_mul_u32_u24 v{vTl+1}, 768, v{vH}
            v_add_u32 v{vTl+1}, {BIG if noO else WS_O - 24*128}, v{vTl+1}
            v_cmp_gt_u32 vcc, 24, v0
            v_cndmask_b32 v{vTl}, v{vTl+1}, v{vTl}, vcc
            """)
        if wsl > 30:
            P(f"""
            v_lshlrev_b32 v{vTl+1}, 8, v{vH}
            v_add_u32 v{vTl+1}, {WS_FC - 30*128}, v{vTl+1}
            v_cmp_gt_u32 vcc, 30, v0
            v_cndmask_b32 v{vTl}, v{vTl+1}, v{vTl}, vcc
            """)
        if ypf:
            P(f"""
            s_bfe_u32 s{sT0}, s2, 0x10005
            s_lshl_b32 s{sT0}, s{sT0}, 14
            s_sub_u32 s{sT0}, {WS_Y - 32*128}, s{sT0}
            v_lshl_add_u32 v{vTl+1}, v{vH}, 10, s{sT0}
            v_cmp_gt_u32 vcc, 32, v0
            v_cndmask_b32 v{vTl}, v{vTl+1}, v{vTl}, vcc
            s_and_b32 s{sT0}, s2, 0x98
            s_cmp_eq_u32 s{sT0}, 0x98
            s_cselect_b32 s{sT0}, 32, 40
            """)
        P(f"""
        v_lshl_add_u32 v{vTl}, v0, 7, v{vTl}
        v_cmp_gt_u32 vcc, {'s%d' % sT0 if ypf else wsl}, v0
        v_cndmask_b32 v{vTl}, 2.0, v{vTl}, vcc
        """)
        desc(rWS, 1 << 24)
        P.vm(f"buffer_load_dword v{vTl+1}, v{vTl}, {srd(rWS)}, 0 offen sc1")
    stream = []
    for k in range(16): stream.append(("BK", k))
    for k in range(16): stream.append(("BV", k))
    for k in range(128): stream.append(("AK", k))
    for k in range(128): stream.append(("AV", k))
    NS = len(stream)
    sid = {}; sslot = {}; land = [-1]
    def issue(i):
        kind, k = stream[i]
        if k == 0 and kind == "BV":
            assert st['lgk']
            P(f"""
            s_and_b32 s{sI}, s2, 3
            s_mul_i32 s{sI}, s{sI}, {16384-128}
            s_add_u32 s{sI}, s{sI}, {3*131072}
            s_sub_u32 s{sOff}, s{sOff}, s{sI}
            """)
        elif k == 0 and kind[0] == "A" and rot:
            vo = vKo if kind == "AK" else vVo
            P(f"""
            s_lshr_b32 s{sI}, s2, 2
            s_lshl_b32 s{sI}, s{sI}, 21
            v_add_u32 v{vo}, s{sI}, v{vo}
            s_bfe_u32 s{sOff}, s2, {rot[0]:#x}
            s_lshl_b32 s{sOff}, s{sOff}, {rot[1]}
            s_and_b32 s{sI}, s2, 3
            s_lshl_b32 s{sI}, s{sI}, {14 if kind == "AK" else 7}
            s_add_u32 s{sOff}, s{sOff}, s{sI}
            """)
        elif k == 0 and kind[0] == "A":
            P(f"""
            s_lshr_b32 s{sOff}, s2, 2
            s_lshl_b32 s{sOff}, s{sOff}, 21
            s_and_b32 s{sI}, s2, 3
            s_lshl_b32 s{sI}, s{sI}, {14 if kind == "AK" else 7}
            s_add_u32 s{sOff}, s{sOff}, s{sI}
            """)
        elif k and k % 4 == 0 and kind[0] == "B":
            P(f"s_add_u32 s{sOff}, s{sOff}, {0x20000 if kind == 'BK' else 0x14000}")
        elif k and kind[1] == "V":
            P(f"s_addk_i32 s{sOff}, 0x4000")
        elif k and k % 4 == 0:
            P(f"s_add_u32 s{sOff}, s{sOff}, 0x10000")
        if rot and kind[0] == "A" and k and k % 32 == 0: P(f"s_and_b32 s{sOff}, s{sOff}, 0x1fffff")
        wz = [z[2] for z in zones if z[0] <= i < z[1]]
        if wz and fcs['start'] is not None:
            P.cwait(sid[i-wz[0]], sid[i-WM], [f"s_cmp_gt_i32 s{sBoost}, {i - fcs['start']}"]); land[0] = max(land[0], i-WM)
        elif fcs['start'] is not None:
            if fc['neg'] is not None:
                P.cwait(sid[i-W+1], None, [f"s_cmp_ge_i32 s{sBoost}, {-fc['neg'] - fc['ns']*(i - fcs['start'])}"])
            P.cwait(sid[i-W], sid[i-WM], [f"s_cmp_gt_i32 s{sBoost}, {i - fcs['start']}"]); land[0] = max(land[0], i-WM)
        else:
            w0 = W0[1] if (W0 and i < W0[0]) else W
            if i >= w0: P.wait(sid[i-w0]); land[0] = max(land[0], i-w0)
        s = slots.pop(0); sslot[i] = s
        r, vo = {"BK": (rBK, vKo), "BV": (rBV, vVo), "AK": (rAK, vKo), "AV": (rAV, vVo)}[kind]
        imm = 0 if kind[1] == "V" else [0, 512, 256, 768][k & 3]
        o = f" offset:{imm}" if imm else ""
        sid[i] = P.vm(f"buffer_load_dwordx4 {a4(s)}, v{vo}, {srd(r)}, s{sOff} offen{o} nt")
    freed = []
    def release(i): freed.append(sslot[i])

    def xlane(op, x, t, steps):
        for st in steps:
            if st in ("x1", "x2", "r4", "r8"):
                d = {"x1": "quad_perm:[1,0,3,2]", "x2": "quad_perm:[2,3,0,1]", "r4": "row_ror:4", "r8": "row_ror:8"}[st]
                P(f"{op}_dpp v{x}, v{x}, v{x} {d} {FULL}")
            else:
                P(f"v_mov_b32 v{t}, v{x}")
                P(f"v_permlane{st[1:]}_swap_b32 v{x}, v{t}")
                P(f"{op} v{x}, v{x}, v{t}")
    def tagcheck(Q, tags, stag, mask):
        tags = list(tags)
        if isinstance(stag, list): pairs = [(tags[k], tags[k+4], stag[k]) for k in range(4)]
        else: pairs = [(a, b, stag) for a, b in zip(tags[0::2], tags[1::2])]
        for n, (a, b, tg) in enumerate(pairs):
            d = vT0 if n == 0 else (vT1 if n % 2 else vT2)
            Q(f"v_bitop3_b32 v{d}, v{a}, v{b}, {tg} bitop3:0x7e")
            if n and n % 2 == 0: Q(f"v_or3_b32 v{vT0}, v{vT0}, v{vT1}, v{vT2}")
            elif n and n == len(pairs)-1: Q(f"v_or_b32 v{vT0}, v{vT0}, v{vT1}")
        if mask: Q(f"v_and_b32 v{vT0}, {mask:#x}, v{vT0}")
        Q(f"v_cmp_ne_u32 vcc, 0, v{vT0}")
    def gather(name, loads, tags, stag, mask):
        ids = []
        def iss():
            if name+"g" in skip: return
            for n, t in enumerate(loads): ids.append(publish(f"{name}{n}", t.replace(" sc1", "")))
        def chk():
            if name+"g" in skip: return
            P.wait(*ids)
            tagcheck(P, tags, stag, mask)
            P(f"s_cbranch_vccnz L_slow_{name}")
            P.label(f"L_back_{name}")
            Q = Prog()
            Q.label(f"L_slow_{name}")
            Q(f"s_add_u32 s{sSpin}, s{sSpin}, 1")
            Q(f"s_cmp_gt_u32 s{sSpin}, 0x40000")
            Q(f"s_cbranch_scc1 L_back_{name}")
            for t in loads: Q.vm(t)
            Q.waitall()
            tagcheck(Q, tags, stag, mask)
            Q(f"s_cbranch_vccnz L_slow_{name}")
            Q(f"s_branch L_back_{name}")
            slow.append(Q)
        return iss, chk
    def publish(name, txt):
        P(f"s_cmp_lg_u32 s{sFar}, 0")
        P(f"s_cbranch_scc1 L_far_{name}")
        i = P.vm(txt)
        P.label(f"L_near_{name}")
        Q = Prog(); Q.label(f"L_far_{name}")
        Q.vm(txt.rstrip() + " sc1")
        Q(f"s_branch L_near_{name}"); slow.append(Q)
        return i
    def extract(D, dst, tau, t):
        rs = [r for r in range(4) if r != tau]
        src = D + tau
        for n, r in enumerate(rs):
            last = n == 2
            m = f"row_mask:0xf bank_mask:{1 << tau:#x}" if last else FULL
            P(f"v_add_f32_dpp v{dst if last else t}, v{D+r}, v{src} row_ror:{(4*(tau-r)) % 16} {m}")
            src = t
    def transp(dst, src, e):
        for q in range(4):
            P(f"v_perm_b32 v{dst+q}, v{src+4*(2*q+1)+(e>>1)}, v{src+4*(2*q)+(e>>1)}, s{sSel1 if e & 1 else sSel0}")
    def sum8(r, dst):
        P(f"""
        v_add_f32 v{r}, v{r}, v{r+1}
        v_add_f32 v{r+2}, v{r+2}, v{r+3}
        v_add_f32 v{r+4}, v{r+4}, v{r+5}
        v_add_f32 v{r+6}, v{r+6}, v{r+7}
        v_add_f32 v{r}, v{r}, v{r+2}
        v_add_f32 v{r+4}, v{r+4}, v{r+6}
        v_add_f32 v{dst}, v{r}, v{r+4}
        """)

    bg = []
    def B(at, fn, after=0): bg.append((at, fn, after))

    vSel = V.get(4); vL12, vPw, vPr, vL4 = [V.get() for _ in range(4)]
    def c_setup():
        if swap:
            P(f"s_bfe_u32 s{sKo}, s2, 0x10005")
            P(f"s_mul_i32 s{sKo}, s{sKo}, 40")
        P(f"""
        s_load_dword s{sTag}, {sp(rWS)}, 0
        s_load_dwordx2 {sp(rBV)}, s[0:1], 56
        s_load_dwordx2 {sp(rAK)}, s[0:1], 8
        s_load_dwordx2 {sp(rAV)}, s[0:1], 16
        s_load_dwordx2 {sp(rWO)}, s[0:1], s{sKo} offset:32
        s_load_dwordx2 {sp(rOUT)}, s[0:1], 80
        v_and_b32 v{vLane}, 63, v0
        v_mov_b32 v{vBig}, {BIG}
        """)
        if ipf and not ipf0: code_pf()
        desc(rBV, 1 << 26); desc(rAK, 1 << 27); desc(rAV, 1 << 27); desc(rWO, 3670016); desc(rOUT, 7168)
        P(f"""
        s_mov_b32 s{sSel0}, 0x05040100
        s_mov_b32 s{sSel1}, 0x07060302
        s_mov_b32 s{sC}, {CS:#x}
        s_mov_b32 s{sSpin}, 0
        v_mul_u32_u24 v{vL12}, 12, v{vLane}
        v_lshlrev_b32 v{vL4}, 2, v{vLane}
        v_lshlrev_b32 v{vPw}, 3, v0
        v_and_b32 v{vPr}, 3, v0
        v_bfe_u32 v{vT0}, v0, 3, 2
        v_lshl_add_u32 v{vPr}, v{vPr}, 2, v{vT0}
        v_lshrrev_b32 v{vT0}, 6, v0
        v_lshl_add_u32 v{vPr}, v{vT0}, 4, v{vPr}
        v_bfe_u32 v{vT0}, v0, 2, 1
        v_lshl_add_u32 v{vPr}, v{vPr}, 1, v{vT0}
        v_bfe_u32 v{vT0}, v0, 5, 1
        v_lshl_add_u32 v{vPr}, v{vT0}, 8, v{vPr}
        v_lshlrev_b32 v{vPr}, 2, v{vPr}
        v_lshrrev_b32 v{vT0}, 3, v0
        v_and_b32 v{vT1}, 7, v0
        v_lshlrev_b32 v{vVo}, 9, v{vT0}
        v_lshl_add_u32 v{vVo}, v{vT1}, 4, v{vVo}
        """)
        if not late: c_setup2()
    def c_setup2():
        P(f"""
        v_bfe_u32 v{vT0}, v0, 3, 1
        v_mul_u32_u24 v{vT0}, 0x0202, v{vT0}
        v_add_u32 v{vT0}, 0x0100, v{vT0}
        v_or_b32 v{vT2}, 0x0c0c0000, v{vT0}
        v_lshlrev_b32 v{vT0}, 16, v{vT0}
        v_or_b32 v{vT0}, 0x0c0c, v{vT0}
        """)
        vcc(0xaaaaaaaa)
        P(f"v_cndmask_b32 v{vT0}, v{vT2}, v{vT0}, vcc")
        P(f"v_mov_b32 v{vT2}, 0x0c0c0c0c")
        for r in range(4):
            vcc(0x03030303 << (2*r)); P(f"v_cndmask_b32 v{vSel+r}, v{vT2}, v{vT0}, vcc")

    vQD = V.get(32, 4); vTB = [V.get(4, 4), V.get(4, 4)]
    def proj_write(dst, tmp):
        for e0 in (0, 4):
            for n in range(3):
                for e in range(e0, e0+4):
                    D = vQD + 4*e; tau = e & 3
                    r = [x for x in range(4) if x != tau][n]
                    m = f"row_mask:0xf bank_mask:{1 << tau:#x}" if n == 2 else FULL
                    P(f"v_add_f32_dpp v{dst+(e >> 2) if n == 2 else tmp+tau}, v{D+r}, v{tmp+tau if n else D+tau} row_ror:{(4*(tau-r)) % 16} {m}")
        P(f"ds_write_b64 v{vPw}, {v2(dst)} offset:{L_QRED}")
        P("s_waitcnt lgkmcnt(0)")
    def proj_read(r):
        P("s_barrier")
        P(f"ds_read2st64_b32 {v2(r)}, v{vPr} offset0:{L_QRED//256} offset1:{L_QRED//256+2}")
    def proj_sum(r):
        P("s_waitcnt lgkmcnt(0)")
        P(f"v_add_f32 v{r}, v{r}, v{r+1}")
        xlane("v_add_f32", r, r+1, ["p32"])
    vFl, vFs, vFd, vFt = vXo, vWQo, V.get(), V.get()
    sFm = S.get(2)
    def tag_setup():
        P(f"""
        ; hand-off tag of this launch: differs in every byte from the tag the previous launch left at ws[0]
        s_add_u32 s{sTag}, s{sTag}, 0x9e3779b9
        """)
    def fc_setup():
        P(f"""
        ; one line per (class, wave, checkpoint): a dword for each of the 32 workgroups of the class
        s_bfe_u32 s{sFC}, s2, 0x30003
        s_lshl2_add_u32 s{sFC}, s{sFC}, s{sWv}
        s_lshl_b32 s{sFC}, s{sFC}, 11
        s_add_u32 s{sFC}, s{sFC}, {WS_FC}
        s_and_b32 s{sI}, s2, 7
        s_lshr_b32 s{sBoost}, s2, 6
        s_lshl3_add_u32 s{sI}, s{sBoost}, s{sI}
        v_cmp_eq_u32 {sp(sFm)}, s{sI}, v{vLane}
        v_cndmask_b32 v{vFs}, v{vBig}, v{vL4}, {sp(sFm)}
        v_cmp_gt_u32 {sp(sFm)}, 32, v{vLane}
        v_cndmask_b32 v{vFl}, v{vBig}, v{vL4}, {sp(sFm)}
        """)
    hid = []; vHd = V.get()
    def c_hello2():
        P(f"v_and_b32 v{vH}, 0xe0, v{vH}")
        P(f"v_and_or_b32 v{vH}, v0, 31, v{vH}")
        hid.append(P.vm(f"global_load_ubyte v{vHd}, v{vH}, {sp(sDbg)}"))
    def c_q():
        P.wait(*idwq)
        stamp("wq")
        for e in range(8):
            transp(vTB[e & 1], vWQ, e)
            P(f"v_mfma_f32_16x16x32_bf16 {v4(vQD+4*e)}, {v4(vX)}, {v4(vTB[e & 1])}, 0")
        proj_write(vWQ, vWQ+4)
        return 'lgk'
    def c_q4():
        r = vWQ
        proj_read(r)
        tag_setup()
        P(f"""
        s_lshr_b32 s{sT0}, s2, 7
        s_lshl2_add_u32 s{sT0}, s{sT0}, s{sWv}
        s_lshl_b32 s{sT0}, s{sT0}, 7
        s_add_u32 s{sT0}, s{sT0}, s{sCB}
        s_lshl_b32 s{sT0}, s{sT0}, 7
        s_add_u32 s{sT0}, s{sT0}, {WS_Q}
        v_mov_b32 v{r+9}, s{sTag}
        """)
        proj_sum(r)
        if True:
            P.wait(*hid)
            P(f"""
            ; class-local hand-offs go through L2 only if all 32 workgroups of the class were seen to report this XCC
            v_cmp_ne_u32 vcc, v{vHd}, v{vH+1}
            s_mov_b32 s{sFar}, vcc_lo
            """)
            if forcefar: P(f"s_mov_b32 s{sFar}, 1")
        P(f"""
        v_mov_b32_dpp v{r+1}, v{r} quad_perm:[1,0,3,2] {FULL}
        v_cvt_pk_bf16_f32 v{r+8}, v{r}, v{r+1}
        s_mov_b32 exec_lo, 0x55555555
        s_mov_b32 exec_hi, 0
        """)
        publish("q", f"buffer_store_dwordx2 {v2(r+8)}, v{vL4}, {srd(rWS)}, s{sT0} offen")
        P("s_mov_b64 exec, -1")
        stamp("qpub")
        return 'tag'
    def c_tlb():
        P(f"""
        s_lshr_b32 s{sT0}, s2, 2
        s_lshl_b32 s{sT0}, s{sT0}, 21
        s_lshr_b32 s{sT1}, s{sCB}, 4
        s_mul_i32 s{sT1}, s{sT1}, {512*896}
        v_cmp_eq_u32 vcc, 0, v0
        v_cndmask_b32 v{vT0}, 2.0, v0, vcc
        s_waitcnt lgkmcnt(0)
        """)
        if "V" in tlb: P.vm(f"buffer_load_dword v{vTl}, v{vT0}, {srd(rBV)}, s{sOff} offen nt")
        if "K" in tlb: P.vm(f"buffer_load_dword v{vTl}, v{vT0}, {srd(rAK)}, s{sT0} offen nt")
        if "A" in tlb: P.vm(f"buffer_load_dword v{vTl}, v{vT0}, {srd(rAV)}, s{sT0} offen nt")
        if "W" in tlb: P.vm(f"buffer_load_dword v{vTl}, v{vT0}, {srd(rWO)}, s{sT1} offen nt")
        if "O" in tlb: P.vm(f"buffer_load_dword v{vTl}, v{vT0}, {srd(rOUT)}, 0 offen nt")
    S0 = max(W, fast) - 1
    if late > 1: B(S0, c_setup); B(late, c_wsw)
    else: B(S0, c_wsw); B(0, c_setup)
    if tlb: B(0, c_tlb)
    B(hello, c_hello2)
    B(len(first) - 2 + (W if len(first) > 1 else 0), c_q); B(hello + W + 1, c_q4, 1)

    vQA = V.get(32, 4); vQB = V.get(16, 4)
    vG = vQD
    vGo = V.get(2); sG = [S.get() for _ in range(8)]
    ql = [f"buffer_load_dwordx4 {v4(vG+8*u+4*hf)}, v{vGo}, {srd(rWS)}, s{sG[0]} offen offset:{512*u+16*hf} sc1" for u in range(2) for hf in range(2)]
    ql += [f"buffer_load_dwordx4 {v4(vG+16+8*u+4*hf)}, v{vGo+1}, {srd(rWS)}, s{sG[1]} offen offset:{512*u+16*hf} sc1" for u in range(2) for hf in range(2)]
    q_iss, q_chk = gather("q", ql, range(vG+1, vG+32, 2), f's{sTag}', None)
    def c_qg():
        P(f"""
        v_lshrrev_b32 v{vGo}, 2, v{vLane}
        v_lshlrev_b32 v{vGo}, 5, v{vGo}
        v_bfe_u32 v{vT0}, v{vLane}, 1, 1
        v_lshl_add_u32 v{vGo+1}, v{vT0}, 10, v{vGo}
        s_lshr_b32 s{sG[0]}, s2, 2
        s_lshl_b32 s{sG[0]}, s{sG[0]}, 10
        s_add_u32 s{sG[0]}, s{sG[0]}, {WS_Q}
        s_lshr_b32 s{sG[1]}, s2, 3
        s_lshl_b32 s{sG[1]}, s{sG[1]}, 11
        s_add_u32 s{sG[1]}, s{sG[1]}, {WS_Q + 4*16384}
        """)
        q_iss()
    def c_qb():
        q_chk(); stamp("qgot")
        if spinif == "nq": P(f"s_mov_b32 s1, s{sSpin}")
        if spinif == "ns": P(f"s_mov_b32 s{sSpin}, 0")
        if spinif == "far1": P(f"s_min_u32 s1, s{sFar}, 20")
        for t in range(4):
            vcc(0x11111111 << t)
            for u in range(2):
                for q in range(4): P(f"v_cndmask_b32 v{vQA+16*u+4*t+q}, 0, v{vG+8*u+2*q}, vcc")
        for t in range(2):
            vcc(0x55555555 << t)
            for u in range(2):
                for q in range(4): P(f"v_cndmask_b32 v{vQB+8*u+4*t+q}, 0, v{vG+16+8*u+2*q}, vcc")
        return 'kok'
    if late: B(0, c_setup2)
    B(qg, c_qg); B(0, c_qb, WM+1)

    vD = [V.get(4, 4) for _ in range(4)]
    vSB, vTb = V.get(), V.get()
    def c_bqk():
        P.wait(sid[15])
        D = vWQ
        for tau in range(4):
            for n in range(4):
                t, u = n & 1, n >> 1
                P(f"v_mfma_f32_16x16x32_bf16 {v4(D+4*tau)}, {a4(sslot[4*tau+n])}, {v4(vQB+8*u+4*t)}, {v4(D+4*tau) if n else 0}")
                release(4*tau+n)
        for tau in range(4): extract(D+4*tau, vSB, tau, vT0)
        P(f"""
        v_cvt_pk_bf16_f32 v{vSB}, v{vSB}, v{vSB}
        v_lshlrev_b32 v{vT0}, 4, v0
        v_lshrrev_b32 v{vTb}, v{vT0}, s{sTag}
        v_mov_b32 v{vT0}, 0xffff
        v_bfi_b32 v{vSB}, v{vT0}, v{vTb}, v{vSB}
        """)
    B(15+WM, c_bqk)

    vWO = V.get(32, 4); vWOo = V.get()
    def wo_load(j):
        if j == 4: P(f"s_addk_i32 s{sAux}, {4*896}")
        if "wo" not in skip:
            P.vm(f"buffer_load_dwordx4 {v4(vQD+4*j)}, v{vWOo}, {srd(rWO)}, s{sAux} offen offset:{896*(j & 3)} {woflag}")

    vSA = V.get(4, 4)
    pend = []
    def k_consume(i):
        k = i - 32
        unit, n = k >> 4, k & 15
        t, u, par = n >> 2, (n >> 1) & 1, n & 1
        D = vD[2*(unit & 1) + par]
        first = (t == 0 and u == 0)
        P(f"v_mfma_f32_16x16x32_bf16 {v4(D)}, {a4(sslot[i])}, {v4(vQA+16*u+4*t)}, {0 if first else v4(D)}")
        release(i)
        while pend and n >= 2:
            pend.pop(0)()
        if n == 15:
            for p_ in range(2):
                pend.append(lambda p_=p_, unit=unit: extract(vD[2*(unit & 1)+p_], vSA + 2*(unit >> 2) + p_, unit & 3, vXT))
            if k == 127:
                while pend: pend.pop(0)()
                c_spub()
    def c_spub():
        o = vD[0]
        P(f"""
        s_lshl2_add_u32 s{sI}, s2, s{sWv}
        s_mul_i32 s{sI}, s{sI}, 768
        s_add_u32 s{sI}, s{sI}, {WS_SC}
        v_cvt_pk_bf16_f32 v{o}, v{vSA}, v{vSA+1}
        v_cvt_pk_bf16_f32 v{o+1}, v{vSA+2}, v{vSA+3}
        v_mov_b32 v{o+2}, v{vSB}
        """)
        if "scs" not in skip: publish("sc", f"buffer_store_dwordx3 {v3(o)}, v{vL12}, {srd(rWS)}, s{sI} offen")
        stamp("scpub")
    vSG = vWQ
    vE = vQA; vEB = vQA + 16
    vP = V.get(8, 4); vPB = vQB + 4; vM, vL, vMB, vLB = vQB, vQB+1, vQB+2, vQB+3
    vWt, vWtB, vFF = vQB+8, vQB+9, vQB+10
    sl = [f"buffer_load_dwordx3 {v3(vSG+4*k)}, v{vL12}, {srd(rWS)}, s{sG[k]} offen sc1" for k in range(4)]
    sl += [f"buffer_load_dword v{vSG+16+k}, v{vL12}, {srd(rWS)}, s{sG[4+k]} offen offset:8 sc1" for k in range(4)]
    sbr = [vSG+4*k+2 for k in range(4)] + [vSG+16+k for k in range(4)]
    s_iss, s_chk = gather("sc", sl, sbr, f'v{vTb}', 0xffff)
    def c_sg():
        P(f"""
        s_and_b32 s{sT0}, s2, 0xfc
        s_lshl2_add_u32 s{sT0}, s{sT0}, s{sWv}
        s_xor_b32 s{sT1}, s{sT0}, 16
        s_mul_i32 s{sT0}, s{sT0}, 768
        s_mul_i32 s{sT1}, s{sT1}, 768
        s_add_u32 s{sG[0]}, s{sT0}, {WS_SC}
        s_add_u32 s{sG[4]}, s{sT1}, {WS_SC}
        """)
        for k in (1, 2, 3, 5, 6, 7): P(f"s_add_u32 s{sG[k]}, s{sG[k-1]}, 3072")
        s_iss()
    def c_sm1():
        s_chk(); stamp("scgot")
        for r in range(8):
            src = vSG + 4*(r >> 1) + (r & 1)
            P(f"v_lshlrev_b32 v{vE+2*r}, 16, v{src}")
            P(f"v_and_b32 v{vE+2*r+1}, 0xffff0000, v{src}")
        P(f"v_max3_f32 v{vM}, v{vE}, v{vE+1}, v{vE+2}")
        for r in range(3, 15, 2): P(f"v_max3_f32 v{vM}, v{vM}, v{vE+r}, v{vE+r+1}")
        P(f"v_max_f32 v{vM}, v{vM}, v{vE+15}")
        xlane("v_max_f32", vM, vT0, ["x1", "x2", "r4", "r8", "p16", "p32"])
        P(f"v_mul_f32 v{vM}, s{sC}, v{vM}")
        for r in range(16):
            P(f"v_fma_f32 v{vE+r}, v{vE+r}, s{sC}, -v{vM}")
            P(f"v_exp_f32 v{vE+r}, v{vE+r}")
        for r in range(8): P(f"v_cvt_pk_bf16_f32 v{vP+r}, v{vE+2*r}, v{vE+2*r+1}")
        return 'vok'
    def c_sm3():
        for r in range(8): P(f"v_add_f32 v{vE+r}, v{vE+r}, v{vE+8+r}")
        sum8(vE, vL)
        xlane("v_add_f32", vL, vT0, ["x1", "x2", "r4", "r8", "p16", "p32"])
    def c_sb1():
        for k in range(8): P(f"v_and_b32 v{vEB+k}, 0xffff0000, v{sbr[k]}")
        P(f"v_max3_f32 v{vMB}, v{vEB}, v{vEB+1}, v{vEB+2}")
        P(f"v_max3_f32 v{vMB}, v{vMB}, v{vEB+3}, v{vEB+4}")
        P(f"v_max3_f32 v{vMB}, v{vMB}, v{vEB+5}, v{vEB+6}")
        P(f"v_max_f32 v{vMB}, v{vMB}, v{vEB+7}")
        xlane("v_max_f32", vMB, vT0, ["x1", "r4", "r8", "p16", "p32"])
        P(f"v_mul_f32 v{vMB}, s{sC}, v{vMB}")
        for k in range(8):
            P(f"v_fma_f32 v{vEB+k}, v{vEB+k}, s{sC}, -v{vMB}")
            P(f"v_exp_f32 v{vEB+k}, v{vEB+k}")
        for k in range(4):
            P(f"v_mov_b32_dpp v{vT0}, v{vEB+k} quad_perm:[1,0,3,2] {FULL}")
            P(f"v_cvt_pk_bf16_f32 v{vPB+k}, v{vEB+k}, v{vT0}")
        sum8(vEB, vLB)
        xlane("v_add_f32", vLB, vT0, ["x1", "r4", "r8", "p16", "p32"])
        P(f"""
        v_bfe_u32 v{vT0}, v{vLane}, 1, 1
        v_lshlrev_b32 v{vT0}, 6, v{vT0}
        s_lshl_b32 s{sT0}, s{sWv}, 4
        v_add_u32 v{vT0}, s{sT0}, v{vT0}
        ds_write_b128 v{vT0}, {v4(vM)} offset:{L_ST}
        """)
    vBc = [V.get(), V.get()]
    vTC = [V.get(4, 4), V.get(4, 4)]
    def pvop(bc, dst, src, lane):
        P(f"v_mov_b32_dpp v{bc}, v{src} row_newbcast:{lane} {FULL}")
        for q in range(4): P(f"v_perm_b32 v{dst+q}, v{bc}, v{bc}, v{vSel+q}")
    def c_bpv():
        for k in range(4):
            for tau in range(4):
                i = 16 + 4*tau + k
                for hd in range(2): pvop(vT0+hd, vTC[hd], vPB+k, 4*tau + 2*hd)
                for hd in range(2):
                    P(f"v_mfma_f32_16x16x32_bf16 {v4(vD[2+hd])}, {a4(sslot[i])}, {v4(vTC[hd])}, {v4(vD[2+hd]) if i > 16 else 0}")
                release(i)
    assert vT1 == vT0 + 1
    vAw, vAr = V.get(), V.get()
    vW4 = vQB + 12
    def c_sm4():
        s_ = vE
        P(f"""
        v_bfe_u32 v{vT0}, v{vLane}, 1, 1
        v_lshlrev_b32 v{vT0}, 6, v{vT0}
        s_waitcnt lgkmcnt(0)
        s_barrier
        """)
        for k in range(4): P(f"ds_read_b128 {v4(s_+4*k)}, v{vT0} offset:{L_ST+16*k}")
        P(f"""
        v_lshrrev_b32 v{vAw}, 4, v0
        v_lshlrev_b32 v{vAw}, 7, v{vAw}
        v_and_b32 v{vT1}, 7, v{vLane}
        v_lshl_add_u32 v{vAw}, v{vT1}, 4, v{vAw}
        v_and_b32 v{vAr}, 32, v{vLane}
        v_lshl_add_u32 v{vAr}, v{vT1}, 2, v{vAr}
        v_bfe_u32 v{vT1}, v{vLane}, 3, 2
        v_add_lshl_u32 v{vAr}, v{vAr}, v{vT1}, 2
        s_min_u32 s{sT0}, s{sWv}, 2
        s_lshl_b32 s{sT0}, s{sT0}, 11
        v_add_u32 v{vAr}, s{sT0}, v{vAr}
        v_mov_b32 v{vFF}, 0xff
        s_waitcnt lgkmcnt(0)
        """)
        for o, m, wt in ((0, vM, vWt), (2, vMB, vWtB)):
            P(f"v_max3_f32 v{vT0}, v{s_+o}, v{s_+4+o}, v{s_+8+o}")
            P(f"v_max_f32 v{vT0}, v{vT0}, v{s_+12+o}")
            for k in range(4):
                P(f"v_sub_f32 v{s_+4*k+o}, v{s_+4*k+o}, v{vT0}")
                P(f"v_exp_f32 v{s_+4*k+o}, v{s_+4*k+o}")
            P(f"v_sub_f32 v{wt}, v{m}, v{vT0}")
            P(f"v_exp_f32 v{wt}, v{wt}")
            P(f"v_mul_f32 v{vT1}, v{s_+o}, v{s_+o+1}")
            for k in range(1, 4): P(f"v_fmac_f32 v{vT1}, v{s_+4*k+o}, v{s_+4*k+o+1}")
            P(f"v_rcp_f32 v{vT1}, v{vT1}")
            P(f"v_mul_f32 v{wt}, v{wt}, v{vT1}")
            if rdw and o == 0:
                for k in range(4): P(f"v_mul_f32 v{vW4+k}, v{s_+4*k}, v{vT1}")
    def red_write(lst):
        P("s_mov_b32 exec_lo, 0x00ff00ff")
        P("s_mov_b32 exec_hi, 0xff00ff00")
        for acc, reg in lst: P(f"ds_write_b128 v{vAw}, {v4(acc)} offset:{L_RED+2048*reg}")
        P("s_mov_b64 exec, -1")
    def c_br1():
        for hd in range(2):
            for q in range(4):
                P(f"v_mul_f32_dpp v{vD[2+hd]+q}, v{vWtB}, v{vD[2+hd]+q} quad_perm:[{2*hd},{2*hd},{2*hd},{2*hd}] {FULL}")
        red_write([(vD[2], 1), (vD[3], 2)])
        stamp("ybdone")
    vOb = V.get(2)
    def c_br2():
        r = vWQ
        P("s_waitcnt lgkmcnt(0)")
        P("s_barrier")
        for k in range(4): P(f"ds_read2st64_b32 {v2(r+2*k)}, v{vAr} offset0:{L_RED//256+2*k} offset1:{L_RED//256+2*k+1}")
        P(f"""
        v_add_u32 v{vOb}, 64, v0
        v_and_b32 v{vOb}, 128, v{vOb}
        v_cmp_ne_u32 vcc, 0, v{vOb}
        v_cndmask_b32 v{vOb}, v{vBig}, v{vL4}, vcc
        s_waitcnt lgkmcnt(0)
        """)
        sum8(r, r)
        P(f"v_bfi_b32 v{vOb+1}, v{vFF}, v{vTb}, v{r}")
        if not bsplit: c_br3()
    def c_br3():
        t = f"buffer_store_dword v{vOb+1}, v{vOb}, {srd(rWS)}, s{sOp} offen"
        if swap: P.vm(t + " sc1")
        else: publish("ob", t)
    vOg, vOo, vYo = vGo+1, vL12, vGo
    vY0, vY1, vBp = V.get(), V.get(), V.get()
    sOp, sOg, sYp, sYg, sOutO = sG[0:5]
    sYx, sOwn = rX, rX+2
    brx = "s_bfe_u32 s%d, s2, 0x10005" % sT0 if swap else "s_lshr_b32 s%d, s2, 7" % sT0
    def c_fin():
        if prm:
            P(f"""
            ; projection role m = (b&1)*8 + 2*s + kh: the workgroups without a block are ones with s = 3
            s_and_b32 s{sT0}, s2, 3
            s_bfe_u32 s{sT1}, s2, 0x10002
            s_lshl1_add_u32 s{sT0}, s{sT0}, s{sT1}
            s_andn2_b32 s{sCB}, s{sCB}, 7
            s_or_b32 s{sCB}, s{sCB}, s{sT0}
            """)
        if swap:
            P(f"""
            s_bfe_u32 s{sT0}, s2, 0x20003
            s_lshr_b32 s{sT1}, s2, 6
            s_lshl2_add_u32 s{sT0}, s{sT0}, s{sT1}
            s_and_b32 s{sT1}, s2, 7
            s_lshl4_add_u32 s{sCB}, s{sT1}, s{sT0}
            """)
        P(f"""
        ; o and y words carry byte (column&3) of the tag in their low byte
        v_lshlrev_b32 v{vT0}, 3, v0
        v_lshrrev_b32 v{vTb}, v{vT0}, s{sTag}
        s_lshr_b32 s{sG[5]}, s{sTag}, 8
        s_lshr_b32 s{sG[6]}, s{sTag}, 16
        s_lshr_b32 s{sG[7]}, s{sTag}, 24
        ; O table [x][slot: A, B kh0, B kh1][b][512] dwords
        s_bfe_u32 s{sT0}, s2, 0x30003
        s_mul_i32 s{sOg}, s{sT0}, {3*8192}
        s_add_u32 s{sOg}, s{sOg}, {WS_O}
        s_lshr_b32 s{sT0}, s2, 6
        s_lshl_b32 s{sT0}, s{sT0}, 11
        s_add_u32 s{sOp}, s{sOg}, s{sT0}
        ; wave 0: A row block t ; waves 1,2: slot 1+kh, row block 4*(wave-1)+s
        s_and_b32 s{sT0}, s2, 4
        s_lshl_b32 s{sT0}, s{sT0}, 3
        s_lshl2_add_u32 s{sT0}, s{sWv}, s{sT0}
        s_and_b32 s{sT1}, s2, 3
        s_add_u32 s{sT0}, s{sT0}, s{sT1}
        s_addk_i32 s{sT0}, 28
        s_and_b32 s{sT1}, s2, 7
        s_cmp_eq_u32 s{sWv}, 0
        s_cselect_b32 s{sT0}, s{sT1}, s{sT0}
        s_lshl_b32 s{sT0}, s{sT0}, 8
        s_add_u32 s{sOp}, s{sOp}, s{sT0}
        s_lshr_b32 s{sT0}, s{sCB}, 4
        s_mul_i32 s{sOg}, s{sT0}, {3*8192}
        s_add_u32 s{sOg}, s{sOg}, {WS_O}
        {brx}
        s_lshl_b32 s{sT0}, s{sT0}, 13
        s_add_u32 s{sOg}, s{sOg}, s{sT0}
        s_and_b32 s{sT1}, s{sCB}, 1
        s_lshl_b32 s{sT1}, s{sT1}, 10
        s_add_u32 s{sOg}, s{sOg}, s{sT1}
        v_bfe_u32 v{vT0}, v0, 1, 1
        v_mul_lo_u32 v{vOg}, v{vT0}, s{sT0}
        v_bfe_u32 v{vT0}, v0, 2, 2
        v_lshl_add_u32 v{vOg}, v{vT0}, 11, v{vOg}
        v_lshrrev_b32 v{vT0}, 4, v0
        v_lshl_add_u32 v{vOg}, v{vT0}, 6, v{vOg}
        v_and_b32 v{vT0}, 1, v0
        v_lshl_add_u32 v{vOg}, v{vT0}, 5, v{vOg}
        ; wo lane (row group tid>>3, 16-byte chunk tid&7)
        v_lshrrev_b32 v{vT0}, 3, v0
        v_mul_u32_u24 v{vWOo}, {8*896}, v{vT0}
        v_and_b32 v{vT0}, 7, v0
        v_lshl_add_u32 v{vWOo}, v{vT0}, 4, v{vWOo}
        s_and_b32 s{sT1}, s{sCB}, 15
        v_mov_b32 v{vT1}, s{sT1}
        v_cmp_gt_u32 vcc, 14, v{vT1}
        v_cndmask_b32 v{vWOo}, v{vBig}, v{vWOo}, vcc
        s_lshr_b32 s{sT0}, s{sCB}, 4
        s_and_b32 s{sAux}, s{sCB}, 1
        s_lshl1_add_u32 s{sAux}, s{sT0}, s{sAux}
        s_mul_i32 s{sAux}, s{sAux}, {256*896}
        s_and_b32 s{sT0}, s{sCB}, 14
        s_lshl_b32 s{sT0}, s{sT0}, 6
        s_add_u32 s{sAux}, s{sAux}, s{sT0}
        v_lshlrev_b32 v{vPw}, 4, v0
        v_and_b32 v{vPr}, 1, v0
        v_bfe_u32 v{vT1}, v0, 3, 3
        v_lshl_add_u32 v{vPr}, v{vPr}, 3, v{vT1}
        v_lshrrev_b32 v{vT1}, 6, v0
        v_lshl_add_u32 v{vPr}, v{vT1}, 4, v{vPr}
        v_bfe_u32 v{vT1}, v0, 1, 2
        v_lshl_add_u32 v{vPr}, v{vPr}, 2, v{vT1}
        v_lshlrev_b32 v{vPr}, 2, v{vPr}
        v_lshlrev_b32 v{vOo}, 3, v{vT0}
        v_bfe_u32 v{vT0}, v{vLane}, 4, 1
        v_lshl_add_u32 v{vOo}, v{vT0}, 2, v{vOo}
        v_lshrrev_b32 v{vT0}, 5, v{vLane}
        v_lshl_add_u32 v{vOo}, v{vT0}, 1, v{vOo}
        v_mul_u32_u24 v{vYo}, {8192-128}, v{vT0}
        v_add_u32 v{vYo}, v{vYo}, v{vL4}
        {brx}
        s_mul_i32 s{sT0}, s{sT0}, 14
        s_add_u32 s{sT0}, s{sT0}, s{sT1}
        s_lshl_b32 s{sOutO}, s{sT0}, 6
        s_mul_i32 s{sYp}, s{sWv}, 1792
        s_add_u32 s{sOutO}, s{sOutO}, s{sYp}
        s_lshl2_add_u32 s{sT0}, s{sT0}, s{sWv}
        s_lshl_b32 s{sT0}, s{sT0}, 11
        s_add_u32 s{sYg}, s{sT0}, {WS_Y}
        s_and_b32 s{sT1}, s{sCB}, 1
        s_mul_i32 s{sT0}, s{sT1}, {8192-1024}
        s_sub_u32 s{sYp}, s{sYg}, s{sT0}
        s_lshr_b32 s{sT0}, s{sCB}, 4
        s_lshl_b32 s{sI}, s{sT0}, 7
        s_add_u32 s{sYp}, s{sYp}, s{sI}
        ; block m is summed by its workgroup of row block m&7, which keeps that half of its own result in registers
        s_lshl_b32 s{sI}, s{sT0}, 3
        s_lshl_b64 {sp(sOwn)}, 0xff, s{sI}
        s_lshl_b32 s{sI}, s{sT1}, 7
        v_lshl_add_u32 v{vBp}, v{vOo}, 1, s{sI}
        s_xor_b32 s{sI}, s{sT1}, 1
        s_lshl_b32 s{sI}, s{sI}, 10
        v_lshlrev_b32 v{vY0}, 4, v{vLane}
        v_add_u32 v{vY1}, 1024, v{vY0}
        v_add_u32 v{vT0}, s{sI}, v{vY0}
        v_cndmask_b32 v{vY0}, v{vY0}, v{vT0}, {sp(sOwn)}
        v_cndmask_b32 v{vY1}, v{vY1}, v{vT0}, {sp(sOwn)}
        s_sub_u32 s{sYx}, 0, s{sT1}
        s_not_b32 s{sYx+1}, s{sYx}
        s_and_b32 s{sT1}, s{sCB}, 7
        s_cmp_eq_u32 s{sT0}, s{sT1}
        s_cselect_b64 {sp(sYx)}, {sp(sYx)}, -1
        """)
    def c_re1(): hid.append(P.vm(f"global_load_ubyte v{vHd}, v{vH}, {sp(sDbg)} nt"))
    def c_re2():
        P.wait(hid[-1])
        P(f"""
        ; second look: a report that arrived after the first one no longer keeps the class off the L2 path
        v_cmp_ne_u32 vcc, v{vHd}, v{vH+1}
        s_mov_b32 s{sFar}, vcc_lo
        """)
        if forcefar: P(f"s_mov_b32 s{sFar}, 1")
    if recheck: B(recheck, c_re1); B(0, c_re2, WM+1)
    B(160+sg, c_sg); B(0, c_sm1, WM+1); B(0, c_sm3); B(0, c_sb1); B(0, c_bpv); B(0, c_sm4); B(0, c_br1); B(0, c_fin)
    def c_yw():
        if yw[1] == "c":
            P(f"""
            s_cmp_eq_u64 {sp(sYx)}, -1
            s_cselect_b32 s{sT0}, 0, 16
            v_lshlrev_b32 v{vT0}, 7, v{vLane}
            v_cmp_gt_u32 vcc, s{sT0}, v{vLane}
            v_cndmask_b32 v{vT0}, v{vBig}, v{vT0}, vcc
            """)
            P.vm(f"buffer_load_dword v{vTl+1}, v{vT0}, {srd(rWS)}, s{sYg} offen sc1")
        else:
            P.vm(f"buffer_load_dword v{vTl+1}, v{vYo}, {srd(rWS)}, s{sYp} offen sc1")
    if yw and yw[0] < bpub: B(yw[0], c_yw)
    def c_ow():
        P(f"v_cmp_gt_u32 vcc, 192, v0")
        P(f"v_cndmask_b32 v{vT0}, v{vBig}, v{vL4}, vcc")
        P.vm(f"buffer_load_dword v{vTl+1}, v{vT0}, {srd(rWS)}, s{sOp} offen sc1")
    if ow: B(ow, c_ow)
    if bsplit:
        B(bsplit, c_br2)
        if btail is None: B(bpub, c_br3)
    elif bpub: B(bpub, c_br2)
    if yw and yw[0] >= bpub and ytail is None: B(yw[0], c_yw)

    vAcc = vD[1]
    prepared = set()
    def v_prep(i):
        v = i - 160
        if i < NS and i not in prepared:
            pvop(vBc[v & 1], vTB[v & 1], vP + 2*(v & 3) + (v >> 6), (v >> 2) & 15); prepared.add(i)
    def v_consume(i):
        v = i - 160
        v_prep(i)
        P.wait(sid[i])
        P(f"v_mfma_f32_16x16x32_bf16 {v4(vAcc)}, {a4(sslot[i])}, {v4(vTB[v & 1])}, {v4(vAcc) if v else 0}")
        release(i)
        v_prep(i+1)

    xg = fc['xg'] if fc else 0
    if xg:
        vGs, vGl, vBs, vGd = [V.get() for _ in range(4)]; sBias = S.get()
        xcs = [cps[c] for c in fc['xc']]
        GL = 0x4000
    def fc_step(i):
        if i in cps:
            c = cps.index(i)
            if c == 0:
                assert st['tag']
                fc_setup()
                P(f"v_mov_b32 v{vFt}, s{sTag}")
                if fc['tab']:
                    m = min(fc['tab']); t = sum(((x - m)//2) << (4*k) for k, x in enumerate(fc['tab']))
                    P(f"""
                    s_lshl_b32 s{sTagQ}, s{sTagQ}, 2
                    s_lshr_b32 s{sTagQ}, {t:#x}, s{sTagQ}
                    s_and_b32 s{sTagQ}, s{sTagQ}, 15
                    s_lshl1_add_u32 s{sTagQ}, s{sTagQ}, {m}
                    """)
                if xg:
                    P(f"""
                    s_bfe_u32 s{sBias}, s2, 0x30003
                    s_lshl_b32 s{sBoost}, s{sBias}, 11
                    s_add_u32 s{sBoost}, s{sBoost}, {WS_G + GL}
                    v_mov_b32 v{vBs}, s{sBoost}
                    s_sub_u32 s{sBoost}, s{sBoost}, s{sFC}
                    v_writelane_b32 v{vFl}, s{sBoost}, 32
                    s_lshl2_add_u32 s{sI}, s{sI}, s{sWv}
                    s_cmp_eq_u32 s{sI}, {4*13+1}
                    s_cselect_b32 s{sFm}, 0xff, 0
                    s_mov_b32 s{sFm+1}, 0
                    v_lshlrev_b32 v{vGd}, 11, v{vLane}
                    v_add_u32 v{vGd}, {WS_G}, v{vGd}
                    v_cndmask_b32 v{vGl}, v{vBig}, v{vGd}, {sp(sFm)}
                    s_lshl_b32 s{sBias}, 1, s{sBias}
                    s_and_b32 s{sFm}, s{sFm}, s{sBias}
                    v_cndmask_b32 v{vGs}, v{vBig}, v{vGd}, {sp(sFm)}
                    v_cndmask_b32 v{vGl}, v{vGl}, v{vBig}, {sp(sFm)}
                    v_cndmask_b32 v{vBs}, v{vBig}, v{vBs}, {sp(sFm)}
                    s_mov_b32 s{sBias}, 0
                    """)
            look = xg and c - 1 in fc['xc']
            if xg and not look: P("s_mov_b32 exec_hi, 0")
            fcs['ids'][c] = P.vm(f"buffer_load_dword v{vFd}, v{vFl}, {srd(rWS)}, s{sFC} offen offset:{128*c}")
            if xg and not look: P("s_mov_b32 exec_hi, -1")
            P.vm(f"buffer_store_dword v{vFt}, v{vFs}, {srd(rWS)}, s{sFC} offen offset:{128*c}")
            if xg and i in xcs: P.vm(f"buffer_store_dword v{vFt}, v{vGs}, {srd(rWS)}, 0 offen offset:{128*c} sc1")
        if xg and i - fc['xd'] in xcs:
            fcs['g'] = P.vm(f"buffer_load_dword v{vGd}, v{vGl}, {srd(rWS)}, 0 offen offset:{128*cps.index(i - fc['xd'])} sc1")
        if xg and i - fc['xd'] - WM - 1 in xcs:
            c = cps.index(i - fc['xd'] - WM - 1)
            P.wait(fcs['g'])
            P(f"""
            v_cmp_eq_u32 {sp(sFm)}, v{vFt}, v{vGd}
            s_bcnt1_i32_b32 s{sFm}, s{sFm}
            v_add_u32 v{vGd}, s{sFm}, v{vFt}
            """)
            P.vm(f"buffer_store_dword v{vGd}, v{vBs}, {srd(rWS)}, 0 offen offset:{128*(c+1)}")
        if i - WM - 1 in cps:
            c = cps.index(i - WM - 1)
            P.wait(fcs['ids'].pop(c))
            pd = fc['Pd'] if not fc['cps'] else ((cps[c+1] - cps[c]) if c + 1 < len(cps) else NS - i)
            g = int(round(fc['gain'] * pd / 32 * 256))
            if fc['s3'] and i >= 150 and not fcs.get('s3'):
                fcs['s3'] = True
                P(f"""
                s_and_b32 s{sBoost}, s2, 3
                s_cmp_eq_u32 s{sBoost}, 3
                s_cselect_b32 s{sBoost}, {fc['s3']}, 0
                s_add_i32 s{sTagQ}, s{sTagQ}, s{sBoost}
                """)
            P(f"""
            v_cmp_eq_u32 {sp(sFm)}, v{vFt}, v{vFd}
            s_bcnt1_i32_b32 s{sBoost}, s{sFm}
            s_mul_i32 s{sBoost}, s{sBoost}, {g}
            s_sub_i32 s{sBoost}, s{sBoost}, {int(fc['r0'] * 32)*g}
            """)
            if xg and c - 1 in fc['xc']:
                P(f"""
                v_readlane_b32 s{sFm}, v{vFd}, 32
                s_sub_u32 s{sFm}, s{sFm}, s{sTag}
                s_mul_i32 s{sBias}, s{sFm}, {int(xg*256)}
                s_sub_i32 s{sBias}, s{sBias}, {int(xg*256*fc['x0'])}
                s_cmp_lt_u32 s{sFm}, 8
                s_cselect_b32 s{sBias}, s{sBias}, 0
                """)
            if xg and (fc['hold'] or c - 1 in fc['xc']): P(f"s_add_i32 s{sBoost}, s{sBoost}, s{sBias}")
            P(f"s_ashr_i32 s{sBoost}, s{sBoost}, 8")
            if fc['tab']: P(f"s_add_i32 s{sBoost}, s{sBoost}, s{sTagQ}")
            fcs['start'] = i + 1

    nk, nv = 32, 160
    jw = 0
    bi = 0; lastbg = -1
    cur = None
    def consume_one():
        nonlocal nk, nv
        if st['kok'] and nk < 160 and nk <= land[0]:
            k_consume(nk); nk += 1
        elif st['vok'] and nv <= land[0]:
            v_consume(nv); nv += 1
        else: return False
        slots.extend(freed); freed.clear()
        return True
    def splittable(items, n):
        full = True; open_br = False
        for it in items[:n]:
            if it[0] == 'i':
                t = it[1]
                if t.startswith(('s_mov_b32 exec', 's_mov_b64 exec')): full = t.endswith('-1') and 'b64' in t
                if t.startswith('s_cbranch_scc'): open_br = True
            elif it[0] == 'l': open_br = False
        last = items[n-1]
        if last[0] == 'i' and last[1].startswith(('s_cmp', 's_cbranch', 's_getpc')): return False
        return full and not open_br
    minfree = 99
    for i in range(NS):
        m0 = len(P.ir)
        issue(i); fc_step(i)
        if i + 1 == hpos: hello_store()
        if i + 1 == fast: block2()
        if i + 1 < len(first):
            for _ in range(first[i+1]): wq_load()
        minfree = min(minfree, len(slots))
        used = lambda: sum(cost(x) for x in P.ir[m0:])
        consume_one()
        lim = 10**9 if i == S0 else budget
        while True:
            if cur is None:
                if bi < len(bg) and bg[bi][0] <= i and lastbg + bg[bi][2] <= i and used() < lim:
                    keep = P.ir; P.ir = []
                    flag = bg[bi][1]()
                    cur = [P.ir, flag, list(freed), 0]; freed.clear(); P.ir = keep; bi += 1
                    if bg[bi-1][1] not in (c_setup, c_wsw, c_hello2, c_tlb): lim = min(lim, used() + budget) if i == S0 else lim
                else: break
            items = cur[0]; n = cur[3]; u = used()
            while n < len(items) and not (u >= lim and n > cur[3] and splittable(items, n)):
                u += cost(items[n]); n += 1
            P.ir.extend(items[cur[3]:n]); cur[3] = n
            if n < len(items): break
            if cur[1]: st[cur[1]] = True
            slots.extend(cur[2]); cur = None; lastbg = i
        c = 1
        while c < maxcatch and (used() < budget or len(slots) < 3) and consume_one(): c += 1
    assert bi == len(bg) and cur is None and nk == 160, (bi, len(bg), nk)
    stamp("lastiss")
    P("; ---- tail begins")
    if spinif in ("retry", "ns"): P(f"s_mov_b32 s1, s{sSpin}")
    if tpad is not None:
        P("s_branch L_tail"); P.raw(f".p2align {tpad[0]}")
        if tpad[1]: P.raw(f".fill {tpad[1]}, 4, 0xbf800000")
        P.label("L_tail")
    def wo_next():
        nonlocal jw
        if ytail == jw: c_yw()
        if btail == jw: c_br3()
        wo_load(jw); jw += 1
    while tight and nv < NS:
        if nv == NS + jw - wopace[0] and nv < NS - 1:
            P.wait(sid[nv]); wo_next()
        v_consume(nv); nv += 1
    while tight and jw < 8: wo_next()
    while nv < NS:
        for _ in range(wolate):
            if jw < 8:
                if wopace:
                    tgt = sid[min(NS - 1, NS + jw - wopace[0])]
                    if wopace[1] is None: P.wait(tgt)
                    else: P.cwait(tgt, None, [f"s_cmp_gt_i32 s{sBoost}, {wopace[1]}"])
                if ytail == jw: c_yw()
                if btail == jw: c_br3()
                wo_load(jw); jw += 1
        v_consume(nv); nv += 1
    while jw < 8: wo_load(jw); jw += 1
    stamp("vdone")

    r = vWQ
    if not rdw:
        for q in range(4): P(f"v_mul_f32 v{vAcc+q}, v{vAcc+q}, v{vWt}")
    red_write([(vAcc, 0)])
    P("s_waitcnt lgkmcnt(0)")
    P("s_barrier")
    P(f"s_cmp_lg_u32 s{sWv}, 0" if bpub else f"s_cmp_eq_u32 s{sWv}, 3")
    P("s_cbranch_scc1 L_near_o")
    for k in range(4): P(f"ds_read2st64_b32 {v2(r+2*k)}, v{vAr} offset0:{L_RED//256+2*k} offset1:{L_RED//256+2*k+1}")
    if rdw:
        for k in range(4):
            P(f"s_waitcnt lgkmcnt({3-k})")
            P(f"v_add_f32 v{r+2*k}, v{r+2*k}, v{r+2*k+1}")
            P(f"v_mul_f32 v{r}, v{r}, v{vW4}" if k == 0 else f"v_fmac_f32 v{r}, v{r+2*k}, v{vW4+k}")
    else:
        P("s_waitcnt lgkmcnt(0)")
        sum8(r, r)
    P(f"v_bfi_b32 v{r}, v{vFF}, v{vTb}, v{r}")
    t = f"buffer_store_dword v{r}, v{vL4}, {srd(rWS)}, s{sOp} offen"
    if swap: P.vm(t + " sc1"); P.label("L_near_o")
    else: publish("o", t)
    stamp("opub")
    P(f"""
    s_and_b32 s{sT0}, s{sCB}, 15
    s_cmp_ge_u32 s{sT0}, 14
    s_cbranch_scc1 L_done
    """)
    g = vQA; sMiss = sFm
    def ppoll(Q, name, lds, sets, dst, mid=None):
        n = len(lds); D = len(sets)
        def first():
            for k in range(n): Q(lds[k].replace("@", v4(sets[0]+4*k)))
        mid(Q, n, first)
        Q(f"s_mov_b64 {sp(sMiss)}, -1")
        if D > 1:
            Q(f"s_not_b32 s{sT0}, s{sTag}")
            for b in sets[1:]: Q(f"v_mov_b32 v{b}, s{sT0}")
        Q.label(f"L_poll{name}")
        for d in list(range(1, D)) + [0]:
            b = sets[d]
            Q(f"s_waitcnt vmcnt({n*(D-1)})")
            tagcheck(Q, range(b, b+4*n), [f's{x}' for x in [sTag] + sG[5:8]], 0xff)
            Q("s_wqm_b64 vcc, vcc")
            Q(f"s_andn2_b64 exec, {sp(sMiss)}, vcc")
            for k in range(4*n): Q(f"v_and_b32 v{dst+k}, 0xffffff00, v{b+k}")
            Q(f"s_and_b64 {sp(sMiss)}, {sp(sMiss)}, vcc")
            Q(f"s_cbranch_scc0 L_got{name}")
            Q(f"s_mov_b64 exec, {sp(sMiss)}")
            for k in range(n): Q(lds[k].replace("@", v4(b+4*k)))
            Q("s_mov_b64 exec, -1")
        Q(f"s_add_u32 s{sSpin}, s{sSpin}, 1")
        Q(f"s_cmp_gt_u32 s{sSpin}, 0x20000")
        Q(f"s_cbranch_scc0 L_poll{name}")
        Q.label(f"L_got{name}")
        Q("s_mov_b64 exec, -1")
    def mid(Q, n, first):
        if opos == 0: first()
        for q in range(4):
            Q(f"s_waitcnt vmcnt({(n if q >= opos else 0) + 6 - 2*q + sum(1 for z in (ytail, btail) if z is not None and z > 2*q+1)})")
            if q + 1 == opos: first()
            for e in range(8):
                Q(f"v_perm_b32 v{vWO+4*e+q}, v{vQD+4*(2*q+1)+(e>>1)}, v{vQD+4*(2*q)+(e>>1)}, s{sSel1 if e & 1 else sSel0}")
    ppoll(P, "O", [f"buffer_load_dwordx4 @, v{vOg}, {srd(rWS)}, s{sOg} offen offset:{16*k} sc1" for k in range(2)], [g+8, g+16, g+24][:DO], g, mid)
    P("s_bitcmp1_b32 s2, 5" if swap else "s_cmp_ge_u32 s2, 128")
    P("s_cbranch_scc1 L_addB")
    P.label("L_proj")
    Q = Prog(); Q.label("L_addB")
    for k in range(8): Q(f"v_add_f32_dpp v{g+k}, v{g+k}, v{g+k} quad_perm:[2,3,0,1] {FULL}")
    Q("s_branch L_proj"); slow.insert(0, Q)
    stamp("ogot")
    for q in range(4): P(f"v_cvt_pk_bf16_f32 v{vX+q}, v{g+2*q}, v{g+2*q+1}")
    for e in range(8): P(f"v_mfma_f32_16x16x32_bf16 {v4(vQD+4*e)}, {v4(vX)}, {v4(vWO+4*e)}, 0")
    for e in range(8):
        h = e & 1
        P(f"v_add_f32_dpp v{r+(e >> 1)}, v{vQD+4*e+1-h}, v{vQD+4*e+h} row_ror:8 row_mask:0xf bank_mask:{0xc if h else 0x3:#x}")
    P(f"""
    ds_write_b128 v{vPw}, {v4(r)} offset:{L_QRED}
    s_waitcnt lgkmcnt(0)
    s_barrier
    ds_read2st64_b32 {v2(r)}, v{vPr} offset0:{L_QRED//256} offset1:{L_QRED//256+4}
    ds_read2st64_b32 {v2(r+2)}, v{vPr} offset0:{L_QRED//256+8} offset1:{L_QRED//256+12}
    s_cmp_eq_u64 {sp(sYx)}, -1
    s_waitcnt lgkmcnt(0)
    v_add_f32 v{r}, v{r}, v{r+1}
    v_add_f32 v{r+2}, v{r+2}, v{r+3}
    v_add_f32 v{r}, v{r}, v{r+2}
    v_bfi_b32 v{r+1}, v{vFF}, v{vTb}, v{r}
    s_mov_b64 exec, {sp(sYx)}
    """)
    t = f"buffer_store_dword v{r+1}, v{vYo}, {srd(rWS)}, s{sYp} offen"
    if swap: publish("y", t); P(f"s_cmp_eq_u64 {sp(sYx)}, -1")
    else: P.vm(t + " sc1")
    stamp("yapub")
    P("s_cbranch_scc1 L_done")
    P("s_mov_b64 exec, -1")
    f = vP
    def midy(Q, n, first): first(); Q(f"ds_bpermute_b32 v{r+2}, v{vBp}, v{r}")
    ppoll(P, "Y", [f"buffer_load_dwordx4 @, v{vy}, {srd(rWS)}, s{sYg} offen sc1" for vy in (vY0, vY1)], [vWO+8*k for k in range(4)][:DY], f, midy)
    stamp("fgot")
    P(f"s_not_b64 exec, {sp(sOwn)}")
    for k in range(4): P(f"v_add_f32 v{f+k}, v{f+k}, v{f+4+k}")
    P("s_mov_b64 exec, -1")
    P(f"""
    v_permlane32_swap_b32 v{f}, v{f+1}
    v_permlane32_swap_b32 v{f+2}, v{f+3}
    v_add_f32 v{f}, v{f}, v{f+1}
    v_add_f32 v{f+2}, v{f+2}, v{f+3}
    v_permlane16_swap_b32 v{f}, v{f+2}
    v_add_f32 v{f}, v{f}, v{f+2}
    """)
    xlane("v_add_f32", f, None, ["r8"])
    P("s_waitcnt lgkmcnt(0)")
    P(f"v_add_f32 v{f}, v{f}, v{r+2}")
    P(f"""
    v_cvt_pk_bf16_f32 v{f}, v{f}, v{f}
    s_mov_b32 exec_lo, 0x00ff00ff
    s_mov_b32 exec_hi, 0x00ff00ff
    """)
    P.vm(f"buffer_store_short v{f}, v{vOo}, {srd(rOUT)}, s{sOutO} offen")
    P(f"""
    s_cmp_lg_u32 s{sOutO}, 0
    s_cbranch_scc1 L_done
    s_mov_b64 exec, 1
    v_mov_b32 v{f+2}, s{sTag}
    """)
    P.vm(f"buffer_store_dword v{f+2}, v{vOo}, {srd(rWS)}, 0 offen")
    P.label("L_done")
    if spin:
        if spinif == "far": P(f"s_cmp_eq_u32 s{sFar}, 0\ns_cbranch_scc1 L_end")
        if spinif == "retry": P(f"s_cmp_eq_u32 s1, 0\ns_cbranch_scc1 L_end")
        if spinif in ("nq", "ns", "far1"): P(f"s_waitcnt lgkmcnt(0)\ns_mul_i32 s1, s1, 100\ns_add_u32 s{sSt}, s{sSt}, s1")
        if probe:
            P(f"s_waitcnt lgkmcnt(0)\ns_sub_u32 s{sLim}, s{sPr}, s{sSt}\ns_mul_i32 s{sLim}, s{sLim}, {probe[1]}\ns_add_u32 s{sLim}, s{sLim}, {spin}")
            if len(probe) > 2: P(f"s_and_b32 s{sT0}, s2, {probe[2]}\ns_cmp_lg_u32 s{sT0}, {probe[3]}\ns_cbranch_scc1 L_end")
        P.label("L_spin")
        P(f"""
        s_memrealtime {sp(sNow)}
        s_waitcnt lgkmcnt(0)
        s_sub_u32 s{sNow}, s{sNow}, s{sSt}
        s_cmp_lt_i32 s{sNow}, {('s%d' % sLim) if probe else spin}
        s_cbranch_scc1 L_spin
        """)
    if diag:
        P("s_mov_b64 exec, -1")
        stamp("end")
        P(f"""
        s_waitcnt lgkmcnt(0) vmcnt(0)
        s_lshl_b32 s{sT0}, s2, 2
        s_add_u32 s{sT0}, s{sT0}, s{sWv}
        s_lshl_b32 s{sT0}, s{sT0}, 7
        s_add_u32 s{sT0}, s{sT0}, {WS_DIAG}
        v_mov_b32 v{vT1}, 0
        s_mov_b64 exec, 1
        """)
        def dump(sreg, off):
            P(f"v_mov_b32 v{vT0}, s{sreg}")
            P.vm(f"buffer_store_dword v{vT0}, v{vT1}, {srd(rWS)}, s{sT0} offen offset:{off}")
        for n, (name, rr) in enumerate(stamps): dump(rr, 4*n)
        dump(sSpin, 4*len(stamps)); dump(sFar, 116)
        P(f"s_getreg_b32 s{sT1}, hwreg(HW_REG_XCC_ID)"); dump(sT1, 120)
        P(f"s_getreg_b32 s{sT1}, hwreg(HW_REG_HW_ID)"); dump(sT1, 124)
    P.label("L_end")
    P("s_endpgm")

    body, stats = P.render()
    for Q in slow: body += Q.render()[0]
    body += 'L_code_end:\n'
    if top: body += f'.if {32*128*ipf} > L_code_end - L_pc\n.fill ({32*128*ipf} - (L_code_end - L_pc))/4, 4, 0xbf810000\n.endif\n'
    head = open("cdna_kernels/" + KNAME[:-7] + ".s.ref").read().split("; Override launch")[0]
    txt = head + f"; @launch grid=(256,1,1) block=(256,1,1) lds={L_TOTAL}\n" + HEADER
    txt += f'.amdgcn_target "amdgcn-amd-amdhsa--gfx950"\n.text\n.globl {KNAME}\n.p2align 8\n.type {KNAME},@function\n{KNAME}:\n'
    txt += body
    txt += f""".section .rodata,"a"
.p2align 6
.amdhsa_kernel {KNAME}
  .amdhsa_next_free_vgpr 512
  .amdhsa_next_free_sgpr 102
  .amdhsa_accum_offset 256
  .amdhsa_group_segment_fixed_size 0
  .amdhsa_kernarg_size 104
  .amdhsa_user_sgpr_count 2
  .amdhsa_user_sgpr_kernarg_segment_ptr 1
  .amdhsa_system_sgpr_workgroup_id_x 1
.end_amdhsa_kernel
"""
    ids = list(range(256))
    act = [L for L in ids if (((L >> 6) & 1)*8 + (L & 7)) < 14]
    fin = [L for L in act if ((L >> 3) & 7) == (L & 7)]
    if prm:
        mm = lambda L: ((L >> 6) & 1)*8 + 2*(L & 3) + ((L >> 2) & 1)
        act = [L for L in ids if mm(L) < 14]; fin = [L for L in act if (mm(L) & 7) == ((L >> 3) & 7)]
    if swap:
        mm = lambda L: 4*((L >> 3) & 3) + (L >> 6)
        act = [L for L in ids if mm(L) < 14]; fin = [L for L in act if (mm(L) & 7) == (L & 7)]
    return txt, dict(stats, vhw=V.hw, shw=S.hw, minfree=minfree, stamps=[n for n, _ in stamps], who=dict(ogot=act, yapub=act, fgot=fin))

if __name__ == "__main__":
    import json
    kw = json.loads(sys.argv[2]) if len(sys.argv) > 2 else {}
    t, s = gen(**kw)
    open(sys.argv[1], "w").write(t)
    s.pop('who')
    print(s, file=sys.stderr)
```

```python
import sys, math, struct
from asmlib import Prog, Alloc
KNAME = "concat_heads__mha_block_cached__sliding_block_cached__decode_kernel"

WS_Q, WS_SC, WS_O, WS_FC, WS_Y, WS_G, WS_DIAG = 0x10000, 0x40000, 0x100000, 0x130000, 0x140000, 0x180000, 0x800000
L_QRED, L_ST, L_RED, L_TOTAL = 0, 4096, 4352, 4352 + 3*2048
CS = struct.unpack('<I', struct.pack('<f', math.log2(math.e) / 16.0))[0]
BIG = 0x7ff00000
FULL = "row_mask:0xf bank_mask:0xf"

AUXCOST = [8]
def cost(it):
    if it[0] == 'vm': return 8 if ' a[' in it[1] or 'store' in it[1] else AUXCOST[0]
    if it[0] != 'i': return 2
    t = it[1]
    if t.startswith(';'): return 0
    if t.startswith('v_mfma'): return 16
    if t.startswith(('v_exp', 'v_log', 'v_rcp')): return 10
    if '_dpp' in t or t.startswith('v_permlane'): return 8
    if t.startswith('ds_'): return 12
    if t.startswith('s_waitcnt'): return 60
    if t.startswith('s_barrier'): return 30
    return 4

HEADER = """;
; One launch, 256 workgroups x 4 waves (one wave per SIMD); generated by a script, straight-line code.
; Logical id = b(2) | x(3) | t(3); the 32 workgroups with the same x form a class (A heads 2x, 2x+1, B kv head x).
;   1. q = x @ wq: every workgroup computes one 32-column block for the 4 batches and hands it to its class.
;   2. K streams (B window, then A), keys split over the workgroups of a (batch, head); MFMA scores, rounded to bf16.
;   3. scores are exchanged inside the (batch, x) group; every wave takes the true max / sum of its keys, the
;   4. V streams split along the head dimension (64 columns per workgroup); MFMA P.V gives normalised o slices.
;   5. o is written through for everyone while wo streams in; 224 workgroups multiply it with a 256 x 64 block
;      of wo (a class owns two column blocks of one branch); the 16 partial sums of an output are handed to
;      one wave of the class, added and stored as bf16.
; Hand-offs carry an in-band tag = ws[0] + constant (ws[0] is replaced by the tag at the end), so data of an
; earlier launch is never accepted. Class-local hand-offs stay in L2 only after all 32 workgroups of the class
; have been seen (through d_debug) on this XCC; otherwise every store and load of them is sc1.
"""

def gen(W=5, qg=33, sg=21, wflag="", woflag="nt", diag=False, skip=(), spin=0, forcefar=False, fc=None, budget=150, maxcatch=4,
        bpub=283, DO=1, DY=2, wolate=1, auxcost=70, wsl=32, first=(5, 4), hello=5, tpad=None, ipf=6, ipf0=True, tlb=None, qw=True, zones=(), rot=None, swap=True, ow=None, W0=(24, 6), yw=(287, 'p'), noO=True, fakeQ=0, xpos=0, hpos=0, spinif=None, probe=None, fast=3, top=True, recheck=120, prm=False, wopace=(5, None), opos=3, ypf=False, ytail=6, bsplit=232, btail=2, late=1, tight=True, rdw=True, S00=None, qat=None, help3=0):
    AUXCOST[0] = auxcost
    P = Prog()
    V = Alloc('v', 1, 256); S = Alloc('s', 3, 100)
    slots = list(range(64))
    def a4(s): return f"a[{4*s}:{4*s+3}]"
    def v4(r): return f"v[{r}:{r+3}]"
    def v3(r): return f"v[{r}:{r+2}]"
    def v2(r): return f"v[{r}:{r+1}]"
    def srd(r): return f"s[{r}:{r+3}]"
    def sp(r): return f"s[{r}:{r+1}]"
    def vcc(m): P(f"s_mov_b32 vcc_lo, {m:#x}"); P(f"s_mov_b32 vcc_hi, {m:#x}")
    slow = []
    stamps = []
    def stamp(name):
        if probe and name == probe[0]:
            P(f"s_memrealtime {sp(sPr)}")
        if diag:
            r = S.get(2); stamps.append((name, r)); P(f"s_memrealtime {sp(r)}")
    fcs = dict(start=None, ids={})
    if probe: sPr = S.get(2); sLim = S.get()
    st = dict(kok=False, vok=False, lgk=False, tag=False)
    if fc is not None:
        fc = dict(dict(first=16, Pd=32, dW=2, r0=0.6, gain=2.5, xg=0, x0=3.5, xd=1, xc=(1, 3, 5), hold=True, neg=None, ns=2, s3=10, cps=(16, 40, 72, 104, 136, 168, 196, 224, 248, 266), tab=(4, -8, 2, -8, 10, 0, 6, -4)), **fc)
        WM = W + fc['dW']
        cps = list(fc['cps'] or range(fc['first'], 288 - WM - 6, fc['Pd']))
    else:
        WM = W; cps = []

    rX, rWQ, rBK, rBV, rAK, rAV, rWO, rWS, rOUT = [S.get(4) for _ in range(9)]
    sT0, sT1, sI, sWv, sTag, sOff, sAux, sSel0, sSel1, sC, sSpin, sCB, sTagQ, sFar, sBoost, sFC, sKo = [S.get() for _ in range(17)]
    vLane, vT0, vT1, vT2, vBig = [V.get() for _ in range(5)]
    vXo, vWQo, vKo, vVo = [V.get() for _ in range(4)]
    def desc(r, sz):
        P(f"s_mov_b32 s{r+2}, {sz}"); P(f"s_mov_b32 s{r+3}, 0x20000")
    sDbg = S.get(2); vH = V.get(2)
    vXT = V.get(); vHp = V.get()
    def code_pf_top():
        P("; the straight-line code below is read once: each workgroup pulls its share of it towards its L2 now")
        P(f"s_getpc_b64 {sp(rOUT+2)}")
        P.label("L_pc")
        P(f"""
        s_lshr_b32 s{sT0}, s2, 3
        s_mulk_i32 s{sT0}, {128*ipf}
        v_min_u32 v{vT1}, {ipf-1}, v0
        v_lshl_add_u32 v{vT1}, v{vT1}, 7, s{sT0}
        """)
        P.vm(f"global_load_dword v{vXT}, v{vT1}, {sp(rOUT+2)}")
    def code_pf():
        if top: return
        P(f"s_getpc_b64 {sp(rOUT+2)}")
        P.label("L_pc")
        P(f"""
        v_and_b32 v{vT0}, {31 if ipf > 1 else 255}, v{vH}
        v_min_u32 v{vT1}, {ipf-1}, v0
        v_mad_u32_u24 v{vT0}, v{vT0}, {ipf}, v{vT1}
        v_lshlrev_b32 v{vT0}, 7, v{vT0}
        v_min_u32 v{vT0}, L_code_end-L_pc-4, v{vT0}
        """)
        P.vm(f"global_load_dword v{vXT}, v{vT0}, {sp(rOUT+2)}")
    hl1 = f"""s_load_dwordx2 {sp(sDbg)}, s[0:1], 88
    s_getreg_b32 s{sTagQ}, hwreg(HW_REG_XCC_ID, 0, 4)
    ; byte (id&7)*32 + (id>>3) of the zeroed debug buffer reports this workgroup's XCC
    s_mul_i32 s{sT0}, s2, 0x101
    s_bfe_u32 s{sT0}, s{sT0}, 0x80003
    v_mov_b32 v{vH}, s{sT0}
    v_add_u32 v{vH+1}, s{sTagQ}, 1"""
    if fast:
        P("s_cmpk_ge_u32 s2, 256")
        P("s_cbranch_scc1 L_end")
        stamp("start")
        if spin:
            sSt = S.get(2); sNow = S.get(2); P(f"s_memrealtime {sp(sSt)}")
        P(f"""
        s_load_dwordx2 {sp(rBK)}, s[0:1], 48
        s_load_dwordx2 {sp(rWS)}, s[0:1], 96
        """)
        if top: code_pf_top()
        P(f"""
        ; logical id = b(2) | x(3) | t(3): workgroups that are 8 apart share x (L2 locality only)
        s_and_b32 s{sCB}, s2, 7
        s_lshr_b32 s{sI}, s2, 6
        s_lshl3_add_u32 s{sI}, s{sI}, s{sCB}
        s_bfe_u32 s{sT1}, s2, 0x30003
        s_lshl4_add_u32 s{sOff}, s{sI}, 12
        s_lshl3_add_u32 s{sOff}, s{sOff}, s{sT1}
        s_lshl_b32 s{sOff}, s{sOff}, 14
        s_lshl_b32 s{rBK+2}, 1, 26
        s_mov_b32 s{rBK+3}, 0x20000
        v_lshrrev_b32 v{vT0}, 6, v0
        v_lshrrev_b32 v{vT2}, 2, v0
        v_and_b32 v{vT1}, 3, v0
        v_and_b32 v{vXo}, 3, v{vT2}
        v_lshl_add_u32 v{vKo}, v{vT0}, 2, v{vXo}
        v_lshl_add_u32 v{vKo}, v{vKo}, 6, v{vT1}
        v_and_b32 v{vWQo}, 12, v{vT2}
        v_add_lshl_u32 v{vKo}, v{vKo}, v{vWQo}, 4
        s_waitcnt lgkmcnt(0)
        """)
        stamp("karg")
    def block2():
        P(f"""
        s_lshr_b32 s{sKo}, s2, 7
        s_mul_i32 s{sKo}, s{sKo}, 40
        s_load_dwordx2 {sp(rX)}, s[0:1], s{sKo}
        s_load_dwordx2 {sp(rWQ)}, s[0:1], s{sKo} offset:24
        {hl1}
        s_bfe_u32 s{sT0}, s2, 0x40003
        s_lshl4_add_u32 s{sCB}, s{sCB}, s{sT0}
        s_lshl_b32 s{sAux}, s{sCB}, 6
        s_lshl3_add_u32 s2, s{sI}, s{sT1}
        v_readfirstlane_b32 s{sWv}, v{vT0}
        v_lshlrev_b32 v{vWQo}, 12, v{vT2}
        v_add_lshl_u32 v{vWQo}, v{vWQo}, v{vT1}, 4
        v_cmp_gt_u32 vcc, 56, v{vT2}
        v_mad_u32_u24 v{vXo}, v{vXo}, 55, v{vT2}
        v_add_lshl_u32 v{vXo}, v{vXo}, v{vT1}, 4
        v_cndmask_b32 v{vXo}, 2.0, v{vXo}, vcc
        """)
        if ipf and ipf0: code_pf()
        if help3:
            P(f"""
            ; the fourth 128-byte line of every KiB is slow to fetch: all 16 workgroups of the block row share its first touch
            s_and_b32 s{sT0}, s{sCB}, 15
            s_mul_i32 s{sT0}, s{sT0}, {28*8192 - 64}
            s_add_u32 s{sT0}, s{sT0}, s{sAux}
            v_and_b32 v{vT0}, 63, v0
            v_cmp_gt_u32 vcc, 7, v{vT0}
            v_lshrrev_b32 v{vT1}, 6, v0
            v_mad_u32_u24 v{vT0}, v{vT1}, 7, v{vT0}
            v_lshlrev_b32 v{vT0}, 13, v{vT0}
            v_cndmask_b32 v{vT0}, 2.0, v{vT0}, vcc
            """)
        desc(rX, 3584); desc(rWQ, 3670016)
        P("s_waitcnt lgkmcnt(0)")
        hello_store()
        if help3: P.vm(f"buffer_load_dword v{vBig}, v{vT0}, {srd(rWQ)}, s{sT0} offen offset:384".replace(f"v{vBig},", f"v{vHp},"))
    if not fast:
        P("s_cmp_ge_u32 s2, 256")
        P("s_cbranch_scc1 L_end")
        stamp("start")
        if spin:
            sSt = S.get(2); sNow = S.get(2); P(f"s_memrealtime {sp(sSt)}")
        if top == "first": code_pf_top()
        P(f"""
        s_lshr_b32 s{sKo}, s2, 7
        s_mul_i32 s{sKo}, s{sKo}, 40
        s_load_dwordx2 {sp(rBK)}, s[0:1], 48
        s_load_dwordx2 {sp(rX)}, s[0:1], s{sKo}
        s_load_dwordx2 {sp(rWQ)}, s[0:1], s{sKo} offset:24
        s_load_dwordx2 {sp(rWS)}, s[0:1], 96
        {hl1}
        """)
        if probe and probe[0] == "kfast": P("s_waitcnt lgkmcnt(0)"); stamp("kfast")
        if ipf and ipf0: code_pf()
        P(f"""
        ; logical id = b(2) | x(3) | t(3): workgroups that are 8 apart share x (L2 locality only)
        s_and_b32 s{sT0}, s2, 7
        s_bfe_u32 s{sT1}, s2, 0x30003
        s_bfe_u32 s{sCB}, s2, 0x40003
        s_lshr_b32 s2, s2, 6
        s_lshl3_add_u32 s2, s2, s{sT0}
        s_lshl_b32 s{sOff}, s2, 21
        s_lshl3_add_u32 s2, s2, s{sT1}
        s_lshl4_add_u32 s{sCB}, s{sT0}, s{sCB}
        s_lshl_b32 s{sAux}, s{sCB}, 6
        v_lshrrev_b32 v{vT0}, 6, v0
        v_lshrrev_b32 v{vT2}, 2, v0
        v_readfirstlane_b32 s{sWv}, v{vT0}
        v_and_b32 v{vT1}, 3, v0
        v_lshlrev_b32 v{vWQo}, 12, v{vT2}
        v_add_lshl_u32 v{vWQo}, v{vWQo}, v{vT1}, 4
        v_cmp_gt_u32 vcc, 56, v{vT2}
        v_and_b32 v{vKo}, 3, v{vT2}
        v_mad_u32_u24 v{vXo}, v{vKo}, 55, v{vT2}
        v_add_lshl_u32 v{vXo}, v{vXo}, v{vT1}, 4
        v_lshl_add_u32 v{vKo}, v{vT0}, 2, v{vKo}
        v_cndmask_b32 v{vXo}, 2.0, v{vXo}, vcc
        v_lshl_add_u32 v{vKo}, v{vKo}, 6, v{vT1}
        v_and_b32 v{vT2}, 12, v{vT2}
        v_add_lshl_u32 v{vKo}, v{vKo}, v{vT2}, 4
        s_or_b32 s{sT0}, s{sT1}, 96
        s_lshl_b32 s{sT0}, s{sT0}, 14
        s_add_u32 s{sOff}, s{sOff}, s{sT0}
        """)
        if fakeQ:
            P(f"""
            v_lshrrev_b32 v{vT0}, 3, v0
            v_mul_u32_u24 v{vWQo}, {7*512}, v{vT0}
            v_and_b32 v{vT0}, 7, v0
            v_add_lshl_u32 v{vWQo}, v{vWQo}, v{vT0}, 4
            s_and_b32 s{sT0}, s{sCB}, 1
            s_mul_i32 s{sT0}, s{sT0}, {224*8192-64}
            s_add_u32 s{sAux}, s{sAux}, s{sT0}
            """)
        desc(rX, 3584); desc(rWQ, 3670016); desc(rBK, 1 << 26)
        if probe and probe[0] == "pre": stamp("pre")
        P("s_waitcnt lgkmcnt(0)")
        stamp("karg")
    def hello_store(): P.vm(f"global_store_byte v{vH}, v{vH+1}, {sp(sDbg)}")
    if hpos == 0 and not fast: hello_store()
    vX = V.get(4, 4); vWQ = V.get(32, 4)
    idwq = []
    def wq_load():
        n = len(idwq); j = n if n < xpos else n - 1
        if n == xpos: idwq.append(P.vm(f"buffer_load_dwordx4 {v4(vX)}, v{vXo}, {srd(rX)}, 0 offen"))
        elif "wq" in skip or (fakeQ and j == 7): idwq.append(None)
        else:
            if j: P(f"s_addk_i32 s{sAux}, 0x2000")
            idwq.append(P.vm(f"buffer_load_dwordx4 {v4(vWQ+4*j)}, v{vWQo}, {srd(rWQ)}, s{sAux} offen {wflag}"))
    first = [0]*fast + list(first or [9])
    assert sum(first) == 9
    for _ in range(first[0]): wq_load()
    vTl = V.get(2)
    def c_wsw():
        P(f"""
        s_mul_i32 s{sT0}, s2, 3072
        s_add_u32 s{sT0}, s{sT0}, {WS_SC}
        v_mov_b32 v{vTl}, s{sT0}
        """)
        if qw:
            P(f"""
            s_lshr_b32 s{sT0}, s2, 7
            s_lshl_b32 s{sT0}, s{sT0}, 9
            s_add_u32 s{sT0}, s{sT0}, s{sCB}
            s_lshl_b32 s{sT0}, s{sT0}, 7
            s_add_u32 s{sT0}, s{sT0}, {(WS_Q - 24*16384) & 0xffffffff}
            v_mul_u32_u24 v{vTl+1}, {16384-128}, v0
            v_add_u32 v{vTl+1}, s{sT0}, v{vTl+1}
            v_cmp_gt_u32 vcc, 24, v0
            v_cndmask_b32 v{vTl}, v{vTl+1}, v{vTl}, vcc
            v_cmp_gt_u32 vcc, 28, v0
            v_cndmask_b32 v{vTl}, 2.0, v{vTl}, vcc
            """)
        elif wsl > 24:
            P(f"""
            v_mul_u32_u24 v{vTl+1}, 768, v{vH}
            v_add_u32 v{vTl+1}, {BIG if noO else WS_O - 24*128}, v{vTl+1}
            v_cmp_gt_u32 vcc, 24, v0
            v_cndmask_b32 v{vTl}, v{vTl+1}, v{vTl}, vcc
            """)
        if wsl > 30:
            P(f"""
            v_lshlrev_b32 v{vTl+1}, 8, v{vH}
            v_add_u32 v{vTl+1}, {WS_FC - 30*128}, v{vTl+1}
            v_cmp_gt_u32 vcc, 30, v0
            v_cndmask_b32 v{vTl}, v{vTl+1}, v{vTl}, vcc
            """)
        if ypf:
            P(f"""
            s_bfe_u32 s{sT0}, s2, 0x10005
            s_lshl_b32 s{sT0}, s{sT0}, 14
            s_sub_u32 s{sT0}, {WS_Y - 32*128}, s{sT0}
            v_lshl_add_u32 v{vTl+1}, v{vH}, 10, s{sT0}
            v_cmp_gt_u32 vcc, 32, v0
            v_cndmask_b32 v{vTl}, v{vTl+1}, v{vTl}, vcc
            s_and_b32 s{sT0}, s2, 0x98
            s_cmp_eq_u32 s{sT0}, 0x98
            s_cselect_b32 s{sT0}, 32, 40
            """)
        P(f"""
        v_lshl_add_u32 v{vTl}, v0, 7, v{vTl}
        v_cmp_gt_u32 vcc, {'s%d' % sT0 if ypf else wsl}, v0
        v_cndmask_b32 v{vTl}, 2.0, v{vTl}, vcc
        """)
        desc(rWS, 1 << 24)
        P.vm(f"buffer_load_dword v{vTl+1}, v{vTl}, {srd(rWS)}, 0 offen sc1")
    stream = []
    for k in range(16): stream.append(("BK", k))
    for k in range(16): stream.append(("BV", k))
    for k in range(128): stream.append(("AK", k))
    for k in range(128): stream.append(("AV", k))
    NS = len(stream)
    sid = {}; sslot = {}; land = [-1]
    def issue(i):
        kind, k = stream[i]
        if k == 0 and kind == "BV":
            assert st['lgk']
            P(f"""
            s_and_b32 s{sI}, s2, 3
            s_mul_i32 s{sI}, s{sI}, {16384-128}
            s_add_u32 s{sI}, s{sI}, {3*131072}
            s_sub_u32 s{sOff}, s{sOff}, s{sI}
            """)
        elif k == 0 and kind[0] == "A" and rot:
            vo = vKo if kind == "AK" else vVo
            P(f"""
            s_lshr_b32 s{sI}, s2, 2
            s_lshl_b32 s{sI}, s{sI}, 21
            v_add_u32 v{vo}, s{sI}, v{vo}
            s_bfe_u32 s{sOff}, s2, {rot[0]:#x}
            s_lshl_b32 s{sOff}, s{sOff}, {rot[1]}
            s_and_b32 s{sI}, s2, 3
            s_lshl_b32 s{sI}, s{sI}, {14 if kind == "AK" else 7}
            s_add_u32 s{sOff}, s{sOff}, s{sI}
            """)
        elif k == 0 and kind[0] == "A":
            P(f"""
            s_lshr_b32 s{sOff}, s2, 2
            s_lshl_b32 s{sOff}, s{sOff}, 21
            s_and_b32 s{sI}, s2, 3
            s_lshl_b32 s{sI}, s{sI}, {14 if kind == "AK" else 7}
            s_add_u32 s{sOff}, s{sOff}, s{sI}
            """)
        elif k and k % 4 == 0 and kind[0] == "B":
            P(f"s_add_u32 s{sOff}, s{sOff}, {0x20000 if kind == 'BK' else 0x14000}")
        elif k and kind[1] == "V":
            P(f"s_addk_i32 s{sOff}, 0x4000")
        elif k and k % 4 == 0:
            P(f"s_add_u32 s{sOff}, s{sOff}, 0x10000")
        if rot and kind[0] == "A" and k and k % 32 == 0: P(f"s_and_b32 s{sOff}, s{sOff}, 0x1fffff")
        wz = [z[2] for z in zones if z[0] <= i < z[1]]
        if wz and fcs['start'] is not None:
            P.cwait(sid[i-wz[0]], sid[i-WM], [f"s_cmp_gt_i32 s{sBoost}, {i - fcs['start']}"]); land[0] = max(land[0], i-WM)
        elif fcs['start'] is not None:
            if fc['neg'] is not None:
                P.cwait(sid[i-W+1], None, [f"s_cmp_ge_i32 s{sBoost}, {-fc['neg'] - fc['ns']*(i - fcs['start'])}"])
            P.cwait(sid[i-W], sid[i-WM], [f"s_cmp_gt_i32 s{sBoost}, {i - fcs['start']}"]); land[0] = max(land[0], i-WM)
        else:
            w0 = W0[1] if (W0 and i < W0[0]) else W
            if i >= w0: P.wait(sid[i-w0]); land[0] = max(land[0], i-w0)
        s = slots.pop(0); sslot[i] = s
        r, vo = {"BK": (rBK, vKo), "BV": (rBV, vVo), "AK": (rAK, vKo), "AV": (rAV, vVo)}[kind]
        imm = 0 if kind[1] == "V" else [0, 512, 256, 768][k & 3]
        o = f" offset:{imm}" if imm else ""
        sid[i] = P.vm(f"buffer_load_dwordx4 {a4(s)}, v{vo}, {srd(r)}, s{sOff} offen{o} nt")
    freed = []
    def release(i): freed.append(sslot[i])

    def xlane(op, x, t, steps):
        for st in steps:
            if st in ("x1", "x2", "r4", "r8"):
                d = {"x1": "quad_perm:[1,0,3,2]", "x2": "quad_perm:[2,3,0,1]", "r4": "row_ror:4", "r8": "row_ror:8"}[st]
                P(f"{op}_dpp v{x}, v{x}, v{x} {d} {FULL}")
            else:
                P(f"v_mov_b32 v{t}, v{x}")
                P(f"v_permlane{st[1:]}_swap_b32 v{x}, v{t}")
                P(f"{op} v{x}, v{x}, v{t}")
    def tagcheck(Q, tags, stag, mask):
        tags = list(tags)
        if isinstance(stag, list): pairs = [(tags[k], tags[k+4], stag[k]) for k in range(4)]
        else: pairs = [(a, b, stag) for a, b in zip(tags[0::2], tags[1::2])]
        for n, (a, b, tg) in enumerate(pairs):
            d = vT0 if n == 0 else (vT1 if n % 2 else vT2)
            Q(f"v_bitop3_b32 v{d}, v{a}, v{b}, {tg} bitop3:0x7e")
            if n and n % 2 == 0: Q(f"v_or3_b32 v{vT0}, v{vT0}, v{vT1}, v{vT2}")
            elif n and n == len(pairs)-1: Q(f"v_or_b32 v{vT0}, v{vT0}, v{vT1}")
        if mask: Q(f"v_and_b32 v{vT0}, {mask:#x}, v{vT0}")
        Q(f"v_cmp_ne_u32 vcc, 0, v{vT0}")
    def gather(name, loads, tags, stag, mask):
        ids = []
        def iss():
            if name+"g" in skip: return
            for n, t in enumerate(loads): ids.append(publish(f"{name}{n}", t.replace(" sc1", "")))
        def chk():
            if name+"g" in skip: return
            P.wait(*ids)
            tagcheck(P, tags, stag, mask)
            P(f"s_cbranch_vccnz L_slow_{name}")
            P.label(f"L_back_{name}")
            Q = Prog()
            Q.label(f"L_slow_{name}")
            Q(f"s_add_u32 s{sSpin}, s{sSpin}, 1")
            Q(f"s_cmp_gt_u32 s{sSpin}, 0x40000")
            Q(f"s_cbranch_scc1 L_back_{name}")
            for t in loads: Q.vm(t)
            Q.waitall()
            tagcheck(Q, tags, stag, mask)
            Q(f"s_cbranch_vccnz L_slow_{name}")
            Q(f"s_branch L_back_{name}")
            slow.append(Q)
        return iss, chk
    def publish(name, txt):
        P(f"s_cmp_lg_u32 s{sFar}, 0")
        P(f"s_cbranch_scc1 L_far_{name}")
        i = P.vm(txt)
        P.label(f"L_near_{name}")
        Q = Prog(); Q.label(f"L_far_{name}")
        Q.vm(txt.rstrip() + " sc1")
        Q(f"s_branch L_near_{name}"); slow.append(Q)
        return i
    def extract(D, dst, tau, t):
        rs = [r for r in range(4) if r != tau]
        src = D + tau
        for n, r in enumerate(rs):
            last = n == 2
            m = f"row_mask:0xf bank_mask:{1 << tau:#x}" if last else FULL
            P(f"v_add_f32_dpp v{dst if last else t}, v{D+r}, v{src} row_ror:{(4*(tau-r)) % 16} {m}")
            src = t
    def transp(dst, src, e):
        for q in range(4):
            P(f"v_perm_b32 v{dst+q}, v{src+4*(2*q+1)+(e>>1)}, v{src+4*(2*q)+(e>>1)}, s{sSel1 if e & 1 else sSel0}")
    def sum8(r, dst):
        P(f"""
        v_add_f32 v{r}, v{r}, v{r+1}
        v_add_f32 v{r+2}, v{r+2}, v{r+3}
        v_add_f32 v{r+4}, v{r+4}, v{r+5}
        v_add_f32 v{r+6}, v{r+6}, v{r+7}
        v_add_f32 v{r}, v{r}, v{r+2}
        v_add_f32 v{r+4}, v{r+4}, v{r+6}
        v_add_f32 v{dst}, v{r}, v{r+4}
        """)

    bg = []
    def B(at, fn, after=0): bg.append((at, fn, after))

    vSel = V.get(4); vL12, vPw, vPr, vL4 = [V.get() for _ in range(4)]
    def c_setup():
        if swap:
            P(f"s_bfe_u32 s{sKo}, s2, 0x10005")
            P(f"s_mul_i32 s{sKo}, s{sKo}, 40")
        P(f"""
        s_load_dword s{sTag}, {sp(rWS)}, 0
        s_load_dwordx2 {sp(rBV)}, s[0:1], 56
        s_load_dwordx2 {sp(rAK)}, s[0:1], 8
        s_load_dwordx2 {sp(rAV)}, s[0:1], 16
        s_load_dwordx2 {sp(rWO)}, s[0:1], s{sKo} offset:32
        s_load_dwordx2 {sp(rOUT)}, s[0:1], 80
        v_and_b32 v{vLane}, 63, v0
        v_mov_b32 v{vBig}, {BIG}
        """)
        if ipf and not ipf0: code_pf()
        desc(rBV, 1 << 26); desc(rAK, 1 << 27); desc(rAV, 1 << 27); desc(rWO, 3670016); desc(rOUT, 7168)
        P(f"""
        s_mov_b32 s{sSel0}, 0x05040100
        s_mov_b32 s{sSel1}, 0x07060302
        s_mov_b32 s{sC}, {CS:#x}
        s_mov_b32 s{sSpin}, 0
        v_mul_u32_u24 v{vL12}, 12, v{vLane}
        v_lshlrev_b32 v{vL4}, 2, v{vLane}
        v_lshlrev_b32 v{vPw}, 3, v0
        v_and_b32 v{vPr}, 3, v0
        v_bfe_u32 v{vT0}, v0, 3, 2
        v_lshl_add_u32 v{vPr}, v{vPr}, 2, v{vT0}
        v_lshrrev_b32 v{vT0}, 6, v0
        v_lshl_add_u32 v{vPr}, v{vT0}, 4, v{vPr}
        v_bfe_u32 v{vT0}, v0, 2, 1
        v_lshl_add_u32 v{vPr}, v{vPr}, 1, v{vT0}
        v_bfe_u32 v{vT0}, v0, 5, 1
        v_lshl_add_u32 v{vPr}, v{vT0}, 8, v{vPr}
        v_lshlrev_b32 v{vPr}, 2, v{vPr}
        v_lshrrev_b32 v{vT0}, 3, v0
        v_and_b32 v{vT1}, 7, v0
        v_lshlrev_b32 v{vVo}, 9, v{vT0}
        v_lshl_add_u32 v{vVo}, v{vT1}, 4, v{vVo}
        """)
        if not late: c_setup2()
    def c_setup2():
        P(f"""
        v_bfe_u32 v{vT0}, v0, 3, 1
        v_mul_u32_u24 v{vT0}, 0x0202, v{vT0}
        v_add_u32 v{vT0}, 0x0100, v{vT0}
        v_or_b32 v{vT2}, 0x0c0c0000, v{vT0}
        v_lshlrev_b32 v{vT0}, 16, v{vT0}
        v_or_b32 v{vT0}, 0x0c0c, v{vT0}
        """)
        vcc(0xaaaaaaaa)
        P(f"v_cndmask_b32 v{vT0}, v{vT2}, v{vT0}, vcc")
        P(f"v_mov_b32 v{vT2}, 0x0c0c0c0c")
        for r in range(4):
            vcc(0x03030303 << (2*r)); P(f"v_cndmask_b32 v{vSel+r}, v{vT2}, v{vT0}, vcc")

    vQD = V.get(32, 4); vTB = [V.get(4, 4), V.get(4, 4)]
    def proj_write(dst, tmp):
        for e0 in (0, 4):
            for n in range(3):
                for e in range(e0, e0+4):
                    D = vQD + 4*e; tau = e & 3
                    r = [x for x in range(4) if x != tau][n]
                    m = f"row_mask:0xf bank_mask:{1 << tau:#x}" if n == 2 else FULL
                    P(f"v_add_f32_dpp v{dst+(e >> 2) if n == 2 else tmp+tau}, v{D+r}, v{tmp+tau if n else D+tau} row_ror:{(4*(tau-r)) % 16} {m}")
        P(f"ds_write_b64 v{vPw}, {v2(dst)} offset:{L_QRED}")
        P("s_waitcnt lgkmcnt(0)")
    def proj_read(r):
        P("s_barrier")
        P(f"ds_read2st64_b32 {v2(r)}, v{vPr} offset0:{L_QRED//256} offset1:{L_QRED//256+2}")
    def proj_sum(r):
        P("s_waitcnt lgkmcnt(0)")
        P(f"v_add_f32 v{r}, v{r}, v{r+1}")
        xlane("v_add_f32", r, r+1, ["p32"])
    vFl, vFs, vFd, vFt = vXo, vWQo, V.get(), V.get()
    sFm = S.get(2)
    def tag_setup():
        P(f"""
        ; hand-off tag of this launch: differs in every byte from the tag the previous launch left at ws[0]
        s_add_u32 s{sTag}, s{sTag}, 0x9e3779b9
        """)
    def fc_setup():
        P(f"""
        ; one line per (class, wave, checkpoint): a dword for each of the 32 workgroups of the class
        s_bfe_u32 s{sFC}, s2, 0x30003
        s_lshl2_add_u32 s{sFC}, s{sFC}, s{sWv}
        s_lshl_b32 s{sFC}, s{sFC}, 11
        s_add_u32 s{sFC}, s{sFC}, {WS_FC}
        s_and_b32 s{sI}, s2, 7
        s_lshr_b32 s{sBoost}, s2, 6
        s_lshl3_add_u32 s{sI}, s{sBoost}, s{sI}
        v_cmp_eq_u32 {sp(sFm)}, s{sI}, v{vLane}
        v_cndmask_b32 v{vFs}, v{vBig}, v{vL4}, {sp(sFm)}
        v_cmp_gt_u32 {sp(sFm)}, 32, v{vLane}
        v_cndmask_b32 v{vFl}, v{vBig}, v{vL4}, {sp(sFm)}
        """)
    hid = []; vHd = V.get()
    def c_hello2():
        P(f"v_and_b32 v{vH}, 0xe0, v{vH}")
        P(f"v_and_or_b32 v{vH}, v0, 31, v{vH}")
        hid.append(P.vm(f"global_load_ubyte v{vHd}, v{vH}, {sp(sDbg)}"))
    def c_q():
        P.wait(*idwq)
        stamp("wq")
        for e in range(8):
            transp(vTB[e & 1], vWQ, e)
            P(f"v_mfma_f32_16x16x32_bf16 {v4(vQD+4*e)}, {v4(vX)}, {v4(vTB[e & 1])}, 0")
        proj_write(vWQ, vWQ+4)
        return 'lgk'
    def c_q4():
        r = vWQ
        proj_read(r)
        if qat is None: tag_setup()
        P(f"""
        s_lshr_b32 s{sT0}, s2, 7
        s_lshl2_add_u32 s{sT0}, s{sT0}, s{sWv}
        s_lshl_b32 s{sT0}, s{sT0}, 7
        s_add_u32 s{sT0}, s{sT0}, s{sCB}
        s_lshl_b32 s{sT0}, s{sT0}, 7
        s_add_u32 s{sT0}, s{sT0}, {WS_Q}
        v_mov_b32 v{r+9}, s{sTag}
        """)
        proj_sum(r)
        if True:
            P.wait(*hid)
            P(f"""
            ; class-local hand-offs go through L2 only if all 32 workgroups of the class were seen to report this XCC
            v_cmp_ne_u32 vcc, v{vHd}, v{vH+1}
            s_mov_b32 s{sFar}, vcc_lo
            """)
            if forcefar: P(f"s_mov_b32 s{sFar}, 1")
        P(f"""
        v_mov_b32_dpp v{r+1}, v{r} quad_perm:[1,0,3,2] {FULL}
        v_cvt_pk_bf16_f32 v{r+8}, v{r}, v{r+1}
        s_mov_b32 exec_lo, 0x55555555
        s_mov_b32 exec_hi, 0
        """)
        publish("q", f"buffer_store_dwordx2 {v2(r+8)}, v{vL4}, {srd(rWS)}, s{sT0} offen")
        P("s_mov_b64 exec, -1")
        stamp("qpub")
        return 'tag'
    def c_tlb():
        P(f"""
        s_lshr_b32 s{sT0}, s2, 2
        s_lshl_b32 s{sT0}, s{sT0}, 21
        s_lshr_b32 s{sT1}, s{sCB}, 4
        s_mul_i32 s{sT1}, s{sT1}, {512*896}
        v_cmp_eq_u32 vcc, 0, v0
        v_cndmask_b32 v{vT0}, 2.0, v0, vcc
        s_waitcnt lgkmcnt(0)
        """)
        if "V" in tlb: P.vm(f"buffer_load_dword v{vTl}, v{vT0}, {srd(rBV)}, s{sOff} offen nt")
        if "K" in tlb: P.vm(f"buffer_load_dword v{vTl}, v{vT0}, {srd(rAK)}, s{sT0} offen nt")
        if "A" in tlb: P.vm(f"buffer_load_dword v{vTl}, v{vT0}, {srd(rAV)}, s{sT0} offen nt")
        if "W" in tlb: P.vm(f"buffer_load_dword v{vTl}, v{vT0}, {srd(rWO)}, s{sT1} offen nt")
        if "O" in tlb: P.vm(f"buffer_load_dword v{vTl}, v{vT0}, {srd(rOUT)}, 0 offen nt")
    S0 = max(W, fast) - 1 if S00 is None else S00
    if late > 1: B(S0, c_setup); B(late, c_wsw)
    else: B(S0, c_wsw); B(0, c_setup)
    if tlb: B(0, c_tlb)
    B(hello, c_hello2)
    def c_tag():
        P("s_waitcnt lgkmcnt(0)"); tag_setup(); st['lgk'] = True
        return 'tag'
    if qat is not None: B(0, c_tag, 1)
    B(len(first) - 2 + (W if len(first) > 1 else 0) if qat is None else qat, c_q); B(hello + W + 1, c_q4, 1)

    vQA = V.get(32, 4); vQB = V.get(16, 4)
    vG = vQD
    vGo = V.get(2); sG = [S.get() for _ in range(8)]
    ql = [f"buffer_load_dwordx4 {v4(vG+8*u+4*hf)}, v{vGo}, {srd(rWS)}, s{sG[0]} offen offset:{512*u+16*hf} sc1" for u in range(2) for hf in range(2)]
    ql += [f"buffer_load_dwordx4 {v4(vG+16+8*u+4*hf)}, v{vGo+1}, {srd(rWS)}, s{sG[1]} offen offset:{512*u+16*hf} sc1" for u in range(2) for hf in range(2)]
    q_iss, q_chk = gather("q", ql, range(vG+1, vG+32, 2), f's{sTag}', None)
    def c_qg():
        P(f"""
        v_lshrrev_b32 v{vGo}, 2, v{vLane}
        v_lshlrev_b32 v{vGo}, 5, v{vGo}
        v_bfe_u32 v{vT0}, v{vLane}, 1, 1
        v_lshl_add_u32 v{vGo+1}, v{vT0}, 10, v{vGo}
        s_lshr_b32 s{sG[0]}, s2, 2
        s_lshl_b32 s{sG[0]}, s{sG[0]}, 10
        s_add_u32 s{sG[0]}, s{sG[0]}, {WS_Q}
        s_lshr_b32 s{sG[1]}, s2, 3
        s_lshl_b32 s{sG[1]}, s{sG[1]}, 11
        s_add_u32 s{sG[1]}, s{sG[1]}, {WS_Q + 4*16384}
        """)
        q_iss()
    def c_qb():
        q_chk(); stamp("qgot")
        if spinif == "nq": P(f"s_mov_b32 s1, s{sSpin}")
        if spinif == "ns": P(f"s_mov_b32 s{sSpin}, 0")
        if spinif == "far1": P(f"s_min_u32 s1, s{sFar}, 20")
        for t in range(4):
            vcc(0x11111111 << t)
            for u in range(2):
                for q in range(4): P(f"v_cndmask_b32 v{vQA+16*u+4*t+q}, 0, v{vG+8*u+2*q}, vcc")
        for t in range(2):
            vcc(0x55555555 << t)
            for u in range(2):
                for q in range(4): P(f"v_cndmask_b32 v{vQB+8*u+4*t+q}, 0, v{vG+16+8*u+2*q}, vcc")
        return 'kok'
    if late: B(0, c_setup2)
    B(qg, c_qg); B(0, c_qb, WM+1)

    vD = [V.get(4, 4) for _ in range(4)]
    vSB, vTb = V.get(), V.get()
    def c_bqk():
        P.wait(sid[15])
        D = vWQ
        for tau in range(4):
            for n in range(4):
                t, u = n & 1, n >> 1
                P(f"v_mfma_f32_16x16x32_bf16 {v4(D+4*tau)}, {a4(sslot[4*tau+n])}, {v4(vQB+8*u+4*t)}, {v4(D+4*tau) if n else 0}")
                release(4*tau+n)
        for tau in range(4): extract(D+4*tau, vSB, tau, vT0)
        P(f"""
        v_cvt_pk_bf16_f32 v{vSB}, v{vSB}, v{vSB}
        v_lshlrev_b32 v{vT0}, 4, v0
        v_lshrrev_b32 v{vTb}, v{vT0}, s{sTag}
        v_mov_b32 v{vT0}, 0xffff
        v_bfi_b32 v{vSB}, v{vT0}, v{vTb}, v{vSB}
        """)
    B(15+WM, c_bqk)

    vWO = V.get(32, 4); vWOo = V.get()
    def wo_load(j):
        if j == 4: P(f"s_addk_i32 s{sAux}, {4*896}")
        if "wo" not in skip:
            P.vm(f"buffer_load_dwordx4 {v4(vQD+4*j)}, v{vWOo}, {srd(rWO)}, s{sAux} offen offset:{896*(j & 3)} {woflag}")

    vSA = V.get(4, 4)
    pend = []
    def k_consume(i):
        k = i - 32
        unit, n = k >> 4, k & 15
        t, u, par = n >> 2, (n >> 1) & 1, n & 1
        D = vD[2*(unit & 1) + par]
        first = (t == 0 and u == 0)
        P(f"v_mfma_f32_16x16x32_bf16 {v4(D)}, {a4(sslot[i])}, {v4(vQA+16*u+4*t)}, {0 if first else v4(D)}")
        release(i)
        while pend and n >= 2:
            pend.pop(0)()
        if n == 15:
            for p_ in range(2):
                pend.append(lambda p_=p_, unit=unit: extract(vD[2*(unit & 1)+p_], vSA + 2*(unit >> 2) + p_, unit & 3, vXT))
            if k == 127:
                while pend: pend.pop(0)()
                c_spub()
    def c_spub():
        o = vD[0]
        P(f"""
        s_lshl2_add_u32 s{sI}, s2, s{sWv}
        s_mul_i32 s{sI}, s{sI}, 768
        s_add_u32 s{sI}, s{sI}, {WS_SC}
        v_cvt_pk_bf16_f32 v{o}, v{vSA}, v{vSA+1}
        v_cvt_pk_bf16_f32 v{o+1}, v{vSA+2}, v{vSA+3}
        v_mov_b32 v{o+2}, v{vSB}
        """)
        if "scs" not in skip: publish("sc", f"buffer_store_dwordx3 {v3(o)}, v{vL12}, {srd(rWS)}, s{sI} offen")
        stamp("scpub")
    vSG = vWQ
    vE = vQA; vEB = vQA + 16
    vP = V.get(8, 4); vPB = vQB + 4; vM, vL, vMB, vLB = vQB, vQB+1, vQB+2, vQB+3
    vWt, vWtB, vFF = vQB+8, vQB+9, vQB+10
    sl = [f"buffer_load_dwordx3 {v3(vSG+4*k)}, v{vL12}, {srd(rWS)}, s{sG[k]} offen sc1" for k in range(4)]
    sl += [f"buffer_load_dword v{vSG+16+k}, v{vL12}, {srd(rWS)}, s{sG[4+k]} offen offset:8 sc1" for k in range(4)]
    sbr = [vSG+4*k+2 for k in range(4)] + [vSG+16+k for k in range(4)]
    s_iss, s_chk = gather("sc", sl, sbr, f'v{vTb}', 0xffff)
    def c_sg():
        P(f"""
        s_and_b32 s{sT0}, s2, 0xfc
        s_lshl2_add_u32 s{sT0}, s{sT0}, s{sWv}
        s_xor_b32 s{sT1}, s{sT0}, 16
        s_mul_i32 s{sT0}, s{sT0}, 768
        s_mul_i32 s{sT1}, s{sT1}, 768
        s_add_u32 s{sG[0]}, s{sT0}, {WS_SC}
        s_add_u32 s{sG[4]}, s{sT1}, {WS_SC}
        """)
        for k in (1, 2, 3, 5, 6, 7): P(f"s_add_u32 s{sG[k]}, s{sG[k-1]}, 3072")
        s_iss()
    def c_sm1():
        s_chk(); stamp("scgot")
        for r in range(8):
            src = vSG + 4*(r >> 1) + (r & 1)
            P(f"v_lshlrev_b32 v{vE+2*r}, 16, v{src}")
            P(f"v_and_b32 v{vE+2*r+1}, 0xffff0000, v{src}")
        P(f"v_max3_f32 v{vM}, v{vE}, v{vE+1}, v{vE+2}")
        for r in range(3, 15, 2): P(f"v_max3_f32 v{vM}, v{vM}, v{vE+r}, v{vE+r+1}")
        P(f"v_max_f32 v{vM}, v{vM}, v{vE+15}")
        xlane("v_max_f32", vM, vT0, ["x1", "x2", "r4", "r8", "p16", "p32"])
        P(f"v_mul_f32 v{vM}, s{sC}, v{vM}")
        for r in range(16):
            P(f"v_fma_f32 v{vE+r}, v{vE+r}, s{sC}, -v{vM}")
            P(f"v_exp_f32 v{vE+r}, v{vE+r}")
        for r in range(8): P(f"v_cvt_pk_bf16_f32 v{vP+r}, v{vE+2*r}, v{vE+2*r+1}")
        return 'vok'
    def c_sm3():
        for r in range(8): P(f"v_add_f32 v{vE+r}, v{vE+r}, v{vE+8+r}")
        sum8(vE, vL)
        xlane("v_add_f32", vL, vT0, ["x1", "x2", "r4", "r8", "p16", "p32"])
    def c_sb1():
        for k in range(8): P(f"v_and_b32 v{vEB+k}, 0xffff0000, v{sbr[k]}")
        P(f"v_max3_f32 v{vMB}, v{vEB}, v{vEB+1}, v{vEB+2}")
        P(f"v_max3_f32 v{vMB}, v{vMB}, v{vEB+3}, v{vEB+4}")
        P(f"v_max3_f32 v{vMB}, v{vMB}, v{vEB+5}, v{vEB+6}")
        P(f"v_max_f32 v{vMB}, v{vMB}, v{vEB+7}")
        xlane("v_max_f32", vMB, vT0, ["x1", "r4", "r8", "p16", "p32"])
        P(f"v_mul_f32 v{vMB}, s{sC}, v{vMB}")
        for k in range(8):
            P(f"v_fma_f32 v{vEB+k}, v{vEB+k}, s{sC}, -v{vMB}")
            P(f"v_exp_f32 v{vEB+k}, v{vEB+k}")
        for k in range(4):
            P(f"v_mov_b32_dpp v{vT0}, v{vEB+k} quad_perm:[1,0,3,2] {FULL}")
            P(f"v_cvt_pk_bf16_f32 v{vPB+k}, v{vEB+k}, v{vT0}")
        sum8(vEB, vLB)
        xlane("v_add_f32", vLB, vT0, ["x1", "r4", "r8", "p16", "p32"])
        P(f"""
        v_bfe_u32 v{vT0}, v{vLane}, 1, 1
        v_lshlrev_b32 v{vT0}, 6, v{vT0}
        s_lshl_b32 s{sT0}, s{sWv}, 4
        v_add_u32 v{vT0}, s{sT0}, v{vT0}
        ds_write_b128 v{vT0}, {v4(vM)} offset:{L_ST}
        """)
    vBc = [V.get(), V.get()]
    vTC = [V.get(4, 4), V.get(4, 4)]
    def pvop(bc, dst, src, lane):
        P(f"v_mov_b32_dpp v{bc}, v{src} row_newbcast:{lane} {FULL}")
        for q in range(4): P(f"v_perm_b32 v{dst+q}, v{bc}, v{bc}, v{vSel+q}")
    def c_bpv():
        for k in range(4):
            for tau in range(4):
                i = 16 + 4*tau + k
                for hd in range(2): pvop(vT0+hd, vTC[hd], vPB+k, 4*tau + 2*hd)
                for hd in range(2):
                    P(f"v_mfma_f32_16x16x32_bf16 {v4(vD[2+hd])}, {a4(sslot[i])}, {v4(vTC[hd])}, {v4(vD[2+hd]) if i > 16 else 0}")
                release(i)
    assert vT1 == vT0 + 1
    vAw, vAr = V.get(), V.get()
    vW4 = vQB + 12
    def c_sm4():
        s_ = vE
        P(f"""
        v_bfe_u32 v{vT0}, v{vLane}, 1, 1
        v_lshlrev_b32 v{vT0}, 6, v{vT0}
        s_waitcnt lgkmcnt(0)
        s_barrier
        """)
        for k in range(4): P(f"ds_read_b128 {v4(s_+4*k)}, v{vT0} offset:{L_ST+16*k}")
        P(f"""
        v_lshrrev_b32 v{vAw}, 4, v0
        v_lshlrev_b32 v{vAw}, 7, v{vAw}
        v_and_b32 v{vT1}, 7, v{vLane}
        v_lshl_add_u32 v{vAw}, v{vT1}, 4, v{vAw}
        v_and_b32 v{vAr}, 32, v{vLane}
        v_lshl_add_u32 v{vAr}, v{vT1}, 2, v{vAr}
        v_bfe_u32 v{vT1}, v{vLane}, 3, 2
        v_add_lshl_u32 v{vAr}, v{vAr}, v{vT1}, 2
        s_min_u32 s{sT0}, s{sWv}, 2
        s_lshl_b32 s{sT0}, s{sT0}, 11
        v_add_u32 v{vAr}, s{sT0}, v{vAr}
        v_mov_b32 v{vFF}, 0xff
        s_waitcnt lgkmcnt(0)
        """)
        for o, m, wt in ((0, vM, vWt), (2, vMB, vWtB)):
            P(f"v_max3_f32 v{vT0}, v{s_+o}, v{s_+4+o}, v{s_+8+o}")
            P(f"v_max_f32 v{vT0}, v{vT0}, v{s_+12+o}")
            for k in range(4):
                P(f"v_sub_f32 v{s_+4*k+o}, v{s_+4*k+o}, v{vT0}")
                P(f"v_exp_f32 v{s_+4*k+o}, v{s_+4*k+o}")
            P(f"v_sub_f32 v{wt}, v{m}, v{vT0}")
            P(f"v_exp_f32 v{wt}, v{wt}")
            P(f"v_mul_f32 v{vT1}, v{s_+o}, v{s_+o+1}")
            for k in range(1, 4): P(f"v_fmac_f32 v{vT1}, v{s_+4*k+o}, v{s_+4*k+o+1}")
            P(f"v_rcp_f32 v{vT1}, v{vT1}")
            P(f"v_mul_f32 v{wt}, v{wt}, v{vT1}")
            if rdw and o == 0:
                for k in range(4): P(f"v_mul_f32 v{vW4+k}, v{s_+4*k}, v{vT1}")
    def red_write(lst):
        P("s_mov_b32 exec_lo, 0x00ff00ff")
        P("s_mov_b32 exec_hi, 0xff00ff00")
        for acc, reg in lst: P(f"ds_write_b128 v{vAw}, {v4(acc)} offset:{L_RED+2048*reg}")
        P("s_mov_b64 exec, -1")
    def c_br1():
        for hd in range(2):
            for q in range(4):
                P(f"v_mul_f32_dpp v{vD[2+hd]+q}, v{vWtB}, v{vD[2+hd]+q} quad_perm:[{2*hd},{2*hd},{2*hd},{2*hd}] {FULL}")
        red_write([(vD[2], 1), (vD[3], 2)])
        stamp("ybdone")
    vOb = V.get(2)
    def c_br2():
        r = vWQ
        P("s_waitcnt lgkmcnt(0)")
        P("s_barrier")
        for k in range(4): P(f"ds_read2st64_b32 {v2(r+2*k)}, v{vAr} offset0:{L_RED//256+2*k} offset1:{L_RED//256+2*k+1}")
        P(f"""
        v_add_u32 v{vOb}, 64, v0
        v_and_b32 v{vOb}, 128, v{vOb}
        v_cmp_ne_u32 vcc, 0, v{vOb}
        v_cndmask_b32 v{vOb}, v{vBig}, v{vL4}, vcc
        s_waitcnt lgkmcnt(0)
        """)
        sum8(r, r)
        P(f"v_bfi_b32 v{vOb+1}, v{vFF}, v{vTb}, v{r}")
        if not bsplit: c_br3()
    def c_br3():
        t = f"buffer_store_dword v{vOb+1}, v{vOb}, {srd(rWS)}, s{sOp} offen"
        if swap: P.vm(t + " sc1")
        else: publish("ob", t)
    vOg, vOo, vYo = vGo+1, vL12, vGo
    vY0, vY1, vBp = V.get(), V.get(), V.get()
    sOp, sOg, sYp, sYg, sOutO = sG[0:5]
    sYx, sOwn = rX, rX+2
    brx = "s_bfe_u32 s%d, s2, 0x10005" % sT0 if swap else "s_lshr_b32 s%d, s2, 7" % sT0
    def c_fin():
        if prm:
            P(f"""
            ; projection role m = (b&1)*8 + 2*s + kh: the workgroups without a block are ones with s = 3
            s_and_b32 s{sT0}, s2, 3
            s_bfe_u32 s{sT1}, s2, 0x10002
            s_lshl1_add_u32 s{sT0}, s{sT0}, s{sT1}
            s_andn2_b32 s{sCB}, s{sCB}, 7
            s_or_b32 s{sCB}, s{sCB}, s{sT0}
            """)
        if swap:
            P(f"""
            s_bfe_u32 s{sT0}, s2, 0x20003
            s_lshr_b32 s{sT1}, s2, 6
            s_lshl2_add_u32 s{sT0}, s{sT0}, s{sT1}
            s_and_b32 s{sT1}, s2, 7
            s_lshl4_add_u32 s{sCB}, s{sT1}, s{sT0}
            """)
        P(f"""
        ; o and y words carry byte (column&3) of the tag in their low byte
        v_lshlrev_b32 v{vT0}, 3, v0
        v_lshrrev_b32 v{vTb}, v{vT0}, s{sTag}
        s_lshr_b32 s{sG[5]}, s{sTag}, 8
        s_lshr_b32 s{sG[6]}, s{sTag}, 16
        s_lshr_b32 s{sG[7]}, s{sTag}, 24
        ; O table [x][slot: A, B kh0, B kh1][b][512] dwords
        s_bfe_u32 s{sT0}, s2, 0x30003
        s_mul_i32 s{sOg}, s{sT0}, {3*8192}
        s_add_u32 s{sOg}, s{sOg}, {WS_O}
        s_lshr_b32 s{sT0}, s2, 6
        s_lshl_b32 s{sT0}, s{sT0}, 11
        s_add_u32 s{sOp}, s{sOg}, s{sT0}
        ; wave 0: A row block t ; waves 1,2: slot 1+kh, row block 4*(wave-1)+s
        s_and_b32 s{sT0}, s2, 4
        s_lshl_b32 s{sT0}, s{sT0}, 3
        s_lshl2_add_u32 s{sT0}, s{sWv}, s{sT0}
        s_and_b32 s{sT1}, s2, 3
        s_add_u32 s{sT0}, s{sT0}, s{sT1}
        s_addk_i32 s{sT0}, 28
        s_and_b32 s{sT1}, s2, 7
        s_cmp_eq_u32 s{sWv}, 0
        s_cselect_b32 s{sT0}, s{sT1}, s{sT0}
        s_lshl_b32 s{sT0}, s{sT0}, 8
        s_add_u32 s{sOp}, s{sOp}, s{sT0}
        s_lshr_b32 s{sT0}, s{sCB}, 4
        s_mul_i32 s{sOg}, s{sT0}, {3*8192}
        s_add_u32 s{sOg}, s{sOg}, {WS_O}
        {brx}
        s_lshl_b32 s{sT0}, s{sT0}, 13
        s_add_u32 s{sOg}, s{sOg}, s{sT0}
        s_and_b32 s{sT1}, s{sCB}, 1
        s_lshl_b32 s{sT1}, s{sT1}, 10
        s_add_u32 s{sOg}, s{sOg}, s{sT1}
        v_bfe_u32 v{vT0}, v0, 1, 1
        v_mul_lo_u32 v{vOg}, v{vT0}, s{sT0}
        v_bfe_u32 v{vT0}, v0, 2, 2
        v_lshl_add_u32 v{vOg}, v{vT0}, 11, v{vOg}
        v_lshrrev_b32 v{vT0}, 4, v0
        v_lshl_add_u32 v{vOg}, v{vT0}, 6, v{vOg}
        v_and_b32 v{vT0}, 1, v0
        v_lshl_add_u32 v{vOg}, v{vT0}, 5, v{vOg}
        ; wo lane (row group tid>>3, 16-byte chunk tid&7)
        v_lshrrev_b32 v{vT0}, 3, v0
        v_mul_u32_u24 v{vWOo}, {8*896}, v{vT0}
        v_and_b32 v{vT0}, 7, v0
        v_lshl_add_u32 v{vWOo}, v{vT0}, 4, v{vWOo}
        s_and_b32 s{sT1}, s{sCB}, 15
        v_mov_b32 v{vT1}, s{sT1}
        v_cmp_gt_u32 vcc, 14, v{vT1}
        v_cndmask_b32 v{vWOo}, v{vBig}, v{vWOo}, vcc
        s_lshr_b32 s{sT0}, s{sCB}, 4
        s_and_b32 s{sAux}, s{sCB}, 1
        s_lshl1_add_u32 s{sAux}, s{sT0}, s{sAux}
        s_mul_i32 s{sAux}, s{sAux}, {256*896}
        s_and_b32 s{sT0}, s{sCB}, 14
        s_lshl_b32 s{sT0}, s{sT0}, 6
        s_add_u32 s{sAux}, s{sAux}, s{sT0}
        v_lshlrev_b32 v{vPw}, 4, v0
        v_and_b32 v{vPr}, 1, v0
        v_bfe_u32 v{vT1}, v0, 3, 3
        v_lshl_add_u32 v{vPr}, v{vPr}, 3, v{vT1}
        v_lshrrev_b32 v{vT1}, 6, v0
        v_lshl_add_u32 v{vPr}, v{vT1}, 4, v{vPr}
        v_bfe_u32 v{vT1}, v0, 1, 2
        v_lshl_add_u32 v{vPr}, v{vPr}, 2, v{vT1}
        v_lshlrev_b32 v{vPr}, 2, v{vPr}
        v_lshlrev_b32 v{vOo}, 3, v{vT0}
        v_bfe_u32 v{vT0}, v{vLane}, 4, 1
        v_lshl_add_u32 v{vOo}, v{vT0}, 2, v{vOo}
        v_lshrrev_b32 v{vT0}, 5, v{vLane}
        v_lshl_add_u32 v{vOo}, v{vT0}, 1, v{vOo}
        v_mul_u32_u24 v{vYo}, {8192-128}, v{vT0}
        v_add_u32 v{vYo}, v{vYo}, v{vL4}
        {brx}
        s_mul_i32 s{sT0}, s{sT0}, 14
        s_add_u32 s{sT0}, s{sT0}, s{sT1}
        s_lshl_b32 s{sOutO}, s{sT0}, 6
        s_mul_i32 s{sYp}, s{sWv}, 1792
        s_add_u32 s{sOutO}, s{sOutO}, s{sYp}
        s_lshl2_add_u32 s{sT0}, s{sT0}, s{sWv}
        s_lshl_b32 s{sT0}, s{sT0}, 11
        s_add_u32 s{sYg}, s{sT0}, {WS_Y}
        s_and_b32 s{sT1}, s{sCB}, 1
        s_mul_i32 s{sT0}, s{sT1}, {8192-1024}
        s_sub_u32 s{sYp}, s{sYg}, s{sT0}
        s_lshr_b32 s{sT0}, s{sCB}, 4
        s_lshl_b32 s{sI}, s{sT0}, 7
        s_add_u32 s{sYp}, s{sYp}, s{sI}
        ; block m is summed by its workgroup of row block m&7, which keeps that half of its own result in registers
        s_lshl_b32 s{sI}, s{sT0}, 3
        s_lshl_b64 {sp(sOwn)}, 0xff, s{sI}
        s_lshl_b32 s{sI}, s{sT1}, 7
        v_lshl_add_u32 v{vBp}, v{vOo}, 1, s{sI}
        s_xor_b32 s{sI}, s{sT1}, 1
        s_lshl_b32 s{sI}, s{sI}, 10
        v_lshlrev_b32 v{vY0}, 4, v{vLane}
        v_add_u32 v{vY1}, 1024, v{vY0}
        v_add_u32 v{vT0}, s{sI}, v{vY0}
        v_cndmask_b32 v{vY0}, v{vY0}, v{vT0}, {sp(sOwn)}
        v_cndmask_b32 v{vY1}, v{vY1}, v{vT0}, {sp(sOwn)}
        s_sub_u32 s{sYx}, 0, s{sT1}
        s_not_b32 s{sYx+1}, s{sYx}
        s_and_b32 s{sT1}, s{sCB}, 7
        s_cmp_eq_u32 s{sT0}, s{sT1}
        s_cselect_b64 {sp(sYx)}, {sp(sYx)}, -1
        """)
    def c_re1(): hid.append(P.vm(f"global_load_ubyte v{vHd}, v{vH}, {sp(sDbg)} nt"))
    def c_re2():
        P.wait(hid[-1])
        P(f"""
        ; second look: a report that arrived after the first one no longer keeps the class off the L2 path
        v_cmp_ne_u32 vcc, v{vHd}, v{vH+1}
        s_mov_b32 s{sFar}, vcc_lo
        """)
        if forcefar: P(f"s_mov_b32 s{sFar}, 1")
    if recheck: B(recheck, c_re1); B(0, c_re2, WM+1)
    B(160+sg, c_sg); B(0, c_sm1, WM+1); B(0, c_sm3); B(0, c_sb1); B(0, c_bpv); B(0, c_sm4); B(0, c_br1); B(0, c_fin)
    def c_yw():
        if yw[1] == "c":
            P(f"""
            s_cmp_eq_u64 {sp(sYx)}, -1
            s_cselect_b32 s{sT0}, 0, 16
            v_lshlrev_b32 v{vT0}, 7, v{vLane}
            v_cmp_gt_u32 vcc, s{sT0}, v{vLane}
            v_cndmask_b32 v{vT0}, v{vBig}, v{vT0}, vcc
            """)
            P.vm(f"buffer_load_dword v{vTl+1}, v{vT0}, {srd(rWS)}, s{sYg} offen sc1")
        else:
            P.vm(f"buffer_load_dword v{vTl+1}, v{vYo}, {srd(rWS)}, s{sYp} offen sc1")
    if yw and yw[0] < bpub: B(yw[0], c_yw)
    def c_ow():
        P(f"v_cmp_gt_u32 vcc, 192, v0")
        P(f"v_cndmask_b32 v{vT0}, v{vBig}, v{vL4}, vcc")
        P.vm(f"buffer_load_dword v{vTl+1}, v{vT0}, {srd(rWS)}, s{sOp} offen sc1")
    if ow: B(ow, c_ow)
    if bsplit:
        B(bsplit, c_br2)
        if btail is None: B(bpub, c_br3)
    elif bpub: B(bpub, c_br2)
    if yw and yw[0] >= bpub and ytail is None: B(yw[0], c_yw)

    vAcc = vD[1]
    prepared = set()
    def v_prep(i):
        v = i - 160
        if i < NS and i not in prepared:
            pvop(vBc[v & 1], vTB[v & 1], vP + 2*(v & 3) + (v >> 6), (v >> 2) & 15); prepared.add(i)
    def v_consume(i):
        v = i - 160
        v_prep(i)
        P.wait(sid[i])
        P(f"v_mfma_f32_16x16x32_bf16 {v4(vAcc)}, {a4(sslot[i])}, {v4(vTB[v & 1])}, {v4(vAcc) if v else 0}")
        release(i)
        v_prep(i+1)

    xg = fc['xg'] if fc else 0
    if xg:
        vGs, vGl, vBs, vGd = [V.get() for _ in range(4)]; sBias = S.get()
        xcs = [cps[c] for c in fc['xc']]
        GL = 0x4000
    def fc_step(i):
        if i in cps:
            c = cps.index(i)
            if c == 0:
                assert st['tag'] and len(idwq) == 9
                fc_setup()
                P(f"v_mov_b32 v{vFt}, s{sTag}")
                if fc['tab']:
                    m = min(fc['tab']); t = sum(((x - m)//2) << (4*k) for k, x in enumerate(fc['tab']))
                    P(f"""
                    s_lshl_b32 s{sTagQ}, s{sTagQ}, 2
                    s_lshr_b32 s{sTagQ}, {t:#x}, s{sTagQ}
                    s_and_b32 s{sTagQ}, s{sTagQ}, 15
                    s_lshl1_add_u32 s{sTagQ}, s{sTagQ}, {m}
                    """)
                if xg:
                    P(f"""
                    s_bfe_u32 s{sBias}, s2, 0x30003
                    s_lshl_b32 s{sBoost}, s{sBias}, 11
                    s_add_u32 s{sBoost}, s{sBoost}, {WS_G + GL}
                    v_mov_b32 v{vBs}, s{sBoost}
                    s_sub_u32 s{sBoost}, s{sBoost}, s{sFC}
                    v_writelane_b32 v{vFl}, s{sBoost}, 32
                    s_lshl2_add_u32 s{sI}, s{sI}, s{sWv}
                    s_cmp_eq_u32 s{sI}, {4*13+1}
                    s_cselect_b32 s{sFm}, 0xff, 0
                    s_mov_b32 s{sFm+1}, 0
                    v_lshlrev_b32 v{vGd}, 11, v{vLane}
                    v_add_u32 v{vGd}, {WS_G}, v{vGd}
                    v_cndmask_b32 v{vGl}, v{vBig}, v{vGd}, {sp(sFm)}
                    s_lshl_b32 s{sBias}, 1, s{sBias}
                    s_and_b32 s{sFm}, s{sFm}, s{sBias}
                    v_cndmask_b32 v{vGs}, v{vBig}, v{vGd}, {sp(sFm)}
                    v_cndmask_b32 v{vGl}, v{vGl}, v{vBig}, {sp(sFm)}
                    v_cndmask_b32 v{vBs}, v{vBig}, v{vBs}, {sp(sFm)}
                    s_mov_b32 s{sBias}, 0
                    """)
            look = xg and c - 1 in fc['xc']
            if xg and not look: P("s_mov_b32 exec_hi, 0")
            fcs['ids'][c] = P.vm(f"buffer_load_dword v{vFd}, v{vFl}, {srd(rWS)}, s{sFC} offen offset:{128*c}")
            if xg and not look: P("s_mov_b32 exec_hi, -1")
            P.vm(f"buffer_store_dword v{vFt}, v{vFs}, {srd(rWS)}, s{sFC} offen offset:{128*c}")
            if xg and i in xcs: P.vm(f"buffer_store_dword v{vFt}, v{vGs}, {srd(rWS)}, 0 offen offset:{128*c} sc1")
        if xg and i - fc['xd'] in xcs:
            fcs['g'] = P.vm(f"buffer_load_dword v{vGd}, v{vGl}, {srd(rWS)}, 0 offen offset:{128*cps.index(i - fc['xd'])} sc1")
        if xg and i - fc['xd'] - WM - 1 in xcs:
            c = cps.index(i - fc['xd'] - WM - 1)
            P.wait(fcs['g'])
            P(f"""
            v_cmp_eq_u32 {sp(sFm)}, v{vFt}, v{vGd}
            s_bcnt1_i32_b32 s{sFm}, s{sFm}
            v_add_u32 v{vGd}, s{sFm}, v{vFt}
            """)
            P.vm(f"buffer_store_dword v{vGd}, v{vBs}, {srd(rWS)}, 0 offen offset:{128*(c+1)}")
        if i - WM - 1 in cps:
            c = cps.index(i - WM - 1)
            P.wait(fcs['ids'].pop(c))
            pd = fc['Pd'] if not fc['cps'] else ((cps[c+1] - cps[c]) if c + 1 < len(cps) else NS - i)
            g = int(round(fc['gain'] * pd / 32 * 256))
            if fc['s3'] and i >= 150 and not fcs.get('s3'):
                fcs['s3'] = True
                P(f"""
                s_and_b32 s{sBoost}, s2, 3
                s_cmp_eq_u32 s{sBoost}, 3
                s_cselect_b32 s{sBoost}, {fc['s3']}, 0
                s_add_i32 s{sTagQ}, s{sTagQ}, s{sBoost}
                """)
            P(f"""
            v_cmp_eq_u32 {sp(sFm)}, v{vFt}, v{vFd}
            s_bcnt1_i32_b32 s{sBoost}, s{sFm}
            s_mul_i32 s{sBoost}, s{sBoost}, {g}
            s_sub_i32 s{sBoost}, s{sBoost}, {int(fc['r0'] * 32)*g}
            """)
            if xg and c - 1 in fc['xc']:
                P(f"""
                v_readlane_b32 s{sFm}, v{vFd}, 32
                s_sub_u32 s{sFm}, s{sFm}, s{sTag}
                s_mul_i32 s{sBias}, s{sFm}, {int(xg*256)}
                s_sub_i32 s{sBias}, s{sBias}, {int(xg*256*fc['x0'])}
                s_cmp_lt_u32 s{sFm}, 8
                s_cselect_b32 s{sBias}, s{sBias}, 0
                """)
            if xg and (fc['hold'] or c - 1 in fc['xc']): P(f"s_add_i32 s{sBoost}, s{sBoost}, s{sBias}")
            P(f"s_ashr_i32 s{sBoost}, s{sBoost}, 8")
            if fc['tab']: P(f"s_add_i32 s{sBoost}, s{sBoost}, s{sTagQ}")
            fcs['start'] = i + 1

    nk, nv = 32, 160
    jw = 0
    bi = 0; lastbg = -1
    cur = None
    def consume_one():
        nonlocal nk, nv
        if st['kok'] and nk < 160 and nk <= land[0]:
            k_consume(nk); nk += 1
        elif st['vok'] and nv <= land[0]:
            v_consume(nv); nv += 1
        else: return False
        slots.extend(freed); freed.clear()
        return True
    def splittable(items, n):
        full = True; open_br = False
        for it in items[:n]:
            if it[0] == 'i':
                t = it[1]
                if t.startswith(('s_mov_b32 exec', 's_mov_b64 exec')): full = t.endswith('-1') and 'b64' in t
                if t.startswith('s_cbranch_scc'): open_br = True
            elif it[0] == 'l': open_br = False
        last = items[n-1]
        if last[0] == 'i' and last[1].startswith(('s_cmp', 's_cbranch', 's_getpc')): return False
        return full and not open_br
    minfree = 99
    for i in range(NS):
        m0 = len(P.ir)
        issue(i); fc_step(i)
        if i + 1 == hpos: hello_store()
        if i + 1 == fast: block2()
        if i + 1 < len(first):
            for _ in range(first[i+1]): wq_load()
        minfree = min(minfree, len(slots))
        used = lambda: sum(cost(x) for x in P.ir[m0:])
        consume_one()
        lim = 10**9 if i == S0 else budget
        while True:
            if cur is None:
                if bi < len(bg) and bg[bi][0] <= i and lastbg + bg[bi][2] <= i and used() < lim:
                    keep = P.ir; P.ir = []
                    flag = bg[bi][1]()
                    cur = [P.ir, flag, list(freed), 0]; freed.clear(); P.ir = keep; bi += 1
                    if bg[bi-1][1] not in (c_setup, c_wsw, c_hello2, c_tlb): lim = min(lim, used() + budget) if i == S0 else lim
                else: break
            items = cur[0]; n = cur[3]; u = used()
            while n < len(items) and not (u >= lim and n > cur[3] and splittable(items, n)):
                u += cost(items[n]); n += 1
            P.ir.extend(items[cur[3]:n]); cur[3] = n
            if n < len(items): break
            if cur[1]: st[cur[1]] = True
            slots.extend(cur[2]); cur = None; lastbg = i
        c = 1
        while c < maxcatch and (used() < budget or len(slots) < 3) and consume_one(): c += 1
    assert bi == len(bg) and cur is None and nk == 160, (bi, len(bg), nk)
    stamp("lastiss")
    P("; ---- tail begins")
    if spinif in ("retry", "ns"): P(f"s_mov_b32 s1, s{sSpin}")
    if tpad is not None:
        P("s_branch L_tail"); P.raw(f".p2align {tpad[0]}")
        if tpad[1]: P.raw(f".fill {tpad[1]}, 4, 0xbf800000")
        P.label("L_tail")
    def wo_next():
        nonlocal jw
        if ytail == jw: c_yw()
        if btail == jw: c_br3()
        wo_load(jw); jw += 1
    while tight and nv < NS:
        if nv == NS + jw - wopace[0] and nv < NS - 1:
            P.wait(sid[nv]); wo_next()
        v_consume(nv); nv += 1
    while tight and jw < 8: wo_next()
    while nv < NS:
        for _ in range(wolate):
            if jw < 8:
                if wopace:
                    tgt = sid[min(NS - 1, NS + jw - wopace[0])]
                    if wopace[1] is None: P.wait(tgt)
                    else: P.cwait(tgt, None, [f"s_cmp_gt_i32 s{sBoost}, {wopace[1]}"])
                if ytail == jw: c_yw()
                if btail == jw: c_br3()
                wo_load(jw); jw += 1
        v_consume(nv); nv += 1
    while jw < 8: wo_load(jw); jw += 1
    stamp("vdone")

    r = vWQ
    if not rdw:
        for q in range(4): P(f"v_mul_f32 v{vAcc+q}, v{vAcc+q}, v{vWt}")
    red_write([(vAcc, 0)])
    P("s_waitcnt lgkmcnt(0)")
    P("s_barrier")
    P(f"s_cmp_lg_u32 s{sWv}, 0" if bpub else f"s_cmp_eq_u32 s{sWv}, 3")
    P("s_cbranch_scc1 L_near_o")
    for k in range(4): P(f"ds_read2st64_b32 {v2(r+2*k)}, v{vAr} offset0:{L_RED//256+2*k} offset1:{L_RED//256+2*k+1}")
    if rdw:
        for k in range(4):
            P(f"s_waitcnt lgkmcnt({3-k})")
            P(f"v_add_f32 v{r+2*k}, v{r+2*k}, v{r+2*k+1}")
            P(f"v_mul_f32 v{r}, v{r}, v{vW4}" if k == 0 else f"v_fmac_f32 v{r}, v{r+2*k}, v{vW4+k}")
    else:
        P("s_waitcnt lgkmcnt(0)")
        sum8(r, r)
    P(f"v_bfi_b32 v{r}, v{vFF}, v{vTb}, v{r}")
    t = f"buffer_store_dword v{r}, v{vL4}, {srd(rWS)}, s{sOp} offen"
    if swap: P.vm(t + " sc1"); P.label("L_near_o")
    else: publish("o", t)
    stamp("opub")
    P(f"""
    s_and_b32 s{sT0}, s{sCB}, 15
    s_cmp_ge_u32 s{sT0}, 14
    s_cbranch_scc1 L_done
    """)
    g = vQA; sMiss = sFm
    def ppoll(Q, name, lds, sets, dst, mid=None):
        n = len(lds); D = len(sets)
        def first():
            for k in range(n): Q(lds[k].replace("@", v4(sets[0]+4*k)))
        mid(Q, n, first)
        Q(f"s_mov_b64 {sp(sMiss)}, -1")
        if D > 1:
            Q(f"s_not_b32 s{sT0}, s{sTag}")
            for b in sets[1:]: Q(f"v_mov_b32 v{b}, s{sT0}")
        Q.label(f"L_poll{name}")
        for d in list(range(1, D)) + [0]:
            b = sets[d]
            Q(f"s_waitcnt vmcnt({n*(D-1)})")
            tagcheck(Q, range(b, b+4*n), [f's{x}' for x in [sTag] + sG[5:8]], 0xff)
            Q("s_wqm_b64 vcc, vcc")
            Q(f"s_andn2_b64 exec, {sp(sMiss)}, vcc")
            for k in range(4*n): Q(f"v_and_b32 v{dst+k}, 0xffffff00, v{b+k}")
            Q(f"s_and_b64 {sp(sMiss)}, {sp(sMiss)}, vcc")
            Q(f"s_cbranch_scc0 L_got{name}")
            Q(f"s_mov_b64 exec, {sp(sMiss)}")
            for k in range(n): Q(lds[k].replace("@", v4(b+4*k)))
            Q("s_mov_b64 exec, -1")
        Q(f"s_add_u32 s{sSpin}, s{sSpin}, 1")
        Q(f"s_cmp_gt_u32 s{sSpin}, 0x20000")
        Q(f"s_cbranch_scc0 L_poll{name}")
        Q.label(f"L_got{name}")
        Q("s_mov_b64 exec, -1")
    def mid(Q, n, first):
        if opos == 0: first()
        for q in range(4):
            Q(f"s_waitcnt vmcnt({(n if q >= opos else 0) + 6 - 2*q + sum(1 for z in (ytail, btail) if z is not None and z > 2*q+1)})")
            if q + 1 == opos: first()
            for e in range(8):
                Q(f"v_perm_b32 v{vWO+4*e+q}, v{vQD+4*(2*q+1)+(e>>1)}, v{vQD+4*(2*q)+(e>>1)}, s{sSel1 if e & 1 else sSel0}")
    ppoll(P, "O", [f"buffer_load_dwordx4 @, v{vOg}, {srd(rWS)}, s{sOg} offen offset:{16*k} sc1" for k in range(2)], [g+8, g+16, g+24][:DO], g, mid)
    P("s_bitcmp1_b32 s2, 5" if swap else "s_cmp_ge_u32 s2, 128")
    P("s_cbranch_scc1 L_addB")
    P.label("L_proj")
    Q = Prog(); Q.label("L_addB")
    for k in range(8): Q(f"v_add_f32_dpp v{g+k}, v{g+k}, v{g+k} quad_perm:[2,3,0,1] {FULL}")
    Q("s_branch L_proj"); slow.insert(0, Q)
    stamp("ogot")
    for q in range(4): P(f"v_cvt_pk_bf16_f32 v{vX+q}, v{g+2*q}, v{g+2*q+1}")
    for e in range(8): P(f"v_mfma_f32_16x16x32_bf16 {v4(vQD+4*e)}, {v4(vX)}, {v4(vWO+4*e)}, 0")
    for e in range(8):
        h = e & 1
        P(f"v_add_f32_dpp v{r+(e >> 1)}, v{vQD+4*e+1-h}, v{vQD+4*e+h} row_ror:8 row_mask:0xf bank_mask:{0xc if h else 0x3:#x}")
    P(f"""
    ds_write_b128 v{vPw}, {v4(r)} offset:{L_QRED}
    s_waitcnt lgkmcnt(0)
    s_barrier
    ds_read2st64_b32 {v2(r)}, v{vPr} offset0:{L_QRED//256} offset1:{L_QRED//256+4}
    ds_read2st64_b32 {v2(r+2)}, v{vPr} offset0:{L_QRED//256+8} offset1:{L_QRED//256+12}
    s_cmp_eq_u64 {sp(sYx)}, -1
    s_waitcnt lgkmcnt(0)
    v_add_f32 v{r}, v{r}, v{r+1}
    v_add_f32 v{r+2}, v{r+2}, v{r+3}
    v_add_f32 v{r}, v{r}, v{r+2}
    v_bfi_b32 v{r+1}, v{vFF}, v{vTb}, v{r}
    s_mov_b64 exec, {sp(sYx)}
    """)
    t = f"buffer_store_dword v{r+1}, v{vYo}, {srd(rWS)}, s{sYp} offen"
    if swap: publish("y", t); P(f"s_cmp_eq_u64 {sp(sYx)}, -1")
    else: P.vm(t + " sc1")
    stamp("yapub")
    P("s_cbranch_scc1 L_done")
    P("s_mov_b64 exec, -1")
    f = vP
    def midy(Q, n, first): first(); Q(f"ds_bpermute_b32 v{r+2}, v{vBp}, v{r}")
    ppoll(P, "Y", [f"buffer_load_dwordx4 @, v{vy}, {srd(rWS)}, s{sYg} offen sc1" for vy in (vY0, vY1)], [vWO+8*k for k in range(4)][:DY], f, midy)
    stamp("fgot")
    P(f"s_not_b64 exec, {sp(sOwn)}")
    for k in range(4): P(f"v_add_f32 v{f+k}, v{f+k}, v{f+4+k}")
    P("s_mov_b64 exec, -1")
    P(f"""
    v_permlane32_swap_b32 v{f}, v{f+1}
    v_permlane32_swap_b32 v{f+2}, v{f+3}
    v_add_f32 v{f}, v{f}, v{f+1}
    v_add_f32 v{f+2}, v{f+2}, v{f+3}
    v_permlane16_swap_b32 v{f}, v{f+2}
    v_add_f32 v{f}, v{f}, v{f+2}
    """)
    xlane("v_add_f32", f, None, ["r8"])
    P("s_waitcnt lgkmcnt(0)")
    P(f"v_add_f32 v{f}, v{f}, v{r+2}")
    P(f"""
    v_cvt_pk_bf16_f32 v{f}, v{f}, v{f}
    s_mov_b32 exec_lo, 0x00ff00ff
    s_mov_b32 exec_hi, 0x00ff00ff
    """)
    P.vm(f"buffer_store_short v{f}, v{vOo}, {srd(rOUT)}, s{sOutO} offen")
    P(f"""
    s_cmp_lg_u32 s{sOutO}, 0
    s_cbranch_scc1 L_done
    s_mov_b64 exec, 1
    v_mov_b32 v{f+2}, s{sTag}
    """)
    P.vm(f"buffer_store_dword v{f+2}, v{vOo}, {srd(rWS)}, 0 offen")
    P.label("L_done")
    if spin:
        if spinif == "far": P(f"s_cmp_eq_u32 s{sFar}, 0\ns_cbranch_scc1 L_end")
        if spinif == "retry": P(f"s_cmp_eq_u32 s1, 0\ns_cbranch_scc1 L_end")
        if spinif in ("nq", "ns", "far1"): P(f"s_waitcnt lgkmcnt(0)\ns_mul_i32 s1, s1, 100\ns_add_u32 s{sSt}, s{sSt}, s1")
        if probe:
            P(f"s_waitcnt lgkmcnt(0)\ns_sub_u32 s{sLim}, s{sPr}, s{sSt}\ns_mul_i32 s{sLim}, s{sLim}, {probe[1]}\ns_add_u32 s{sLim}, s{sLim}, {spin}")
            if len(probe) > 2: P(f"s_and_b32 s{sT0}, s2, {probe[2]}\ns_cmp_lg_u32 s{sT0}, {probe[3]}\ns_cbranch_scc1 L_end")
        P.label("L_spin")
        P(f"""
        s_memrealtime {sp(sNow)}
        s_waitcnt lgkmcnt(0)
        s_sub_u32 s{sNow}, s{sNow}, s{sSt}
        s_cmp_lt_i32 s{sNow}, {('s%d' % sLim) if probe else spin}
        s_cbranch_scc1 L_spin
        """)
    if diag:
        P("s_mov_b64 exec, -1")
        stamp("end")
        P(f"""
        s_waitcnt lgkmcnt(0) vmcnt(0)
        s_lshl_b32 s{sT0}, s2, 2
        s_add_u32 s{sT0}, s{sT0}, s{sWv}
        s_lshl_b32 s{sT0}, s{sT0}, 7
        s_add_u32 s{sT0}, s{sT0}, {WS_DIAG}
        v_mov_b32 v{vT1}, 0
        s_mov_b64 exec, 1
        """)
        def dump(sreg, off):
            P(f"v_mov_b32 v{vT0}, s{sreg}")
            P.vm(f"buffer_store_dword v{vT0}, v{vT1}, {srd(rWS)}, s{sT0} offen offset:{off}")
        for n, (name, rr) in enumerate(stamps): dump(rr, 4*n)
        dump(sSpin, 4*len(stamps)); dump(sFar, 116)
        P(f"s_getreg_b32 s{sT1}, hwreg(HW_REG_XCC_ID)"); dump(sT1, 120)
        P(f"s_getreg_b32 s{sT1}, hwreg(HW_REG_HW_ID)"); dump(sT1, 124)
    P.label("L_end")
    P("s_endpgm")

    body, stats = P.render()
    for Q in slow: body += Q.render()[0]
    body += 'L_code_end:\n'
    if top: body += f'.if {32*128*ipf} > L_code_end - L_pc\n.fill ({32*128*ipf} - (L_code_end - L_pc))/4, 4, 0xbf810000\n.endif\n'
    head = open("cdna_kernels/" + KNAME[:-7] + ".s.ref").read().split("; Override launch")[0]
    txt = head + f"; @launch grid=(256,1,1) block=(256,1,1) lds={L_TOTAL}\n" + HEADER
    txt += f'.amdgcn_target "amdgcn-amd-amdhsa--gfx950"\n.text\n.globl {KNAME}\n.p2align 8\n.type {KNAME},@function\n{KNAME}:\n'
    txt += body
    txt += f""".section .rodata,"a"
.p2align 6
.amdhsa_kernel {KNAME}
  .amdhsa_next_free_vgpr 512
  .amdhsa_next_free_sgpr 102
  .amdhsa_accum_offset 256
  .amdhsa_group_segment_fixed_size 0
  .amdhsa_kernarg_size 104
  .amdhsa_user_sgpr_count 2
  .amdhsa_user_sgpr_kernarg_segment_ptr 1
  .amdhsa_system_sgpr_workgroup_id_x 1
.end_amdhsa_kernel
"""
    ids = list(range(256))
    act = [L for L in ids if (((L >> 6) & 1)*8 + (L & 7)) < 14]
    fin = [L for L in act if ((L >> 3) & 7) == (L & 7)]
    if prm:
        mm = lambda L: ((L >> 6) & 1)*8 + 2*(L & 3) + ((L >> 2) & 1)
        act = [L for L in ids if mm(L) < 14]; fin = [L for L in act if (mm(L) & 7) == ((L >> 3) & 7)]
    if swap:
        mm = lambda L: 4*((L >> 3) & 3) + (L >> 6)
        act = [L for L in ids if mm(L) < 14]; fin = [L for L in act if (mm(L) & 7) == (L & 7)]
    return txt, dict(stats, vhw=V.hw, shw=S.hw, minfree=minfree, stamps=[n for n, _ in stamps], who=dict(ogot=act, yapub=act, fgot=fin))

if __name__ == "__main__":
    import json
    kw = json.loads(sys.argv[2]) if len(sys.argv) > 2 else {}
    t, s = gen(**kw)
    open(sys.argv[1], "w").write(t)
    s.pop('who')
    print(s, file=sys.stderr)
```

```python
import sys, math, struct
from asmlib import Prog, Alloc
KNAME = "concat_heads__mha_block_cached__sliding_block_cached__decode_kernel"

WS_Q, WS_SC, WS_O, WS_FC, WS_Y, WS_G, WS_DIAG = 0x10000, 0x40000, 0x100000, 0x130000, 0x140000, 0x180000, 0x800000
L_QRED, L_ST, L_RED, L_TOTAL = 0, 4096, 4352, 4352 + 3*2048
CS = struct.unpack('<I', struct.pack('<f', math.log2(math.e) / 16.0))[0]
BIG = 0x7ff00000
FULL = "row_mask:0xf bank_mask:0xf"

AUXCOST = [8]
def cost(it):
    if it[0] == 'vm': return 8 if ' a[' in it[1] or 'store' in it[1] else AUXCOST[0]
    if it[0] != 'i': return 2
    t = it[1]
    if t.startswith(';'): return 0
    if t.startswith('v_mfma'): return 16
    if t.startswith(('v_exp', 'v_log', 'v_rcp')): return 10
    if '_dpp' in t or t.startswith('v_permlane'): return 8
    if t.startswith('ds_'): return 12
    if t.startswith('s_waitcnt'): return 60
    if t.startswith('s_barrier'): return 30
    return 4

HEADER = """;
; One launch, 256 workgroups x 4 waves (one wave per SIMD); generated by a script, straight-line code.
; Logical id = b(2) | x(3) | t(3); the 32 workgroups with the same x form a class (A heads 2x, 2x+1, B kv head x).
;   1. q = x @ wq: every workgroup computes one 32-column block for the 4 batches and hands it to its class.
;   2. K streams (B window, then A), keys split over the workgroups of a (batch, head); MFMA scores, rounded to bf16.
;   3. scores are exchanged inside the (batch, x) group; every wave takes the true max / sum of its keys, the
;   4. V streams split along the head dimension (64 columns per workgroup); MFMA P.V gives normalised o slices.
;   5. o is written through for everyone while wo streams in; 224 workgroups multiply it with a 256 x 64 block
;      of wo (a class owns two column blocks of one branch); the 16 partial sums of an output are handed to
;      one wave of the class, added and stored as bf16.
; Hand-offs carry an in-band tag = ws[0] + constant (ws[0] is replaced by the tag at the end), so data of an
; earlier launch is never accepted. Class-local hand-offs stay in L2 only after all 32 workgroups of the class
; have been seen (through d_debug) on this XCC; otherwise every store and load of them is sc1.
"""

def gen(W=5, qg=33, sg=21, wflag="", woflag="nt", diag=False, skip=(), spin=0, forcefar=False, fc=None, budget=150, maxcatch=4,
        bpub=283, DO=1, DY=2, wolate=1, auxcost=70, wsl=32, first=(5, 4), hello=5, tpad=None, ipf=6, ipf0=True, tlb=None, qw=True, zones=(), rot=None, swap=True, ow=None, W0=(24, 6), yw=(287, 'p'), noO=True, fakeQ=0, xpos=0, hpos=0, spinif=None, probe=None, fast=3, top=True, recheck=120, prm=False, wopace=(6, None), opos=3, ypf=False, ytail=6, bsplit=232, btail=2, late=1, tight=True, rdw=True, S00=None, qat=None, help3=0, lean=True, leany=False):
    AUXCOST[0] = auxcost
    P = Prog()
    V = Alloc('v', 1, 256); S = Alloc('s', 3, 100)
    slots = list(range(64))
    def a4(s): return f"a[{4*s}:{4*s+3}]"
    def v4(r): return f"v[{r}:{r+3}]"
    def v3(r): return f"v[{r}:{r+2}]"
    def v2(r): return f"v[{r}:{r+1}]"
    def srd(r): return f"s[{r}:{r+3}]"
    def sp(r): return f"s[{r}:{r+1}]"
    def vcc(m): P(f"s_mov_b32 vcc_lo, {m:#x}"); P(f"s_mov_b32 vcc_hi, {m:#x}")
    slow = []
    stamps = []
    def stamp(name):
        if probe and name == probe[0]:
            P(f"s_memrealtime {sp(sPr)}")
        if diag:
            r = S.get(2); stamps.append((name, r)); P(f"s_memrealtime {sp(r)}")
    fcs = dict(start=None, ids={})
    if probe: sPr = S.get(2); sLim = S.get()
    st = dict(kok=False, vok=False, lgk=False, tag=False)
    if fc is not None:
        fc = dict(dict(first=16, Pd=32, dW=2, r0=0.6, gain=2.5, xg=3.5, x0=3.5, xd=1, xc=(1, 3, 5, 7), hold=True, lead=4*13+1, neg=None, ns=2, s3=10, cps=(16, 40, 72, 104, 136, 168, 196, 224, 248, 266), tab=(2, -4, 0, -4, 6, 0, 4, -2)), **fc)
        WM = W + fc['dW']
        cps = list(fc['cps'] or range(fc['first'], 288 - WM - 6, fc['Pd']))
    else:
        WM = W; cps = []

    rX, rWQ, rBK, rBV, rAK, rAV, rWO, rWS, rOUT = [S.get(4) for _ in range(9)]
    sT0, sT1, sI, sWv, sTag, sOff, sAux, sSel0, sSel1, sC, sSpin, sCB, sTagQ, sFar, sBoost, sFC, sKo = [S.get() for _ in range(17)]
    vLane, vT0, vT1, vT2, vBig = [V.get() for _ in range(5)]
    vXo, vWQo, vKo, vVo = [V.get() for _ in range(4)]
    def desc(r, sz):
        P(f"s_mov_b32 s{r+2}, {sz}"); P(f"s_mov_b32 s{r+3}, 0x20000")
    sDbg = S.get(2); vH = V.get(2)
    vXT = V.get(); vHp = V.get()
    def code_pf_top():
        P("; the straight-line code below is read once: each workgroup pulls its share of it towards its L2 now")
        P(f"s_getpc_b64 {sp(rOUT+2)}")
        P.label("L_pc")
        P(f"""
        s_lshr_b32 s{sT0}, s2, 3
        s_mulk_i32 s{sT0}, {128*ipf}
        v_min_u32 v{vT1}, {ipf-1}, v0
        v_lshl_add_u32 v{vT1}, v{vT1}, 7, s{sT0}
        """)
        P.vm(f"global_load_dword v{vXT}, v{vT1}, {sp(rOUT+2)}")
    def code_pf():
        if top: return
        P(f"s_getpc_b64 {sp(rOUT+2)}")
        P.label("L_pc")
        P(f"""
        v_and_b32 v{vT0}, {31 if ipf > 1 else 255}, v{vH}
        v_min_u32 v{vT1}, {ipf-1}, v0
        v_mad_u32_u24 v{vT0}, v{vT0}, {ipf}, v{vT1}
        v_lshlrev_b32 v{vT0}, 7, v{vT0}
        v_min_u32 v{vT0}, L_code_end-L_pc-4, v{vT0}
        """)
        P.vm(f"global_load_dword v{vXT}, v{vT0}, {sp(rOUT+2)}")
    hl1 = f"""s_load_dwordx2 {sp(sDbg)}, s[0:1], 88
    s_getreg_b32 s{sTagQ}, hwreg(HW_REG_XCC_ID, 0, 4)
    ; byte (id&7)*32 + (id>>3) of the zeroed debug buffer reports this workgroup's XCC
    s_mul_i32 s{sT0}, s2, 0x101
    s_bfe_u32 s{sT0}, s{sT0}, 0x80003
    v_mov_b32 v{vH}, s{sT0}
    v_add_u32 v{vH+1}, s{sTagQ}, 1"""
    if fast:
        P("s_cmpk_ge_u32 s2, 256")
        P("s_cbranch_scc1 L_end")
        stamp("start")
        if spin:
            sSt = S.get(2); sNow = S.get(2); P(f"s_memrealtime {sp(sSt)}")
        P(f"""
        s_load_dwordx2 {sp(rBK)}, s[0:1], 48
        s_load_dwordx2 {sp(rWS)}, s[0:1], 96
        """)
        if top: code_pf_top()
        P(f"""
        ; logical id = b(2) | x(3) | t(3): workgroups that are 8 apart share x (L2 locality only)
        s_and_b32 s{sCB}, s2, 7
        s_lshr_b32 s{sI}, s2, 6
        s_lshl3_add_u32 s{sI}, s{sI}, s{sCB}
        s_bfe_u32 s{sT1}, s2, 0x30003
        s_lshl4_add_u32 s{sOff}, s{sI}, 12
        s_lshl3_add_u32 s{sOff}, s{sOff}, s{sT1}
        s_lshl_b32 s{sOff}, s{sOff}, 14
        s_lshl_b32 s{rBK+2}, 1, 26
        s_mov_b32 s{rBK+3}, 0x20000
        v_lshrrev_b32 v{vT0}, 6, v0
        v_lshrrev_b32 v{vT2}, 2, v0
        v_and_b32 v{vT1}, 3, v0
        v_and_b32 v{vXo}, 3, v{vT2}
        v_lshl_add_u32 v{vKo}, v{vT0}, 2, v{vXo}
        v_lshl_add_u32 v{vKo}, v{vKo}, 6, v{vT1}
        v_and_b32 v{vWQo}, 12, v{vT2}
        v_add_lshl_u32 v{vKo}, v{vKo}, v{vWQo}, 4
        s_waitcnt lgkmcnt(0)
        """)
        stamp("karg")
    def block2():
        P(f"""
        s_lshr_b32 s{sKo}, s2, 7
        s_mul_i32 s{sKo}, s{sKo}, 40
        s_load_dwordx2 {sp(rX)}, s[0:1], s{sKo}
        s_load_dwordx2 {sp(rWQ)}, s[0:1], s{sKo} offset:24
        {hl1}
        s_bfe_u32 s{sT0}, s2, 0x40003
        s_lshl4_add_u32 s{sCB}, s{sCB}, s{sT0}
        s_lshl_b32 s{sAux}, s{sCB}, 6
        s_lshl3_add_u32 s2, s{sI}, s{sT1}
        v_readfirstlane_b32 s{sWv}, v{vT0}
        v_lshlrev_b32 v{vWQo}, 12, v{vT2}
        v_add_lshl_u32 v{vWQo}, v{vWQo}, v{vT1}, 4
        v_cmp_gt_u32 vcc, 56, v{vT2}
        v_mad_u32_u24 v{vXo}, v{vXo}, 55, v{vT2}
        v_add_lshl_u32 v{vXo}, v{vXo}, v{vT1}, 4
        v_cndmask_b32 v{vXo}, 2.0, v{vXo}, vcc
        """)
        if ipf and ipf0: code_pf()
        if help3:
            P(f"""
            ; the fourth 128-byte line of every KiB is slow to fetch: all 16 workgroups of the block row share its first touch
            s_and_b32 s{sT0}, s{sCB}, 15
            s_mul_i32 s{sT0}, s{sT0}, {28*8192 - 64}
            s_add_u32 s{sT0}, s{sT0}, s{sAux}
            v_and_b32 v{vT0}, 63, v0
            v_cmp_gt_u32 vcc, 7, v{vT0}
            v_lshrrev_b32 v{vT1}, 6, v0
            v_mad_u32_u24 v{vT0}, v{vT1}, 7, v{vT0}
            v_lshlrev_b32 v{vT0}, 13, v{vT0}
            v_cndmask_b32 v{vT0}, 2.0, v{vT0}, vcc
            """)
        desc(rX, 3584); desc(rWQ, 3670016)
        P("s_waitcnt lgkmcnt(0)")
        hello_store()
        if help3: P.vm(f"buffer_load_dword v{vBig}, v{vT0}, {srd(rWQ)}, s{sT0} offen offset:384".replace(f"v{vBig},", f"v{vHp},"))
    if not fast:
        P("s_cmp_ge_u32 s2, 256")
        P("s_cbranch_scc1 L_end")
        stamp("start")
        if spin:
            sSt = S.get(2); sNow = S.get(2); P(f"s_memrealtime {sp(sSt)}")
        if top == "first": code_pf_top()
        P(f"""
        s_lshr_b32 s{sKo}, s2, 7
        s_mul_i32 s{sKo}, s{sKo}, 40
        s_load_dwordx2 {sp(rBK)}, s[0:1], 48
        s_load_dwordx2 {sp(rX)}, s[0:1], s{sKo}
        s_load_dwordx2 {sp(rWQ)}, s[0:1], s{sKo} offset:24
        s_load_dwordx2 {sp(rWS)}, s[0:1], 96
        {hl1}
        """)
        if probe and probe[0] == "kfast": P("s_waitcnt lgkmcnt(0)"); stamp("kfast")
        if ipf and ipf0: code_pf()
        P(f"""
        ; logical id = b(2) | x(3) | t(3): workgroups that are 8 apart share x (L2 locality only)
        s_and_b32 s{sT0}, s2, 7
        s_bfe_u32 s{sT1}, s2, 0x30003
        s_bfe_u32 s{sCB}, s2, 0x40003
        s_lshr_b32 s2, s2, 6
        s_lshl3_add_u32 s2, s2, s{sT0}
        s_lshl_b32 s{sOff}, s2, 21
        s_lshl3_add_u32 s2, s2, s{sT1}
        s_lshl4_add_u32 s{sCB}, s{sT0}, s{sCB}
        s_lshl_b32 s{sAux}, s{sCB}, 6
        v_lshrrev_b32 v{vT0}, 6, v0
        v_lshrrev_b32 v{vT2}, 2, v0
        v_readfirstlane_b32 s{sWv}, v{vT0}
        v_and_b32 v{vT1}, 3, v0
        v_lshlrev_b32 v{vWQo}, 12, v{vT2}
        v_add_lshl_u32 v{vWQo}, v{vWQo}, v{vT1}, 4
        v_cmp_gt_u32 vcc, 56, v{vT2}
        v_and_b32 v{vKo}, 3, v{vT2}
        v_mad_u32_u24 v{vXo}, v{vKo}, 55, v{vT2}
        v_add_lshl_u32 v{vXo}, v{vXo}, v{vT1}, 4
        v_lshl_add_u32 v{vKo}, v{vT0}, 2, v{vKo}
        v_cndmask_b32 v{vXo}, 2.0, v{vXo}, vcc
        v_lshl_add_u32 v{vKo}, v{vKo}, 6, v{vT1}
        v_and_b32 v{vT2}, 12, v{vT2}
        v_add_lshl_u32 v{vKo}, v{vKo}, v{vT2}, 4
        s_or_b32 s{sT0}, s{sT1}, 96
        s_lshl_b32 s{sT0}, s{sT0}, 14
        s_add_u32 s{sOff}, s{sOff}, s{sT0}
        """)
        if fakeQ:
            P(f"""
            v_lshrrev_b32 v{vT0}, 3, v0
            v_mul_u32_u24 v{vWQo}, {7*512}, v{vT0}
            v_and_b32 v{vT0}, 7, v0
            v_add_lshl_u32 v{vWQo}, v{vWQo}, v{vT0}, 4
            s_and_b32 s{sT0}, s{sCB}, 1
            s_mul_i32 s{sT0}, s{sT0}, {224*8192-64}
            s_add_u32 s{sAux}, s{sAux}, s{sT0}
            """)
        desc(rX, 3584); desc(rWQ, 3670016); desc(rBK, 1 << 26)
        if probe and probe[0] == "pre": stamp("pre")
        P("s_waitcnt lgkmcnt(0)")
        stamp("karg")
    def hello_store(): P.vm(f"global_store_byte v{vH}, v{vH+1}, {sp(sDbg)}")
    if hpos == 0 and not fast: hello_store()
    vX = V.get(4, 4); vWQ = V.get(32, 4)
    idwq = []
    def wq_load():
        n = len(idwq); j = n if n < xpos else n - 1
        if n == xpos: idwq.append(P.vm(f"buffer_load_dwordx4 {v4(vX)}, v{vXo}, {srd(rX)}, 0 offen"))
        elif "wq" in skip or (fakeQ and j == 7): idwq.append(None)
        else:
            if j: P(f"s_addk_i32 s{sAux}, 0x2000")
            idwq.append(P.vm(f"buffer_load_dwordx4 {v4(vWQ+4*j)}, v{vWQo}, {srd(rWQ)}, s{sAux} offen {wflag}"))
    first = [0]*fast + list(first or [9])
    assert sum(first) == 9
    for _ in range(first[0]): wq_load()
    vTl = V.get(2)
    def c_wsw():
        P(f"""
        s_mul_i32 s{sT0}, s2, 3072
        s_add_u32 s{sT0}, s{sT0}, {WS_SC}
        v_mov_b32 v{vTl}, s{sT0}
        """)
        if qw:
            P(f"""
            s_lshr_b32 s{sT0}, s2, 7
            s_lshl_b32 s{sT0}, s{sT0}, 9
            s_add_u32 s{sT0}, s{sT0}, s{sCB}
            s_lshl_b32 s{sT0}, s{sT0}, 7
            s_add_u32 s{sT0}, s{sT0}, {(WS_Q - 24*16384) & 0xffffffff}
            v_mul_u32_u24 v{vTl+1}, {16384-128}, v0
            v_add_u32 v{vTl+1}, s{sT0}, v{vTl+1}
            v_cmp_gt_u32 vcc, 24, v0
            v_cndmask_b32 v{vTl}, v{vTl+1}, v{vTl}, vcc
            v_cmp_gt_u32 vcc, 28, v0
            v_cndmask_b32 v{vTl}, 2.0, v{vTl}, vcc
            """)
        elif wsl > 24:
            P(f"""
            v_mul_u32_u24 v{vTl+1}, 768, v{vH}
            v_add_u32 v{vTl+1}, {BIG if noO else WS_O - 24*128}, v{vTl+1}
            v_cmp_gt_u32 vcc, 24, v0
            v_cndmask_b32 v{vTl}, v{vTl+1}, v{vTl}, vcc
            """)
        if wsl > 30:
            P(f"""
            v_lshlrev_b32 v{vTl+1}, 8, v{vH}
            v_add_u32 v{vTl+1}, {WS_FC - 30*128}, v{vTl+1}
            v_cmp_gt_u32 vcc, 30, v0
            v_cndmask_b32 v{vTl}, v{vTl+1}, v{vTl}, vcc
            """)
        if ypf:
            P(f"""
            s_bfe_u32 s{sT0}, s2, 0x10005
            s_lshl_b32 s{sT0}, s{sT0}, 14
            s_sub_u32 s{sT0}, {WS_Y - 32*128}, s{sT0}
            v_lshl_add_u32 v{vTl+1}, v{vH}, 10, s{sT0}
            v_cmp_gt_u32 vcc, 32, v0
            v_cndmask_b32 v{vTl}, v{vTl+1}, v{vTl}, vcc
            s_and_b32 s{sT0}, s2, 0x98
            s_cmp_eq_u32 s{sT0}, 0x98
            s_cselect_b32 s{sT0}, 32, 40
            """)
        P(f"""
        v_lshl_add_u32 v{vTl}, v0, 7, v{vTl}
        v_cmp_gt_u32 vcc, {'s%d' % sT0 if ypf else wsl}, v0
        v_cndmask_b32 v{vTl}, 2.0, v{vTl}, vcc
        """)
        desc(rWS, 1 << 24)
        P.vm(f"buffer_load_dword v{vTl+1}, v{vTl}, {srd(rWS)}, 0 offen sc1")
    stream = []
    for k in range(16): stream.append(("BK", k))
    for k in range(16): stream.append(("BV", k))
    for k in range(128): stream.append(("AK", k))
    for k in range(128): stream.append(("AV", k))
    NS = len(stream)
    sid = {}; sslot = {}; land = [-1]
    def issue(i):
        kind, k = stream[i]
        if k == 0 and kind == "BV":
            assert st['lgk']
            P(f"""
            s_and_b32 s{sI}, s2, 3
            s_mul_i32 s{sI}, s{sI}, {16384-128}
            s_add_u32 s{sI}, s{sI}, {3*131072}
            s_sub_u32 s{sOff}, s{sOff}, s{sI}
            """)
        elif k == 0 and kind[0] == "A" and rot:
            vo = vKo if kind == "AK" else vVo
            P(f"""
            s_lshr_b32 s{sI}, s2, 2
            s_lshl_b32 s{sI}, s{sI}, 21
            v_add_u32 v{vo}, s{sI}, v{vo}
            s_bfe_u32 s{sOff}, s2, {rot[0]:#x}
            s_lshl_b32 s{sOff}, s{sOff}, {rot[1]}
            s_and_b32 s{sI}, s2, 3
            s_lshl_b32 s{sI}, s{sI}, {14 if kind == "AK" else 7}
            s_add_u32 s{sOff}, s{sOff}, s{sI}
            """)
        elif k == 0 and kind[0] == "A":
            P(f"""
            s_lshr_b32 s{sOff}, s2, 2
            s_lshl_b32 s{sOff}, s{sOff}, 21
            s_and_b32 s{sI}, s2, 3
            s_lshl_b32 s{sI}, s{sI}, {14 if kind == "AK" else 7}
            s_add_u32 s{sOff}, s{sOff}, s{sI}
            """)
        elif k and k % 4 == 0 and kind[0] == "B":
            P(f"s_add_u32 s{sOff}, s{sOff}, {0x20000 if kind == 'BK' else 0x14000}")
        elif k and kind[1] == "V":
            P(f"s_addk_i32 s{sOff}, 0x4000")
        elif k and k % 4 == 0:
            P(f"s_add_u32 s{sOff}, s{sOff}, 0x10000")
        if rot and kind[0] == "A" and k and k % 32 == 0: P(f"s_and_b32 s{sOff}, s{sOff}, 0x1fffff")
        wz = [z[2] for z in zones if z[0] <= i < z[1]]
        zt = [z[3] for z in zones if z[0] <= i < z[1] and len(z) > 3]
        if zt and fcs['start'] is not None:
            P.cwait(sid[i-wz[0]], None, [f"s_cmp_gt_i32 s{sBoost}, {zt[0]}"])
            P.cwait(sid[i-W], sid[i-WM], [f"s_cmp_gt_i32 s{sBoost}, {i - fcs['start']}"]); land[0] = max(land[0], i-WM)
        elif wz and fcs['start'] is None:
            P.wait(sid[i-wz[0]]); land[0] = max(land[0], i-wz[0])
        elif wz and fcs['start'] is not None:
            P.cwait(sid[i-wz[0]], sid[i-WM], [f"s_cmp_gt_i32 s{sBoost}, {i - fcs['start']}"]); land[0] = max(land[0], i-WM)
        elif fcs['start'] is not None:
            if fc['neg'] is not None:
                P.cwait(sid[i-W+1], None, [f"s_cmp_ge_i32 s{sBoost}, {-fc['neg'] - fc['ns']*(i - fcs['start'])}"])
            P.cwait(sid[i-W], sid[i-WM], [f"s_cmp_gt_i32 s{sBoost}, {i - fcs['start']}"]); land[0] = max(land[0], i-WM)
        else:
            w0 = W0[1] if (W0 and i < W0[0]) else W
            if i >= w0: P.wait(sid[i-w0]); land[0] = max(land[0], i-w0)
        s = slots.pop(0); sslot[i] = s
        r, vo = {"BK": (rBK, vKo), "BV": (rBV, vVo), "AK": (rAK, vKo), "AV": (rAV, vVo)}[kind]
        imm = 0 if kind[1] == "V" else [0, 512, 256, 768][k & 3]
        o = f" offset:{imm}" if imm else ""
        sid[i] = P.vm(f"buffer_load_dwordx4 {a4(s)}, v{vo}, {srd(r)}, s{sOff} offen{o} nt")
    freed = []
    def release(i): freed.append(sslot[i])

    def xlane(op, x, t, steps):
        for st in steps:
            if st in ("x1", "x2", "r4", "r8"):
                d = {"x1": "quad_perm:[1,0,3,2]", "x2": "quad_perm:[2,3,0,1]", "r4": "row_ror:4", "r8": "row_ror:8"}[st]
                P(f"{op}_dpp v{x}, v{x}, v{x} {d} {FULL}")
            else:
                P(f"v_mov_b32 v{t}, v{x}")
                P(f"v_permlane{st[1:]}_swap_b32 v{x}, v{t}")
                P(f"{op} v{x}, v{x}, v{t}")
    def tagcheck(Q, tags, stag, mask):
        tags = list(tags)
        if isinstance(stag, list): pairs = [(tags[k], tags[k+4], stag[k]) for k in range(4)]
        else: pairs = [(a, b, stag) for a, b in zip(tags[0::2], tags[1::2])]
        for n, (a, b, tg) in enumerate(pairs):
            d = vT0 if n == 0 else (vT1 if n % 2 else vT2)
            Q(f"v_bitop3_b32 v{d}, v{a}, v{b}, {tg} bitop3:0x7e")
            if n and n % 2 == 0: Q(f"v_or3_b32 v{vT0}, v{vT0}, v{vT1}, v{vT2}")
            elif n and n == len(pairs)-1: Q(f"v_or_b32 v{vT0}, v{vT0}, v{vT1}")
        if mask: Q(f"v_and_b32 v{vT0}, {mask:#x}, v{vT0}")
        Q(f"v_cmp_ne_u32 vcc, 0, v{vT0}")
    def gather(name, loads, tags, stag, mask):
        ids = []
        def iss():
            if name+"g" in skip: return
            for n, t in enumerate(loads): ids.append(publish(f"{name}{n}", t.replace(" sc1", "")))
        def chk():
            if name+"g" in skip: return
            P.wait(*ids)
            tagcheck(P, tags, stag, mask)
            P(f"s_cbranch_vccnz L_slow_{name}")
            P.label(f"L_back_{name}")
            Q = Prog()
            Q.label(f"L_slow_{name}")
            Q(f"s_add_u32 s{sSpin}, s{sSpin}, 1")
            Q(f"s_cmp_gt_u32 s{sSpin}, 0x40000")
            Q(f"s_cbranch_scc1 L_back_{name}")
            for t in loads: Q.vm(t)
            Q.waitall()
            tagcheck(Q, tags, stag, mask)
            Q(f"s_cbranch_vccnz L_slow_{name}")
            Q(f"s_branch L_back_{name}")
            slow.append(Q)
        return iss, chk
    def publish(name, txt, tested=False):
        if not tested: P(f"s_cmp_lg_u32 s{sFar}, 0")
        P(f"s_cbranch_scc1 L_far_{name}")
        i = P.vm(txt)
        P.label(f"L_near_{name}")
        Q = Prog(); Q.label(f"L_far_{name}")
        Q.vm(txt.rstrip() + " sc1")
        Q(f"s_branch L_near_{name}"); slow.append(Q)
        return i
    def extract(D, dst, tau, t):
        rs = [r for r in range(4) if r != tau]
        src = D + tau
        for n, r in enumerate(rs):
            last = n == 2
            m = f"row_mask:0xf bank_mask:{1 << tau:#x}" if last else FULL
            P(f"v_add_f32_dpp v{dst if last else t}, v{D+r}, v{src} row_ror:{(4*(tau-r)) % 16} {m}")
            src = t
    def transp(dst, src, e):
        for q in range(4):
            P(f"v_perm_b32 v{dst+q}, v{src+4*(2*q+1)+(e>>1)}, v{src+4*(2*q)+(e>>1)}, s{sSel1 if e & 1 else sSel0}")
    def sum8(r, dst):
        P(f"""
        v_add_f32 v{r}, v{r}, v{r+1}
        v_add_f32 v{r+2}, v{r+2}, v{r+3}
        v_add_f32 v{r+4}, v{r+4}, v{r+5}
        v_add_f32 v{r+6}, v{r+6}, v{r+7}
        v_add_f32 v{r}, v{r}, v{r+2}
        v_add_f32 v{r+4}, v{r+4}, v{r+6}
        v_add_f32 v{dst}, v{r}, v{r+4}
        """)

    bg = []
    def B(at, fn, after=0): bg.append((at, fn, after))

    vSel = V.get(4); vL12, vPw, vPr, vL4 = [V.get() for _ in range(4)]
    def c_setup():
        if swap:
            P(f"s_bfe_u32 s{sKo}, s2, 0x10005")
            P(f"s_mul_i32 s{sKo}, s{sKo}, 40")
        P(f"""
        s_load_dword s{sTag}, {sp(rWS)}, 0
        s_load_dwordx2 {sp(rBV)}, s[0:1], 56
        s_load_dwordx2 {sp(rAK)}, s[0:1], 8
        s_load_dwordx2 {sp(rAV)}, s[0:1], 16
        s_load_dwordx2 {sp(rWO)}, s[0:1], s{sKo} offset:32
        s_load_dwordx2 {sp(rOUT)}, s[0:1], 80
        v_and_b32 v{vLane}, 63, v0
        v_mov_b32 v{vBig}, {BIG}
        """)
        if ipf and not ipf0: code_pf()
        desc(rBV, 1 << 26); desc(rAK, 1 << 27); desc(rAV, 1 << 27); desc(rWO, 3670016); desc(rOUT, 7168)
        P(f"""
        s_mov_b32 s{sSel0}, 0x05040100
        s_mov_b32 s{sSel1}, 0x07060302
        s_mov_b32 s{sC}, {CS:#x}
        s_mov_b32 s{sSpin}, 0
        v_mul_u32_u24 v{vL12}, 12, v{vLane}
        v_lshlrev_b32 v{vL4}, 2, v{vLane}
        v_lshlrev_b32 v{vPw}, 3, v0
        v_and_b32 v{vPr}, 3, v0
        v_bfe_u32 v{vT0}, v0, 3, 2
        v_lshl_add_u32 v{vPr}, v{vPr}, 2, v{vT0}
        v_lshrrev_b32 v{vT0}, 6, v0
        v_lshl_add_u32 v{vPr}, v{vT0}, 4, v{vPr}
        v_bfe_u32 v{vT0}, v0, 2, 1
        v_lshl_add_u32 v{vPr}, v{vPr}, 1, v{vT0}
        v_bfe_u32 v{vT0}, v0, 5, 1
        v_lshl_add_u32 v{vPr}, v{vT0}, 8, v{vPr}
        v_lshlrev_b32 v{vPr}, 2, v{vPr}
        v_lshrrev_b32 v{vT0}, 3, v0
        v_and_b32 v{vT1}, 7, v0
        v_lshlrev_b32 v{vVo}, 9, v{vT0}
        v_lshl_add_u32 v{vVo}, v{vT1}, 4, v{vVo}
        """)
        if not late: c_setup2()
    def c_setup2():
        P(f"""
        v_bfe_u32 v{vT0}, v0, 3, 1
        v_mul_u32_u24 v{vT0}, 0x0202, v{vT0}
        v_add_u32 v{vT0}, 0x0100, v{vT0}
        v_or_b32 v{vT2}, 0x0c0c0000, v{vT0}
        v_lshlrev_b32 v{vT0}, 16, v{vT0}
        v_or_b32 v{vT0}, 0x0c0c, v{vT0}
        """)
        vcc(0xaaaaaaaa)
        P(f"v_cndmask_b32 v{vT0}, v{vT2}, v{vT0}, vcc")
        P(f"v_mov_b32 v{vT2}, 0x0c0c0c0c")
        for r in range(4):
            vcc(0x03030303 << (2*r)); P(f"v_cndmask_b32 v{vSel+r}, v{vT2}, v{vT0}, vcc")

    vQD = V.get(32, 4); vTB = [V.get(4, 4), V.get(4, 4)]
    def proj_write(dst, tmp):
        for e0 in (0, 4):
            for n in range(3):
                for e in range(e0, e0+4):
                    D = vQD + 4*e; tau = e & 3
                    r = [x for x in range(4) if x != tau][n]
                    m = f"row_mask:0xf bank_mask:{1 << tau:#x}" if n == 2 else FULL
                    P(f"v_add_f32_dpp v{dst+(e >> 2) if n == 2 else tmp+tau}, v{D+r}, v{tmp+tau if n else D+tau} row_ror:{(4*(tau-r)) % 16} {m}")
        P(f"ds_write_b64 v{vPw}, {v2(dst)} offset:{L_QRED}")
        P("s_waitcnt lgkmcnt(0)")
    def proj_read(r):
        P("s_barrier")
        P(f"ds_read2st64_b32 {v2(r)}, v{vPr} offset0:{L_QRED//256} offset1:{L_QRED//256+2}")
    def proj_sum(r):
        P("s_waitcnt lgkmcnt(0)")
        P(f"v_add_f32 v{r}, v{r}, v{r+1}")
        xlane("v_add_f32", r, r+1, ["p32"])
    vFl, vFs, vFd, vFt = vXo, vWQo, V.get(), V.get()
    sFm = S.get(2)
    def tag_setup():
        P(f"""
        ; hand-off tag of this launch: differs in every byte from the tag the previous launch left at ws[0]
        s_add_u32 s{sTag}, s{sTag}, 0x9e3779b9
        """)
    def fc_setup():
        P(f"""
        ; one line per (class, wave, checkpoint): a dword for each of the 32 workgroups of the class
        s_bfe_u32 s{sFC}, s2, 0x30003
        s_lshl2_add_u32 s{sFC}, s{sFC}, s{sWv}
        s_lshl_b32 s{sFC}, s{sFC}, 11
        s_add_u32 s{sFC}, s{sFC}, {WS_FC}
        s_and_b32 s{sI}, s2, 7
        s_lshr_b32 s{sBoost}, s2, 6
        s_lshl3_add_u32 s{sI}, s{sBoost}, s{sI}
        v_cmp_eq_u32 {sp(sFm)}, s{sI}, v{vLane}
        v_cndmask_b32 v{vFs}, v{vBig}, v{vL4}, {sp(sFm)}
        v_cmp_gt_u32 {sp(sFm)}, 32, v{vLane}
        v_cndmask_b32 v{vFl}, v{vBig}, v{vL4}, {sp(sFm)}
        v_add_u32 v{vFl}, s{sFC}, v{vFl}
        """)
    hid = []; vHd = V.get()
    def c_hello2():
        P(f"v_and_b32 v{vH}, 0xe0, v{vH}")
        P(f"v_and_or_b32 v{vH}, v0, 31, v{vH}")
        hid.append(P.vm(f"global_load_ubyte v{vHd}, v{vH}, {sp(sDbg)}"))
    def c_q():
        P.wait(*idwq)
        stamp("wq")
        for e in range(8):
            transp(vTB[e & 1], vWQ, e)
            P(f"v_mfma_f32_16x16x32_bf16 {v4(vQD+4*e)}, {v4(vX)}, {v4(vTB[e & 1])}, 0")
        proj_write(vWQ, vWQ+4)
        return 'lgk'
    def c_q4():
        r = vWQ
        proj_read(r)
        if qat is None: tag_setup()
        P(f"""
        s_lshr_b32 s{sT0}, s2, 7
        s_lshl2_add_u32 s{sT0}, s{sT0}, s{sWv}
        s_lshl_b32 s{sT0}, s{sT0}, 7
        s_add_u32 s{sT0}, s{sT0}, s{sCB}
        s_lshl_b32 s{sT0}, s{sT0}, 7
        s_add_u32 s{sT0}, s{sT0}, {WS_Q}
        v_mov_b32 v{r+9}, s{sTag}
        """)
        proj_sum(r)
        if True:
            P.wait(*hid)
            P(f"""
            ; class-local hand-offs go through L2 only if all 32 workgroups of the class were seen to report this XCC
            v_cmp_ne_u32 vcc, v{vHd}, v{vH+1}
            s_mov_b32 s{sFar}, vcc_lo
            """)
            if forcefar: P(f"s_mov_b32 s{sFar}, 1")
        P(f"""
        v_mov_b32_dpp v{r+1}, v{r} quad_perm:[1,0,3,2] {FULL}
        v_cvt_pk_bf16_f32 v{r+8}, v{r}, v{r+1}
        s_mov_b32 exec_lo, 0x55555555
        s_mov_b32 exec_hi, 0
        """)
        publish("q", f"buffer_store_dwordx2 {v2(r+8)}, v{vL4}, {srd(rWS)}, s{sT0} offen")
        P("s_mov_b64 exec, -1")
        stamp("qpub")
        return 'tag'
    def c_tlb():
        P(f"""
        s_lshr_b32 s{sT0}, s2, 2
        s_lshl_b32 s{sT0}, s{sT0}, 21
        s_lshr_b32 s{sT1}, s{sCB}, 4
        s_mul_i32 s{sT1}, s{sT1}, {512*896}
        v_cmp_eq_u32 vcc, 0, v0
        v_cndmask_b32 v{vT0}, 2.0, v0, vcc
        s_waitcnt lgkmcnt(0)
        """)
        if "V" in tlb: P.vm(f"buffer_load_dword v{vTl}, v{vT0}, {srd(rBV)}, s{sOff} offen nt")
        if "K" in tlb: P.vm(f"buffer_load_dword v{vTl}, v{vT0}, {srd(rAK)}, s{sT0} offen nt")
        if "A" in tlb: P.vm(f"buffer_load_dword v{vTl}, v{vT0}, {srd(rAV)}, s{sT0} offen nt")
        if "W" in tlb: P.vm(f"buffer_load_dword v{vTl}, v{vT0}, {srd(rWO)}, s{sT1} offen nt")
        if "O" in tlb: P.vm(f"buffer_load_dword v{vTl}, v{vT0}, {srd(rOUT)}, 0 offen nt")
    S0 = max(W, fast) - 1 if S00 is None else S00
    if late > 1: B(S0, c_setup); B(late, c_wsw)
    else: B(S0, c_wsw); B(0, c_setup)
    if tlb: B(0, c_tlb)
    B(hello, c_hello2)
    def c_tag():
        P("s_waitcnt lgkmcnt(0)"); tag_setup(); st['lgk'] = True
        return 'tag'
    if qat is not None: B(0, c_tag, 1)
    B(len(first) - 2 + (W if len(first) > 1 else 0) if qat is None else qat, c_q); B(hello + W + 1, c_q4, 1)

    vQA = V.get(32, 4); vQB = V.get(16, 4)
    vG = vQD
    vGo = V.get(2); sG = [S.get() for _ in range(8)]
    ql = [f"buffer_load_dwordx4 {v4(vG+8*u+4*hf)}, v{vGo}, {srd(rWS)}, s{sG[0]} offen offset:{512*u+16*hf} sc1" for u in range(2) for hf in range(2)]
    ql += [f"buffer_load_dwordx4 {v4(vG+16+8*u+4*hf)}, v{vGo+1}, {srd(rWS)}, s{sG[1]} offen offset:{512*u+16*hf} sc1" for u in range(2) for hf in range(2)]
    q_iss, q_chk = gather("q", ql, range(vG+1, vG+32, 2), f's{sTag}', None)
    def c_qg():
        P(f"""
        v_lshrrev_b32 v{vGo}, 2, v{vLane}
        v_lshlrev_b32 v{vGo}, 5, v{vGo}
        v_bfe_u32 v{vT0}, v{vLane}, 1, 1
        v_lshl_add_u32 v{vGo+1}, v{vT0}, 10, v{vGo}
        s_lshr_b32 s{sG[0]}, s2, 2
        s_lshl_b32 s{sG[0]}, s{sG[0]}, 10
        s_add_u32 s{sG[0]}, s{sG[0]}, {WS_Q}
        s_lshr_b32 s{sG[1]}, s2, 3
        s_lshl_b32 s{sG[1]}, s{sG[1]}, 11
        s_add_u32 s{sG[1]}, s{sG[1]}, {WS_Q + 4*16384}
        """)
        q_iss()
    def c_qb():
        q_chk(); stamp("qgot")
        if spinif == "nq": P(f"s_mov_b32 s1, s{sSpin}")
        if spinif == "ns": P(f"s_mov_b32 s{sSpin}, 0")
        if spinif == "far1": P(f"s_min_u32 s1, s{sFar}, 20")
        for t in range(4):
            vcc(0x11111111 << t)
            for u in range(2):
                for q in range(4): P(f"v_cndmask_b32 v{vQA+16*u+4*t+q}, 0, v{vG+8*u+2*q}, vcc")
        for t in range(2):
            vcc(0x55555555 << t)
            for u in range(2):
                for q in range(4): P(f"v_cndmask_b32 v{vQB+8*u+4*t+q}, 0, v{vG+16+8*u+2*q}, vcc")
        return 'kok'
    if late: B(0, c_setup2)
    B(qg, c_qg); B(0, c_qb, WM+1)

    vD = [V.get(4, 4) for _ in range(4)]
    vSB, vTb = V.get(), V.get()
    def c_bqk():
        P.wait(sid[15])
        D = vWQ
        for tau in range(4):
            for n in range(4):
                t, u = n & 1, n >> 1
                P(f"v_mfma_f32_16x16x32_bf16 {v4(D+4*tau)}, {a4(sslot[4*tau+n])}, {v4(vQB+8*u+4*t)}, {v4(D+4*tau) if n else 0}")
                release(4*tau+n)
        for tau in range(4): extract(D+4*tau, vSB, tau, vT0)
        P(f"""
        v_cvt_pk_bf16_f32 v{vSB}, v{vSB}, v{vSB}
        v_lshlrev_b32 v{vT0}, 4, v0
        v_lshrrev_b32 v{vTb}, v{vT0}, s{sTag}
        v_mov_b32 v{vT0}, 0xffff
        v_bfi_b32 v{vSB}, v{vT0}, v{vTb}, v{vSB}
        """)
    B(15+WM, c_bqk)

    vWO = V.get(32, 4); vWOo = V.get()
    def wo_load(j):
        if j == 4: P(f"s_addk_i32 s{sAux}, {4*896}")
        if "wo" not in skip:
            P.vm(f"buffer_load_dwordx4 {v4(vQD+4*j)}, v{vWOo}, {srd(rWO)}, s{sAux} offen offset:{896*(j & 3)} {woflag}")

    vSA = V.get(4, 4)
    pend = []
    def k_consume(i):
        k = i - 32
        unit, n = k >> 4, k & 15
        t, u, par = n >> 2, (n >> 1) & 1, n & 1
        D = vD[2*(unit & 1) + par]
        first = (t == 0 and u == 0)
        P(f"v_mfma_f32_16x16x32_bf16 {v4(D)}, {a4(sslot[i])}, {v4(vQA+16*u+4*t)}, {0 if first else v4(D)}")
        release(i)
        while pend and n >= 2:
            pend.pop(0)()
        if n == 15:
            for p_ in range(2):
                pend.append(lambda p_=p_, unit=unit: extract(vD[2*(unit & 1)+p_], vSA + 2*(unit >> 2) + p_, unit & 3, vXT))
            if k == 127:
                while pend: pend.pop(0)()
                c_spub()
    def c_spub():
        o = vD[0]
        P(f"""
        s_lshl2_add_u32 s{sI}, s2, s{sWv}
        s_mul_i32 s{sI}, s{sI}, 768
        s_add_u32 s{sI}, s{sI}, {WS_SC}
        v_cvt_pk_bf16_f32 v{o}, v{vSA}, v{vSA+1}
        v_cvt_pk_bf16_f32 v{o+1}, v{vSA+2}, v{vSA+3}
        v_mov_b32 v{o+2}, v{vSB}
        """)
        if "scs" not in skip: publish("sc", f"buffer_store_dwordx3 {v3(o)}, v{vL12}, {srd(rWS)}, s{sI} offen")
        stamp("scpub")
    vSG = vWQ
    vE = vQA; vEB = vQA + 16
    vP = V.get(8, 4); vPB = vQB + 4; vM, vL, vMB, vLB = vQB, vQB+1, vQB+2, vQB+3
    vWt, vWtB, vFF = vQB+8, vQB+9, vQB+10
    sl = [f"buffer_load_dwordx3 {v3(vSG+4*k)}, v{vL12}, {srd(rWS)}, s{sG[k]} offen sc1" for k in range(4)]
    sl += [f"buffer_load_dword v{vSG+16+k}, v{vL12}, {srd(rWS)}, s{sG[4+k]} offen offset:8 sc1" for k in range(4)]
    sbr = [vSG+4*k+2 for k in range(4)] + [vSG+16+k for k in range(4)]
    s_iss, s_chk = gather("sc", sl, sbr, f'v{vTb}', 0xffff)
    def c_sg():
        P(f"""
        s_and_b32 s{sT0}, s2, 0xfc
        s_lshl2_add_u32 s{sT0}, s{sT0}, s{sWv}
        s_xor_b32 s{sT1}, s{sT0}, 16
        s_mul_i32 s{sT0}, s{sT0}, 768
        s_mul_i32 s{sT1}, s{sT1}, 768
        s_add_u32 s{sG[0]}, s{sT0}, {WS_SC}
        s_add_u32 s{sG[4]}, s{sT1}, {WS_SC}
        """)
        for k in (1, 2, 3, 5, 6, 7): P(f"s_add_u32 s{sG[k]}, s{sG[k-1]}, 3072")
        s_iss()
    def c_sm1():
        s_chk(); stamp("scgot")
        for r in range(8):
            src = vSG + 4*(r >> 1) + (r & 1)
            P(f"v_lshlrev_b32 v{vE+2*r}, 16, v{src}")
            P(f"v_and_b32 v{vE+2*r+1}, 0xffff0000, v{src}")
        P(f"v_max3_f32 v{vM}, v{vE}, v{vE+1}, v{vE+2}")
        for r in range(3, 15, 2): P(f"v_max3_f32 v{vM}, v{vM}, v{vE+r}, v{vE+r+1}")
        P(f"v_max_f32 v{vM}, v{vM}, v{vE+15}")
        xlane("v_max_f32", vM, vT0, ["x1", "x2", "r4", "r8", "p16", "p32"])
        P(f"v_mul_f32 v{vM}, s{sC}, v{vM}")
        for r in range(16):
            P(f"v_fma_f32 v{vE+r}, v{vE+r}, s{sC}, -v{vM}")
            P(f"v_exp_f32 v{vE+r}, v{vE+r}")
        for r in range(8): P(f"v_cvt_pk_bf16_f32 v{vP+r}, v{vE+2*r}, v{vE+2*r+1}")
        return 'vok'
    def c_sm3():
        for r in range(8): P(f"v_add_f32 v{vE+r}, v{vE+r}, v{vE+8+r}")
        sum8(vE, vL)
        xlane("v_add_f32", vL, vT0, ["x1", "x2", "r4", "r8", "p16", "p32"])
    def c_sb1():
        for k in range(8): P(f"v_and_b32 v{vEB+k}, 0xffff0000, v{sbr[k]}")
        P(f"v_max3_f32 v{vMB}, v{vEB}, v{vEB+1}, v{vEB+2}")
        P(f"v_max3_f32 v{vMB}, v{vMB}, v{vEB+3}, v{vEB+4}")
        P(f"v_max3_f32 v{vMB}, v{vMB}, v{vEB+5}, v{vEB+6}")
        P(f"v_max_f32 v{vMB}, v{vMB}, v{vEB+7}")
        xlane("v_max_f32", vMB, vT0, ["x1", "r4", "r8", "p16", "p32"])
        P(f"v_mul_f32 v{vMB}, s{sC}, v{vMB}")
        for k in range(8):
            P(f"v_fma_f32 v{vEB+k}, v{vEB+k}, s{sC}, -v{vMB}")
            P(f"v_exp_f32 v{vEB+k}, v{vEB+k}")
        for k in range(4):
            P(f"v_mov_b32_dpp v{vT0}, v{vEB+k} quad_perm:[1,0,3,2] {FULL}")
            P(f"v_cvt_pk_bf16_f32 v{vPB+k}, v{vEB+k}, v{vT0}")
        sum8(vEB, vLB)
        xlane("v_add_f32", vLB, vT0, ["x1", "r4", "r8", "p16", "p32"])
        P(f"""
        v_bfe_u32 v{vT0}, v{vLane}, 1, 1
        v_lshlrev_b32 v{vT0}, 6, v{vT0}
        s_lshl_b32 s{sT0}, s{sWv}, 4
        v_add_u32 v{vT0}, s{sT0}, v{vT0}
        ds_write_b128 v{vT0}, {v4(vM)} offset:{L_ST}
        """)
    vBc = [V.get(), V.get()]
    vTC = [V.get(4, 4), V.get(4, 4)]
    def pvop(bc, dst, src, lane):
        P(f"v_mov_b32_dpp v{bc}, v{src} row_newbcast:{lane} {FULL}")
        for q in range(4): P(f"v_perm_b32 v{dst+q}, v{bc}, v{bc}, v{vSel+q}")
    def c_bpv():
        for k in range(4):
            for tau in range(4):
                i = 16 + 4*tau + k
                for hd in range(2): pvop(vT0+hd, vTC[hd], vPB+k, 4*tau + 2*hd)
                for hd in range(2):
                    P(f"v_mfma_f32_16x16x32_bf16 {v4(vD[2+hd])}, {a4(sslot[i])}, {v4(vTC[hd])}, {v4(vD[2+hd]) if i > 16 else 0}")
                release(i)
    assert vT1 == vT0 + 1
    vAw, vAr = V.get(), V.get()
    vW4 = vQB + 12
    def c_sm4():
        s_ = vE
        P(f"""
        v_bfe_u32 v{vT0}, v{vLane}, 1, 1
        v_lshlrev_b32 v{vT0}, 6, v{vT0}
        s_waitcnt lgkmcnt(0)
        s_barrier
        """)
        for k in range(4): P(f"ds_read_b128 {v4(s_+4*k)}, v{vT0} offset:{L_ST+16*k}")
        P(f"""
        v_lshrrev_b32 v{vAw}, 4, v0
        v_lshlrev_b32 v{vAw}, 7, v{vAw}
        v_and_b32 v{vT1}, 7, v{vLane}
        v_lshl_add_u32 v{vAw}, v{vT1}, 4, v{vAw}
        v_and_b32 v{vAr}, 32, v{vLane}
        v_lshl_add_u32 v{vAr}, v{vT1}, 2, v{vAr}
        v_bfe_u32 v{vT1}, v{vLane}, 3, 2
        v_add_lshl_u32 v{vAr}, v{vAr}, v{vT1}, 2
        s_min_u32 s{sT0}, s{sWv}, 2
        s_lshl_b32 s{sT0}, s{sT0}, 11
        v_add_u32 v{vAr}, s{sT0}, v{vAr}
        v_mov_b32 v{vFF}, 0xff
        s_waitcnt lgkmcnt(0)
        """)
        for o, m, wt in ((0, vM, vWt), (2, vMB, vWtB)):
            P(f"v_max3_f32 v{vT0}, v{s_+o}, v{s_+4+o}, v{s_+8+o}")
            P(f"v_max_f32 v{vT0}, v{vT0}, v{s_+12+o}")
            for k in range(4):
                P(f"v_sub_f32 v{s_+4*k+o}, v{s_+4*k+o}, v{vT0}")
                P(f"v_exp_f32 v{s_+4*k+o}, v{s_+4*k+o}")
            P(f"v_sub_f32 v{wt}, v{m}, v{vT0}")
            P(f"v_exp_f32 v{wt}, v{wt}")
            P(f"v_mul_f32 v{vT1}, v{s_+o}, v{s_+o+1}")
            for k in range(1, 4): P(f"v_fmac_f32 v{vT1}, v{s_+4*k+o}, v{s_+4*k+o+1}")
            P(f"v_rcp_f32 v{vT1}, v{vT1}")
            P(f"v_mul_f32 v{wt}, v{wt}, v{vT1}")
            if rdw and o == 0:
                for k in range(4): P(f"v_mul_f32 v{vW4+k}, v{s_+4*k}, v{vT1}")
    def red_write(lst):
        P("s_mov_b32 exec_lo, 0x00ff00ff")
        P("s_mov_b32 exec_hi, 0xff00ff00")
        for acc, reg in lst: P(f"ds_write_b128 v{vAw}, {v4(acc)} offset:{L_RED+2048*reg}")
        P("s_mov_b64 exec, -1")
    def c_br1():
        for hd in range(2):
            for q in range(4):
                P(f"v_mul_f32_dpp v{vD[2+hd]+q}, v{vWtB}, v{vD[2+hd]+q} quad_perm:[{2*hd},{2*hd},{2*hd},{2*hd}] {FULL}")
        red_write([(vD[2], 1), (vD[3], 2)])
        stamp("ybdone")
    vOb = V.get(2)
    def c_br2():
        r = vWQ
        P("s_waitcnt lgkmcnt(0)")
        P("s_barrier")
        for k in range(4): P(f"ds_read2st64_b32 {v2(r+2*k)}, v{vAr} offset0:{L_RED//256+2*k} offset1:{L_RED//256+2*k+1}")
        P(f"""
        v_add_u32 v{vOb}, 64, v0
        v_and_b32 v{vOb}, 128, v{vOb}
        v_cmp_ne_u32 vcc, 0, v{vOb}
        v_cndmask_b32 v{vOb}, v{vBig}, v{vL4}, vcc
        s_waitcnt lgkmcnt(0)
        """)
        sum8(r, r)
        P(f"v_bfi_b32 v{vOb+1}, v{vFF}, v{vTb}, v{r}")
        if not bsplit: c_br3()
    def c_br3():
        t = f"buffer_store_dword v{vOb+1}, v{vOb}, {srd(rWS)}, s{sOp} offen"
        if swap: P.vm(t + " sc1")
        else: publish("ob", t)
    vOg, vOo, vYo = vGo+1, vL12, vGo
    vY0, vY1, vBp = V.get(), V.get(), V.get()
    sOp, sOg, sYp, sYg, sOutO = sG[0:5]
    sYx, sOwn = rX, rX+2
    brx = "s_bfe_u32 s%d, s2, 0x10005" % sT0 if swap else "s_lshr_b32 s%d, s2, 7" % sT0
    def c_fin():
        if prm:
            P(f"""
            ; projection role m = (b&1)*8 + 2*s + kh: the workgroups without a block are ones with s = 3
            s_and_b32 s{sT0}, s2, 3
            s_bfe_u32 s{sT1}, s2, 0x10002
            s_lshl1_add_u32 s{sT0}, s{sT0}, s{sT1}
            s_andn2_b32 s{sCB}, s{sCB}, 7
            s_or_b32 s{sCB}, s{sCB}, s{sT0}
            """)
        if swap:
            P(f"""
            s_bfe_u32 s{sT0}, s2, 0x20003
            s_lshr_b32 s{sT1}, s2, 6
            s_lshl2_add_u32 s{sT0}, s{sT0}, s{sT1}
            s_and_b32 s{sT1}, s2, 7
            s_lshl4_add_u32 s{sCB}, s{sT1}, s{sT0}
            """)
        P(f"""
        ; o and y words carry byte (column&3) of the tag in their low byte
        v_lshlrev_b32 v{vT0}, 3, v0
        v_lshrrev_b32 v{vTb}, v{vT0}, s{sTag}
        s_lshr_b32 s{sG[5]}, s{sTag}, 8
        s_lshr_b32 s{sG[6]}, s{sTag}, 16
        s_lshr_b32 s{sG[7]}, s{sTag}, 24
        ; O table [x][slot: A, B kh0, B kh1][b][512] dwords
        s_bfe_u32 s{sT0}, s2, 0x30003
        s_mul_i32 s{sOg}, s{sT0}, {3*8192}
        s_add_u32 s{sOg}, s{sOg}, {WS_O}
        s_lshr_b32 s{sT0}, s2, 6
        s_lshl_b32 s{sT0}, s{sT0}, 11
        s_add_u32 s{sOp}, s{sOg}, s{sT0}
        ; wave 0: A row block t ; waves 1,2: slot 1+kh, row block 4*(wave-1)+s
        s_and_b32 s{sT0}, s2, 4
        s_lshl_b32 s{sT0}, s{sT0}, 3
        s_lshl2_add_u32 s{sT0}, s{sWv}, s{sT0}
        s_and_b32 s{sT1}, s2, 3
        s_add_u32 s{sT0}, s{sT0}, s{sT1}
        s_addk_i32 s{sT0}, 28
        s_and_b32 s{sT1}, s2, 7
        s_cmp_eq_u32 s{sWv}, 0
        s_cselect_b32 s{sT0}, s{sT1}, s{sT0}
        s_lshl_b32 s{sT0}, s{sT0}, 8
        s_add_u32 s{sOp}, s{sOp}, s{sT0}
        s_lshr_b32 s{sT0}, s{sCB}, 4
        s_mul_i32 s{sOg}, s{sT0}, {3*8192}
        s_add_u32 s{sOg}, s{sOg}, {WS_O}
        {brx}
        s_lshl_b32 s{sT0}, s{sT0}, 13
        s_add_u32 s{sOg}, s{sOg}, s{sT0}
        s_and_b32 s{sT1}, s{sCB}, 1
        s_lshl_b32 s{sT1}, s{sT1}, 10
        s_add_u32 s{sOg}, s{sOg}, s{sT1}
        v_bfe_u32 v{vT0}, v0, 1, 1
        v_mul_lo_u32 v{vOg}, v{vT0}, s{sT0}
        v_bfe_u32 v{vT0}, v0, 2, 2
        v_lshl_add_u32 v{vOg}, v{vT0}, 11, v{vOg}
        v_lshrrev_b32 v{vT0}, 4, v0
        v_lshl_add_u32 v{vOg}, v{vT0}, 6, v{vOg}
        v_and_b32 v{vT0}, 1, v0
        v_lshl_add_u32 v{vOg}, v{vT0}, 5, v{vOg}
        ; wo lane (row group tid>>3, 16-byte chunk tid&7)
        v_lshrrev_b32 v{vT0}, 3, v0
        v_mul_u32_u24 v{vWOo}, {8*896}, v{vT0}
        v_and_b32 v{vT0}, 7, v0
        v_lshl_add_u32 v{vWOo}, v{vT0}, 4, v{vWOo}
        s_and_b32 s{sT1}, s{sCB}, 15
        v_mov_b32 v{vT1}, s{sT1}
        v_cmp_gt_u32 vcc, 14, v{vT1}
        v_cndmask_b32 v{vWOo}, v{vBig}, v{vWOo}, vcc
        s_lshr_b32 s{sT0}, s{sCB}, 4
        s_and_b32 s{sAux}, s{sCB}, 1
        s_lshl1_add_u32 s{sAux}, s{sT0}, s{sAux}
        s_mul_i32 s{sAux}, s{sAux}, {256*896}
        s_and_b32 s{sT0}, s{sCB}, 14
        s_lshl_b32 s{sT0}, s{sT0}, 6
        s_add_u32 s{sAux}, s{sAux}, s{sT0}
        v_lshlrev_b32 v{vPw}, 4, v0
        v_and_b32 v{vPr}, 1, v0
        v_bfe_u32 v{vT1}, v0, 3, 3
        v_lshl_add_u32 v{vPr}, v{vPr}, 3, v{vT1}
        v_lshrrev_b32 v{vT1}, 6, v0
        v_lshl_add_u32 v{vPr}, v{vT1}, 4, v{vPr}
        v_bfe_u32 v{vT1}, v0, 1, 2
        v_lshl_add_u32 v{vPr}, v{vPr}, 2, v{vT1}
        v_lshlrev_b32 v{vPr}, 2, v{vPr}
        v_lshlrev_b32 v{vOo}, 3, v{vT0}
        v_bfe_u32 v{vT0}, v{vLane}, 4, 1
        v_lshl_add_u32 v{vOo}, v{vT0}, 2, v{vOo}
        v_lshrrev_b32 v{vT0}, 5, v{vLane}
        v_lshl_add_u32 v{vOo}, v{vT0}, 1, v{vOo}
        v_mul_u32_u24 v{vYo}, {8192-128}, v{vT0}
        v_add_u32 v{vYo}, v{vYo}, v{vL4}
        {brx}
        s_mul_i32 s{sT0}, s{sT0}, 14
        s_add_u32 s{sT0}, s{sT0}, s{sT1}
        s_lshl_b32 s{sOutO}, s{sT0}, 6
        s_mul_i32 s{sYp}, s{sWv}, 1792
        s_add_u32 s{sOutO}, s{sOutO}, s{sYp}
        s_lshl2_add_u32 s{sT0}, s{sT0}, s{sWv}
        s_lshl_b32 s{sT0}, s{sT0}, 11
        s_add_u32 s{sYg}, s{sT0}, {WS_Y}
        s_and_b32 s{sT1}, s{sCB}, 1
        s_mul_i32 s{sT0}, s{sT1}, {8192-1024}
        s_sub_u32 s{sYp}, s{sYg}, s{sT0}
        s_lshr_b32 s{sT0}, s{sCB}, 4
        s_lshl_b32 s{sI}, s{sT0}, 7
        s_add_u32 s{sYp}, s{sYp}, s{sI}
        ; block m is summed by its workgroup of row block m&7, which keeps that half of its own result in registers
        s_lshl_b32 s{sI}, s{sT0}, 3
        s_lshl_b64 {sp(sOwn)}, 0xff, s{sI}
        s_lshl_b32 s{sI}, s{sT1}, 7
        v_lshl_add_u32 v{vBp}, v{vOo}, 1, s{sI}
        s_xor_b32 s{sI}, s{sT1}, 1
        s_lshl_b32 s{sI}, s{sI}, 10
        v_lshlrev_b32 v{vY0}, 4, v{vLane}
        v_add_u32 v{vY1}, 1024, v{vY0}
        v_add_u32 v{vT0}, s{sI}, v{vY0}
        v_cndmask_b32 v{vY0}, v{vY0}, v{vT0}, {sp(sOwn)}
        v_cndmask_b32 v{vY1}, v{vY1}, v{vT0}, {sp(sOwn)}
        s_sub_u32 s{sYx}, 0, s{sT1}
        s_not_b32 s{sYx+1}, s{sYx}
        s_and_b32 s{sT1}, s{sCB}, 7
        s_cmp_eq_u32 s{sT0}, s{sT1}
        s_cselect_b64 {sp(sYx)}, {sp(sYx)}, -1
        """)
    def c_re1(): hid.append(P.vm(f"global_load_ubyte v{vHd}, v{vH}, {sp(sDbg)} nt"))
    def c_re2():
        P.wait(hid[-1])
        P(f"""
        ; second look: a report that arrived after the first one no longer keeps the class off the L2 path
        v_cmp_ne_u32 vcc, v{vHd}, v{vH+1}
        s_mov_b32 s{sFar}, vcc_lo
        """)
        if forcefar: P(f"s_mov_b32 s{sFar}, 1")
    if recheck: B(recheck, c_re1); B(0, c_re2, WM+1)
    B(160+sg, c_sg); B(0, c_sm1, WM+1); B(0, c_sm3); B(0, c_sb1); B(0, c_bpv); B(0, c_sm4); B(0, c_br1); B(0, c_fin)
    def c_yw():
        if yw[1] == "c":
            P(f"""
            s_cmp_eq_u64 {sp(sYx)}, -1
            s_cselect_b32 s{sT0}, 0, 16
            v_lshlrev_b32 v{vT0}, 7, v{vLane}
            v_cmp_gt_u32 vcc, s{sT0}, v{vLane}
            v_cndmask_b32 v{vT0}, v{vBig}, v{vT0}, vcc
            """)
            P.vm(f"buffer_load_dword v{vTl+1}, v{vT0}, {srd(rWS)}, s{sYg} offen sc1")
        else:
            P.vm(f"buffer_load_dword v{vTl+1}, v{vYo}, {srd(rWS)}, s{sYp} offen sc1")
    if yw and yw[0] < bpub: B(yw[0], c_yw)
    def c_ow():
        P(f"v_cmp_gt_u32 vcc, 192, v0")
        P(f"v_cndmask_b32 v{vT0}, v{vBig}, v{vL4}, vcc")
        P.vm(f"buffer_load_dword v{vTl+1}, v{vT0}, {srd(rWS)}, s{sOp} offen sc1")
    if ow: B(ow, c_ow)
    if bsplit:
        B(bsplit, c_br2)
        if btail is None: B(bpub, c_br3)
    elif bpub: B(bpub, c_br2)
    if yw and yw[0] >= bpub and ytail is None: B(yw[0], c_yw)

    vAcc = vD[1]
    prepared = set()
    def v_prep(i):
        v = i - 160
        if i < NS and i not in prepared:
            pvop(vBc[v & 1], vTB[v & 1], vP + 2*(v & 3) + (v >> 6), (v >> 2) & 15); prepared.add(i)
    def v_consume(i):
        v = i - 160
        v_prep(i)
        P.wait(sid[i])
        P(f"v_mfma_f32_16x16x32_bf16 {v4(vAcc)}, {a4(sslot[i])}, {v4(vTB[v & 1])}, {v4(vAcc) if v else 0}")
        release(i)
        v_prep(i+1)

    xg = fc['xg'] if fc else 0
    if xg:
        vGs, vGl, vGd = [V.get() for _ in range(3)]; sBias = S.get()
        xcs = [cps[c] for c in fc['xc']]
    def fc_step(i):
        if i in cps:
            c = cps.index(i)
            if c == 0:
                assert st['tag'] and len(idwq) == 9
                fc_setup()
                P(f"v_mov_b32 v{vFt}, s{sTag}")
                if fc['tab']:
                    m = min(fc['tab']); t = sum(((x - m)//2) << (4*k) for k, x in enumerate(fc['tab']))
                    P(f"""
                    s_lshl_b32 s{sTagQ}, s{sTagQ}, 2
                    s_lshr_b32 s{sTagQ}, {t:#x}, s{sTagQ}
                    s_and_b32 s{sTagQ}, s{sTagQ}, 15
                    s_lshl1_add_u32 s{sTagQ}, s{sTagQ}, {m}
                    """)
                if xg:
                    assert len(cps) <= 10 and len(xcs) <= 6
                    P(f"""
                    s_lshl2_add_u32 s{sI}, s{sI}, s{sWv}
                    s_cmp_eq_u32 s{sI}, {fc['lead']}
                    s_cselect_b32 s{sFm}, 0xff, 0
                    s_mov_b32 s{sFm+1}, 0
                    v_lshlrev_b32 v{vGd}, 13, v{vLane}
                    v_add_u32 v{vGd}, {WS_FC + 1280}, v{vGd}
                    v_cndmask_b32 v{vGl}, v{vBig}, v{vGd}, {sp(sFm)}
                    s_bfe_u32 s{sBias}, s2, 0x30003
                    s_lshl_b32 s{sBias}, 1, s{sBias}
                    s_and_b32 s{sFm}, s{sFm}, s{sBias}
                    v_cndmask_b32 v{vGs}, v{vBig}, v{vGd}, {sp(sFm)}
                    v_cndmask_b32 v{vGl}, v{vGl}, v{vBig}, {sp(sFm)}
                    s_mov_b32 s{sBias}, 0
                    """)
            look = xg and c - 1 in fc['xc']
            if look:
                k = list(fc['xc']).index(c - 1)
                P(f"s_and_b32 s{sFm}, s{sFC}, {~8191 & 0xffffffff:#x}")
                P(f"s_add_u32 s{sFm}, s{sFm}, {1280 + 128*(k - c)}")
                P(f"v_writelane_b32 v{vFl}, s{sFm}, 32")
            elif xg and c - 2 in fc['xc']:
                P(f"v_writelane_b32 v{vFl}, 2.0, 32")
            fcs['ids'][c] = P.vm(f"buffer_load_dword v{vFd}, v{vFl}, {srd(rWS)}, 0 offen offset:{128*c}")
            P.vm(f"buffer_store_dword v{vFt}, v{vFs}, {srd(rWS)}, s{sFC} offen offset:{128*c}")
            if xg and i in xcs: P.vm(f"buffer_store_dword v{vFt}, v{vGs}, {srd(rWS)}, 0 offen offset:{2048 + 128*xcs.index(i)} sc1")
        if xg and i - fc['xd'] in xcs:
            fcs['g'] = P.vm(f"buffer_load_dword v{vGd}, v{vGl}, {srd(rWS)}, 0 offen offset:{2048 + 128*xcs.index(i - fc['xd'])} sc1")
        if xg and i - fc['xd'] - WM - 1 in xcs:
            c = cps.index(i - fc['xd'] - WM - 1)
            P.wait(fcs['g'])
            P(f"""
            v_cmp_eq_u32 {sp(sFm)}, v{vFt}, v{vGd}
            s_bcnt1_i32_b32 s{sFm}, s{sFm}
            v_add_u32 v{vGd}, s{sFm}, v{vFt}
            """)
            P.vm(f"buffer_store_dword v{vGd}, v{vGs}, {srd(rWS)}, 0 offen offset:{128*xcs.index(cps[c])}")
        if i - WM - 1 in cps:
            c = cps.index(i - WM - 1)
            P.wait(fcs['ids'].pop(c))
            pd = fc['Pd'] if not fc['cps'] else ((cps[c+1] - cps[c]) if c + 1 < len(cps) else NS - i)
            g = int(round(fc['gain'] * pd / 32 * 256))
            if fc['s3'] and i >= 150 and not fcs.get('s3'):
                fcs['s3'] = True
                P(f"""
                s_and_b32 s{sBoost}, s2, 3
                s_cmp_eq_u32 s{sBoost}, 3
                s_cselect_b32 s{sBoost}, {fc['s3']}, 0
                s_add_i32 s{sTagQ}, s{sTagQ}, s{sBoost}
                """)
            P(f"""
            v_cmp_eq_u32 {sp(sFm)}, v{vFt}, v{vFd}
            s_bcnt1_i32_b32 s{sBoost}, s{sFm}
            s_mul_i32 s{sBoost}, s{sBoost}, {g}
            s_sub_i32 s{sBoost}, s{sBoost}, {int(fc['r0'] * 32)*g}
            """)
            if xg and c - 1 in fc['xc']:
                P(f"""
                v_readlane_b32 s{sFm}, v{vFd}, 32
                s_sub_u32 s{sFm}, s{sFm}, s{sTag}
                s_mul_i32 s{sBias}, s{sFm}, {int(xg*256)}
                s_sub_i32 s{sBias}, s{sBias}, {int(xg*256*fc['x0'])}
                s_cmp_lt_u32 s{sFm}, 8
                s_cselect_b32 s{sBias}, s{sBias}, 0
                """)
            if xg and (fc['hold'] or c - 1 in fc['xc']): P(f"s_add_i32 s{sBoost}, s{sBoost}, s{sBias}")
            P(f"s_ashr_i32 s{sBoost}, s{sBoost}, 8")
            if fc['tab']: P(f"s_add_i32 s{sBoost}, s{sBoost}, s{sTagQ}")
            fcs['start'] = i + 1

    nk, nv = 32, 160
    jw = 0
    bi = 0; lastbg = -1
    cur = None
    def consume_one():
        nonlocal nk, nv
        if st['kok'] and nk < 160 and nk <= land[0]:
            k_consume(nk); nk += 1
        elif st['vok'] and nv <= land[0]:
            v_consume(nv); nv += 1
        else: return False
        slots.extend(freed); freed.clear()
        return True
    def splittable(items, n):
        full = True; open_br = False
        for it in items[:n]:
            if it[0] == 'i':
                t = it[1]
                if t.startswith(('s_mov_b32 exec', 's_mov_b64 exec')): full = t.endswith('-1') and 'b64' in t
                if t.startswith('s_cbranch_scc'): open_br = True
            elif it[0] == 'l': open_br = False
        last = items[n-1]
        if last[0] == 'i' and last[1].startswith(('s_cmp', 's_cbranch', 's_getpc')): return False
        return full and not open_br
    minfree = 99
    for i in range(NS):
        m0 = len(P.ir)
        issue(i); fc_step(i)
        if i + 1 == hpos: hello_store()
        if i + 1 == fast: block2()
        if i + 1 < len(first):
            for _ in range(first[i+1]): wq_load()
        minfree = min(minfree, len(slots))
        used = lambda: sum(cost(x) for x in P.ir[m0:])
        consume_one()
        lim = 10**9 if i == S0 else budget
        while True:
            if cur is None:
                if bi < len(bg) and bg[bi][0] <= i and lastbg + bg[bi][2] <= i and used() < lim:
                    keep = P.ir; P.ir = []
                    flag = bg[bi][1]()
                    cur = [P.ir, flag, list(freed), 0]; freed.clear(); P.ir = keep; bi += 1
                    if bg[bi-1][1] not in (c_setup, c_wsw, c_hello2, c_tlb): lim = min(lim, used() + budget) if i == S0 else lim
                else: break
            items = cur[0]; n = cur[3]; u = used()
            while n < len(items) and not (u >= lim and n > cur[3] and splittable(items, n)):
                u += cost(items[n]); n += 1
            P.ir.extend(items[cur[3]:n]); cur[3] = n
            if n < len(items): break
            if cur[1]: st[cur[1]] = True
            slots.extend(cur[2]); cur = None; lastbg = i
        c = 1
        while c < maxcatch and (used() < budget or len(slots) < 3) and consume_one(): c += 1
    assert bi == len(bg) and cur is None and nk == 160, (bi, len(bg), nk)
    stamp("lastiss")
    P("; ---- tail begins")
    if spinif in ("retry", "ns"): P(f"s_mov_b32 s1, s{sSpin}")
    if tpad is not None:
        P("s_branch L_tail"); P.raw(f".p2align {tpad[0]}")
        if tpad[1]: P.raw(f".fill {tpad[1]}, 4, 0xbf800000")
        P.label("L_tail")
    def wo_next():
        nonlocal jw
        if ytail == jw: c_yw()
        if btail == jw: c_br3()
        wo_load(jw); jw += 1
    while tight and nv < NS:
        if nv == NS + jw - wopace[0] and nv < NS - 1:
            P.wait(sid[nv]); wo_next()
        v_consume(nv); nv += 1
    while tight and jw < 8: wo_next()
    while nv < NS:
        for _ in range(wolate):
            if jw < 8:
                if wopace:
                    tgt = sid[min(NS - 1, NS + jw - wopace[0])]
                    if wopace[1] is None: P.wait(tgt)
                    else: P.cwait(tgt, None, [f"s_cmp_gt_i32 s{sBoost}, {wopace[1]}"])
                if ytail == jw: c_yw()
                if btail == jw: c_br3()
                wo_load(jw); jw += 1
        v_consume(nv); nv += 1
    while jw < 8: wo_load(jw); jw += 1
    stamp("vdone")

    r = vWQ
    if not rdw:
        for q in range(4): P(f"v_mul_f32 v{vAcc+q}, v{vAcc+q}, v{vWt}")
    red_write([(vAcc, 0)])
    P("s_waitcnt lgkmcnt(0)")
    P("s_barrier")
    P(f"s_cmp_lg_u32 s{sWv}, 0" if bpub else f"s_cmp_eq_u32 s{sWv}, 3")
    P("s_cbranch_scc1 L_near_o")
    for k in range(4): P(f"ds_read2st64_b32 {v2(r+2*k)}, v{vAr} offset0:{L_RED//256+2*k} offset1:{L_RED//256+2*k+1}")
    if rdw:
        for k in range(4):
            P(f"s_waitcnt lgkmcnt({3-k})")
            P(f"v_add_f32 v{r+2*k}, v{r+2*k}, v{r+2*k+1}")
            P(f"v_mul_f32 v{r}, v{r}, v{vW4}" if k == 0 else f"v_fmac_f32 v{r}, v{r+2*k}, v{vW4+k}")
    else:
        P("s_waitcnt lgkmcnt(0)")
        sum8(r, r)
    if lean: P(f"v_cvt_pk_bf16_f32 v{r}, v{r}, v{r}")
    P(f"v_bfi_b32 v{r}, v{vFF}, v{vTb}, v{r}")
    t = f"buffer_store_dword v{r}, v{vL4}, {srd(rWS)}, s{sOp} offen"
    if swap: P.vm(t + " sc1"); P.label("L_near_o")
    else: publish("o", t)
    stamp("opub")
    P(f"""
    s_and_b32 s{sT0}, s{sCB}, 15
    s_cmp_ge_u32 s{sT0}, 14
    s_cbranch_scc1 L_done
    """)
    g = vQA; sMiss = sFm
    def ppoll(Q, name, lds, sets, dst, mid=None):
        n = len(lds); D = len(sets)
        def first():
            for k in range(n): Q(lds[k].replace("@", v4(sets[0]+4*k)))
        mid(Q, n, first)
        Q(f"s_mov_b64 {sp(sMiss)}, -1")
        if D > 1:
            Q(f"s_not_b32 s{sT0}, s{sTag}")
            for b in sets[1:]: Q(f"v_mov_b32 v{b}, s{sT0}")
        Q.label(f"L_poll{name}")
        for d in list(range(1, D)) + [0]:
            b = sets[d]
            Q(f"s_waitcnt vmcnt({n*(D-1)})")
            tagcheck(Q, range(b, b+4*n), [f's{x}' for x in [sTag] + sG[5:8]], 0xff)
            Q("s_wqm_b64 vcc, vcc")
            Q(f"s_andn2_b64 exec, {sp(sMiss)}, vcc")
            for k in range(4*n): Q(f"v_and_b32 v{dst+k}, 0xffffff00, v{b+k}")
            Q(f"s_and_b64 {sp(sMiss)}, {sp(sMiss)}, vcc")
            Q(f"s_cbranch_scc0 L_got{name}")
            Q(f"s_mov_b64 exec, {sp(sMiss)}")
            for k in range(n): Q(lds[k].replace("@", v4(b+4*k)))
            Q("s_mov_b64 exec, -1")
        Q(f"s_add_u32 s{sSpin}, s{sSpin}, 1")
        Q(f"s_cmp_gt_u32 s{sSpin}, 0x20000")
        Q(f"s_cbranch_scc0 L_poll{name}")
        Q.label(f"L_got{name}")
        Q("s_mov_b64 exec, -1")
    def mid(Q, n, first):
        if opos == 0: first()
        for q in range(4):
            Q(f"s_waitcnt vmcnt({(n if q >= opos else 0) + 6 - 2*q + sum(1 for z in (ytail, btail) if z is not None and z > 2*q+1)})")
            if q + 1 == opos: first()
            for e in range(8):
                Q(f"v_perm_b32 v{vWO+4*e+q}, v{vQD+4*(2*q+1)+(e>>1)}, v{vQD+4*(2*q)+(e>>1)}, s{sSel1 if e & 1 else sSel0}")
    if lean:
        ol = [f"buffer_load_dwordx4 {v4(g+4*k)}, v{vOg}, {srd(rWS)}, s{sOg} offen offset:{16*k} sc1" for k in range(2)]
        mid(P, 2, lambda: [P(t_) for t_ in ol])
        P.label("L_chkO")
        P("s_waitcnt vmcnt(0)")
        tagcheck(P, range(g, g+8), [f's{x}' for x in [sTag] + sG[5:8]], 0xff)
        for q in range(4): P(f"v_perm_b32 v{vX+q}, v{g+2*q+1}, v{g+2*q}, s{sSel1}")
        P("s_cbranch_vccnz L_pollO")
        P.label("L_gotO")
        P("s_bitcmp1_b32 s2, 5" if swap else "s_cmp_ge_u32 s2, 128")
        P("s_cbranch_scc1 L_addB")
        P.label("L_proj")
        Q = Prog(); Q.label("L_pollO")
        Q(f"s_add_u32 s{sSpin}, s{sSpin}, 1")
        Q(f"s_cmp_gt_u32 s{sSpin}, 0x40000")
        Q("s_cbranch_scc1 L_gotO")
        Q("s_wqm_b64 exec, vcc")
        for t_ in ol: Q(t_)
        Q("s_mov_b64 exec, -1")
        Q("s_branch L_chkO")
        Q.label("L_addB")
        for k in range(8): Q(f"v_and_b32 v{g+k}, 0xffffff00, v{g+k}")
        for k in range(8): Q(f"v_add_f32_dpp v{g+k}, v{g+k}, v{g+k} quad_perm:[2,3,0,1] {FULL}")
        for q in range(4): Q(f"v_cvt_pk_bf16_f32 v{vX+q}, v{g+2*q}, v{g+2*q+1}")
        Q("s_nop 0")
        Q("s_branch L_proj"); slow.insert(0, Q)
        stamp("ogot")
    else:
        ppoll(P, "O", [f"buffer_load_dwordx4 @, v{vOg}, {srd(rWS)}, s{sOg} offen offset:{16*k} sc1" for k in range(2)], [g+8, g+16, g+24][:DO], g, mid)
        P("s_bitcmp1_b32 s2, 5" if swap else "s_cmp_ge_u32 s2, 128")
        P("s_cbranch_scc1 L_addB")
        P.label("L_proj")
        Q = Prog(); Q.label("L_addB")
        for k in range(8): Q(f"v_add_f32_dpp v{g+k}, v{g+k}, v{g+k} quad_perm:[2,3,0,1] {FULL}")
        Q("s_branch L_proj"); slow.insert(0, Q)
        stamp("ogot")
        for q in range(4): P(f"v_cvt_pk_bf16_f32 v{vX+q}, v{g+2*q}, v{g+2*q+1}")
    for e in range(8): P(f"v_mfma_f32_16x16x32_bf16 {v4(vQD+4*e)}, {v4(vX)}, {v4(vWO+4*e)}, 0")
    for e in range(8):
        h = e & 1
        P(f"v_add_f32_dpp v{r+(e >> 1)}, v{vQD+4*e+1-h}, v{vQD+4*e+h} row_ror:8 row_mask:0xf bank_mask:{0xc if h else 0x3:#x}")
    P(f"""
    ds_write_b128 v{vPw}, {v4(r)} offset:{L_QRED}
    s_waitcnt lgkmcnt(0)
    s_barrier
    ds_read2st64_b32 {v2(r)}, v{vPr} offset0:{L_QRED//256} offset1:{L_QRED//256+4}
    ds_read2st64_b32 {v2(r+2)}, v{vPr} offset0:{L_QRED//256+8} offset1:{L_QRED//256+12}
    {('s_cmp_lg_u32 s%d, 0' % sFar) if swap else ('s_cmp_eq_u64 %s, -1' % sp(sYx))}
    s_waitcnt lgkmcnt(0)
    v_add_f32 v{r}, v{r}, v{r+1}
    v_add_f32 v{r+2}, v{r+2}, v{r+3}
    v_add_f32 v{r}, v{r}, v{r+2}
    v_bfi_b32 v{r+1}, v{vFF}, v{vTb}, v{r}
    s_mov_b64 exec, {sp(sYx)}
    """)
    t = f"buffer_store_dword v{r+1}, v{vYo}, {srd(rWS)}, s{sYp} offen"
    if swap: publish("y", t, True); P(f"s_cmp_eq_u64 {sp(sYx)}, -1")
    else: P.vm(t + " sc1")
    stamp("yapub")
    P("s_cbranch_scc1 L_done")
    f = vP
    if leany:
        P("s_mov_b64 vcc, -1")
        P.label("L_pollY")
        P("s_wqm_b64 exec, vcc")
        for k, vy in enumerate((vY0, vY1)): P(f"buffer_load_dwordx4 {v4(f+4*k)}, v{vy}, {srd(rWS)}, s{sYg} offen sc1")
        P(f"""
        s_mov_b64 exec, -1
        ds_bpermute_b32 v{r+2}, v{vBp}, v{r}
        s_add_u32 s{sSpin}, s{sSpin}, 1
        s_cmp_gt_u32 s{sSpin}, 0x40000
        s_waitcnt vmcnt(0) lgkmcnt(0)
        s_cbranch_scc1 L_gotY
        """)
        tagcheck(P, range(f, f+8), [f's{x}' for x in [sTag] + sG[5:8]], 0xff)
        P("s_cbranch_vccnz L_pollY")
        P.label("L_gotY")
        stamp("fgot")
        for k in range(8): P(f"v_and_b32 v{f+k}, 0xffffff00, v{f+k}")
    else:
        P("s_mov_b64 exec, -1")
        f = vP
        def midy(Q, n, first): first(); Q(f"ds_bpermute_b32 v{r+2}, v{vBp}, v{r}")
        ppoll(P, "Y", [f"buffer_load_dwordx4 @, v{vy}, {srd(rWS)}, s{sYg} offen sc1" for vy in (vY0, vY1)], [vWO+8*k for k in range(4)][:DY], f, midy)
        stamp("fgot")
    P(f"s_not_b64 exec, {sp(sOwn)}")
    for k in range(4): P(f"v_add_f32 v{f+k}, v{f+k}, v{f+4+k}")
    P("s_mov_b64 exec, -1")
    P(f"""
    v_permlane32_swap_b32 v{f}, v{f+1}
    v_permlane32_swap_b32 v{f+2}, v{f+3}
    v_add_f32 v{f}, v{f}, v{f+1}
    v_add_f32 v{f+2}, v{f+2}, v{f+3}
    v_permlane16_swap_b32 v{f}, v{f+2}
    v_add_f32 v{f}, v{f}, v{f+2}
    """)
    xlane("v_add_f32", f, None, ["r8"])
    if not leany: P("s_waitcnt lgkmcnt(0)")
    P(f"v_add_f32 v{f}, v{f}, v{r+2}")
    P(f"""
    v_cvt_pk_bf16_f32 v{f}, v{f}, v{f}
    s_mov_b32 exec_lo, 0x00ff00ff
    s_mov_b32 exec_hi, 0x00ff00ff
    """)
    P.vm(f"buffer_store_short v{f}, v{vOo}, {srd(rOUT)}, s{sOutO} offen")
    P(f"""
    s_cmp_lg_u32 s{sOutO}, 0
    s_cbranch_scc1 L_done
    s_mov_b64 exec, 1
    v_mov_b32 v{f+2}, s{sTag}
    """)
    P.vm(f"buffer_store_dword v{f+2}, v{vOo}, {srd(rWS)}, 0 offen")
    P.label("L_done")
    if spin:
        if spinif == "far": P(f"s_cmp_eq_u32 s{sFar}, 0\ns_cbranch_scc1 L_end")
        if spinif == "retry": P(f"s_cmp_eq_u32 s1, 0\ns_cbranch_scc1 L_end")
        if spinif in ("nq", "ns", "far1"): P(f"s_waitcnt lgkmcnt(0)\ns_mul_i32 s1, s1, 100\ns_add_u32 s{sSt}, s{sSt}, s1")
        if probe:
            P(f"s_waitcnt lgkmcnt(0)\ns_sub_u32 s{sLim}, s{sPr}, s{sSt}\ns_mul_i32 s{sLim}, s{sLim}, {probe[1]}\ns_add_u32 s{sLim}, s{sLim}, {spin}")
            if len(probe) > 2: P(f"s_and_b32 s{sT0}, s2, {probe[2]}\ns_cmp_lg_u32 s{sT0}, {probe[3]}\ns_cbranch_scc1 L_end")
        P.label("L_spin")
        P(f"""
        s_memrealtime {sp(sNow)}
        s_waitcnt lgkmcnt(0)
        s_sub_u32 s{sNow}, s{sNow}, s{sSt}
        s_cmp_lt_i32 s{sNow}, {('s%d' % sLim) if probe else spin}
        s_cbranch_scc1 L_spin
        """)
    if diag:
        P("s_mov_b64 exec, -1")
        stamp("end")
        P(f"""
        s_waitcnt lgkmcnt(0) vmcnt(0)
        s_lshl_b32 s{sT0}, s2, 2
        s_add_u32 s{sT0}, s{sT0}, s{sWv}
        s_lshl_b32 s{sT0}, s{sT0}, 7
        s_add_u32 s{sT0}, s{sT0}, {WS_DIAG}
        v_mov_b32 v{vT1}, 0
        s_mov_b64 exec, 1
        """)
        def dump(sreg, off):
            P(f"v_mov_b32 v{vT0}, s{sreg}")
            P.vm(f"buffer_store_dword v{vT0}, v{vT1}, {srd(rWS)}, s{sT0} offen offset:{off}")
        for n, (name, rr) in enumerate(stamps): dump(rr, 4*n)
        dump(sSpin, 4*len(stamps)); dump(sFar, 116)
        P(f"s_getreg_b32 s{sT1}, hwreg(HW_REG_XCC_ID)"); dump(sT1, 120)
        P(f"s_getreg_b32 s{sT1}, hwreg(HW_REG_HW_ID)"); dump(sT1, 124)
    P.label("L_end")
    P("s_endpgm")

    body, stats = P.render()
    for Q in slow: body += Q.render()[0]
    body += 'L_code_end:\n'
    if top: body += f'.if {32*128*ipf} > L_code_end - L_pc\n.fill ({32*128*ipf} - (L_code_end - L_pc))/4, 4, 0xbf810000\n.endif\n'
    head = open("cdna_kernels/" + KNAME[:-7] + ".s.ref").read().split("; Override launch")[0]
    txt = head + f"; @launch grid=(256,1,1) block=(256,1,1) lds={L_TOTAL}\n" + HEADER
    txt += f'.amdgcn_target "amdgcn-amd-amdhsa--gfx950"\n.text\n.globl {KNAME}\n.p2align 8\n.type {KNAME},@function\n{KNAME}:\n'
    txt += body
    txt += f""".section .rodata,"a"
.p2align 6
.amdhsa_kernel {KNAME}
  .amdhsa_next_free_vgpr 512
  .amdhsa_next_free_sgpr 102
  .amdhsa_accum_offset 256
  .amdhsa_group_segment_fixed_size 0
  .amdhsa_kernarg_size 104
  .amdhsa_user_sgpr_count 2
  .amdhsa_user_sgpr_kernarg_segment_ptr 1
  .amdhsa_system_sgpr_workgroup_id_x 1
.end_amdhsa_kernel
"""
    ids = list(range(256))
    act = [L for L in ids if (((L >> 6) & 1)*8 + (L & 7)) < 14]
    fin = [L for L in act if ((L >> 3) & 7) == (L & 7)]
    if prm:
        mm = lambda L: ((L >> 6) & 1)*8 + 2*(L & 3) + ((L >> 2) & 1)
        act = [L for L in ids if mm(L) < 14]; fin = [L for L in act if (mm(L) & 7) == ((L >> 3) & 7)]
    if swap:
        mm = lambda L: 4*((L >> 3) & 3) + (L >> 6)
        act = [L for L in ids if mm(L) < 14]; fin = [L for L in act if (mm(L) & 7) == (L & 7)]
    return txt, dict(stats, vhw=V.hw, shw=S.hw, minfree=minfree, stamps=[n for n, _ in stamps], who=dict(ogot=act, yapub=act, fgot=fin))

if __name__ == "__main__":
    import json
    kw = json.loads(sys.argv[2]) if len(sys.argv) > 2 else {}
    t, s = gen(**kw)
    open(sys.argv[1], "w").write(t)
    s.pop('who')
    print(s, file=sys.stderr)
```

```python
import sys, math, struct
from asmlib import Prog, Alloc
KNAME = "concat_heads__mha_block_cached__sliding_block_cached__decode_kernel"

WS_Q, WS_SC, WS_O, WS_FC, WS_Y, WS_G, WS_DIAG = 0x10000, 0x40000, 0x100000, 0x130000, 0x140000, 0x180000, 0x800000
L_QRED, L_ST, L_RED, L_TOTAL = 0, 4096, 4352, 4352 + 3*2048
CS = struct.unpack('<I', struct.pack('<f', math.log2(math.e) / 16.0))[0]
BIG = 0x7ff00000
FULL = "row_mask:0xf bank_mask:0xf"

AUXCOST = [8]
def cost(it):
    if it[0] == 'vm': return 8 if ' a[' in it[1] or 'store' in it[1] else AUXCOST[0]
    if it[0] != 'i': return 2
    t = it[1]
    if t.startswith(';'): return 0
    if t.startswith('v_mfma'): return 16
    if t.startswith(('v_exp', 'v_log', 'v_rcp')): return 10
    if '_dpp' in t or t.startswith('v_permlane'): return 8
    if t.startswith('ds_'): return 12
    if t.startswith('s_waitcnt'): return 60
    if t.startswith('s_barrier'): return 30
    return 4

HEADER = """;
; One launch, 256 workgroups x 4 waves (one wave per SIMD); generated by a script, straight-line code.
; Logical id = b(2) | x(3) | t(3); the 32 workgroups with the same x form a class (A heads 2x, 2x+1, B kv head x).
;   1. q = x @ wq: every workgroup computes one 32-column block for the 4 batches and hands it to its class.
;   2. K streams (B window, then A), keys split over the workgroups of a (batch, head); MFMA scores, rounded to bf16.
;   3. scores are exchanged inside the (batch, x) group; every wave takes the true max / sum of its keys, the
;   4. V streams split along the head dimension (64 columns per workgroup); MFMA P.V gives normalised o slices.
;   5. o is written through for everyone while wo streams in; 224 workgroups multiply it with a 256 x 64 block
;      of wo (a class owns two column blocks of one branch); the 16 partial sums of an output are handed to
;      one wave of the class, added and stored as bf16.
; while when the workgroup reached a checkpoint later than most of its class, or its class later than the
; Hand-offs carry an in-band tag = ws[0] + constant (ws[0] is replaced by the tag at the end), so data of an
; earlier launch is never accepted. Class-local hand-offs stay in L2 only after all 32 workgroups of the class
; have been seen (through d_debug) on this XCC; otherwise every store and load of them is sc1.
"""

def gen(W=5, qg=33, sg=19, wflag="", woflag="nt", diag=False, skip=(), spin=0, forcefar=False, fc=None, budget=140, maxcatch=2,
        bpub=283, DO=1, DY=2, wolate=1, auxcost=70, wsl=32, first=(5, 4), hello=5, tpad=None, ipf=7, ipf0=True, tlb=None, qw=True, zones=(), rot=None, swap=True, ow=None, W0=(24, 6), yw=(287, 'p'), noO=True, fakeQ=0, xpos=0, hpos=0, spinif=None, probe=None, fast=3, top=True, recheck=120, prm=False, wopace=(6, None), opos=3, ypf=False, ytail=6, bsplit=255, btail=2, late=1, tight=True, rdw=True, S00=None, qat=None, help3=0, lean=True, leany=False, onebar=True, bars=(33, 288, 1), barpre=True, wgfc=True):
    AUXCOST[0] = auxcost
    if len(bars) == 3: bars = range(*bars)
    P = Prog()
    V = Alloc('v', 1, 256); S = Alloc('s', 3, 100)
    slots = list(range(64))
    def a4(s): return f"a[{4*s}:{4*s+3}]"
    def v4(r): return f"v[{r}:{r+3}]"
    def v3(r): return f"v[{r}:{r+2}]"
    def v2(r): return f"v[{r}:{r+1}]"
    def srd(r): return f"s[{r}:{r+3}]"
    def sp(r): return f"s[{r}:{r+1}]"
    def vcc(m): P(f"s_mov_b32 vcc_lo, {m:#x}"); P(f"s_mov_b32 vcc_hi, {m:#x}")
    slow = []
    stamps = []
    def stamp(name):
        if probe and name == probe[0]:
            P(f"s_memrealtime {sp(sPr)}")
        if diag:
            r = S.get(2); stamps.append((name, r)); P(f"s_memrealtime {sp(r)}")
    fcs = dict(start=None, ids={})
    if probe: sPr = S.get(2); sLim = S.get()
    st = dict(kok=False, vok=False, lgk=False, tag=False)
    if fc is not None:
        fc = dict(dict(first=16, Pd=32, dW=2, r0=0.55, gain=3.2, xg=4.5, x0=3.5, xd=1, xc=(1, 3, 5, 7), hold=True, lead=4*13+1, neg=None, ns=2, s3=14, cps=(16, 44, 76, 108, 140, 170, 198, 224, 246, 264), tab=(4, -6, 2, -6, 8, 0, 6, -4)), **fc)
        WM = W + fc['dW']
        cps = list(fc['cps'] or range(fc['first'], 288 - WM - 6, fc['Pd']))
    else:
        WM = W; cps = []

    rX, rWQ, rBK, rBV, rAK, rAV, rWO, rWS, rOUT = [S.get(4) for _ in range(9)]
    sT0, sT1, sI, sWv, sTag, sOff, sAux, sSel0, sSel1, sC, sSpin, sCB, sTagQ, sFar, sBoost, sFC, sKo = [S.get() for _ in range(17)]
    vLane, vT0, vT1, vT2, vBig = [V.get() for _ in range(5)]
    vXo, vWQo, vKo, vVo = [V.get() for _ in range(4)]
    def desc(r, sz):
        P(f"s_mov_b32 s{r+2}, {sz}"); P(f"s_mov_b32 s{r+3}, 0x20000")
    sDbg = S.get(2); vH = V.get(2)
    vXT = V.get(); vHp = V.get()
    def code_pf_top():
        P("; the straight-line code below is read once: each workgroup pulls its share of it towards its L2 now")
        P(f"s_getpc_b64 {sp(rOUT+2)}")
        P.label("L_pc")
        P(f"""
        s_lshr_b32 s{sT0}, s2, 3
        s_mul_i32 s{sT0}, s{sT0}, ((L_code_end-L_pc-{128*(ipf-1)+4})/124)*4
        v_min_u32 v{vT1}, {ipf-1}, v0
        v_lshl_add_u32 v{vT1}, v{vT1}, 7, s{sT0}
        """)
        P.vm(f"global_load_dword v{vXT}, v{vT1}, {sp(rOUT+2)}")
    def code_pf():
        if top: return
        P(f"s_getpc_b64 {sp(rOUT+2)}")
        P.label("L_pc")
        P(f"""
        v_and_b32 v{vT0}, {31 if ipf > 1 else 255}, v{vH}
        v_min_u32 v{vT1}, {ipf-1}, v0
        v_mad_u32_u24 v{vT0}, v{vT0}, {ipf}, v{vT1}
        v_lshlrev_b32 v{vT0}, 7, v{vT0}
        v_min_u32 v{vT0}, L_code_end-L_pc-4, v{vT0}
        """)
        P.vm(f"global_load_dword v{vXT}, v{vT0}, {sp(rOUT+2)}")
    hl1 = f"""s_load_dwordx2 {sp(sDbg)}, s[0:1], 88
    s_getreg_b32 s{sTagQ}, hwreg(HW_REG_XCC_ID, 0, 4)
    ; byte (id&7)*32 + (id>>3) of the zeroed debug buffer reports this workgroup's XCC
    s_mul_i32 s{sT0}, s2, 0x101
    s_bfe_u32 s{sT0}, s{sT0}, 0x80003
    v_mov_b32 v{vH}, s{sT0}
    v_add_u32 v{vH+1}, s{sTagQ}, 1"""
    if fast:
        P("s_cmpk_ge_u32 s2, 256")
        P("s_cbranch_scc1 L_end")
        stamp("start")
        if spin:
            sSt = S.get(2); sNow = S.get(2); P(f"s_memrealtime {sp(sSt)}")
        P(f"""
        s_load_dwordx2 {sp(rBK)}, s[0:1], 48
        s_load_dwordx2 {sp(rWS)}, s[0:1], 96
        """)
        if top: code_pf_top()
        P(f"""
        ; logical id = b(2) | x(3) | t(3): workgroups that are 8 apart share x (L2 locality only)
        s_and_b32 s{sCB}, s2, 7
        s_lshr_b32 s{sI}, s2, 6
        s_lshl3_add_u32 s{sI}, s{sI}, s{sCB}
        s_bfe_u32 s{sT1}, s2, 0x30003
        s_lshl4_add_u32 s{sOff}, s{sI}, 12
        s_lshl3_add_u32 s{sOff}, s{sOff}, s{sT1}
        s_lshl_b32 s{sOff}, s{sOff}, 14
        s_lshl_b32 s{rBK+2}, 1, 26
        s_mov_b32 s{rBK+3}, 0x20000
        v_lshrrev_b32 v{vT0}, 6, v0
        v_lshrrev_b32 v{vT2}, 2, v0
        v_and_b32 v{vT1}, 3, v0
        v_and_b32 v{vXo}, 3, v{vT2}
        v_lshl_add_u32 v{vKo}, v{vT0}, 2, v{vXo}
        v_lshl_add_u32 v{vKo}, v{vKo}, 6, v{vT1}
        v_and_b32 v{vWQo}, 12, v{vT2}
        v_add_lshl_u32 v{vKo}, v{vKo}, v{vWQo}, 4
        s_waitcnt lgkmcnt(0)
        """)
        stamp("karg")
    def block2():
        P(f"""
        s_lshr_b32 s{sKo}, s2, 7
        s_mul_i32 s{sKo}, s{sKo}, 40
        s_load_dwordx2 {sp(rX)}, s[0:1], s{sKo}
        s_load_dwordx2 {sp(rWQ)}, s[0:1], s{sKo} offset:24
        {hl1}
        s_bfe_u32 s{sT0}, s2, 0x40003
        s_lshl4_add_u32 s{sCB}, s{sCB}, s{sT0}
        s_lshl_b32 s{sAux}, s{sCB}, 6
        s_lshl3_add_u32 s2, s{sI}, s{sT1}
        v_readfirstlane_b32 s{sWv}, v{vT0}
        v_lshlrev_b32 v{vWQo}, 12, v{vT2}
        v_add_lshl_u32 v{vWQo}, v{vWQo}, v{vT1}, 4
        v_cmp_gt_u32 vcc, 56, v{vT2}
        v_mad_u32_u24 v{vXo}, v{vXo}, 55, v{vT2}
        v_add_lshl_u32 v{vXo}, v{vXo}, v{vT1}, 4
        v_cndmask_b32 v{vXo}, 2.0, v{vXo}, vcc
        """)
        if ipf and ipf0: code_pf()
        if help3:
            P(f"""
            ; the fourth 128-byte line of every KiB is slow to fetch: all 16 workgroups of the block row share its first touch
            s_and_b32 s{sT0}, s{sCB}, 15
            s_mul_i32 s{sT0}, s{sT0}, {28*8192 - 64}
            s_add_u32 s{sT0}, s{sT0}, s{sAux}
            v_and_b32 v{vT0}, 63, v0
            v_cmp_gt_u32 vcc, 7, v{vT0}
            v_lshrrev_b32 v{vT1}, 6, v0
            v_mad_u32_u24 v{vT0}, v{vT1}, 7, v{vT0}
            v_lshlrev_b32 v{vT0}, 13, v{vT0}
            v_cndmask_b32 v{vT0}, 2.0, v{vT0}, vcc
            """)
        desc(rX, 3584); desc(rWQ, 3670016)
        P("s_waitcnt lgkmcnt(0)")
        hello_store()
        if help3: P.vm(f"buffer_load_dword v{vBig}, v{vT0}, {srd(rWQ)}, s{sT0} offen offset:384".replace(f"v{vBig},", f"v{vHp},"))
    if not fast:
        P("s_cmp_ge_u32 s2, 256")
        P("s_cbranch_scc1 L_end")
        stamp("start")
        if spin:
            sSt = S.get(2); sNow = S.get(2); P(f"s_memrealtime {sp(sSt)}")
        if top == "first": code_pf_top()
        P(f"""
        s_lshr_b32 s{sKo}, s2, 7
        s_mul_i32 s{sKo}, s{sKo}, 40
        s_load_dwordx2 {sp(rBK)}, s[0:1], 48
        s_load_dwordx2 {sp(rX)}, s[0:1], s{sKo}
        s_load_dwordx2 {sp(rWQ)}, s[0:1], s{sKo} offset:24
        s_load_dwordx2 {sp(rWS)}, s[0:1], 96
        {hl1}
        """)
        if probe and probe[0] == "kfast": P("s_waitcnt lgkmcnt(0)"); stamp("kfast")
        if ipf and ipf0: code_pf()
        P(f"""
        ; logical id = b(2) | x(3) | t(3): workgroups that are 8 apart share x (L2 locality only)
        s_and_b32 s{sT0}, s2, 7
        s_bfe_u32 s{sT1}, s2, 0x30003
        s_bfe_u32 s{sCB}, s2, 0x40003
        s_lshr_b32 s2, s2, 6
        s_lshl3_add_u32 s2, s2, s{sT0}
        s_lshl_b32 s{sOff}, s2, 21
        s_lshl3_add_u32 s2, s2, s{sT1}
        s_lshl4_add_u32 s{sCB}, s{sT0}, s{sCB}
        s_lshl_b32 s{sAux}, s{sCB}, 6
        v_lshrrev_b32 v{vT0}, 6, v0
        v_lshrrev_b32 v{vT2}, 2, v0
        v_readfirstlane_b32 s{sWv}, v{vT0}
        v_and_b32 v{vT1}, 3, v0
        v_lshlrev_b32 v{vWQo}, 12, v{vT2}
        v_add_lshl_u32 v{vWQo}, v{vWQo}, v{vT1}, 4
        v_cmp_gt_u32 vcc, 56, v{vT2}
        v_and_b32 v{vKo}, 3, v{vT2}
        v_mad_u32_u24 v{vXo}, v{vKo}, 55, v{vT2}
        v_add_lshl_u32 v{vXo}, v{vXo}, v{vT1}, 4
        v_lshl_add_u32 v{vKo}, v{vT0}, 2, v{vKo}
        v_cndmask_b32 v{vXo}, 2.0, v{vXo}, vcc
        v_lshl_add_u32 v{vKo}, v{vKo}, 6, v{vT1}
        v_and_b32 v{vT2}, 12, v{vT2}
        v_add_lshl_u32 v{vKo}, v{vKo}, v{vT2}, 4
        s_or_b32 s{sT0}, s{sT1}, 96
        s_lshl_b32 s{sT0}, s{sT0}, 14
        s_add_u32 s{sOff}, s{sOff}, s{sT0}
        """)
        if fakeQ:
            P(f"""
            v_lshrrev_b32 v{vT0}, 3, v0
            v_mul_u32_u24 v{vWQo}, {7*512}, v{vT0}
            v_and_b32 v{vT0}, 7, v0
            v_add_lshl_u32 v{vWQo}, v{vWQo}, v{vT0}, 4
            s_and_b32 s{sT0}, s{sCB}, 1
            s_mul_i32 s{sT0}, s{sT0}, {224*8192-64}
            s_add_u32 s{sAux}, s{sAux}, s{sT0}
            """)
        desc(rX, 3584); desc(rWQ, 3670016); desc(rBK, 1 << 26)
        if probe and probe[0] == "pre": stamp("pre")
        P("s_waitcnt lgkmcnt(0)")
        stamp("karg")
    def hello_store(): P.vm(f"global_store_byte v{vH}, v{vH+1}, {sp(sDbg)}")
    if hpos == 0 and not fast: hello_store()
    vX = V.get(4, 4); vWQ = V.get(32, 4)
    idwq = []
    def wq_load():
        n = len(idwq); j = n if n < xpos else n - 1
        if n == xpos: idwq.append(P.vm(f"buffer_load_dwordx4 {v4(vX)}, v{vXo}, {srd(rX)}, 0 offen"))
        elif "wq" in skip or (fakeQ and j == 7): idwq.append(None)
        else:
            if j: P(f"s_addk_i32 s{sAux}, 0x2000")
            idwq.append(P.vm(f"buffer_load_dwordx4 {v4(vWQ+4*j)}, v{vWQo}, {srd(rWQ)}, s{sAux} offen {wflag}"))
    first = [0]*fast + list(first or [9])
    assert sum(first) == 9
    for _ in range(first[0]): wq_load()
    vTl = V.get(2)
    def c_wsw():
        P(f"""
        s_mul_i32 s{sT0}, s2, 3072
        s_add_u32 s{sT0}, s{sT0}, {WS_SC}
        v_mov_b32 v{vTl}, s{sT0}
        """)
        if qw:
            P(f"""
            s_lshr_b32 s{sT0}, s2, 7
            s_lshl_b32 s{sT0}, s{sT0}, 9
            s_add_u32 s{sT0}, s{sT0}, s{sCB}
            s_lshl_b32 s{sT0}, s{sT0}, 7
            s_add_u32 s{sT0}, s{sT0}, {(WS_Q - 24*16384) & 0xffffffff}
            v_mul_u32_u24 v{vTl+1}, {16384-128}, v0
            v_add_u32 v{vTl+1}, s{sT0}, v{vTl+1}
            v_cmp_gt_u32 vcc, 24, v0
            v_cndmask_b32 v{vTl}, v{vTl+1}, v{vTl}, vcc
            v_cmp_gt_u32 vcc, 28, v0
            v_cndmask_b32 v{vTl}, 2.0, v{vTl}, vcc
            """)
        elif wsl > 24:
            P(f"""
            v_mul_u32_u24 v{vTl+1}, 768, v{vH}
            v_add_u32 v{vTl+1}, {BIG if noO else WS_O - 24*128}, v{vTl+1}
            v_cmp_gt_u32 vcc, 24, v0
            v_cndmask_b32 v{vTl}, v{vTl+1}, v{vTl}, vcc
            """)
        if wsl > 30:
            P(f"""
            v_lshlrev_b32 v{vTl+1}, 8, v{vH}
            v_add_u32 v{vTl+1}, {WS_FC - 30*128}, v{vTl+1}
            v_cmp_gt_u32 vcc, 30, v0
            v_cndmask_b32 v{vTl}, v{vTl+1}, v{vTl}, vcc
            """)
        if ypf:
            P(f"""
            s_bfe_u32 s{sT0}, s2, 0x10005
            s_lshl_b32 s{sT0}, s{sT0}, 14
            s_sub_u32 s{sT0}, {WS_Y - 32*128}, s{sT0}
            v_lshl_add_u32 v{vTl+1}, v{vH}, 10, s{sT0}
            v_cmp_gt_u32 vcc, 32, v0
            v_cndmask_b32 v{vTl}, v{vTl+1}, v{vTl}, vcc
            s_and_b32 s{sT0}, s2, 0x98
            s_cmp_eq_u32 s{sT0}, 0x98
            s_cselect_b32 s{sT0}, 32, 40
            """)
        P(f"""
        v_lshl_add_u32 v{vTl}, v0, 7, v{vTl}
        v_cmp_gt_u32 vcc, {'s%d' % sT0 if ypf else wsl}, v0
        v_cndmask_b32 v{vTl}, 2.0, v{vTl}, vcc
        """)
        desc(rWS, 1 << 24)
        P.vm(f"buffer_load_dword v{vTl+1}, v{vTl}, {srd(rWS)}, 0 offen sc1")
    stream = []
    for k in range(16): stream.append(("BK", k))
    for k in range(16): stream.append(("BV", k))
    for k in range(128): stream.append(("AK", k))
    for k in range(128): stream.append(("AV", k))
    NS = len(stream)
    sid = {}; sslot = {}; land = [-1]
    def issue(i):
        kind, k = stream[i]
        if k == 0 and kind == "BV":
            assert st['lgk']
            P(f"""
            s_and_b32 s{sI}, s2, 3
            s_mul_i32 s{sI}, s{sI}, {16384-128}
            s_add_u32 s{sI}, s{sI}, {3*131072}
            s_sub_u32 s{sOff}, s{sOff}, s{sI}
            """)
        elif k == 0 and kind[0] == "A" and rot:
            vo = vKo if kind == "AK" else vVo
            P(f"""
            s_lshr_b32 s{sI}, s2, 2
            s_lshl_b32 s{sI}, s{sI}, 21
            v_add_u32 v{vo}, s{sI}, v{vo}
            s_bfe_u32 s{sOff}, s2, {rot[0]:#x}
            s_lshl_b32 s{sOff}, s{sOff}, {rot[1]}
            s_and_b32 s{sI}, s2, 3
            s_lshl_b32 s{sI}, s{sI}, {14 if kind == "AK" else 7}
            s_add_u32 s{sOff}, s{sOff}, s{sI}
            """)
        elif k == 0 and kind[0] == "A":
            P(f"""
            s_lshr_b32 s{sOff}, s2, 2
            s_lshl_b32 s{sOff}, s{sOff}, 21
            s_and_b32 s{sI}, s2, 3
            s_lshl_b32 s{sI}, s{sI}, {14 if kind == "AK" else 7}
            s_add_u32 s{sOff}, s{sOff}, s{sI}
            """)
        elif k and k % 4 == 0 and kind[0] == "B":
            P(f"s_add_u32 s{sOff}, s{sOff}, {0x20000 if kind == 'BK' else 0x14000}")
        elif k and kind[1] == "V":
            P(f"s_addk_i32 s{sOff}, 0x4000")
        elif k and k % 4 == 0:
            P(f"s_add_u32 s{sOff}, s{sOff}, 0x10000")
        if rot and kind[0] == "A" and k and k % 32 == 0: P(f"s_and_b32 s{sOff}, s{sOff}, 0x1fffff")
        wz = [z[2] for z in zones if z[0] <= i < z[1]]
        zt = [z[3] for z in zones if z[0] <= i < z[1] and len(z) > 3]
        if zt and fcs['start'] is not None:
            P.cwait(sid[i-wz[0]], None, [f"s_cmp_gt_i32 s{sBoost}, {zt[0]}"])
            P.cwait(sid[i-W], sid[i-WM], [f"s_cmp_gt_i32 s{sBoost}, {i - fcs['start']}"]); land[0] = max(land[0], i-WM)
        elif wz and fcs['start'] is None:
            P.wait(sid[i-wz[0]]); land[0] = max(land[0], i-wz[0])
        elif wz and fcs['start'] is not None:
            P.cwait(sid[i-wz[0]], sid[i-WM], [f"s_cmp_gt_i32 s{sBoost}, {i - fcs['start']}"]); land[0] = max(land[0], i-WM)
        elif fcs['start'] is not None:
            if fc['neg'] is not None:
                P.cwait(sid[i-W+1], None, [f"s_cmp_ge_i32 s{sBoost}, {-fc['neg'] - fc['ns']*(i - fcs['start'])}"])
            P.cwait(sid[i-W], sid[i-WM], [f"s_cmp_gt_i32 s{sBoost}, {i - fcs['start']}"]); land[0] = max(land[0], i-WM)
        else:
            w0 = W0[1] if (W0 and i < W0[0]) else W
            if i >= w0: P.wait(sid[i-w0]); land[0] = max(land[0], i-w0)
        if i in bars and barpre: P("s_barrier")
        s = slots.pop(0); sslot[i] = s
        r, vo = {"BK": (rBK, vKo), "BV": (rBV, vVo), "AK": (rAK, vKo), "AV": (rAV, vVo)}[kind]
        imm = 0 if kind[1] == "V" else [0, 512, 256, 768][k & 3]
        o = f" offset:{imm}" if imm else ""
        sid[i] = P.vm(f"buffer_load_dwordx4 {a4(s)}, v{vo}, {srd(r)}, s{sOff} offen{o} nt")
    freed = []
    def release(i): freed.append(sslot[i])

    def xlane(op, x, t, steps):
        for st in steps:
            if st in ("x1", "x2", "r4", "r8"):
                d = {"x1": "quad_perm:[1,0,3,2]", "x2": "quad_perm:[2,3,0,1]", "r4": "row_ror:4", "r8": "row_ror:8"}[st]
                P(f"{op}_dpp v{x}, v{x}, v{x} {d} {FULL}")
            else:
                P(f"v_mov_b32 v{t}, v{x}")
                P(f"v_permlane{st[1:]}_swap_b32 v{x}, v{t}")
                P(f"{op} v{x}, v{x}, v{t}")
    def tagcheck(Q, tags, stag, mask):
        tags = list(tags)
        if isinstance(stag, list): pairs = [(tags[k], tags[k+4], stag[k]) for k in range(4)]
        else: pairs = [(a, b, stag) for a, b in zip(tags[0::2], tags[1::2])]
        for n, (a, b, tg) in enumerate(pairs):
            d = vT0 if n == 0 else (vT1 if n % 2 else vT2)
            Q(f"v_bitop3_b32 v{d}, v{a}, v{b}, {tg} bitop3:0x7e")
            if n and n % 2 == 0: Q(f"v_or3_b32 v{vT0}, v{vT0}, v{vT1}, v{vT2}")
            elif n and n == len(pairs)-1: Q(f"v_or_b32 v{vT0}, v{vT0}, v{vT1}")
        if mask: Q(f"v_and_b32 v{vT0}, {mask:#x}, v{vT0}")
        Q(f"v_cmp_ne_u32 vcc, 0, v{vT0}")
    def gather(name, loads, tags, stag, mask):
        ids = []
        def iss():
            if name+"g" in skip: return
            for n, t in enumerate(loads): ids.append(publish(f"{name}{n}", t.replace(" sc1", "")))
        def chk():
            if name+"g" in skip: return
            P.wait(*ids)
            tagcheck(P, tags, stag, mask)
            P(f"s_cbranch_vccnz L_slow_{name}")
            P.label(f"L_back_{name}")
            Q = Prog()
            Q.label(f"L_slow_{name}")
            Q(f"s_add_u32 s{sSpin}, s{sSpin}, 1")
            Q(f"s_cmp_gt_u32 s{sSpin}, 0x40000")
            Q(f"s_cbranch_scc1 L_back_{name}")
            for t in loads: Q.vm(t)
            Q.waitall()
            tagcheck(Q, tags, stag, mask)
            Q(f"s_cbranch_vccnz L_slow_{name}")
            Q(f"s_branch L_back_{name}")
            slow.append(Q)
        return iss, chk
    def publish(name, txt, tested=False):
        if not tested: P(f"s_cmp_lg_u32 s{sFar}, 0")
        P(f"s_cbranch_scc1 L_far_{name}")
        i = P.vm(txt)
        P.label(f"L_near_{name}")
        Q = Prog(); Q.label(f"L_far_{name}")
        Q.vm(txt.rstrip() + " sc1")
        Q(f"s_branch L_near_{name}"); slow.append(Q)
        return i
    def extract(D, dst, tau, t):
        rs = [r for r in range(4) if r != tau]
        src = D + tau
        for n, r in enumerate(rs):
            last = n == 2
            m = f"row_mask:0xf bank_mask:{1 << tau:#x}" if last else FULL
            P(f"v_add_f32_dpp v{dst if last else t}, v{D+r}, v{src} row_ror:{(4*(tau-r)) % 16} {m}")
            src = t
    def transp(dst, src, e):
        for q in range(4):
            P(f"v_perm_b32 v{dst+q}, v{src+4*(2*q+1)+(e>>1)}, v{src+4*(2*q)+(e>>1)}, s{sSel1 if e & 1 else sSel0}")
    def sum8(r, dst):
        P(f"""
        v_add_f32 v{r}, v{r}, v{r+1}
        v_add_f32 v{r+2}, v{r+2}, v{r+3}
        v_add_f32 v{r+4}, v{r+4}, v{r+5}
        v_add_f32 v{r+6}, v{r+6}, v{r+7}
        v_add_f32 v{r}, v{r}, v{r+2}
        v_add_f32 v{r+4}, v{r+4}, v{r+6}
        v_add_f32 v{dst}, v{r}, v{r+4}
        """)

    bg = []
    def B(at, fn, after=0): bg.append((at, fn, after))

    vSel = V.get(4); vL12, vPw, vPr, vL4 = [V.get() for _ in range(4)]
    def c_setup():
        if swap:
            P(f"s_bfe_u32 s{sKo}, s2, 0x10005")
            P(f"s_mul_i32 s{sKo}, s{sKo}, 40")
        P(f"""
        s_load_dword s{sTag}, {sp(rWS)}, 0
        s_load_dwordx2 {sp(rBV)}, s[0:1], 56
        s_load_dwordx2 {sp(rAK)}, s[0:1], 8
        s_load_dwordx2 {sp(rAV)}, s[0:1], 16
        s_load_dwordx2 {sp(rWO)}, s[0:1], s{sKo} offset:32
        s_load_dwordx2 {sp(rOUT)}, s[0:1], 80
        v_and_b32 v{vLane}, 63, v0
        v_mov_b32 v{vBig}, {BIG}
        """)
        if ipf and not ipf0: code_pf()
        desc(rBV, 1 << 26); desc(rAK, 1 << 27); desc(rAV, 1 << 27); desc(rWO, 3670016); desc(rOUT, 7168)
        P(f"""
        s_mov_b32 s{sSel0}, 0x05040100
        s_mov_b32 s{sSel1}, 0x07060302
        s_mov_b32 s{sC}, {CS:#x}
        s_mov_b32 s{sSpin}, 0
        v_mul_u32_u24 v{vL12}, 12, v{vLane}
        v_lshlrev_b32 v{vL4}, 2, v{vLane}
        v_lshlrev_b32 v{vPw}, 3, v0
        v_and_b32 v{vPr}, 3, v0
        v_bfe_u32 v{vT0}, v0, 3, 2
        v_lshl_add_u32 v{vPr}, v{vPr}, 2, v{vT0}
        v_lshrrev_b32 v{vT0}, 6, v0
        v_lshl_add_u32 v{vPr}, v{vT0}, 4, v{vPr}
        v_bfe_u32 v{vT0}, v0, 2, 1
        v_lshl_add_u32 v{vPr}, v{vPr}, 1, v{vT0}
        v_bfe_u32 v{vT0}, v0, 5, 1
        v_lshl_add_u32 v{vPr}, v{vT0}, 8, v{vPr}
        v_lshlrev_b32 v{vPr}, 2, v{vPr}
        v_lshrrev_b32 v{vT0}, 3, v0
        v_and_b32 v{vT1}, 7, v0
        v_lshlrev_b32 v{vVo}, 9, v{vT0}
        v_lshl_add_u32 v{vVo}, v{vT1}, 4, v{vVo}
        """)
        if not late: c_setup2()
    def c_setup2():
        P(f"""
        v_bfe_u32 v{vT0}, v0, 3, 1
        v_mul_u32_u24 v{vT0}, 0x0202, v{vT0}
        v_add_u32 v{vT0}, 0x0100, v{vT0}
        v_or_b32 v{vT2}, 0x0c0c0000, v{vT0}
        v_lshlrev_b32 v{vT0}, 16, v{vT0}
        v_or_b32 v{vT0}, 0x0c0c, v{vT0}
        """)
        vcc(0xaaaaaaaa)
        P(f"v_cndmask_b32 v{vT0}, v{vT2}, v{vT0}, vcc")
        P(f"v_mov_b32 v{vT2}, 0x0c0c0c0c")
        for r in range(4):
            vcc(0x03030303 << (2*r)); P(f"v_cndmask_b32 v{vSel+r}, v{vT2}, v{vT0}, vcc")

    vQD = V.get(32, 4); vTB = [V.get(4, 4), V.get(4, 4)]
    def proj_write(dst, tmp):
        for e0 in (0, 4):
            for n in range(3):
                for e in range(e0, e0+4):
                    D = vQD + 4*e; tau = e & 3
                    r = [x for x in range(4) if x != tau][n]
                    m = f"row_mask:0xf bank_mask:{1 << tau:#x}" if n == 2 else FULL
                    P(f"v_add_f32_dpp v{dst+(e >> 2) if n == 2 else tmp+tau}, v{D+r}, v{tmp+tau if n else D+tau} row_ror:{(4*(tau-r)) % 16} {m}")
        P(f"ds_write_b64 v{vPw}, {v2(dst)} offset:{L_QRED}")
        P("s_waitcnt lgkmcnt(0)")
    def proj_read(r):
        P("s_barrier")
        P(f"ds_read2st64_b32 {v2(r)}, v{vPr} offset0:{L_QRED//256} offset1:{L_QRED//256+2}")
    def proj_sum(r):
        P("s_waitcnt lgkmcnt(0)")
        P(f"v_add_f32 v{r}, v{r}, v{r+1}")
        xlane("v_add_f32", r, r+1, ["p32"])
    vFl, vFs, vFd, vFt = vXo, vWQo, V.get(), V.get()
    sFm = S.get(2)
    def tag_setup():
        P(f"""
        ; hand-off tag of this launch: differs in every byte from the tag the previous launch left at ws[0]
        s_add_u32 s{sTag}, s{sTag}, 0x9e3779b9
        """)
    def fc_setup():
        P(f"""
        ; one line per (class, checkpoint): a dword for each of the 32 workgroups of the class
        s_bfe_u32 s{sFC}, s2, 0x30003
        {('s_lshl_b32 s%d, s%d, 2' % (sFC, sFC)) if wgfc else ('s_lshl2_add_u32 s%d, s%d, s%d' % (sFC, sFC, sWv))}
        s_lshl_b32 s{sFC}, s{sFC}, 11
        s_add_u32 s{sFC}, s{sFC}, {WS_FC + (4096 if wgfc else 0)}
        s_and_b32 s{sI}, s2, 7
        s_lshr_b32 s{sBoost}, s2, 6
        s_lshl3_add_u32 s{sI}, s{sBoost}, s{sI}
        v_cmp_eq_u32 {sp(sFm)}, s{sI}, v{0 if wgfc else vLane}
        v_cndmask_b32 v{vFs}, v{vBig}, v{vL4}, {sp(sFm)}
        v_cmp_gt_u32 {sp(sFm)}, 32, v{vLane}
        v_cndmask_b32 v{vFl}, v{vBig}, v{vL4}, {sp(sFm)}
        v_add_u32 v{vFl}, s{sFC}, v{vFl}
        """)
    hid = []; vHd = V.get()
    def c_hello2():
        P(f"v_and_b32 v{vH}, 0xe0, v{vH}")
        P(f"v_and_or_b32 v{vH}, v0, 31, v{vH}")
        hid.append(P.vm(f"global_load_ubyte v{vHd}, v{vH}, {sp(sDbg)}"))
    def c_q():
        P.wait(*idwq)
        stamp("wq")
        for e in range(8):
            transp(vTB[e & 1], vWQ, e)
            P(f"v_mfma_f32_16x16x32_bf16 {v4(vQD+4*e)}, {v4(vX)}, {v4(vTB[e & 1])}, 0")
        proj_write(vWQ, vWQ+4)
        return 'lgk'
    def c_q4():
        r = vWQ
        proj_read(r)
        if qat is None: tag_setup()
        P(f"""
        s_lshr_b32 s{sT0}, s2, 7
        s_lshl2_add_u32 s{sT0}, s{sT0}, s{sWv}
        s_lshl_b32 s{sT0}, s{sT0}, 7
        s_add_u32 s{sT0}, s{sT0}, s{sCB}
        s_lshl_b32 s{sT0}, s{sT0}, 7
        s_add_u32 s{sT0}, s{sT0}, {WS_Q}
        v_mov_b32 v{r+9}, s{sTag}
        """)
        proj_sum(r)
        if True:
            P.wait(*hid)
            P(f"""
            ; class-local hand-offs go through L2 only if all 32 workgroups of the class were seen to report this XCC
            v_cmp_ne_u32 vcc, v{vHd}, v{vH+1}
            s_mov_b32 s{sFar}, vcc_lo
            """)
            if forcefar: P(f"s_mov_b32 s{sFar}, 1")
        P(f"""
        v_mov_b32_dpp v{r+1}, v{r} quad_perm:[1,0,3,2] {FULL}
        v_cvt_pk_bf16_f32 v{r+8}, v{r}, v{r+1}
        s_mov_b32 exec_lo, 0x55555555
        s_mov_b32 exec_hi, 0
        """)
        publish("q", f"buffer_store_dwordx2 {v2(r+8)}, v{vL4}, {srd(rWS)}, s{sT0} offen")
        P("s_mov_b64 exec, -1")
        stamp("qpub")
        return 'tag'
    def c_tlb():
        P(f"""
        s_lshr_b32 s{sT0}, s2, 2
        s_lshl_b32 s{sT0}, s{sT0}, 21
        s_lshr_b32 s{sT1}, s{sCB}, 4
        s_mul_i32 s{sT1}, s{sT1}, {512*896}
        v_cmp_eq_u32 vcc, 0, v0
        v_cndmask_b32 v{vT0}, 2.0, v0, vcc
        s_waitcnt lgkmcnt(0)
        """)
        if "V" in tlb: P.vm(f"buffer_load_dword v{vTl}, v{vT0}, {srd(rBV)}, s{sOff} offen nt")
        if "K" in tlb: P.vm(f"buffer_load_dword v{vTl}, v{vT0}, {srd(rAK)}, s{sT0} offen nt")
        if "A" in tlb: P.vm(f"buffer_load_dword v{vTl}, v{vT0}, {srd(rAV)}, s{sT0} offen nt")
        if "W" in tlb: P.vm(f"buffer_load_dword v{vTl}, v{vT0}, {srd(rWO)}, s{sT1} offen nt")
        if "O" in tlb: P.vm(f"buffer_load_dword v{vTl}, v{vT0}, {srd(rOUT)}, 0 offen nt")
    S0 = max(W, fast) - 1 if S00 is None else S00
    if late > 1: B(S0, c_setup); B(late, c_wsw)
    else: B(S0, c_wsw); B(0, c_setup)
    if tlb: B(0, c_tlb)
    B(hello, c_hello2)
    def c_tag():
        P("s_waitcnt lgkmcnt(0)"); tag_setup(); st['lgk'] = True
        return 'tag'
    if qat is not None: B(0, c_tag, 1)
    B(len(first) - 2 + (W if len(first) > 1 else 0) if qat is None else qat, c_q); B(hello + W + 1, c_q4, 1)

    vQA = V.get(32, 4); vQB = V.get(16, 4)
    vG = vQD
    vGo = V.get(2); sG = [S.get() for _ in range(8)]
    ql = [f"buffer_load_dwordx4 {v4(vG+8*u+4*hf)}, v{vGo}, {srd(rWS)}, s{sG[0]} offen offset:{512*u+16*hf} sc1" for u in range(2) for hf in range(2)]
    ql += [f"buffer_load_dwordx4 {v4(vG+16+8*u+4*hf)}, v{vGo+1}, {srd(rWS)}, s{sG[1]} offen offset:{512*u+16*hf} sc1" for u in range(2) for hf in range(2)]
    q_iss, q_chk = gather("q", ql, range(vG+1, vG+32, 2), f's{sTag}', None)
    def c_qg():
        P(f"""
        v_lshrrev_b32 v{vGo}, 2, v{vLane}
        v_lshlrev_b32 v{vGo}, 5, v{vGo}
        v_bfe_u32 v{vT0}, v{vLane}, 1, 1
        v_lshl_add_u32 v{vGo+1}, v{vT0}, 10, v{vGo}
        s_lshr_b32 s{sG[0]}, s2, 2
        s_lshl_b32 s{sG[0]}, s{sG[0]}, 10
        s_add_u32 s{sG[0]}, s{sG[0]}, {WS_Q}
        s_lshr_b32 s{sG[1]}, s2, 3
        s_lshl_b32 s{sG[1]}, s{sG[1]}, 11
        s_add_u32 s{sG[1]}, s{sG[1]}, {WS_Q + 4*16384}
        """)
        q_iss()
    def c_qb():
        q_chk(); stamp("qgot")
        if spinif == "nq": P(f"s_mov_b32 s1, s{sSpin}")
        if spinif == "ns": P(f"s_mov_b32 s{sSpin}, 0")
        if spinif == "far1": P(f"s_min_u32 s1, s{sFar}, 20")
        for t in range(4):
            vcc(0x11111111 << t)
            for u in range(2):
                for q in range(4): P(f"v_cndmask_b32 v{vQA+16*u+4*t+q}, 0, v{vG+8*u+2*q}, vcc")
        for t in range(2):
            vcc(0x55555555 << t)
            for u in range(2):
                for q in range(4): P(f"v_cndmask_b32 v{vQB+8*u+4*t+q}, 0, v{vG+16+8*u+2*q}, vcc")
        return 'kok'
    if late: B(0, c_setup2)
    B(qg, c_qg); B(0, c_qb, WM+1)

    vD = [V.get(4, 4) for _ in range(4)]
    vSB, vTb = V.get(), V.get()
    def c_bqk():
        P.wait(sid[15])
        D = vWQ
        for tau in range(4):
            for n in range(4):
                t, u = n & 1, n >> 1
                P(f"v_mfma_f32_16x16x32_bf16 {v4(D+4*tau)}, {a4(sslot[4*tau+n])}, {v4(vQB+8*u+4*t)}, {v4(D+4*tau) if n else 0}")
                release(4*tau+n)
        for tau in range(4): extract(D+4*tau, vSB, tau, vT0)
        P(f"""
        v_cvt_pk_bf16_f32 v{vSB}, v{vSB}, v{vSB}
        v_lshlrev_b32 v{vT0}, 4, v0
        v_lshrrev_b32 v{vTb}, v{vT0}, s{sTag}
        v_mov_b32 v{vT0}, 0xffff
        v_bfi_b32 v{vSB}, v{vT0}, v{vTb}, v{vSB}
        """)
    B(15+WM, c_bqk)

    vWO = V.get(32, 4); vWOo = V.get()
    def wo_load(j):
        if j == 4: P(f"s_addk_i32 s{sAux}, {4*896}")
        if "wo" not in skip:
            P.vm(f"buffer_load_dwordx4 {v4(vQD+4*j)}, v{vWOo}, {srd(rWO)}, s{sAux} offen offset:{896*(j & 3)} {woflag}")

    vSA = V.get(4, 4)
    pend = []
    def k_consume(i):
        k = i - 32
        unit, n = k >> 4, k & 15
        t, u, par = n >> 2, (n >> 1) & 1, n & 1
        D = vD[2*(unit & 1) + par]
        first = (t == 0 and u == 0)
        P(f"v_mfma_f32_16x16x32_bf16 {v4(D)}, {a4(sslot[i])}, {v4(vQA+16*u+4*t)}, {0 if first else v4(D)}")
        release(i)
        while pend and n >= 2:
            pend.pop(0)()
        if n == 15:
            for p_ in range(2):
                pend.append(lambda p_=p_, unit=unit: extract(vD[2*(unit & 1)+p_], vSA + 2*(unit >> 2) + p_, unit & 3, vXT))
            if k == 127:
                while pend: pend.pop(0)()
                c_spub()
    def c_spub():
        o = vD[0]
        P(f"""
        s_lshl2_add_u32 s{sI}, s2, s{sWv}
        s_mul_i32 s{sI}, s{sI}, 768
        s_add_u32 s{sI}, s{sI}, {WS_SC}
        v_cvt_pk_bf16_f32 v{o}, v{vSA}, v{vSA+1}
        v_cvt_pk_bf16_f32 v{o+1}, v{vSA+2}, v{vSA+3}
        v_mov_b32 v{o+2}, v{vSB}
        """)
        if "scs" not in skip: publish("sc", f"buffer_store_dwordx3 {v3(o)}, v{vL12}, {srd(rWS)}, s{sI} offen")
        stamp("scpub")
    vSG = vWQ
    vE = vQA; vEB = vQA + 16
    vP = V.get(8, 4); vPB = vQB + 4; vM, vL, vMB, vLB = vQB, vQB+1, vQB+2, vQB+3
    vWt, vWtB, vFF = vQB+8, vQB+9, vQB+10
    sl = [f"buffer_load_dwordx3 {v3(vSG+4*k)}, v{vL12}, {srd(rWS)}, s{sG[k]} offen sc1" for k in range(4)]
    sl += [f"buffer_load_dword v{vSG+16+k}, v{vL12}, {srd(rWS)}, s{sG[4+k]} offen offset:8 sc1" for k in range(4)]
    sbr = [vSG+4*k+2 for k in range(4)] + [vSG+16+k for k in range(4)]
    s_iss, s_chk = gather("sc", sl, sbr, f'v{vTb}', 0xffff)
    def c_sg():
        P(f"""
        s_and_b32 s{sT0}, s2, 0xfc
        s_lshl2_add_u32 s{sT0}, s{sT0}, s{sWv}
        s_xor_b32 s{sT1}, s{sT0}, 16
        s_mul_i32 s{sT0}, s{sT0}, 768
        s_mul_i32 s{sT1}, s{sT1}, 768
        s_add_u32 s{sG[0]}, s{sT0}, {WS_SC}
        s_add_u32 s{sG[4]}, s{sT1}, {WS_SC}
        """)
        for k in (1, 2, 3, 5, 6, 7): P(f"s_add_u32 s{sG[k]}, s{sG[k-1]}, 3072")
        s_iss()
    def c_sm1():
        s_chk(); stamp("scgot")
        for r in range(8):
            src = vSG + 4*(r >> 1) + (r & 1)
            P(f"v_lshlrev_b32 v{vE+2*r}, 16, v{src}")
            P(f"v_and_b32 v{vE+2*r+1}, 0xffff0000, v{src}")
        P(f"v_max3_f32 v{vM}, v{vE}, v{vE+1}, v{vE+2}")
        for r in range(3, 15, 2): P(f"v_max3_f32 v{vM}, v{vM}, v{vE+r}, v{vE+r+1}")
        P(f"v_max_f32 v{vM}, v{vM}, v{vE+15}")
        xlane("v_max_f32", vM, vT0, ["x1", "x2", "r4", "r8", "p16", "p32"])
        P(f"v_mul_f32 v{vM}, s{sC}, v{vM}")
        for r in range(16):
            P(f"v_fma_f32 v{vE+r}, v{vE+r}, s{sC}, -v{vM}")
            P(f"v_exp_f32 v{vE+r}, v{vE+r}")
        for r in range(8): P(f"v_cvt_pk_bf16_f32 v{vP+r}, v{vE+2*r}, v{vE+2*r+1}")
        return 'vok'
    def c_sm3():
        for r in range(8): P(f"v_add_f32 v{vE+r}, v{vE+r}, v{vE+8+r}")
        sum8(vE, vL)
        xlane("v_add_f32", vL, vT0, ["x1", "x2", "r4", "r8", "p16", "p32"])
    def c_sb1():
        for k in range(8): P(f"v_and_b32 v{vEB+k}, 0xffff0000, v{sbr[k]}")
        P(f"v_max3_f32 v{vMB}, v{vEB}, v{vEB+1}, v{vEB+2}")
        P(f"v_max3_f32 v{vMB}, v{vMB}, v{vEB+3}, v{vEB+4}")
        P(f"v_max3_f32 v{vMB}, v{vMB}, v{vEB+5}, v{vEB+6}")
        P(f"v_max_f32 v{vMB}, v{vMB}, v{vEB+7}")
        xlane("v_max_f32", vMB, vT0, ["x1", "r4", "r8", "p16", "p32"])
        P(f"v_mul_f32 v{vMB}, s{sC}, v{vMB}")
        for k in range(8):
            P(f"v_fma_f32 v{vEB+k}, v{vEB+k}, s{sC}, -v{vMB}")
            P(f"v_exp_f32 v{vEB+k}, v{vEB+k}")
        for k in range(4):
            P(f"v_mov_b32_dpp v{vT0}, v{vEB+k} quad_perm:[1,0,3,2] {FULL}")
            P(f"v_cvt_pk_bf16_f32 v{vPB+k}, v{vEB+k}, v{vT0}")
        sum8(vEB, vLB)
        xlane("v_add_f32", vLB, vT0, ["x1", "r4", "r8", "p16", "p32"])
        P(f"""
        v_bfe_u32 v{vT0}, v{vLane}, 1, 1
        v_lshlrev_b32 v{vT0}, 6, v{vT0}
        s_lshl_b32 s{sT0}, s{sWv}, 4
        v_add_u32 v{vT0}, s{sT0}, v{vT0}
        ds_write_b128 v{vT0}, {v4(vM)} offset:{L_ST}
        """)
    vBc = [V.get(), V.get()]
    vTC = [V.get(4, 4), V.get(4, 4)]
    def pvop(bc, dst, src, lane):
        P(f"v_mov_b32_dpp v{bc}, v{src} row_newbcast:{lane} {FULL}")
        for q in range(4): P(f"v_perm_b32 v{dst+q}, v{bc}, v{bc}, v{vSel+q}")
    def c_bpv():
        for k in range(4):
            for tau in range(4):
                i = 16 + 4*tau + k
                for hd in range(2): pvop(vT0+hd, vTC[hd], vPB+k, 4*tau + 2*hd)
                for hd in range(2):
                    P(f"v_mfma_f32_16x16x32_bf16 {v4(vD[2+hd])}, {a4(sslot[i])}, {v4(vTC[hd])}, {v4(vD[2+hd]) if i > 16 else 0}")
                release(i)
    assert vT1 == vT0 + 1
    vAw, vAr = V.get(), V.get()
    vW4 = vQB + 12
    def c_sm4():
        s_ = vE
        P(f"""
        v_bfe_u32 v{vT0}, v{vLane}, 1, 1
        v_lshlrev_b32 v{vT0}, 6, v{vT0}
        s_waitcnt lgkmcnt(0)
        s_barrier
        """)
        for k in range(4): P(f"ds_read_b128 {v4(s_+4*k)}, v{vT0} offset:{L_ST+16*k}")
        P(f"""
        v_lshrrev_b32 v{vAw}, 4, v0
        v_lshlrev_b32 v{vAw}, 7, v{vAw}
        v_and_b32 v{vT1}, 7, v{vLane}
        v_lshl_add_u32 v{vAw}, v{vT1}, 4, v{vAw}
        v_and_b32 v{vAr}, 32, v{vLane}
        v_lshl_add_u32 v{vAr}, v{vT1}, 2, v{vAr}
        v_bfe_u32 v{vT1}, v{vLane}, 3, 2
        v_add_lshl_u32 v{vAr}, v{vAr}, v{vT1}, 2
        s_min_u32 s{sT0}, s{sWv}, 2
        s_lshl_b32 s{sT0}, s{sT0}, 11
        v_add_u32 v{vAr}, s{sT0}, v{vAr}
        v_mov_b32 v{vFF}, 0xff
        s_waitcnt lgkmcnt(0)
        """)
        for o, m, wt in ((0, vM, vWt), (2, vMB, vWtB)):
            P(f"v_max3_f32 v{vT0}, v{s_+o}, v{s_+4+o}, v{s_+8+o}")
            P(f"v_max_f32 v{vT0}, v{vT0}, v{s_+12+o}")
            for k in range(4):
                P(f"v_sub_f32 v{s_+4*k+o}, v{s_+4*k+o}, v{vT0}")
                P(f"v_exp_f32 v{s_+4*k+o}, v{s_+4*k+o}")
            P(f"v_sub_f32 v{wt}, v{m}, v{vT0}")
            P(f"v_exp_f32 v{wt}, v{wt}")
            P(f"v_mul_f32 v{vT1}, v{s_+o}, v{s_+o+1}")
            for k in range(1, 4): P(f"v_fmac_f32 v{vT1}, v{s_+4*k+o}, v{s_+4*k+o+1}")
            P(f"v_rcp_f32 v{vT1}, v{vT1}")
            P(f"v_mul_f32 v{wt}, v{wt}, v{vT1}")
            if rdw and o == 0:
                for k in range(4): P(f"v_mul_f32 v{vW4+k}, v{s_+4*k}, v{vT1}")
    def red_write(lst):
        P("s_mov_b32 exec_lo, 0x00ff00ff")
        P("s_mov_b32 exec_hi, 0xff00ff00")
        for acc, reg in lst: P(f"ds_write_b128 v{vAw}, {v4(acc)} offset:{L_RED+2048*reg}")
        P("s_mov_b64 exec, -1")
    def c_br1():
        for hd in range(2):
            for q in range(4):
                P(f"v_mul_f32_dpp v{vD[2+hd]+q}, v{vWtB}, v{vD[2+hd]+q} quad_perm:[{2*hd},{2*hd},{2*hd},{2*hd}] {FULL}")
        red_write([(vD[2], 1), (vD[3], 2)])
        stamp("ybdone")
    vOb = V.get(2)
    def c_ob1():
        P(f"""
        v_lshrrev_b32 v{vAw}, 4, v0
        v_lshlrev_b32 v{vAw}, 7, v{vAw}
        v_and_b32 v{vT1}, 7, v{vLane}
        v_lshl_add_u32 v{vAw}, v{vT1}, 4, v{vAw}
        v_and_b32 v{vAr}, 32, v{vLane}
        v_lshl_add_u32 v{vAr}, v{vT1}, 2, v{vAr}
        v_bfe_u32 v{vT1}, v{vLane}, 3, 2
        v_add_lshl_u32 v{vAr}, v{vAr}, v{vT1}, 2
        s_min_u32 s{sT0}, s{sWv}, 2
        s_lshl_b32 s{sT0}, s{sT0}, 11
        v_add_u32 v{vAr}, s{sT0}, v{vAr}
        v_mov_b32 v{vFF}, 0xff
        """)
        red_write([(vD[2], 1), (vD[3], 2)])
        stamp("ybdone")
    def c_ob2():
        r = vWQ; s_ = vWQ + 8
        P(f"""
        s_min_u32 s{sT0}, s{sWv}, 1
        s_lshr_b32 s{sT1}, s{sWv}, 1
        s_lshl3_add_u32 s{sT0}, s{sT1}, s{sT0}
        s_lshl_b32 s{sT0}, s{sT0}, 3
        v_mov_b32 v{vT0}, s{sT0}
        s_waitcnt lgkmcnt(0)
        s_barrier
        """)
        for k in range(4): P(f"ds_read_b64 {v2(s_+2*k)}, v{vT0} offset:{L_ST+16*k}")
        for k in range(4): P(f"ds_read2st64_b32 {v2(r+2*k)}, v{vAr} offset0:{L_RED//256+2*k} offset1:{L_RED//256+2*k+1}")
        P(f"""
        v_add_u32 v{vOb}, 64, v0
        v_and_b32 v{vOb}, 128, v{vOb}
        v_cmp_ne_u32 vcc, 0, v{vOb}
        v_cndmask_b32 v{vOb}, v{vBig}, v{vL4}, vcc
        s_waitcnt lgkmcnt(0)
        v_max3_f32 v{vT0}, v{s_}, v{s_+2}, v{s_+4}
        v_max_f32 v{vT0}, v{vT0}, v{s_+6}
        """)
        for k in range(4):
            P(f"v_sub_f32 v{s_+2*k}, v{s_+2*k}, v{vT0}")
            P(f"v_exp_f32 v{s_+2*k}, v{s_+2*k}")
        P(f"v_mul_f32 v{vT1}, v{s_}, v{s_+1}")
        for k in range(1, 4): P(f"v_fmac_f32 v{vT1}, v{s_+2*k}, v{s_+2*k+1}")
        P(f"v_rcp_f32 v{vT1}, v{vT1}")
        for k in range(4): P(f"v_add_f32 v{r+2*k}, v{r+2*k}, v{r+2*k+1}")
        for k in range(4): P(f"v_mul_f32 v{vW4+k}, v{s_+2*k}, v{vT1}")
        for k in range(4): P(f"v_mul_f32 v{r}, v{r}, v{vW4}" if k == 0 else f"v_fmac_f32 v{r}, v{r+2*k}, v{vW4+k}")
        P(f"v_bfi_b32 v{vOb+1}, v{vFF}, v{vTb}, v{r}")
    def c_br2():
        r = vWQ
        P("s_waitcnt lgkmcnt(0)")
        P("s_barrier")
        for k in range(4): P(f"ds_read2st64_b32 {v2(r+2*k)}, v{vAr} offset0:{L_RED//256+2*k} offset1:{L_RED//256+2*k+1}")
        P(f"""
        v_add_u32 v{vOb}, 64, v0
        v_and_b32 v{vOb}, 128, v{vOb}
        v_cmp_ne_u32 vcc, 0, v{vOb}
        v_cndmask_b32 v{vOb}, v{vBig}, v{vL4}, vcc
        s_waitcnt lgkmcnt(0)
        """)
        sum8(r, r)
        P(f"v_bfi_b32 v{vOb+1}, v{vFF}, v{vTb}, v{r}")
        if not bsplit: c_br3()
    def c_br3():
        t = f"buffer_store_dword v{vOb+1}, v{vOb}, {srd(rWS)}, s{sOp} offen"
        if swap: P.vm(t + " sc1")
        else: publish("ob", t)
    vOg, vOo, vYo = vGo+1, vL12, vGo
    vY0, vY1, vBp = V.get(), V.get(), V.get()
    sOp, sOg, sYp, sYg, sOutO = sG[0:5]
    sYx, sOwn = rX, rX+2
    brx = "s_bfe_u32 s%d, s2, 0x10005" % sT0 if swap else "s_lshr_b32 s%d, s2, 7" % sT0
    def c_fin():
        if prm:
            P(f"""
            ; projection role m = (b&1)*8 + 2*s + kh: the workgroups without a block are ones with s = 3
            s_and_b32 s{sT0}, s2, 3
            s_bfe_u32 s{sT1}, s2, 0x10002
            s_lshl1_add_u32 s{sT0}, s{sT0}, s{sT1}
            s_andn2_b32 s{sCB}, s{sCB}, 7
            s_or_b32 s{sCB}, s{sCB}, s{sT0}
            """)
        if swap:
            P(f"""
            s_bfe_u32 s{sT0}, s2, 0x20003
            s_lshr_b32 s{sT1}, s2, 6
            s_lshl2_add_u32 s{sT0}, s{sT0}, s{sT1}
            s_and_b32 s{sT1}, s2, 7
            s_lshl4_add_u32 s{sCB}, s{sT1}, s{sT0}
            """)
        P(f"""
        ; o and y words carry byte (column&3) of the tag in their low byte
        v_lshlrev_b32 v{vT0}, 3, v0
        v_lshrrev_b32 v{vTb}, v{vT0}, s{sTag}
        s_lshr_b32 s{sG[5]}, s{sTag}, 8
        s_lshr_b32 s{sG[6]}, s{sTag}, 16
        s_lshr_b32 s{sG[7]}, s{sTag}, 24
        ; O table [x][slot: A, B kh0, B kh1][b][512] dwords
        s_bfe_u32 s{sT0}, s2, 0x30003
        s_mul_i32 s{sOg}, s{sT0}, {3*8192}
        s_add_u32 s{sOg}, s{sOg}, {WS_O}
        s_lshr_b32 s{sT0}, s2, 6
        s_lshl_b32 s{sT0}, s{sT0}, 11
        s_add_u32 s{sOp}, s{sOg}, s{sT0}
        ; wave 0: A row block t ; waves 1,2: slot 1+kh, row block 4*(wave-1)+s
        s_and_b32 s{sT0}, s2, 4
        s_lshl_b32 s{sT0}, s{sT0}, 3
        s_lshl2_add_u32 s{sT0}, s{sWv}, s{sT0}
        s_and_b32 s{sT1}, s2, 3
        s_add_u32 s{sT0}, s{sT0}, s{sT1}
        s_addk_i32 s{sT0}, 28
        s_and_b32 s{sT1}, s2, 7
        s_cmp_eq_u32 s{sWv}, 0
        s_cselect_b32 s{sT0}, s{sT1}, s{sT0}
        s_lshl_b32 s{sT0}, s{sT0}, 8
        s_add_u32 s{sOp}, s{sOp}, s{sT0}
        s_lshr_b32 s{sT0}, s{sCB}, 4
        s_mul_i32 s{sOg}, s{sT0}, {3*8192}
        s_add_u32 s{sOg}, s{sOg}, {WS_O}
        {brx}
        s_lshl_b32 s{sT0}, s{sT0}, 13
        s_add_u32 s{sOg}, s{sOg}, s{sT0}
        s_and_b32 s{sT1}, s{sCB}, 1
        s_lshl_b32 s{sT1}, s{sT1}, 10
        s_add_u32 s{sOg}, s{sOg}, s{sT1}
        v_bfe_u32 v{vT0}, v0, 1, 1
        v_mul_lo_u32 v{vOg}, v{vT0}, s{sT0}
        v_bfe_u32 v{vT0}, v0, 2, 2
        v_lshl_add_u32 v{vOg}, v{vT0}, 11, v{vOg}
        v_lshrrev_b32 v{vT0}, 4, v0
        v_lshl_add_u32 v{vOg}, v{vT0}, 6, v{vOg}
        v_and_b32 v{vT0}, 1, v0
        v_lshl_add_u32 v{vOg}, v{vT0}, 5, v{vOg}
        ; wo lane (row group tid>>3, 16-byte chunk tid&7)
        v_lshrrev_b32 v{vT0}, 3, v0
        v_mul_u32_u24 v{vWOo}, {8*896}, v{vT0}
        v_and_b32 v{vT0}, 7, v0
        v_lshl_add_u32 v{vWOo}, v{vT0}, 4, v{vWOo}
        s_and_b32 s{sT1}, s{sCB}, 15
        v_mov_b32 v{vT1}, s{sT1}
        v_cmp_gt_u32 vcc, 14, v{vT1}
        v_cndmask_b32 v{vWOo}, v{vBig}, v{vWOo}, vcc
        s_lshr_b32 s{sT0}, s{sCB}, 4
        s_and_b32 s{sAux}, s{sCB}, 1
        s_lshl1_add_u32 s{sAux}, s{sT0}, s{sAux}
        s_mul_i32 s{sAux}, s{sAux}, {256*896}
        s_and_b32 s{sT0}, s{sCB}, 14
        s_lshl_b32 s{sT0}, s{sT0}, 6
        s_add_u32 s{sAux}, s{sAux}, s{sT0}
        v_lshlrev_b32 v{vPw}, 4, v0
        v_and_b32 v{vPr}, 1, v0
        v_bfe_u32 v{vT1}, v0, 3, 3
        v_lshl_add_u32 v{vPr}, v{vPr}, 3, v{vT1}
        v_lshrrev_b32 v{vT1}, 6, v0
        v_lshl_add_u32 v{vPr}, v{vT1}, 4, v{vPr}
        v_bfe_u32 v{vT1}, v0, 1, 2
        v_lshl_add_u32 v{vPr}, v{vPr}, 2, v{vT1}
        v_lshlrev_b32 v{vPr}, 2, v{vPr}
        v_lshlrev_b32 v{vOo}, 3, v{vT0}
        v_bfe_u32 v{vT0}, v{vLane}, 4, 1
        v_lshl_add_u32 v{vOo}, v{vT0}, 2, v{vOo}
        v_lshrrev_b32 v{vT0}, 5, v{vLane}
        v_lshl_add_u32 v{vOo}, v{vT0}, 1, v{vOo}
        v_mul_u32_u24 v{vYo}, {8192-128}, v{vT0}
        v_add_u32 v{vYo}, v{vYo}, v{vL4}
        {brx}
        s_mul_i32 s{sT0}, s{sT0}, 14
        s_add_u32 s{sT0}, s{sT0}, s{sT1}
        s_lshl_b32 s{sOutO}, s{sT0}, 6
        s_mul_i32 s{sYp}, s{sWv}, 1792
        s_add_u32 s{sOutO}, s{sOutO}, s{sYp}
        s_lshl2_add_u32 s{sT0}, s{sT0}, s{sWv}
        s_lshl_b32 s{sT0}, s{sT0}, 11
        s_add_u32 s{sYg}, s{sT0}, {WS_Y}
        s_and_b32 s{sT1}, s{sCB}, 1
        s_mul_i32 s{sT0}, s{sT1}, {8192-1024}
        s_sub_u32 s{sYp}, s{sYg}, s{sT0}
        s_lshr_b32 s{sT0}, s{sCB}, 4
        s_lshl_b32 s{sI}, s{sT0}, 7
        s_add_u32 s{sYp}, s{sYp}, s{sI}
        ; block m is summed by its workgroup of row block m&7, which keeps that half of its own result in registers
        s_lshl_b32 s{sI}, s{sT0}, 3
        s_lshl_b64 {sp(sOwn)}, 0xff, s{sI}
        s_lshl_b32 s{sI}, s{sT1}, 7
        v_lshl_add_u32 v{vBp}, v{vOo}, 1, s{sI}
        s_xor_b32 s{sI}, s{sT1}, 1
        s_lshl_b32 s{sI}, s{sI}, 10
        v_lshlrev_b32 v{vY0}, 4, v{vLane}
        v_add_u32 v{vY1}, 1024, v{vY0}
        v_add_u32 v{vT0}, s{sI}, v{vY0}
        v_cndmask_b32 v{vY0}, v{vY0}, v{vT0}, {sp(sOwn)}
        v_cndmask_b32 v{vY1}, v{vY1}, v{vT0}, {sp(sOwn)}
        s_sub_u32 s{sYx}, 0, s{sT1}
        s_not_b32 s{sYx+1}, s{sYx}
        s_and_b32 s{sT1}, s{sCB}, 7
        s_cmp_eq_u32 s{sT0}, s{sT1}
        s_cselect_b64 {sp(sYx)}, {sp(sYx)}, -1
        """)
    def c_re1(): hid.append(P.vm(f"global_load_ubyte v{vHd}, v{vH}, {sp(sDbg)} nt"))
    def c_re2():
        P.wait(hid[-1])
        P(f"""
        ; second look: a report that arrived after the first one no longer keeps the class off the L2 path
        v_cmp_ne_u32 vcc, v{vHd}, v{vH+1}
        s_mov_b32 s{sFar}, vcc_lo
        """)
        if forcefar: P(f"s_mov_b32 s{sFar}, 1")
    if recheck: B(recheck, c_re1); B(0, c_re2, WM+1)
    B(160+sg, c_sg); B(0, c_sm1, WM+1); B(0, c_sm3); B(0, c_sb1); B(0, c_bpv)
    if onebar: B(0, c_ob1)
    else: B(0, c_sm4); B(0, c_br1)
    B(0, c_fin)
    def c_yw():
        if yw[1] == "c":
            P(f"""
            s_cmp_eq_u64 {sp(sYx)}, -1
            s_cselect_b32 s{sT0}, 0, 16
            v_lshlrev_b32 v{vT0}, 7, v{vLane}
            v_cmp_gt_u32 vcc, s{sT0}, v{vLane}
            v_cndmask_b32 v{vT0}, v{vBig}, v{vT0}, vcc
            """)
            P.vm(f"buffer_load_dword v{vTl+1}, v{vT0}, {srd(rWS)}, s{sYg} offen sc1")
        else:
            P.vm(f"buffer_load_dword v{vTl+1}, v{vYo}, {srd(rWS)}, s{sYp} offen sc1")
    if yw and yw[0] < bpub: B(yw[0], c_yw)
    def c_ow():
        P(f"v_cmp_gt_u32 vcc, 192, v0")
        P(f"v_cndmask_b32 v{vT0}, v{vBig}, v{vL4}, vcc")
        P.vm(f"buffer_load_dword v{vTl+1}, v{vT0}, {srd(rWS)}, s{sOp} offen sc1")
    if ow: B(ow, c_ow)
    if bsplit:
        B(bsplit, c_ob2 if onebar else c_br2)
        if btail is None: B(bpub, c_br3)
    elif bpub: B(bpub, c_br2)
    if yw and yw[0] >= bpub and ytail is None: B(yw[0], c_yw)

    vAcc = vD[1]
    prepared = set()
    def v_prep(i):
        v = i - 160
        if i < NS and i not in prepared:
            pvop(vBc[v & 1], vTB[v & 1], vP + 2*(v & 3) + (v >> 6), (v >> 2) & 15); prepared.add(i)
    def v_consume(i):
        v = i - 160
        v_prep(i)
        P.wait(sid[i])
        P(f"v_mfma_f32_16x16x32_bf16 {v4(vAcc)}, {a4(sslot[i])}, {v4(vTB[v & 1])}, {v4(vAcc) if v else 0}")
        release(i)
        v_prep(i+1)

    xg = fc['xg'] if fc else 0
    if xg:
        vGs, vGl, vGd = [V.get() for _ in range(3)]; sBias = S.get()
        xcs = [cps[c] for c in fc['xc']]
    def fc_step(i):
        if i in cps:
            c = cps.index(i)
            if c == 0:
                assert st['tag'] and len(idwq) == 9
                fc_setup()
                P(f"v_mov_b32 v{vFt}, s{sTag}")
                if fc['tab']:
                    m = min(fc['tab']); t = sum(((x - m)//2) << (4*k) for k, x in enumerate(fc['tab']))
                    P(f"""
                    s_lshl_b32 s{sTagQ}, s{sTagQ}, 2
                    s_lshr_b32 s{sTagQ}, {t:#x}, s{sTagQ}
                    s_and_b32 s{sTagQ}, s{sTagQ}, 15
                    s_lshl1_add_u32 s{sTagQ}, s{sTagQ}, {m}
                    """)
                if xg:
                    assert len(cps) <= (32 if wgfc else 10) and len(xcs) <= 6
                    P(f"""
                    s_lshl2_add_u32 s{sI}, s{sI}, s{sWv}
                    s_cmp_eq_u32 s{sI}, {fc['lead']}
                    s_cselect_b32 s{sFm}, 0xff, 0
                    s_mov_b32 s{sFm+1}, 0
                    v_lshlrev_b32 v{vGd}, 13, v{vLane}
                    v_add_u32 v{vGd}, {WS_FC + 1280}, v{vGd}
                    v_cndmask_b32 v{vGl}, v{vBig}, v{vGd}, {sp(sFm)}
                    s_bfe_u32 s{sBias}, s2, 0x30003
                    s_lshl_b32 s{sBias}, 1, s{sBias}
                    s_and_b32 s{sFm}, s{sFm}, s{sBias}
                    v_cndmask_b32 v{vGs}, v{vBig}, v{vGd}, {sp(sFm)}
                    v_cndmask_b32 v{vGl}, v{vGl}, v{vBig}, {sp(sFm)}
                    s_mov_b32 s{sBias}, 0
                    """)
            look = xg and c - 1 in fc['xc']
            if look:
                k = list(fc['xc']).index(c - 1)
                P(f"s_and_b32 s{sFm}, s{sFC}, {~8191 & 0xffffffff:#x}")
                P(f"s_add_u32 s{sFm}, s{sFm}, {1280 + 128*(k - c)}")
                P(f"v_writelane_b32 v{vFl}, s{sFm}, 32")
            elif xg and c - 2 in fc['xc']:
                P(f"v_writelane_b32 v{vFl}, 2.0, 32")
            fcs['ids'][c] = P.vm(f"buffer_load_dword v{vFd}, v{vFl}, {srd(rWS)}, 0 offen offset:{128*c}")
            P.vm(f"buffer_store_dword v{vFt}, v{vFs}, {srd(rWS)}, s{sFC} offen offset:{128*c}")
            if xg and i in xcs: P.vm(f"buffer_store_dword v{vFt}, v{vGs}, {srd(rWS)}, 0 offen offset:{2048 + 128*xcs.index(i)} sc1")
        if xg and i - fc['xd'] in xcs:
            fcs['g'] = P.vm(f"buffer_load_dword v{vGd}, v{vGl}, {srd(rWS)}, 0 offen offset:{2048 + 128*xcs.index(i - fc['xd'])} sc1")
        if xg and i - fc['xd'] - WM - 1 in xcs:
            c = cps.index(i - fc['xd'] - WM - 1)
            P.wait(fcs['g'])
            P(f"""
            v_cmp_eq_u32 {sp(sFm)}, v{vFt}, v{vGd}
            s_bcnt1_i32_b32 s{sFm}, s{sFm}
            v_add_u32 v{vGd}, s{sFm}, v{vFt}
            """)
            P.vm(f"buffer_store_dword v{vGd}, v{vGs}, {srd(rWS)}, 0 offen offset:{128*xcs.index(cps[c])}")
        if i - WM - 1 in cps:
            c = cps.index(i - WM - 1)
            P.wait(fcs['ids'].pop(c))
            pd = fc['Pd'] if not fc['cps'] else ((cps[c+1] - cps[c]) if c + 1 < len(cps) else NS - i)
            g = int(round(fc['gain'] * pd / 32 * 256))
            if fc['s3'] and i >= 150 and not fcs.get('s3'):
                fcs['s3'] = True
                P(f"""
                s_and_b32 s{sBoost}, s2, 3
                s_cmp_eq_u32 s{sBoost}, 3
                s_cselect_b32 s{sBoost}, {fc['s3']}, 0
                s_add_i32 s{sTagQ}, s{sTagQ}, s{sBoost}
                """)
            P(f"""
            v_cmp_eq_u32 {sp(sFm)}, v{vFt}, v{vFd}
            s_bcnt1_i32_b32 s{sBoost}, s{sFm}
            s_mul_i32 s{sBoost}, s{sBoost}, {g}
            s_sub_i32 s{sBoost}, s{sBoost}, {int(fc['r0'] * 32)*g}
            """)
            if xg and c - 1 in fc['xc']:
                P(f"""
                v_readlane_b32 s{sFm}, v{vFd}, 32
                s_sub_u32 s{sFm}, s{sFm}, s{sTag}
                s_mul_i32 s{sBias}, s{sFm}, {int(xg*256)}
                s_sub_i32 s{sBias}, s{sBias}, {int(xg*256*fc['x0'])}
                s_cmp_lt_u32 s{sFm}, 8
                s_cselect_b32 s{sBias}, s{sBias}, 0
                """)
            if xg and (fc['hold'] or c - 1 in fc['xc']): P(f"s_add_i32 s{sBoost}, s{sBoost}, s{sBias}")
            P(f"s_ashr_i32 s{sBoost}, s{sBoost}, 8")
            if fc['tab']: P(f"s_add_i32 s{sBoost}, s{sBoost}, s{sTagQ}")
            fcs['start'] = i + 1

    nk, nv = 32, 160
    jw = 0
    bi = 0; lastbg = -1
    cur = None
    def consume_one():
        nonlocal nk, nv
        if st['kok'] and nk < 160 and nk <= land[0]:
            k_consume(nk); nk += 1
        elif st['vok'] and nv <= land[0]:
            v_consume(nv); nv += 1
        else: return False
        slots.extend(freed); freed.clear()
        return True
    def splittable(items, n):
        full = True; open_br = False
        for it in items[:n]:
            if it[0] == 'i':
                t = it[1]
                if t.startswith(('s_mov_b32 exec', 's_mov_b64 exec')): full = t.endswith('-1') and 'b64' in t
                if t.startswith('s_cbranch_scc'): open_br = True
            elif it[0] == 'l': open_br = False
        last = items[n-1]
        if last[0] == 'i' and last[1].startswith(('s_cmp', 's_cbranch', 's_getpc')): return False
        return full and not open_br
    minfree = 99
    for i in range(NS):
        m0 = len(P.ir)
        issue(i); fc_step(i)
        if i in bars and not barpre: P("s_barrier")
        if i + 1 == hpos: hello_store()
        if i + 1 == fast: block2()
        if i + 1 < len(first):
            for _ in range(first[i+1]): wq_load()
        minfree = min(minfree, len(slots))
        used = lambda: sum(cost(x) for x in P.ir[m0:])
        consume_one()
        lim = 10**9 if i == S0 else budget
        while True:
            if cur is None:
                if bi < len(bg) and bg[bi][0] <= i and lastbg + bg[bi][2] <= i and used() < lim:
                    keep = P.ir; P.ir = []
                    flag = bg[bi][1]()
                    cur = [P.ir, flag, list(freed), 0]; freed.clear(); P.ir = keep; bi += 1
                    if bg[bi-1][1] not in (c_setup, c_wsw, c_hello2, c_tlb): lim = min(lim, used() + budget) if i == S0 else lim
                else: break
            items = cur[0]; n = cur[3]; u = used()
            while n < len(items) and not (u >= lim and n > cur[3] and splittable(items, n)):
                u += cost(items[n]); n += 1
            P.ir.extend(items[cur[3]:n]); cur[3] = n
            if n < len(items): break
            if cur[1]: st[cur[1]] = True
            slots.extend(cur[2]); cur = None; lastbg = i
        c = 1
        while c < maxcatch and (used() < budget or len(slots) < 3) and consume_one(): c += 1
    assert bi == len(bg) and cur is None and nk == 160, (bi, len(bg), nk)
    endlag = NS - nv
    stamp("lastiss")
    P("; ---- tail begins")
    if spinif in ("retry", "ns"): P(f"s_mov_b32 s1, s{sSpin}")
    if tpad is not None:
        P("s_branch L_tail"); P.raw(f".p2align {tpad[0]}")
        if tpad[1]: P.raw(f".fill {tpad[1]}, 4, 0xbf800000")
        P.label("L_tail")
    def wo_next():
        nonlocal jw
        if ytail == jw: c_yw()
        if btail == jw: c_br3()
        wo_load(jw); jw += 1
    while tight and nv < NS:
        if nv == NS + jw - wopace[0] and nv < NS - 1:
            P.wait(sid[nv]); wo_next()
        v_consume(nv); nv += 1
    while tight and jw < 8: wo_next()
    while nv < NS:
        for _ in range(wolate):
            if jw < 8:
                if wopace:
                    tgt = sid[min(NS - 1, NS + jw - wopace[0])]
                    if wopace[1] is None: P.wait(tgt)
                    else: P.cwait(tgt, None, [f"s_cmp_gt_i32 s{sBoost}, {wopace[1]}"])
                if ytail == jw: c_yw()
                if btail == jw: c_br3()
                wo_load(jw); jw += 1
        v_consume(nv); nv += 1
    while jw < 8: wo_load(jw); jw += 1
    stamp("vdone")

    r = vWQ
    if not rdw:
        for q in range(4): P(f"v_mul_f32 v{vAcc+q}, v{vAcc+q}, v{vWt}")
    red_write([(vAcc, 0)])
    P("s_waitcnt lgkmcnt(0)")
    P("s_barrier")
    P(f"s_cmp_lg_u32 s{sWv}, 0" if bpub else f"s_cmp_eq_u32 s{sWv}, 3")
    P("s_cbranch_scc1 L_near_o")
    for k in range(4): P(f"ds_read2st64_b32 {v2(r+2*k)}, v{vAr} offset0:{L_RED//256+2*k} offset1:{L_RED//256+2*k+1}")
    if rdw:
        for k in range(4):
            P(f"s_waitcnt lgkmcnt({3-k})")
            P(f"v_add_f32 v{r+2*k}, v{r+2*k}, v{r+2*k+1}")
            P(f"v_mul_f32 v{r}, v{r}, v{vW4}" if k == 0 else f"v_fmac_f32 v{r}, v{r+2*k}, v{vW4+k}")
    else:
        P("s_waitcnt lgkmcnt(0)")
        sum8(r, r)
    if lean: P(f"v_cvt_pk_bf16_f32 v{r}, v{r}, v{r}")
    P(f"v_bfi_b32 v{r}, v{vFF}, v{vTb}, v{r}")
    t = f"buffer_store_dword v{r}, v{vL4}, {srd(rWS)}, s{sOp} offen"
    if swap: P.vm(t + " sc1"); P.label("L_near_o")
    else: publish("o", t)
    stamp("opub")
    P(f"""
    s_and_b32 s{sT0}, s{sCB}, 15
    s_cmp_ge_u32 s{sT0}, 14
    s_cbranch_scc1 L_done
    """)
    g = vQA; sMiss = sFm
    def ppoll(Q, name, lds, sets, dst, mid=None):
        n = len(lds); D = len(sets)
        def first():
            for k in range(n): Q(lds[k].replace("@", v4(sets[0]+4*k)))
        mid(Q, n, first)
        Q(f"s_mov_b64 {sp(sMiss)}, -1")
        if D > 1:
            Q(f"s_not_b32 s{sT0}, s{sTag}")
            for b in sets[1:]: Q(f"v_mov_b32 v{b}, s{sT0}")
        Q.label(f"L_poll{name}")
        for d in list(range(1, D)) + [0]:
            b = sets[d]
            Q(f"s_waitcnt vmcnt({n*(D-1)})")
            tagcheck(Q, range(b, b+4*n), [f's{x}' for x in [sTag] + sG[5:8]], 0xff)
            Q("s_wqm_b64 vcc, vcc")
            Q(f"s_andn2_b64 exec, {sp(sMiss)}, vcc")
            for k in range(4*n): Q(f"v_and_b32 v{dst+k}, 0xffffff00, v{b+k}")
            Q(f"s_and_b64 {sp(sMiss)}, {sp(sMiss)}, vcc")
            Q(f"s_cbranch_scc0 L_got{name}")
            Q(f"s_mov_b64 exec, {sp(sMiss)}")
            for k in range(n): Q(lds[k].replace("@", v4(b+4*k)))
            Q("s_mov_b64 exec, -1")
        Q(f"s_add_u32 s{sSpin}, s{sSpin}, 1")
        Q(f"s_cmp_gt_u32 s{sSpin}, 0x20000")
        Q(f"s_cbranch_scc0 L_poll{name}")
        Q.label(f"L_got{name}")
        Q("s_mov_b64 exec, -1")
    def mid(Q, n, first):
        if opos == 0: first()
        for q in range(4):
            Q(f"s_waitcnt vmcnt({(n if q >= opos else 0) + 6 - 2*q + sum(1 for z in (ytail, btail) if z is not None and z > 2*q+1)})")
            if q + 1 == opos: first()
            for e in range(8):
                Q(f"v_perm_b32 v{vWO+4*e+q}, v{vQD+4*(2*q+1)+(e>>1)}, v{vQD+4*(2*q)+(e>>1)}, s{sSel1 if e & 1 else sSel0}")
    if lean:
        ol = [f"buffer_load_dwordx4 {v4(g+4*k)}, v{vOg}, {srd(rWS)}, s{sOg} offen offset:{16*k} sc1" for k in range(2)]
        mid(P, 2, lambda: [P(t_) for t_ in ol])
        P.label("L_chkO")
        P("s_waitcnt vmcnt(0)")
        tagcheck(P, range(g, g+8), [f's{x}' for x in [sTag] + sG[5:8]], 0xff)
        for q in range(4): P(f"v_perm_b32 v{vX+q}, v{g+2*q+1}, v{g+2*q}, s{sSel1}")
        P("s_cbranch_vccnz L_pollO")
        P.label("L_gotO")
        P("s_bitcmp1_b32 s2, 5" if swap else "s_cmp_ge_u32 s2, 128")
        P("s_cbranch_scc1 L_addB")
        P.label("L_proj")
        Q = Prog(); Q.label("L_pollO")
        Q(f"s_add_u32 s{sSpin}, s{sSpin}, 1")
        Q(f"s_cmp_gt_u32 s{sSpin}, 0x40000")
        Q("s_cbranch_scc1 L_gotO")
        Q("s_wqm_b64 exec, vcc")
        for t_ in ol: Q(t_)
        Q("s_mov_b64 exec, -1")
        Q("s_branch L_chkO")
        Q.label("L_addB")
        for k in range(8): Q(f"v_and_b32 v{g+k}, 0xffffff00, v{g+k}")
        for k in range(8): Q(f"v_add_f32_dpp v{g+k}, v{g+k}, v{g+k} quad_perm:[2,3,0,1] {FULL}")
        for q in range(4): Q(f"v_cvt_pk_bf16_f32 v{vX+q}, v{g+2*q}, v{g+2*q+1}")
        Q("s_nop 0")
        Q("s_branch L_proj"); slow.insert(0, Q)
        stamp("ogot")
    else:
        ppoll(P, "O", [f"buffer_load_dwordx4 @, v{vOg}, {srd(rWS)}, s{sOg} offen offset:{16*k} sc1" for k in range(2)], [g+8, g+16, g+24][:DO], g, mid)
        P("s_bitcmp1_b32 s2, 5" if swap else "s_cmp_ge_u32 s2, 128")
        P("s_cbranch_scc1 L_addB")
        P.label("L_proj")
        Q = Prog(); Q.label("L_addB")
        for k in range(8): Q(f"v_add_f32_dpp v{g+k}, v{g+k}, v{g+k} quad_perm:[2,3,0,1] {FULL}")
        Q("s_branch L_proj"); slow.insert(0, Q)
        stamp("ogot")
        for q in range(4): P(f"v_cvt_pk_bf16_f32 v{vX+q}, v{g+2*q}, v{g+2*q+1}")
    for e in range(8): P(f"v_mfma_f32_16x16x32_bf16 {v4(vQD+4*e)}, {v4(vX)}, {v4(vWO+4*e)}, 0")
    for e in range(8):
        h = e & 1
        P(f"v_add_f32_dpp v{r+(e >> 1)}, v{vQD+4*e+1-h}, v{vQD+4*e+h} row_ror:8 row_mask:0xf bank_mask:{0xc if h else 0x3:#x}")
    P(f"""
    ds_write_b128 v{vPw}, {v4(r)} offset:{L_QRED}
    s_waitcnt lgkmcnt(0)
    s_barrier
    ds_read2st64_b32 {v2(r)}, v{vPr} offset0:{L_QRED//256} offset1:{L_QRED//256+4}
    ds_read2st64_b32 {v2(r+2)}, v{vPr} offset0:{L_QRED//256+8} offset1:{L_QRED//256+12}
    {('s_cmp_lg_u32 s%d, 0' % sFar) if swap else ('s_cmp_eq_u64 %s, -1' % sp(sYx))}
    s_waitcnt lgkmcnt(0)
    v_add_f32 v{r}, v{r}, v{r+1}
    v_add_f32 v{r+2}, v{r+2}, v{r+3}
    v_add_f32 v{r}, v{r}, v{r+2}
    v_bfi_b32 v{r+1}, v{vFF}, v{vTb}, v{r}
    s_mov_b64 exec, {sp(sYx)}
    """)
    t = f"buffer_store_dword v{r+1}, v{vYo}, {srd(rWS)}, s{sYp} offen"
    if swap: publish("y", t, True); P(f"s_cmp_eq_u64 {sp(sYx)}, -1")
    else: P.vm(t + " sc1")
    stamp("yapub")
    P("s_cbranch_scc1 L_done")
    f = vP
    if leany:
        P("s_mov_b64 vcc, -1")
        P.label("L_pollY")
        P("s_wqm_b64 exec, vcc")
        for k, vy in enumerate((vY0, vY1)): P(f"buffer_load_dwordx4 {v4(f+4*k)}, v{vy}, {srd(rWS)}, s{sYg} offen sc1")
        P(f"""
        s_mov_b64 exec, -1
        ds_bpermute_b32 v{r+2}, v{vBp}, v{r}
        s_add_u32 s{sSpin}, s{sSpin}, 1
        s_cmp_gt_u32 s{sSpin}, 0x40000
        s_waitcnt vmcnt(0) lgkmcnt(0)
        s_cbranch_scc1 L_gotY
        """)
        tagcheck(P, range(f, f+8), [f's{x}' for x in [sTag] + sG[5:8]], 0xff)
        P("s_cbranch_vccnz L_pollY")
        P.label("L_gotY")
        stamp("fgot")
        for k in range(8): P(f"v_and_b32 v{f+k}, 0xffffff00, v{f+k}")
    else:
        P("s_mov_b64 exec, -1")
        f = vP
        def midy(Q, n, first): first(); Q(f"ds_bpermute_b32 v{r+2}, v{vBp}, v{r}")
        ppoll(P, "Y", [f"buffer_load_dwordx4 @, v{vy}, {srd(rWS)}, s{sYg} offen sc1" for vy in (vY0, vY1)], [vWO+8*k for k in range(4)][:DY], f, midy)
        stamp("fgot")
    P(f"s_not_b64 exec, {sp(sOwn)}")
    for k in range(4): P(f"v_add_f32 v{f+k}, v{f+k}, v{f+4+k}")
    P("s_mov_b64 exec, -1")
    P(f"""
    v_permlane32_swap_b32 v{f}, v{f+1}
    v_permlane32_swap_b32 v{f+2}, v{f+3}
    v_add_f32 v{f}, v{f}, v{f+1}
    v_add_f32 v{f+2}, v{f+2}, v{f+3}
    v_permlane16_swap_b32 v{f}, v{f+2}
    v_add_f32 v{f}, v{f}, v{f+2}
    """)
    xlane("v_add_f32", f, None, ["r8"])
    if not leany: P("s_waitcnt lgkmcnt(0)")
    P(f"v_add_f32 v{f}, v{f}, v{r+2}")
    P(f"""
    v_cvt_pk_bf16_f32 v{f}, v{f}, v{f}
    s_mov_b32 exec_lo, 0x00ff00ff
    s_mov_b32 exec_hi, 0x00ff00ff
    """)
    P.vm(f"buffer_store_short v{f}, v{vOo}, {srd(rOUT)}, s{sOutO} offen")
    P(f"""
    s_cmp_lg_u32 s{sOutO}, 0
    s_cbranch_scc1 L_done
    s_mov_b64 exec, 1
    v_mov_b32 v{f+2}, s{sTag}
    """)
    P.vm(f"buffer_store_dword v{f+2}, v{vOo}, {srd(rWS)}, 0 offen")
    P.label("L_done")
    if spin:
        if spinif == "far": P(f"s_cmp_eq_u32 s{sFar}, 0\ns_cbranch_scc1 L_end")
        if spinif == "retry": P(f"s_cmp_eq_u32 s1, 0\ns_cbranch_scc1 L_end")
        if spinif in ("nq", "ns", "far1"): P(f"s_waitcnt lgkmcnt(0)\ns_mul_i32 s1, s1, 100\ns_add_u32 s{sSt}, s{sSt}, s1")
        if probe:
            P(f"s_waitcnt lgkmcnt(0)\ns_sub_u32 s{sLim}, s{sPr}, s{sSt}\ns_mul_i32 s{sLim}, s{sLim}, {probe[1]}\ns_add_u32 s{sLim}, s{sLim}, {spin}")
            if len(probe) > 2: P(f"s_and_b32 s{sT0}, s2, {probe[2]}\ns_cmp_lg_u32 s{sT0}, {probe[3]}\ns_cbranch_scc1 L_end")
        P.label("L_spin")
        P(f"""
        s_memrealtime {sp(sNow)}
        s_waitcnt lgkmcnt(0)
        s_sub_u32 s{sNow}, s{sNow}, s{sSt}
        s_cmp_lt_i32 s{sNow}, {('s%d' % sLim) if probe else spin}
        s_cbranch_scc1 L_spin
        """)
    if diag:
        P("s_mov_b64 exec, -1")
        stamp("end")
        P(f"""
        s_waitcnt lgkmcnt(0) vmcnt(0)
        s_lshl_b32 s{sT0}, s2, 2
        s_add_u32 s{sT0}, s{sT0}, s{sWv}
        s_lshl_b32 s{sT0}, s{sT0}, 7
        s_add_u32 s{sT0}, s{sT0}, {WS_DIAG}
        v_mov_b32 v{vT1}, 0
        s_mov_b64 exec, 1
        """)
        def dump(sreg, off):
            P(f"v_mov_b32 v{vT0}, s{sreg}")
            P.vm(f"buffer_store_dword v{vT0}, v{vT1}, {srd(rWS)}, s{sT0} offen offset:{off}")
        for n, (name, rr) in enumerate(stamps): dump(rr, 4*n)
        dump(sSpin, 4*len(stamps)); dump(sFar, 116)
        P(f"s_getreg_b32 s{sT1}, hwreg(HW_REG_XCC_ID)"); dump(sT1, 120)
        P(f"s_getreg_b32 s{sT1}, hwreg(HW_REG_HW_ID)"); dump(sT1, 124)
    P.label("L_end")
    P("s_endpgm")

    body, stats = P.render()
    for Q in slow: body += Q.render()[0]
    body += 'L_code_end:\n'
    head = open("cdna_kernels/" + KNAME[:-7] + ".s.ref").read().split("; Override launch")[0]
    txt = head + f"; @launch grid=(256,1,1) block=(256,1,1) lds={L_TOTAL}\n" + HEADER
    txt += f'.amdgcn_target "amdgcn-amd-amdhsa--gfx950"\n.text\n.globl {KNAME}\n.p2align 8\n.type {KNAME},@function\n{KNAME}:\n'
    txt += body
    txt += f""".section .rodata,"a"
.p2align 6
.amdhsa_kernel {KNAME}
  .amdhsa_next_free_vgpr 512
  .amdhsa_next_free_sgpr 102
  .amdhsa_accum_offset 256
  .amdhsa_group_segment_fixed_size 0
  .amdhsa_kernarg_size 104
  .amdhsa_user_sgpr_count 2
  .amdhsa_user_sgpr_kernarg_segment_ptr 1
  .amdhsa_system_sgpr_workgroup_id_x 1
.end_amdhsa_kernel
"""
    ids = list(range(256))
    act = [L for L in ids if (((L >> 6) & 1)*8 + (L & 7)) < 14]
    fin = [L for L in act if ((L >> 3) & 7) == (L & 7)]
    if prm:
        mm = lambda L: ((L >> 6) & 1)*8 + 2*(L & 3) + ((L >> 2) & 1)
        act = [L for L in ids if mm(L) < 14]; fin = [L for L in act if (mm(L) & 7) == ((L >> 3) & 7)]
    if swap:
        mm = lambda L: 4*((L >> 3) & 3) + (L >> 6)
        act = [L for L in ids if mm(L) < 14]; fin = [L for L in act if (mm(L) & 7) == (L & 7)]
    return txt, dict(stats, vhw=V.hw, shw=S.hw, minfree=minfree, endlag=endlag, stamps=[n for n, _ in stamps], who=dict(ogot=act, yapub=act, fgot=fin))

if __name__ == "__main__":
    import json
    kw = json.loads(sys.argv[2]) if len(sys.argv) > 2 else {}
    t, s = gen(**kw)
    open(sys.argv[1], "w").write(t)
    s.pop('who')
    print(s, file=sys.stderr)
```

```python
import sys, math, struct
from asmlib import Prog, Alloc
KNAME = "concat_heads__mha_block_cached__sliding_block_cached__decode_kernel"

WS_Q, WS_SC, WS_O, WS_FC, WS_Y, WS_G, WS_DIAG = 0x10000, 0x40000, 0x100000, 0x130000, 0x140000, 0x180000, 0x800000
L_QRED, L_ST, L_RED, L_TOTAL = 0, 4096, 4352, 4352 + 3*2048
CS = struct.unpack('<I', struct.pack('<f', math.log2(math.e) / 16.0))[0]
BIG = 0x7ff00000
FULL = "row_mask:0xf bank_mask:0xf"

AUXCOST = [8]
def cost(it):
    if it[0] == 'vm': return 8 if ' a[' in it[1] or 'store' in it[1] else AUXCOST[0]
    if it[0] != 'i': return 2
    t = it[1]
    if t.startswith(';'): return 0
    if t.startswith('v_mfma'): return 16
    if t.startswith(('v_exp', 'v_log', 'v_rcp')): return 10
    if '_dpp' in t or t.startswith('v_permlane'): return 8
    if t.startswith('ds_'): return 12
    if t.startswith('s_waitcnt'): return 60
    if t.startswith('s_barrier'): return 30
    return 4

HEADER = """;
; One launch, 256 workgroups x 4 waves (one wave per SIMD); generated by a script, straight-line code.
; Logical id = b(2) | x(3) | t(3); the 32 workgroups with the same x form a class (A heads 2x, 2x+1, B kv head x).
;   1. q = x @ wq: every workgroup computes one 32-column block for the 4 batches and hands it to its class.
;   2. K streams (B window, then A), keys split over the workgroups of a (batch, head); MFMA scores, rounded to bf16.
;   3. scores are exchanged inside the (batch, x) group; every wave takes the true max / sum of its keys, the
;   4. V streams split along the head dimension (64 columns per workgroup); MFMA P.V gives normalised o slices.
;   5. o is written through for everyone while wo streams in; 224 workgroups multiply it with a 256 x 64 block
;      of wo (a class owns two column blocks of one branch); the 16 partial sums of an output are handed to
;      one wave of the class, added and stored as bf16.
; while when the workgroup reached a checkpoint later than most of its class, or its class later than the
; Hand-offs carry an in-band tag = ws[0] + constant (ws[0] is replaced by the tag at the end), so data of an
; earlier launch is never accepted. Class-local hand-offs stay in L2 only after all 32 workgroups of the class
; have been seen (through d_debug) on this XCC; otherwise every store and load of them is sc1.
"""

def gen(W=5, qg=33, sg=19, wflag="", woflag="nt", diag=False, skip=(), spin=0, forcefar=False, fc=None, budget=140, maxcatch=2,
        bpub=283, DO=1, DY=2, wolate=1, auxcost=70, wsl=32, first=(5, 4), hello=5, tpad=None, ipf=7, ipf0=True, tlb=None, qw=True, zones=(), rot=None, swap=True, ow=None, W0=(24, 6), yw=(287, 'p'), noO=True, fakeQ=0, xpos=0, hpos=0, spinif=None, probe=None, fast=3, top=True, recheck=120, prm=False, wopace=(6, None), opos=3, ypf=False, ytail=6, bsplit=255, btail=2, late=1, tight=True, rdw=True, S00=None, qat=None, help3=0, lean=True, leany=False, onebar=True, bars=(33, 288, 1), barpre=True, wgfc=True, fakekd=False):
    AUXCOST[0] = auxcost
    if len(bars) == 3: bars = range(*bars)
    P = Prog()
    V = Alloc('v', 1, 256); S = Alloc('s', 3, 100)
    slots = list(range(64))
    def a4(s): return f"a[{4*s}:{4*s+3}]"
    def v4(r): return f"v[{r}:{r+3}]"
    def v3(r): return f"v[{r}:{r+2}]"
    def v2(r): return f"v[{r}:{r+1}]"
    def srd(r): return f"s[{r}:{r+3}]"
    def sp(r): return f"s[{r}:{r+1}]"
    def vcc(m): P(f"s_mov_b32 vcc_lo, {m:#x}"); P(f"s_mov_b32 vcc_hi, {m:#x}")
    slow = []
    stamps = []
    def stamp(name):
        if probe and name == probe[0]:
            P(f"s_memrealtime {sp(sPr)}")
        if diag:
            r = S.get(2); stamps.append((name, r)); P(f"s_memrealtime {sp(r)}")
    fcs = dict(start=None, ids={})
    if probe: sPr = S.get(2); sLim = S.get()
    st = dict(kok=False, vok=False, lgk=False, tag=False)
    if fc is not None:
        fc = dict(dict(first=16, Pd=32, dW=2, r0=0.55, gain=3.2, xg=4.5, x0=3.5, xd=1, xc=(1, 3, 5, 7), hold=True, lead=4*13+1, scale=False, neg=None, ns=2, s3=14, cps=(16, 44, 76, 108, 140, 170, 198, 224, 246, 264), tab=(4, -6, 2, -6, 8, 0, 6, -4)), **fc)
        WM = W + fc['dW']
        cps = list(fc['cps'] or range(fc['first'], 288 - WM - 6, fc['Pd']))
    else:
        WM = W; cps = []

    rX, rWQ, rBK, rBV, rAK, rAV, rWO, rWS, rOUT = [S.get(4) for _ in range(9)]
    sT0, sT1, sI, sWv, sTag, sOff, sAux, sSel0, sSel1, sC, sSpin, sCB, sTagQ, sFar, sBoost, sFC, sKo = [S.get() for _ in range(17)]
    vLane, vT0, vT1, vT2, vBig = [V.get() for _ in range(5)]
    vXo, vWQo, vKo, vVo = [V.get() for _ in range(4)]
    def desc(r, sz):
        P(f"s_mov_b32 s{r+2}, {sz}"); P(f"s_mov_b32 s{r+3}, 0x20000")
    sDbg = S.get(2); vH = V.get(2)
    vXT = V.get(); vHp = V.get()
    def code_pf_top():
        P("; the straight-line code below is read once: each workgroup pulls its share of it towards its L2 now")
        P(f"s_getpc_b64 {sp(rOUT+2)}")
        P.label("L_pc")
        P(f"""
        s_lshr_b32 s{sT0}, s2, 3
        s_mul_i32 s{sT0}, s{sT0}, ((L_code_end-L_pc-{128*(ipf-1)+4})/124)*4
        v_min_u32 v{vT1}, {ipf-1}, v0
        v_lshl_add_u32 v{vT1}, v{vT1}, 7, s{sT0}
        """)
        P.vm(f"global_load_dword v{vXT}, v{vT1}, {sp(rOUT+2)}")
    def code_pf():
        if top: return
        P(f"s_getpc_b64 {sp(rOUT+2)}")
        P.label("L_pc")
        P(f"""
        v_and_b32 v{vT0}, {31 if ipf > 1 else 255}, v{vH}
        v_min_u32 v{vT1}, {ipf-1}, v0
        v_mad_u32_u24 v{vT0}, v{vT0}, {ipf}, v{vT1}
        v_lshlrev_b32 v{vT0}, 7, v{vT0}
        v_min_u32 v{vT0}, L_code_end-L_pc-4, v{vT0}
        """)
        P.vm(f"global_load_dword v{vXT}, v{vT0}, {sp(rOUT+2)}")
    hl1 = f"""s_load_dwordx2 {sp(sDbg)}, s[0:1], 88
    s_getreg_b32 s{sTagQ}, hwreg(HW_REG_XCC_ID, 0, 4)
    ; byte (id&7)*32 + (id>>3) of the zeroed debug buffer reports this workgroup's XCC
    s_mul_i32 s{sT0}, s2, 0x101
    s_bfe_u32 s{sT0}, s{sT0}, 0x80003
    v_mov_b32 v{vH}, s{sT0}
    v_add_u32 v{vH+1}, s{sTagQ}, 1"""
    if fast:
        P("s_cmpk_ge_u32 s2, 256")
        P("s_cbranch_scc1 L_end")
        stamp("start")
        if spin:
            sSt = S.get(2); sNow = S.get(2); P(f"s_memrealtime {sp(sSt)}")
        P(f"""
        s_load_dwordx2 {sp(rBK)}, s[0:1], 48
        s_load_dwordx2 {sp(rWS)}, s[0:1], 96
        """)
        if top: code_pf_top()
        P(f"""
        ; logical id = b(2) | x(3) | t(3): workgroups that are 8 apart share x (L2 locality only)
        s_and_b32 s{sCB}, s2, 7
        s_lshr_b32 s{sI}, s2, 6
        s_lshl3_add_u32 s{sI}, s{sI}, s{sCB}
        s_bfe_u32 s{sT1}, s2, 0x30003
        s_lshl4_add_u32 s{sOff}, s{sI}, 12
        s_lshl3_add_u32 s{sOff}, s{sOff}, s{sT1}
        s_lshl_b32 s{sOff}, s{sOff}, 14
        s_lshl_b32 s{rBK+2}, 1, 26
        s_mov_b32 s{rBK+3}, 0x20000
        v_lshrrev_b32 v{vT0}, 6, v0
        v_lshrrev_b32 v{vT2}, 2, v0
        v_and_b32 v{vT1}, 3, v0
        v_and_b32 v{vXo}, 3, v{vT2}
        v_lshl_add_u32 v{vKo}, v{vT0}, 2, v{vXo}
        v_lshl_add_u32 v{vKo}, v{vKo}, 6, v{vT1}
        v_and_b32 v{vWQo}, 12, v{vT2}
        v_add_lshl_u32 v{vKo}, v{vKo}, v{vWQo}, 4
        """)
        if fakekd:
            P(f"v_and_b32 v{vWQo}, 32, v0")
            P(f"v_mad_u32_u24 v{vKo}, v{vWQo}, 12, v{vKo}")
        P("s_waitcnt lgkmcnt(0)")
        stamp("karg")
    def block2():
        P(f"""
        s_lshr_b32 s{sKo}, s2, 7
        s_mul_i32 s{sKo}, s{sKo}, 40
        s_load_dwordx2 {sp(rX)}, s[0:1], s{sKo}
        s_load_dwordx2 {sp(rWQ)}, s[0:1], s{sKo} offset:24
        {hl1}
        s_bfe_u32 s{sT0}, s2, 0x40003
        s_lshl4_add_u32 s{sCB}, s{sCB}, s{sT0}
        s_lshl_b32 s{sAux}, s{sCB}, 6
        s_lshl3_add_u32 s2, s{sI}, s{sT1}
        v_readfirstlane_b32 s{sWv}, v{vT0}
        v_lshlrev_b32 v{vWQo}, 12, v{vT2}
        v_add_lshl_u32 v{vWQo}, v{vWQo}, v{vT1}, 4
        v_cmp_gt_u32 vcc, 56, v{vT2}
        v_mad_u32_u24 v{vXo}, v{vXo}, 55, v{vT2}
        v_add_lshl_u32 v{vXo}, v{vXo}, v{vT1}, 4
        v_cndmask_b32 v{vXo}, 2.0, v{vXo}, vcc
        """)
        if ipf and ipf0: code_pf()
        if help3:
            P(f"""
            ; the fourth 128-byte line of every KiB is slow to fetch: all 16 workgroups of the block row share its first touch
            s_and_b32 s{sT0}, s{sCB}, 15
            s_mul_i32 s{sT0}, s{sT0}, {28*8192 - 64}
            s_add_u32 s{sT0}, s{sT0}, s{sAux}
            v_and_b32 v{vT0}, 63, v0
            v_cmp_gt_u32 vcc, 7, v{vT0}
            v_lshrrev_b32 v{vT1}, 6, v0
            v_mad_u32_u24 v{vT0}, v{vT1}, 7, v{vT0}
            v_lshlrev_b32 v{vT0}, 13, v{vT0}
            v_cndmask_b32 v{vT0}, 2.0, v{vT0}, vcc
            """)
        desc(rX, 3584); desc(rWQ, 3670016)
        P("s_waitcnt lgkmcnt(0)")
        hello_store()
        if help3: P.vm(f"buffer_load_dword v{vBig}, v{vT0}, {srd(rWQ)}, s{sT0} offen offset:384".replace(f"v{vBig},", f"v{vHp},"))
    if not fast:
        P("s_cmp_ge_u32 s2, 256")
        P("s_cbranch_scc1 L_end")
        stamp("start")
        if spin:
            sSt = S.get(2); sNow = S.get(2); P(f"s_memrealtime {sp(sSt)}")
        if top == "first": code_pf_top()
        P(f"""
        s_lshr_b32 s{sKo}, s2, 7
        s_mul_i32 s{sKo}, s{sKo}, 40
        s_load_dwordx2 {sp(rBK)}, s[0:1], 48
        s_load_dwordx2 {sp(rX)}, s[0:1], s{sKo}
        s_load_dwordx2 {sp(rWQ)}, s[0:1], s{sKo} offset:24
        s_load_dwordx2 {sp(rWS)}, s[0:1], 96
        {hl1}
        """)
        if probe and probe[0] == "kfast": P("s_waitcnt lgkmcnt(0)"); stamp("kfast")
        if ipf and ipf0: code_pf()
        P(f"""
        ; logical id = b(2) | x(3) | t(3): workgroups that are 8 apart share x (L2 locality only)
        s_and_b32 s{sT0}, s2, 7
        s_bfe_u32 s{sT1}, s2, 0x30003
        s_bfe_u32 s{sCB}, s2, 0x40003
        s_lshr_b32 s2, s2, 6
        s_lshl3_add_u32 s2, s2, s{sT0}
        s_lshl_b32 s{sOff}, s2, 21
        s_lshl3_add_u32 s2, s2, s{sT1}
        s_lshl4_add_u32 s{sCB}, s{sT0}, s{sCB}
        s_lshl_b32 s{sAux}, s{sCB}, 6
        v_lshrrev_b32 v{vT0}, 6, v0
        v_lshrrev_b32 v{vT2}, 2, v0
        v_readfirstlane_b32 s{sWv}, v{vT0}
        v_and_b32 v{vT1}, 3, v0
        v_lshlrev_b32 v{vWQo}, 12, v{vT2}
        v_add_lshl_u32 v{vWQo}, v{vWQo}, v{vT1}, 4
        v_cmp_gt_u32 vcc, 56, v{vT2}
        v_and_b32 v{vKo}, 3, v{vT2}
        v_mad_u32_u24 v{vXo}, v{vKo}, 55, v{vT2}
        v_add_lshl_u32 v{vXo}, v{vXo}, v{vT1}, 4
        v_lshl_add_u32 v{vKo}, v{vT0}, 2, v{vKo}
        v_cndmask_b32 v{vXo}, 2.0, v{vXo}, vcc
        v_lshl_add_u32 v{vKo}, v{vKo}, 6, v{vT1}
        v_and_b32 v{vT2}, 12, v{vT2}
        v_add_lshl_u32 v{vKo}, v{vKo}, v{vT2}, 4
        s_or_b32 s{sT0}, s{sT1}, 96
        s_lshl_b32 s{sT0}, s{sT0}, 14
        s_add_u32 s{sOff}, s{sOff}, s{sT0}
        """)
        if fakeQ:
            P(f"""
            v_lshrrev_b32 v{vT0}, 3, v0
            v_mul_u32_u24 v{vWQo}, {7*512}, v{vT0}
            v_and_b32 v{vT0}, 7, v0
            v_add_lshl_u32 v{vWQo}, v{vWQo}, v{vT0}, 4
            s_and_b32 s{sT0}, s{sCB}, 1
            s_mul_i32 s{sT0}, s{sT0}, {224*8192-64}
            s_add_u32 s{sAux}, s{sAux}, s{sT0}
            """)
        desc(rX, 3584); desc(rWQ, 3670016); desc(rBK, 1 << 26)
        if probe and probe[0] == "pre": stamp("pre")
        P("s_waitcnt lgkmcnt(0)")
        stamp("karg")
    def hello_store(): P.vm(f"global_store_byte v{vH}, v{vH+1}, {sp(sDbg)}")
    if hpos == 0 and not fast: hello_store()
    vX = V.get(4, 4); vWQ = V.get(32, 4)
    idwq = []
    def wq_load():
        n = len(idwq); j = n if n < xpos else n - 1
        if n == xpos: idwq.append(P.vm(f"buffer_load_dwordx4 {v4(vX)}, v{vXo}, {srd(rX)}, 0 offen"))
        elif "wq" in skip or (fakeQ and j == 7): idwq.append(None)
        else:
            if j: P(f"s_addk_i32 s{sAux}, 0x2000")
            idwq.append(P.vm(f"buffer_load_dwordx4 {v4(vWQ+4*j)}, v{vWQo}, {srd(rWQ)}, s{sAux} offen {wflag}"))
    first = [0]*fast + list(first or [9])
    assert sum(first) == 9
    for _ in range(first[0]): wq_load()
    vTl = V.get(2)
    def c_wsw():
        P(f"""
        s_mul_i32 s{sT0}, s2, 3072
        s_add_u32 s{sT0}, s{sT0}, {WS_SC}
        v_mov_b32 v{vTl}, s{sT0}
        """)
        if qw:
            P(f"""
            s_lshr_b32 s{sT0}, s2, 7
            s_lshl_b32 s{sT0}, s{sT0}, 9
            s_add_u32 s{sT0}, s{sT0}, s{sCB}
            s_lshl_b32 s{sT0}, s{sT0}, 7
            s_add_u32 s{sT0}, s{sT0}, {(WS_Q - 24*16384) & 0xffffffff}
            v_mul_u32_u24 v{vTl+1}, {16384-128}, v0
            v_add_u32 v{vTl+1}, s{sT0}, v{vTl+1}
            v_cmp_gt_u32 vcc, 24, v0
            v_cndmask_b32 v{vTl}, v{vTl+1}, v{vTl}, vcc
            v_cmp_gt_u32 vcc, 28, v0
            v_cndmask_b32 v{vTl}, 2.0, v{vTl}, vcc
            """)
        elif wsl > 24:
            P(f"""
            v_mul_u32_u24 v{vTl+1}, 768, v{vH}
            v_add_u32 v{vTl+1}, {BIG if noO else WS_O - 24*128}, v{vTl+1}
            v_cmp_gt_u32 vcc, 24, v0
            v_cndmask_b32 v{vTl}, v{vTl+1}, v{vTl}, vcc
            """)
        if wsl > 30:
            P(f"""
            v_lshlrev_b32 v{vTl+1}, 8, v{vH}
            v_add_u32 v{vTl+1}, {WS_FC - 30*128}, v{vTl+1}
            v_cmp_gt_u32 vcc, 30, v0
            v_cndmask_b32 v{vTl}, v{vTl+1}, v{vTl}, vcc
            """)
        if ypf:
            P(f"""
            s_bfe_u32 s{sT0}, s2, 0x10005
            s_lshl_b32 s{sT0}, s{sT0}, 14
            s_sub_u32 s{sT0}, {WS_Y - 32*128}, s{sT0}
            v_lshl_add_u32 v{vTl+1}, v{vH}, 10, s{sT0}
            v_cmp_gt_u32 vcc, 32, v0
            v_cndmask_b32 v{vTl}, v{vTl+1}, v{vTl}, vcc
            s_and_b32 s{sT0}, s2, 0x98
            s_cmp_eq_u32 s{sT0}, 0x98
            s_cselect_b32 s{sT0}, 32, 40
            """)
        P(f"""
        v_lshl_add_u32 v{vTl}, v0, 7, v{vTl}
        v_cmp_gt_u32 vcc, {'s%d' % sT0 if ypf else wsl}, v0
        v_cndmask_b32 v{vTl}, 2.0, v{vTl}, vcc
        """)
        desc(rWS, 1 << 24)
        P.vm(f"buffer_load_dword v{vTl+1}, v{vTl}, {srd(rWS)}, 0 offen sc1")
    stream = []
    for k in range(16): stream.append(("BK", k))
    for k in range(16): stream.append(("BV", k))
    for k in range(128): stream.append(("AK", k))
    for k in range(128): stream.append(("AV", k))
    NS = len(stream)
    sid = {}; sslot = {}; land = [-1]
    def issue(i):
        kind, k = stream[i]
        if k == 0 and kind == "BV":
            assert st['lgk']
            P(f"""
            s_and_b32 s{sI}, s2, 3
            s_mul_i32 s{sI}, s{sI}, {16384-128}
            s_add_u32 s{sI}, s{sI}, {3*131072}
            s_sub_u32 s{sOff}, s{sOff}, s{sI}
            """)
        elif k == 0 and kind[0] == "A" and rot:
            vo = vKo if kind == "AK" else vVo
            P(f"""
            s_lshr_b32 s{sI}, s2, 2
            s_lshl_b32 s{sI}, s{sI}, 21
            v_add_u32 v{vo}, s{sI}, v{vo}
            s_bfe_u32 s{sOff}, s2, {rot[0]:#x}
            s_lshl_b32 s{sOff}, s{sOff}, {rot[1]}
            s_and_b32 s{sI}, s2, 3
            s_lshl_b32 s{sI}, s{sI}, {14 if kind == "AK" else 7}
            s_add_u32 s{sOff}, s{sOff}, s{sI}
            """)
        elif k == 0 and kind[0] == "A":
            P(f"""
            s_lshr_b32 s{sOff}, s2, 2
            s_lshl_b32 s{sOff}, s{sOff}, 21
            s_and_b32 s{sI}, s2, 3
            s_lshl_b32 s{sI}, s{sI}, {14 if kind == "AK" else 7}
            s_add_u32 s{sOff}, s{sOff}, s{sI}
            """)
        elif k and k % 4 == 0 and kind[0] == "B":
            P(f"s_add_u32 s{sOff}, s{sOff}, {0x20000 if kind == 'BK' else 0x14000}")
        elif k and kind[1] == "V":
            P(f"s_addk_i32 s{sOff}, 0x4000")
        elif k and k % 4 == 0:
            P(f"s_add_u32 s{sOff}, s{sOff}, 0x10000")
        if rot and kind[0] == "A" and k and k % 32 == 0: P(f"s_and_b32 s{sOff}, s{sOff}, 0x1fffff")
        wz = [z[2] for z in zones if z[0] <= i < z[1]]
        zt = [z[3] for z in zones if z[0] <= i < z[1] and len(z) > 3]
        if zt and fcs['start'] is not None:
            P.cwait(sid[i-wz[0]], None, [f"s_cmp_gt_i32 s{sBoost}, {zt[0]}"])
            P.cwait(sid[i-W], sid[i-WM], [f"s_cmp_gt_i32 s{sBoost}, {i - fcs['start']}"]); land[0] = max(land[0], i-WM)
        elif wz and fcs['start'] is None:
            P.wait(sid[i-wz[0]]); land[0] = max(land[0], i-wz[0])
        elif wz and fcs['start'] is not None:
            P.cwait(sid[i-wz[0]], sid[i-WM], [f"s_cmp_gt_i32 s{sBoost}, {i - fcs['start']}"]); land[0] = max(land[0], i-WM)
        elif fcs['start'] is not None:
            if fc['neg'] is not None:
                P.cwait(sid[i-W+1], None, [f"s_cmp_ge_i32 s{sBoost}, {-fc['neg'] - fc['ns']*(i - fcs['start'])}"])
            P.cwait(sid[i-W], sid[i-WM], [f"s_cmp_gt_i32 s{sBoost}, {i - fcs['start']}"]); land[0] = max(land[0], i-WM)
        else:
            w0 = W0[1] if (W0 and i < W0[0]) else W
            if i >= w0: P.wait(sid[i-w0]); land[0] = max(land[0], i-w0)
        if i in bars and barpre: P("s_barrier")
        s = slots.pop(0); sslot[i] = s
        r, vo = {"BK": (rBK, vKo), "BV": (rBV, vVo), "AK": (rAK, vKo), "AV": (rAV, vVo)}[kind]
        imm = 0 if kind[1] == "V" else ((k & 3)*128 if fakekd else [0, 512, 256, 768][k & 3])
        o = f" offset:{imm}" if imm else ""
        sid[i] = P.vm(f"buffer_load_dwordx4 {a4(s)}, v{vo}, {srd(r)}, s{sOff} offen{o} nt")
    freed = []
    def release(i): freed.append(sslot[i])

    def xlane(op, x, t, steps):
        for st in steps:
            if st in ("x1", "x2", "r4", "r8"):
                d = {"x1": "quad_perm:[1,0,3,2]", "x2": "quad_perm:[2,3,0,1]", "r4": "row_ror:4", "r8": "row_ror:8"}[st]
                P(f"{op}_dpp v{x}, v{x}, v{x} {d} {FULL}")
            else:
                P(f"v_mov_b32 v{t}, v{x}")
                P(f"v_permlane{st[1:]}_swap_b32 v{x}, v{t}")
                P(f"{op} v{x}, v{x}, v{t}")
    def tagcheck(Q, tags, stag, mask):
        tags = list(tags)
        if isinstance(stag, list): pairs = [(tags[k], tags[k+4], stag[k]) for k in range(4)]
        else: pairs = [(a, b, stag) for a, b in zip(tags[0::2], tags[1::2])]
        for n, (a, b, tg) in enumerate(pairs):
            d = vT0 if n == 0 else (vT1 if n % 2 else vT2)
            Q(f"v_bitop3_b32 v{d}, v{a}, v{b}, {tg} bitop3:0x7e")
            if n and n % 2 == 0: Q(f"v_or3_b32 v{vT0}, v{vT0}, v{vT1}, v{vT2}")
            elif n and n == len(pairs)-1: Q(f"v_or_b32 v{vT0}, v{vT0}, v{vT1}")
        if mask: Q(f"v_and_b32 v{vT0}, {mask:#x}, v{vT0}")
        Q(f"v_cmp_ne_u32 vcc, 0, v{vT0}")
    def gather(name, loads, tags, stag, mask):
        ids = []
        def iss():
            if name+"g" in skip: return
            for n, t in enumerate(loads): ids.append(publish(f"{name}{n}", t.replace(" sc1", "")))
        def chk():
            if name+"g" in skip: return
            P.wait(*ids)
            tagcheck(P, tags, stag, mask)
            P(f"s_cbranch_vccnz L_slow_{name}")
            P.label(f"L_back_{name}")
            Q = Prog()
            Q.label(f"L_slow_{name}")
            Q(f"s_add_u32 s{sSpin}, s{sSpin}, 1")
            Q(f"s_cmp_gt_u32 s{sSpin}, 0x40000")
            Q(f"s_cbranch_scc1 L_back_{name}")
            for t in loads: Q.vm(t)
            Q.waitall()
            tagcheck(Q, tags, stag, mask)
            Q(f"s_cbranch_vccnz L_slow_{name}")
            Q(f"s_branch L_back_{name}")
            slow.append(Q)
        return iss, chk
    def publish(name, txt, tested=False):
        if not tested: P(f"s_cmp_lg_u32 s{sFar}, 0")
        P(f"s_cbranch_scc1 L_far_{name}")
        i = P.vm(txt)
        P.label(f"L_near_{name}")
        Q = Prog(); Q.label(f"L_far_{name}")
        Q.vm(txt.rstrip() + " sc1")
        Q(f"s_branch L_near_{name}"); slow.append(Q)
        return i
    def extract(D, dst, tau, t):
        rs = [r for r in range(4) if r != tau]
        src = D + tau
        for n, r in enumerate(rs):
            last = n == 2
            m = f"row_mask:0xf bank_mask:{1 << tau:#x}" if last else FULL
            P(f"v_add_f32_dpp v{dst if last else t}, v{D+r}, v{src} row_ror:{(4*(tau-r)) % 16} {m}")
            src = t
    def transp(dst, src, e):
        for q in range(4):
            P(f"v_perm_b32 v{dst+q}, v{src+4*(2*q+1)+(e>>1)}, v{src+4*(2*q)+(e>>1)}, s{sSel1 if e & 1 else sSel0}")
    def sum8(r, dst):
        P(f"""
        v_add_f32 v{r}, v{r}, v{r+1}
        v_add_f32 v{r+2}, v{r+2}, v{r+3}
        v_add_f32 v{r+4}, v{r+4}, v{r+5}
        v_add_f32 v{r+6}, v{r+6}, v{r+7}
        v_add_f32 v{r}, v{r}, v{r+2}
        v_add_f32 v{r+4}, v{r+4}, v{r+6}
        v_add_f32 v{dst}, v{r}, v{r+4}
        """)

    bg = []
    def B(at, fn, after=0): bg.append((at, fn, after))

    vSel = V.get(4); vL12, vPw, vPr, vL4 = [V.get() for _ in range(4)]
    def c_setup():
        if swap:
            P(f"s_bfe_u32 s{sKo}, s2, 0x10005")
            P(f"s_mul_i32 s{sKo}, s{sKo}, 40")
        P(f"""
        s_load_dword s{sTag}, {sp(rWS)}, 0
        s_load_dwordx2 {sp(rBV)}, s[0:1], 56
        s_load_dwordx2 {sp(rAK)}, s[0:1], 8
        s_load_dwordx2 {sp(rAV)}, s[0:1], 16
        s_load_dwordx2 {sp(rWO)}, s[0:1], s{sKo} offset:32
        s_load_dwordx2 {sp(rOUT)}, s[0:1], 80
        v_and_b32 v{vLane}, 63, v0
        v_mov_b32 v{vBig}, {BIG}
        """)
        if ipf and not ipf0: code_pf()
        desc(rBV, 1 << 26); desc(rAK, 1 << 27); desc(rAV, 1 << 27); desc(rWO, 3670016); desc(rOUT, 7168)
        P(f"""
        s_mov_b32 s{sSel0}, 0x05040100
        s_mov_b32 s{sSel1}, 0x07060302
        s_mov_b32 s{sC}, {CS:#x}
        s_mov_b32 s{sSpin}, 0
        v_mul_u32_u24 v{vL12}, 12, v{vLane}
        v_lshlrev_b32 v{vL4}, 2, v{vLane}
        v_lshlrev_b32 v{vPw}, 3, v0
        v_and_b32 v{vPr}, 3, v0
        v_bfe_u32 v{vT0}, v0, 3, 2
        v_lshl_add_u32 v{vPr}, v{vPr}, 2, v{vT0}
        v_lshrrev_b32 v{vT0}, 6, v0
        v_lshl_add_u32 v{vPr}, v{vT0}, 4, v{vPr}
        v_bfe_u32 v{vT0}, v0, 2, 1
        v_lshl_add_u32 v{vPr}, v{vPr}, 1, v{vT0}
        v_bfe_u32 v{vT0}, v0, 5, 1
        v_lshl_add_u32 v{vPr}, v{vT0}, 8, v{vPr}
        v_lshlrev_b32 v{vPr}, 2, v{vPr}
        v_lshrrev_b32 v{vT0}, 3, v0
        v_and_b32 v{vT1}, 7, v0
        v_lshlrev_b32 v{vVo}, 9, v{vT0}
        v_lshl_add_u32 v{vVo}, v{vT1}, 4, v{vVo}
        """)
        if not late: c_setup2()
    def c_setup2():
        P(f"""
        v_bfe_u32 v{vT0}, v0, 3, 1
        v_mul_u32_u24 v{vT0}, 0x0202, v{vT0}
        v_add_u32 v{vT0}, 0x0100, v{vT0}
        v_or_b32 v{vT2}, 0x0c0c0000, v{vT0}
        v_lshlrev_b32 v{vT0}, 16, v{vT0}
        v_or_b32 v{vT0}, 0x0c0c, v{vT0}
        """)
        vcc(0xaaaaaaaa)
        P(f"v_cndmask_b32 v{vT0}, v{vT2}, v{vT0}, vcc")
        P(f"v_mov_b32 v{vT2}, 0x0c0c0c0c")
        for r in range(4):
            vcc(0x03030303 << (2*r)); P(f"v_cndmask_b32 v{vSel+r}, v{vT2}, v{vT0}, vcc")

    vQD = V.get(32, 4); vTB = [V.get(4, 4), V.get(4, 4)]
    def proj_write(dst, tmp):
        for e0 in (0, 4):
            for n in range(3):
                for e in range(e0, e0+4):
                    D = vQD + 4*e; tau = e & 3
                    r = [x for x in range(4) if x != tau][n]
                    m = f"row_mask:0xf bank_mask:{1 << tau:#x}" if n == 2 else FULL
                    P(f"v_add_f32_dpp v{dst+(e >> 2) if n == 2 else tmp+tau}, v{D+r}, v{tmp+tau if n else D+tau} row_ror:{(4*(tau-r)) % 16} {m}")
        P(f"ds_write_b64 v{vPw}, {v2(dst)} offset:{L_QRED}")
        P("s_waitcnt lgkmcnt(0)")
    def proj_read(r):
        P("s_barrier")
        P(f"ds_read2st64_b32 {v2(r)}, v{vPr} offset0:{L_QRED//256} offset1:{L_QRED//256+2}")
    def proj_sum(r):
        P("s_waitcnt lgkmcnt(0)")
        P(f"v_add_f32 v{r}, v{r}, v{r+1}")
        xlane("v_add_f32", r, r+1, ["p32"])
    vFl, vFs, vFd, vFt = vXo, vWQo, V.get(), V.get()
    sFm = S.get(2)
    def tag_setup():
        P(f"""
        ; hand-off tag of this launch: differs in every byte from the tag the previous launch left at ws[0]
        s_add_u32 s{sTag}, s{sTag}, 0x9e3779b9
        """)
    def fc_setup():
        P(f"""
        ; one line per (class, checkpoint): a dword for each of the 32 workgroups of the class
        s_bfe_u32 s{sFC}, s2, 0x30003
        {('s_lshl_b32 s%d, s%d, 2' % (sFC, sFC)) if wgfc else ('s_lshl2_add_u32 s%d, s%d, s%d' % (sFC, sFC, sWv))}
        s_lshl_b32 s{sFC}, s{sFC}, 11
        s_add_u32 s{sFC}, s{sFC}, {WS_FC + (4096 if wgfc else 0)}
        s_and_b32 s{sI}, s2, 7
        s_lshr_b32 s{sBoost}, s2, 6
        s_lshl3_add_u32 s{sI}, s{sBoost}, s{sI}
        v_cmp_eq_u32 {sp(sFm)}, s{sI}, v{0 if wgfc else vLane}
        v_cndmask_b32 v{vFs}, v{vBig}, v{vL4}, {sp(sFm)}
        v_cmp_gt_u32 {sp(sFm)}, 32, v{vLane}
        v_cndmask_b32 v{vFl}, v{vBig}, v{vL4}, {sp(sFm)}
        v_add_u32 v{vFl}, s{sFC}, v{vFl}
        """)
    hid = []; vHd = V.get()
    def c_hello2():
        P(f"v_and_b32 v{vH}, 0xe0, v{vH}")
        P(f"v_and_or_b32 v{vH}, v0, 31, v{vH}")
        hid.append(P.vm(f"global_load_ubyte v{vHd}, v{vH}, {sp(sDbg)}"))
    def c_q():
        P.wait(*idwq)
        stamp("wq")
        for e in range(8):
            transp(vTB[e & 1], vWQ, e)
            P(f"v_mfma_f32_16x16x32_bf16 {v4(vQD+4*e)}, {v4(vX)}, {v4(vTB[e & 1])}, 0")
        proj_write(vWQ, vWQ+4)
        return 'lgk'
    def c_q4():
        r = vWQ
        proj_read(r)
        if qat is None: tag_setup()
        P(f"""
        s_lshr_b32 s{sT0}, s2, 7
        s_lshl2_add_u32 s{sT0}, s{sT0}, s{sWv}
        s_lshl_b32 s{sT0}, s{sT0}, 7
        s_add_u32 s{sT0}, s{sT0}, s{sCB}
        s_lshl_b32 s{sT0}, s{sT0}, 7
        s_add_u32 s{sT0}, s{sT0}, {WS_Q}
        v_mov_b32 v{r+9}, s{sTag}
        """)
        proj_sum(r)
        if True:
            P.wait(*hid)
            P(f"""
            ; class-local hand-offs go through L2 only if all 32 workgroups of the class were seen to report this XCC
            v_cmp_ne_u32 vcc, v{vHd}, v{vH+1}
            s_mov_b32 s{sFar}, vcc_lo
            """)
            if forcefar: P(f"s_mov_b32 s{sFar}, 1")
        P(f"""
        v_mov_b32_dpp v{r+1}, v{r} quad_perm:[1,0,3,2] {FULL}
        v_cvt_pk_bf16_f32 v{r+8}, v{r}, v{r+1}
        s_mov_b32 exec_lo, 0x55555555
        s_mov_b32 exec_hi, 0
        """)
        publish("q", f"buffer_store_dwordx2 {v2(r+8)}, v{vL4}, {srd(rWS)}, s{sT0} offen")
        P("s_mov_b64 exec, -1")
        stamp("qpub")
        return 'tag'
    def c_tlb():
        P(f"""
        s_lshr_b32 s{sT0}, s2, 2
        s_lshl_b32 s{sT0}, s{sT0}, 21
        s_lshr_b32 s{sT1}, s{sCB}, 4
        s_mul_i32 s{sT1}, s{sT1}, {512*896}
        v_cmp_eq_u32 vcc, 0, v0
        v_cndmask_b32 v{vT0}, 2.0, v0, vcc
        s_waitcnt lgkmcnt(0)
        """)
        if "V" in tlb: P.vm(f"buffer_load_dword v{vTl}, v{vT0}, {srd(rBV)}, s{sOff} offen nt")
        if "K" in tlb: P.vm(f"buffer_load_dword v{vTl}, v{vT0}, {srd(rAK)}, s{sT0} offen nt")
        if "A" in tlb: P.vm(f"buffer_load_dword v{vTl}, v{vT0}, {srd(rAV)}, s{sT0} offen nt")
        if "W" in tlb: P.vm(f"buffer_load_dword v{vTl}, v{vT0}, {srd(rWO)}, s{sT1} offen nt")
        if "O" in tlb: P.vm(f"buffer_load_dword v{vTl}, v{vT0}, {srd(rOUT)}, 0 offen nt")
    S0 = max(W, fast) - 1 if S00 is None else S00
    if late > 1: B(S0, c_setup); B(late, c_wsw)
    else: B(S0, c_wsw); B(0, c_setup)
    if tlb: B(0, c_tlb)
    B(hello, c_hello2)
    def c_tag():
        P("s_waitcnt lgkmcnt(0)"); tag_setup(); st['lgk'] = True
        return 'tag'
    if qat is not None: B(0, c_tag, 1)
    B(len(first) - 2 + (W if len(first) > 1 else 0) if qat is None else qat, c_q); B(hello + W + 1, c_q4, 1)

    vQA = V.get(32, 4); vQB = V.get(16, 4)
    vG = vQD
    vGo = V.get(2); sG = [S.get() for _ in range(8)]
    ql = [f"buffer_load_dwordx4 {v4(vG+8*u+4*hf)}, v{vGo}, {srd(rWS)}, s{sG[0]} offen offset:{512*u+16*hf} sc1" for u in range(2) for hf in range(2)]
    ql += [f"buffer_load_dwordx4 {v4(vG+16+8*u+4*hf)}, v{vGo+1}, {srd(rWS)}, s{sG[1]} offen offset:{512*u+16*hf} sc1" for u in range(2) for hf in range(2)]
    q_iss, q_chk = gather("q", ql, range(vG+1, vG+32, 2), f's{sTag}', None)
    def c_qg():
        P(f"""
        v_lshrrev_b32 v{vGo}, 2, v{vLane}
        v_lshlrev_b32 v{vGo}, 5, v{vGo}
        v_bfe_u32 v{vT0}, v{vLane}, 1, 1
        v_lshl_add_u32 v{vGo+1}, v{vT0}, 10, v{vGo}
        s_lshr_b32 s{sG[0]}, s2, 2
        s_lshl_b32 s{sG[0]}, s{sG[0]}, 10
        s_add_u32 s{sG[0]}, s{sG[0]}, {WS_Q}
        s_lshr_b32 s{sG[1]}, s2, 3
        s_lshl_b32 s{sG[1]}, s{sG[1]}, 11
        s_add_u32 s{sG[1]}, s{sG[1]}, {WS_Q + 4*16384}
        """)
        q_iss()
    def c_qb():
        q_chk(); stamp("qgot")
        if spinif == "nq": P(f"s_mov_b32 s1, s{sSpin}")
        if spinif == "ns": P(f"s_mov_b32 s{sSpin}, 0")
        if spinif == "far1": P(f"s_min_u32 s1, s{sFar}, 20")
        for t in range(4):
            vcc(0x11111111 << t)
            for u in range(2):
                for q in range(4): P(f"v_cndmask_b32 v{vQA+16*u+4*t+q}, 0, v{vG+8*u+2*q}, vcc")
        for t in range(2):
            vcc(0x55555555 << t)
            for u in range(2):
                for q in range(4): P(f"v_cndmask_b32 v{vQB+8*u+4*t+q}, 0, v{vG+16+8*u+2*q}, vcc")
        return 'kok'
    if late: B(0, c_setup2)
    B(qg, c_qg); B(0, c_qb, WM+1)

    vD = [V.get(4, 4) for _ in range(4)]
    vSB, vTb = V.get(), V.get()
    def c_bqk():
        P.wait(sid[15])
        D = vWQ
        for tau in range(4):
            for n in range(4):
                t, u = n & 1, n >> 1
                P(f"v_mfma_f32_16x16x32_bf16 {v4(D+4*tau)}, {a4(sslot[4*tau+n])}, {v4(vQB+8*u+4*t)}, {v4(D+4*tau) if n else 0}")
                release(4*tau+n)
        for tau in range(4): extract(D+4*tau, vSB, tau, vT0)
        P(f"""
        v_cvt_pk_bf16_f32 v{vSB}, v{vSB}, v{vSB}
        v_lshlrev_b32 v{vT0}, 4, v0
        v_lshrrev_b32 v{vTb}, v{vT0}, s{sTag}
        v_mov_b32 v{vT0}, 0xffff
        v_bfi_b32 v{vSB}, v{vT0}, v{vTb}, v{vSB}
        """)
    B(15+WM, c_bqk)

    vWO = V.get(32, 4); vWOo = V.get()
    def wo_load(j):
        if j == 4: P(f"s_addk_i32 s{sAux}, {4*896}")
        if "wo" not in skip:
            P.vm(f"buffer_load_dwordx4 {v4(vQD+4*j)}, v{vWOo}, {srd(rWO)}, s{sAux} offen offset:{896*(j & 3)} {woflag}")

    vSA = V.get(4, 4)
    pend = []
    def k_consume(i):
        k = i - 32
        unit, n = k >> 4, k & 15
        t, u, par = n >> 2, (n >> 1) & 1, n & 1
        D = vD[2*(unit & 1) + par]
        first = (t == 0 and u == 0)
        P(f"v_mfma_f32_16x16x32_bf16 {v4(D)}, {a4(sslot[i])}, {v4(vQA+16*u+4*t)}, {0 if first else v4(D)}")
        release(i)
        while pend and n >= 2:
            pend.pop(0)()
        if n == 15:
            for p_ in range(2):
                pend.append(lambda p_=p_, unit=unit: extract(vD[2*(unit & 1)+p_], vSA + 2*(unit >> 2) + p_, unit & 3, vXT))
            if k == 127:
                while pend: pend.pop(0)()
                c_spub()
    def c_spub():
        o = vD[0]
        P(f"""
        s_lshl2_add_u32 s{sI}, s2, s{sWv}
        s_mul_i32 s{sI}, s{sI}, 768
        s_add_u32 s{sI}, s{sI}, {WS_SC}
        v_cvt_pk_bf16_f32 v{o}, v{vSA}, v{vSA+1}
        v_cvt_pk_bf16_f32 v{o+1}, v{vSA+2}, v{vSA+3}
        v_mov_b32 v{o+2}, v{vSB}
        """)
        if "scs" not in skip: publish("sc", f"buffer_store_dwordx3 {v3(o)}, v{vL12}, {srd(rWS)}, s{sI} offen")
        stamp("scpub")
    vSG = vWQ
    vE = vQA; vEB = vQA + 16
    vP = V.get(8, 4); vPB = vQB + 4; vM, vL, vMB, vLB = vQB, vQB+1, vQB+2, vQB+3
    vWt, vWtB, vFF = vQB+8, vQB+9, vQB+10
    sl = [f"buffer_load_dwordx3 {v3(vSG+4*k)}, v{vL12}, {srd(rWS)}, s{sG[k]} offen sc1" for k in range(4)]
    sl += [f"buffer_load_dword v{vSG+16+k}, v{vL12}, {srd(rWS)}, s{sG[4+k]} offen offset:8 sc1" for k in range(4)]
    sbr = [vSG+4*k+2 for k in range(4)] + [vSG+16+k for k in range(4)]
    s_iss, s_chk = gather("sc", sl, sbr, f'v{vTb}', 0xffff)
    def c_sg():
        P(f"""
        s_and_b32 s{sT0}, s2, 0xfc
        s_lshl2_add_u32 s{sT0}, s{sT0}, s{sWv}
        s_xor_b32 s{sT1}, s{sT0}, 16
        s_mul_i32 s{sT0}, s{sT0}, 768
        s_mul_i32 s{sT1}, s{sT1}, 768
        s_add_u32 s{sG[0]}, s{sT0}, {WS_SC}
        s_add_u32 s{sG[4]}, s{sT1}, {WS_SC}
        """)
        for k in (1, 2, 3, 5, 6, 7): P(f"s_add_u32 s{sG[k]}, s{sG[k-1]}, 3072")
        s_iss()
    def c_sm1():
        s_chk(); stamp("scgot")
        for r in range(8):
            src = vSG + 4*(r >> 1) + (r & 1)
            P(f"v_lshlrev_b32 v{vE+2*r}, 16, v{src}")
            P(f"v_and_b32 v{vE+2*r+1}, 0xffff0000, v{src}")
        P(f"v_max3_f32 v{vM}, v{vE}, v{vE+1}, v{vE+2}")
        for r in range(3, 15, 2): P(f"v_max3_f32 v{vM}, v{vM}, v{vE+r}, v{vE+r+1}")
        P(f"v_max_f32 v{vM}, v{vM}, v{vE+15}")
        xlane("v_max_f32", vM, vT0, ["x1", "x2", "r4", "r8", "p16", "p32"])
        P(f"v_mul_f32 v{vM}, s{sC}, v{vM}")
        for r in range(16):
            P(f"v_fma_f32 v{vE+r}, v{vE+r}, s{sC}, -v{vM}")
            P(f"v_exp_f32 v{vE+r}, v{vE+r}")
        for r in range(8): P(f"v_cvt_pk_bf16_f32 v{vP+r}, v{vE+2*r}, v{vE+2*r+1}")
        return 'vok'
    def c_sm3():
        for r in range(8): P(f"v_add_f32 v{vE+r}, v{vE+r}, v{vE+8+r}")
        sum8(vE, vL)
        xlane("v_add_f32", vL, vT0, ["x1", "x2", "r4", "r8", "p16", "p32"])
    def c_sb1():
        for k in range(8): P(f"v_and_b32 v{vEB+k}, 0xffff0000, v{sbr[k]}")
        P(f"v_max3_f32 v{vMB}, v{vEB}, v{vEB+1}, v{vEB+2}")
        P(f"v_max3_f32 v{vMB}, v{vMB}, v{vEB+3}, v{vEB+4}")
        P(f"v_max3_f32 v{vMB}, v{vMB}, v{vEB+5}, v{vEB+6}")
        P(f"v_max_f32 v{vMB}, v{vMB}, v{vEB+7}")
        xlane("v_max_f32", vMB, vT0, ["x1", "r4", "r8", "p16", "p32"])
        P(f"v_mul_f32 v{vMB}, s{sC}, v{vMB}")
        for k in range(8):
            P(f"v_fma_f32 v{vEB+k}, v{vEB+k}, s{sC}, -v{vMB}")
            P(f"v_exp_f32 v{vEB+k}, v{vEB+k}")
        for k in range(4):
            P(f"v_mov_b32_dpp v{vT0}, v{vEB+k} quad_perm:[1,0,3,2] {FULL}")
            P(f"v_cvt_pk_bf16_f32 v{vPB+k}, v{vEB+k}, v{vT0}")
        sum8(vEB, vLB)
        xlane("v_add_f32", vLB, vT0, ["x1", "r4", "r8", "p16", "p32"])
        P(f"""
        v_bfe_u32 v{vT0}, v{vLane}, 1, 1
        v_lshlrev_b32 v{vT0}, 6, v{vT0}
        s_lshl_b32 s{sT0}, s{sWv}, 4
        v_add_u32 v{vT0}, s{sT0}, v{vT0}
        ds_write_b128 v{vT0}, {v4(vM)} offset:{L_ST}
        """)
    vBc = [V.get(), V.get()]
    vTC = [V.get(4, 4), V.get(4, 4)]
    def pvop(bc, dst, src, lane):
        P(f"v_mov_b32_dpp v{bc}, v{src} row_newbcast:{lane} {FULL}")
        for q in range(4): P(f"v_perm_b32 v{dst+q}, v{bc}, v{bc}, v{vSel+q}")
    def c_bpv():
        for k in range(4):
            for tau in range(4):
                i = 16 + 4*tau + k
                for hd in range(2): pvop(vT0+hd, vTC[hd], vPB+k, 4*tau + 2*hd)
                for hd in range(2):
                    P(f"v_mfma_f32_16x16x32_bf16 {v4(vD[2+hd])}, {a4(sslot[i])}, {v4(vTC[hd])}, {v4(vD[2+hd]) if i > 16 else 0}")
                release(i)
    assert vT1 == vT0 + 1
    vAw, vAr = V.get(), V.get()
    vW4 = vQB + 12
    def c_sm4():
        s_ = vE
        P(f"""
        v_bfe_u32 v{vT0}, v{vLane}, 1, 1
        v_lshlrev_b32 v{vT0}, 6, v{vT0}
        s_waitcnt lgkmcnt(0)
        s_barrier
        """)
        for k in range(4): P(f"ds_read_b128 {v4(s_+4*k)}, v{vT0} offset:{L_ST+16*k}")
        P(f"""
        v_lshrrev_b32 v{vAw}, 4, v0
        v_lshlrev_b32 v{vAw}, 7, v{vAw}
        v_and_b32 v{vT1}, 7, v{vLane}
        v_lshl_add_u32 v{vAw}, v{vT1}, 4, v{vAw}
        v_and_b32 v{vAr}, 32, v{vLane}
        v_lshl_add_u32 v{vAr}, v{vT1}, 2, v{vAr}
        v_bfe_u32 v{vT1}, v{vLane}, 3, 2
        v_add_lshl_u32 v{vAr}, v{vAr}, v{vT1}, 2
        s_min_u32 s{sT0}, s{sWv}, 2
        s_lshl_b32 s{sT0}, s{sT0}, 11
        v_add_u32 v{vAr}, s{sT0}, v{vAr}
        v_mov_b32 v{vFF}, 0xff
        s_waitcnt lgkmcnt(0)
        """)
        for o, m, wt in ((0, vM, vWt), (2, vMB, vWtB)):
            P(f"v_max3_f32 v{vT0}, v{s_+o}, v{s_+4+o}, v{s_+8+o}")
            P(f"v_max_f32 v{vT0}, v{vT0}, v{s_+12+o}")
            for k in range(4):
                P(f"v_sub_f32 v{s_+4*k+o}, v{s_+4*k+o}, v{vT0}")
                P(f"v_exp_f32 v{s_+4*k+o}, v{s_+4*k+o}")
            P(f"v_sub_f32 v{wt}, v{m}, v{vT0}")
            P(f"v_exp_f32 v{wt}, v{wt}")
            P(f"v_mul_f32 v{vT1}, v{s_+o}, v{s_+o+1}")
            for k in range(1, 4): P(f"v_fmac_f32 v{vT1}, v{s_+4*k+o}, v{s_+4*k+o+1}")
            P(f"v_rcp_f32 v{vT1}, v{vT1}")
            P(f"v_mul_f32 v{wt}, v{wt}, v{vT1}")
            if rdw and o == 0:
                for k in range(4): P(f"v_mul_f32 v{vW4+k}, v{s_+4*k}, v{vT1}")
    def red_write(lst):
        P("s_mov_b32 exec_lo, 0x00ff00ff")
        P("s_mov_b32 exec_hi, 0xff00ff00")
        for acc, reg in lst: P(f"ds_write_b128 v{vAw}, {v4(acc)} offset:{L_RED+2048*reg}")
        P("s_mov_b64 exec, -1")
    def c_br1():
        for hd in range(2):
            for q in range(4):
                P(f"v_mul_f32_dpp v{vD[2+hd]+q}, v{vWtB}, v{vD[2+hd]+q} quad_perm:[{2*hd},{2*hd},{2*hd},{2*hd}] {FULL}")
        red_write([(vD[2], 1), (vD[3], 2)])
        stamp("ybdone")
    vOb = V.get(2)
    def c_ob1():
        P(f"""
        v_lshrrev_b32 v{vAw}, 4, v0
        v_lshlrev_b32 v{vAw}, 7, v{vAw}
        v_and_b32 v{vT1}, 7, v{vLane}
        v_lshl_add_u32 v{vAw}, v{vT1}, 4, v{vAw}
        v_and_b32 v{vAr}, 32, v{vLane}
        v_lshl_add_u32 v{vAr}, v{vT1}, 2, v{vAr}
        v_bfe_u32 v{vT1}, v{vLane}, 3, 2
        v_add_lshl_u32 v{vAr}, v{vAr}, v{vT1}, 2
        s_min_u32 s{sT0}, s{sWv}, 2
        s_lshl_b32 s{sT0}, s{sT0}, 11
        v_add_u32 v{vAr}, s{sT0}, v{vAr}
        v_mov_b32 v{vFF}, 0xff
        """)
        red_write([(vD[2], 1), (vD[3], 2)])
        stamp("ybdone")
    def c_ob2():
        r = vWQ; s_ = vWQ + 8
        P(f"""
        s_min_u32 s{sT0}, s{sWv}, 1
        s_lshr_b32 s{sT1}, s{sWv}, 1
        s_lshl3_add_u32 s{sT0}, s{sT1}, s{sT0}
        s_lshl_b32 s{sT0}, s{sT0}, 3
        v_mov_b32 v{vT0}, s{sT0}
        s_waitcnt lgkmcnt(0)
        s_barrier
        """)
        for k in range(4): P(f"ds_read_b64 {v2(s_+2*k)}, v{vT0} offset:{L_ST+16*k}")
        for k in range(4): P(f"ds_read2st64_b32 {v2(r+2*k)}, v{vAr} offset0:{L_RED//256+2*k} offset1:{L_RED//256+2*k+1}")
        P(f"""
        v_add_u32 v{vOb}, 64, v0
        v_and_b32 v{vOb}, 128, v{vOb}
        v_cmp_ne_u32 vcc, 0, v{vOb}
        v_cndmask_b32 v{vOb}, v{vBig}, v{vL4}, vcc
        s_waitcnt lgkmcnt(0)
        v_max3_f32 v{vT0}, v{s_}, v{s_+2}, v{s_+4}
        v_max_f32 v{vT0}, v{vT0}, v{s_+6}
        """)
        for k in range(4):
            P(f"v_sub_f32 v{s_+2*k}, v{s_+2*k}, v{vT0}")
            P(f"v_exp_f32 v{s_+2*k}, v{s_+2*k}")
        P(f"v_mul_f32 v{vT1}, v{s_}, v{s_+1}")
        for k in range(1, 4): P(f"v_fmac_f32 v{vT1}, v{s_+2*k}, v{s_+2*k+1}")
        P(f"v_rcp_f32 v{vT1}, v{vT1}")
        for k in range(4): P(f"v_add_f32 v{r+2*k}, v{r+2*k}, v{r+2*k+1}")
        for k in range(4): P(f"v_mul_f32 v{vW4+k}, v{s_+2*k}, v{vT1}")
        for k in range(4): P(f"v_mul_f32 v{r}, v{r}, v{vW4}" if k == 0 else f"v_fmac_f32 v{r}, v{r+2*k}, v{vW4+k}")
        P(f"v_bfi_b32 v{vOb+1}, v{vFF}, v{vTb}, v{r}")
    def c_br2():
        r = vWQ
        P("s_waitcnt lgkmcnt(0)")
        P("s_barrier")
        for k in range(4): P(f"ds_read2st64_b32 {v2(r+2*k)}, v{vAr} offset0:{L_RED//256+2*k} offset1:{L_RED//256+2*k+1}")
        P(f"""
        v_add_u32 v{vOb}, 64, v0
        v_and_b32 v{vOb}, 128, v{vOb}
        v_cmp_ne_u32 vcc, 0, v{vOb}
        v_cndmask_b32 v{vOb}, v{vBig}, v{vL4}, vcc
        s_waitcnt lgkmcnt(0)
        """)
        sum8(r, r)
        P(f"v_bfi_b32 v{vOb+1}, v{vFF}, v{vTb}, v{r}")
        if not bsplit: c_br3()
    def c_br3():
        t = f"buffer_store_dword v{vOb+1}, v{vOb}, {srd(rWS)}, s{sOp} offen"
        if swap: P.vm(t + " sc1")
        else: publish("ob", t)
    vOg, vOo, vYo = vGo+1, vL12, vGo
    vY0, vY1, vBp = V.get(), V.get(), V.get()
    sOp, sOg, sYp, sYg, sOutO = sG[0:5]
    sYx, sOwn = rX, rX+2
    brx = "s_bfe_u32 s%d, s2, 0x10005" % sT0 if swap else "s_lshr_b32 s%d, s2, 7" % sT0
    def c_fin():
        if prm:
            P(f"""
            ; projection role m = (b&1)*8 + 2*s + kh: the workgroups without a block are ones with s = 3
            s_and_b32 s{sT0}, s2, 3
            s_bfe_u32 s{sT1}, s2, 0x10002
            s_lshl1_add_u32 s{sT0}, s{sT0}, s{sT1}
            s_andn2_b32 s{sCB}, s{sCB}, 7
            s_or_b32 s{sCB}, s{sCB}, s{sT0}
            """)
        if swap:
            P(f"""
            s_bfe_u32 s{sT0}, s2, 0x20003
            s_lshr_b32 s{sT1}, s2, 6
            s_lshl2_add_u32 s{sT0}, s{sT0}, s{sT1}
            s_and_b32 s{sT1}, s2, 7
            s_lshl4_add_u32 s{sCB}, s{sT1}, s{sT0}
            """)
        P(f"""
        ; o and y words carry byte (column&3) of the tag in their low byte
        v_lshlrev_b32 v{vT0}, 3, v0
        v_lshrrev_b32 v{vTb}, v{vT0}, s{sTag}
        s_lshr_b32 s{sG[5]}, s{sTag}, 8
        s_lshr_b32 s{sG[6]}, s{sTag}, 16
        s_lshr_b32 s{sG[7]}, s{sTag}, 24
        ; O table [x][slot: A, B kh0, B kh1][b][512] dwords
        s_bfe_u32 s{sT0}, s2, 0x30003
        s_mul_i32 s{sOg}, s{sT0}, {3*8192}
        s_add_u32 s{sOg}, s{sOg}, {WS_O}
        s_lshr_b32 s{sT0}, s2, 6
        s_lshl_b32 s{sT0}, s{sT0}, 11
        s_add_u32 s{sOp}, s{sOg}, s{sT0}
        ; wave 0: A row block t ; waves 1,2: slot 1+kh, row block 4*(wave-1)+s
        s_and_b32 s{sT0}, s2, 4
        s_lshl_b32 s{sT0}, s{sT0}, 3
        s_lshl2_add_u32 s{sT0}, s{sWv}, s{sT0}
        s_and_b32 s{sT1}, s2, 3
        s_add_u32 s{sT0}, s{sT0}, s{sT1}
        s_addk_i32 s{sT0}, 28
        s_and_b32 s{sT1}, s2, 7
        s_cmp_eq_u32 s{sWv}, 0
        s_cselect_b32 s{sT0}, s{sT1}, s{sT0}
        s_lshl_b32 s{sT0}, s{sT0}, 8
        s_add_u32 s{sOp}, s{sOp}, s{sT0}
        s_lshr_b32 s{sT0}, s{sCB}, 4
        s_mul_i32 s{sOg}, s{sT0}, {3*8192}
        s_add_u32 s{sOg}, s{sOg}, {WS_O}
        {brx}
        s_lshl_b32 s{sT0}, s{sT0}, 13
        s_add_u32 s{sOg}, s{sOg}, s{sT0}
        s_and_b32 s{sT1}, s{sCB}, 1
        s_lshl_b32 s{sT1}, s{sT1}, 10
        s_add_u32 s{sOg}, s{sOg}, s{sT1}
        v_bfe_u32 v{vT0}, v0, 1, 1
        v_mul_lo_u32 v{vOg}, v{vT0}, s{sT0}
        v_bfe_u32 v{vT0}, v0, 2, 2
        v_lshl_add_u32 v{vOg}, v{vT0}, 11, v{vOg}
        v_lshrrev_b32 v{vT0}, 4, v0
        v_lshl_add_u32 v{vOg}, v{vT0}, 6, v{vOg}
        v_and_b32 v{vT0}, 1, v0
        v_lshl_add_u32 v{vOg}, v{vT0}, 5, v{vOg}
        ; wo lane (row group tid>>3, 16-byte chunk tid&7)
        v_lshrrev_b32 v{vT0}, 3, v0
        v_mul_u32_u24 v{vWOo}, {8*896}, v{vT0}
        v_and_b32 v{vT0}, 7, v0
        v_lshl_add_u32 v{vWOo}, v{vT0}, 4, v{vWOo}
        s_and_b32 s{sT1}, s{sCB}, 15
        v_mov_b32 v{vT1}, s{sT1}
        v_cmp_gt_u32 vcc, 14, v{vT1}
        v_cndmask_b32 v{vWOo}, v{vBig}, v{vWOo}, vcc
        s_lshr_b32 s{sT0}, s{sCB}, 4
        s_and_b32 s{sAux}, s{sCB}, 1
        s_lshl1_add_u32 s{sAux}, s{sT0}, s{sAux}
        s_mul_i32 s{sAux}, s{sAux}, {256*896}
        s_and_b32 s{sT0}, s{sCB}, 14
        s_lshl_b32 s{sT0}, s{sT0}, 6
        s_add_u32 s{sAux}, s{sAux}, s{sT0}
        v_lshlrev_b32 v{vPw}, 4, v0
        v_and_b32 v{vPr}, 1, v0
        v_bfe_u32 v{vT1}, v0, 3, 3
        v_lshl_add_u32 v{vPr}, v{vPr}, 3, v{vT1}
        v_lshrrev_b32 v{vT1}, 6, v0
        v_lshl_add_u32 v{vPr}, v{vT1}, 4, v{vPr}
        v_bfe_u32 v{vT1}, v0, 1, 2
        v_lshl_add_u32 v{vPr}, v{vPr}, 2, v{vT1}
        v_lshlrev_b32 v{vPr}, 2, v{vPr}
        v_lshlrev_b32 v{vOo}, 3, v{vT0}
        v_bfe_u32 v{vT0}, v{vLane}, 4, 1
        v_lshl_add_u32 v{vOo}, v{vT0}, 2, v{vOo}
        v_lshrrev_b32 v{vT0}, 5, v{vLane}
        v_lshl_add_u32 v{vOo}, v{vT0}, 1, v{vOo}
        v_mul_u32_u24 v{vYo}, {8192-128}, v{vT0}
        v_add_u32 v{vYo}, v{vYo}, v{vL4}
        {brx}
        s_mul_i32 s{sT0}, s{sT0}, 14
        s_add_u32 s{sT0}, s{sT0}, s{sT1}
        s_lshl_b32 s{sOutO}, s{sT0}, 6
        s_mul_i32 s{sYp}, s{sWv}, 1792
        s_add_u32 s{sOutO}, s{sOutO}, s{sYp}
        s_lshl2_add_u32 s{sT0}, s{sT0}, s{sWv}
        s_lshl_b32 s{sT0}, s{sT0}, 11
        s_add_u32 s{sYg}, s{sT0}, {WS_Y}
        s_and_b32 s{sT1}, s{sCB}, 1
        s_mul_i32 s{sT0}, s{sT1}, {8192-1024}
        s_sub_u32 s{sYp}, s{sYg}, s{sT0}
        s_lshr_b32 s{sT0}, s{sCB}, 4
        s_lshl_b32 s{sI}, s{sT0}, 7
        s_add_u32 s{sYp}, s{sYp}, s{sI}
        ; block m is summed by its workgroup of row block m&7, which keeps that half of its own result in registers
        s_lshl_b32 s{sI}, s{sT0}, 3
        s_lshl_b64 {sp(sOwn)}, 0xff, s{sI}
        s_lshl_b32 s{sI}, s{sT1}, 7
        v_lshl_add_u32 v{vBp}, v{vOo}, 1, s{sI}
        s_xor_b32 s{sI}, s{sT1}, 1
        s_lshl_b32 s{sI}, s{sI}, 10
        v_lshlrev_b32 v{vY0}, 4, v{vLane}
        v_add_u32 v{vY1}, 1024, v{vY0}
        v_add_u32 v{vT0}, s{sI}, v{vY0}
        v_cndmask_b32 v{vY0}, v{vY0}, v{vT0}, {sp(sOwn)}
        v_cndmask_b32 v{vY1}, v{vY1}, v{vT0}, {sp(sOwn)}
        s_sub_u32 s{sYx}, 0, s{sT1}
        s_not_b32 s{sYx+1}, s{sYx}
        s_and_b32 s{sT1}, s{sCB}, 7
        s_cmp_eq_u32 s{sT0}, s{sT1}
        s_cselect_b64 {sp(sYx)}, {sp(sYx)}, -1
        """)
    def c_re1(): hid.append(P.vm(f"global_load_ubyte v{vHd}, v{vH}, {sp(sDbg)} nt"))
    def c_re2():
        P.wait(hid[-1])
        P(f"""
        ; second look: a report that arrived after the first one no longer keeps the class off the L2 path
        v_cmp_ne_u32 vcc, v{vHd}, v{vH+1}
        s_mov_b32 s{sFar}, vcc_lo
        """)
        if forcefar: P(f"s_mov_b32 s{sFar}, 1")
    if recheck: B(recheck, c_re1); B(0, c_re2, WM+1)
    B(160+sg, c_sg); B(0, c_sm1, WM+1); B(0, c_sm3); B(0, c_sb1); B(0, c_bpv)
    if onebar: B(0, c_ob1)
    else: B(0, c_sm4); B(0, c_br1)
    B(0, c_fin)
    def c_yw():
        if yw[1] == "c":
            P(f"""
            s_cmp_eq_u64 {sp(sYx)}, -1
            s_cselect_b32 s{sT0}, 0, 16
            v_lshlrev_b32 v{vT0}, 7, v{vLane}
            v_cmp_gt_u32 vcc, s{sT0}, v{vLane}
            v_cndmask_b32 v{vT0}, v{vBig}, v{vT0}, vcc
            """)
            P.vm(f"buffer_load_dword v{vTl+1}, v{vT0}, {srd(rWS)}, s{sYg} offen sc1")
        else:
            P.vm(f"buffer_load_dword v{vTl+1}, v{vYo}, {srd(rWS)}, s{sYp} offen sc1")
    if yw and yw[0] < bpub: B(yw[0], c_yw)
    def c_ow():
        P(f"v_cmp_gt_u32 vcc, 192, v0")
        P(f"v_cndmask_b32 v{vT0}, v{vBig}, v{vL4}, vcc")
        P.vm(f"buffer_load_dword v{vTl+1}, v{vT0}, {srd(rWS)}, s{sOp} offen sc1")
    if ow: B(ow, c_ow)
    if bsplit:
        B(bsplit, c_ob2 if onebar else c_br2)
        if btail is None: B(bpub, c_br3)
    elif bpub: B(bpub, c_br2)
    if yw and yw[0] >= bpub and ytail is None: B(yw[0], c_yw)

    vAcc = vD[1]
    prepared = set()
    def v_prep(i):
        v = i - 160
        if i < NS and i not in prepared:
            pvop(vBc[v & 1], vTB[v & 1], vP + 2*(v & 3) + (v >> 6), (v >> 2) & 15); prepared.add(i)
    def v_consume(i):
        v = i - 160
        v_prep(i)
        P.wait(sid[i])
        P(f"v_mfma_f32_16x16x32_bf16 {v4(vAcc)}, {a4(sslot[i])}, {v4(vTB[v & 1])}, {v4(vAcc) if v else 0}")
        release(i)
        v_prep(i+1)

    xg = fc['xg'] if fc else 0
    if xg:
        vGs, vGl, vGd = [V.get() for _ in range(3)]; sBias = S.get()
        xcs = [cps[c] for c in fc['xc']]
    def fc_step(i):
        if i in cps:
            c = cps.index(i)
            if c == 0:
                assert st['tag'] and len(idwq) == 9
                fc_setup()
                P(f"v_mov_b32 v{vFt}, s{sTag}")
                if fc['tab']:
                    m = min(fc['tab']); t = sum(((x - m)//2) << (4*k) for k, x in enumerate(fc['tab']))
                    P(f"""
                    s_lshl_b32 s{sTagQ}, s{sTagQ}, 2
                    s_lshr_b32 s{sTagQ}, {t:#x}, s{sTagQ}
                    s_and_b32 s{sTagQ}, s{sTagQ}, 15
                    s_lshl1_add_u32 s{sTagQ}, s{sTagQ}, {m}
                    """)
                if xg:
                    assert len(cps) <= (32 if wgfc else 10) and len(xcs) <= 6
                    P(f"""
                    s_lshl2_add_u32 s{sI}, s{sI}, s{sWv}
                    s_cmp_eq_u32 s{sI}, {fc['lead']}
                    s_cselect_b32 s{sFm}, 0xff, 0
                    s_mov_b32 s{sFm+1}, 0
                    v_lshlrev_b32 v{vGd}, 13, v{vLane}
                    v_add_u32 v{vGd}, {WS_FC + 1280}, v{vGd}
                    v_cndmask_b32 v{vGl}, v{vBig}, v{vGd}, {sp(sFm)}
                    s_bfe_u32 s{sBias}, s2, 0x30003
                    s_lshl_b32 s{sBias}, 1, s{sBias}
                    s_and_b32 s{sFm}, s{sFm}, s{sBias}
                    v_cndmask_b32 v{vGs}, v{vBig}, v{vGd}, {sp(sFm)}
                    v_cndmask_b32 v{vGl}, v{vGl}, v{vBig}, {sp(sFm)}
                    s_mov_b32 s{sBias}, 0
                    """)
            look = xg and c - 1 in fc['xc']
            if look:
                k = list(fc['xc']).index(c - 1)
                P(f"s_and_b32 s{sFm}, s{sFC}, {~8191 & 0xffffffff:#x}")
                P(f"s_add_u32 s{sFm}, s{sFm}, {1280 + 128*(k - c)}")
                P(f"v_writelane_b32 v{vFl}, s{sFm}, 32")
            elif xg and c - 2 in fc['xc']:
                P(f"v_writelane_b32 v{vFl}, 2.0, 32")
            fcs['ids'][c] = P.vm(f"buffer_load_dword v{vFd}, v{vFl}, {srd(rWS)}, 0 offen offset:{128*c}")
            P.vm(f"buffer_store_dword v{vFt}, v{vFs}, {srd(rWS)}, s{sFC} offen offset:{128*c}")
            if xg and i in xcs: P.vm(f"buffer_store_dword v{vFt}, v{vGs}, {srd(rWS)}, 0 offen offset:{2048 + 128*xcs.index(i)} sc1")
        if xg and i - fc['xd'] in xcs:
            fcs['g'] = P.vm(f"buffer_load_dword v{vGd}, v{vGl}, {srd(rWS)}, 0 offen offset:{2048 + 128*xcs.index(i - fc['xd'])} sc1")
        if xg and i - fc['xd'] - WM - 1 in xcs:
            c = cps.index(i - fc['xd'] - WM - 1)
            P.wait(fcs['g'])
            P(f"""
            v_cmp_eq_u32 {sp(sFm)}, v{vFt}, v{vGd}
            s_bcnt1_i32_b32 s{sFm}, s{sFm}
            v_add_u32 v{vGd}, s{sFm}, v{vFt}
            """)
            P.vm(f"buffer_store_dword v{vGd}, v{vGs}, {srd(rWS)}, 0 offen offset:{128*xcs.index(cps[c])}")
        if i - WM - 1 in cps:
            c = cps.index(i - WM - 1)
            P.wait(fcs['ids'].pop(c))
            pd = fc['Pd'] if not fc['cps'] else ((cps[c+1] - cps[c]) if c + 1 < len(cps) else NS - i)
            g = int(round(fc['gain'] * pd / 32 * 256))
            if fc['s3'] and i >= 150 and not fcs.get('s3'):
                fcs['s3'] = True
                P(f"""
                s_and_b32 s{sBoost}, s2, 3
                s_cmp_eq_u32 s{sBoost}, 3
                s_cselect_b32 s{sBoost}, {fc['s3']}, 0
                s_add_i32 s{sTagQ}, s{sTagQ}, s{sBoost}
                """)
            P(f"""
            v_cmp_eq_u32 {sp(sFm)}, v{vFt}, v{vFd}
            s_bcnt1_i32_b32 s{sBoost}, s{sFm}
            s_mul_i32 s{sBoost}, s{sBoost}, {g}
            s_sub_i32 s{sBoost}, s{sBoost}, {int(fc['r0'] * 32)*g}
            """)
            if xg and c - 1 in fc['xc']:
                P(f"""
                v_readlane_b32 s{sFm}, v{vFd}, 32
                s_sub_u32 s{sFm}, s{sFm}, s{sTag}
                s_mul_i32 s{sBias}, s{sFm}, {int(xg*256)}
                s_sub_i32 s{sBias}, s{sBias}, {int(xg*256*fc['x0'])}
                s_cmp_lt_u32 s{sFm}, 8
                s_cselect_b32 s{sBias}, s{sBias}, 0
                """)
            if fc['scale']:
                P(f"s_lshl_b32 s{sFm}, s{sTagQ}, 8")
                if xg and (fc['hold'] or c - 1 in fc['xc']): P(f"s_add_i32 s{sFm}, s{sFm}, s{sBias}")
                P(f"""
                s_mul_i32 s{sFm}, s{sFm}, {pd}
                s_ashr_i32 s{sFm}, s{sFm}, 5
                s_add_i32 s{sBoost}, s{sBoost}, s{sFm}
                s_ashr_i32 s{sBoost}, s{sBoost}, 8
                """)
            else:
                if xg and (fc['hold'] or c - 1 in fc['xc']): P(f"s_add_i32 s{sBoost}, s{sBoost}, s{sBias}")
                P(f"s_ashr_i32 s{sBoost}, s{sBoost}, 8")
                if fc['tab']: P(f"s_add_i32 s{sBoost}, s{sBoost}, s{sTagQ}")
            fcs['start'] = i + 1

    nk, nv = 32, 160
    jw = 0
    bi = 0; lastbg = -1
    cur = None
    def consume_one():
        nonlocal nk, nv
        if st['kok'] and nk < 160 and nk <= land[0]:
            k_consume(nk); nk += 1
        elif st['vok'] and nv <= land[0]:
            v_consume(nv); nv += 1
        else: return False
        slots.extend(freed); freed.clear()
        return True
    def splittable(items, n):
        full = True; open_br = False
        for it in items[:n]:
            if it[0] == 'i':
                t = it[1]
                if t.startswith(('s_mov_b32 exec', 's_mov_b64 exec')): full = t.endswith('-1') and 'b64' in t
                if t.startswith('s_cbranch_scc'): open_br = True
            elif it[0] == 'l': open_br = False
        last = items[n-1]
        if last[0] == 'i' and last[1].startswith(('s_cmp', 's_cbranch', 's_getpc')): return False
        return full and not open_br
    minfree = 99
    for i in range(NS):
        m0 = len(P.ir)
        issue(i); fc_step(i)
        if i in bars and not barpre: P("s_barrier")
        if i + 1 == hpos: hello_store()
        if i + 1 == fast: block2()
        if i + 1 < len(first):
            for _ in range(first[i+1]): wq_load()
        minfree = min(minfree, len(slots))
        used = lambda: sum(cost(x) for x in P.ir[m0:])
        consume_one()
        lim = 10**9 if i == S0 else budget
        while True:
            if cur is None:
                if bi < len(bg) and bg[bi][0] <= i and lastbg + bg[bi][2] <= i and used() < lim:
                    keep = P.ir; P.ir = []
                    flag = bg[bi][1]()
                    cur = [P.ir, flag, list(freed), 0]; freed.clear(); P.ir = keep; bi += 1
                    if bg[bi-1][1] not in (c_setup, c_wsw, c_hello2, c_tlb): lim = min(lim, used() + budget) if i == S0 else lim
                else: break
            items = cur[0]; n = cur[3]; u = used()
            while n < len(items) and not (u >= lim and n > cur[3] and splittable(items, n)):
                u += cost(items[n]); n += 1
            P.ir.extend(items[cur[3]:n]); cur[3] = n
            if n < len(items): break
            if cur[1]: st[cur[1]] = True
            slots.extend(cur[2]); cur = None; lastbg = i
        c = 1
        while c < maxcatch and (used() < budget or len(slots) < 3) and consume_one(): c += 1
    assert bi == len(bg) and cur is None and nk == 160, (bi, len(bg), nk)
    endlag = NS - nv
    stamp("lastiss")
    P("; ---- tail begins")
    if spinif in ("retry", "ns"): P(f"s_mov_b32 s1, s{sSpin}")
    if tpad is not None:
        P("s_branch L_tail"); P.raw(f".p2align {tpad[0]}")
        if tpad[1]: P.raw(f".fill {tpad[1]}, 4, 0xbf800000")
        P.label("L_tail")
    def wo_next():
        nonlocal jw
        if ytail == jw: c_yw()
        if btail == jw: c_br3()
        wo_load(jw); jw += 1
    while tight and nv < NS:
        if nv == NS + jw - wopace[0] and nv < NS - 1:
            P.wait(sid[nv]); wo_next()
        v_consume(nv); nv += 1
    while tight and jw < 8: wo_next()
    while nv < NS:
        for _ in range(wolate):
            if jw < 8:
                if wopace:
                    tgt = sid[min(NS - 1, NS + jw - wopace[0])]
                    if wopace[1] is None: P.wait(tgt)
                    else: P.cwait(tgt, None, [f"s_cmp_gt_i32 s{sBoost}, {wopace[1]}"])
                if ytail == jw: c_yw()
                if btail == jw: c_br3()
                wo_load(jw); jw += 1
        v_consume(nv); nv += 1
    while jw < 8: wo_load(jw); jw += 1
    stamp("vdone")

    r = vWQ
    if not rdw:
        for q in range(4): P(f"v_mul_f32 v{vAcc+q}, v{vAcc+q}, v{vWt}")
    red_write([(vAcc, 0)])
    P("s_waitcnt lgkmcnt(0)")
    P("s_barrier")
    P(f"s_cmp_lg_u32 s{sWv}, 0" if bpub else f"s_cmp_eq_u32 s{sWv}, 3")
    P("s_cbranch_scc1 L_near_o")
    for k in range(4): P(f"ds_read2st64_b32 {v2(r+2*k)}, v{vAr} offset0:{L_RED//256+2*k} offset1:{L_RED//256+2*k+1}")
    if rdw:
        for k in range(4):
            P(f"s_waitcnt lgkmcnt({3-k})")
            P(f"v_add_f32 v{r+2*k}, v{r+2*k}, v{r+2*k+1}")
            P(f"v_mul_f32 v{r}, v{r}, v{vW4}" if k == 0 else f"v_fmac_f32 v{r}, v{r+2*k}, v{vW4+k}")
    else:
        P("s_waitcnt lgkmcnt(0)")
        sum8(r, r)
    if lean: P(f"v_cvt_pk_bf16_f32 v{r}, v{r}, v{r}")
    P(f"v_bfi_b32 v{r}, v{vFF}, v{vTb}, v{r}")
    t = f"buffer_store_dword v{r}, v{vL4}, {srd(rWS)}, s{sOp} offen"
    if swap: P.vm(t + " sc1"); P.label("L_near_o")
    else: publish("o", t)
    stamp("opub")
    P(f"""
    s_and_b32 s{sT0}, s{sCB}, 15
    s_cmp_ge_u32 s{sT0}, 14
    s_cbranch_scc1 L_done
    """)
    g = vQA; sMiss = sFm
    def ppoll(Q, name, lds, sets, dst, mid=None):
        n = len(lds); D = len(sets)
        def first():
            for k in range(n): Q(lds[k].replace("@", v4(sets[0]+4*k)))
        mid(Q, n, first)
        Q(f"s_mov_b64 {sp(sMiss)}, -1")
        if D > 1:
            Q(f"s_not_b32 s{sT0}, s{sTag}")
            for b in sets[1:]: Q(f"v_mov_b32 v{b}, s{sT0}")
        Q.label(f"L_poll{name}")
        for d in list(range(1, D)) + [0]:
            b = sets[d]
            Q(f"s_waitcnt vmcnt({n*(D-1)})")
            tagcheck(Q, range(b, b+4*n), [f's{x}' for x in [sTag] + sG[5:8]], 0xff)
            Q("s_wqm_b64 vcc, vcc")
            Q(f"s_andn2_b64 exec, {sp(sMiss)}, vcc")
            for k in range(4*n): Q(f"v_and_b32 v{dst+k}, 0xffffff00, v{b+k}")
            Q(f"s_and_b64 {sp(sMiss)}, {sp(sMiss)}, vcc")
            Q(f"s_cbranch_scc0 L_got{name}")
            Q(f"s_mov_b64 exec, {sp(sMiss)}")
            for k in range(n): Q(lds[k].replace("@", v4(b+4*k)))
            Q("s_mov_b64 exec, -1")
        Q(f"s_add_u32 s{sSpin}, s{sSpin}, 1")
        Q(f"s_cmp_gt_u32 s{sSpin}, 0x20000")
        Q(f"s_cbranch_scc0 L_poll{name}")
        Q.label(f"L_got{name}")
        Q("s_mov_b64 exec, -1")
    def mid(Q, n, first):
        if opos == 0: first()
        for q in range(4):
            Q(f"s_waitcnt vmcnt({(n if q >= opos else 0) + 6 - 2*q + sum(1 for z in (ytail, btail) if z is not None and z > 2*q+1)})")
            if q + 1 == opos: first()
            for e in range(8):
                Q(f"v_perm_b32 v{vWO+4*e+q}, v{vQD+4*(2*q+1)+(e>>1)}, v{vQD+4*(2*q)+(e>>1)}, s{sSel1 if e & 1 else sSel0}")
    if lean:
        ol = [f"buffer_load_dwordx4 {v4(g+4*k)}, v{vOg}, {srd(rWS)}, s{sOg} offen offset:{16*k} sc1" for k in range(2)]
        mid(P, 2, lambda: [P(t_) for t_ in ol])
        P.label("L_chkO")
        P("s_waitcnt vmcnt(0)")
        tagcheck(P, range(g, g+8), [f's{x}' for x in [sTag] + sG[5:8]], 0xff)
        for q in range(4): P(f"v_perm_b32 v{vX+q}, v{g+2*q+1}, v{g+2*q}, s{sSel1}")
        P("s_cbranch_vccnz L_pollO")
        P.label("L_gotO")
        P("s_bitcmp1_b32 s2, 5" if swap else "s_cmp_ge_u32 s2, 128")
        P("s_cbranch_scc1 L_addB")
        P.label("L_proj")
        Q = Prog(); Q.label("L_pollO")
        Q(f"s_add_u32 s{sSpin}, s{sSpin}, 1")
        Q(f"s_cmp_gt_u32 s{sSpin}, 0x40000")
        Q("s_cbranch_scc1 L_gotO")
        Q("s_wqm_b64 exec, vcc")
        for t_ in ol: Q(t_)
        Q("s_mov_b64 exec, -1")
        Q("s_branch L_chkO")
        Q.label("L_addB")
        for k in range(8): Q(f"v_and_b32 v{g+k}, 0xffffff00, v{g+k}")
        for k in range(8): Q(f"v_add_f32_dpp v{g+k}, v{g+k}, v{g+k} quad_perm:[2,3,0,1] {FULL}")
        for q in range(4): Q(f"v_cvt_pk_bf16_f32 v{vX+q}, v{g+2*q}, v{g+2*q+1}")
        Q("s_nop 0")
        Q("s_branch L_proj"); slow.insert(0, Q)
        stamp("ogot")
    else:
        ppoll(P, "O", [f"buffer_load_dwordx4 @, v{vOg}, {srd(rWS)}, s{sOg} offen offset:{16*k} sc1" for k in range(2)], [g+8, g+16, g+24][:DO], g, mid)
        P("s_bitcmp1_b32 s2, 5" if swap else "s_cmp_ge_u32 s2, 128")
        P("s_cbranch_scc1 L_addB")
        P.label("L_proj")
        Q = Prog(); Q.label("L_addB")
        for k in range(8): Q(f"v_add_f32_dpp v{g+k}, v{g+k}, v{g+k} quad_perm:[2,3,0,1] {FULL}")
        Q("s_branch L_proj"); slow.insert(0, Q)
        stamp("ogot")
        for q in range(4): P(f"v_cvt_pk_bf16_f32 v{vX+q}, v{g+2*q}, v{g+2*q+1}")
    for e in range(8): P(f"v_mfma_f32_16x16x32_bf16 {v4(vQD+4*e)}, {v4(vX)}, {v4(vWO+4*e)}, 0")
    for e in range(8):
        h = e & 1
        P(f"v_add_f32_dpp v{r+(e >> 1)}, v{vQD+4*e+1-h}, v{vQD+4*e+h} row_ror:8 row_mask:0xf bank_mask:{0xc if h else 0x3:#x}")
    P(f"""
    ds_write_b128 v{vPw}, {v4(r)} offset:{L_QRED}
    s_waitcnt lgkmcnt(0)
    s_barrier
    ds_read2st64_b32 {v2(r)}, v{vPr} offset0:{L_QRED//256} offset1:{L_QRED//256+4}
    ds_read2st64_b32 {v2(r+2)}, v{vPr} offset0:{L_QRED//256+8} offset1:{L_QRED//256+12}
    {('s_cmp_lg_u32 s%d, 0' % sFar) if swap else ('s_cmp_eq_u64 %s, -1' % sp(sYx))}
    s_waitcnt lgkmcnt(0)
    v_add_f32 v{r}, v{r}, v{r+1}
    v_add_f32 v{r+2}, v{r+2}, v{r+3}
    v_add_f32 v{r}, v{r}, v{r+2}
    v_bfi_b32 v{r+1}, v{vFF}, v{vTb}, v{r}
    s_mov_b64 exec, {sp(sYx)}
    """)
    t = f"buffer_store_dword v{r+1}, v{vYo}, {srd(rWS)}, s{sYp} offen"
    if swap: publish("y", t, True); P(f"s_cmp_eq_u64 {sp(sYx)}, -1")
    else: P.vm(t + " sc1")
    stamp("yapub")
    P("s_cbranch_scc1 L_done")
    f = vP
    if leany:
        P("s_mov_b64 vcc, -1")
        P.label("L_pollY")
        P("s_wqm_b64 exec, vcc")
        for k, vy in enumerate((vY0, vY1)): P(f"buffer_load_dwordx4 {v4(f+4*k)}, v{vy}, {srd(rWS)}, s{sYg} offen sc1")
        P(f"""
        s_mov_b64 exec, -1
        ds_bpermute_b32 v{r+2}, v{vBp}, v{r}
        s_add_u32 s{sSpin}, s{sSpin}, 1
        s_cmp_gt_u32 s{sSpin}, 0x40000
        s_waitcnt vmcnt(0) lgkmcnt(0)
        s_cbranch_scc1 L_gotY
        """)
        tagcheck(P, range(f, f+8), [f's{x}' for x in [sTag] + sG[5:8]], 0xff)
        P("s_cbranch_vccnz L_pollY")
        P.label("L_gotY")
        stamp("fgot")
        for k in range(8): P(f"v_and_b32 v{f+k}, 0xffffff00, v{f+k}")
    else:
        P("s_mov_b64 exec, -1")
        f = vP
        def midy(Q, n, first): first(); Q(f"ds_bpermute_b32 v{r+2}, v{vBp}, v{r}")
        ppoll(P, "Y", [f"buffer_load_dwordx4 @, v{vy}, {srd(rWS)}, s{sYg} offen sc1" for vy in (vY0, vY1)], [vWO+8*k for k in range(4)][:DY], f, midy)
        stamp("fgot")
    P(f"s_not_b64 exec, {sp(sOwn)}")
    for k in range(4): P(f"v_add_f32 v{f+k}, v{f+k}, v{f+4+k}")
    P("s_mov_b64 exec, -1")
    P(f"""
    v_permlane32_swap_b32 v{f}, v{f+1}
    v_permlane32_swap_b32 v{f+2}, v{f+3}
    v_add_f32 v{f}, v{f}, v{f+1}
    v_add_f32 v{f+2}, v{f+2}, v{f+3}
    v_permlane16_swap_b32 v{f}, v{f+2}
    v_add_f32 v{f}, v{f}, v{f+2}
    """)
    xlane("v_add_f32", f, None, ["r8"])
    if not leany: P("s_waitcnt lgkmcnt(0)")
    P(f"v_add_f32 v{f}, v{f}, v{r+2}")
    P(f"""
    v_cvt_pk_bf16_f32 v{f}, v{f}, v{f}
    s_mov_b32 exec_lo, 0x00ff00ff
    s_mov_b32 exec_hi, 0x00ff00ff
    """)
    P.vm(f"buffer_store_short v{f}, v{vOo}, {srd(rOUT)}, s{sOutO} offen")
    P(f"""
    s_cmp_lg_u32 s{sOutO}, 0
    s_cbranch_scc1 L_done
    s_mov_b64 exec, 1
    v_mov_b32 v{f+2}, s{sTag}
    """)
    P.vm(f"buffer_store_dword v{f+2}, v{vOo}, {srd(rWS)}, 0 offen")
    P.label("L_done")
    if spin:
        if spinif == "far": P(f"s_cmp_eq_u32 s{sFar}, 0\ns_cbranch_scc1 L_end")
        if spinif == "retry": P(f"s_cmp_eq_u32 s1, 0\ns_cbranch_scc1 L_end")
        if spinif in ("nq", "ns", "far1"): P(f"s_waitcnt lgkmcnt(0)\ns_mul_i32 s1, s1, 100\ns_add_u32 s{sSt}, s{sSt}, s1")
        if probe:
            P(f"s_waitcnt lgkmcnt(0)\ns_sub_u32 s{sLim}, s{sPr}, s{sSt}\ns_mul_i32 s{sLim}, s{sLim}, {probe[1]}\ns_add_u32 s{sLim}, s{sLim}, {spin}")
            if len(probe) > 2: P(f"s_and_b32 s{sT0}, s2, {probe[2]}\ns_cmp_lg_u32 s{sT0}, {probe[3]}\ns_cbranch_scc1 L_end")
        P.label("L_spin")
        P(f"""
        s_memrealtime {sp(sNow)}
        s_waitcnt lgkmcnt(0)
        s_sub_u32 s{sNow}, s{sNow}, s{sSt}
        s_cmp_lt_i32 s{sNow}, {('s%d' % sLim) if probe else spin}
        s_cbranch_scc1 L_spin
        """)
    if diag:
        P("s_mov_b64 exec, -1")
        stamp("end")
        P(f"""
        s_waitcnt lgkmcnt(0) vmcnt(0)
        s_lshl_b32 s{sT0}, s2, 2
        s_add_u32 s{sT0}, s{sT0}, s{sWv}
        s_lshl_b32 s{sT0}, s{sT0}, 7
        s_add_u32 s{sT0}, s{sT0}, {WS_DIAG}
        v_mov_b32 v{vT1}, 0
        s_mov_b64 exec, 1
        """)
        def dump(sreg, off):
            P(f"v_mov_b32 v{vT0}, s{sreg}")
            P.vm(f"buffer_store_dword v{vT0}, v{vT1}, {srd(rWS)}, s{sT0} offen offset:{off}")
        for n, (name, rr) in enumerate(stamps): dump(rr, 4*n)
        dump(sSpin, 4*len(stamps)); dump(sFar, 116)
        P(f"s_getreg_b32 s{sT1}, hwreg(HW_REG_XCC_ID)"); dump(sT1, 120)
        P(f"s_getreg_b32 s{sT1}, hwreg(HW_REG_HW_ID)"); dump(sT1, 124)
    P.label("L_end")
    P("s_endpgm")

    body, stats = P.render()
    for Q in slow: body += Q.render()[0]
    body += 'L_code_end:\n'
    head = open("cdna_kernels/" + KNAME[:-7] + ".s.ref").read().split("; Override launch")[0]
    txt = head + f"; @launch grid=(256,1,1) block=(256,1,1) lds={L_TOTAL}\n" + HEADER
    txt += f'.amdgcn_target "amdgcn-amd-amdhsa--gfx950"\n.text\n.globl {KNAME}\n.p2align 8\n.type {KNAME},@function\n{KNAME}:\n'
    txt += body
    txt += f""".section .rodata,"a"
.p2align 6
.amdhsa_kernel {KNAME}
  .amdhsa_next_free_vgpr 512
  .amdhsa_next_free_sgpr 102
  .amdhsa_accum_offset 256
  .amdhsa_group_segment_fixed_size 0
  .amdhsa_kernarg_size 104
  .amdhsa_user_sgpr_count 2
  .amdhsa_user_sgpr_kernarg_segment_ptr 1
  .amdhsa_system_sgpr_workgroup_id_x 1
.end_amdhsa_kernel
"""
    ids = list(range(256))
    act = [L for L in ids if (((L >> 6) & 1)*8 + (L & 7)) < 14]
    fin = [L for L in act if ((L >> 3) & 7) == (L & 7)]
    if prm:
        mm = lambda L: ((L >> 6) & 1)*8 + 2*(L & 3) + ((L >> 2) & 1)
        act = [L for L in ids if mm(L) < 14]; fin = [L for L in act if (mm(L) & 7) == ((L >> 3) & 7)]
    if swap:
        mm = lambda L: 4*((L >> 3) & 3) + (L >> 6)
        act = [L for L in ids if mm(L) < 14]; fin = [L for L in act if (mm(L) & 7) == (L & 7)]
    return txt, dict(stats, vhw=V.hw, shw=S.hw, minfree=minfree, endlag=endlag, stamps=[n for n, _ in stamps], who=dict(ogot=act, yapub=act, fgot=fin))

if __name__ == "__main__":
    import json
    kw = json.loads(sys.argv[2]) if len(sys.argv) > 2 else {}
    t, s = gen(**kw)
    open(sys.argv[1], "w").write(t)
    s.pop('who')
    print(s, file=sys.stderr)
```
